```python
import torch

def _softmax(x, axis=-1):
    return torch.softmax(x, dim=axis)
def _gelu(x):
    return torch.nn.functional.gelu(x, approximate="tanh")
def _silu(x):
    return torch.nn.functional.silu(x)
def _sigmoid(x):
    return torch.sigmoid(x)
def _layernorm(x, axis=-1, eps=1e-5):
    m = x.mean(dim=axis, keepdim=True)
    v = x.var(dim=axis, keepdim=True, unbiased=False)
    return (x - m) / torch.sqrt(v + eps)
def _scatter_add(tgt, idx, src, axis=0):
    return tgt.clone().index_add_(axis, idx, src)
def _segment_sum(src, seg, n):
    out = torch.zeros((n,) + src.shape[1:], dtype=src.dtype)
    return out.index_add_(0, seg, src)
def _pad(x, pw):
    flat = tuple(v for pair in reversed(pw) for v in pair)
    return torch.nn.functional.pad(x, flat)

kernel_name = 'concat_heads__linear_kernel_hedgehog__softmax_full_mha__prompt'

def setup_inputs():

    _w = (lambda a: (lambda t: t.to(torch.bfloat16) if t.is_floating_point() else t)(torch.as_tensor(a)))
    def _A_setup():
        B, S, D, H = 1, 2048, 576, 32
        Dh = D // H
        return {
            "x": _w((lambda *s: torch.randn(*s, dtype=torch.bfloat16) * 0.4)(B, S, D)),
            "wqkv": _w((lambda *s: torch.randn(*s, dtype=torch.bfloat16) * 0.4)(D, 3 * D)),
            "w_phi": _w((lambda *s: torch.randn(*s, dtype=torch.bfloat16) * 0.4)(H, Dh, Dh) * (Dh ** -0.5)),
            "wo": _w((lambda *s: torch.randn(*s, dtype=torch.bfloat16) * 0.05)(D, D)),
        }
    _A_in = _A_setup()

    def _B_setup():
        B, S, D = 1, 2048, 576
        return {
            "x": _w((lambda *s: torch.randn(*s, dtype=torch.bfloat16) * 0.2)(B, S, D)),
            "wqkv": _w((lambda *s: torch.randn(*s, dtype=torch.bfloat16) * 0.2)(D, 3 * D)),
            "wo": _w((lambda *s: torch.randn(*s, dtype=torch.bfloat16) * 0.05)(D, D)),
        }
    _B_in = _B_setup()

    return {
        "A_x": _A_in["x"],
        "A_wqkv": _A_in["wqkv"],
        "A_w_phi": _A_in["w_phi"],
        "A_wo": _A_in["wo"],
        "B_x": _B_in["x"],
        "B_wqkv": _B_in["wqkv"],
        "B_wo": _B_in["wo"],
    }

def reference(A_x, A_wqkv, A_w_phi, A_wo, B_x, B_wqkv, B_wo):
    def _A_ref(x, wqkv, w_phi, wo):
        B, S, D = x.shape
        H = 32; Dh = D // H
        qkv = (lambda x, *d: x.permute(*d))((x @ wqkv).reshape(B, S, 3, H, Dh), 2, 0, 3, 1, 4)
        q, k, v = qkv[0], qkv[1], qkv[2]
        pq = torch.einsum("bhsd,hdf->bhsf", q, w_phi)
        pk = torch.einsum("bhsd,hdf->bhsf", k, w_phi)
        phi_q = torch.concatenate([_softmax(pq, axis=-1), _softmax(-pq, axis=-1)], axis=-1)
        phi_k = torch.concatenate([_softmax(pk, axis=-1), _softmax(-pk, axis=-1)], axis=-1)
        kv = torch.einsum("bhsf,bhsd->bhfd", phi_k, v)
        z  = torch.einsum("bhsf->bhf", phi_k)
        num = torch.einsum("bhqf,bhfd->bhqd", phi_q, kv)
        den = torch.einsum("bhqf,bhf->bhq", phi_q, z)[..., None] + 1e-6
        o = num / den
        return (lambda x, *d: x.permute(*d))(o, 0, 2, 1, 3).reshape(B, S, D) @ wo

    def _B_ref(x, wqkv, wo):
        B, S, D = x.shape
        H = 32; Dh = D // H
        qkv = (lambda x, *d: x.permute(*d))((x @ wqkv).reshape(B, S, 3, H, Dh), 2, 0, 3, 1, 4)
        q, k, v = qkv[0], qkv[1], qkv[2]
        scale = Dh ** -0.5
        scores = torch.einsum("bhqd,bhkd->bhqk", q, k) * scale
        p = _softmax(scores, axis=-1)
        o = torch.einsum("bhqk,bhkd->bhqd", p, v)
        return (lambda x, *d: x.permute(*d))(o, 0, 2, 1, 3).reshape(B, S, D) @ wo

    a = _A_ref(A_x, A_wqkv, A_w_phi, A_wo)
    b = _B_ref(B_x, B_wqkv, B_wo)
    return torch.concatenate([a, b], axis=-1)
```

```python
import re, sys

TRANS = ('v_exp_f32', 'v_log_f32', 'v_rcp_f32', 'v_rsq_f32', 'v_sqrt_f32', 'v_sin_f32', 'v_cos_f32', 'v_rcp_iflag_f32', 'v_exp_f16')
PASSES = {'v_mfma_f32_32x32x16_bf16': 8, 'v_mfma_f32_32x32x8_bf16': 8, 'v_mfma_f32_32x32x4_2b_bf16': 16,
          'v_mfma_f32_16x16x32_bf16': 4, 'v_mfma_f32_16x16x16_bf16': 4}

def regs(tok):
    tok = tok.strip()
    tok = re.sub(r'^(-|abs\(|\|)+', '', tok).rstrip(')|')
    m = re.fullmatch(r'([vsa])(\d+)', tok)
    if m: return {(m.group(1), int(m.group(2)))}
    m = re.fullmatch(r'([vsa])\[(\d+):(\d+)\]', tok)
    if m: return {(m.group(1), i) for i in range(int(m.group(2)), int(m.group(3)) + 1)}
    if tok == 'vcc': return {('s', 'vcc')}
    if tok == 'exec': return {('s', 'exec')}
    if tok == 'm0': return {('s', 'm0')}
    return set()

class I:
    def __init__(self, text, line):
        self.text = text; self.line = line
        t = text.split(None, 1)
        self.op = t[0].replace('_e64', '')
        rest = t[1] if len(t) > 1 else ''
        parts = [p.strip() for p in rest.split(',')] if rest else []
        self.mods = ''
        if parts:
            lp = parts[-1].split(None, 1)
        m = re.search(r'\s(op_sel|op_sel_hi|neg_lo|neg_hi|offen|offset|offset0|dst_sel|cbsz|sc0|sc1|nt|lds|clamp|row_|quad_perm|bitop3|glc|mul:|div:)', ' ' + rest)
        if m:
            self.mods = rest[m.start():]; rest = rest[:max(m.start(), 0)]
        ops = [p.strip() for p in rest.split(',') if p.strip()]
        self.ops = ops
        op = self.op
        self.w = set(); self.r = set(); self.srcc = set(); self.ab = set()
        self.valu = op.startswith('v_') and not op.startswith('v_mfma')
        self.mfma = op.startswith('v_mfma')
        self.vmem = op.startswith('buffer_') or op.startswith('global_')
        self.ds = op.startswith('ds_')
        self.salu = op.startswith('s_')
        self.dma = self.vmem and ' lds' in (' ' + self.mods)
        R = [regs(o) for o in ops]
        if self.mfma:
            self.w = R[0]; self.ab = R[1] | R[2]; self.srcc = R[3]; self.r = self.ab | self.srcc
        elif self.valu:
            if op.startswith('v_cmp'):
                self.w = R[0]; self.r = set().union(*R[1:])
            elif op.startswith('v_permlane') and 'swap' in op:
                self.w = R[0] | R[1]; self.r = R[0] | R[1]
            elif op in ('v_add_co_u32', 'v_sub_co_u32', 'v_addc_co_u32'):
                self.w = R[0] | R[1]; self.r = set().union(*R[2:])
            else:
                self.w = R[0]; self.r = set().union(*R[1:]) if len(R) > 1 else set()
                if op.startswith('v_fmac') or 'UNUSED_PRESERVE' in self.mods or op == 'v_writelane_b32': self.r |= R[0]
                if op.startswith('v_cndmask') and len(ops) == 3: self.r |= {('s', 'vcc')}
        elif self.vmem:
            if 'store' in op or 'atomic' in op or self.dma or op in ('buffer_inv', 'buffer_wbl2'):
                self.r = set().union(*R) if R else set()
                if 'atomic' in op and 'sc0' in self.mods: self.w = R[0]
                if self.dma: self.r |= {('s', 'm0')}
            else:
                self.w = R[0]; self.r = set().union(*R[1:])
                if 'd16' in op: self.r |= R[0]
        elif self.ds:
            if op.startswith('ds_read') or 'rtn' in op or 'permute' in op or 'swizzle' in op:
                self.w = R[0]; self.r = set().union(*R[1:])
            else:
                self.r = set().union(*R)
        elif self.salu:
            if op.startswith('s_cmp') or op.startswith('s_bitcmp'):
                self.r = set().union(*R) if R else set()
            elif R:
                self.w = R[0]; self.r = set().union(*R[1:]) if len(R) > 1 else set()
                if 'saveexec' in op: self.w |= {('s', 'exec')}
        self.states = 1
        if op == 's_nop': self.states = int(ops[0], 0) + 1
        self.widestore = self.vmem and ('store' in op) and (op.endswith('x3') or op.endswith('x4'))
        self.storedata = R[0] if self.widestore else set()

def parse(text):
    ins = []; labels = {}
    for n, raw in enumerate(text.split('\n'), 1):
        s = raw.split(';')[0].strip()
        if not s or s.startswith('.'): continue
        m = re.fullmatch(r'([\w.$]+):', s)
        if m: labels[m.group(1)] = len(ins); continue
        ins.append(I(s, n))
    return ins, labels

def succ(ins, labels, i):
    x = ins[i]
    if x.op == 's_endpgm': return []
    if x.op == 's_branch': return [labels[x.ops[0]]]
    if x.op.startswith('s_cbranch'): return [i + 1, labels[x.ops[0]]]
    return [i + 1] if i + 1 < len(ins) else []

def need(p, c):
    vw = {r for r in p.w if r[0] in 'va'}; sw = {r for r in p.w if r[0] == 's'}
    out = (0, '')
    def up(n, why):
        nonlocal out
        if n > out[0]: out = (n, why)
    if p.valu:
        if c.mfma and vw & c.r: up(2, 'VALU->MFMA')
        if p.op in TRANS and c.valu and c.op not in TRANS and vw & (c.r): up(1, 'trans->VALU')
        if c.op.startswith('v_permlane') and vw & c.r: up(2, 'VALU->permlane')
        if c.op in ('v_readlane_b32', 'v_readfirstlane_b32') and vw & c.r: up(1, 'VALU->readlane')
        if c.valu and ('row_' in c.mods or 'quad_perm' in c.mods) and vw & c.r: up(2, 'VALU->DPP')
        if c.valu and sw & c.r: up(2, 'VALU sgpr->VALU')
        if c.vmem and sw & c.r: up(5, 'VALU sgpr->VMEM')
        if ('dst_sel' in p.mods or ('op_sel' in p.mods and not p.op.startswith('v_pk'))) and c.valu and vw & (c.r | c.w): up(1, 'opsel/sdwa->VALU')
    if p.mfma:
        n = PASSES[p.op]
        if c.mfma:
            if vw & c.ab: up(n + 4, 'MFMA D->MFMA A/B')
            if vw & c.srcc and not (c.op == p.op and c.srcc == vw): up(n + 2, 'MFMA D->MFMA C partial')
        elif c.valu:
            if vw & (c.r | c.w): up(n + 4, 'MFMA D->VALU')
            if p.srcc & c.w: up(n - 1, 'MFMA C WAR VALU')
        elif c.vmem or c.ds:
            if vw & (c.r | c.w): up(n + 4, 'MFMA D->mem')
    if p.salu and ('s', 'm0') in p.w and c.dma: up(1, 'm0->DMA')
    if p.widestore and c.valu and p.storedata & c.w: up(2, 'store data WAR')
    return out

def lint(text, maxw=21):
    ins, labels = parse(text)
    bad = []
    for i, p in enumerate(ins):
        if not (p.valu or p.mfma or p.widestore or (p.salu and ('s', 'm0') in p.w)): continue
        lim = maxw if p.mfma else 6
        seen = {}
        stack = [(j, 0) for j in succ(ins, labels, i)]
        while stack:
            j, d = stack.pop()
            if j >= len(ins) or d >= lim: continue
            if seen.get(j, 99) <= d: continue
            seen[j] = d
            c = ins[j]
            n, why = need(p, c)
            if n > d: bad.append((p.line, c.line, why, n, d, p.text, c.text))
            for k in succ(ins, labels, j): stack.append((k, d + c.states))
    return bad

if __name__ == '__main__':
    b = lint(open(sys.argv[1]).read())
    for x in b: print(f"line {x[0]} -> {x[1]}: {x[2]} need {x[3]} have {x[4]}\n    {x[5]}\n    {x[6]}")
    print(len(b), 'hazards')
```

```python
import sys, struct
from lint import lint

NAME = 'concat_heads__linear_kernel_hedgehog__softmax_full_mha__prompt'
OOB = 0x40000000
QM, QL, KV = 0x0, 0x200000, 0x240000
REC = 2432; HREC = 64 * REC
OAM, OAL, OBM, OBL = 0x700000, 0x900000, 0x940000, 0xB40000
KVP = 0xB80000; KVPS = 4608
FL1, FL2, FL3, FL4 = 0xCA0000, 0xCA8000, 0xCB0000, 0xCB8000
EPOCH = 0xCC0000
STAMPS = 0xD00000
WS_BYTES = 0x1000000
WREG = 32768
CNT = 115712
KVF = CNT + 256
XA = 131072
LDS_BYTES = 163840
C_F1, C_W, C_PHI, C_F2, C_KVF, C_F3, C_OPA, C_F4, C_BAD, C_OPA2 = [4 * i for i in range(10)]
sBX, sBW, sAX, sAW, sPHI, sAWO, sBWO, sOUT, sDBG, sWS = 4, 8, 12, 16, 20, 24, 28, 32, 36, 40
sWave, sCT, sRT, sH = 44, 45, 46, 47
sQB, sHA, sRB, sOT, sOC, sTok, sLoc, sXcd = 68, 69, 70, 71, 72, 73, 74, 75
sSpin = 76
T0, T1, T2, T3, T4, T5, T6, T7 = range(48, 56)
SSTAMP = 80
LOG2E = 1.4426950408889634
def f2u(x): return struct.unpack('<I', struct.pack('<f', x))[0]
QSCALE = f2u(18 ** -0.5 * LOG2E)

def v(a, n=1): return f'v{a}' if n == 1 else f'v[{a}:{a+n-1}]'
def s(a, n=1): return f's{a}' if n == 1 else f's[{a}:{a+n-1}]'
def srd(a): return s(a, 4)

class Asm:
    def __init__(self, diag=False):
        self.L = []; self.uid = 0; self.diag = diag; self.nstamp = 0
    def __call__(self, t):
        for x in t.split('\n'):
            x = x.strip()
            if x: self.L.append('    ' + x)
    def label(self, n): self.L.append(n + ':')
    def c(self, t): self.L.append('    ; ' + t)
    def new(self, p):
        self.uid += 1; return f'L_{p}{self.uid}'
    def nop(self, n):
        while n > 0:
            k = min(n, 16); self(f's_nop {k-1}'); n -= k
    def stamp(self, k):
        if self.diag:
            self(f's_memrealtime {s(94,2)}\ns_waitcnt lgkmcnt(0)\ns_mov_b32 {s(SSTAMP+k)}, s94')
    def cyc0(self):
        if self.diag: self('s_memtime s[94:95]\ns_waitcnt lgkmcnt(0)\ns_mov_b32 s93, s94')
    def cyc1(self):
        if self.diag: self('s_memtime s[94:95]\ns_waitcnt lgkmcnt(0)\ns_sub_u32 s93, s94, s93')
    def text(self): return '\n'.join(self.L) + '\n'

class VM:
    def __init__(self): self.q = []
    def add(self, tag, n=1): self.q += [tag] * n
    def after(self, tag):
        i = max(k for k, t in enumerate(self.q) if t == tag)
        return len(self.q) - 1 - i

def mfma(a, d, x, y, c=None, kind='16'):
    op = {'16': 'v_mfma_f32_32x32x16_bf16', '8': 'v_mfma_f32_32x32x8_bf16', '2b': 'v_mfma_f32_32x32x4_2b_bf16'}[kind]
    nd = 32 if kind == '2b' else 16; na = 4 if kind == '16' else 2
    a(f'{op} {v(d,nd)}, {v(x,na)}, {v(y,na)}, {"0" if c is None else v(c,nd)}')

def mk_srd(a, r, p, nbytes):
    a(f's_mov_b32 {s(r)}, {s(p)}\ns_mov_b32 {s(r+1)}, {s(p+1)}\ns_mov_b32 {s(r+2)}, {nbytes:#x}\ns_mov_b32 {s(r+3)}, 0x20000')

def spin_tail(a, top):
    a(f's_sleep 1\ns_sub_u32 {s(sSpin)}, {s(sSpin)}, 1\ns_cbranch_scc0 {top}\ns_endpgm')

def get_token(a, vt, vz, issue=True, check=True):
    top = a.new('tok'); done = a.new('tokd')
    if issue:
        a(f'buffer_load_dwordx2 {v(vt,2)}, {v(vz)}, {srd(sDBG)}, 0 offen sc1')
    if check:
        a.label(top)
        a(f's_waitcnt vmcnt(0)\nv_readfirstlane_b32 {s(T0)}, {v(vt+1)}\nv_readfirstlane_b32 {s(sTok)}, {v(vt)}\ns_cmp_lg_u32 {s(T0)}, 0\ns_cbranch_scc1 {done}')
        a(f'buffer_load_dwordx2 {v(vt,2)}, {v(vz)}, {srd(sDBG)}, 0 offen sc1')
        spin_tail(a, top)
        a.label(done)

def poll_flags(a, vaddr, vt):
    top = a.new('poll'); done = a.new('polld')
    a.label(top)
    a(f'buffer_load_dword {v(vt)}, {v(vaddr)}, {srd(sWS)}, 0 offen sc1\ns_waitcnt vmcnt(0)\nv_cmp_ne_u32 vcc, {s(sTok)}, {v(vt)}\ns_cbranch_vccz {done}')
    spin_tail(a, top)
    a.label(done)

def last_signals(a, vcnt, vone, vt, ctr, n, sflag):
    skip = a.new('nsig')
    a(f's_waitcnt vmcnt(0)\ns_mov_b64 exec, 1\nds_add_rtn_u32 {v(vt)}, {v(vcnt)}, {v(vone)} offset:{ctr}\ns_waitcnt lgkmcnt(0)')
    a(f'v_readfirstlane_b32 {s(T0)}, {v(vt)}\nv_mov_b32 {v(vt)}, {s(sflag)}\nv_mov_b32 {v(vt+1)}, {s(sTok)}\ns_cmp_lg_u32 {s(T0)}, {n-1}\ns_cbranch_scc1 {skip}')
    a(f'buffer_store_dword {v(vt+1)}, {v(vt)}, {srd(sWS)}, 0 offen sc1')
    a.label(skip)
    a('s_mov_b64 exec, -1')

def lds_arrive(a, vcnt, vone, ctr):
    a(f's_mov_b64 exec, 1\nds_add_u32 {v(vcnt)}, {v(vone)} offset:{ctr}\ns_mov_b64 exec, -1')

def lds_wait(a, vcnt, vt, ctr, n):
    top = a.new('lw'); done = a.new('lwd')
    a.label(top)
    a(f'ds_read_b32 {v(vt)}, {v(vcnt)} offset:{ctr}\ns_waitcnt lgkmcnt(0)\nv_readfirstlane_b32 {s(T0)}, {v(vt)}\ns_cmp_ge_u32 {s(T0)}, {n}\ns_cbranch_scc1 {done}')
    spin_tail(a, top)
    a.label(done)

def prologue(a):
    a(f's_cmp_ge_u32 s2, 256\ns_cbranch_scc1 L_end')
    a(f's_load_dwordx16 s[48:63], s[0:1], 0\ns_load_dwordx4 s[64:67], s[0:1], 64')
    if a.diag: a(f's_memrealtime {s(SSTAMP,2)}')
    a(f'v_lshrrev_b32 v1, 6, v0\nv_and_b32 v0, 63, v0\nv_readfirstlane_b32 {s(sWave)}, v1')
    a(f's_and_b32 {s(sXcd)}, s2, 7\ns_lshr_b32 {s(sLoc)}, s2, 3')
    a(f'''s_and_b32 s3, {s(sXcd)}, 1
    s_lshl_b32 s3, s3, 3
    s_and_b32 {s(sCT)}, {s(sLoc)}, 7
    s_add_u32 {s(sCT)}, {s(sCT)}, s3
    s_lshr_b32 s3, {s(sXcd)}, 1
    s_lshl_b32 s3, s3, 2
    s_lshr_b32 {s(sRT)}, {s(sLoc)}, 3
    s_add_u32 {s(sRT)}, {s(sRT)}, s3
    s_lshl_b32 s3, {s(sXcd)}, 2
    s_and_b32 {s(sH)}, {s(sLoc)}, 3
    s_add_u32 {s(sH)}, {s(sH)}, s3
    s_lshr_b32 {s(sQB)}, {s(sLoc)}, 2
    s_lshr_b32 {s(sOT)}, {s(sLoc)}, 3
    s_add_u32 {s(sOT)}, {s(sOT)}, s3
    s_and_b32 {s(sOC)}, {s(sLoc)}, 7
    s_and_b32 s3, {s(sXcd)}, 3
    s_lshl_b32 s3, s3, 3
    s_add_u32 {s(sHA)}, {s(sOC)}, s3
    s_lshr_b32 s3, {s(sXcd)}, 2
    s_lshl_b32 s3, s3, 2
    s_lshr_b32 {s(sRB)}, {s(sLoc)}, 3
    s_add_u32 {s(sRB)}, {s(sRB)}, s3
    s_mov_b32 {s(sSpin)}, 0x40000
    s_cmp_ge_u32 {s(sWave)}, 4
    s_cbranch_scc1 L_loader''')

def all_srds(a, first=()):
    spec = {sAX: (48, 2048*1152), sAW: (50, 576*3456), sPHI: (52, 32*648), sAWO: (54, 576*1152), sBX: (56, 2048*1152),
            sBW: (58, 576*3456), sBWO: (60, 576*1152), sOUT: (62, 2048*2304), sDBG: (64, 256), sWS: (66, WS_BYTES)}
    return spec

def op_addr(a, vm, vm2, vl, vl2, vt, skq_bytes, isB):
    t0, t1, t2, t3, t4 = vt, vt+1, vt+2, vt+3, vt+4
    a(f'''v_bfe_u32 {v(t0)}, v0, 2, 2
    v_lshrrev_b32 {v(t1)}, 5, v0
    v_and_b32 {v(t2)}, 3, v0
    v_bfe_u32 {v(t3)}, v0, 4, 1
    v_lshl_add_u32 {v(t2)}, {v(t3)}, 2, {v(t2)}
    v_lshl_add_u32 {v(t3)}, {v(t1)}, 2, {v(t0)}
    v_mul_u32_u24 {v(t3)}, 144, {v(t3)}
    v_add_u32 {v(t3)}, {s(skq_bytes)}, {v(t3)}
    v_lshl_add_u32 {v(vm)}, {v(t2)}, 3, {v(t3)}
    v_and_b32 {v(t4)}, 1, v0
    v_lshlrev_b32 {v(t4)}, 3, {v(t4)}
    v_add_u32 {v(t4)}, 128, {v(t4)}
    v_add_u32 {v(vm2)}, {v(t4)}, {v(t3)}''')
    a(f'''v_mul_u32_u24 {v(t1)}, 72, {v(t1)}
    v_lshrrev_b32 {v(t3)}, 1, {v(t0)}
    v_mul_u32_u24 {v(t3)}, {2 if isB else 18}, {v(t3)}
    v_and_b32 {v(t0)}, 1, {v(t0)}
    v_add3_u32 {v(t1)}, {v(t1)}, {v(t3)}, {v(t0)}
    v_add_u32 {v(t1)}, 16, {v(t1)}
    v_mul_u32_u24 {v(t1)}, 144, {v(t1)}
    v_add_u32 {v(t1)}, {s(skq_bytes)}, {v(t1)}
    v_lshl_add_u32 {v(vl)}, {v(t2)}, 3, {v(t1)}
    v_add_u32 {v(vl2)}, {v(t4)}, {v(t1)}''')

def op_read_w(a, W, vm, vm2, vl, vl2, isB, extra=0):
    for st in range(9):
        for T in range(3):
            for j in range(2):
                if st < 8:
                    off = (18*st + 8*j + (2 if (isB and st & 1) else 0)) * 144
                    base = vm if T < 2 else vm2
                else:
                    off = 36*j*144
                    base = vl if T < 2 else vl2
                off += extra + (64 if T == 1 else 0)
                a(f'ds_read_b64_tr_b16 {v(W + 12*st + 4*T + 2*j, 2)}, {v(base)} offset:{off}')

def op_load_o(a, O, vo16, vol, sM, sM2, sL):
    for i in range(8):
        a(f'buffer_load_dwordx4 {v(O+4*i,4)}, {v(vo16)}, {srd(sWS)}, {s(sM if i < 4 else sM2)} offen offset:{1024*(i&3)} sc1')
    for i in range(4):
        a(f'buffer_load_dword {v(O+32+i)}, {v(vol)}, {srd(sWS)}, {s(sL)} offen offset:{128*i} sc1')

def op_mfma(a, ACC, W, O, first, nvm_after=0):
    for st in range(9):
        n = (11 - st if st < 8 else 0) + nvm_after
        a(f's_waitcnt vmcnt({n})')
        for T in range(3):
            mfma(a, ACC + 16*T, W + 12*st + 4*T, O + 4*st, None if (first and st == 0) else ACC + 16*T)

def c_path(a, opt):
    vK, vKL, vV0, vV1 = 8, 10, 12, 14
    XAc, WAc, XAr, WAr = 16, 20, 24, 28
    FP = dict(x=32, w=40); FQ = dict(x=52, w=60)
    vTok = 72; vZero = 74; vCnt = 75; vOne = 76
    ACC = {('a', 0): 80, ('a', 1): 96, ('b', 0): 112, ('b', 1): 128, 'X': 144}
    v16 = 224; vVS = 225; vLs = 226; vLb0, vLh0, vLt0, vLb1, vSc0 = 227, 228, 229, 230, 231
    vPoll = 232; vInit = 233; vQL = 234
    sTH, sMG, sTile = 77, 78, 79
    sB = [56, 57, 58]; sHS = [59, 60, 61]; sTS = [62, 63, 64]; sSc = [65, 66, 67]
    a.c('================= C waves: phase 1 (B qkv gemm) =================')
    a(f's_and_b32 {s(sTH)}, {s(sWave)}, 1\ns_lshr_b32 {s(sMG)}, {s(sWave)}, 1')
    a(f'''v_and_b32 v1, 31, v0
    v_lshrrev_b32 v2, 5, v0
    v_bfe_u32 v3, v0, 1, 3
    v_xor_b32 v3, v3, v2
    s_lshl_b32 s3, {s(sTH)}, 13
    v_lshl_add_u32 v4, v1, 7, s3''')
    for k in range(4):
        a(f'v_xor_b32 v5, {2*k}, v3\nv_lshl_add_u32 {v(XAc+k)}, v5, 4, v4')
    a(f'''v_bfe_u32 v3, v0, 2, 2
    v_and_b32 v4, 3, v0
    v_bfe_u32 v5, v0, 4, 1
    v_lshl_add_u32 v4, v5, 2, v4
    v_lshl_add_u32 v5, v2, 3, v3
    v_lshlrev_b32 v5, 8, v5
    v_add_u32 v5, 16384, v5
    v_lshrrev_b32 v6, 1, v4
    v_lshl_add_u32 v6, v3, 2, v6
    v_and_b32 v7, 1, v4
    v_lshl_add_u32 v7, v7, 3, v5
    s_lshl_b32 s3, {s(sMG)}, 3
    v_add_u32 {v(WAc)}, s3, v6
    v_and_b32 {v(WAc)}, 15, {v(WAc)}
    v_lshl_add_u32 {v(WAc)}, {v(WAc)}, 4, v7
    v_add_u32 {v(WAc+1)}, 4, v6
    v_and_b32 {v(WAc+1)}, 15, {v(WAc+1)}
    v_lshl_add_u32 {v(WAc+1)}, {v(WAc+1)}, 4, v7
    v_min_u32 v6, 3, v4
    v_lshl_add_u32 v6, v3, 2, v6
    v_add_u32 v6, 12, v6
    v_and_b32 v6, 15, v6
    v_lshl_add_u32 {v(WAc+2)}, v6, 4, v5
    s_cmp_eq_u32 {s(sMG)}, 0
    s_cbranch_scc1 L_c_mg0
    v_mov_b32 {v(WAc+1)}, {v(WAc+2)}''')
    a.label('L_c_mg0')
    a('s_waitcnt lgkmcnt(0)')
    spec = all_srds(a)
    for r in (sWS, sDBG, sOUT): mk_srd(a, r, *spec[r])
    a(f'v_mov_b32 {v(vZero)}, 0\nv_mov_b32 {v(vCnt)}, {CNT}\nv_mov_b32 {v(vOne)}, 1')
    a(f's_or_b32 s3, s2, {s(sWave)}\ns_cmp_lg_u32 s3, 0\ns_cbranch_scc1 L_c_notok')
    a(f'''s_mov_b32 {s(T0)}, {EPOCH:#x}
    s_mov_b32 {s(T1)}, 1664525
    buffer_load_dword v5, {v(vZero)}, {srd(sWS)}, {s(T0)} offen sc1
    s_waitcnt vmcnt(0)
    v_mul_lo_u32 v6, v5, {s(T1)}
    v_add_u32 v6, 0x3c6ef35f, v6
    v_mov_b32 v7, 1
    s_mov_b64 exec, 1
    buffer_store_dwordx2 v[6:7], {v(vZero)}, {srd(sDBG)}, 0 offen sc1
    buffer_store_dword v6, {v(vZero)}, {srd(sWS)}, {s(T0)} offen sc1
    s_mov_b64 exec, -1''')
    a.label('L_c_notok')
    a(f's_lshl_b32 {s(sTile)}, {s(sRT)}, 2\ns_lshl_b32 s3, {s(sTH)}, 1\ns_add_u32 {s(sTile)}, {s(sTile)}, s3')
    for p in range(3):
        a(f'''s_mul_i32 {s(T0)}, {s(sCT)}, 6
        s_add_u32 {s(T0)}, {s(T0)}, {2*p}
        s_and_b32 {s(T1)}, {s(T0)}, 31
        s_mov_b32 {s(T6)}, {HREC}
        s_movk_i32 {s(T7)}, {REC}
        s_cmp_lt_u32 {s(T0)}, 32
        s_cselect_b32 {s(sHS[p])}, 0x10000, {s(T6)}
        s_cselect_b32 {s(sTS[p])}, 0x400, {s(T7)}
        s_cselect_b32 {s(T2)}, {QM}, {KV:#x}
        s_cselect_b32 {s(sSc[p])}, {QSCALE:#x}, 1.0
        s_mul_i32 {s(T3)}, {s(T1)}, {s(sHS[p])}
        s_add_u32 {s(T2)}, {s(T2)}, {s(T3)}
        s_mul_i32 {s(T3)}, {s(sTile)}, {s(sTS[p])}
        s_add_u32 {s(sB[p])}, {s(T2)}, {s(T3)}''')
        a(f'''s_lshl_b32 {s(T4)}, {s(T1)}, 13
        s_lshl_b32 {s(T5)}, {s(sTile)}, 7
        s_add_u32 {s(T4)}, {s(T4)}, {s(T5)}
        s_add_u32 {s(T4)}, {s(T4)}, {QL:#x}
        s_add_u32 {s(T5)}, {s(sB[p])}, 2304
        s_cmp_lt_u32 {s(T0)}, 32
        s_cselect_b32 {s(T4)}, {s(T4)}, {s(T5)}
        s_cselect_b32 {s(T5)}, 0x2000, {s(T6)}
        s_cselect_b32 {s(T6)}, 0x80, {s(T7)}
        s_cmp_lt_u32 {s(T0)}, 64
        s_cselect_b32 {s(T4)}, {s(T4)}, {OOB:#x}''')
        if p == 0:
            a(f'v_mov_b32 {v(vLb0)}, {s(T4)}\nv_mov_b32 {v(vLh0)}, {s(T5)}\nv_mov_b32 {v(vLt0)}, {s(T6)}\nv_mov_b32 {v(vSc0)}, {s(sSc[0])}')
        elif p == 1:
            a(f'''s_mov_b64 exec, 0xffffffff00000000
            v_mov_b32 {v(vLb0)}, {s(T4)}
            v_mov_b32 {v(vLh0)}, {s(T5)}
            v_mov_b32 {v(vLt0)}, {s(T6)}
            v_mov_b32 {v(vSc0)}, {s(sSc[1])}
            v_mov_b32 {v(vLb1)}, {OOB:#x}'''.replace('s_mov_b64 exec, 0xffffffff00000000', 's_mov_b32 exec_lo, 0\ns_mov_b32 exec_hi, -1'))
        else:
            a(f's_mov_b32 exec_lo, -1\ns_mov_b32 exec_hi, 0\nv_mov_b32 {v(vLb1)}, {s(T4)}\ns_mov_b64 exec, -1')
            sLh2, sLt2 = 100, 101
            a(f's_mov_b32 {s(sLh2)}, {s(T5)}\ns_mov_b32 {s(sLt2)}, {s(T6)}')
    a(f'''v_lshl_add_u32 {v(vLb0)}, v1, 2, {v(vLb0)}
    v_lshl_add_u32 {v(vLb1)}, v1, 2, {v(vLb1)}
    v_lshlrev_b32 {v(v16)}, 4, v0
    v_lshlrev_b32 {v(vQL)}, 2, v0
    v_lshrrev_b32 v3, 4, v1
    v_mul_u32_u24 v3, {HREC}, v3
    v_and_b32 v4, 15, v0
    v_lshlrev_b32 v4, 4, v4
    v_lshl_add_u32 v4, v2, 8, v4
    v_add_u32 {v(vVS)}, v3, v4''')
    a(f'''v_lshrrev_b32 v3, 1, v1
    v_and_b32 v4, 1, v1
    v_subrev_u32 v5, 12, v1
    v_cmp_le_u32 vcc, 12, v1
    v_mov_b32 v6, 2
    v_mov_b32 v7, 3
    v_cndmask_b32 v3, v3, v5, vcc
    v_cndmask_b32 v4, v4, v6, vcc
    v_subrev_u32 v5, 18, v1
    v_cmp_le_u32 vcc, 18, v1
    s_mul_i32 {s(T0)}, {s(sCT)}, 6
    s_sub_u32 {s(T0)}, {s(T0)}, 64
    v_cndmask_b32 v3, v3, v5, vcc
    v_cndmask_b32 v4, v4, v7, vcc
    v_add_u32 v3, {s(T0)}, v3
    v_mul_u32_u24 v5, {HREC}, v3
    v_lshl_add_u32 v5, v4, 4, v5
    v_lshl_add_u32 v5, v2, 6, v5
    v_mov_b32 v6, {OOB:#x}
    v_cmp_gt_u32 vcc, 32, v3
    v_cmp_gt_u32 {s(T2,2)}, 24, v1
    s_and_b64 vcc, vcc, {s(T2,2)}
    v_mov_b32 v7, 1.0
    s_nop 0
    v_cndmask_b32 {v(vLs)}, v6, v5, vcc
    v_cmp_eq_u32 vcc, 2, v4
    s_cmp_ge_u32 {s(sCT)}, 10
    s_cselect_b32 {s(T0)}, {s(sMG)}, 0
    s_cmp_lg_u32 {s(T0)}, 0
    s_cselect_b64 vcc, vcc, 0
    v_cndmask_b32 {v(vInit)}, {v(vZero)}, v7, vcc''')
    a(f'''v_mov_b32 {v(vK)}, {v(v16)}
    v_lshlrev_b32 {v(vKL)}, 2, v1
    v_add_u32 {v(vKL)}, 2304, {v(vKL)}
    v_lshlrev_b32 v3, 4, v1
    v_lshl_add_u32 v3, v2, 8, v3
    v_add_u32 v3, 1024, v3
    v_subrev_u32 v4, 16, v1
    v_cmp_eq_u32 vcc, 22, v1
    v_mov_b32 v5, 2
    v_mov_b32 v7, {OOB:#x}
    v_cndmask_b32 v4, v4, v5, vcc
    v_lshlrev_b32 v5, 4, v4
    v_lshl_add_u32 v5, v2, 6, v5
    v_add_u32 v5, 2048, v5
    v_cmp_gt_u32 vcc, 3, v4
    v_add_u32 v6, 128, v5
    s_nop 0
    v_cndmask_b32 v5, v7, v5, vcc
    v_cndmask_b32 v6, v7, v6, vcc
    v_cmp_gt_u32 vcc, 16, v1
    v_add_u32 v4, 512, v3
    s_nop 0
    v_cndmask_b32 {v(vV0)}, v5, v3, vcc
    v_cndmask_b32 {v(vV1)}, v6, v4, vcc''')
    for r in (vK, vKL, vV0, vV1): a(f'v_add_u32 {v(r+1)}, {2*REC}, {v(r)}')
    a(f'''s_add_u32 {s(T0)}, {s(sH)}, 32
    s_mul_i32 {s(T0)}, {s(T0)}, 43
    s_lshr_b32 {s(T0)}, {s(T0)}, 8
    s_add_u32 {s(T1)}, {s(sH)}, 64
    s_mul_i32 {s(T1)}, {s(T1)}, 43
    s_lshr_b32 {s(T1)}, {s(T1)}, 8
    s_mul_i32 {s(T2)}, {s(sH)}, 43
    s_lshr_b32 {s(T2)}, {s(T2)}, 8
    s_lshl_b32 {s(T3)}, {s(sMG)}, 3
    s_lshl_b32 {s(T0)}, {s(T0)}, 4
    s_add_u32 {s(T0)}, {s(T0)}, {s(T3)}
    s_lshl_b32 {s(T1)}, {s(T1)}, 4
    s_add_u32 {s(T1)}, {s(T1)}, {s(T3)}
    s_sub_u32 {s(T1)}, {s(T1)}, 8
    s_lshl_b32 {s(T2)}, {s(T2)}, 4
    s_lshl_b32 {s(T3)}, {s(sQB)}, 1
    s_add_u32 {s(T2)}, {s(T2)}, {s(T3)}
    s_add_u32 {s(T2)}, {s(T2)}, {s(sTH)}
    v_add_u32 v3, {s(T0)}, v0
    v_add_u32 v4, {s(T1)}, v0
    v_mov_b32 v5, {s(T2)}
    v_cmp_gt_u32 vcc, 16, v0
    s_nop 1
    v_cndmask_b32 v5, v5, v4, vcc
    v_cmp_gt_u32 vcc, 8, v0
    s_nop 1
    v_cndmask_b32 v5, v5, v3, vcc
    v_lshlrev_b32 v5, 7, v5
    v_add_u32 {v(vPoll)}, {FL1:#x}, v5''')
    for r in range(80, 112): a(f'v_mov_b32 {v(r)}, 0')
    for r in range(112, 144): a(f'v_mov_b32 {v(r)}, {v(vInit)}')
    for r in range(144, 160): a(f'v_mov_b32 {v(r)}, 0')
    for r in range(52, 72): a(f'v_mov_b32 {v(r)}, 0')
    sSlot, sIt = T6, T7
    a(f's_mov_b32 {s(sSlot)}, 0\ns_mov_b32 {s(sIt)}, 9')
    a.stamp(1)
    a(f'''s_cmp_lt_u32 {s(sCT)}, 10
    s_cbranch_scc1 L_gNN
    s_cmp_gt_u32 {s(sCT)}, 10
    s_cbranch_scc1 L_gSS
    s_cmp_eq_u32 {s(sMG)}, 0
    s_cbranch_scc1 L_gNN1
    s_branch L_gSS1''')
    def gemm_loop(name, o, extra):
        nw = 3 if extra == 'c' else 2
        nrd = 2 + 2*nw
        def reads(F, k):
            for tt in range(2): a(f'ds_read_b128 {v(F["x"]+4*tt,4)}, {v(XAr+k)} offset:{4096*tt}')
            for w in range(nw):
                for j in range(2): a(f'ds_read_b64_tr_b16 {v(F["w"]+4*w+2*j,2)}, {v(WAr+w)} offset:{4096*k+1024*j}')
        def mm(F):
            for w, nm in enumerate('ab'):
                for tt in range(2):
                    x, wf = F['x']+4*tt, F['w']+4*w
                    if o == 'N': mfma(a, ACC[(nm, tt)], wf, x, ACC[(nm, tt)])
                    else: mfma(a, ACC[(nm, tt)], x, wf, ACC[(nm, tt)])
            if extra == 'c': mfma(a, ACC['X'], F['w']+8, F['x'], ACC['X'])
            if extra == 'b': mfma(a, ACC['X'], F['w']+4, F['x']+4, ACC['X'])
        a.label(f'L_g{name}')
        for k in range(4): a(f'v_add_u32 {v(XAr+k)}, {s(sSlot)}, {v(XAc+k)}')
        for w in range(nw): a(f'v_add_u32 {v(WAr+w)}, {s(sSlot)}, {v(WAc+w)}')
        a(f's_add_u32 {s(sSlot)}, {s(sSlot)}, 0x8000\ns_and_b32 {s(sSlot)}, {s(sSlot)}, 0x1ffff\ns_barrier')
        reads(FP, 0); mm(FQ)
        reads(FQ, 1); a(f's_waitcnt lgkmcnt({min(nrd,15)})'); mm(FP)
        reads(FP, 2); a(f's_waitcnt lgkmcnt({min(nrd,15)})'); mm(FQ)
        reads(FQ, 3); a(f's_waitcnt lgkmcnt({min(nrd,15)})'); mm(FP)
        a(f's_sub_u32 {s(sIt)}, {s(sIt)}, 1\ns_cmp_lg_u32 {s(sIt)}, 0\ns_waitcnt lgkmcnt(0)\ns_cbranch_scc1 L_g{name}')
        a('s_barrier')
        get_token(a, vTok, vZero, issue=True, check=False)
        mm(FQ)
        a.stamp(2)
    def cvt8(src, dst):
        for i in range(4): a(f'v_cvt_pk_bf16_f32 {v(dst+i)}, {v(src+2*i)}, {v(src+2*i+1)}')
    heads = [0]
    def epi_nmain(nm, p):
        for tt in range(2):
            r = ACC[(nm, tt)]
            for i in range(8): a(f'v_pk_mul_f32 {v(r+2*i,2)}, {v(r+2*i,2)}, {s(sScP(p),2)} op_sel_hi:[1,0]')
            for hb in range(2):
                d = 32 + 4*((2*tt + hb + (4 if nm == 'b' else 0)) % 8)
                cvt8(r + 8*hb, d)
                a(f's_mul_i32 {s(T0)}, {s(sTSr(p))}, {tt}\ns_mul_i32 {s(T1)}, {s(sHSr(p))}, {hb}\ns_add_u32 {s(T0)}, {s(T0)}, {s(T1)}\ns_add_u32 {s(T0)}, {s(T0)}, {s(sBr(p))}')
                a(f'buffer_store_dwordx4 {v(d,4)}, {v(v16)}, {srd(sWS)}, {s(T0)} offen sc1')
    def epi_smain(nm, p):
        for tt in range(2):
            r = ACC[(nm, tt)]
            a(f's_add_u32 {s(T0)}, {s(sBr(p))}, {1024 + REC*tt}')
            for f in range(2):
                d = 32 + 4*((2*tt + f + (4 if nm == 'b' else 0)) % 8)
                cvt8(r + 8*f, d)
                a(f'buffer_store_dwordx4 {v(d,4)}, {v(vVS)}, {srd(sWS)}, {s(T0)} offen offset:{512*f} sc1')
    def epi_ln(r, tt):
        a(f'''v_mul_f32 {v(r)}, {v(vSc0)}, {v(r)}
        v_mul_f32 {v(r+1)}, {v(vSc0)}, {v(r+1)}
        v_mul_f32 {v(r+2)}, {v(vSc0)}, {v(r+2)}
        v_mul_f32 {v(r+3)}, {v(vSc0)}, {v(r+3)}
        v_mul_f32 {v(r+4)}, {s(sSc[2])}, {v(r+4)}
        v_mul_f32 {v(r+5)}, {s(sSc[2])}, {v(r+5)}
        v_mul_f32 {v(r+6)}, {s(sSc[2])}, {v(r+6)}
        v_mul_f32 {v(r+7)}, {s(sSc[2])}, {v(r+7)}''')
        cvt8(r, r + 8)
        if tt: a(f'v_add_u32 v1, {v(vLb0)}, {v(vLt0)}\nv_add_u32 v3, {s(101)}, {v(vLb1)}')
        else: a(f'v_mov_b32 v1, {v(vLb0)}\nv_mov_b32 v3, {v(vLb1)}')
        a(f'''v_add_u32 v2, v1, {v(vLh0)}
        v_add_u32 v4, {s(100)}, v3
        buffer_store_dword {v(r+8)}, v1, {srd(sWS)}, 0 offen sc1
        buffer_store_dword {v(r+9)}, v2, {srd(sWS)}, 0 offen sc1
        buffer_store_dword {v(r+10)}, v3, {srd(sWS)}, 0 offen sc1
        buffer_store_dword {v(r+11)}, v4, {srd(sWS)}, 0 offen sc1''')
    def epi_ls():
        for tt in range(2):
            r = ACC[('b', tt)]
            a(f's_add_u32 {s(T0)}, {s(sTile)}, {tt}\ns_mul_i32 {s(T0)}, {s(T0)}, {REC}\ns_add_u32 {s(T0)}, {s(T0)}, {KV + 2048:#x}')
            for f in range(2):
                d = 48 + 4*(2*tt + f)
                cvt8(r + 8*f, d)
                a(f'buffer_store_dwordx4 {v(d,4)}, {v(vLs)}, {srd(sWS)}, {s(T0)} offen offset:{128*f} sc1')
    sBr = lambda p: sB[p]; sHSr = lambda p: sHS[p]; sTSr = lambda p: sTS[p]
    def sScP(p): return T2 if p != 1 else T4
    def scale_prep(ps):
        for p in ps: a(f's_mov_b32 {s(sScP(p))}, {s(sSc[p])}')
    gemm_loop('NN', 'N', None)
    a(f's_cmp_eq_u32 {s(sMG)}, 0\ns_cbranch_scc0 L_eV2')
    scale_prep([0, 1]); a.nop(7); epi_nmain('a', 0); epi_nmain('b', 1); a('s_branch L_epi_done')
    a.label('L_eV2')
    scale_prep([2]); a.nop(8); epi_nmain('a', 2); epi_ln(ACC[('b', 0)], 0); epi_ln(ACC[('b', 1)], 1); a('s_branch L_epi_done')
    gemm_loop('SS', 'S', None)
    a(f's_cmp_eq_u32 {s(sMG)}, 0\ns_cbranch_scc0 L_eV3')
    a.nop(8); epi_smain('a', 0); epi_smain('b', 1); a('s_branch L_epi_done')
    a.label('L_eV3')
    a.nop(8); epi_smain('a', 2); epi_ls(); a('s_branch L_epi_done')
    gemm_loop('NN1', 'N', 'c')
    scale_prep([0, 1]); a.nop(8); epi_nmain('a', 0); epi_nmain('b', 1); epi_ln(ACC['X'], 0); a('s_branch L_epi_done')
    gemm_loop('SS1', 'S', 'b')
    a.nop(10); epi_smain('a', 2); epi_ls(); epi_ln(ACC['X'], 1)
    a.label('L_epi_done')
    a.stamp(3)
    get_token(a, vTok, vZero, issue=False, check=True)
    a(f's_lshl_b32 {s(T1)}, {s(sCT)}, 4\ns_add_u32 {s(T1)}, {s(T1)}, {s(sRT)}\ns_lshl_b32 {s(T1)}, {s(T1)}, 7\ns_add_u32 {s(T1)}, {s(T1)}, {FL1:#x}')
    last_signals(a, vCnt, vOne, 2, C_F1, 4, T1)
    a.stamp(4)

    a.c('================= C waves: attention =================')
    Qr, QLr, M = 16, 32, 36
    Kb, KLb, Vb, Sb, Ob = 40, 56, 64, 96, 160
    sCur, sNext, sLo, sHi, sN = T2, T3, T4, T5, T6
    vCnt2, vOne2, vZ2 = 236, 237, 238
    a(f'v_mov_b32 {v(vCnt2)}, {CNT}\nv_mov_b32 {v(vOne2)}, 1\nv_mov_b32 {v(vZ2)}, 0')
    for r in (QLr+1, QLr+3, KLb+1, KLb+3, KLb+5, KLb+7): a(f'v_mov_b32 {v(r)}, 0')
    a(f'''s_lshl_b32 {s(T0)}, {s(sH)}, 6
    s_lshl_b32 {s(T1)}, {s(sMG)}, 5
    s_add_u32 {s(T0)}, {s(T0)}, {s(T1)}
    s_mul_i32 {s(sLo)}, {s(T0)}, {REC}
    s_add_u32 {s(sLo)}, {s(sLo)}, {KV:#x}
    s_add_u32 {s(sHi)}, {s(sLo)}, {32*REC}''')
    sQm, sQl = 98, 99
    a(f'''s_lshl_b32 {s(T0)}, {s(sQB)}, 1
    s_add_u32 {s(T0)}, {s(T0)}, {s(sTH)}
    s_lshl_b32 {s(T1)}, {s(sH)}, 4
    s_add_u32 {s(T0)}, {s(T0)}, {s(T1)}
    s_lshl_b32 {s(sQm)}, {s(T0)}, 12
    s_lshl_b32 {s(sQl)}, {s(T0)}, 9
    s_add_u32 {s(sQl)}, {s(sQl)}, {QL:#x}''')
    poll_flags(a, vPoll, 2)
    a.stamp(5)
    for t in range(4): a(f'buffer_load_dwordx4 {v(Qr+4*t,4)}, {v(v16)}, {srd(sWS)}, {s(sQm)} offen offset:{1024*t} sc1')
    for j in range(2): a(f'buffer_load_dword {v(QLr+2*j)}, {v(vQL)}, {srd(sWS)}, {s(sQl)} offen offset:{256*j} sc1')
    def kv_loads(b, sreg):
        o = REC * (b & 1); u = b >> 1
        return [f'buffer_load_dwordx4 {v(Kb+4*b,4)}, {v(vK+u)}, {srd(sWS)}, {s(sreg)} offen offset:{o} sc1',
                f'buffer_load_dword {v(KLb+2*b)}, {v(vKL+u)}, {srd(sWS)}, {s(sreg)} offen offset:{o} sc1',
                f'buffer_load_dwordx4 {v(Vb+8*b,4)}, {v(vV0+u)}, {srd(sWS)}, {s(sreg)} offen offset:{o} sc1',
                f'buffer_load_dwordx4 {v(Vb+8*b+4,4)}, {v(vV1+u)}, {srd(sWS)}, {s(sreg)} offen offset:{o} sc1']
    def start_groups():
        a(f'''s_mul_i32 {s(sCur)}, {s(sQB)}, {4*REC}
        s_add_u32 {s(sCur)}, {s(sCur)}, {s(sLo)}
        s_add_u32 {s(sNext)}, {s(sCur)}, {4*REC}
        s_cmp_eq_u32 {s(sNext)}, {s(sHi)}
        s_cselect_b32 {s(sNext)}, {s(sLo)}, {s(sNext)}
        s_mov_b32 {s(sN)}, 8''')
    def adv_groups():
        return f'''s_mov_b32 {s(sCur)}, {s(sNext)}
        s_add_u32 {s(sNext)}, {s(sNext)}, {4*REC}
        s_cmp_eq_u32 {s(sNext)}, {s(sHi)}
        s_cselect_b32 {s(sNext)}, {s(sLo)}, {s(sNext)}'''
    def qk(N, kb, qp):
        return (lambda: mfma(a, N, KLb+2*kb, QLr+2*qp, None, '2b'),
                lambda: mfma(a, N, Kb+4*kb, Qr+8*qp, N),
                lambda: mfma(a, N+16, Kb+4*kb, Qr+8*qp+4, N+16))
    def step(qp, kb, ins, sub):
        S = Sb + 32*qp; N = Sb + 32*(1-qp)
        nkb = kb if qp == 0 else (kb+1) % 4
        pkb = (kb-1) % 4 if qp == 0 else kb
        QLm, Q0m, Q1m = qk(N, nkb, 1-qp)
        def E(x, y):
            for i in range(x, y):
                if sub: a(f'v_sub_f32 {v(S+i)}, {v(S+i)}, {v(M + 2*qp + i//16)}')
                a(f'v_exp_f32 {v(S+i)}, {v(S+i)}')
        def C(x, y):
            for j in range(x, y):
                b = S + 16*(j//8); k = j % 8
                a(f'v_cvt_pk_bf16_f32 {v(b + (k % 4) + 8*(k//4))}, {v(b+2*k)}, {v(b+2*k+1)}')
        def PV(t, f):
            o = Ob + 32*qp + 16*t
            mfma(a, o, Vb + 8*kb + 4*f, S + 16*t + 8*f, o)
        def I(k):
            if k in ins: a(ins[k])
        E(0, 2)
        o = Ob + 32*(1-qp) + 16
        mfma(a, o, Vb + 8*pkb + 4, N + 24, o); I('p')
        E(2, 5); QLm(); I('q'); E(5, 9); C(0, 4); E(9, 11); PV(0, 0); I('m0'); E(11, 17); C(4, 6); Q0m(); I('m1')
        C(6, 8); E(17, 19); PV(0, 1); I('m2'); E(19, 25); C(8, 12); Q1m(); I('m3'); E(25, 28); PV(1, 0); I('m4'); E(28, 32); C(12, 16)
    def attn_loop(name, sub):
        start_groups()
        for b in range(3):
            for x in kv_loads(b, sCur): a(x)
        for r in range(Ob, Ob+64): a(f'v_mov_b32 {v(r)}, 0')
        for r in range(Vb+28, Vb+32): a(f'v_mov_b32 {v(r)}, 0')
        for r in range(Sb+56, Sb+60): a(f'v_mov_b32 {v(r)}, 0')
        a('s_waitcnt vmcnt(8)')
        m = qk(Sb, 0, 0); m[0](); a.nop(18); m[1](); m[2](); a.nop(11)
        a.stamp(6)
        if not sub: a.cyc0()
        a('.p2align 6')
        a.label(name)
        for t in range(4):
            ld = kv_loads((t+3) % 4, sCur if t == 0 else sNext)
            step(0, t, {'q': ld[0], 'm0': ld[1], 'm1': ld[2], 'm2': ld[3]}, sub)
            ins = {'p': 's_waitcnt vmcnt(8)'}
            if t == 3:
                ins['m0'] = adv_groups()
                ins['m1'] = f's_sub_u32 {s(sN)}, {s(sN)}, 1'
                ins['m4'] = f's_cmp_lg_u32 {s(sN)}, 0'
            step(1, t, ins, sub)
        a(f's_cbranch_scc1 {name}')
        a.nop(1)
        mfma(a, Ob + 48, Vb + 28, Sb + 56, Ob + 48)
    attn_loop('L_attn', False)
    a.cyc1()
    a.stamp(7)
    a('s_waitcnt vmcnt(0)')
    lds_wait(a, vCnt2, 2, C_PHI, 4 if opt['A'] else 0)
    a(f's_mov_b32 {s(T0)}, {f2u(2.0**-64):#x}\ns_mov_b32 {s(T1)}, {f2u(2.0**64):#x}\ns_mov_b32 {s(T7)}, {f2u(2.0**120):#x}\ns_mov_b64 {s(T2,2)}, 0')
    for t in range(4):
        o = Ob + 16*t
        a(f'''v_pk_add_f32 v[2:3], {v(o,2)}, {v(o+2,2)}
        v_pk_add_f32 v[4:5], {v(o+4,2)}, {v(o+6,2)}
        v_pk_add_f32 v[2:3], v[2:3], {v(o+8,2)}
        v_cmp_nle_f32 vcc, {s(T0)}, {v(o+10)}
        v_pk_add_f32 v[2:3], v[2:3], v[4:5]
        s_or_b64 {s(T2,2)}, {s(T2,2)}, vcc
        v_cmp_nge_f32 vcc, {s(T1)}, {v(o+10)}
        v_add_f32 v2, v2, v3
        s_or_b64 {s(T2,2)}, {s(T2,2)}, vcc
        v_cmp_ngt_f32 vcc, {s(T7)}, abs(v2)
        s_or_b64 {s(T2,2)}, {s(T2,2)}, vcc''')
    a(f's_cmp_eq_u64 {s(T2,2)}, 0\ns_cbranch_scc1 L_chk_ok')
    a(f'ds_write_b32 {v(vCnt2)}, {v(vOne2)} offset:{C_BAD}')
    a.label('L_chk_ok')
    sChk = 97
    a(f's_mov_b32 {s(sChk)}, 1')
    a.label('L_reduce')
    a(f'''s_mul_i32 {s(T0)}, {s(sWave)}, 6144
    v_add_u32 v1, {s(T0)}, {v(v16)}
    s_xor_b32 {s(T0)}, {s(sWave)}, 2
    s_mul_i32 {s(T0)}, {s(T0)}, 6144
    v_add_u32 v6, {s(T0)}, {v(v16)}
    s_cmp_eq_u32 {s(sMG)}, 0
    s_cbranch_scc1 L_red0''')
    for t in range(2):
        o = Ob + 16*t
        a(f'ds_write_b128 v1, {v(o,4)} offset:{3072*t}\nds_write_b128 v1, {v(o+4,4)} offset:{3072*t+1024}\nds_write_b96 v1, {v(o+8,3)} offset:{3072*t+2048}')
    for t in range(2):
        for i in range(0, 12, 2): a(f'v_pk_mov_b32 {v(Ob+16*t+i,2)}, {v(Ob+32+16*t+i,2)}, {v(Ob+32+16*t+i,2)} op_sel:[0,1]')
    a('s_branch L_red1')
    a.label('L_red0')
    for t in range(2):
        o = Ob + 32 + 16*t
        a(f'ds_write_b128 v1, {v(o,4)} offset:{3072*t}\nds_write_b128 v1, {v(o+4,4)} offset:{3072*t+1024}\nds_write_b96 v1, {v(o+8,3)} offset:{3072*t+2048}')
    a.label('L_red1')
    a('s_waitcnt lgkmcnt(0)\ns_barrier')
    a(f'ds_read_b32 v7, {v(vCnt2)} offset:{C_BAD}')
    for t in range(2):
        o = Ob + 32 + 16*t
        a(f'ds_read_b128 {v(o,4)}, v6 offset:{3072*t}\nds_read_b128 {v(o+4,4)}, v6 offset:{3072*t+1024}\nds_read_b96 {v(o+8,3)}, v6 offset:{3072*t+2048}')
    a(f's_waitcnt lgkmcnt(6)\nv_readfirstlane_b32 {s(T0)}, v7\ns_and_b32 {s(T0)}, {s(T0)}, {s(sChk)}\ns_cmp_lg_u32 {s(T0)}, 0\ns_cbranch_scc1 L_fallback')
    a(f'''s_lshl_b32 {s(T0)}, {s(sQB)}, 3
    s_lshl_b32 {s(T1)}, {s(sTH)}, 2
    s_add_u32 {s(T0)}, {s(T0)}, {s(T1)}
    s_lshl_b32 {s(T1)}, {s(sMG)}, 1
    s_add_u32 {s(T0)}, {s(T0)}, {s(T1)}
    s_lshl_b32 {s(T0)}, {s(T0)}, 5
    s_add_u32 {s(T0)}, {s(T0)}, {s(sH)}
    s_lshl_b32 {s(T2)}, {s(T0)}, 10
    s_add_u32 {s(T2)}, {s(T2)}, {OBM:#x}
    s_add_u32 {s(T3)}, {s(T2)}, 0x8000
    s_lshl_b32 {s(T4)}, {s(T0)}, 7
    s_add_u32 {s(T4)}, {s(T4)}, {OBL:#x}
    s_add_u32 {s(T5)}, {s(T4)}, 0x1000''')
    for t in range(2):
        o = Ob + 16*t; p = Ob + 32 + 16*t
        a(f's_waitcnt lgkmcnt({3 - 3*t})')
        a(f'v_add_f32 {v(o+10)}, {v(o+10)}, {v(p+10)}')
        a(f'v_pk_add_f32 {v(o,2)}, {v(o,2)}, {v(p,2)}\nv_rcp_f32 {v(o+10)}, {v(o+10)}')
        for i in range(2, 10, 2): a(f'v_pk_add_f32 {v(o+i,2)}, {v(o+i,2)}, {v(p+i,2)}')
        for i in range(0, 10, 2): a(f'v_pk_mul_f32 {v(o+i,2)}, {v(o+i,2)}, {v(o+10,2)} op_sel_hi:[1,0]')
        cvt8(o, p)
        a(f'v_cvt_pk_bf16_f32 {v(p+4)}, {v(o+8)}, {v(o+9)}')
        a(f'buffer_store_dwordx4 {v(p,4)}, {v(v16)}, {srd(sWS)}, {s(T2+t)} offen sc1')
        a(f's_mov_b32 exec_hi, 0\nbuffer_store_dword {v(p+4)}, {v(vQL)}, {srd(sWS)}, {s(T4+t)} offen sc1\ns_mov_b32 exec_hi, -1')
    a.stamp(8)
    a(f's_lshl_b32 {s(T1)}, {s(sQB)}, 5\ns_add_u32 {s(T1)}, {s(T1)}, {s(sH)}\ns_lshl_b32 {s(T1)}, {s(T1)}, 7\ns_add_u32 {s(T1)}, {s(T1)}, {FL4:#x}')
    final_prep(a)
    last_signals(a, vCnt2, vOne2, 2, C_F4, 4, T1)
    a.stamp(9)
    a('s_branch L_final')

    a.label('L_fallback')
    a.c('stand-in was unsafe somewhere in this workgroup: redo with the true row max')
    a(f's_waitcnt lgkmcnt(0)\ns_mov_b32 {s(sChk)}, 0')
    for t in range(4): a(f'v_mov_b32 {v(M+t)}, 0xff800000')
    a(f's_mov_b32 {s(sCur)}, {s(sLo)}')
    a.label('L_maxloop')
    for x in kv_loads(0, sCur)[:2]: a(x)
    a('s_waitcnt vmcnt(0)')
    for qp in range(2):
        m = qk(Sb + 32*qp, 0, qp); m[0]()
    a.nop(18)
    for qp in range(2):
        m = qk(Sb + 32*qp, 0, qp); m[1](); m[2]()
    a.nop(12)
    for t in range(4):
        for i in range(0, 16, 2): a(f'v_max3_f32 {v(M+t)}, {v(Sb+16*t+i)}, {v(Sb+16*t+i+1)}, {v(M+t)}')
    a(f's_add_u32 {s(sCur)}, {s(sCur)}, {REC}\ns_cmp_lg_u32 {s(sCur)}, {s(sHi)}\ns_cbranch_scc1 L_maxloop')
    for t in range(4): a(f'v_mov_b32 {v(Sb+t)}, {v(M+t)}')
    a.nop(2)
    for t in range(4): a(f'v_permlane32_swap_b32 {v(Sb+t)}, {v(M+t)}')
    a.nop(1)
    for t in range(4): a(f'v_max_f32 {v(M+t)}, {v(M+t)}, {v(Sb+t)}')
    a(f'''s_lshl_b32 {s(T0)}, {s(sWave)}, 10
    s_add_u32 {s(T0)}, {s(T0)}, 24576
    v_add_u32 v1, {s(T0)}, {v(v16)}
    v_xor_b32 v6, 2048, v1
    ds_write_b128 v1, {v(M,4)}
    s_waitcnt lgkmcnt(0)
    s_barrier
    ds_read_b128 {v(Sb,4)}, v6
    s_waitcnt lgkmcnt(0)''')
    for t in range(4): a(f'v_max_f32 {v(M+t)}, {v(M+t)}, {v(Sb+t)}')
    attn_loop('L_attn2', True)
    a('s_waitcnt vmcnt(0)')
    a.nop(12)
    a('s_branch L_reduce')

FW, FO, FA = 16, 128, 168
vFm, vFm2, vFl, vFl2, vFo, vFol = 8, 9, 10, 11, 12, 13
def final_prep(a):
    a(f's_lshr_b32 {s(T6)}, {s(sWave)}, 1\ns_mul_i32 {s(T6)}, {s(T6)}, 20736\ns_add_u32 {s(T6)}, {s(T6)}, {WREG}')
    op_addr(a, vFm, vFm2, vFl, vFl2, 2, T6, True)
    op_read_w(a, FW, vFm, vFm2, vFl, vFl2, True)

def final(a):
    a.label('L_final')
    a.c('================= all waves: out projection of B =================')
    sM, sM2, sL = T2, T3, T4
    a(f'''v_lshlrev_b32 {v(vFo)}, 4, v0
    v_and_b32 v1, 31, v0
    v_lshrrev_b32 v2, 5, v0
    v_lshlrev_b32 v3, 2, v1
    v_lshl_add_u32 {v(vFol)}, v2, 9, v3
    s_and_b32 {s(T0)}, {s(sWave)}, 1
    s_lshl_b32 {s(T1)}, {s(sOT)}, 1
    s_add_u32 {s(T5)}, {s(T0)}, {s(T1)}
    s_lshl_b32 {s(T0)}, {s(T5)}, 5
    s_lshr_b32 {s(T6)}, {s(sWave)}, 1
    s_lshl_b32 {s(T1)}, {s(T6)}, 3
    s_add_u32 {s(T0)}, {s(T0)}, {s(T1)}
    s_lshl_b32 {s(sM)}, {s(T0)}, 10
    s_add_u32 {s(sM)}, {s(sM)}, {OBM:#x}
    s_add_u32 {s(sM2)}, {s(sM)}, 4096
    s_lshl_b32 {s(sL)}, {s(T0)}, 7
    s_add_u32 {s(sL)}, {s(sL)}, {OBL:#x}
    s_waitcnt lgkmcnt(0)
    s_barrier''')
    a.stamp(10)
    op_load_o(a, FO, vFo, vFol, sM, sM2, sL)
    a(f'''s_mul_i32 {s(T0)}, {s(sWave)}, 9216
    v_add_u32 v4, {s(T0)}, {v(vFo)}
    s_and_b32 {s(T0)}, {s(sWave)}, 1
    s_mul_i32 {s(T0)}, {s(T0)}, 9216
    s_lshl_b32 {s(T1)}, {s(T6)}, 11
    s_add_u32 {s(T1)}, {s(T1)}, {s(T0)}
    v_add_u32 v5, {s(T1)}, {v(vFo)}
    v_add_u32 v6, {s(T0)}, {v(vFo)}
    v_mul_u32_u24 v7, 2304, v1
    v_lshl_add_u32 v14, v2, 3, v7
    v_lshl_add_u32 v7, v2, 4, v7
    s_mul_i32 {s(T0)}, {s(T5)}, {32*2304}
    s_mul_i32 {s(T1)}, {s(sOC)}, 144
    s_add_u32 {s(T0)}, {s(T0)}, {s(T1)}
    s_add_u32 {s(T7)}, {s(T0)}, 1152
    s_lshl_b32 {s(T1)}, {s(T6)}, 5
    s_add_u32 {s(T5)}, {s(T7)}, {s(T1)}''')
    op_mfma(a, FA, FW, FO, True)
    a.nop(10)
    for q in range(9): a(f'ds_write_b128 v4, {v(FA+4*q,4)} offset:{1024*q}')
    a('s_waitcnt lgkmcnt(0)\ns_barrier')
    a.stamp(11)
    R = 16
    for k in range(4):
        for q in range(2): a(f'ds_read_b128 {v(R+8*k+4*q,4)}, v5 offset:{18432*k + 1024*q}')
    a(f's_cmp_lg_u32 {s(T6)}, 0\ns_cbranch_scc1 L_fin_a')
    for k in range(4): a(f'ds_read_b128 {v(R+32+4*k,4)}, v6 offset:{18432*k + 8192}')
    a('s_waitcnt lgkmcnt(0)')
    for k in range(1, 4):
        for i in range(2): a(f'v_pk_add_f32 {v(R+32+2*i,2)}, {v(R+32+2*i,2)}, {v(R+32+4*k+2*i,2)}')
    a(f'v_cvt_pk_bf16_f32 {v(R+40)}, {v(R+32)}, {v(R+33)}\nv_cvt_pk_bf16_f32 {v(R+41)}, {v(R+34)}, {v(R+35)}')
    a(f'buffer_store_dwordx2 {v(R+40,2)}, v14, {srd(sOUT)}, {s(T7)} offen offset:128')
    a.label('L_fin_a')
    a('s_waitcnt lgkmcnt(0)')
    for k in range(1, 4):
        for i in range(4): a(f'v_pk_add_f32 {v(R+2*i,2)}, {v(R+2*i,2)}, {v(R+8*k+2*i,2)}')
    for i in range(4): a(f'v_cvt_pk_bf16_f32 {v(R+8+i)}, {v(R+2*i)}, {v(R+2*i+1)}')
    a(f's_nop 1\nv_permlane32_swap_b32 {v(R+8)}, {v(R+10)}\nv_permlane32_swap_b32 {v(R+9)}, {v(R+11)}')
    a(f'buffer_store_dwordx4 {v(R+8,4)}, v7, {srd(sOUT)}, {s(T5)} offen')
    if a.diag:
        a('s_waitcnt vmcnt(0)')
        a.stamp(12)
        a(f's_lshl_b32 {s(T0)}, s2, 3\ns_add_u32 {s(T0)}, {s(T0)}, {s(sWave)}\ns_lshl_b32 {s(T0)}, {s(T0)}, 7\ns_add_u32 {s(T0)}, {s(T0)}, {STAMPS:#x}')
        for k in range(16): a(f'v_mov_b32 {v(16+k)}, {s(SSTAMP+k)}')
        a('v_mov_b32 v1, 0\ns_mov_b64 exec, 1')
        for k in range(4): a(f'buffer_store_dwordx4 {v(16+4*k,4)}, v1, {srd(sWS)}, {s(T0)} offen offset:{16*k}')
    a.label('L_end')
    a('s_endpgm')

def l_path(a, opt):
    vX, vW, vWA, vWO = 8, 12, 16, 19
    WPH, WL, WLq, WLk = 24, 28, 30, 32
    XAc, XAr, WAc, WAr = 34, 38, 42, 44
    vCnt, vOne, vZero, vTok = 244, 245, 246, 248
    v16 = 247
    sLW = 77
    sXB, sWB, sKC, sSX, sSW = 78, 79, 98, 99, 100
    a.label('L_loader')
    a.c('================= L waves: phase 1 loader =================')
    a(f's_sub_u32 {s(sLW)}, {s(sWave)}, 4')
    a(f'''v_lshrrev_b32 v1, 3, v0
    v_and_b32 v2, 7, v0
    v_lshrrev_b32 v3, 1, v1
    v_xor_b32 v2, v2, v3
    v_mul_u32_u24 v1, 1152, v1
    v_lshl_add_u32 {v(vX)}, v2, 4, v1
    v_xor_b32 v2, 4, v2
    v_lshl_add_u32 {v(vX+1)}, v2, 4, v1
    v_add_u32 {v(vX+1)}, {8*1152-1024}, {v(vX+1)}
    v_add_u32 {v(vX+2)}, {2*(8*1152-1024)}, {v(vX)}
    v_add_u32 {v(vX+3)}, {2*(8*1152-1024)}, {v(vX+1)}
    v_lshrrev_b32 v1, 4, v0
    v_lshlrev_b32 v2, 2, v1
    v_sub_u32 v2, v0, v2
    v_and_b32 v2, 15, v2
    v_and_b32 v3, 3, v2
    v_lshrrev_b32 v4, 2, v2
    v_mul_u32_u24 v5, 72, v4
    v_lshl_add_u32 v5, v3, 4, v5
    v_lshrrev_b32 v6, 1, v3
    v_lshl_add_u32 v5, v6, 3, v5
    v_mul_u32_u24 v6, 72, v3
    v_add_u32 v6, 32, v6
    v_cmp_eq_u32 vcc, 3, v4
    v_mul_u32_u24 v1, 3456, v1
    v_mov_b32 v7, {OOB:#x}
    v_cndmask_b32 v5, v5, v6, vcc
    v_cmp_eq_u32 vcc, 15, v2
    v_add_u32 v5, v5, v1
    s_nop 0
    v_cndmask_b32 {v(vW)}, v5, v7, vcc''')
    for i in range(1, 4): a(f'v_add_u32 {v(vW+i)}, {i*(4*3456-1024)}, {v(vW)}')
    a(f'''s_lshl_b32 {s(sXB)}, {s(sRT)}, 2
    s_add_u32 {s(sXB)}, {s(sXB)}, {s(sLW)}
    s_mul_i32 {s(sXB)}, {s(sXB)}, {32*1152}
    s_mul_i32 {s(sWB)}, {s(sLW)}, {16*3456}
    s_mul_i32 s3, {s(sCT)}, 216
    s_add_u32 {s(sWB)}, {s(sWB)}, s3''')
    a(f'''s_and_b32 {s(sKC)}, {s(sLoc)}, 7
    s_lshr_b32 s3, {s(sLoc)}, 3
    s_lshl_b32 s3, s3, 1
    s_add_u32 {s(sKC)}, {s(sKC)}, s3
    s_cmp_ge_u32 {s(sKC)}, 9
    s_cselect_b32 s3, 9, 0
    s_sub_u32 {s(sKC)}, {s(sKC)}, s3''')
    if not opt.get('rot', True): a(f's_mov_b32 {s(sKC)}, 0')
    sM0 = 101
    a(f's_lshl_b32 {s(sM0)}, {s(sLW)}, 12')
    a('s_waitcnt lgkmcnt(0)')
    spec = all_srds(a)
    for r in (sBX, sBW): mk_srd(a, r, *spec[r])
    vm = VM()
    def next_chunk():
        a(f's_add_u32 {s(sKC)}, {s(sKC)}, 1\ns_cmp_eq_u32 {s(sKC)}, 9\ns_cselect_b32 {s(sKC)}, 0, {s(sKC)}')
    def issue_b(j):
        slot = (j % 4) * 32768
        a(f'''s_lshl_b32 {s(sSX)}, {s(sKC)}, 7
        s_add_u32 {s(sSX)}, {s(sSX)}, {s(sXB)}
        s_add_u32 m0, {s(sM0)}, {slot}
        s_mul_i32 {s(sSW)}, {s(sKC)}, {64*3456}''')
        for i in range(4): a(f'buffer_load_dwordx4 {v(vX+i)}, {srd(sBX)}, {s(sSX)} offen offset:{1024*i} lds')
        a(f's_add_u32 m0, {s(sM0)}, {slot + 16384}\ns_add_u32 {s(sSW)}, {s(sSW)}, {s(sWB)}')
        for i in range(4): a(f'buffer_load_dwordx4 {v(vW+i)}, {srd(sBW)}, {s(sSW)} offen offset:{1024*i} lds')
        next_chunk()
        vm.add(('b', j), 8)
    for j in range(4): issue_b(j)
    a.stamp(1)
    for r in (sAX, sAW, sPHI, sAWO, sBWO, sOUT, sDBG, sWS): mk_srd(a, r, *spec[r])
    a(f'v_mov_b32 {v(vZero)}, 0\nv_mov_b32 {v(vCnt)}, {CNT}\nv_mov_b32 {v(vOne)}, 1\nv_lshlrev_b32 {v(v16)}, 4, v0')
    if opt['A']:
        a(f'''v_and_b32 v1, 31, v0
        v_lshrrev_b32 v2, 5, v0
        v_cmp_eq_u32 vcc, 20, v1
        v_mov_b32 v3, 17
        v_mov_b32 v4, {OOB:#x}
        v_cndmask_b32 v3, v1, v3, vcc
        v_cmp_ge_u32 {s(T0,2)}, 16, v1
        s_or_b64 vcc, vcc, {s(T0,2)}
        v_lshlrev_b32 v3, 1, v3
        s_mul_i32 {s(T2)}, {s(sHA)}, 648
        v_cndmask_b32 v3, v4, v3, vcc
        v_mul_u32_u24 v2, 144, v2
        v_add_u32 v4, v3, v2''')
        for e in range(8):
            a(f'buffer_load_ushort {v(144 + e)}, v4, {srd(sPHI)}, {s(T2)} offen offset:{((e & 3) + 8*(e >> 2))*36}')
        a(f'buffer_load_ushort v152, v3, {srd(sPHI)}, {s(T2)} offen offset:576')
        a(f'buffer_load_ushort v153, v3, {srd(sPHI)}, {s(T2)} offen offset:612')
        vm.add('phi', 10)
    for k in range(3):
        if k < 2: a(f's_add_u32 {s(T0)}, {s(sLW)}, {4*k}\ns_lshl_b32 {s(T0)}, {s(T0)}, 6\nv_add_u32 v1, {s(T0)}, v0')
        else: a('v_add_u32 v1, 512, v0')
        a(f'''v_mul_u32_u24 v2, 7282, v1
        v_lshrrev_b32 v2, 16, v2
        v_mul_u32_u24 v5, 9, v2
        v_sub_u32 v5, v1, v5
        v_mul_u32_u24 v6, 1152, v2
        v_lshl_add_u32 {v(vWO+k)}, v5, 4, v6
        v_lshrrev_b32 v6, 1, v5
        v_mul_u32_u24 v6, 1152, v6
        v_and_b32 v7, 1, v5
        v_lshl_add_u32 v6, v7, 4, v6
        v_subrev_u32 v7, 6, v5
        v_mul_u32_u24 v7, 1152, v7
        v_add_u32 v7, 32, v7
        v_cmp_le_u32 vcc, 6, v5
        v_mul_u32_u24 v2, 3456, v2
        s_nop 0
        v_cndmask_b32 v6, v6, v7, vcc
        v_add_u32 {v(vWA+k)}, v6, v2''')
    def issue_img(P, vb, sr, sbase, pitch, tag):
        skip = a.new('r8')
        a(f'''s_add_u32 {s(T0)}, {s(sbase)}, {P*pitch}
        s_lshr_b32 {s(T1)}, {s(sM0)}, 2
        s_add_u32 m0, {s(T1)}, {WREG + 9*1024*P}
        s_cmp_lg_u32 {s(sLW)}, {P & 3}
        buffer_load_dwordx4 {v(vb)}, {srd(sr)}, {s(T0)} offen lds
        s_add_u32 m0, {s(T1)}, {WREG + 9*1024*P + 4096}
        s_cbranch_scc1 {skip}''')
        a.L.pop()
        a(f's_cmp_lg_u32 {s(sLW)}, {P & 3}\nbuffer_load_dwordx4 {v(vb+1)}, {srd(sr)}, {s(T0)} offen lds\ns_cbranch_scc1 {skip}')
        a(f's_mov_b32 m0, {WREG + 9*1024*P + 8192}\ns_nop 0\nbuffer_load_dwordx4 {v(vb+2)}, {srd(sr)}, {s(T0)} offen lds')
        a.label(skip)
        if tag: vm.add(tag, 2)
    sAXB, sAWB = sXB, sWB
    def issue_ax(slotreg):
        a(f's_lshl_b32 {s(sSX)}, {s(sKC)}, 7\ns_add_u32 {s(sSX)}, {s(sSX)}, {s(sAXB)}\ns_mov_b32 m0, {s(slotreg)}\ns_add_u32 {s(sSW)}, {s(sSX)}, {32*1152}')
        for i in range(4): a(f'buffer_load_dwordx4 {v(vX+i)}, {srd(sAX)}, {s(sSX)} offen offset:{1024*i} lds')
        a(f's_add_u32 m0, {s(slotreg)}, 4096\ns_nop 0')
        for i in range(4): a(f'buffer_load_dwordx4 {v(vX+i)}, {srd(sAX)}, {s(sSW)} offen offset:{1024*i} lds')
        next_chunk()
    sSlotA, sSlotB, sKG = 56, 57, 58
    for j in range(9):
        a(f's_waitcnt vmcnt({vm.after(("b", j))})\ns_barrier')
        if 1 <= j <= 5: issue_b(j + 3)
        if j == 5 and opt['A']:
            a(f'''s_lshl_b32 {s(sAXB)}, {s(sRB)}, 2
            s_add_u32 {s(sAXB)}, {s(sAXB)}, {s(sLW)}
            s_mul_i32 {s(sAXB)}, {s(sAXB)}, {64*1152}
            s_mul_i32 {s(sAWB)}, {s(sHA)}, 36
            s_lshl_b32 {s(sSlotB)}, {s(sLW)}, 13
            s_add_u32 {s(sSlotA)}, {s(sSlotB)}, {XA}
            s_and_b32 {s(sKC)}, {s(sLoc)}, 7
            s_mov_b32 {s(sKG)}, {s(sKC)}''')
            issue_ax(sSlotA); vm.add('ax0', 8)
        if opt['A']:
            for P in {6: (0, 1, 2), 7: (3, 4, 5, 6), 8: (7, 8)}.get(j, ()):
                issue_img(P, vWA, sAW, sAWB, 64*3456, 'wa')
        if j == 8:
            a(f's_cmp_lg_u32 {s(sLW)}, 0\ns_cbranch_scc1 L_nocnt\nv_lshlrev_b32 v1, 2, v0\nv_add_u32 v1, {CNT}, v1\nds_write_b32 v1, {v(vZero)}\ns_waitcnt lgkmcnt(0)')
            a.label('L_nocnt')
    a('s_barrier')
    a.stamp(2)
    a('s_setprio 1')
    if opt['A']:
        a_branch(a, opt, locals())
    else:
        get_token(a, vTok, vZero)
    a(f's_mul_i32 {s(sWB)}, {s(sOC)}, 144')
    for P in range(9): issue_img(P, vWO, sBWO, sWB, 64*1152, None)
    a(f'''v_and_b32 v1, 31, v0
    s_lshr_b32 {s(T0)}, {s(sOT)}, 2
    s_lshl_b32 {s(T0)}, {s(T0)}, 5
    v_add_u32 v1, {s(T0)}, v1
    v_lshlrev_b32 v1, 7, v1
    v_add_u32 v15, {FL4:#x}, v1
    s_waitcnt vmcnt(0)''')
    a.stamp(7)
    a('s_barrier')
    a(f'ds_read_b32 v7, {v(vCnt)} offset:{C_BAD}\ns_waitcnt lgkmcnt(0)\nv_readfirstlane_b32 {s(T0)}, v7\ns_cmp_eq_u32 {s(T0)}, 0\ns_cbranch_scc1 L_l_ok')
    a('s_barrier\ns_barrier')
    a.label('L_l_ok')
    final_prep(a)
    a(f's_cmp_lg_u32 {s(sLW)}, 0\ns_cbranch_scc1 L_final')
    poll_flags(a, 15, 14)
    a.stamp(9)
    a('s_branch L_final')

def a_branch(a, opt, env):
    g = lambda k: env[k]
    vX, vWA, vWO, WPH, WL, WLq, WLk = (g(k) for k in ('vX', 'vWA', 'vWO', 'WPH', 'WL', 'WLq', 'WLk'))
    XAc, XAr, WAc, WAr = (g(k) for k in ('XAc', 'XAr', 'WAc', 'WAr'))
    vCnt, vOne, vZero, vTok, v16, sLW = (g(k) for k in ('vCnt', 'vOne', 'vZero', 'vTok', 'v16', 'sLW'))
    sSlotA, sSlotB, sKG, sWB, sKC = (g(k) for k in ('sSlotA', 'sSlotB', 'sKG', 'sWB', 'sKC'))
    issue_ax, issue_img = g('issue_ax'), g('issue_img')
    FP = dict(x=48, w=56); FQ = dict(x=64, w=72)
    AC = [80, 96, 112, 128]
    a.c('================= L waves: A qkv gemm =================')
    issue_ax(sSlotB)
    a(f'''v_and_b32 v1, 31, v0
    v_lshrrev_b32 v2, 5, v0
    v_bfe_u32 v3, v0, 1, 3
    v_xor_b32 v3, v3, v2
    v_lshlrev_b32 v4, 7, v1''')
    for k in range(4): a(f'v_xor_b32 v5, {2*k}, v3\nv_lshl_add_u32 {v(XAc+k)}, v5, 4, v4')
    a(f'''v_bfe_u32 v3, v0, 2, 2
    v_and_b32 v4, 3, v0
    v_bfe_u32 v5, v0, 4, 1
    v_lshl_add_u32 v4, v5, 2, v4
    v_lshl_add_u32 v5, v2, 3, v3
    v_mul_u32_u24 v5, 144, v5
    v_add_u32 v5, {WREG}, v5
    v_lshl_add_u32 {v(WAc)}, v4, 3, v5
    v_min_u32 v6, 6, v4
    v_lshlrev_b32 v6, 4, v6
    v_add_u32 v6, 32, v6
    v_lshlrev_b32 v7, 3, v4
    v_add_u32 v7, 64, v7
    v_cmp_gt_u32 vcc, 4, v4
    v_mov_b32 {v(WLq+1)}, 0
    v_mov_b32 {v(WLk+1)}, 0
    v_cndmask_b32 v6, v6, v7, vcc
    v_add_u32 {v(WAc+1)}, v6, v5''')
    for r in range(80, 144): a(f'v_mov_b32 {v(r)}, 0')
    for r in range(64, 80): a(f'v_mov_b32 {v(r)}, 0')
    a('s_waitcnt vmcnt(8)')
    for i in range(5): a(f'v_lshl_or_b32 {v(WPH + i)}, {v(145 + 2*i)}, 16, {v(144 + 2*i)}')
    a(f'v_cmp_gt_u32 vcc, 32, v0\ns_nop 1\nv_cndmask_b32 {v(WLq)}, {v(vZero)}, {v(WL)}, vcc\nv_cndmask_b32 {v(WLk)}, {v(WL)}, {v(vZero)}, vcc')
    lds_arrive(a, vCnt, vOne, C_W)
    lds_wait(a, vCnt, 1, C_W, 4)
    a.stamp(3)
    sIt = 59
    a(f's_mov_b32 {s(sIt)}, 0')
    def reads(F, k):
        for tt in range(2): a(f'ds_read_b128 {v(F["x"]+4*tt,4)}, {v(XAr+k)} offset:{4096*tt}')
        for w in range(2):
            for j in range(2): a(f'ds_read_b64_tr_b16 {v(F["w"]+4*w+2*j,2)}, {v(WAr+w)} offset:{(16*k+4*j)*144}')
    def mm(F):
        for w in range(2):
            for tt in range(2): mfma(a, AC[2*w+tt], F['w']+4*w, F['x']+4*tt, AC[2*w+tt])
    a.label('L_ag')
    a(f's_mul_i32 {s(T0)}, {s(sKG)}, 9216')
    for k in range(4): a(f'v_add_u32 {v(XAr+k)}, {s(sSlotA)}, {v(XAc+k)}')
    for w in range(2): a(f'v_add_u32 {v(WAr+w)}, {s(T0)}, {v(WAc+w)}')
    a(f's_add_u32 {s(sKG)}, {s(sKG)}, 1\ns_cmp_eq_u32 {s(sKG)}, 9\ns_cselect_b32 {s(sKG)}, 0, {s(sKG)}')
    a(f's_cmp_eq_u32 {s(sIt)}, 8\ns_cbranch_scc1 L_ag_w0\ns_waitcnt vmcnt(8)\ns_branch L_ag_w1')
    a.label('L_ag_w0'); a('s_waitcnt vmcnt(0)'); a.label('L_ag_w1')
    reads(FP, 0); mm(FQ)
    reads(FQ, 1); a('s_waitcnt lgkmcnt(6)'); mm(FP)
    reads(FP, 2); a('s_waitcnt lgkmcnt(6)'); mm(FQ)
    reads(FQ, 3); a('s_waitcnt lgkmcnt(6)'); mm(FP)
    a(f's_waitcnt lgkmcnt(0)\ns_cmp_ge_u32 {s(sIt)}, 7\ns_cbranch_scc1 L_ag_n')
    issue_ax(sSlotA)
    a.label('L_ag_n')
    a(f'''s_mov_b32 {s(T0)}, {s(sSlotA)}
    s_mov_b32 {s(sSlotA)}, {s(sSlotB)}
    s_mov_b32 {s(sSlotB)}, {s(T0)}
    s_add_u32 {s(sIt)}, {s(sIt)}, 1
    s_cmp_lt_u32 {s(sIt)}, 9
    s_cbranch_scc1 L_ag''')
    mm(FQ)
    get_token(a, vTok, vZero, issue=True, check=False)
    a.stamp(4)
    a.c('================= L waves: feature maps =================')
    vPh, vVr = 46, 47
    a(f'''s_lshl_b32 {s(T0)}, {s(sLW)}, 13
    s_add_u32 {s(T0)}, {s(T0)}, {XA}
    v_and_b32 v1, 31, v0
    v_lshrrev_b32 v2, 5, v0
    v_mul_u32_u24 v3, 80, v1
    v_lshl_add_u32 v3, v2, 3, v3
    v_add_u32 {v(vPh)}, {s(T0)}, v3
    v_mul_u32_u24 v3, 40, v1
    v_add_u32 v3, {s(T0)}, v3
    v_add_u32 v7, 5120, v3
    v_lshl_add_u32 {v(vVr)}, v2, 3, v7
    s_mov_b32 {s(T2)}, {f2u(LOG2E):#x}
    s_mov_b32 {s(T3)}, {f2u(LOG2E):#x}''')
    Fq, Fk, Fl, Fv = [48, 52], [56, 60], [64, 66], [68, 74]
    def cvt8(src, dst):
        for i in range(4): a(f'v_cvt_pk_bf16_f32 {v(dst+i)}, {v(src+2*i)}, {v(src+2*i+1)}')
    for tt in range(2):
        cvt8(AC[tt], Fq[tt]); cvt8(AC[tt]+8, Fk[tt])
    for tt in range(2):
        r = AC[2+tt]
        cvt8(r, Fv[tt])
        a(f'''v_cvt_pk_bf16_f32 {v(Fl[tt])}, {v(r+8)}, {v(r+9)}
        v_mov_b32 {v(Fl[tt]+1)}, 0
        v_cvt_pk_bf16_f32 {v(Fv[tt]+4)}, {v(r+12)}, {v(r+13)}
        v_mov_b32 {v(Fv[tt]+5)}, 0x3f80''')
    D = {('k', 0): 80, ('k', 1): 96, ('q', 0): 112, ('q', 1): 128}
    a.nop(1)
    for w, F in (('k', Fk), ('q', Fq)):
        for tt in range(2): mfma(a, D[(w, tt)], WPH, F[tt], None)
    for tt in range(2):
        a(f'ds_write_b64 {v(vVr)}, {v(Fv[tt],2)} offset:{1280*tt}\nds_write_b64 {v(vVr)}, {v(Fv[tt]+2,2)} offset:{1280*tt+16}\nds_write_b64 v7, {v(Fv[tt]+4,2)} offset:{1280*tt+32}')
    a.nop(1)
    for w, W2 in (('k', WLk), ('q', WLq)):
        for tt in range(2): mfma(a, D[(w, tt)], W2, Fl[tt], D[(w, tt)], '8')
    a.nop(9)
    EP, EM = 144, 156
    PH = {('q', 0): 216, ('q', 1): 226, ('k', 0): 168, ('k', 1): 178}
    def softmax2(x, P):
        ta, tb = 2, 4
        a(f'''v_max3_f32 v2, {v(x)}, {v(x+1)}, {v(x+2)}
        v_max3_f32 v4, -{v(x)}, -{v(x+1)}, -{v(x+2)}
        v_max3_f32 v2, v2, {v(x+3)}, {v(x+4)}
        v_max3_f32 v4, v4, -{v(x+3)}, -{v(x+4)}
        v_max3_f32 v2, v2, {v(x+5)}, {v(x+6)}
        v_max3_f32 v4, v4, -{v(x+5)}, -{v(x+6)}
        v_max3_f32 v2, v2, {v(x+7)}, {v(x+8)}
        v_max3_f32 v4, v4, -{v(x+7)}, -{v(x+8)}
        s_nop 1
        v_permlane32_swap_b32 v2, v4
        v_max_f32 v2, v2, v4
        v_mul_f32 v2, {s(T2)}, v2
        v_mov_b32 v4, v2
        s_nop 1
        v_permlane32_swap_b32 v2, v4''')
        for i in range(0, 8, 2):
            a(f'v_pk_fma_f32 {v(EP+i,2)}, {v(x+i,2)}, {s(T2,2)}, v[2:3] op_sel_hi:[1,1,0] neg_lo:[0,0,1] neg_hi:[0,0,1]')
        a(f'v_fma_f32 {v(EP+8)}, {v(x+8)}, {s(T2)}, -v2')
        for i in range(0, 8, 2):
            a(f'v_pk_fma_f32 {v(EM+i,2)}, {v(x+i,2)}, {s(T2,2)}, v[4:5] op_sel_hi:[1,1,0] neg_lo:[1,0,1] neg_hi:[1,0,1]')
        a(f'v_fma_f32 {v(EM+8)}, -{v(x+8)}, {s(T2)}, -v4')
        for E in (EP, EM):
            for i in range(9): a(f'v_exp_f32 {v(E+i)}, {v(E+i)}')
        a(f'''v_pk_add_f32 v[2:3], {v(EP,2)}, {v(EP+2,2)}
        v_pk_add_f32 v[4:5], {v(EM,2)}, {v(EM+2,2)}
        v_pk_add_f32 v[2:3], v[2:3], {v(EP+4,2)}
        v_pk_add_f32 v[4:5], v[4:5], {v(EM+4,2)}
        v_pk_add_f32 v[2:3], v[2:3], {v(EP+6,2)}
        v_pk_add_f32 v[4:5], v[4:5], {v(EM+6,2)}
        v_add_f32 v2, v2, {v(EP+8)}
        v_add_f32 v4, v4, {v(EM+8)}
        v_add_f32 v2, v2, v3
        v_add_f32 v4, v4, v5
        s_nop 1
        v_permlane32_swap_b32 v2, v4
        v_add_f32 v2, v2, v4
        v_rcp_f32 v2, v2
        s_nop 0
        v_mov_b32 v4, v2
        s_nop 1
        v_permlane32_swap_b32 v2, v4''')
        for E, t in ((EP, 2), (EM, 4)):
            for i in range(0, 8, 2): a(f'v_pk_mul_f32 {v(E+i,2)}, {v(E+i,2)}, {v(t,2)} op_sel_hi:[1,0]')
            a(f'v_mul_f32 {v(E+8)}, {v(E+8)}, {v(t)}')
        cvt8(EP, P); cvt8(EM, P+4)
        a(f'v_cvt_pk_bf16_f32 {v(P+8)}, {v(EP+8)}, {v(EM+8)}')
    for tt in range(2):
        P = PH[('k', tt)]
        softmax2(D[('k', tt)], P)
        o = 2560*tt
        a(f'''ds_write_b64 {v(vPh)}, {v(P,2)} offset:{o}
        ds_write_b64 {v(vPh)}, {v(P+2,2)} offset:{o+16}
        ds_write_b64 {v(vPh)}, {v(P+4,2)} offset:{o+32}
        ds_write_b64 {v(vPh)}, {v(P+6,2)} offset:{o+48}
        ds_write_b32 {v(vPh)}, {v(P+8)} offset:{o+64}''')
    a('s_waitcnt lgkmcnt(0)')
    lds_arrive(a, vCnt, vOne, C_PHI)
    get_token(a, vTok, vZero, issue=False, check=True)
    lds_wait(a, vCnt, 1, C_PHI, 4)
    a.stamp(5)
    a(f's_mul_i32 {s(sWB)}, {s(sOC)}, 144')
    for P in range(9): issue_img(P, vWO, 24, sWB, 64*1152, None)
    a(f's_cmp_ge_u32 {s(sLW)}, 2\ns_cbranch_scc1 L_nokv')
    a(f'''v_bfe_u32 v3, v0, 2, 2
    v_and_b32 v4, 3, v0
    v_bfe_u32 v5, v0, 4, 1
    v_lshl_add_u32 v4, v5, 2, v4
    v_lshrrev_b32 v2, 5, v0
    v_lshl_add_u32 v5, v2, 3, v3
    v_min_u32 v6, 4, v4
    v_lshlrev_b32 v6, 3, v6
    v_mul_u32_u24 v7, 40, v5
    v_add_u32 v7, {XA + 5120}, v7
    v_add_u32 v7, v7, v6
    s_lshl_b32 {s(T0)}, {s(sLW)}, 5
    v_lshlrev_b32 v6, 3, v4
    v_add_u32 v6, {s(T0)}, v6
    v_and_b32 v1, 1, v4
    v_lshlrev_b32 v1, 3, v1
    v_add_u32 v1, 64, v1
    v_cmp_gt_u32 vcc, 4, v4
    v_mul_u32_u24 v5, 80, v5
    v_add_u32 v5, {XA}, v5
    v_cndmask_b32 v6, v1, v6, vcc
    v_add_u32 v6, v6, v5''')
    KD = 80; KA, KB = 144, 176
    for w in range(4):
        for k in range(4):
            for j in range(2):
                a(f'ds_read_b64_tr_b16 {v(KA+4*k+2*j + (0 if w % 2 == 0 else 16),2)}, v6 offset:{8192*w + (16*k+4*j)*80}')
                a(f'ds_read_b64_tr_b16 {v(KB+4*k+2*j + (0 if w % 2 == 0 else 16),2)}, v7 offset:{8192*w + (16*k+4*j)*40}')
        a('s_waitcnt lgkmcnt(0)')
        for k in range(4):
            o = 4*k + (0 if w % 2 == 0 else 16)
            mfma(a, KD, KA+o, KB+o, None if (w == 0 and k == 0) else KD)
    a(f'''s_lshl_b32 {s(T0)}, {s(sHA)}, 3
    s_add_u32 {s(T1)}, {s(T0)}, {s(sRB)}
    s_mul_i32 {s(T4)}, {s(T1)}, {KVPS}
    s_add_u32 {s(T4)}, {s(T4)}, {KVP:#x}
    s_mul_i32 {s(T5)}, {s(sLW)}, 2560
    s_add_u32 {s(T5)}, {s(T5)}, {s(T4)}
    s_lshl_b32 {s(T1)}, {s(T1)}, 7
    s_add_u32 {s(T1)}, {s(T1)}, {FL2:#x}
    v_lshlrev_b32 v1, 3, v0
    s_nop 2
    buffer_store_dwordx4 {v(KD,4)}, {v(v16)}, {srd(sWS)}, {s(T5)} offen sc1
    buffer_store_dwordx4 {v(KD+4,4)}, {v(v16)}, {srd(sWS)}, {s(T5)} offen offset:1024 sc1
    s_cmp_lg_u32 {s(sLW)}, 0
    s_cbranch_scc1 L_kvx
    buffer_store_dwordx2 {v(KD+8,2)}, v1, {srd(sWS)}, {s(T4)} offen offset:2048 sc1''')
    a.label('L_kvx')
    last_signals(a, vCnt, vOne, 2, C_F2, 2, T1)
    a.label('L_nokv')
    for tt in range(2):
        softmax2(D[('q', tt)], PH[('q', tt)])
        a(f'v_mov_b32 {v(PH[("q", tt)]+9)}, 0')
    a.c('================= L waves: kv total, numerator / denominator =================')
    a(f'''v_and_b32 v1, 7, v0
    s_lshl_b32 {s(T0)}, {s(sHA)}, 3
    v_add_u32 v1, {s(T0)}, v1
    v_lshlrev_b32 v1, 7, v1
    v_add_u32 v1, {FL2:#x}, v1
    s_mul_i32 {s(T4)}, {s(T0)}, {KVPS}
    s_add_u32 {s(T4)}, {s(T4)}, {KVP:#x}
    s_and_b32 {s(T0)}, {s(sLW)}, 1
    s_mul_i32 {s(T5)}, {s(T0)}, 2560
    s_lshl_b32 {s(T6)}, {s(T0)}, 10
    s_lshr_b32 {s(T0)}, {s(sLW)}, 1
    s_lshl_b32 {s(T1)}, {s(T0)}, 10
    s_add_u32 {s(T5)}, {s(T5)}, {s(T1)}
    s_add_u32 {s(T5)}, {s(T5)}, {s(T4)}
    s_lshl_b32 {s(T0)}, {s(T0)}, 3
    s_add_u32 {s(T6)}, {s(T6)}, {s(T0)}
    s_add_u32 {s(T6)}, {s(T6)}, {KVF}''')
    poll_flags(a, 1, 2)
    a.stamp(6)
    R = 80
    for i in range(8):
        a(f'buffer_load_dwordx4 {v(R+4*i,4)}, {v(v16)}, {srd(sWS)}, {s(T5)} offen sc1')
        if i < 7: a(f's_add_u32 {s(T5)}, {s(T5)}, {KVPS}')
    a(f'v_lshlrev_b32 v1, 3, v0\nv_add_u32 v3, {s(T6)}, {v(v16)}\ns_cmp_lg_u32 {s(sLW)}, 3\ns_cbranch_scc1 L_kvs')
    for i in range(8):
        a(f'buffer_load_dwordx2 {v(R+32+2*i,2)}, v1, {srd(sWS)}, {s(T4)} offen offset:2048 sc1')
        if i < 7: a(f's_add_u32 {s(T4)}, {s(T4)}, {KVPS}')
    a('s_waitcnt vmcnt(0)')
    for i in range(1, 8): a(f'v_pk_add_f32 {v(R+32,2)}, {v(R+32,2)}, {v(R+32+2*i,2)}')
    a(f'v_cvt_pk_bf16_f32 v4, {v(R+32)}, {v(R+33)}\nv_mov_b32 v5, 0\nv_add_u32 v1, {KVF + 2048}, v1\nds_write_b64 v1, v[4:5]')
    a.label('L_kvs')
    a('s_waitcnt vmcnt(0)')
    for i in range(1, 8):
        for k in range(2): a(f'v_pk_add_f32 {v(R+2*k,2)}, {v(R+2*k,2)}, {v(R+4*i+2*k,2)}')
    a(f'v_cvt_pk_bf16_f32 v6, {v(R)}, {v(R+1)}\nv_cvt_pk_bf16_f32 v7, {v(R+2)}, {v(R+3)}\nds_write_b64 v3, v[6:7]\ns_waitcnt lgkmcnt(0)')
    lds_arrive(a, vCnt, vOne, C_KVF)
    lds_wait(a, vCnt, 1, C_KVF, 4)
    KF = 144
    a(f'''v_add_u32 v3, {KVF}, {v(v16)}
    v_lshlrev_b32 v1, 3, v0
    v_add_u32 v1, {KVF + 2048}, v1
    ds_read_b128 {v(KF,4)}, v3
    ds_read_b128 {v(KF+4,4)}, v3 offset:1024
    ds_read_b64 {v(KF+8,2)}, v1
    s_lshl_b32 {s(T0)}, {s(sRB)}, 3
    s_lshl_b32 {s(T1)}, {s(sLW)}, 1
    s_add_u32 {s(T0)}, {s(T0)}, {s(T1)}
    s_lshl_b32 {s(T0)}, {s(T0)}, 5
    s_add_u32 {s(T0)}, {s(T0)}, {s(sHA)}
    s_lshl_b32 {s(T2)}, {s(T0)}, 10
    s_add_u32 {s(T2)}, {s(T2)}, {OAM:#x}
    s_add_u32 {s(T3)}, {s(T2)}, 0x8000
    s_lshl_b32 {s(T4)}, {s(T0)}, 7
    s_add_u32 {s(T4)}, {s(T4)}, {OAL:#x}
    s_add_u32 {s(T5)}, {s(T4)}, 0x1000
    v_lshlrev_b32 v6, 2, v0
    s_waitcnt lgkmcnt(0)''')
    ND = [80, 96]
    for tt in range(2): mfma(a, ND[tt], KF+8, PH[('q', tt)]+8, None, '8')
    a.nop(9)
    for tt in range(2): mfma(a, ND[tt], KF, PH[('q', tt)], ND[tt])
    for tt in range(2): mfma(a, ND[tt], KF+4, PH[('q', tt)]+4, ND[tt])
    a.nop(11)
    for tt in range(2):
        o = ND[tt]; p = 112 + 8*tt
        a(f'v_add_f32 {v(o+10)}, {f2u(1e-6):#x}, {v(o+10)}\nv_rcp_f32 {v(o+10)}, {v(o+10)}\ns_nop 0')
        for i in range(0, 10, 2): a(f'v_pk_mul_f32 {v(o+i,2)}, {v(o+i,2)}, {v(o+10,2)} op_sel_hi:[1,0]')
        cvt8(o, p)
        a(f'v_cvt_pk_bf16_f32 {v(p+4)}, {v(o+8)}, {v(o+9)}')
        a(f'buffer_store_dwordx4 {v(p,4)}, {v(v16)}, {srd(sWS)}, {s(T2+tt)} offen sc1')
        a(f's_mov_b32 exec_hi, 0\nbuffer_store_dword {v(p+4)}, v6, {srd(sWS)}, {s(T4+tt)} offen sc1\ns_mov_b32 exec_hi, -1')
    a(f's_lshl_b32 {s(T1)}, {s(sRB)}, 5\ns_add_u32 {s(T1)}, {s(T1)}, {s(sHA)}\ns_lshl_b32 {s(T1)}, {s(T1)}, 7\ns_add_u32 {s(T1)}, {s(T1)}, {FL3:#x}')
    last_signals(a, vCnt, vOne, 2, C_F3, 4, T1)
    a.c('================= L waves: out projection of A =================')
    W, O, ACC = 48, 160, 196
    vm_, vm2_, vl_, vl2_, vol = 34, 35, 36, 37, 38
    sM, sM2, sL, sTT, sKH = T2, T3, T4, 59, 60
    a(f'''s_and_b32 {s(sTT)}, {s(sLW)}, 1
    s_lshr_b32 {s(sKH)}, {s(sLW)}, 1
    s_mul_i32 {s(T6)}, {s(sKH)}, {2*20736}
    s_add_u32 {s(T6)}, {s(T6)}, {WREG}''')
    op_addr(a, vm_, vm2_, vl_, vl2_, 2, T6, False)
    a(f'''v_and_b32 v1, 31, v0
    v_lshrrev_b32 v2, 5, v0
    v_lshlrev_b32 v3, 2, v1
    v_lshl_add_u32 {v(vol)}, v2, 9, v3
    s_lshr_b32 {s(T0)}, {s(sOT)}, 2
    s_lshl_b32 {s(T0)}, {s(T0)}, 5
    v_add_u32 v3, {s(T0)}, v1
    v_lshlrev_b32 v3, 7, v3
    v_add_u32 v3, {FL3:#x}, v3
    s_lshl_b32 {s(T1)}, {s(sOT)}, 1
    s_add_u32 {s(T5)}, {s(sTT)}, {s(T1)}
    s_lshl_b32 {s(T0)}, {s(T5)}, 5
    s_lshl_b32 {s(T1)}, {s(sKH)}, 4
    s_add_u32 {s(T7)}, {s(T0)}, {s(T1)}
    s_lshl_b32 {s(sM)}, {s(T7)}, 10
    s_add_u32 {s(sM)}, {s(sM)}, {OAM:#x}
    s_add_u32 {s(sM2)}, {s(sM)}, 4096
    s_lshl_b32 {s(sL)}, {s(T7)}, 7
    s_add_u32 {s(sL)}, {s(sL)}, {OAL:#x}''')
    lds_wait(a, vCnt, 4, C_F3, 4)
    op_read_w(a, W, vm_, vm2_, vl_, vl2_, False)
    poll_flags(a, 3, 4)
    a.stamp(8)
    op_load_o(a, O, v16, vol, sM, sM2, sL)
    a('s_waitcnt lgkmcnt(0)')
    op_mfma(a, ACC, W, O, True)
    a(f's_add_u32 {s(sM)}, {s(sM)}, 8192\ns_add_u32 {s(sM2)}, {s(sM2)}, 8192\ns_add_u32 {s(sL)}, {s(sL)}, 1024')
    op_load_o(a, O, v16, vol, sM, sM2, sL)
    op_read_w(a, W, vm_, vm2_, vl_, vl2_, False, extra=20736)
    a('s_waitcnt lgkmcnt(0)')
    lds_arrive(a, vCnt, vOne, C_OPA2)
    op_mfma(a, ACC, W, O, False)
    a(f'''s_mul_i32 {s(T0)}, {s(sLW)}, 5120
    s_add_u32 {s(T0)}, {s(T0)}, {XA}
    v_add_u32 v4, {s(T0)}, {v(v16)}
    s_xor_b32 {s(T0)}, {s(sLW)}, 2
    s_mul_i32 {s(T0)}, {s(T0)}, 5120
    s_add_u32 {s(T0)}, {s(T0)}, {XA}
    v_add_u32 v5, {s(T0)}, {v(v16)}
    v_mul_u32_u24 v7, 2304, v1
    v_lshl_add_u32 v6, v2, 3, v7
    v_lshl_add_u32 v7, v2, 4, v7
    s_mul_i32 {s(T0)}, {s(T5)}, {32*2304}
    s_mul_i32 {s(T1)}, {s(sOC)}, 144
    s_add_u32 {s(T7)}, {s(T0)}, {s(T1)}
    s_lshl_b32 {s(T1)}, {s(sKH)}, 6
    s_add_u32 {s(T5)}, {s(T7)}, {s(T1)}
    s_cmp_eq_u32 {s(sKH)}, 0
    s_cbranch_scc1 L_opa0''')
    for q in range(4): a(f'ds_write_b128 v4, {v(ACC+4*q,4)} offset:{1024*q}')
    a(f'ds_write_b128 v4, {v(ACC+32,4)} offset:4096')
    for i in range(0, 16, 2): a(f'v_pk_mov_b32 {v(ACC+i,2)}, {v(ACC+16+i,2)}, {v(ACC+16+i,2)} op_sel:[0,1]')
    a('s_branch L_opa1')
    a.label('L_opa0')
    for q in range(4): a(f'ds_write_b128 v4, {v(ACC+16+4*q,4)} offset:{1024*q}')
    a.label('L_opa1')
    a('s_waitcnt lgkmcnt(0)')
    lds_arrive(a, vCnt, vOne, C_OPA)
    lds_wait(a, vCnt, 3, C_OPA, 4)
    R = 48
    for q in range(5): a(f'ds_read_b128 {v(R+4*q,4)}, v5 offset:{1024*q}')
    a('s_waitcnt lgkmcnt(0)')
    for i in range(0, 16, 2): a(f'v_pk_add_f32 {v(ACC+i,2)}, {v(ACC+i,2)}, {v(R+i,2)}')
    for i in range(8): a(f'v_cvt_pk_bf16_f32 {v(R+24+i)}, {v(ACC+2*i)}, {v(ACC+2*i+1)}')
    a(f'''s_nop 1
    v_permlane32_swap_b32 {v(R+24)}, {v(R+26)}
    v_permlane32_swap_b32 {v(R+25)}, {v(R+27)}
    v_permlane32_swap_b32 {v(R+28)}, {v(R+30)}
    v_permlane32_swap_b32 {v(R+29)}, {v(R+31)}
    buffer_store_dwordx4 {v(R+24,4)}, v7, {srd(sOUT)}, {s(T5)} offen
    buffer_store_dwordx4 {v(R+28,4)}, v7, {srd(sOUT)}, {s(T5)} offen offset:32
    s_cmp_lg_u32 {s(sKH)}, 0
    s_cbranch_scc1 L_opa2
    v_pk_add_f32 {v(R+16,2)}, {v(R+16,2)}, {v(ACC+32,2)}
    v_pk_add_f32 {v(R+18,2)}, {v(R+18,2)}, {v(ACC+34,2)}
    v_cvt_pk_bf16_f32 {v(R+20)}, {v(R+16)}, {v(R+17)}
    v_cvt_pk_bf16_f32 {v(R+21)}, {v(R+18)}, {v(R+19)}
    buffer_store_dwordx2 {v(R+20,2)}, v6, {srd(sOUT)}, {s(T7)} offen offset:128''')
    a.label('L_opa2')

HEADER = '''; Fused hedgehog linear attention (A) + softmax MHA (B), one persistent launch of 256 workgroups.
; kernarg: A_x A_wqkv A_w_phi A_wo B_x B_wqkv B_wo out debug ws (8-byte pointers, in that order)
; @launch grid=(256,1,1) block=(512,1,1) lds=%d
.amdgcn_target "amdgcn-amd-amdhsa--gfx950"
.text
.globl %s_kernel
.p2align 8
.type %s_kernel,@function
%s_kernel:
''' % (LDS_BYTES, NAME, NAME, NAME)
FOOTER = '''.section .rodata,"a"
.p2align 6
.amdhsa_kernel %s_kernel
  .amdhsa_next_free_vgpr 256
  .amdhsa_next_free_sgpr 102
  .amdhsa_accum_offset 256
  .amdhsa_group_segment_fixed_size 0
  .amdhsa_kernarg_size 80
  .amdhsa_user_sgpr_count 2
  .amdhsa_user_sgpr_kernarg_segment_ptr 1
  .amdhsa_system_sgpr_workgroup_id_x 1
.end_amdhsa_kernel
''' % NAME

def generate(diag=False, **opt):
    opt.setdefault('A', True)
    a = Asm(diag)
    prologue(a)
    c_path(a, opt)
    l_path(a, opt)
    final(a)
    body = a.text()
    bad = lint(body)
    for x in bad: print(f"HAZARD line {x[0]} -> {x[1]}: {x[2]} need {x[3]} have {x[4]}\n    {x[5]}\n    {x[6]}", file=sys.stderr)
    return HEADER + body + FOOTER, len(bad)

if __name__ == '__main__':
    import argparse
    ap = argparse.ArgumentParser()
    ap.add_argument('-o', default=f'cdna_kernels/{NAME}.s')
    ap.add_argument('--diag', action='store_true')
    ap.add_argument('--noA', action='store_true')
    ap.add_argument('--opt', action='append', default=[])
    g = ap.parse_args()
    opt = {'A': not g.noA}
    for o in g.opt:
        k, val = o.split('='); opt[k] = int(val)
    text, nbad = generate(g.diag, **opt)
    open(g.o, 'w').write(text)
    print(f'wrote {g.o}: {len(text)} bytes, {nbad} hazards')
```

```python
import sys, struct
from lint import lint

NAME = 'concat_heads__linear_kernel_hedgehog__softmax_full_mha__prompt'
OOB = 0x40000000
QM, QL, KV = 0x0, 0x200000, 0x240000
REC = 2432; HREC = 64 * REC
AOFF = 0x700000
OAM, OAL, OBM, OBL = 0xE00000, 0x1000000, 0x1040000, 0x1240000
KVP = 0x1280000; KVPS = 4608
FL1, FL1A, FL2, FL3, FL4 = 0x13A0000, 0x13A8000, 0x13B0000, 0x13B8000, 0x13C0000
EPOCH = 0x13C8000
STAMPS = 0x1400000
WS_BYTES = 0x1800000
XA = 0
WBLK = 21504
WS0 = 28672
SLOT_A = [WS0 + 4*WBLK, WS0, WS0 + 5*WBLK, WS0 + WBLK]
SLOT_B = [WS0 + 2*WBLK, WS0 + 3*WBLK, WS0 + 4*WBLK, WS0 + 5*WBLK]
CNT = WS0 + 6*WBLK
KVF = CNT + 256
LDS_BYTES = 163840
C_F1, C_F1A, C_KVX, C_F2, C_KVF, C_F3, C_OPA, C_F4, C_BAD, C_W1, C_TOK, C_G, C_GO = [4 * i for i in range(13)]
sBX, sBW, sAX, sAW, sPHI, sAWO, sBWO, sOUT, sDBG, sWS = 4, 8, 12, 16, 20, 24, 28, 32, 36, 40
sWave, sCT, sRT, sH = 44, 45, 46, 47
T0, T1, T2, T3, T4, T5, T6, T7 = range(48, 56)
sB = [56, 57, 58]; sHS = [59, 60, 61]; sTS = [62, 63, 64]; sSc = [65, 66, 67]
sQB, sRot, sFree, sOT, sOC, sTok, sLoc, sXcd = 68, 69, 70, 71, 72, 73, 74, 75
sHA, sRB = sH, sQB
sSpin, sTH, sMG, sTile = 76, 77, 78, 79
SSTAMP = 80
sW4, sImg, sXB, sWB, sLh2, sLt2 = 96, 97, 98, 99, 100, 101
v16, vQL, vCnt, vOne, vZero, vPoll, vTok = 244, 245, 246, 247, 248, 249, 250
vVf = 252
vVS, vLs, vLb0, vLh0, vLt0, vLb1, vSc0, vInit = range(216, 224)
vWO = 224
vX, vW, XAc, WAc, XAr, WAr = 228, 232, 24, 28, 32, 36
ACC = {('a', 0): 96, ('a', 1): 112, ('b', 0): 128, ('b', 1): 144, 'X': 160}
FP = dict(x=176, w=184); FQ = dict(x=196, w=204)

LOG2E = 1.4426950408889634
def f2u(x): return struct.unpack('<I', struct.pack('<f', x))[0]
QSCALE = f2u(18 ** -0.5 * LOG2E)

def v(a, n=1): return f'v{a}' if n == 1 else f'v[{a}:{a+n-1}]'
def s(a, n=1): return f's{a}' if n == 1 else f's[{a}:{a+n-1}]'
def srd(a): return s(a, 4)

class Asm:
    def __init__(self, diag=False):
        self.L = []; self.uid = 0; self.diag = diag; self.lock = False
    def __call__(self, t):
        for x in t.split('\n'):
            x = x.strip()
            if x: self.L.append('    ' + x)
    def label(self, n): self.L.append(n + ':')
    def c(self, t): self.L.append('    ; ' + t)
    def new(self, p):
        self.uid += 1; return f'L_{p}{self.uid}'
    def nop(self, n):
        while n > 0:
            k = min(n, 16); self(f's_nop {k-1}'); n -= k
    def stamp(self, k):
        if self.diag and not self.lock:
            self(f's_memrealtime {s(94,2)}\ns_waitcnt lgkmcnt(0)\ns_mov_b32 {s(SSTAMP+k)}, s94')
    def lstamp(self, sreg, base=0):
        if self.diag:
            self(f's_memrealtime s[94:95]\ns_add_u32 s95, {sreg}, {base}\ns_mov_b32 s93, s95\ns_waitcnt lgkmcnt(0)\nv_writelane_b32 v254, s94, s93'.replace('s_add_u32 s95', 's_add_u32 s93').replace('s_mov_b32 s93, s95\n', '').replace('v_writelane_b32 v254, s94, s93', 's_mov_b32 m0, s93\nv_writelane_b32 v254, s94, m0'))
    def cyc0(self):
        if self.diag: self('s_memtime s[94:95]\ns_waitcnt lgkmcnt(0)\ns_mov_b32 s93, s94')
    def cyc1(self):
        if self.diag: self('s_memtime s[94:95]\ns_waitcnt lgkmcnt(0)\ns_sub_u32 s93, s94, s93')
    def text(self): return '\n'.join(self.L) + '\n'

class VM:
    def __init__(self): self.q = []
    def add(self, tag, n=1): self.q += [tag] * n
    def after(self, tag):
        i = max(k for k, t in enumerate(self.q) if t == tag)
        return len(self.q) - 1 - i

def mfma_s(d, x, y, c=None, kind='16'):
    op = {'16': 'v_mfma_f32_32x32x16_bf16', '8': 'v_mfma_f32_32x32x8_bf16', '2b': 'v_mfma_f32_32x32x4_2b_bf16'}[kind]
    nd = 32 if kind == '2b' else 16; na = 4 if kind == '16' else 2
    return f'{op} {v(d,nd)}, {v(x,na)}, {v(y,na)}, {"0" if c is None else v(c,nd)}'
def mfma(a, *k, **kw): a(mfma_s(*k, **kw))

def cvt8(a, src, dst):
    for i in range(4): a(f'v_cvt_pk_bf16_f32 {v(dst+i)}, {v(src+2*i)}, {v(src+2*i+1)}')

SRDS = {sAX: (48, 2048*1152), sAW: (50, 576*3456), sPHI: (52, 32*648), sAWO: (54, 576*1152), sBX: (56, 2048*1152),
        sBW: (58, 576*3456), sBWO: (60, 576*1152), sOUT: (62, 2048*2304), sDBG: (64, 256), sWS: (66, WS_BYTES)}
def mk_srd(a, r):
    p, nbytes = SRDS[r]
    a(f's_mov_b32 {s(r)}, {s(p)}\ns_mov_b32 {s(r+1)}, {s(p+1)}\ns_mov_b32 {s(r+2)}, {nbytes:#x}\ns_mov_b32 {s(r+3)}, 0x20000')

def spin_tail(a, top, sl=1):
    a(f's_sleep {sl}\ns_sub_u32 {s(sSpin)}, {s(sSpin)}, 1\ns_cbranch_scc0 {top}\ns_endpgm')

def token_issue(a):
    a(f'buffer_load_dwordx2 {v(vTok,2)}, {v(vZero)}, {srd(sDBG)}, 0 offen sc1')
def token_check(a):
    top = a.new('tok'); done = a.new('tokd')
    a.label(top)
    a(f'v_readfirstlane_b32 {s(T0)}, {v(vTok+1)}\nv_readfirstlane_b32 {s(sTok)}, {v(vTok)}\ns_cmp_lg_u32 {s(T0)}, 0\ns_cbranch_scc1 {done}')
    token_issue(a)
    a('s_waitcnt vmcnt(0)')
    spin_tail(a, top)
    a.label(done)

def poll_flags(a, vaddr, vt, preloaded=False, sl=1):
    top = a.new('poll'); done = a.new('polld'); chk = a.new('pollc')
    if preloaded: a(f's_branch {chk}')
    a.label(top)
    a(f'buffer_load_dword {v(vt)}, {v(vaddr)}, {srd(sWS)}, 0 offen sc1\ns_waitcnt vmcnt(0)')
    a.label(chk)
    a(f'v_cmp_ne_u32 vcc, {s(sTok)}, {v(vt)}\ns_cbranch_vccz {done}')
    spin_tail(a, top, sl)
    a.label(done)

def last_signals(a, vt, ctr, n, sflag):
    skip = a.new('nsig')
    a(f's_mov_b64 exec, 1\nds_add_rtn_u32 {v(vt)}, {v(vCnt)}, {v(vOne)} offset:{ctr}\ns_waitcnt lgkmcnt(0)')
    a(f'v_readfirstlane_b32 {s(T0)}, {v(vt)}\nv_mov_b32 {v(vt)}, {s(sflag)}\nv_mov_b32 {v(vt+1)}, {s(sTok)}\ns_cmp_lg_u32 {s(T0)}, {n-1}\ns_cbranch_scc1 {skip}')
    a(f'buffer_store_dword {v(vt+1)}, {v(vt)}, {srd(sWS)}, 0 offen sc1')
    a.label(skip)
    a('s_mov_b64 exec, -1')

def lds_arrive(a, ctr):
    a(f's_mov_b64 exec, 1\nds_add_u32 {v(vCnt)}, {v(vOne)} offset:{ctr}\ns_mov_b64 exec, -1')

def lds_wait(a, vt, ctr, n, sl=2):
    top = a.new('lw'); done = a.new('lwd')
    a.label(top)
    a(f'ds_read_b32 {v(vt)}, {v(vCnt)} offset:{ctr}\ns_waitcnt lgkmcnt(0)\nv_readfirstlane_b32 {s(T0)}, {v(vt)}\ns_cmp_ge_u32 {s(T0)}, {n}\ns_cbranch_scc1 {done}')
    spin_tail(a, top, sl)
    a.label(done)

def flag_addr(a, dst, shi, slo, sh, base):
    a(f's_lshl_b32 {s(dst)}, {s(shi)}, {sh}\ns_add_u32 {s(dst)}, {s(dst)}, {s(slo)}\ns_lshl_b32 {s(dst)}, {s(dst)}, 7\ns_add_u32 {s(dst)}, {s(dst)}, {base:#x}')

def issue_chunk(a, j):
    slot = (j % 4) * 32768; c = j % 9
    X, W = (sBX, sBW) if j < 9 else (sAX, sAW)
    nx = ' nt' if OPT.get('nt', 0) & 1 else ''; nw = ' nt' if OPT.get('nt', 0) & 2 else ''
    if OPT.get('rot', 0):
        a(f'''s_add_u32 vcc_lo, {s(sRot)}, {c}
        s_cmp_ge_u32 vcc_lo, 9
        s_cselect_b32 vcc_hi, 9, 0
        s_sub_u32 vcc_lo, vcc_lo, vcc_hi
        s_mul_i32 vcc_hi, vcc_lo, {64*3456}
        s_add_u32 vcc_hi, vcc_hi, {s(sWB)}
        s_lshl_b32 vcc_lo, vcc_lo, 7
        s_add_u32 vcc_lo, vcc_lo, {s(sXB)}
        s_lshl_b32 s3, {s(sW4)}, 12
        s_add_u32 m0, s3, {slot}
        s_nop 0''')
    else:
        a(f's_lshl_b32 s3, {s(sW4)}, 12\ns_add_u32 m0, s3, {slot}\ns_add_u32 vcc_lo, {s(sXB)}, {128*c}\ns_add_u32 vcc_hi, {s(sWB)}, {64*3456*c}')
    for i in range(4): a(f'buffer_load_dwordx4 {v(vX+i)}, {srd(X)}, vcc_lo offen offset:{1024*i}{nx} lds')
    a(f's_add_u32 m0, s3, {slot + 16384}\ns_nop 0')
    for i in range(4): a(f'buffer_load_dwordx4 {v(vW+i)}, {srd(W)}, vcc_hi offen offset:{1024*i}{nw} lds')

def su_loader(a):
    a.c('loader lane offsets: x rows (xor-swizzled 16-byte pieces), w rows (12 main pieces, 3 leftover pieces, 1 zero piece)')
    a(f'''v_lshrrev_b32 v1, 3, v0
    v_and_b32 v2, 7, v0
    v_lshrrev_b32 v3, 1, v1
    v_xor_b32 v2, v2, v3
    v_mul_u32_u24 v1, 1152, v1
    v_lshl_add_u32 {v(vX)}, v2, 4, v1
    v_xor_b32 v2, 4, v2
    v_lshl_add_u32 {v(vX+1)}, v2, 4, v1
    v_add_u32 {v(vX+1)}, {8*1152-1024}, {v(vX+1)}
    v_add_u32 {v(vX+2)}, {2*(8*1152-1024)}, {v(vX)}
    v_add_u32 {v(vX+3)}, {2*(8*1152-1024)}, {v(vX+1)}
    v_lshrrev_b32 v1, 4, v0
    v_lshlrev_b32 v2, 2, v1
    v_sub_u32 v2, v0, v2
    v_and_b32 v2, 15, v2
    v_and_b32 v3, 3, v2
    v_lshrrev_b32 v4, 2, v2
    v_mul_u32_u24 v5, 72, v4
    v_lshl_add_u32 v5, v3, 4, v5
    v_lshrrev_b32 v6, 1, v3
    v_lshl_add_u32 v5, v6, 3, v5
    v_mul_u32_u24 v6, 72, v3
    v_add_u32 v6, 32, v6
    v_cmp_eq_u32 vcc, 3, v4
    v_mul_u32_u24 v1, 3456, v1
    v_mov_b32 v7, {OOB:#x}
    v_cndmask_b32 v5, v5, v6, vcc
    v_cmp_eq_u32 vcc, 15, v2
    v_add_u32 v5, v5, v1
    s_lshl_b32 {s(sXB)}, {s(sRT)}, 2
    v_cndmask_b32 {v(vW)}, v5, v7, vcc''')
    for i in range(1, 4): a(f'v_add_u32 {v(vW+i)}, {i*(4*3456-1024)}, {v(vW)}')
    a(f'''s_add_u32 {s(sXB)}, {s(sXB)}, {s(sW4)}
    s_mul_i32 {s(sXB)}, {s(sXB)}, {32*1152}
    s_mul_i32 {s(sWB)}, {s(sW4)}, {16*3456}
    s_mul_i32 s3, {s(sCT)}, 216
    s_add_u32 {s(sWB)}, {s(sWB)}, s3''')

def su_ids2(a):
    a(f'''s_lshl_b32 s3, {s(sXcd)}, 2
    s_and_b32 {s(sH)}, {s(sLoc)}, 3
    s_add_u32 {s(sH)}, {s(sH)}, s3
    s_lshr_b32 {s(sQB)}, {s(sLoc)}, 2
    s_lshr_b32 {s(sOT)}, {s(sLoc)}, 3
    s_add_u32 {s(sOT)}, {s(sOT)}, s3
    s_and_b32 {s(sOC)}, {s(sLoc)}, 7
    s_mov_b32 {s(sSpin)}, 0x40000
    s_and_b32 {s(sTH)}, {s(sWave)}, 1
    s_lshr_b32 {s(sMG)}, {s(sW4)}, 1
    s_cmp_lt_u32 {s(sWave)}, 4
    s_cselect_b32 {s(sImg)}, 0, {AOFF:#x}
    v_mov_b32 {v(vZero)}, 0
    v_mov_b32 {v(vCnt)}, {CNT}
    v_mov_b32 {v(vOne)}, 1''')

def su_token(a, part):
    lb = a.new('notok')
    a(f's_or_b32 s3, s2, {s(sWave)}\ns_cmp_lg_u32 s3, 0\ns_cbranch_scc1 {lb}\ns_mov_b32 {s(T0)}, {EPOCH:#x}')
    if part == 0:
        a(f'buffer_load_dword v8, {v(vZero)}, {srd(sWS)}, {s(T0)} offen sc1')
    else:
        a(f'''s_mov_b32 {s(T1)}, 1664525
        s_waitcnt vmcnt(0)
        v_mul_lo_u32 v6, v8, {s(T1)}
        v_add_u32 v6, 0x3c6ef35f, v6
        v_mov_b32 v7, 1
        s_mov_b64 exec, 1
        buffer_store_dwordx2 v[6:7], {v(vZero)}, {srd(sDBG)}, 0 offen sc1
        buffer_store_dword v6, {v(vZero)}, {srd(sWS)}, {s(T0)} offen sc1
        s_mov_b64 exec, -1''')
    a.label(lb)
    if part == 0:
        a(f's_cmp_lg_u32 {s(sWave)}, 1\ns_cbranch_scc1 L_nocnt\nv_lshlrev_b32 v1, 2, v0\nv_add_u32 v1, {CNT}, v1\nds_write_b32 v1, {v(vZero)}')
        a.label('L_nocnt')

def su_gaddr(a):
    lb = a.new('mg0')
    a.c('gemm fragment addresses')
    a(f'''v_and_b32 v1, 31, v0
    v_lshrrev_b32 v2, 5, v0
    v_bfe_u32 v3, v0, 1, 3
    v_xor_b32 v3, v3, v2
    s_lshl_b32 s3, {s(sTH)}, 13
    v_lshl_add_u32 v4, v1, 7, s3''')
    for k in range(4):
        a(f'v_xor_b32 v5, {2*k}, v3\nv_lshl_add_u32 {v(XAc+k)}, v5, 4, v4')
    a(f'''v_bfe_u32 v3, v0, 2, 2
    v_and_b32 v4, 3, v0
    v_bfe_u32 v5, v0, 4, 1
    v_lshl_add_u32 v4, v5, 2, v4
    v_lshl_add_u32 v5, v2, 3, v3
    v_lshlrev_b32 v5, 8, v5
    v_add_u32 v5, 16384, v5
    v_lshrrev_b32 v6, 1, v4
    v_lshl_add_u32 v6, v3, 2, v6
    v_and_b32 v7, 1, v4
    v_lshl_add_u32 v7, v7, 3, v5
    s_lshl_b32 s3, {s(sMG)}, 3
    v_add_u32 {v(WAc)}, s3, v6
    v_and_b32 {v(WAc)}, 15, {v(WAc)}
    v_lshl_add_u32 {v(WAc)}, {v(WAc)}, 4, v7
    v_add_u32 {v(WAc+1)}, 4, v6
    v_and_b32 {v(WAc+1)}, 15, {v(WAc+1)}
    v_lshl_add_u32 {v(WAc+1)}, {v(WAc+1)}, 4, v7
    v_min_u32 v6, 3, v4
    v_lshl_add_u32 v6, v3, 2, v6
    v_add_u32 v6, 12, v6
    v_and_b32 v6, 15, v6
    v_lshl_add_u32 {v(WAc+2)}, v6, 4, v5
    s_cmp_eq_u32 {s(sMG)}, 0
    s_cbranch_scc1 {lb}
    v_mov_b32 {v(WAc+1)}, {v(WAc+2)}''')
    a.label(lb)

def su_epi(a, part):
    if part == 0: su_epi0(a)
    else: su_epi1(a)

def su_epi0(a):
    a.c('epilogue parameters')
    a('v_and_b32 v1, 31, v0\nv_lshrrev_b32 v2, 5, v0')
    a(f'''s_lshl_b32 {s(sTile)}, {s(sRT)}, 2
    s_lshl_b32 s3, {s(sTH)}, 1
    s_add_u32 {s(sTile)}, {s(sTile)}, s3
    s_cmp_lt_u32 {s(sWave)}, 4
    s_cselect_b32 s3, {QSCALE:#x}, 1.0''')
    for p in range(3):
        a(f'''s_mul_i32 {s(T0)}, {s(sCT)}, 6
        s_add_u32 {s(T0)}, {s(T0)}, {2*p}
        s_and_b32 {s(T1)}, {s(T0)}, 31
        s_mov_b32 {s(T6)}, {HREC}
        s_movk_i32 {s(T7)}, {REC}
        s_cmp_lt_u32 {s(T0)}, 32
        s_cselect_b32 {s(sHS[p])}, 0x10000, {s(T6)}
        s_cselect_b32 {s(sTS[p])}, 0x400, {s(T7)}
        s_cselect_b32 {s(T2)}, {QM}, {KV:#x}
        s_cselect_b32 {s(sSc[p])}, s3, 1.0
        s_add_u32 {s(T2)}, {s(T2)}, {s(sImg)}
        s_mul_i32 {s(T3)}, {s(T1)}, {s(sHS[p])}
        s_add_u32 {s(T2)}, {s(T2)}, {s(T3)}
        s_mul_i32 {s(T3)}, {s(sTile)}, {s(sTS[p])}
        s_add_u32 {s(sB[p])}, {s(T2)}, {s(T3)}
        s_lshl_b32 {s(T4)}, {s(T1)}, 13
        s_lshl_b32 {s(T5)}, {s(sTile)}, 7
        s_add_u32 {s(T4)}, {s(T4)}, {s(T5)}
        s_add_u32 {s(T4)}, {s(T4)}, {QL:#x}
        s_add_u32 {s(T4)}, {s(T4)}, {s(sImg)}
        s_add_u32 {s(T5)}, {s(sB[p])}, 2304
        s_cmp_lt_u32 {s(T0)}, 32
        s_cselect_b32 {s(T4)}, {s(T4)}, {s(T5)}
        s_cselect_b32 {s(T5)}, 0x2000, {s(T6)}
        s_cselect_b32 {s(T6)}, 0x80, {s(T7)}
        s_cmp_lt_u32 {s(T0)}, 64
        s_cselect_b32 {s(T4)}, {s(T4)}, {OOB:#x}''')
        if p == 0:
            a(f'v_mov_b32 {v(vLb0)}, {s(T4)}\nv_mov_b32 {v(vLh0)}, {s(T5)}\nv_mov_b32 {v(vLt0)}, {s(T6)}\nv_mov_b32 {v(vSc0)}, {s(sSc[0])}')
        elif p == 1:
            a(f'''s_mov_b32 exec_lo, 0
            v_mov_b32 {v(vLb0)}, {s(T4)}
            v_mov_b32 {v(vLh0)}, {s(T5)}
            v_mov_b32 {v(vLt0)}, {s(T6)}
            v_mov_b32 {v(vSc0)}, {s(sSc[1])}
            v_mov_b32 {v(vLb1)}, {OOB:#x}''')
        else:
            a(f's_mov_b32 exec_lo, -1\ns_mov_b32 exec_hi, 0\nv_mov_b32 {v(vLb1)}, {s(T4)}\ns_mov_b64 exec, -1')
            a(f's_mov_b32 {s(sLh2)}, {s(T5)}\ns_mov_b32 {s(sLt2)}, {s(T6)}')

def su_epi1(a):
    a('v_and_b32 v1, 31, v0\nv_lshrrev_b32 v2, 5, v0')
    a(f'''v_lshl_add_u32 {v(vLb0)}, v1, 2, {v(vLb0)}
    v_lshl_add_u32 {v(vLb1)}, v1, 2, {v(vLb1)}
    v_lshlrev_b32 {v(v16)}, 4, v0
    v_lshlrev_b32 {v(vQL)}, 2, v0
    v_lshrrev_b32 v3, 4, v1
    v_mul_u32_u24 v3, {HREC}, v3
    v_and_b32 v4, 15, v0
    v_lshlrev_b32 v4, 4, v4
    v_lshl_add_u32 v4, v2, 8, v4
    v_add_u32 {v(vVS)}, v3, v4
    v_lshrrev_b32 v3, 1, v1
    v_and_b32 v4, 1, v1
    v_subrev_u32 v5, 12, v1
    v_cmp_le_u32 vcc, 12, v1
    v_mov_b32 v6, 2
    v_mov_b32 v7, 3
    v_cndmask_b32 v3, v3, v5, vcc
    v_cndmask_b32 v4, v4, v6, vcc
    v_subrev_u32 v5, 18, v1
    v_cmp_le_u32 vcc, 18, v1
    s_mul_i32 {s(T0)}, {s(sCT)}, 6
    s_sub_u32 {s(T0)}, {s(T0)}, 64
    v_cndmask_b32 v3, v3, v5, vcc
    v_cndmask_b32 v4, v4, v7, vcc
    v_add_u32 v3, {s(T0)}, v3
    v_mul_u32_u24 v5, {HREC}, v3
    v_lshl_add_u32 v5, v4, 4, v5
    v_lshl_add_u32 v5, v2, 6, v5
    v_mov_b32 v6, {OOB:#x}
    v_cmp_gt_u32 vcc, 32, v3
    v_cmp_gt_u32 {s(T2,2)}, 24, v1
    s_and_b64 vcc, vcc, {s(T2,2)}
    v_mov_b32 v7, 1.0
    s_nop 0
    v_cndmask_b32 {v(vLs)}, v6, v5, vcc
    v_cmp_eq_u32 vcc, 2, v4
    s_cmp_ge_u32 {s(sCT)}, 10
    s_cselect_b32 {s(T0)}, {s(sMG)}, 0
    s_cmp_lg_u32 {s(T0)}, 0
    s_cselect_b64 vcc, vcc, 0
    v_cndmask_b32 {v(vInit)}, {v(vZero)}, v7, vcc''')

def su_vgat(a):
    a.c('V fragment gather offsets inside a key-tile record')
    a('v_and_b32 v1, 31, v0\nv_lshrrev_b32 v2, 5, v0')
    a(f'''v_lshlrev_b32 v3, 4, v1
    v_lshl_add_u32 v3, v2, 8, v3
    v_add_u32 v3, 1024, v3
    v_subrev_u32 v4, 16, v1
    v_cmp_eq_u32 vcc, 22, v1
    v_mov_b32 v5, 2
    v_mov_b32 v7, {OOB:#x}
    v_cndmask_b32 v4, v4, v5, vcc
    v_lshlrev_b32 v5, 4, v4
    v_lshl_add_u32 v5, v2, 6, v5
    v_add_u32 v5, 2048, v5
    v_cmp_gt_u32 vcc, 3, v4
    v_add_u32 v6, 128, v5
    s_nop 0
    v_cndmask_b32 v5, v7, v5, vcc
    v_cndmask_b32 v6, v7, v6, vcc
    v_cmp_gt_u32 vcc, 16, v1
    v_add_u32 v4, 512, v3
    s_nop 0
    v_cndmask_b32 {v(vVf)}, v5, v3, vcc
    v_cndmask_b32 {v(vVf+1)}, v6, v4, vcc''')

def su_acc(a, part):
    if part == 0:
        for r in list(range(96, 128)) + list(range(160, 176)) + list(range(196, 216)): a(f'v_mov_b32 {v(r)}, 0')
    else:
        for r in range(128, 160): a(f'v_mov_b32 {v(r)}, {v(vInit)}')

def prologue(a, opt):
    a(f's_cmp_ge_u32 s2, 256\ns_cbranch_scc1 L_end')
    a(f's_load_dwordx16 s[48:63], s[0:1], 0\ns_load_dwordx4 s[64:67], s[0:1], 64')
    if a.diag: a(f's_memrealtime {s(SSTAMP,2)}')
    a(f'v_lshrrev_b32 v1, 6, v0\nv_and_b32 v0, 63, v0\nv_readfirstlane_b32 {s(sWave)}, v1')
    a(f'''s_and_b32 {s(sXcd)}, s2, 7
    s_lshr_b32 {s(sLoc)}, s2, 3
    s_and_b32 s3, {s(sXcd)}, 1
    s_lshl_b32 s3, s3, 3
    s_and_b32 {s(sCT)}, {s(sLoc)}, 7
    s_add_u32 {s(sCT)}, {s(sCT)}, s3
    s_lshr_b32 s3, {s(sXcd)}, 1
    s_lshl_b32 s3, s3, 2
    s_lshr_b32 {s(sRT)}, {s(sLoc)}, 3
    s_add_u32 {s(sRT)}, {s(sRT)}, s3
    s_and_b32 {s(sW4)}, {s(sWave)}, 3''')
    r = opt.get('rot', 0)
    if r == 1:
        a(f's_and_b32 {s(sRot)}, {s(sLoc)}, 7\ns_lshr_b32 s3, {s(sLoc)}, 3\ns_lshl_b32 s3, s3, 1\ns_add_u32 {s(sRot)}, {s(sRot)}, s3')
    elif r == 2:
        a(f's_lshr_b32 s3, {s(sLoc)}, 3\ns_add_u32 s3, s3, {s(sLoc)}\ns_and_b32 s3, s3, 3\ns_min_u32 s3, s3, 2\ns_mul_i32 {s(sRot)}, s3, 3')
    elif r == 3:
        a(f's_lshr_b32 s3, {s(sLoc)}, 3\ns_add_u32 s3, s3, {s(sLoc)}\ns_and_b32 s3, s3, 1\ns_mul_i32 {s(sRot)}, s3, 4')
    elif r == 4:
        a(f's_lshr_b32 s3, {s(sLoc)}, 3\ns_add_u32 s3, s3, {s(sLoc)}\ns_and_b32 {s(sRot)}, s3, 3')
    if r: a(f's_cmp_ge_u32 {s(sRot)}, 9\ns_cselect_b32 s3, 9, 0\ns_sub_u32 {s(sRot)}, {s(sRot)}, s3')
    su_ids2(a)
    a(f's_cmp_lt_u32 {s(sWave)}, 4\ns_cbranch_scc1 L_pset')
    a.c('================= waves 4-7: load the B tile =================')
    su_loader(a)
    a('s_waitcnt lgkmcnt(0)')
    for r in (sBX, sBW): mk_srd(a, r)
    vm = VM()
    for j in range(2): issue_chunk(a, j); vm.add(j, 8)
    for r in (sAX, sAW, sPHI, sAWO, sBWO, sOUT, sDBG, sWS): mk_srd(a, r)
    LA = opt.get('la', 3)
    su_epi(a, 0); su_acc(a, 0)
    a.stamp(1)
    for j in range(9):
        a(f's_waitcnt vmcnt({vm.after(j)})')
        if opt.get('p1') == 1: a.stamp(3 + j)
        a('s_barrier')
        if opt.get('p1') == 2: a.stamp(3 + j)
        if opt.get('p1') == 2 and j == 0: a.cyc0()
        if opt.get('p1') == 2 and j == 8: a.cyc1()
        if j == 1: su_gaddr(a)
        if j == 2: su_epi(a, 1)
        if j == 3: su_vgat(a)
        if j == 4: su_acc(a, 1)
        sw = opt.get('sw', 5)
        for c in ([j + 2] if j < sw else [j + 2, j + 3] if j == sw else [j + 3]):
            issue_chunk(a, c); vm.add(c, 8)
            if c == 9: token_issue(a); vm.add('tok')
    a(f's_waitcnt vmcnt({vm.after("tok")})')
    token_check(a)
    a(f'ds_write_b32 {v(vCnt)}, {v(vTok)} offset:{C_TOK}\ns_mov_b32 {s(T6)}, {(9 % 4) * 32768}\ns_waitcnt lgkmcnt(0)')
    a(f's_setprio {opt.get("prio", 1)}')
    a.stamp(2)
    if opt.get('p1'): a.lock = True
    a('s_branch L_gemm')
    a.label('L_pset')
    a.c('================= waves 0-3: set-up =================')
    su_gaddr(a); su_loader(a); su_vgat(a); su_acc(a, 0)
    a('s_waitcnt lgkmcnt(0)')
    for r in (sWS, sDBG, sAX, sAW, sOUT): mk_srd(a, r)
    su_token(a, 0); su_epi(a, 0); su_epi(a, 1); su_acc(a, 1); su_token(a, 1)
    a(f's_waitcnt lgkmcnt(0)\ns_mov_b32 {s(T6)}, 0')
    a.stamp(1)
    if a.diag: a('s_mov_b32 s82, 0')

def gemm(a, opt):
    sSlot, sIt = T6, T7
    a.label('L_gemm')
    a.c('================= qkv gemm (waves 0-3: B, waves 4-7: A) =================')
    a(f'''s_mov_b32 {s(sIt)}, 9
    s_cmp_lt_u32 {s(sCT)}, 10
    s_cbranch_scc1 L_gNN
    s_cmp_gt_u32 {s(sCT)}, 10
    s_cbranch_scc1 L_gSS
    s_cmp_eq_u32 {s(sMG)}, 0
    s_cbranch_scc1 L_gNN1
    s_branch L_gSS1''')
    def mid():
        lb = a.new('mid')
        a(f's_cmp_ge_u32 {s(sWave)}, 4\ns_cbranch_scc1 {lb}\ns_barrier')
        a.label(lb)
    def loop(name, o, extra):
        nw = 3 if extra == 'c' else 2
        def reads(F, k):
            rd = lambda w, j: f'ds_read_b64_tr_b16 {v(F["w"]+4*w+2*j,2)}, {v(WAr+w)} offset:{4096*k+1024*j}'
            rx = lambda tt: f'ds_read_b128 {v(F["x"]+4*tt,4)}, {v(XAr+k)} offset:{4096*tt}'
            r = [rd(0, 0), rd(0, 1), rx(0), rx(1), rd(1, 0), rd(1, 1)]
            if nw == 3: r += [rd(2, 0), rd(2, 1)]
            if opt.get('nord') == 1: r = ['s_nop 0'] * len(r)
            if opt.get('nord') == 2: r = [x if 'tr' in x else 's_nop 0' for x in r]
            if opt.get('nord') == 3: r = [x if 'tr' not in x else 's_nop 0' for x in r]
            return r
        def mms(F):
            m = []
            for w, nm in enumerate('ab'):
                for tt in range(2):
                    x, wf = F['x']+4*tt, F['w']+4*w
                    m.append(mfma_s(ACC[(nm, tt)], wf, x, ACC[(nm, tt)]) if o == 'N' else mfma_s(ACC[(nm, tt)], x, wf, ACC[(nm, tt)]))
            if extra == 'c': m.append(mfma_s(ACC['X'], F['w']+8, F['x'], ACC['X']))
            if extra == 'b': m.append(mfma_s(ACC['X'], F['w']+4, F['x']+4, ACC['X']))
            if opt.get('m16'):
                import re
                def two(x):
                    g = re.match(r'\S+ v\[(\d+):\d+\], (\S+), (\S+), ', x); d = int(g.group(1))
                    return '\n'.join(f'v_mfma_f32_16x16x32_bf16 {v(d+4*i,4)}, {g.group(2)}, {g.group(3)}, {v(d+4*i,4)}' for i in range(2))
                m = [two(x) for x in m]
            if opt.get('nomm'): m = ['s_nop 0'] * len(m)
            return m
        nr = 2 + 2*nw
        def kstep(Fm, Fr, k, x1='', x3='', x0='', x2=''):
            m = mms(Fm); r = reads(Fr, k)
            a(f's_waitcnt lgkmcnt({nr-3})'); a(m[0]); a(r[0]); a(r[1]); a(x0)
            a(f's_waitcnt lgkmcnt({nr-2})'); a(m[1]); a(r[2]); a(r[3]); a(x1)
            a(f's_waitcnt lgkmcnt({nr-2})'); a(m[2]); a(r[4]); a(r[5]); a(x2)
            a(m[3]); a(x3)
            if nw == 3: a('s_waitcnt lgkmcnt(6)'); a(m[4]); a(r[6]); a(r[7])
            elif len(m) == 5: a(m[4])
        def addr():
            for k in range(4): a(f'v_add_u32 {v(XAr+k)}, {s(sSlot)}, {v(XAc+k)}')
            for w in range(nw): a(f'v_add_u32 {v(WAr+w)}, {s(sSlot)}, {v(WAc+w)}')
        m = mms(FQ); r = reads(FP, 0)
        a.label(f'L_g{name}')
        addr()
        a(f's_add_u32 {s(sSlot)}, {s(sSlot)}, 0x8000\ns_and_b32 {s(sSlot)}, {s(sSlot)}, 0x1ffff\ns_barrier')
        a(r[0]); a(r[1]); a(r[2]); a(m[1]); a(r[3]); a(r[4]); a(r[5]); a(m[2])
        if nw == 3: a(r[6]); a(r[7])
        for x in m[3:]: a(x)
        kstep(FP, FQ, 1); kstep(FQ, FP, 2); kstep(FP, FQ, 3)
        a(f's_waitcnt lgkmcnt({nr-3})'); a(m[0])
        w8 = a.new('w8')
        a(f's_cmp_eq_u32 {s(sIt)}, 9\ns_cbranch_scc1 {w8}\ns_waitcnt vmcnt(0)')
        a.label(w8)
        a(f's_sub_u32 {s(sIt)}, {s(sIt)}, 1\ns_cmp_lg_u32 {s(sIt)}, 0\ns_waitcnt vmcnt(8) lgkmcnt(0)\ns_cbranch_scc1 L_g{name}')
        a(f's_cmp_ge_u32 {s(sWave)}, 4\ns_cbranch_scc1 L_gf{name}\ns_barrier\ns_setprio 2\nds_read_b32 {v(vTok)}, {v(vCnt)} offset:{C_TOK}')
        a.label(f'L_gf{name}')
        for x in m[1:]: a(x)
        a.stamp(3)
    def epi_nmain(nm, p):
        sc = T2 if p != 1 else T4
        for tt in range(2):
            r = ACC[(nm, tt)]
            for hb in range(2):
                for i in range(4): a(f'v_pk_mul_f32 {v(r+8*hb+2*i,2)}, {v(r+8*hb+2*i,2)}, {s(sc,2)} op_sel_hi:[1,0]')
                cvt8(a, r + 8*hb, r + 8*hb)
                if (tt, hb) == (0, 0): so = sB[p]
                elif (tt, hb) == (0, 1): a(f's_add_u32 {s(T0)}, {s(sB[p])}, {s(sHS[p])}'); so = T0
                elif (tt, hb) == (1, 0): a(f's_add_u32 {s(T1)}, {s(sB[p])}, {s(sTS[p])}'); so = T1
                else: a(f's_add_u32 {s(T0)}, {s(T1)}, {s(sHS[p])}'); so = T0
                a(f'buffer_store_dwordx4 {v(r+8*hb,4)}, {v(v16)}, {srd(sWS)}, {s(so)} offen sc1')
    def epi_smain(nm, p):
        for tt in range(2):
            r = ACC[(nm, tt)]
            a(f's_add_u32 {s(T0)}, {s(sB[p])}, {1024 + REC*tt}')
            for f in range(2):
                cvt8(a, r + 8*f, r + 8*f)
                a(f'buffer_store_dwordx4 {v(r+8*f,4)}, {v(vVS)}, {srd(sWS)}, {s(T0)} offen offset:{512*f} sc1')
    def epi_ln(r, tt):
        for i in range(4): a(f'v_mul_f32 {v(r+i)}, {v(vSc0)}, {v(r+i)}')
        for i in range(4, 8): a(f'v_mul_f32 {v(r+i)}, {s(sSc[2])}, {v(r+i)}')
        cvt8(a, r, r)
        if tt: a(f'v_add_u32 v1, {v(vLb0)}, {v(vLt0)}\nv_add_u32 v3, {s(sLt2)}, {v(vLb1)}')
        else: a(f'v_mov_b32 v1, {v(vLb0)}\nv_mov_b32 v3, {v(vLb1)}')
        a(f'''v_add_u32 v2, v1, {v(vLh0)}
        v_add_u32 v4, {s(sLh2)}, v3
        buffer_store_dword {v(r)}, v1, {srd(sWS)}, 0 offen sc1
        buffer_store_dword {v(r+1)}, v2, {srd(sWS)}, 0 offen sc1
        buffer_store_dword {v(r+2)}, v3, {srd(sWS)}, 0 offen sc1
        buffer_store_dword {v(r+3)}, v4, {srd(sWS)}, 0 offen sc1''')
    def epi_ls():
        for tt in range(2):
            r = ACC[('b', tt)]
            a(f's_add_u32 {s(T0)}, {s(sTile)}, {tt}\ns_mul_i32 {s(T0)}, {s(T0)}, {REC}\ns_add_u32 {s(T0)}, {s(T0)}, {KV + 2048:#x}\ns_add_u32 {s(T0)}, {s(T0)}, {s(sImg)}')
            for f in range(2):
                cvt8(a, r + 8*f, r + 8*f)
                a(f'buffer_store_dwordx4 {v(r+8*f,4)}, {v(vLs)}, {srd(sWS)}, {s(T0)} offen offset:{128*f} sc1')
    def scale_prep(ps):
        for p in ps: a(f's_mov_b32 {s(T2 if p != 1 else T4)}, {s(sSc[p])}')
    loop('NN', 'N', None)
    a(f's_cmp_eq_u32 {s(sMG)}, 0\ns_cbranch_scc0 L_eV2')
    scale_prep([0, 1]); a.nop(2); epi_nmain('a', 0); mid(); epi_nmain('b', 1); a('s_branch L_epi_done')
    a.label('L_eV2')
    scale_prep([2]); a.nop(3); epi_nmain('a', 2); mid(); epi_ln(ACC[('b', 0)], 0); epi_ln(ACC[('b', 1)], 1); a('s_branch L_epi_done')
    loop('SS', 'S', None)
    a(f's_cmp_eq_u32 {s(sMG)}, 0\ns_cbranch_scc0 L_eV3')
    a.nop(3); epi_smain('a', 0); mid(); epi_smain('b', 1); a('s_branch L_epi_done')
    a.label('L_eV3')
    a.nop(3); epi_smain('a', 2); mid(); epi_ls(); a('s_branch L_epi_done')
    loop('NN1', 'N', 'c')
    scale_prep([0, 1]); a.nop(3); epi_nmain('a', 0); mid(); epi_nmain('b', 1); epi_ln(ACC['X'], 0); a('s_branch L_epi_done')
    loop('SS1', 'S', 'b')
    a.nop(4); epi_smain('a', 2); mid(); epi_ls(); epi_ln(ACC['X'], 1)
    a.label('L_epi_done')
    a.stamp(4)
    a(f's_cmp_ge_u32 {s(sWave)}, 4\ns_cbranch_scc1 L_achain')

def op_addr(a, vm, vm2, vl, vl2, vt, skq_bytes):
    t0, t1, t2, t3, t4 = vt, vt+1, vt+2, vt+3, vt+4
    a(f'''v_bfe_u32 {v(t0)}, v0, 2, 2
    v_lshrrev_b32 {v(t1)}, 5, v0
    v_and_b32 {v(t2)}, 3, v0
    v_bfe_u32 {v(t3)}, v0, 4, 1
    v_lshl_add_u32 {v(t2)}, {v(t3)}, 2, {v(t2)}
    v_lshl_add_u32 {v(t3)}, {v(t1)}, 2, {v(t0)}
    v_mul_u32_u24 {v(t3)}, 144, {v(t3)}
    v_add_u32 {v(t3)}, {s(skq_bytes)}, {v(t3)}
    v_lshl_add_u32 {v(vm)}, {v(t2)}, 3, {v(t3)}
    v_and_b32 {v(t4)}, 1, v0
    v_lshlrev_b32 {v(t4)}, 3, {v(t4)}
    v_add_u32 {v(t4)}, 128, {v(t4)}
    v_add_u32 {v(vm2)}, {v(t4)}, {v(t3)}
    v_mul_u32_u24 {v(t1)}, 72, {v(t1)}
    v_and_b32 {v(t3)}, 2, {v(t0)}
    v_and_b32 {v(t0)}, 1, {v(t0)}
    v_add3_u32 {v(t1)}, {v(t1)}, {v(t3)}, {v(t0)}
    v_add_u32 {v(t1)}, 16, {v(t1)}
    v_mul_u32_u24 {v(t1)}, 144, {v(t1)}
    v_add_u32 {v(t1)}, {s(skq_bytes)}, {v(t1)}
    v_lshl_add_u32 {v(vl)}, {v(t2)}, 3, {v(t1)}
    v_add_u32 {v(vl2)}, {v(t4)}, {v(t1)}''')

def op_w_reads(W, vm, vm2, vl, vl2, st):
    r = []
    for T in range(3):
        for j in range(2):
            if st < 8:
                off = (18*st + 8*j + (2 if st & 1 else 0)) * 144; base = vm if T < 2 else vm2
            else:
                off = 36*j*144; base = vl if T < 2 else vl2
            r.append(f'ds_read_b64_tr_b16 {v(W + 12*st + 4*T + 2*j, 2)}, {v(base)} offset:{off + (64 if T == 1 else 0)}')
    return '\n'.join(r)
def op_read_w(a, W, vm, vm2, vl, vl2):
    for st in range(9): a(op_w_reads(W, vm, vm2, vl, vl2, st))

def op_load_o(a, O, vo16, vol, sM, sM2, sL, thr=False):
    for i in range(8):
        a(f'buffer_load_dwordx4 {v(O+4*i,4)}, {v(vo16)}, {srd(sWS)}, {s(sM if i < 4 else sM2)} offen offset:{1024*(i&3)} sc1')
        if thr and i % 4 == 3: a('s_waitcnt vmcnt(0)')
    for i in range(4):
        a(f'buffer_load_dword {v(O+32+i)}, {v(vol)}, {srd(sWS)}, {s(sL)} offen offset:{128*i} sc1')

def op_mfma(a, AC, W, O, first):
    for st in range(9):
        a(f's_waitcnt vmcnt({11 - st if st < 8 else 0})')
        for T in range(3):
            mfma(a, AC + 16*T, W + 12*st + 4*T, O + 4*st, None if (first and st == 0) else AC + 16*T)

def issue_blk(a, sr, kq, slot):
    a(f's_mul_i32 {s(T0)}, {s(sOC)}, 144\ns_add_u32 {s(T0)}, {s(T0)}, {144*kq*1152}\ns_lshl_b32 {s(T1)}, {s(sW4)}, 10')
    for P in range(3):
        skip = a.new('r8')
        if P == 2: a(f's_cmp_ge_u32 {s(sW4)}, 3\ns_cbranch_scc1 {skip}')
        a(f's_add_u32 m0, {s(T1)}, {slot + 9*1024*P}\ns_nop 0\nbuffer_load_dwordx4 {v(vWO)}, {srd(sr)}, {s(T0)} offen lds')
        if P < 2:
            a(f'''s_add_u32 m0, {s(T1)}, {slot + 9*1024*P + 4096}
            s_cmp_lg_u32 {s(sW4)}, {2*(kq & 1) + P}
            buffer_load_dwordx4 {v(vWO+1)}, {srd(sr)}, {s(T0)} offen lds
            s_cbranch_scc1 {skip}
            s_mov_b32 m0, {slot + 9*1024*P + 8192}
            s_nop 0
            buffer_load_dwordx4 {v(vWO+2)}, {srd(sr)}, {s(T0)} offen lds''')
        a.label(skip)
        if OPT.get('thr', 1): a(f's_waitcnt vmcnt({OPT.get("thr", 1) - 1})')
        if P < 2: a(f's_add_u32 {s(T0)}, {s(T0)}, {64*1152}')

def p_path(a, opt):
    vK, vKL, vV0, vV1 = 8, 10, 12, 14
    Qr, QLr, M = 16, 32, 36
    Kb, KLb, Vb, Sb, Ob = 40, 56, 64, 96, 160
    sCur, sNext, sLo, sHi, sN = T2, T3, T4, T5, T6
    sQm, sQl, sChk = 56, 57, 58
    a.c('================= waves 0-3: load the rest of the A tile, publish B =================')
    vm = VM()
    for j in (12, 13): issue_chunk(a, j); vm.add(j, 8)
    a(f'''v_and_b32 v1, 31, v0
    v_mov_b32 {v(vK)}, {v(v16)}
    v_lshlrev_b32 {v(vKL)}, 2, v1
    v_add_u32 {v(vKL)}, 2304, {v(vKL)}
    v_mov_b32 {v(vV0)}, {v(vVf)}
    v_mov_b32 {v(vV1)}, {v(vVf+1)}''')
    for r in (vK, vKL, vV0, vV1): a(f'v_add_u32 {v(r+1)}, {2*REC}, {v(r)}')
    a(f'''s_add_u32 {s(T0)}, {s(sH)}, 32
    s_mul_i32 {s(T0)}, {s(T0)}, 43
    s_lshr_b32 {s(T0)}, {s(T0)}, 8
    s_add_u32 {s(T1)}, {s(sH)}, 64
    s_mul_i32 {s(T1)}, {s(T1)}, 43
    s_lshr_b32 {s(T1)}, {s(T1)}, 8
    s_mul_i32 {s(T2)}, {s(sH)}, 43
    s_lshr_b32 {s(T2)}, {s(T2)}, 8
    s_lshl_b32 {s(T3)}, {s(sMG)}, 3
    s_lshl_b32 {s(T0)}, {s(T0)}, 4
    s_add_u32 {s(T0)}, {s(T0)}, {s(T3)}
    s_lshl_b32 {s(T1)}, {s(T1)}, 4
    s_add_u32 {s(T1)}, {s(T1)}, {s(T3)}
    s_sub_u32 {s(T1)}, {s(T1)}, 8
    s_lshl_b32 {s(T2)}, {s(T2)}, 4
    s_lshl_b32 {s(T3)}, {s(sQB)}, 1
    s_add_u32 {s(T2)}, {s(T2)}, {s(T3)}
    s_add_u32 {s(T2)}, {s(T2)}, {s(sTH)}
    v_add_u32 v3, {s(T0)}, v0
    v_add_u32 v4, {s(T1)}, v0
    v_mov_b32 v5, {s(T2)}
    v_cmp_gt_u32 vcc, 16, v0
    s_nop 1
    v_cndmask_b32 v5, v5, v4, vcc
    v_cmp_gt_u32 vcc, 8, v0
    s_nop 1
    v_cndmask_b32 v5, v5, v3, vcc
    v_lshlrev_b32 v5, 7, v5
    v_add_u32 {v(vPoll)}, {FL1:#x}, v5''')
    for r in (QLr+1, QLr+3, KLb+1, KLb+3, KLb+5, KLb+7): a(f'v_mov_b32 {v(r)}, 0')
    a(f'''s_lshl_b32 {s(T0)}, {s(sH)}, 6
    s_lshl_b32 {s(T1)}, {s(sMG)}, 5
    s_add_u32 {s(T0)}, {s(T0)}, {s(T1)}
    s_mul_i32 {s(sLo)}, {s(T0)}, {REC}
    s_add_u32 {s(sLo)}, {s(sLo)}, {KV:#x}
    s_add_u32 {s(sHi)}, {s(sLo)}, {32*REC}
    s_lshl_b32 {s(T0)}, {s(sQB)}, 1
    s_add_u32 {s(T0)}, {s(T0)}, {s(sTH)}
    s_lshl_b32 {s(T1)}, {s(sH)}, 4
    s_add_u32 {s(T0)}, {s(T0)}, {s(T1)}
    s_lshl_b32 {s(sQm)}, {s(T0)}, 12
    s_lshl_b32 {s(sQl)}, {s(T0)}, 9
    s_add_u32 {s(sQl)}, {s(sQl)}, {QL:#x}''')
    flag_addr(a, T1, sCT, sRT, 4, FL1)
    a('s_waitcnt lgkmcnt(0)')
    a.c('================= waves 0-3: attention =================')
    def kv_loads(b, sreg):
        o = REC * (b & 1); u = b >> 1
        return [f'buffer_load_dwordx4 {v(Kb+4*b,4)}, {v(vK+u)}, {srd(sWS)}, {s(sreg)} offen offset:{o} sc1',
                f'buffer_load_dword {v(KLb+2*b)}, {v(vKL+u)}, {srd(sWS)}, {s(sreg)} offen offset:{o} sc1',
                f'buffer_load_dwordx4 {v(Vb+8*b,4)}, {v(vV0+u)}, {srd(sWS)}, {s(sreg)} offen offset:{o} sc1',
                f'buffer_load_dwordx4 {v(Vb+8*b+4,4)}, {v(vV1+u)}, {srd(sWS)}, {s(sreg)} offen offset:{o} sc1']
    def start_groups():
        a(f'''s_mul_i32 {s(sCur)}, {s(sQB)}, {4*REC}
        s_add_u32 {s(sCur)}, {s(sCur)}, {s(sLo)}
        s_add_u32 {s(sNext)}, {s(sCur)}, {4*REC}
        s_cmp_eq_u32 {s(sNext)}, {s(sHi)}
        s_cselect_b32 {s(sNext)}, {s(sLo)}, {s(sNext)}
        s_mov_b32 {s(sN)}, 8''')
    adv_groups = f'''s_mov_b32 {s(sCur)}, {s(sNext)}
        s_add_u32 {s(sNext)}, {s(sNext)}, {4*REC}
        s_cmp_eq_u32 {s(sNext)}, {s(sHi)}
        s_cselect_b32 {s(sNext)}, {s(sLo)}, {s(sNext)}'''
    def qk(N, kb, qp):
        return (mfma_s(N, KLb+2*kb, QLr+2*qp, None, '2b'), mfma_s(N, Kb+4*kb, Qr+8*qp, N), mfma_s(N+16, Kb+4*kb, Qr+8*qp+4, N+16))
    def step(qp, kb, ins, sub):
        S = Sb + 32*qp; N = Sb + 32*(1-qp)
        nkb = kb if qp == 0 else (kb+1) % 4
        pkb = (kb-1) % 4 if qp == 0 else kb
        QLm, Q0m, Q1m = qk(N, nkb, 1-qp)
        def E(x, y):
            for i in range(x, y):
                if sub: a(f'v_sub_f32 {v(S+i)}, {v(S+i)}, {v(M + 2*qp + i//16)}')
                a(f'v_exp_f32 {v(S+i)}, {v(S+i)}')
        def C(x, y):
            for j in range(x, y):
                b = S + 16*(j//8); k = j % 8
                a(f'v_cvt_pk_bf16_f32 {v(b + (k % 4) + 8*(k//4))}, {v(b+2*k)}, {v(b+2*k+1)}')
        def PV(t, f):
            o = Ob + 32*qp + 16*t
            mfma(a, o, Vb + 8*kb + 4*f, S + 16*t + 8*f, o)
        def I(k):
            if k in ins: a(ins[k])
        E(0, 2)
        o = Ob + 32*(1-qp) + 16
        mfma(a, o, Vb + 8*pkb + 4, N + 24, o); I('p')
        E(2, 5); a(QLm); I('q'); E(5, 9); C(0, 4); E(9, 11); PV(0, 0); I('m0'); E(11, 17); C(4, 6); a(Q0m); I('m1')
        C(6, 8); E(17, 19); PV(0, 1); I('m2'); E(19, 25); C(8, 12); a(Q1m); I('m3'); E(25, 28); PV(1, 0); I('m4'); E(28, 32); C(12, 16)
    def attn_init_a():
        for r in range(Ob+16, Ob+64): a(f'v_mov_b32 {v(r)}, 0')
        for r in range(Vb+28, Vb+32): a(f'v_mov_b32 {v(r)}, 0')
    def attn_init_b():
        for r in range(Ob, Ob+16): a(f'v_mov_b32 {v(r)}, 0')
        for r in range(Sb+56, Sb+60): a(f'v_mov_b32 {v(r)}, 0')
    def attn_init(): attn_init_a(); attn_init_b()
    def attn_loop(name, sub):
        if sub:
            for b in range(3):
                for x in kv_loads(b, sCur): a(x)
        a('s_waitcnt vmcnt(8)')
        m = qk(Sb, 0, 0); a(m[0]); a.nop(18); a(m[1]); a(m[2]); a.nop(11)
        if not sub: a.stamp(7); a.cyc0()
        a('.p2align 6')
        a.label(name)
        for t in range(4):
            ld = kv_loads((t+3) % 4, sCur if t == 0 else sNext)
            step(0, t, {'q': ld[0], 'm0': ld[1], 'm1': ld[2], 'm2': ld[3]}, sub)
            ins = {'p': 's_waitcnt vmcnt(8)'}
            if t == 3:
                ins['m0'] = adv_groups
                ins['m1'] = f's_sub_u32 {s(sN)}, {s(sN)}, 1'
                ins['m4'] = f's_cmp_lg_u32 {s(sN)}, 0'
            step(1, t, ins, sub)
        a(f's_cbranch_scc1 {name}')
        a.nop(1)
        mfma(a, Ob + 48, Vb + 28, Sb + 56, Ob + 48)
    def first_loads():
        for t in range(4): a(f'buffer_load_dwordx4 {v(Qr+4*t,4)}, {v(v16)}, {srd(sWS)}, {s(sQm)} offen offset:{1024*t} sc1')
        for j in range(2): a(f'buffer_load_dword {v(QLr+2*j)}, {v(vQL)}, {srd(sWS)}, {s(sQl)} offen offset:{256*j} sc1')
        for b in range(3):
            for x in kv_loads(b, sCur): a(x)
    a(f'v_readfirstlane_b32 {s(sTok)}, {v(vTok)}\ns_barrier')
    issue_chunk(a, 14); vm.add(14, 8)
    start_groups(); attn_init_a()
    for j in range(12, 16):
        a(f's_waitcnt vmcnt({vm.after(j)})')
        if j == 12:
            last_signals(a, 2, C_F1, 4, T1)
            a.stamp(5)
        a('s_barrier')
        if j == 14: a(f'buffer_load_dword v2, {v(vPoll)}, {srd(sWS)}, 0 offen sc1'); vm.add('fl')
        if j + 3 <= 17: issue_chunk(a, j + 3); vm.add(j + 3, 8)
        if j == 12: attn_init_b()
    a(f's_waitcnt vmcnt(8)\nv_cmp_ne_u32 vcc, {s(sTok)}, v2\ns_cbranch_vccnz L_late')
    first_loads()
    a('s_barrier\ns_waitcnt vmcnt(18)\ns_barrier\ns_branch L_go')
    a.label('L_late')
    a('s_barrier\ns_waitcnt vmcnt(0)\ns_barrier')
    if a.diag: a('s_mov_b32 s82, -1')
    poll_flags(a, vPoll, 2)
    first_loads()
    a.label('L_go')
    a('s_setprio 0')
    a.stamp(6)
    attn_loop('L_attn', False)
    a.cyc1()
    a.stamp(8)
    a.c('the softmax above used 0 in place of the row max; check on the partial sums that this was safe')
    a('s_waitcnt vmcnt(0)')
    lds_wait(a, 2, C_KVF, 4)
    a(f's_mov_b32 {s(T0)}, {f2u(2.0**-64):#x}\ns_mov_b32 {s(T1)}, {f2u(2.0**64):#x}\ns_mov_b32 {s(T7)}, {f2u(2.0**120):#x}\ns_mov_b64 {s(T2,2)}, 0')
    for t in range(4):
        o = Ob + 16*t
        a(f'''v_pk_add_f32 v[2:3], {v(o,2)}, {v(o+2,2)}
        v_pk_add_f32 v[4:5], {v(o+4,2)}, {v(o+6,2)}
        v_pk_add_f32 v[2:3], v[2:3], {v(o+8,2)}
        v_cmp_nle_f32 vcc, {s(T0)}, {v(o+10)}
        v_pk_add_f32 v[2:3], v[2:3], v[4:5]
        s_or_b64 {s(T2,2)}, {s(T2,2)}, vcc
        v_cmp_nge_f32 vcc, {s(T1)}, {v(o+10)}
        v_add_f32 v2, v2, v3
        s_or_b64 {s(T2,2)}, {s(T2,2)}, vcc
        v_cmp_ngt_f32 vcc, {s(T7)}, abs(v2)
        s_or_b64 {s(T2,2)}, {s(T2,2)}, vcc''')
    a(f's_cmp_eq_u64 {s(T2,2)}, 0\ns_cbranch_scc1 L_chk_ok')
    a(f'ds_write_b32 {v(vCnt)}, {v(vOne)} offset:{C_BAD}')
    a.label('L_chk_ok')
    a(f's_mov_b32 {s(sChk)}, 1')
    a.label('L_reduce')
    a(f'''s_mul_i32 {s(T0)}, {s(sWave)}, 6144
    v_add_u32 v1, {s(T0)}, {v(v16)}
    s_xor_b32 {s(T0)}, {s(sWave)}, 2
    s_mul_i32 {s(T0)}, {s(T0)}, 6144
    v_add_u32 v6, {s(T0)}, {v(v16)}
    s_cmp_eq_u32 {s(sMG)}, 0
    s_cbranch_scc1 L_red0''')
    def red_write(o0):
        for t in range(2):
            o = o0 + 16*t
            a(f'ds_write_b128 v1, {v(o,4)} offset:{3072*t}\nds_write_b128 v1, {v(o+4,4)} offset:{3072*t+1024}\nds_write_b96 v1, {v(o+8,3)} offset:{3072*t+2048}')
    red_write(Ob)
    for t in range(2):
        for i in range(0, 12, 2): a(f'v_pk_mov_b32 {v(Ob+16*t+i,2)}, {v(Ob+32+16*t+i,2)}, {v(Ob+32+16*t+i,2)} op_sel:[0,1]')
    a('s_branch L_red1')
    a.label('L_red0')
    red_write(Ob + 32)
    a.label('L_red1')
    a('s_waitcnt lgkmcnt(0)\ns_barrier')
    a(f'ds_read_b32 v7, {v(vCnt)} offset:{C_BAD}')
    for t in range(2):
        o = Ob + 32 + 16*t
        a(f'ds_read_b128 {v(o,4)}, v6 offset:{3072*t}\nds_read_b128 {v(o+4,4)}, v6 offset:{3072*t+1024}\nds_read_b96 {v(o+8,3)}, v6 offset:{3072*t+2048}')
    a(f's_waitcnt lgkmcnt(6)\nv_readfirstlane_b32 {s(T0)}, v7\ns_and_b32 {s(T0)}, {s(T0)}, {s(sChk)}\ns_cmp_lg_u32 {s(T0)}, 0\ns_cbranch_scc1 L_fallback')
    a(f'''s_lshl_b32 {s(T0)}, {s(sQB)}, 3
    s_lshl_b32 {s(T1)}, {s(sTH)}, 2
    s_add_u32 {s(T0)}, {s(T0)}, {s(T1)}
    s_lshl_b32 {s(T1)}, {s(sMG)}, 1
    s_add_u32 {s(T0)}, {s(T0)}, {s(T1)}''')
    o_publish(a, [Ob, Ob + 16], [Ob + 32, Ob + 48], sH, OBM, OBL, True)
    a.stamp(9)
    flag_addr(a, T1, sQB, sH, 5, FL4)
    final_prep(a)
    a('s_waitcnt vmcnt(0)')
    last_signals(a, 2, C_F4, 4, T1)
    a(f'''s_cmp_lg_u32 {s(sWave)}, 0
    s_cbranch_scc1 L_final
    v_and_b32 v1, 31, v0
    s_lshr_b32 {s(T0)}, {s(sOT)}, 2
    s_lshl_b32 {s(T0)}, {s(T0)}, 5
    v_add_u32 v3, {s(T0)}, v1
    v_lshlrev_b32 v3, 7, v3
    v_add_u32 v3, {FL4:#x}, v3''')
    poll_flags(a, 3, 2)
    a('s_branch L_final')

    a.label('L_fallback')
    a.c('the stand-in was unsafe somewhere in this workgroup: redo with the true row max')
    a(f's_waitcnt lgkmcnt(0)\ns_mov_b32 {s(sChk)}, 0')
    for t in range(4): a(f'v_mov_b32 {v(M+t)}, 0xff800000')
    a(f's_mov_b32 {s(sCur)}, {s(sLo)}')
    a.label('L_maxloop')
    for x in kv_loads(0, sCur)[:2]: a(x)
    a('s_waitcnt vmcnt(0)')
    for qp in range(2): a(qk(Sb + 32*qp, 0, qp)[0])
    a.nop(18)
    for qp in range(2): a(qk(Sb + 32*qp, 0, qp)[1]); a(qk(Sb + 32*qp, 0, qp)[2])
    a.nop(12)
    for t in range(4):
        for i in range(0, 16, 2): a(f'v_max3_f32 {v(M+t)}, {v(Sb+16*t+i)}, {v(Sb+16*t+i+1)}, {v(M+t)}')
    a(f's_add_u32 {s(sCur)}, {s(sCur)}, {REC}\ns_cmp_lg_u32 {s(sCur)}, {s(sHi)}\ns_cbranch_scc1 L_maxloop')
    for t in range(4): a(f'v_mov_b32 {v(Sb+t)}, {v(M+t)}')
    a.nop(2)
    for t in range(4): a(f'v_permlane32_swap_b32 {v(Sb+t)}, {v(M+t)}')
    a.nop(1)
    for t in range(4): a(f'v_max_f32 {v(M+t)}, {v(M+t)}, {v(Sb+t)}')
    a(f'''s_lshl_b32 {s(T0)}, {s(sWave)}, 10
    s_add_u32 {s(T0)}, {s(T0)}, 24576
    v_add_u32 v1, {s(T0)}, {v(v16)}
    v_xor_b32 v6, 2048, v1
    ds_write_b128 v1, {v(M,4)}
    s_waitcnt lgkmcnt(0)
    s_barrier
    ds_read_b128 {v(Sb,4)}, v6
    s_waitcnt lgkmcnt(0)''')
    for t in range(4): a(f'v_max_f32 {v(M+t)}, {v(M+t)}, {v(Sb+t)}')
    start_groups(); attn_init()
    attn_loop('L_attn2', True)
    a('s_waitcnt vmcnt(0)')
    a.nop(12)
    a('s_branch L_reduce')

def o_publish(a, O, P, shead, M_, L_, add):
    a(f'''s_lshl_b32 {s(T0)}, {s(T0)}, 5
    s_add_u32 {s(T0)}, {s(T0)}, {s(shead)}
    s_lshl_b32 {s(T2)}, {s(T0)}, 10
    s_add_u32 {s(T2)}, {s(T2)}, {M_:#x}
    s_add_u32 {s(T3)}, {s(T2)}, 0x8000
    s_lshl_b32 {s(T4)}, {s(T0)}, 7
    s_add_u32 {s(T4)}, {s(T4)}, {L_:#x}
    s_add_u32 {s(T5)}, {s(T4)}, 0x1000''')
    for t in range(2):
        o, p = O[t], P[t]
        if add:
            a(f's_waitcnt lgkmcnt({3 - 3*t})\nv_add_f32 {v(o+10)}, {v(o+10)}, {v(p+10)}')
            a(f'v_pk_add_f32 {v(o,2)}, {v(o,2)}, {v(p,2)}\nv_rcp_f32 {v(o+10)}, {v(o+10)}')
            for i in range(2, 10, 2): a(f'v_pk_add_f32 {v(o+i,2)}, {v(o+i,2)}, {v(p+i,2)}')
        else:
            a(f'v_add_f32 {v(o+10)}, {f2u(1e-6):#x}, {v(o+10)}\nv_rcp_f32 {v(o+10)}, {v(o+10)}\ns_nop 0')
        for i in range(0, 10, 2): a(f'v_pk_mul_f32 {v(o+i,2)}, {v(o+i,2)}, {v(o+10,2)} op_sel_hi:[1,0]')
        cvt8(a, o, p)
        a(f'v_cvt_pk_bf16_f32 {v(p+4)}, {v(o+8)}, {v(o+9)}')
        a(f'buffer_store_dwordx4 {v(p,4)}, {v(v16)}, {srd(sWS)}, {s(T2+t)} offen sc1')
        a(f's_mov_b32 exec_hi, 0\nbuffer_store_dword {v(p+4)}, {v(vQL)}, {srd(sWS)}, {s(T4+t)} offen sc1\ns_mov_b32 exec_hi, -1')

FW, FO, FA = 16, 128, 168
vFm, vFm2, vFl, vFl2, vFol = 8, 9, 10, 11, 13
def final_prep(a):
    a(f's_lshr_b32 {s(T6)}, {s(sWave)}, 1\ns_mul_i32 {s(T6)}, {s(T6)}, {WBLK}\ns_add_u32 {s(T6)}, {s(T6)}, {SLOT_B[0]}')
    op_addr(a, vFm, vFm2, vFl, vFl2, 2, T6)
    op_read_w(a, FW, vFm, vFm2, vFl, vFl2)

def final(a):
    a.label('L_final')
    a.c('================= all waves: out projection of B =================')
    sM, sM2, sL = T2, T3, T4
    a(f'''v_and_b32 v1, 31, v0
    v_lshrrev_b32 v2, 5, v0
    v_lshlrev_b32 v3, 2, v1
    v_lshl_add_u32 {v(vFol)}, v2, 9, v3
    s_lshl_b32 {s(T1)}, {s(sOT)}, 1
    s_add_u32 {s(T5)}, {s(sTH)}, {s(T1)}
    s_lshl_b32 {s(T0)}, {s(T5)}, 5
    s_lshr_b32 {s(T6)}, {s(sWave)}, 1
    s_lshl_b32 {s(T1)}, {s(T6)}, 3
    s_add_u32 {s(T0)}, {s(T0)}, {s(T1)}
    s_lshl_b32 {s(sM)}, {s(T0)}, 10
    s_add_u32 {s(sM)}, {s(sM)}, {OBM:#x}
    s_add_u32 {s(sM2)}, {s(sM)}, 4096
    s_lshl_b32 {s(sL)}, {s(T0)}, 7
    s_add_u32 {s(sL)}, {s(sL)}, {OBL:#x}
    s_waitcnt lgkmcnt(0)
    s_barrier''')
    a.stamp(10)
    op_load_o(a, FO, v16, vFol, sM, sM2, sL)
    a(f'''s_mul_i32 {s(T0)}, {s(sWave)}, 9216
    v_add_u32 v4, {s(T0)}, {v(v16)}
    s_mul_i32 {s(T0)}, {s(sTH)}, 9216
    s_lshl_b32 {s(T1)}, {s(T6)}, 11
    s_add_u32 {s(T1)}, {s(T1)}, {s(T0)}
    v_add_u32 v5, {s(T1)}, {v(v16)}
    v_add_u32 v6, {s(T0)}, {v(v16)}
    v_mul_u32_u24 v7, 2304, v1
    v_lshl_add_u32 v14, v2, 3, v7
    v_lshl_add_u32 v7, v2, 4, v7
    s_mul_i32 {s(T0)}, {s(T5)}, {32*2304}
    s_mul_i32 {s(T1)}, {s(sOC)}, 144
    s_add_u32 {s(T0)}, {s(T0)}, {s(T1)}
    s_add_u32 {s(T7)}, {s(T0)}, 1152
    s_lshl_b32 {s(T1)}, {s(T6)}, 5
    s_add_u32 {s(T5)}, {s(T7)}, {s(T1)}''')
    op_mfma(a, FA, FW, FO, True)
    a.nop(10)
    for q in range(9): a(f'ds_write_b128 v4, {v(FA+4*q,4)} offset:{1024*q}')
    a('s_waitcnt lgkmcnt(0)\ns_barrier')
    a.stamp(11)
    R = 16
    for k in range(4):
        for q in range(2): a(f'ds_read_b128 {v(R+8*k+4*q,4)}, v5 offset:{18432*k + 1024*q}')
    a(f's_cmp_lg_u32 {s(T6)}, 0\ns_cbranch_scc1 L_fin_a')
    for k in range(4): a(f'ds_read_b128 {v(R+32+4*k,4)}, v6 offset:{18432*k + 8192}')
    a('s_waitcnt lgkmcnt(0)')
    for k in range(1, 4):
        for i in range(2): a(f'v_pk_add_f32 {v(R+32+2*i,2)}, {v(R+32+2*i,2)}, {v(R+32+4*k+2*i,2)}')
    a(f'v_cvt_pk_bf16_f32 {v(R+40)}, {v(R+32)}, {v(R+33)}\nv_cvt_pk_bf16_f32 {v(R+41)}, {v(R+34)}, {v(R+35)}')
    a(f'buffer_store_dwordx2 {v(R+40,2)}, v14, {srd(sOUT)}, {s(T7)} offen offset:128')
    a.label('L_fin_a')
    a('s_waitcnt lgkmcnt(0)')
    for k in range(1, 4):
        for i in range(4): a(f'v_pk_add_f32 {v(R+2*i,2)}, {v(R+2*i,2)}, {v(R+8*k+2*i,2)}')
    for i in range(4): a(f'v_cvt_pk_bf16_f32 {v(R+8+i)}, {v(R+2*i)}, {v(R+2*i+1)}')
    a(f's_nop 1\nv_permlane32_swap_b32 {v(R+8)}, {v(R+10)}\nv_permlane32_swap_b32 {v(R+9)}, {v(R+11)}')
    a(f'buffer_store_dwordx4 {v(R+8,4)}, v7, {srd(sOUT)}, {s(T5)} offen')
    if a.diag:
        a('s_waitcnt vmcnt(0)')
        a.stamp(12)
        a.label('L_dump')
        a(f's_lshl_b32 {s(T0)}, s2, 3\ns_add_u32 {s(T0)}, {s(T0)}, {s(sWave)}\ns_lshl_b32 {s(T0)}, {s(T0)}, 7\ns_add_u32 {s(T0)}, {s(T0)}, {STAMPS:#x}')
        for k in range(16): a(f'v_mov_b32 {v(16+k)}, {s(SSTAMP+k)}')
        a(f's_lshl_b32 {s(T1)}, {s(T0)}, 1\ns_sub_u32 {s(T1)}, {s(T1)}, {STAMPS - 0x80000:#x}\nbuffer_store_dword v254, {v(vQL)}, {srd(sWS)}, {s(T1)} offen')
        a('v_mov_b32 v1, 0\ns_mov_b64 exec, 1')
        for k in range(4): a(f'buffer_store_dwordx4 {v(16+4*k,4)}, v1, {srd(sWS)}, {s(T0)} offen offset:{16*k}')
    a.label('L_end')
    a('s_endpgm')

def a_chain(a, opt):
    WPH, WL, WLq, WLk = 24, 28, 30, 32
    Fq, Fk, Fl, Fv = [36, 40], [44, 48], [52, 54], [56, 64]
    a.label('L_achain')
    a.c('================= waves 4-7: publish A qkv, feature maps =================')
    a(f'''v_and_b32 v1, 31, v0
    v_lshrrev_b32 v2, 5, v0
    v_cmp_eq_u32 vcc, 20, v1
    v_mov_b32 v3, 17
    v_mov_b32 v4, {OOB:#x}
    v_cndmask_b32 v3, v1, v3, vcc
    v_cmp_ge_u32 {s(T0,2)}, 16, v1
    s_or_b64 vcc, vcc, {s(T0,2)}
    v_lshlrev_b32 v3, 1, v3
    s_mul_i32 {s(T2)}, {s(sHA)}, 648
    v_cndmask_b32 v3, v4, v3, vcc
    v_mul_u32_u24 v5, 144, v2
    v_add_u32 v4, v3, v5
    s_and_b32 {s(T0)}, {s(sHA)}, 1
    s_mul_i32 {s(T1)}, {s(T0)}, 72
    s_add_u32 {s(T3)}, {s(T2)}, {s(T1)}
    s_mul_i32 {s(T1)}, {s(T0)}, 576
    s_sub_u32 {s(T2)}, {s(T2)}, {s(T1)}
    s_add_u32 {s(T2)}, {s(T2)}, 576''')
    for e in range(8):
        a(f'buffer_load_ushort {v(8 + e)}, v4, {srd(sPHI)}, {s(T3)} offen offset:{((e & 3) + 8*(e >> 2))*36}')
    a(f'buffer_load_ushort v34, v3, {srd(sPHI)}, {s(T2)} offen\nbuffer_load_ushort v35, v3, {srd(sPHI)}, {s(T2)} offen offset:36')
    for k in range(3):
        if k < 2: a(f's_add_u32 {s(T0)}, {s(sW4)}, {4*k}\ns_lshl_b32 {s(T0)}, {s(T0)}, 6\nv_add_u32 v3, {s(T0)}, v0')
        else: a('v_add_u32 v3, 512, v0')
        a(f'''v_mul_u32_u24 v4, 7282, v3
        v_lshrrev_b32 v4, 16, v4
        v_mul_u32_u24 v5, 9, v4
        v_sub_u32 v5, v3, v5
        v_mul_u32_u24 v6, 1152, v4
        v_lshl_add_u32 {v(vWO+k)}, v5, 4, v6''')
    a(f'''v_min_u32 v3, 2, v0
    v_lshlrev_b32 v3, 5, v3
    v_add_u32 v3, {s(sHA)}, v3
    v_mul_u32_u24 v3, 43, v3
    v_lshrrev_b32 v3, 8, v3
    s_lshl_b32 {s(T0)}, {s(sRB)}, 1
    s_add_u32 {s(T0)}, {s(T0)}, {s(sMG)}
    v_lshl_add_u32 v3, v3, 4, {s(T0)}
    v_lshlrev_b32 v3, 7, v3
    v_add_u32 {v(vPoll)}, {FL1A:#x}, v3''')
    a(f'''s_lshl_b32 {s(T6)}, {s(sRB)}, 3
    s_lshl_b32 {s(T1)}, {s(sW4)}, 1
    s_add_u32 {s(T6)}, {s(T6)}, {s(T1)}
    s_lshl_b32 {s(T1)}, {s(sHA)}, 6
    s_add_u32 {s(T0)}, {s(T6)}, {s(T1)}
    s_lshl_b32 {s(T4)}, {s(T0)}, 10
    s_add_u32 {s(T4)}, {s(T4)}, {QM + AOFF:#x}
    s_mul_i32 {s(T5)}, {s(T0)}, {REC}
    s_add_u32 {s(T5)}, {s(T5)}, {KV + AOFF:#x}
    s_lshl_b32 {s(T0)}, {s(T0)}, 7
    s_add_u32 {s(T0)}, {s(T0)}, {QL + AOFF:#x}
    s_add_u32 {s(T1)}, {s(T5)}, 2304
    v_mov_b32 v3, {s(T0)}
    v_mov_b32 v4, {s(T1)}
    v_mov_b32 v5, 128
    v_mov_b32 v6, {REC}
    v_cmp_gt_u32 vcc, 32, v0
    v_mov_b32 {v(WLq+1)}, 0
    v_mov_b32 {v(WLk+1)}, 0
    v_cndmask_b32 v3, v4, v3, vcc
    v_cndmask_b32 v5, v6, v5, vcc
    v_lshl_add_u32 v7, v1, 2, v3
    v_add_u32 v6, v7, v5
    v_mov_b32 {v(Fl[0]+1)}, 0
    v_mov_b32 {v(Fl[1]+1)}, 0''')
    flag_addr(a, T1, sCT, sRT, 4, FL1A)
    a('s_waitcnt vmcnt(0)')
    last_signals(a, 2, C_F1A, 4, T1)
    for i in range(4): a(f'v_lshl_or_b32 {v(WPH + i)}, {v(9 + 2*i)}, 16, {v(8 + 2*i)}')
    a(f'v_lshl_or_b32 {v(WL)}, v35, 16, v34\nv_cmp_gt_u32 vcc, 32, v0\ns_nop 1\nv_cndmask_b32 {v(WLq)}, {v(vZero)}, {v(WL)}, vcc\nv_cndmask_b32 {v(WLk)}, {v(WL)}, {v(vZero)}, vcc')
    a.stamp(5)
    poll_flags(a, vPoll, 2, sl=4)
    a.stamp(6)
    for tt in range(2):
        a(f'buffer_load_dwordx4 {v(Fk[tt],4)}, {v(v16)}, {srd(sWS)}, {s(T5)} offen offset:{REC*tt} sc1')
        a(f'buffer_load_dword {v(Fl[tt])}, {v(7 - tt)}, {srd(sWS)}, 0 offen sc1')
    for tt in range(2): a(f'buffer_load_dwordx4 {v(Fq[tt],4)}, {v(v16)}, {srd(sWS)}, {s(T4)} offen offset:{1024*tt} sc1')
    for tt in range(2):
        for f in range(2): a(f'buffer_load_dwordx4 {v(Fv[tt]+4*f,4)}, {v(vVf+f)}, {srd(sWS)}, {s(T5)} offen offset:{REC*tt} sc1')
    vPh, vPr = 8, 9
    lds_wait(a, 2, C_F1A, 4)
    a(f'''s_mul_i32 {s(T0)}, {s(sW4)}, 5120
    s_add_u32 {s(T0)}, {s(T0)}, {XA}
    v_lshrrev_b32 v2, 5, v0
    v_mul_u32_u24 v3, 80, v1
    v_lshl_add_u32 v3, v2, 3, v3
    v_add_u32 {v(vPh)}, {s(T0)}, v3
    v_bfe_u32 v3, v0, 2, 2
    v_lshl_add_u32 v5, v2, 2, v3
    v_mul_u32_u24 v5, 80, v5
    v_add_u32 v5, {s(T0)}, v5
    v_and_b32 v4, 3, v0
    v_lshlrev_b32 v6, 3, v4
    v_and_b32 v3, 1, v0
    v_lshlrev_b32 v3, 3, v3
    v_add_u32 v3, 64, v3
    v_bfe_u32 v4, v0, 4, 1
    v_cmp_eq_u32 vcc, 0, v4
    v_add_u32 {v(vPr+1)}, v5, v6
    s_mov_b32 {s(T2)}, {f2u(LOG2E):#x}
    v_cndmask_b32 v6, v3, v6, vcc
    s_mov_b32 {s(T3)}, {f2u(LOG2E):#x}
    v_add_u32 {v(vPr)}, v5, v6''')
    D = {('k', 0): 80, ('k', 1): 96, ('q', 0): 112, ('q', 1): 128}
    a('s_waitcnt vmcnt(6)')
    for tt in range(2): mfma(a, D[('k', tt)], WLk, Fl[tt], None, '8')
    for tt in range(2): mfma(a, D[('q', tt)], WLq, Fl[tt], None, '8')
    a.nop(7)
    for tt in range(2): mfma(a, D[('k', tt)], WPH, Fk[tt], D[('k', tt)])
    a('s_waitcnt vmcnt(4)')
    for tt in range(2): mfma(a, D[('q', tt)], WPH, Fq[tt], D[('q', tt)])
    a.nop(8)
    EP, EM = 144, 156
    PH = {('q', 0): 204, ('q', 1): 214, ('k', 0): 168, ('k', 1): 178}
    def softmax2(x, P):
        a(f'''v_max3_f32 v2, {v(x)}, {v(x+1)}, {v(x+2)}
        v_max3_f32 v4, -{v(x)}, -{v(x+1)}, -{v(x+2)}
        v_max3_f32 v2, v2, {v(x+3)}, {v(x+4)}
        v_max3_f32 v4, v4, -{v(x+3)}, -{v(x+4)}
        v_max3_f32 v2, v2, {v(x+5)}, {v(x+6)}
        v_max3_f32 v4, v4, -{v(x+5)}, -{v(x+6)}
        v_max3_f32 v2, v2, {v(x+7)}, {v(x+8)}
        v_max3_f32 v4, v4, -{v(x+7)}, -{v(x+8)}
        s_nop 1
        v_permlane32_swap_b32 v2, v4
        v_max_f32 v2, v2, v4
        v_mul_f32 v2, {s(T2)}, v2
        v_mov_b32 v4, v2
        s_nop 1
        v_permlane32_swap_b32 v2, v4''')
        for i in range(0, 8, 2):
            a(f'v_pk_fma_f32 {v(EP+i,2)}, {v(x+i,2)}, {s(T2,2)}, v[2:3] op_sel_hi:[1,1,0] neg_lo:[0,0,1] neg_hi:[0,0,1]')
        a(f'v_fma_f32 {v(EP+8)}, {v(x+8)}, {s(T2)}, -v2')
        for i in range(0, 8, 2):
            a(f'v_pk_fma_f32 {v(EM+i,2)}, {v(x+i,2)}, {s(T2,2)}, v[4:5] op_sel_hi:[1,1,0] neg_lo:[1,0,1] neg_hi:[1,0,1]')
        a(f'v_fma_f32 {v(EM+8)}, -{v(x+8)}, {s(T2)}, -v4')
        for E in (EP, EM):
            for i in range(9): a(f'v_exp_f32 {v(E+i)}, {v(E+i)}')
        a(f'''v_pk_add_f32 v[2:3], {v(EP,2)}, {v(EP+2,2)}
        v_pk_add_f32 v[4:5], {v(EM,2)}, {v(EM+2,2)}
        v_pk_add_f32 v[2:3], v[2:3], {v(EP+4,2)}
        v_pk_add_f32 v[4:5], v[4:5], {v(EM+4,2)}
        v_pk_add_f32 v[2:3], v[2:3], {v(EP+6,2)}
        v_pk_add_f32 v[4:5], v[4:5], {v(EM+6,2)}
        v_add_f32 v2, v2, {v(EP+8)}
        v_add_f32 v4, v4, {v(EM+8)}
        v_add_f32 v2, v2, v3
        v_add_f32 v4, v4, v5
        s_nop 1
        v_permlane32_swap_b32 v2, v4
        v_add_f32 v2, v2, v4
        v_rcp_f32 v2, v2
        s_nop 0
        v_mov_b32 v4, v2
        s_nop 1
        v_permlane32_swap_b32 v2, v4''')
        for E, t in ((EP, 2), (EM, 4)):
            for i in range(0, 8, 2): a(f'v_pk_mul_f32 {v(E+i,2)}, {v(E+i,2)}, {v(t,2)} op_sel_hi:[1,0]')
            a(f'v_mul_f32 {v(E+8)}, {v(E+8)}, {v(t)}')
        cvt8(a, EP, P); cvt8(a, EM, P+4)
        a(f'v_cvt_pk_bf16_f32 {v(P+8)}, {v(EP+8)}, {v(EM+8)}')
    for tt in range(2):
        P = PH[('k', tt)]
        softmax2(D[('k', tt)], P)
        o = 2560*tt
        a(f'''ds_write_b64 {v(vPh)}, {v(P,2)} offset:{o}
        ds_write_b64 {v(vPh)}, {v(P+2,2)} offset:{o+16}
        ds_write_b64 {v(vPh)}, {v(P+4,2)} offset:{o+32}
        ds_write_b64 {v(vPh)}, {v(P+6,2)} offset:{o+48}
        ds_write_b32 {v(vPh)}, {v(P+8)} offset:{o+64}''')
    a.c('kv partial of this wave: phi_k^T (transposed through LDS) x [v | 1]')
    KA = 144; KD = [80, 96]
    a('s_waitcnt lgkmcnt(0)')
    for k in range(4):
        for sg in range(2):
            for j in range(2):
                a(f'ds_read_b64_tr_b16 {v(KA+8*k+4*sg+2*j,2)}, {v(vPr+sg)} offset:{(16*k+8*j)*80 + 32*sg}')
    a(f'''s_mul_i32 {s(T0)}, {s(sW4)}, 5120
    v_add_u32 v6, {s(T0)}, {v(v16)}
    v_lshlrev_b32 v1, 3, v0
    v_add_u32 v7, {s(T0)}, v1
    s_waitcnt vmcnt(0) lgkmcnt(0)''')
    for k in range(4):
        for sg in range(2): mfma(a, KD[sg], KA+8*k+4*sg, Fv[0]+4*k, None if k == 0 else KD[sg])
    softmax2(D[('q', 0)], PH[('q', 0)])
    a(f'''ds_write_b128 v6, {v(KD[0],4)} offset:{XA}
    ds_write_b128 v6, {v(KD[0]+4,4)} offset:{XA+1024}
    ds_write_b64 v7, {v(KD[0]+8,2)} offset:{XA+2048}
    ds_write_b128 v6, {v(KD[1],4)} offset:{XA+2560}
    ds_write_b128 v6, {v(KD[1]+4,4)} offset:{XA+3584}
    s_waitcnt lgkmcnt(0)''')
    lds_arrive(a, C_KVX)
    a(f'''s_mul_i32 {s(T7)}, {s(sTH)}, 2560
    s_lshl_b32 {s(T1)}, {s(sMG)}, 10
    s_add_u32 {s(T7)}, {s(T7)}, {s(T1)}
    v_add_u32 v6, {s(T7)}, {v(v16)}
    s_lshl_b32 {s(T0)}, {s(sHA)}, 3
    s_add_u32 {s(T1)}, {s(T0)}, {s(sRB)}
    s_mul_i32 {s(T4)}, {s(T1)}, {KVPS}
    s_add_u32 {s(T4)}, {s(T4)}, {KVP:#x}
    s_add_u32 {s(T5)}, {s(T4)}, {s(T7)}
    s_lshl_b32 {s(T1)}, {s(T1)}, 7
    s_add_u32 {s(T1)}, {s(T1)}, {FL2:#x}''')
    lds_wait(a, 2, C_KVX, 4)
    R = 80
    for w in range(4): a(f'ds_read_b128 {v(R+4*w,4)}, v6 offset:{XA + 5120*w}')
    a(f's_cmp_lg_u32 {s(sW4)}, 3\ns_cbranch_scc1 L_kvx')
    for w in range(4): a(f'ds_read_b64 {v(R+16+2*w,2)}, v1 offset:{XA + 5120*w + 2048}')
    a('s_waitcnt lgkmcnt(0)')
    for w in range(1, 4): a(f'v_pk_add_f32 {v(R+16,2)}, {v(R+16,2)}, {v(R+16+2*w,2)}')
    a(f'buffer_store_dwordx2 {v(R+16,2)}, v1, {srd(sWS)}, {s(T4)} offen offset:2048 sc1')
    a.label('L_kvx')
    a('s_waitcnt lgkmcnt(0)')
    for w in range(1, 4):
        for k in range(2): a(f'v_pk_add_f32 {v(R+2*k,2)}, {v(R+2*k,2)}, {v(R+4*w+2*k,2)}')
    a(f'buffer_store_dwordx4 {v(R,4)}, {v(v16)}, {srd(sWS)}, {s(T5)} offen sc1')
    softmax2(D[('q', 1)], PH[('q', 1)])
    for tt in range(2): a(f'v_mov_b32 {v(PH[("q", tt)]+9)}, 0')
    a('s_waitcnt vmcnt(0)')
    last_signals(a, 2, C_F2, 4, T1)
    a.stamp(7)
    a.c('================= waves 4-7: kv total, numerator / denominator =================')
    a(f'''v_and_b32 v3, 7, v0
    s_lshl_b32 {s(T0)}, {s(sHA)}, 3
    v_add_u32 v3, {s(T0)}, v3
    v_lshlrev_b32 v3, 7, v3
    v_add_u32 v3, {FL2:#x}, v3
    s_mul_i32 {s(T4)}, {s(T0)}, {KVPS}
    s_add_u32 {s(T4)}, {s(T4)}, {KVP:#x}
    s_add_u32 {s(T5)}, {s(T4)}, {s(T7)}
    s_lshl_b32 {s(T7)}, {s(sTH)}, 10
    s_lshl_b32 {s(T0)}, {s(sMG)}, 3
    s_add_u32 {s(T7)}, {s(T7)}, {s(T0)}
    s_add_u32 {s(T7)}, {s(T7)}, {KVF}''')
    for kq in (0, 2, 1, 3): issue_blk(a, sAWO, kq, SLOT_A[kq])
    for kq in (0, 1): issue_blk(a, sBWO, kq, SLOT_B[kq])
    poll_flags(a, 3, 2, sl=4)
    for i in range(8):
        a(f'buffer_load_dwordx4 {v(R+4*i,4)}, {v(v16)}, {srd(sWS)}, {s(T5)} offen sc1')
        if i < 7: a(f's_add_u32 {s(T5)}, {s(T5)}, {KVPS}')
    a(f'v_add_u32 v3, {s(T7)}, {v(v16)}\nv_add_u32 v6, {KVF + 2048}, v1\ns_cmp_lg_u32 {s(sW4)}, 3\ns_cbranch_scc1 L_kvs')
    for i in range(8):
        a(f'buffer_load_dwordx2 {v(R+32+2*i,2)}, v1, {srd(sWS)}, {s(T4)} offen offset:2048 sc1')
        if i < 7: a(f's_add_u32 {s(T4)}, {s(T4)}, {KVPS}')
    a('s_waitcnt vmcnt(0)')
    for i in range(1, 8): a(f'v_pk_add_f32 {v(R+32,2)}, {v(R+32,2)}, {v(R+32+2*i,2)}')
    a(f'v_cvt_pk_bf16_f32 v4, {v(R+32)}, {v(R+33)}\nv_mov_b32 v5, 0\nds_write_b64 v6, v[4:5]')
    a.label('L_kvs')
    a('s_waitcnt vmcnt(0)')
    for i in range(1, 8):
        for k in range(2): a(f'v_pk_add_f32 {v(R+2*k,2)}, {v(R+2*k,2)}, {v(R+4*i+2*k,2)}')
    a(f'v_cvt_pk_bf16_f32 v10, {v(R)}, {v(R+1)}\nv_cvt_pk_bf16_f32 v11, {v(R+2)}, {v(R+3)}\nds_write_b64 v3, v[10:11]\ns_waitcnt lgkmcnt(0)')
    lds_arrive(a, C_KVF)
    lds_wait(a, 2, C_KVF, 4)
    KF = 144
    a(f'''v_add_u32 v3, {KVF}, {v(v16)}
    ds_read_b64 {v(KF+8,2)}, v6
    ds_read_b128 {v(KF,4)}, v3
    ds_read_b128 {v(KF+4,4)}, v3 offset:1024
    s_mov_b32 {s(T0)}, {s(T6)}
    s_waitcnt lgkmcnt(0)''')
    ND = [80, 96]
    for tt in range(2): mfma(a, ND[tt], KF+8, PH[('q', tt)]+8, None, '8')
    a.nop(9)
    for tt in range(2): mfma(a, ND[tt], KF, PH[('q', tt)], ND[tt])
    for tt in range(2): mfma(a, ND[tt], KF+4, PH[('q', tt)]+4, ND[tt])
    a.nop(3)
    o_publish(a, ND, [112, 120], sHA, OAM, OAL, False)
    flag_addr(a, T1, sRB, sHA, 5, FL3)
    a('s_waitcnt vmcnt(0)')
    last_signals(a, 2, C_F3, 4, T1)
    a.stamp(8)
    a.c('================= waves 4-7: out projection of A (operands first, MFMAs after the attention) =================')
    W, O1, O2, AC = 16, 124, 160, 196
    X = (8, 9, 10, 11); Y = (12, 13, 14, 15)
    sM, sM2, sL = T2, T3, T4
    a(f's_mul_i32 {s(T6)}, {s(sMG)}, {WBLK}\ns_add_u32 {s(T6)}, {s(T6)}, {SLOT_A[0]}')
    op_addr(a, *X, 2, T6)
    op_read_w(a, W, *X)
    for i in range(4): a(f'v_subrev_u32 {v(Y[i])}, {4*WBLK}, {v(X[i])}')
    a(f'''v_and_b32 v1, 31, v0
    v_lshrrev_b32 v2, 5, v0
    v_lshlrev_b32 v3, 2, v1
    v_lshl_add_u32 v5, v2, 9, v3
    s_lshr_b32 {s(T0)}, {s(sOT)}, 2
    s_lshl_b32 {s(T0)}, {s(T0)}, 5
    v_add_u32 v3, {s(T0)}, v1
    v_lshlrev_b32 v3, 7, v3
    v_add_u32 v3, {FL3:#x}, v3
    s_lshl_b32 {s(T1)}, {s(sOT)}, 1
    s_add_u32 {s(T5)}, {s(sTH)}, {s(T1)}
    s_lshl_b32 {s(T0)}, {s(T5)}, 5
    s_lshl_b32 {s(T1)}, {s(sMG)}, 4
    s_add_u32 {s(T7)}, {s(T0)}, {s(T1)}
    s_lshl_b32 {s(sM)}, {s(T7)}, 10
    s_add_u32 {s(sM)}, {s(sM)}, {OAM:#x}
    s_add_u32 {s(sM2)}, {s(sM)}, 4096
    s_lshl_b32 {s(sL)}, {s(T7)}, 7
    s_add_u32 {s(sL)}, {s(sL)}, {OAL:#x}
    s_waitcnt lgkmcnt(0)''')
    lds_arrive(a, C_W1)
    lds_wait(a, 4, C_W1, 4)
    for kq in (2, 3): issue_blk(a, sBWO, kq, SLOT_B[kq])
    poll_flags(a, 3, 4, sl=4)
    op_load_o(a, O1, v16, 5, sM, sM2, sL, OPT.get('thr', 1))
    a(f's_add_u32 {s(sM)}, {s(sM)}, 8192\ns_add_u32 {s(sM2)}, {s(sM2)}, 8192\ns_add_u32 {s(sL)}, {s(sL)}, 1024')
    op_load_o(a, O2, v16, 5, sM, sM2, sL, OPT.get('thr', 1))
    a('s_waitcnt vmcnt(0)')
    a.stamp(9)
    a('s_barrier')
    a(f'ds_read_b32 v7, {v(vCnt)} offset:{C_BAD}\ns_waitcnt lgkmcnt(0)\nv_readfirstlane_b32 {s(T0)}, v7\ns_cmp_eq_u32 {s(T0)}, 0\ns_cbranch_scc1 L_l_ok')
    a('s_barrier\ns_barrier')
    a.label('L_l_ok')
    a(f's_setprio {opt.get("prio2", 0)}')
    for ps, (O, nxt) in enumerate(((O1, Y), (O2, X))):
        for st in range(9):
            if ps == 1 and st == 0: a('s_waitcnt lgkmcnt(6)')
            if ps == 1 and st == 8: a('s_waitcnt lgkmcnt(12)')
            for T in range(3):
                mfma(a, AC + 16*T, W + 12*st + 4*T, O + 4*st, None if (ps == 0 and st == 0) else AC + 16*T)
            if st: a(op_w_reads(W, *nxt, st - 1))
        a(op_w_reads(W, *nxt, 8))
    lds_wait(a, 3, C_F4, 4)
    a(f'''s_mul_i32 {s(T0)}, {s(sW4)}, 5120
    s_add_u32 {s(T0)}, {s(T0)}, {XA}
    v_add_u32 v4, {s(T0)}, {v(v16)}
    s_xor_b32 {s(T0)}, {s(sW4)}, 2
    s_mul_i32 {s(T0)}, {s(T0)}, 5120
    s_add_u32 {s(T0)}, {s(T0)}, {XA}
    v_add_u32 v5, {s(T0)}, {v(v16)}
    v_mul_u32_u24 v7, 2304, v1
    v_lshl_add_u32 v6, v2, 3, v7
    v_lshl_add_u32 v7, v2, 4, v7
    s_mul_i32 {s(T0)}, {s(T5)}, {32*2304}
    s_mul_i32 {s(T1)}, {s(sOC)}, 144
    s_add_u32 {s(T7)}, {s(T0)}, {s(T1)}
    s_lshl_b32 {s(T1)}, {s(sMG)}, 6
    s_add_u32 {s(T5)}, {s(T7)}, {s(T1)}
    s_cmp_eq_u32 {s(sMG)}, 0
    s_cbranch_scc1 L_opa0''')
    for q in range(4): a(f'ds_write_b128 v4, {v(AC+4*q,4)} offset:{1024*q}')
    a(f'ds_write_b128 v4, {v(AC+32,4)} offset:4096')
    for i in range(0, 16, 2): a(f'v_pk_mov_b32 {v(AC+i,2)}, {v(AC+16+i,2)}, {v(AC+16+i,2)} op_sel:[0,1]')
    a('s_branch L_opa1')
    a.label('L_opa0')
    for q in range(4): a(f'ds_write_b128 v4, {v(AC+16+4*q,4)} offset:{1024*q}')
    a.label('L_opa1')
    a('s_waitcnt lgkmcnt(0)')
    lds_arrive(a, C_OPA)
    lds_wait(a, 3, C_OPA, 4)
    R = 124
    for q in range(5): a(f'ds_read_b128 {v(R+4*q,4)}, v5 offset:{1024*q}')
    a('s_waitcnt lgkmcnt(0)')
    for i in range(0, 16, 2): a(f'v_pk_add_f32 {v(AC+i,2)}, {v(AC+i,2)}, {v(R+i,2)}')
    for i in range(8): a(f'v_cvt_pk_bf16_f32 {v(R+24+i)}, {v(AC+2*i)}, {v(AC+2*i+1)}')
    a(f'''s_nop 1
    v_permlane32_swap_b32 {v(R+24)}, {v(R+26)}
    v_permlane32_swap_b32 {v(R+25)}, {v(R+27)}
    v_permlane32_swap_b32 {v(R+28)}, {v(R+30)}
    v_permlane32_swap_b32 {v(R+29)}, {v(R+31)}
    buffer_store_dwordx4 {v(R+24,4)}, v7, {srd(sOUT)}, {s(T5)} offen
    buffer_store_dwordx4 {v(R+28,4)}, v7, {srd(sOUT)}, {s(T5)} offen offset:32
    s_cmp_lg_u32 {s(sMG)}, 0
    s_cbranch_scc1 L_opa2
    v_pk_add_f32 {v(R+16,2)}, {v(R+16,2)}, {v(AC+32,2)}
    v_pk_add_f32 {v(R+18,2)}, {v(R+18,2)}, {v(AC+34,2)}
    v_cvt_pk_bf16_f32 {v(R+20)}, {v(R+16)}, {v(R+17)}
    v_cvt_pk_bf16_f32 {v(R+21)}, {v(R+18)}, {v(R+19)}
    buffer_store_dwordx2 {v(R+20,2)}, v6, {srd(sOUT)}, {s(T7)} offen offset:128''')
    a.label('L_opa2')

HEADER = '''; Fused hedgehog linear attention (A) + softmax MHA (B), one persistent launch of 256 workgroups.
; kernarg: A_x A_wqkv A_w_phi A_wo B_x B_wqkv B_wo out debug ws (8-byte pointers, in that order)
; @launch grid=(256,1,1) block=(512,1,1) lds=%d
.amdgcn_target "amdgcn-amd-amdhsa--gfx950"
.text
.globl %s_kernel
.p2align 8
.type %s_kernel,@function
%s_kernel:
''' % (LDS_BYTES, NAME, NAME, NAME)
FOOTER = '''.section .rodata,"a"
.p2align 6
.amdhsa_kernel %s_kernel
  .amdhsa_next_free_vgpr 256
  .amdhsa_next_free_sgpr 102
  .amdhsa_accum_offset 256
  .amdhsa_group_segment_fixed_size 0
  .amdhsa_kernarg_size 80
  .amdhsa_user_sgpr_count 2
  .amdhsa_user_sgpr_kernarg_segment_ptr 1
  .amdhsa_system_sgpr_workgroup_id_x 1
.end_amdhsa_kernel
''' % NAME

OPT = {}
def generate(diag=False, **opt):
    OPT.clear(); OPT.update(opt)
    a = Asm(diag)
    prologue(a, opt)
    gemm(a, opt)
    p_path(a, opt)
    a_chain(a, opt)
    final(a)
    body = a.text()
    bad = lint(body)
    for x in bad: print(f"HAZARD line {x[0]} -> {x[1]}: {x[2]} need {x[3]} have {x[4]}\n    {x[5]}\n    {x[6]}", file=sys.stderr)
    return HEADER + body + FOOTER, len(bad)

if __name__ == '__main__':
    import argparse
    ap = argparse.ArgumentParser()
    ap.add_argument('-o', default=f'cdna_kernels/{NAME}.s')
    ap.add_argument('--diag', action='store_true')
    ap.add_argument('--opt', action='append', default=[])
    g = ap.parse_args()
    opt = {}
    for o in g.opt:
        k, val = o.split('='); opt[k] = int(val)
    text, nbad = generate(g.diag, **opt)
    open(g.o, 'w').write(text)
    print(f'wrote {g.o}: {len(text)} bytes, {nbad} hazards')
```

```python
import sys, struct
from lint import lint

NAME = 'concat_heads__linear_kernel_hedgehog__softmax_full_mha__prompt'
OOB = 0x40000000
QM, QL, KV = 0x0, 0x200000, 0x240000
REC = 2432; HREC = 64 * REC
AOFF = 0x700000
OAM, OAL, OBM, OBL = 0xE00000, 0x1000000, 0x1040000, 0x1240000
KVP = 0x1280000; KVPS = 4608
FL1, FL1A, FL2, FL3, FL4 = 0x13A0000, 0x13A8000, 0x13B0000, 0x13B8000, 0x13C0000
EPOCH = 0x13C8000
STAMPS = 0x1400000
WS_BYTES = 0x1800000
XA = 0
WBLK = 21504
WS0 = 28672
SLOT_A = [WS0 + 4*WBLK, WS0, WS0 + 5*WBLK, WS0 + WBLK]
SLOT_B = [WS0 + 2*WBLK, WS0 + 3*WBLK, WS0 + 4*WBLK, WS0 + 5*WBLK]
CNT = WS0 + 6*WBLK
KVF = CNT + 256
LDS_BYTES = 163840
C_F1, C_F1A, C_KVX, C_F2, C_KVF, C_F3, C_OPA, C_F4, C_BAD, C_W1, C_TOK, C_G, C_GO = [4 * i for i in range(13)]
sBX, sBW, sAX, sAW, sPHI, sAWO, sBWO, sOUT, sDBG, sWS = 4, 8, 12, 16, 20, 24, 28, 32, 36, 40
sWave, sCT, sRT, sH = 44, 45, 46, 47
T0, T1, T2, T3, T4, T5, T6, T7 = range(48, 56)
sB = [56, 57, 58]; sHS = [59, 60, 61]; sTS = [62, 63, 64]; sSc = [65, 66, 67]
sQB, sRot, sFree, sOT, sOC, sTok, sLoc, sXcd = 68, 69, 70, 71, 72, 73, 74, 75
sHA, sRB = sH, sQB
sSpin, sTH, sMG, sTile = 76, 77, 78, 79
SSTAMP = 80
sW4, sImg, sXB, sWB, sLh2, sLt2 = 96, 97, 98, 99, 100, 101
v16, vQL, vCnt, vOne, vZero, vPoll, vTok = 244, 245, 246, 247, 248, 249, 250
vVf = 252
vVS, vLs, vLb0, vLh0, vLt0, vLb1, vSc0, vInit = range(216, 224)
vWO = 224
vX, vW, XAc, WAc, XAr, WAr = 228, 232, 24, 28, 32, 36
ACC = {('a', 0): 96, ('a', 1): 112, ('b', 0): 128, ('b', 1): 144, 'X': 160}
FP = dict(x=176, w=184); FQ = dict(x=196, w=204)

LOG2E = 1.4426950408889634
def f2u(x): return struct.unpack('<I', struct.pack('<f', x))[0]
QSCALE = f2u(18 ** -0.5 * LOG2E)

def v(a, n=1): return f'v{a}' if n == 1 else f'v[{a}:{a+n-1}]'
def s(a, n=1): return f's{a}' if n == 1 else f's[{a}:{a+n-1}]'
def srd(a): return s(a, 4)

class Asm:
    def __init__(self, diag=False):
        self.L = []; self.uid = 0; self.diag = diag; self.lock = False
    def __call__(self, t):
        for x in t.split('\n'):
            x = x.strip()
            if x: self.L.append('    ' + x)
    def label(self, n): self.L.append(n + ':')
    def c(self, t): self.L.append('    ; ' + t)
    def new(self, p):
        self.uid += 1; return f'L_{p}{self.uid}'
    def nop(self, n):
        while n > 0:
            k = min(n, 16); self(f's_nop {k-1}'); n -= k
    def stamp(self, k):
        if self.diag and not self.lock:
            self(f's_memrealtime {s(94,2)}\ns_waitcnt lgkmcnt(0)\ns_mov_b32 {s(SSTAMP+k)}, s94')
    def lstamp(self, sreg, base=0):
        if self.diag:
            self(f's_memrealtime s[94:95]\ns_add_u32 s95, {sreg}, {base}\ns_mov_b32 s93, s95\ns_waitcnt lgkmcnt(0)\nv_writelane_b32 v254, s94, s93'.replace('s_add_u32 s95', 's_add_u32 s93').replace('s_mov_b32 s93, s95\n', '').replace('v_writelane_b32 v254, s94, s93', 's_mov_b32 m0, s93\nv_writelane_b32 v254, s94, m0'))
    def cyc0(self):
        if self.diag: self('s_memtime s[94:95]\ns_waitcnt lgkmcnt(0)\ns_mov_b32 s93, s94')
    def cyc1(self):
        if self.diag: self('s_memtime s[94:95]\ns_waitcnt lgkmcnt(0)\ns_sub_u32 s93, s94, s93')
    def text(self): return '\n'.join(self.L) + '\n'

class VM:
    def __init__(self): self.q = []
    def add(self, tag, n=1): self.q += [tag] * n
    def after(self, tag):
        i = max(k for k, t in enumerate(self.q) if t == tag)
        return len(self.q) - 1 - i

def mfma_s(d, x, y, c=None, kind='16'):
    op = {'16': 'v_mfma_f32_32x32x16_bf16', '8': 'v_mfma_f32_32x32x8_bf16', '2b': 'v_mfma_f32_32x32x4_2b_bf16'}[kind]
    nd = 32 if kind == '2b' else 16; na = 4 if kind == '16' else 2
    return f'{op} {v(d,nd)}, {v(x,na)}, {v(y,na)}, {"0" if c is None else v(c,nd)}'
def mfma(a, *k, **kw): a(mfma_s(*k, **kw))

def cvt8(a, src, dst):
    for i in range(4): a(f'v_cvt_pk_bf16_f32 {v(dst+i)}, {v(src+2*i)}, {v(src+2*i+1)}')

SRDS = {sAX: (48, 2048*1152), sAW: (50, 576*3456), sPHI: (52, 32*648), sAWO: (54, 576*1152), sBX: (56, 2048*1152),
        sBW: (58, 576*3456), sBWO: (60, 576*1152), sOUT: (62, 2048*2304), sDBG: (64, 256), sWS: (66, WS_BYTES)}
def mk_srd(a, r):
    p, nbytes = SRDS[r]
    a(f's_mov_b32 {s(r)}, {s(p)}\ns_mov_b32 {s(r+1)}, {s(p+1)}\ns_mov_b32 {s(r+2)}, {nbytes:#x}\ns_mov_b32 {s(r+3)}, 0x20000')

def spin_tail(a, top, sl=1):
    a(f's_sleep {sl}\ns_sub_u32 {s(sSpin)}, {s(sSpin)}, 1\ns_cbranch_scc0 {top}\ns_endpgm')

def token_issue(a):
    a(f'buffer_load_dwordx2 {v(vTok,2)}, {v(vZero)}, {srd(sDBG)}, 0 offen sc1')
def token_check(a):
    top = a.new('tok'); done = a.new('tokd')
    a.label(top)
    a(f'v_readfirstlane_b32 {s(T0)}, {v(vTok+1)}\nv_readfirstlane_b32 {s(sTok)}, {v(vTok)}\ns_cmp_lg_u32 {s(T0)}, 0\ns_cbranch_scc1 {done}')
    token_issue(a)
    a('s_waitcnt vmcnt(0)')
    spin_tail(a, top)
    a.label(done)

def poll_flags(a, vaddr, vt, preloaded=False, sl=1):
    top = a.new('poll'); done = a.new('polld'); chk = a.new('pollc')
    if preloaded: a(f's_branch {chk}')
    a.label(top)
    a(f'buffer_load_dword {v(vt)}, {v(vaddr)}, {srd(sWS)}, 0 offen sc1\ns_waitcnt vmcnt(0)')
    a.label(chk)
    a(f'v_cmp_ne_u32 vcc, {s(sTok)}, {v(vt)}\ns_cbranch_vccz {done}')
    spin_tail(a, top, sl)
    a.label(done)

def last_signals(a, vt, ctr, n, sflag):
    skip = a.new('nsig')
    a(f's_mov_b64 exec, 1\nds_add_rtn_u32 {v(vt)}, {v(vCnt)}, {v(vOne)} offset:{ctr}\ns_waitcnt lgkmcnt(0)')
    a(f'v_readfirstlane_b32 {s(T0)}, {v(vt)}\nv_mov_b32 {v(vt)}, {s(sflag)}\nv_mov_b32 {v(vt+1)}, {s(sTok)}\ns_cmp_lg_u32 {s(T0)}, {n-1}\ns_cbranch_scc1 {skip}')
    a(f'buffer_store_dword {v(vt+1)}, {v(vt)}, {srd(sWS)}, 0 offen sc1')
    a.label(skip)
    a('s_mov_b64 exec, -1')

def lds_arrive(a, ctr):
    a(f's_mov_b64 exec, 1\nds_add_u32 {v(vCnt)}, {v(vOne)} offset:{ctr}\ns_mov_b64 exec, -1')

def lds_wait(a, vt, ctr, n, sl=2):
    top = a.new('lw'); done = a.new('lwd')
    a.label(top)
    a(f'ds_read_b32 {v(vt)}, {v(vCnt)} offset:{ctr}\ns_waitcnt lgkmcnt(0)\nv_readfirstlane_b32 {s(T0)}, {v(vt)}\ns_cmp_ge_u32 {s(T0)}, {n}\ns_cbranch_scc1 {done}')
    spin_tail(a, top, sl)
    a.label(done)

def flag_addr(a, dst, shi, slo, sh, base):
    a(f's_lshl_b32 {s(dst)}, {s(shi)}, {sh}\ns_add_u32 {s(dst)}, {s(dst)}, {s(slo)}\ns_lshl_b32 {s(dst)}, {s(dst)}, 7\ns_add_u32 {s(dst)}, {s(dst)}, {base:#x}')

def issue_chunk(a, j):
    slot = (j % 4) * 32768; c = j % 9
    X, W = (sBX, sBW) if j < 9 else (sAX, sAW)
    nx = ' nt' if OPT.get('nt', 0) & 1 else ''; nw = ' nt' if OPT.get('nt', 0) & 2 else ''
    if OPT.get('rot', 0):
        a(f'''s_add_u32 vcc_lo, {s(sRot)}, {c}
        s_cmp_ge_u32 vcc_lo, 9
        s_cselect_b32 vcc_hi, 9, 0
        s_sub_u32 vcc_lo, vcc_lo, vcc_hi
        s_mul_i32 vcc_hi, vcc_lo, {64*3456}
        s_add_u32 vcc_hi, vcc_hi, {s(sWB)}
        s_lshl_b32 vcc_lo, vcc_lo, 7
        s_add_u32 vcc_lo, vcc_lo, {s(sXB)}
        s_lshl_b32 s3, {s(sW4)}, 12
        s_add_u32 m0, s3, {slot}
        s_nop 0''')
    else:
        a(f's_lshl_b32 s3, {s(sW4)}, 12\ns_add_u32 m0, s3, {slot}\ns_add_u32 vcc_lo, {s(sXB)}, {128*c}\ns_add_u32 vcc_hi, {s(sWB)}, {64*3456*c}')
    for i in range(4): a(f'buffer_load_dwordx4 {v(vX+i)}, {srd(X)}, vcc_lo offen offset:{1024*i}{nx} lds')
    a(f's_add_u32 m0, s3, {slot + 16384}\ns_nop 0')
    for i in range(4): a(f'buffer_load_dwordx4 {v(vW+i)}, {srd(W)}, vcc_hi offen offset:{1024*i}{nw} lds')

def su_loader(a):
    a.c('loader lane offsets: x rows (xor-swizzled 16-byte pieces), w rows (12 main pieces, 3 leftover pieces, 1 zero piece)')
    a(f'''v_lshrrev_b32 v1, 3, v0
    v_and_b32 v2, 7, v0
    v_lshrrev_b32 v3, 1, v1
    v_xor_b32 v2, v2, v3
    v_mul_u32_u24 v1, 1152, v1
    v_lshl_add_u32 {v(vX)}, v2, 4, v1
    v_xor_b32 v2, 4, v2
    v_lshl_add_u32 {v(vX+1)}, v2, 4, v1
    v_add_u32 {v(vX+1)}, {8*1152-1024}, {v(vX+1)}
    v_add_u32 {v(vX+2)}, {2*(8*1152-1024)}, {v(vX)}
    v_add_u32 {v(vX+3)}, {2*(8*1152-1024)}, {v(vX+1)}
    v_lshrrev_b32 v1, 4, v0
    v_lshlrev_b32 v2, 2, v1
    v_sub_u32 v2, v0, v2
    v_and_b32 v2, 15, v2
    v_and_b32 v3, 3, v2
    v_lshrrev_b32 v4, 2, v2
    v_mul_u32_u24 v5, 72, v4
    v_lshl_add_u32 v5, v3, 4, v5
    v_lshrrev_b32 v6, 1, v3
    v_lshl_add_u32 v5, v6, 3, v5
    v_mul_u32_u24 v6, 72, v3
    v_add_u32 v6, 32, v6
    v_cmp_eq_u32 vcc, 3, v4
    v_mul_u32_u24 v1, 3456, v1
    v_mov_b32 v7, {OOB:#x}
    v_cndmask_b32 v5, v5, v6, vcc
    v_cmp_eq_u32 vcc, 15, v2
    v_add_u32 v5, v5, v1
    s_lshl_b32 {s(sXB)}, {s(sRT)}, 2
    v_cndmask_b32 {v(vW)}, v5, v7, vcc''')
    for i in range(1, 4): a(f'v_add_u32 {v(vW+i)}, {i*(4*3456-1024)}, {v(vW)}')
    a(f'''s_add_u32 {s(sXB)}, {s(sXB)}, {s(sW4)}
    s_mul_i32 {s(sXB)}, {s(sXB)}, {32*1152}
    s_mul_i32 {s(sWB)}, {s(sW4)}, {16*3456}
    s_mul_i32 s3, {s(sCT)}, 216
    s_add_u32 {s(sWB)}, {s(sWB)}, s3''')

def su_ids2(a):
    a(f'''s_lshl_b32 s3, {s(sXcd)}, 2
    s_and_b32 {s(sH)}, {s(sLoc)}, 3
    s_add_u32 {s(sH)}, {s(sH)}, s3
    s_lshr_b32 {s(sQB)}, {s(sLoc)}, 2
    s_lshr_b32 {s(sOT)}, {s(sLoc)}, 3
    s_add_u32 {s(sOT)}, {s(sOT)}, s3
    s_and_b32 {s(sOC)}, {s(sLoc)}, 7
    s_mov_b32 {s(sSpin)}, 0x40000
    s_and_b32 {s(sTH)}, {s(sWave)}, 1
    s_lshr_b32 {s(sMG)}, {s(sW4)}, 1
    s_cmp_lt_u32 {s(sWave)}, 4
    s_cselect_b32 {s(sImg)}, 0, {AOFF:#x}
    v_mov_b32 {v(vZero)}, 0
    v_mov_b32 {v(vCnt)}, {CNT}
    v_mov_b32 {v(vOne)}, 1''')

def su_token(a, part):
    lb = a.new('notok')
    a(f's_or_b32 s3, s2, {s(sWave)}\ns_cmp_lg_u32 s3, 0\ns_cbranch_scc1 {lb}\ns_mov_b32 {s(T0)}, {EPOCH:#x}')
    if part == 0:
        a(f'buffer_load_dword v8, {v(vZero)}, {srd(sWS)}, {s(T0)} offen sc1')
    else:
        a(f'''s_mov_b32 {s(T1)}, 1664525
        s_waitcnt vmcnt(0)
        v_mul_lo_u32 v6, v8, {s(T1)}
        v_add_u32 v6, 0x3c6ef35f, v6
        v_mov_b32 v7, 1
        s_mov_b64 exec, 1
        buffer_store_dwordx2 v[6:7], {v(vZero)}, {srd(sDBG)}, 0 offen sc1
        buffer_store_dword v6, {v(vZero)}, {srd(sWS)}, {s(T0)} offen sc1
        s_mov_b64 exec, -1''')
    a.label(lb)
    if part == 0:
        a(f's_cmp_lg_u32 {s(sWave)}, 1\ns_cbranch_scc1 L_nocnt\nv_lshlrev_b32 v1, 2, v0\nv_add_u32 v1, {CNT}, v1\nds_write_b32 v1, {v(vZero)}')
        a.label('L_nocnt')

def su_gaddr(a):
    lb = a.new('mg0')
    a.c('gemm fragment addresses')
    a(f'''v_and_b32 v1, 31, v0
    v_lshrrev_b32 v2, 5, v0
    v_bfe_u32 v3, v0, 1, 3
    v_xor_b32 v3, v3, v2
    s_lshl_b32 s3, {s(sTH)}, 13
    v_lshl_add_u32 v4, v1, 7, s3''')
    for k in range(4):
        a(f'v_xor_b32 v5, {2*k}, v3\nv_lshl_add_u32 {v(XAc+k)}, v5, 4, v4')
    a(f'''v_bfe_u32 v3, v0, 2, 2
    v_and_b32 v4, 3, v0
    v_bfe_u32 v5, v0, 4, 1
    v_lshl_add_u32 v4, v5, 2, v4
    v_lshl_add_u32 v5, v2, 3, v3
    v_lshlrev_b32 v5, 8, v5
    v_add_u32 v5, 16384, v5
    v_lshrrev_b32 v6, 1, v4
    v_lshl_add_u32 v6, v3, 2, v6
    v_and_b32 v7, 1, v4
    v_lshl_add_u32 v7, v7, 3, v5
    s_lshl_b32 s3, {s(sMG)}, 3
    v_add_u32 {v(WAc)}, s3, v6
    v_and_b32 {v(WAc)}, 15, {v(WAc)}
    v_lshl_add_u32 {v(WAc)}, {v(WAc)}, 4, v7
    v_add_u32 {v(WAc+1)}, 4, v6
    v_and_b32 {v(WAc+1)}, 15, {v(WAc+1)}
    v_lshl_add_u32 {v(WAc+1)}, {v(WAc+1)}, 4, v7
    v_min_u32 v6, 3, v4
    v_lshl_add_u32 v6, v3, 2, v6
    v_add_u32 v6, 12, v6
    v_and_b32 v6, 15, v6
    v_lshl_add_u32 {v(WAc+2)}, v6, 4, v5
    s_cmp_eq_u32 {s(sMG)}, 0
    s_cbranch_scc1 {lb}
    v_mov_b32 {v(WAc+1)}, {v(WAc+2)}''')
    a.label(lb)

def su_epi(a, part):
    if part == 0: su_epi0(a)
    else: su_epi1(a)

def su_epi0(a):
    a.c('epilogue parameters')
    a('v_and_b32 v1, 31, v0\nv_lshrrev_b32 v2, 5, v0')
    a(f'''s_lshl_b32 {s(sTile)}, {s(sRT)}, 2
    s_lshl_b32 s3, {s(sTH)}, 1
    s_add_u32 {s(sTile)}, {s(sTile)}, s3
    s_cmp_lt_u32 {s(sWave)}, 4
    s_cselect_b32 s3, {QSCALE:#x}, 1.0''')
    for p in range(3):
        a(f'''s_mul_i32 {s(T0)}, {s(sCT)}, 6
        s_add_u32 {s(T0)}, {s(T0)}, {2*p}
        s_and_b32 {s(T1)}, {s(T0)}, 31
        s_mov_b32 {s(T6)}, {HREC}
        s_movk_i32 {s(T7)}, {REC}
        s_cmp_lt_u32 {s(T0)}, 32
        s_cselect_b32 {s(sHS[p])}, 0x10000, {s(T6)}
        s_cselect_b32 {s(sTS[p])}, 0x400, {s(T7)}
        s_cselect_b32 {s(T2)}, {QM}, {KV:#x}
        s_cselect_b32 {s(sSc[p])}, s3, 1.0
        s_add_u32 {s(T2)}, {s(T2)}, {s(sImg)}
        s_mul_i32 {s(T3)}, {s(T1)}, {s(sHS[p])}
        s_add_u32 {s(T2)}, {s(T2)}, {s(T3)}
        s_mul_i32 {s(T3)}, {s(sTile)}, {s(sTS[p])}
        s_add_u32 {s(sB[p])}, {s(T2)}, {s(T3)}
        s_lshl_b32 {s(T4)}, {s(T1)}, 13
        s_lshl_b32 {s(T5)}, {s(sTile)}, 7
        s_add_u32 {s(T4)}, {s(T4)}, {s(T5)}
        s_add_u32 {s(T4)}, {s(T4)}, {QL:#x}
        s_add_u32 {s(T4)}, {s(T4)}, {s(sImg)}
        s_add_u32 {s(T5)}, {s(sB[p])}, 2304
        s_cmp_lt_u32 {s(T0)}, 32
        s_cselect_b32 {s(T4)}, {s(T4)}, {s(T5)}
        s_cselect_b32 {s(T5)}, 0x2000, {s(T6)}
        s_cselect_b32 {s(T6)}, 0x80, {s(T7)}
        s_cmp_lt_u32 {s(T0)}, 64
        s_cselect_b32 {s(T4)}, {s(T4)}, {OOB:#x}''')
        if p == 0:
            a(f'v_mov_b32 {v(vLb0)}, {s(T4)}\nv_mov_b32 {v(vLh0)}, {s(T5)}\nv_mov_b32 {v(vLt0)}, {s(T6)}\nv_mov_b32 {v(vSc0)}, {s(sSc[0])}')
        elif p == 1:
            a(f'''s_mov_b32 exec_lo, 0
            v_mov_b32 {v(vLb0)}, {s(T4)}
            v_mov_b32 {v(vLh0)}, {s(T5)}
            v_mov_b32 {v(vLt0)}, {s(T6)}
            v_mov_b32 {v(vSc0)}, {s(sSc[1])}
            v_mov_b32 {v(vLb1)}, {OOB:#x}''')
        else:
            a(f's_mov_b32 exec_lo, -1\ns_mov_b32 exec_hi, 0\nv_mov_b32 {v(vLb1)}, {s(T4)}\ns_mov_b64 exec, -1')
            a(f's_mov_b32 {s(sLh2)}, {s(T5)}\ns_mov_b32 {s(sLt2)}, {s(T6)}')

def su_epi1(a):
    a('v_and_b32 v1, 31, v0\nv_lshrrev_b32 v2, 5, v0')
    a(f'''v_lshl_add_u32 {v(vLb0)}, v1, 2, {v(vLb0)}
    v_lshl_add_u32 {v(vLb1)}, v1, 2, {v(vLb1)}
    v_lshlrev_b32 {v(v16)}, 4, v0
    v_lshlrev_b32 {v(vQL)}, 2, v0
    v_lshrrev_b32 v3, 4, v1
    v_mul_u32_u24 v3, {HREC}, v3
    v_and_b32 v4, 15, v0
    v_lshlrev_b32 v4, 4, v4
    v_lshl_add_u32 v4, v2, 8, v4
    v_add_u32 {v(vVS)}, v3, v4
    v_lshrrev_b32 v3, 1, v1
    v_and_b32 v4, 1, v1
    v_subrev_u32 v5, 12, v1
    v_cmp_le_u32 vcc, 12, v1
    v_mov_b32 v6, 2
    v_mov_b32 v7, 3
    v_cndmask_b32 v3, v3, v5, vcc
    v_cndmask_b32 v4, v4, v6, vcc
    v_subrev_u32 v5, 18, v1
    v_cmp_le_u32 vcc, 18, v1
    s_mul_i32 {s(T0)}, {s(sCT)}, 6
    s_sub_u32 {s(T0)}, {s(T0)}, 64
    v_cndmask_b32 v3, v3, v5, vcc
    v_cndmask_b32 v4, v4, v7, vcc
    v_add_u32 v3, {s(T0)}, v3
    v_mul_u32_u24 v5, {HREC}, v3
    v_lshl_add_u32 v5, v4, 4, v5
    v_lshl_add_u32 v5, v2, 6, v5
    v_mov_b32 v6, {OOB:#x}
    v_cmp_gt_u32 vcc, 32, v3
    v_cmp_gt_u32 {s(T2,2)}, 24, v1
    s_and_b64 vcc, vcc, {s(T2,2)}
    v_mov_b32 v7, 1.0
    s_nop 0
    v_cndmask_b32 {v(vLs)}, v6, v5, vcc
    v_cmp_eq_u32 vcc, 2, v4
    s_cmp_ge_u32 {s(sCT)}, 10
    s_cselect_b32 {s(T0)}, {s(sMG)}, 0
    s_cmp_lg_u32 {s(T0)}, 0
    s_cselect_b64 vcc, vcc, 0
    v_cndmask_b32 {v(vInit)}, {v(vZero)}, v7, vcc''')

def su_vgat(a):
    a.c('V fragment gather offsets inside a key-tile record')
    a('v_and_b32 v1, 31, v0\nv_lshrrev_b32 v2, 5, v0')
    a(f'''v_lshlrev_b32 v3, 4, v1
    v_lshl_add_u32 v3, v2, 8, v3
    v_add_u32 v3, 1024, v3
    v_subrev_u32 v4, 16, v1
    v_cmp_eq_u32 vcc, 22, v1
    v_mov_b32 v5, 2
    v_mov_b32 v7, {OOB:#x}
    v_cndmask_b32 v4, v4, v5, vcc
    v_lshlrev_b32 v5, 4, v4
    v_lshl_add_u32 v5, v2, 6, v5
    v_add_u32 v5, 2048, v5
    v_cmp_gt_u32 vcc, 3, v4
    v_add_u32 v6, 128, v5
    s_nop 0
    v_cndmask_b32 v5, v7, v5, vcc
    v_cndmask_b32 v6, v7, v6, vcc
    v_cmp_gt_u32 vcc, 16, v1
    v_add_u32 v4, 512, v3
    s_nop 0
    v_cndmask_b32 {v(vVf)}, v5, v3, vcc
    v_cndmask_b32 {v(vVf+1)}, v6, v4, vcc''')

def su_acc(a, part):
    if part == 0:
        for r in list(range(96, 128)) + list(range(160, 176)) + list(range(196, 216)): a(f'v_mov_b32 {v(r)}, 0')
    else:
        for r in range(128, 160): a(f'v_mov_b32 {v(r)}, {v(vInit)}')

def prologue(a, opt):
    a(f's_cmp_ge_u32 s2, 256\ns_cbranch_scc1 L_end')
    a(f's_load_dwordx16 s[48:63], s[0:1], 0\ns_load_dwordx4 s[64:67], s[0:1], 64')
    if a.diag or opt.get('padto'): a(f's_memrealtime {s(SSTAMP,2)}')
    a(f'v_lshrrev_b32 v1, 6, v0\nv_and_b32 v0, 63, v0\nv_readfirstlane_b32 {s(sWave)}, v1')
    a(f'''s_and_b32 {s(sXcd)}, s2, 7
    s_lshr_b32 {s(sLoc)}, s2, 3
    s_and_b32 s3, {s(sXcd)}, 1
    s_lshl_b32 s3, s3, 3
    s_and_b32 {s(sCT)}, {s(sLoc)}, 7
    s_add_u32 {s(sCT)}, {s(sCT)}, s3
    s_lshr_b32 s3, {s(sXcd)}, 1
    s_lshl_b32 s3, s3, 2
    s_lshr_b32 {s(sRT)}, {s(sLoc)}, 3
    s_add_u32 {s(sRT)}, {s(sRT)}, s3
    s_and_b32 {s(sW4)}, {s(sWave)}, 3''')
    r = opt.get('rot', 0)
    if r == 1:
        a(f's_and_b32 {s(sRot)}, {s(sLoc)}, 7\ns_lshr_b32 s3, {s(sLoc)}, 3\ns_lshl_b32 s3, s3, 1\ns_add_u32 {s(sRot)}, {s(sRot)}, s3')
    elif r == 2:
        a(f's_lshr_b32 s3, {s(sLoc)}, 3\ns_add_u32 s3, s3, {s(sLoc)}\ns_and_b32 s3, s3, 3\ns_min_u32 s3, s3, 2\ns_mul_i32 {s(sRot)}, s3, 3')
    elif r == 3:
        a(f's_lshr_b32 s3, {s(sLoc)}, 3\ns_add_u32 s3, s3, {s(sLoc)}\ns_and_b32 s3, s3, 1\ns_mul_i32 {s(sRot)}, s3, 4')
    elif r == 4:
        a(f's_lshr_b32 s3, {s(sLoc)}, 3\ns_add_u32 s3, s3, {s(sLoc)}\ns_and_b32 {s(sRot)}, s3, 3')
    if r: a(f's_cmp_ge_u32 {s(sRot)}, 9\ns_cselect_b32 s3, 9, 0\ns_sub_u32 {s(sRot)}, {s(sRot)}, s3')
    su_ids2(a)
    a(f's_cmp_lt_u32 {s(sWave)}, 4\ns_cbranch_scc1 L_pset')
    a.c('================= waves 4-7: load the B tile =================')
    su_loader(a)
    a('s_waitcnt lgkmcnt(0)')
    for r in (sBX, sBW): mk_srd(a, r)
    vm = VM()
    for j in range(2): issue_chunk(a, j); vm.add(j, 8)
    for r in (sAX, sAW, sPHI, sAWO, sBWO, sOUT, sDBG, sWS): mk_srd(a, r)
    LA = opt.get('la', 3)
    su_epi(a, 0); su_acc(a, 0)
    a.stamp(1)
    for j in range(9):
        a(f's_waitcnt vmcnt({vm.after(j)})')
        if opt.get('p1') == 1: a.stamp(3 + j)
        a('s_barrier')
        if opt.get('p1') == 2: a.stamp(3 + j)
        if opt.get('p1') == 2 and j == 0: a.cyc0()
        if opt.get('p1') == 2 and j == 8: a.cyc1()
        if j == 1: su_gaddr(a)
        if j == 2: su_epi(a, 1)
        if j == 3: su_vgat(a)
        if j == 4: su_acc(a, 1)
        sw = opt.get('sw', 5)
        for c in ([j + 2] if j < sw else [j + 2, j + 3] if j == sw else [j + 3]):
            issue_chunk(a, c); vm.add(c, 8)
            if c == 9: token_issue(a); vm.add('tok')
    a(f's_waitcnt vmcnt({vm.after("tok")})')
    token_check(a)
    a(f'ds_write_b32 {v(vCnt)}, {v(vTok)} offset:{C_TOK}\ns_mov_b32 {s(T6)}, {(9 % 4) * 32768}\ns_waitcnt lgkmcnt(0)')
    a(f's_setprio {opt.get("prio", 1)}')
    a.stamp(2)
    if opt.get('p1'): a.lock = True
    a('s_branch L_gemm')
    a.label('L_pset')
    a.c('================= waves 0-3: set-up =================')
    su_gaddr(a); su_loader(a); su_vgat(a); su_acc(a, 0)
    a('s_waitcnt lgkmcnt(0)')
    for r in (sWS, sDBG, sAX, sAW, sOUT): mk_srd(a, r)
    su_token(a, 0); su_epi(a, 0); su_epi(a, 1); su_acc(a, 1); su_token(a, 1)
    a(f's_waitcnt lgkmcnt(0)\ns_mov_b32 {s(T6)}, 0')
    a.stamp(1)
    if a.diag: a('s_mov_b32 s82, 0')

def gemm(a, opt):
    sSlot, sIt = T6, T7
    a.label('L_gemm')
    a.c('================= qkv gemm (waves 0-3: B, waves 4-7: A) =================')
    a(f'''s_mov_b32 {s(sIt)}, 9
    s_cmp_lt_u32 {s(sCT)}, 10
    s_cbranch_scc1 L_gNN
    s_cmp_gt_u32 {s(sCT)}, 10
    s_cbranch_scc1 L_gSS
    s_cmp_eq_u32 {s(sMG)}, 0
    s_cbranch_scc1 L_gNN1
    s_branch L_gSS1''')
    def mid():
        lb = a.new('mid')
        a(f's_cmp_ge_u32 {s(sWave)}, 4\ns_cbranch_scc1 {lb}\ns_barrier')
        a.label(lb)
    def loop(name, o, extra):
        nw = 3 if extra == 'c' else 2
        def reads(F, k):
            rd = lambda w, j: f'ds_read_b64_tr_b16 {v(F["w"]+4*w+2*j,2)}, {v(WAr+w)} offset:{4096*k+1024*j}'
            rx = lambda tt: f'ds_read_b128 {v(F["x"]+4*tt,4)}, {v(XAr+k)} offset:{4096*tt}'
            r = [rd(0, 0), rd(0, 1), rx(0), rx(1), rd(1, 0), rd(1, 1)]
            if nw == 3: r += [rd(2, 0), rd(2, 1)]
            if opt.get('nord') == 1: r = ['s_nop 0'] * len(r)
            if opt.get('nord') == 2: r = [x if 'tr' in x else 's_nop 0' for x in r]
            if opt.get('nord') == 3: r = [x if 'tr' not in x else 's_nop 0' for x in r]
            return r
        def mms(F):
            m = []
            for w, nm in enumerate('ab'):
                for tt in range(2):
                    x, wf = F['x']+4*tt, F['w']+4*w
                    m.append(mfma_s(ACC[(nm, tt)], wf, x, ACC[(nm, tt)]) if o == 'N' else mfma_s(ACC[(nm, tt)], x, wf, ACC[(nm, tt)]))
            if extra == 'c': m.append(mfma_s(ACC['X'], F['w']+8, F['x'], ACC['X']))
            if extra == 'b': m.append(mfma_s(ACC['X'], F['w']+4, F['x']+4, ACC['X']))
            if opt.get('m16'):
                import re
                def two(x):
                    g = re.match(r'\S+ v\[(\d+):\d+\], (\S+), (\S+), ', x); d = int(g.group(1))
                    return '\n'.join(f'v_mfma_f32_16x16x32_bf16 {v(d+4*i,4)}, {g.group(2)}, {g.group(3)}, {v(d+4*i,4)}' for i in range(2))
                m = [two(x) for x in m]
            if opt.get('nomm'): m = ['s_nop 0'] * len(m)
            return m
        nr = 2 + 2*nw
        def kstep(Fm, Fr, k, x1='', x3='', x0='', x2=''):
            m = mms(Fm); r = reads(Fr, k)
            a(f's_waitcnt lgkmcnt({nr-3})'); a(m[0]); a(r[0]); a(r[1]); a(x0)
            a(f's_waitcnt lgkmcnt({nr-2})'); a(m[1]); a(r[2]); a(r[3]); a(x1)
            a(f's_waitcnt lgkmcnt({nr-2})'); a(m[2]); a(r[4]); a(r[5]); a(x2)
            a(m[3]); a(x3)
            if nw == 3: a('s_waitcnt lgkmcnt(6)'); a(m[4]); a(r[6]); a(r[7])
            elif len(m) == 5: a(m[4])
        def addr():
            for k in range(4): a(f'v_add_u32 {v(XAr+k)}, {s(sSlot)}, {v(XAc+k)}')
            for w in range(nw): a(f'v_add_u32 {v(WAr+w)}, {s(sSlot)}, {v(WAc+w)}')
        m = mms(FQ); r = reads(FP, 0)
        a.label(f'L_g{name}')
        addr()
        a(f's_add_u32 {s(sSlot)}, {s(sSlot)}, 0x8000\ns_and_b32 {s(sSlot)}, {s(sSlot)}, 0x1ffff\ns_barrier')
        a(r[0]); a(r[1]); a(r[2]); a(m[1]); a(r[3]); a(r[4]); a(r[5]); a(m[2])
        if nw == 3: a(r[6]); a(r[7])
        for x in m[3:]: a(x)
        kstep(FP, FQ, 1); kstep(FQ, FP, 2); kstep(FP, FQ, 3)
        a(f's_waitcnt lgkmcnt({nr-3})'); a(m[0])
        w8 = a.new('w8')
        a(f's_cmp_eq_u32 {s(sIt)}, 9\ns_cbranch_scc1 {w8}\ns_waitcnt vmcnt(0)')
        a.label(w8)
        a(f's_sub_u32 {s(sIt)}, {s(sIt)}, 1\ns_cmp_lg_u32 {s(sIt)}, 0\ns_waitcnt vmcnt(8) lgkmcnt(0)\ns_cbranch_scc1 L_g{name}')
        a(f's_cmp_ge_u32 {s(sWave)}, 4\ns_cbranch_scc1 L_gf{name}\ns_barrier\ns_setprio 2\nds_read_b32 {v(vTok)}, {v(vCnt)} offset:{C_TOK}')
        a.label(f'L_gf{name}')
        for x in m[1:]: a(x)
        a.stamp(3)
    def epi_nmain(nm, p):
        sc = T2 if p != 1 else T4
        for tt in range(2):
            r = ACC[(nm, tt)]
            for hb in range(2):
                for i in range(4): a(f'v_pk_mul_f32 {v(r+8*hb+2*i,2)}, {v(r+8*hb+2*i,2)}, {s(sc,2)} op_sel_hi:[1,0]')
                cvt8(a, r + 8*hb, r + 8*hb)
                if (tt, hb) == (0, 0): so = sB[p]
                elif (tt, hb) == (0, 1): a(f's_add_u32 {s(T0)}, {s(sB[p])}, {s(sHS[p])}'); so = T0
                elif (tt, hb) == (1, 0): a(f's_add_u32 {s(T1)}, {s(sB[p])}, {s(sTS[p])}'); so = T1
                else: a(f's_add_u32 {s(T0)}, {s(T1)}, {s(sHS[p])}'); so = T0
                a(f'buffer_store_dwordx4 {v(r+8*hb,4)}, {v(v16)}, {srd(sWS)}, {s(so)} offen sc1')
    def epi_smain(nm, p):
        for tt in range(2):
            r = ACC[(nm, tt)]
            a(f's_add_u32 {s(T0)}, {s(sB[p])}, {1024 + REC*tt}')
            for f in range(2):
                cvt8(a, r + 8*f, r + 8*f)
                a(f'buffer_store_dwordx4 {v(r+8*f,4)}, {v(vVS)}, {srd(sWS)}, {s(T0)} offen offset:{512*f} sc1')
    def epi_ln(r, tt):
        for i in range(4): a(f'v_mul_f32 {v(r+i)}, {v(vSc0)}, {v(r+i)}')
        for i in range(4, 8): a(f'v_mul_f32 {v(r+i)}, {s(sSc[2])}, {v(r+i)}')
        cvt8(a, r, r)
        if tt: a(f'v_add_u32 v1, {v(vLb0)}, {v(vLt0)}\nv_add_u32 v3, {s(sLt2)}, {v(vLb1)}')
        else: a(f'v_mov_b32 v1, {v(vLb0)}\nv_mov_b32 v3, {v(vLb1)}')
        a(f'''v_add_u32 v2, v1, {v(vLh0)}
        v_add_u32 v4, {s(sLh2)}, v3
        buffer_store_dword {v(r)}, v1, {srd(sWS)}, 0 offen sc1
        buffer_store_dword {v(r+1)}, v2, {srd(sWS)}, 0 offen sc1
        buffer_store_dword {v(r+2)}, v3, {srd(sWS)}, 0 offen sc1
        buffer_store_dword {v(r+3)}, v4, {srd(sWS)}, 0 offen sc1''')
    def epi_ls():
        for tt in range(2):
            r = ACC[('b', tt)]
            a(f's_add_u32 {s(T0)}, {s(sTile)}, {tt}\ns_mul_i32 {s(T0)}, {s(T0)}, {REC}\ns_add_u32 {s(T0)}, {s(T0)}, {KV + 2048:#x}\ns_add_u32 {s(T0)}, {s(T0)}, {s(sImg)}')
            for f in range(2):
                cvt8(a, r + 8*f, r + 8*f)
                a(f'buffer_store_dwordx4 {v(r+8*f,4)}, {v(vLs)}, {srd(sWS)}, {s(T0)} offen offset:{128*f} sc1')
    def scale_prep(ps):
        for p in ps: a(f's_mov_b32 {s(T2 if p != 1 else T4)}, {s(sSc[p])}')
    loop('NN', 'N', None)
    a(f's_cmp_eq_u32 {s(sMG)}, 0\ns_cbranch_scc0 L_eV2')
    scale_prep([0, 1]); a.nop(2); epi_nmain('a', 0); mid(); epi_nmain('b', 1); a('s_branch L_epi_done')
    a.label('L_eV2')
    scale_prep([2]); a.nop(3); epi_nmain('a', 2); mid(); epi_ln(ACC[('b', 0)], 0); epi_ln(ACC[('b', 1)], 1); a('s_branch L_epi_done')
    loop('SS', 'S', None)
    a(f's_cmp_eq_u32 {s(sMG)}, 0\ns_cbranch_scc0 L_eV3')
    a.nop(3); epi_smain('a', 0); mid(); epi_smain('b', 1); a('s_branch L_epi_done')
    a.label('L_eV3')
    a.nop(3); epi_smain('a', 2); mid(); epi_ls(); a('s_branch L_epi_done')
    loop('NN1', 'N', 'c')
    scale_prep([0, 1]); a.nop(3); epi_nmain('a', 0); mid(); epi_nmain('b', 1); epi_ln(ACC['X'], 0); a('s_branch L_epi_done')
    loop('SS1', 'S', 'b')
    a.nop(4); epi_smain('a', 2); mid(); epi_ls(); epi_ln(ACC['X'], 1)
    a.label('L_epi_done')
    a.stamp(4)
    a(f's_cmp_ge_u32 {s(sWave)}, 4\ns_cbranch_scc1 L_achain')

def op_addr(a, vm, vm2, vl, vl2, vt, skq_bytes):
    t0, t1, t2, t3, t4 = vt, vt+1, vt+2, vt+3, vt+4
    a(f'''v_bfe_u32 {v(t0)}, v0, 2, 2
    v_lshrrev_b32 {v(t1)}, 5, v0
    v_and_b32 {v(t2)}, 3, v0
    v_bfe_u32 {v(t3)}, v0, 4, 1
    v_lshl_add_u32 {v(t2)}, {v(t3)}, 2, {v(t2)}
    v_lshl_add_u32 {v(t3)}, {v(t1)}, 2, {v(t0)}
    v_mul_u32_u24 {v(t3)}, 144, {v(t3)}
    v_add_u32 {v(t3)}, {s(skq_bytes)}, {v(t3)}
    v_lshl_add_u32 {v(vm)}, {v(t2)}, 3, {v(t3)}
    v_and_b32 {v(t4)}, 1, v0
    v_lshlrev_b32 {v(t4)}, 3, {v(t4)}
    v_add_u32 {v(t4)}, 128, {v(t4)}
    v_add_u32 {v(vm2)}, {v(t4)}, {v(t3)}
    v_mul_u32_u24 {v(t1)}, 72, {v(t1)}
    v_and_b32 {v(t3)}, 2, {v(t0)}
    v_and_b32 {v(t0)}, 1, {v(t0)}
    v_add3_u32 {v(t1)}, {v(t1)}, {v(t3)}, {v(t0)}
    v_add_u32 {v(t1)}, 16, {v(t1)}
    v_mul_u32_u24 {v(t1)}, 144, {v(t1)}
    v_add_u32 {v(t1)}, {s(skq_bytes)}, {v(t1)}
    v_lshl_add_u32 {v(vl)}, {v(t2)}, 3, {v(t1)}
    v_add_u32 {v(vl2)}, {v(t4)}, {v(t1)}''')

def op_w_reads(W, vm, vm2, vl, vl2, st):
    r = []
    for T in range(3):
        for j in range(2):
            if st < 8:
                off = (18*st + 8*j + (2 if st & 1 else 0)) * 144; base = vm if T < 2 else vm2
            else:
                off = 36*j*144; base = vl if T < 2 else vl2
            r.append(f'ds_read_b64_tr_b16 {v(W + 12*st + 4*T + 2*j, 2)}, {v(base)} offset:{off + (64 if T == 1 else 0)}')
    return '\n'.join(r)
def op_read_w(a, W, vm, vm2, vl, vl2):
    for st in range(9): a(op_w_reads(W, vm, vm2, vl, vl2, st))

def op_load_o(a, O, vo16, vol, sM, sM2, sL, thr=False):
    for i in range(8):
        a(f'buffer_load_dwordx4 {v(O+4*i,4)}, {v(vo16)}, {srd(sWS)}, {s(sM if i < 4 else sM2)} offen offset:{1024*(i&3)} sc1')
        if thr and i % 4 == 3: a('s_waitcnt vmcnt(0)')
    for i in range(4):
        a(f'buffer_load_dword {v(O+32+i)}, {v(vol)}, {srd(sWS)}, {s(sL)} offen offset:{128*i} sc1')

def op_mfma(a, AC, W, O, first):
    for st in range(9):
        a(f's_waitcnt vmcnt({11 - st if st < 8 else 0})')
        for T in range(3):
            mfma(a, AC + 16*T, W + 12*st + 4*T, O + 4*st, None if (first and st == 0) else AC + 16*T)

def issue_blk(a, sr, kq, slot):
    a(f's_mul_i32 {s(T0)}, {s(sOC)}, 144\ns_add_u32 {s(T0)}, {s(T0)}, {144*kq*1152}\ns_lshl_b32 {s(T1)}, {s(sW4)}, 10')
    for P in range(3):
        skip = a.new('r8')
        if P == 2: a(f's_cmp_ge_u32 {s(sW4)}, 3\ns_cbranch_scc1 {skip}')
        a(f's_add_u32 m0, {s(T1)}, {slot + 9*1024*P}\ns_nop 0\nbuffer_load_dwordx4 {v(vWO)}, {srd(sr)}, {s(T0)} offen lds')
        if P < 2:
            a(f'''s_add_u32 m0, {s(T1)}, {slot + 9*1024*P + 4096}
            s_cmp_lg_u32 {s(sW4)}, {2*(kq & 1) + P}
            buffer_load_dwordx4 {v(vWO+1)}, {srd(sr)}, {s(T0)} offen lds
            s_cbranch_scc1 {skip}
            s_mov_b32 m0, {slot + 9*1024*P + 8192}
            s_nop 0
            buffer_load_dwordx4 {v(vWO+2)}, {srd(sr)}, {s(T0)} offen lds''')
        a.label(skip)
        if OPT.get('thr', 1): a(f's_waitcnt vmcnt({OPT.get("thr", 1) - 1})')
        if P < 2: a(f's_add_u32 {s(T0)}, {s(T0)}, {64*1152}')

def p_path(a, opt):
    vK, vKL, vV0, vV1 = 8, 10, 12, 14
    Qr, QLr, M = 16, 32, 36
    Kb, KLb, Vb, Sb, Ob = 40, 56, 64, 96, 160
    sCur, sNext, sLo, sHi, sN = T2, T3, T4, T5, T6
    sQm, sQl, sChk = 56, 57, 58
    a.c('================= waves 0-3: load the rest of the A tile, publish B =================')
    vm = VM()
    for j in (12, 13): issue_chunk(a, j); vm.add(j, 8)
    a(f'''v_and_b32 v1, 31, v0
    v_mov_b32 {v(vK)}, {v(v16)}
    v_lshlrev_b32 {v(vKL)}, 2, v1
    v_add_u32 {v(vKL)}, 2304, {v(vKL)}
    v_mov_b32 {v(vV0)}, {v(vVf)}
    v_mov_b32 {v(vV1)}, {v(vVf+1)}''')
    for r in (vK, vKL, vV0, vV1): a(f'v_add_u32 {v(r+1)}, {2*REC}, {v(r)}')
    a(f'''s_add_u32 {s(T0)}, {s(sH)}, 32
    s_mul_i32 {s(T0)}, {s(T0)}, 43
    s_lshr_b32 {s(T0)}, {s(T0)}, 8
    s_add_u32 {s(T1)}, {s(sH)}, 64
    s_mul_i32 {s(T1)}, {s(T1)}, 43
    s_lshr_b32 {s(T1)}, {s(T1)}, 8
    s_mul_i32 {s(T2)}, {s(sH)}, 43
    s_lshr_b32 {s(T2)}, {s(T2)}, 8
    s_lshl_b32 {s(T3)}, {s(sMG)}, 3
    s_lshl_b32 {s(T0)}, {s(T0)}, 4
    s_add_u32 {s(T0)}, {s(T0)}, {s(T3)}
    s_lshl_b32 {s(T1)}, {s(T1)}, 4
    s_add_u32 {s(T1)}, {s(T1)}, {s(T3)}
    s_sub_u32 {s(T1)}, {s(T1)}, 8
    s_lshl_b32 {s(T2)}, {s(T2)}, 4
    s_lshl_b32 {s(T3)}, {s(sQB)}, 1
    s_add_u32 {s(T2)}, {s(T2)}, {s(T3)}
    s_add_u32 {s(T2)}, {s(T2)}, {s(sTH)}
    v_add_u32 v3, {s(T0)}, v0
    v_add_u32 v4, {s(T1)}, v0
    v_mov_b32 v5, {s(T2)}
    v_cmp_gt_u32 vcc, 16, v0
    s_nop 1
    v_cndmask_b32 v5, v5, v4, vcc
    v_cmp_gt_u32 vcc, 8, v0
    s_nop 1
    v_cndmask_b32 v5, v5, v3, vcc
    v_lshlrev_b32 v5, 7, v5
    v_add_u32 {v(vPoll)}, {FL1:#x}, v5''')
    for r in (QLr+1, QLr+3, KLb+1, KLb+3, KLb+5, KLb+7): a(f'v_mov_b32 {v(r)}, 0')
    a(f'''s_lshl_b32 {s(T0)}, {s(sH)}, 6
    s_lshl_b32 {s(T1)}, {s(sMG)}, 5
    s_add_u32 {s(T0)}, {s(T0)}, {s(T1)}
    s_mul_i32 {s(sLo)}, {s(T0)}, {REC}
    s_add_u32 {s(sLo)}, {s(sLo)}, {KV:#x}
    s_add_u32 {s(sHi)}, {s(sLo)}, {32*REC}
    s_lshl_b32 {s(T0)}, {s(sQB)}, 1
    s_add_u32 {s(T0)}, {s(T0)}, {s(sTH)}
    s_lshl_b32 {s(T1)}, {s(sH)}, 4
    s_add_u32 {s(T0)}, {s(T0)}, {s(T1)}
    s_lshl_b32 {s(sQm)}, {s(T0)}, 12
    s_lshl_b32 {s(sQl)}, {s(T0)}, 9
    s_add_u32 {s(sQl)}, {s(sQl)}, {QL:#x}''')
    flag_addr(a, T1, sCT, sRT, 4, FL1)
    a('s_waitcnt lgkmcnt(0)')
    a.c('================= waves 0-3: attention =================')
    def kv_loads(b, sreg):
        o = REC * (b & 1); u = b >> 1
        return [f'buffer_load_dwordx4 {v(Kb+4*b,4)}, {v(vK+u)}, {srd(sWS)}, {s(sreg)} offen offset:{o} sc1',
                f'buffer_load_dword {v(KLb+2*b)}, {v(vKL+u)}, {srd(sWS)}, {s(sreg)} offen offset:{o} sc1',
                f'buffer_load_dwordx4 {v(Vb+8*b,4)}, {v(vV0+u)}, {srd(sWS)}, {s(sreg)} offen offset:{o} sc1',
                f'buffer_load_dwordx4 {v(Vb+8*b+4,4)}, {v(vV1+u)}, {srd(sWS)}, {s(sreg)} offen offset:{o} sc1']
    def start_groups():
        a(f'''s_mul_i32 {s(sCur)}, {s(sQB)}, {4*REC}
        s_add_u32 {s(sCur)}, {s(sCur)}, {s(sLo)}
        s_add_u32 {s(sNext)}, {s(sCur)}, {4*REC}
        s_cmp_eq_u32 {s(sNext)}, {s(sHi)}
        s_cselect_b32 {s(sNext)}, {s(sLo)}, {s(sNext)}
        s_mov_b32 {s(sN)}, 8''')
    adv_groups = f'''s_mov_b32 {s(sCur)}, {s(sNext)}
        s_add_u32 {s(sNext)}, {s(sNext)}, {4*REC}
        s_cmp_eq_u32 {s(sNext)}, {s(sHi)}
        s_cselect_b32 {s(sNext)}, {s(sLo)}, {s(sNext)}'''
    def qk(N, kb, qp):
        return (mfma_s(N, KLb+2*kb, QLr+2*qp, None, '2b'), mfma_s(N, Kb+4*kb, Qr+8*qp, N), mfma_s(N+16, Kb+4*kb, Qr+8*qp+4, N+16))
    def step(qp, kb, ins, sub):
        S = Sb + 32*qp; N = Sb + 32*(1-qp)
        nkb = kb if qp == 0 else (kb+1) % 4
        pkb = (kb-1) % 4 if qp == 0 else kb
        QLm, Q0m, Q1m = qk(N, nkb, 1-qp)
        def E(x, y):
            for i in range(x, y):
                if sub: a(f'v_sub_f32 {v(S+i)}, {v(S+i)}, {v(M + 2*qp + i//16)}')
                a(f'v_exp_f32 {v(S+i)}, {v(S+i)}')
        def C(x, y):
            for j in range(x, y):
                b = S + 16*(j//8); k = j % 8
                a(f'v_cvt_pk_bf16_f32 {v(b + (k % 4) + 8*(k//4))}, {v(b+2*k)}, {v(b+2*k+1)}')
        def PV(t, f):
            o = Ob + 32*qp + 16*t
            mfma(a, o, Vb + 8*kb + 4*f, S + 16*t + 8*f, o)
        def I(k):
            if k in ins: a(ins[k])
        E(0, 2)
        o = Ob + 32*(1-qp) + 16
        mfma(a, o, Vb + 8*pkb + 4, N + 24, o); I('p')
        E(2, 5); a(QLm); I('q'); E(5, 9); C(0, 4); E(9, 11); PV(0, 0); I('m0'); E(11, 17); C(4, 6); a(Q0m); I('m1')
        C(6, 8); E(17, 19); PV(0, 1); I('m2'); E(19, 25); C(8, 12); a(Q1m); I('m3'); E(25, 28); PV(1, 0); I('m4'); E(28, 32); C(12, 16)
    def attn_init_a():
        for r in range(Ob+16, Ob+64): a(f'v_mov_b32 {v(r)}, 0')
        for r in range(Vb+28, Vb+32): a(f'v_mov_b32 {v(r)}, 0')
    def attn_init_b():
        for r in range(Ob, Ob+16): a(f'v_mov_b32 {v(r)}, 0')
        for r in range(Sb+56, Sb+60): a(f'v_mov_b32 {v(r)}, 0')
    def attn_init(): attn_init_a(); attn_init_b()
    def attn_loop(name, sub):
        if sub:
            for b in range(3):
                for x in kv_loads(b, sCur): a(x)
        a('s_waitcnt vmcnt(8)')
        m = qk(Sb, 0, 0); a(m[0]); a.nop(18); a(m[1]); a(m[2]); a.nop(11)
        if not sub: a.stamp(7); a.cyc0()
        a('.p2align 6')
        a.label(name)
        for t in range(4):
            ld = kv_loads((t+3) % 4, sCur if t == 0 else sNext)
            step(0, t, {'q': ld[0], 'm0': ld[1], 'm1': ld[2], 'm2': ld[3]}, sub)
            ins = {'p': 's_waitcnt vmcnt(8)'}
            if t == 3:
                ins['m0'] = adv_groups
                ins['m1'] = f's_sub_u32 {s(sN)}, {s(sN)}, 1'
                ins['m4'] = f's_cmp_lg_u32 {s(sN)}, 0'
            step(1, t, ins, sub)
        a(f's_cbranch_scc1 {name}')
        a.nop(1)
        mfma(a, Ob + 48, Vb + 28, Sb + 56, Ob + 48)
    def first_loads():
        for t in range(4): a(f'buffer_load_dwordx4 {v(Qr+4*t,4)}, {v(v16)}, {srd(sWS)}, {s(sQm)} offen offset:{1024*t} sc1')
        for j in range(2): a(f'buffer_load_dword {v(QLr+2*j)}, {v(vQL)}, {srd(sWS)}, {s(sQl)} offen offset:{256*j} sc1')
        for b in range(3):
            for x in kv_loads(b, sCur): a(x)
    a(f'v_readfirstlane_b32 {s(sTok)}, {v(vTok)}\ns_barrier')
    issue_chunk(a, 14); vm.add(14, 8)
    start_groups(); attn_init_a()
    for j in range(12, 16):
        a(f's_waitcnt vmcnt({vm.after(j)})')
        if j == 12:
            last_signals(a, 2, C_F1, 4, T1)
            a.stamp(5)
        a('s_barrier')
        if j == 14: a(f'buffer_load_dword v2, {v(vPoll)}, {srd(sWS)}, 0 offen sc1'); vm.add('fl')
        if j + 3 <= 17: issue_chunk(a, j + 3); vm.add(j + 3, 8)
        if j == 12: attn_init_b()
    a(f's_waitcnt vmcnt(8)\nv_cmp_ne_u32 vcc, {s(sTok)}, v2\ns_cbranch_vccnz L_late')
    first_loads()
    a('s_barrier\ns_waitcnt vmcnt(18)\ns_barrier\ns_branch L_go')
    a.label('L_late')
    a('s_barrier\ns_waitcnt vmcnt(0)\ns_barrier')
    if a.diag: a('s_mov_b32 s82, -1')
    poll_flags(a, vPoll, 2)
    first_loads()
    a.label('L_go')
    a('s_setprio 0')
    a.stamp(6)
    attn_loop('L_attn', False)
    a.cyc1()
    a.stamp(8)
    a.c('the softmax above used 0 in place of the row max; check on the partial sums that this was safe')
    a('s_waitcnt vmcnt(0)')
    lds_wait(a, 2, C_KVF, 4)
    a(f's_mov_b32 {s(T0)}, {f2u(2.0**-64):#x}\ns_mov_b32 {s(T1)}, {f2u(2.0**64):#x}\ns_mov_b32 {s(T7)}, {f2u(2.0**120):#x}\ns_mov_b64 {s(T2,2)}, 0')
    for t in range(4):
        o = Ob + 16*t
        a(f'''v_pk_add_f32 v[2:3], {v(o,2)}, {v(o+2,2)}
        v_pk_add_f32 v[4:5], {v(o+4,2)}, {v(o+6,2)}
        v_pk_add_f32 v[2:3], v[2:3], {v(o+8,2)}
        v_cmp_nle_f32 vcc, {s(T0)}, {v(o+10)}
        v_pk_add_f32 v[2:3], v[2:3], v[4:5]
        s_or_b64 {s(T2,2)}, {s(T2,2)}, vcc
        v_cmp_nge_f32 vcc, {s(T1)}, {v(o+10)}
        v_add_f32 v2, v2, v3
        s_or_b64 {s(T2,2)}, {s(T2,2)}, vcc
        v_cmp_ngt_f32 vcc, {s(T7)}, abs(v2)
        s_or_b64 {s(T2,2)}, {s(T2,2)}, vcc''')
    a(f's_cmp_eq_u64 {s(T2,2)}, 0\ns_cbranch_scc1 L_chk_ok')
    a(f'ds_write_b32 {v(vCnt)}, {v(vOne)} offset:{C_BAD}')
    a.label('L_chk_ok')
    a(f's_mov_b32 {s(sChk)}, 1')
    a.label('L_reduce')
    a(f'''s_mul_i32 {s(T0)}, {s(sWave)}, 6144
    v_add_u32 v1, {s(T0)}, {v(v16)}
    s_xor_b32 {s(T0)}, {s(sWave)}, 2
    s_mul_i32 {s(T0)}, {s(T0)}, 6144
    v_add_u32 v6, {s(T0)}, {v(v16)}
    s_cmp_eq_u32 {s(sMG)}, 0
    s_cbranch_scc1 L_red0''')
    def red_write(o0):
        for t in range(2):
            o = o0 + 16*t
            a(f'ds_write_b128 v1, {v(o,4)} offset:{3072*t}\nds_write_b128 v1, {v(o+4,4)} offset:{3072*t+1024}\nds_write_b96 v1, {v(o+8,3)} offset:{3072*t+2048}')
    red_write(Ob)
    for t in range(2):
        for i in range(0, 12, 2): a(f'v_pk_mov_b32 {v(Ob+16*t+i,2)}, {v(Ob+32+16*t+i,2)}, {v(Ob+32+16*t+i,2)} op_sel:[0,1]')
    a('s_branch L_red1')
    a.label('L_red0')
    red_write(Ob + 32)
    a.label('L_red1')
    a('s_waitcnt lgkmcnt(0)\ns_barrier')
    a(f'ds_read_b32 v7, {v(vCnt)} offset:{C_BAD}')
    for t in range(2):
        o = Ob + 32 + 16*t
        a(f'ds_read_b128 {v(o,4)}, v6 offset:{3072*t}\nds_read_b128 {v(o+4,4)}, v6 offset:{3072*t+1024}\nds_read_b96 {v(o+8,3)}, v6 offset:{3072*t+2048}')
    a(f's_waitcnt lgkmcnt(6)\nv_readfirstlane_b32 {s(T0)}, v7\ns_and_b32 {s(T0)}, {s(T0)}, {s(sChk)}\ns_cmp_lg_u32 {s(T0)}, 0\ns_cbranch_scc1 L_fallback')
    a(f'''s_lshl_b32 {s(T0)}, {s(sQB)}, 3
    s_lshl_b32 {s(T1)}, {s(sTH)}, 2
    s_add_u32 {s(T0)}, {s(T0)}, {s(T1)}
    s_lshl_b32 {s(T1)}, {s(sMG)}, 1
    s_add_u32 {s(T0)}, {s(T0)}, {s(T1)}''')
    o_publish(a, [Ob, Ob + 16], [Ob + 32, Ob + 48], sH, OBM, OBL, True)
    a.stamp(9)
    flag_addr(a, T1, sQB, sH, 5, FL4)
    final_prep(a)
    a('s_waitcnt vmcnt(0)')
    last_signals(a, 2, C_F4, 4, T1)
    a(f'''s_cmp_lg_u32 {s(sWave)}, 0
    s_cbranch_scc1 L_final
    v_and_b32 v1, 31, v0
    s_lshr_b32 {s(T0)}, {s(sOT)}, 2
    s_lshl_b32 {s(T0)}, {s(T0)}, 5
    v_add_u32 v3, {s(T0)}, v1
    v_lshlrev_b32 v3, 7, v3
    v_add_u32 v3, {FL4:#x}, v3''')
    poll_flags(a, 3, 2)
    a('s_branch L_final')

    a.label('L_fallback')
    a.c('the stand-in was unsafe somewhere in this workgroup: redo with the true row max')
    a(f's_waitcnt lgkmcnt(0)\ns_mov_b32 {s(sChk)}, 0')
    for t in range(4): a(f'v_mov_b32 {v(M+t)}, 0xff800000')
    a(f's_mov_b32 {s(sCur)}, {s(sLo)}')
    a.label('L_maxloop')
    for x in kv_loads(0, sCur)[:2]: a(x)
    a('s_waitcnt vmcnt(0)')
    for qp in range(2): a(qk(Sb + 32*qp, 0, qp)[0])
    a.nop(18)
    for qp in range(2): a(qk(Sb + 32*qp, 0, qp)[1]); a(qk(Sb + 32*qp, 0, qp)[2])
    a.nop(12)
    for t in range(4):
        for i in range(0, 16, 2): a(f'v_max3_f32 {v(M+t)}, {v(Sb+16*t+i)}, {v(Sb+16*t+i+1)}, {v(M+t)}')
    a(f's_add_u32 {s(sCur)}, {s(sCur)}, {REC}\ns_cmp_lg_u32 {s(sCur)}, {s(sHi)}\ns_cbranch_scc1 L_maxloop')
    for t in range(4): a(f'v_mov_b32 {v(Sb+t)}, {v(M+t)}')
    a.nop(2)
    for t in range(4): a(f'v_permlane32_swap_b32 {v(Sb+t)}, {v(M+t)}')
    a.nop(1)
    for t in range(4): a(f'v_max_f32 {v(M+t)}, {v(M+t)}, {v(Sb+t)}')
    a(f'''s_lshl_b32 {s(T0)}, {s(sWave)}, 10
    s_add_u32 {s(T0)}, {s(T0)}, 24576
    v_add_u32 v1, {s(T0)}, {v(v16)}
    v_xor_b32 v6, 2048, v1
    ds_write_b128 v1, {v(M,4)}
    s_waitcnt lgkmcnt(0)
    s_barrier
    ds_read_b128 {v(Sb,4)}, v6
    s_waitcnt lgkmcnt(0)''')
    for t in range(4): a(f'v_max_f32 {v(M+t)}, {v(M+t)}, {v(Sb+t)}')
    start_groups(); attn_init()
    attn_loop('L_attn2', True)
    a('s_waitcnt vmcnt(0)')
    a.nop(12)
    a('s_branch L_reduce')

def o_publish(a, O, P, shead, M_, L_, add):
    a(f'''s_lshl_b32 {s(T0)}, {s(T0)}, 5
    s_add_u32 {s(T0)}, {s(T0)}, {s(shead)}
    s_lshl_b32 {s(T2)}, {s(T0)}, 10
    s_add_u32 {s(T2)}, {s(T2)}, {M_:#x}
    s_add_u32 {s(T3)}, {s(T2)}, 0x8000
    s_lshl_b32 {s(T4)}, {s(T0)}, 7
    s_add_u32 {s(T4)}, {s(T4)}, {L_:#x}
    s_add_u32 {s(T5)}, {s(T4)}, 0x1000''')
    for t in range(2):
        o, p = O[t], P[t]
        if add:
            a(f's_waitcnt lgkmcnt({3 - 3*t})\nv_add_f32 {v(o+10)}, {v(o+10)}, {v(p+10)}')
            a(f'v_pk_add_f32 {v(o,2)}, {v(o,2)}, {v(p,2)}\nv_rcp_f32 {v(o+10)}, {v(o+10)}')
            for i in range(2, 10, 2): a(f'v_pk_add_f32 {v(o+i,2)}, {v(o+i,2)}, {v(p+i,2)}')
        else:
            a(f'v_add_f32 {v(o+10)}, {f2u(1e-6):#x}, {v(o+10)}\nv_rcp_f32 {v(o+10)}, {v(o+10)}\ns_nop 0')
        for i in range(0, 10, 2): a(f'v_pk_mul_f32 {v(o+i,2)}, {v(o+i,2)}, {v(o+10,2)} op_sel_hi:[1,0]')
        cvt8(a, o, p)
        a(f'v_cvt_pk_bf16_f32 {v(p+4)}, {v(o+8)}, {v(o+9)}')
        a(f'buffer_store_dwordx4 {v(p,4)}, {v(v16)}, {srd(sWS)}, {s(T2+t)} offen sc1')
        a(f's_mov_b32 exec_hi, 0\nbuffer_store_dword {v(p+4)}, {v(vQL)}, {srd(sWS)}, {s(T4+t)} offen sc1\ns_mov_b32 exec_hi, -1')

FW, FO, FA = 16, 128, 168
vFm, vFm2, vFl, vFl2, vFol = 8, 9, 10, 11, 13
def final_prep(a):
    a(f's_lshr_b32 {s(T6)}, {s(sWave)}, 1\ns_mul_i32 {s(T6)}, {s(T6)}, {WBLK}\ns_add_u32 {s(T6)}, {s(T6)}, {SLOT_B[0]}')
    op_addr(a, vFm, vFm2, vFl, vFl2, 2, T6)
    op_read_w(a, FW, vFm, vFm2, vFl, vFl2)

def final(a):
    a.label('L_final')
    a.c('================= all waves: out projection of B =================')
    sM, sM2, sL = T2, T3, T4
    a(f'''v_and_b32 v1, 31, v0
    v_lshrrev_b32 v2, 5, v0
    v_lshlrev_b32 v3, 2, v1
    v_lshl_add_u32 {v(vFol)}, v2, 9, v3
    s_lshl_b32 {s(T1)}, {s(sOT)}, 1
    s_add_u32 {s(T5)}, {s(sTH)}, {s(T1)}
    s_lshl_b32 {s(T0)}, {s(T5)}, 5
    s_lshr_b32 {s(T6)}, {s(sWave)}, 1
    s_lshl_b32 {s(T1)}, {s(T6)}, 3
    s_add_u32 {s(T0)}, {s(T0)}, {s(T1)}
    s_lshl_b32 {s(sM)}, {s(T0)}, 10
    s_add_u32 {s(sM)}, {s(sM)}, {OBM:#x}
    s_add_u32 {s(sM2)}, {s(sM)}, 4096
    s_lshl_b32 {s(sL)}, {s(T0)}, 7
    s_add_u32 {s(sL)}, {s(sL)}, {OBL:#x}
    s_waitcnt lgkmcnt(0)
    s_barrier''')
    a.stamp(10)
    op_load_o(a, FO, v16, vFol, sM, sM2, sL)
    a(f'''s_mul_i32 {s(T0)}, {s(sWave)}, 9216
    v_add_u32 v4, {s(T0)}, {v(v16)}
    s_mul_i32 {s(T0)}, {s(sTH)}, 9216
    s_lshl_b32 {s(T1)}, {s(T6)}, 11
    s_add_u32 {s(T1)}, {s(T1)}, {s(T0)}
    v_add_u32 v5, {s(T1)}, {v(v16)}
    v_add_u32 v6, {s(T0)}, {v(v16)}
    v_mul_u32_u24 v7, 2304, v1
    v_lshl_add_u32 v14, v2, 3, v7
    v_lshl_add_u32 v7, v2, 4, v7
    s_mul_i32 {s(T0)}, {s(T5)}, {32*2304}
    s_mul_i32 {s(T1)}, {s(sOC)}, 144
    s_add_u32 {s(T0)}, {s(T0)}, {s(T1)}
    s_add_u32 {s(T7)}, {s(T0)}, 1152
    s_lshl_b32 {s(T1)}, {s(T6)}, 5
    s_add_u32 {s(T5)}, {s(T7)}, {s(T1)}''')
    op_mfma(a, FA, FW, FO, True)
    a.nop(10)
    for q in range(9): a(f'ds_write_b128 v4, {v(FA+4*q,4)} offset:{1024*q}')
    a('s_waitcnt lgkmcnt(0)\ns_barrier')
    a.stamp(11)
    R = 16
    for k in range(4):
        for q in range(2): a(f'ds_read_b128 {v(R+8*k+4*q,4)}, v5 offset:{18432*k + 1024*q}')
    a(f's_cmp_lg_u32 {s(T6)}, 0\ns_cbranch_scc1 L_fin_a')
    for k in range(4): a(f'ds_read_b128 {v(R+32+4*k,4)}, v6 offset:{18432*k + 8192}')
    a('s_waitcnt lgkmcnt(0)')
    for k in range(1, 4):
        for i in range(2): a(f'v_pk_add_f32 {v(R+32+2*i,2)}, {v(R+32+2*i,2)}, {v(R+32+4*k+2*i,2)}')
    a(f'v_cvt_pk_bf16_f32 {v(R+40)}, {v(R+32)}, {v(R+33)}\nv_cvt_pk_bf16_f32 {v(R+41)}, {v(R+34)}, {v(R+35)}')
    a(f'buffer_store_dwordx2 {v(R+40,2)}, v14, {srd(sOUT)}, {s(T7)} offen offset:128')
    a.label('L_fin_a')
    a('s_waitcnt lgkmcnt(0)')
    for k in range(1, 4):
        for i in range(4): a(f'v_pk_add_f32 {v(R+2*i,2)}, {v(R+2*i,2)}, {v(R+8*k+2*i,2)}')
    for i in range(4): a(f'v_cvt_pk_bf16_f32 {v(R+8+i)}, {v(R+2*i)}, {v(R+2*i+1)}')
    a(f's_nop 1\nv_permlane32_swap_b32 {v(R+8)}, {v(R+10)}\nv_permlane32_swap_b32 {v(R+9)}, {v(R+11)}')
    a(f'buffer_store_dwordx4 {v(R+8,4)}, v7, {srd(sOUT)}, {s(T5)} offen')
    if OPT.get('padto'):
        a.label('L_pad')
        a(f's_memrealtime s[94:95]\ns_waitcnt lgkmcnt(0)\ns_sub_u32 s94, s94, s80\ns_cmp_lt_u32 s94, {OPT["padto"]}\ns_cbranch_scc1 L_pad')
    if a.diag:
        a('s_waitcnt vmcnt(0)')
        a.stamp(12)
        a.label('L_dump')
        a(f's_lshl_b32 {s(T0)}, s2, 3\ns_add_u32 {s(T0)}, {s(T0)}, {s(sWave)}\ns_lshl_b32 {s(T0)}, {s(T0)}, 7\ns_add_u32 {s(T0)}, {s(T0)}, {STAMPS:#x}')
        for k in range(16): a(f'v_mov_b32 {v(16+k)}, {s(SSTAMP+k)}')
        a(f's_lshl_b32 {s(T1)}, {s(T0)}, 1\ns_sub_u32 {s(T1)}, {s(T1)}, {STAMPS - 0x80000:#x}\nbuffer_store_dword v254, {v(vQL)}, {srd(sWS)}, {s(T1)} offen')
        a('v_mov_b32 v1, 0\ns_mov_b64 exec, 1')
        for k in range(4): a(f'buffer_store_dwordx4 {v(16+4*k,4)}, v1, {srd(sWS)}, {s(T0)} offen offset:{16*k}')
    a.label('L_end')
    a('s_endpgm')

def a_chain(a, opt):
    WPH, WL, WLq, WLk = 24, 28, 30, 32
    Fq, Fk, Fl, Fv = [36, 40], [44, 48], [52, 54], [56, 64]
    a.label('L_achain')
    a.c('================= waves 4-7: publish A qkv, feature maps =================')
    a(f'''v_and_b32 v1, 31, v0
    v_lshrrev_b32 v2, 5, v0
    v_cmp_eq_u32 vcc, 20, v1
    v_mov_b32 v3, 17
    v_mov_b32 v4, {OOB:#x}
    v_cndmask_b32 v3, v1, v3, vcc
    v_cmp_ge_u32 {s(T0,2)}, 16, v1
    s_or_b64 vcc, vcc, {s(T0,2)}
    v_lshlrev_b32 v3, 1, v3
    s_mul_i32 {s(T2)}, {s(sHA)}, 648
    v_cndmask_b32 v3, v4, v3, vcc
    v_mul_u32_u24 v5, 144, v2
    v_add_u32 v4, v3, v5
    s_and_b32 {s(T0)}, {s(sHA)}, 1
    s_mul_i32 {s(T1)}, {s(T0)}, 72
    s_add_u32 {s(T3)}, {s(T2)}, {s(T1)}
    s_mul_i32 {s(T1)}, {s(T0)}, 576
    s_sub_u32 {s(T2)}, {s(T2)}, {s(T1)}
    s_add_u32 {s(T2)}, {s(T2)}, 576''')
    for e in range(8):
        a(f'buffer_load_ushort {v(8 + e)}, v4, {srd(sPHI)}, {s(T3)} offen offset:{((e & 3) + 8*(e >> 2))*36}')
    a(f'buffer_load_ushort v34, v3, {srd(sPHI)}, {s(T2)} offen\nbuffer_load_ushort v35, v3, {srd(sPHI)}, {s(T2)} offen offset:36')
    for k in range(3):
        if k < 2: a(f's_add_u32 {s(T0)}, {s(sW4)}, {4*k}\ns_lshl_b32 {s(T0)}, {s(T0)}, 6\nv_add_u32 v3, {s(T0)}, v0')
        else: a('v_add_u32 v3, 512, v0')
        a(f'''v_mul_u32_u24 v4, 7282, v3
        v_lshrrev_b32 v4, 16, v4
        v_mul_u32_u24 v5, 9, v4
        v_sub_u32 v5, v3, v5
        v_mul_u32_u24 v6, 1152, v4
        v_lshl_add_u32 {v(vWO+k)}, v5, 4, v6''')
    a(f'''v_min_u32 v3, 2, v0
    v_lshlrev_b32 v3, 5, v3
    v_add_u32 v3, {s(sHA)}, v3
    v_mul_u32_u24 v3, 43, v3
    v_lshrrev_b32 v3, 8, v3
    s_lshl_b32 {s(T0)}, {s(sRB)}, 1
    s_add_u32 {s(T0)}, {s(T0)}, {s(sMG)}
    v_lshl_add_u32 v3, v3, 4, {s(T0)}
    v_lshlrev_b32 v3, 7, v3
    v_add_u32 {v(vPoll)}, {FL1A:#x}, v3''')
    a(f'''s_lshl_b32 {s(T6)}, {s(sRB)}, 3
    s_lshl_b32 {s(T1)}, {s(sW4)}, 1
    s_add_u32 {s(T6)}, {s(T6)}, {s(T1)}
    s_lshl_b32 {s(T1)}, {s(sHA)}, 6
    s_add_u32 {s(T0)}, {s(T6)}, {s(T1)}
    s_lshl_b32 {s(T4)}, {s(T0)}, 10
    s_add_u32 {s(T4)}, {s(T4)}, {QM + AOFF:#x}
    s_mul_i32 {s(T5)}, {s(T0)}, {REC}
    s_add_u32 {s(T5)}, {s(T5)}, {KV + AOFF:#x}
    s_lshl_b32 {s(T0)}, {s(T0)}, 7
    s_add_u32 {s(T0)}, {s(T0)}, {QL + AOFF:#x}
    s_add_u32 {s(T1)}, {s(T5)}, 2304
    v_mov_b32 v3, {s(T0)}
    v_mov_b32 v4, {s(T1)}
    v_mov_b32 v5, 128
    v_mov_b32 v6, {REC}
    v_cmp_gt_u32 vcc, 32, v0
    v_mov_b32 {v(WLq+1)}, 0
    v_mov_b32 {v(WLk+1)}, 0
    v_cndmask_b32 v3, v4, v3, vcc
    v_cndmask_b32 v5, v6, v5, vcc
    v_lshl_add_u32 v7, v1, 2, v3
    v_add_u32 v6, v7, v5
    v_mov_b32 {v(Fl[0]+1)}, 0
    v_mov_b32 {v(Fl[1]+1)}, 0''')
    flag_addr(a, T1, sCT, sRT, 4, FL1A)
    a('s_waitcnt vmcnt(0)')
    last_signals(a, 2, C_F1A, 4, T1)
    for i in range(4): a(f'v_lshl_or_b32 {v(WPH + i)}, {v(9 + 2*i)}, 16, {v(8 + 2*i)}')
    a(f'v_lshl_or_b32 {v(WL)}, v35, 16, v34\nv_cmp_gt_u32 vcc, 32, v0\ns_nop 1\nv_cndmask_b32 {v(WLq)}, {v(vZero)}, {v(WL)}, vcc\nv_cndmask_b32 {v(WLk)}, {v(WL)}, {v(vZero)}, vcc')
    a.stamp(5)
    poll_flags(a, vPoll, 2, sl=4)
    a.stamp(6)
    for tt in range(2):
        a(f'buffer_load_dwordx4 {v(Fk[tt],4)}, {v(v16)}, {srd(sWS)}, {s(T5)} offen offset:{REC*tt} sc1')
        a(f'buffer_load_dword {v(Fl[tt])}, {v(7 - tt)}, {srd(sWS)}, 0 offen sc1')
    for tt in range(2): a(f'buffer_load_dwordx4 {v(Fq[tt],4)}, {v(v16)}, {srd(sWS)}, {s(T4)} offen offset:{1024*tt} sc1')
    for tt in range(2):
        for f in range(2): a(f'buffer_load_dwordx4 {v(Fv[tt]+4*f,4)}, {v(vVf+f)}, {srd(sWS)}, {s(T5)} offen offset:{REC*tt} sc1')
    vPh, vPr = 8, 9
    lds_wait(a, 2, C_F1A, 4)
    a(f'''s_mul_i32 {s(T0)}, {s(sW4)}, 5120
    s_add_u32 {s(T0)}, {s(T0)}, {XA}
    v_lshrrev_b32 v2, 5, v0
    v_mul_u32_u24 v3, 80, v1
    v_lshl_add_u32 v3, v2, 3, v3
    v_add_u32 {v(vPh)}, {s(T0)}, v3
    v_bfe_u32 v3, v0, 2, 2
    v_lshl_add_u32 v5, v2, 2, v3
    v_mul_u32_u24 v5, 80, v5
    v_add_u32 v5, {s(T0)}, v5
    v_and_b32 v4, 3, v0
    v_lshlrev_b32 v6, 3, v4
    v_and_b32 v3, 1, v0
    v_lshlrev_b32 v3, 3, v3
    v_add_u32 v3, 64, v3
    v_bfe_u32 v4, v0, 4, 1
    v_cmp_eq_u32 vcc, 0, v4
    v_add_u32 {v(vPr+1)}, v5, v6
    s_mov_b32 {s(T2)}, {f2u(LOG2E):#x}
    v_cndmask_b32 v6, v3, v6, vcc
    s_mov_b32 {s(T3)}, {f2u(LOG2E):#x}
    v_add_u32 {v(vPr)}, v5, v6''')
    D = {('k', 0): 80, ('k', 1): 96, ('q', 0): 112, ('q', 1): 128}
    a('s_waitcnt vmcnt(6)')
    for tt in range(2): mfma(a, D[('k', tt)], WLk, Fl[tt], None, '8')
    for tt in range(2): mfma(a, D[('q', tt)], WLq, Fl[tt], None, '8')
    a.nop(7)
    for tt in range(2): mfma(a, D[('k', tt)], WPH, Fk[tt], D[('k', tt)])
    a('s_waitcnt vmcnt(4)')
    for tt in range(2): mfma(a, D[('q', tt)], WPH, Fq[tt], D[('q', tt)])
    a.nop(8)
    EP, EM = 144, 156
    PH = {('q', 0): 204, ('q', 1): 214, ('k', 0): 168, ('k', 1): 178}
    def softmax2(x, P):
        a(f'''v_max3_f32 v2, {v(x)}, {v(x+1)}, {v(x+2)}
        v_max3_f32 v4, -{v(x)}, -{v(x+1)}, -{v(x+2)}
        v_max3_f32 v2, v2, {v(x+3)}, {v(x+4)}
        v_max3_f32 v4, v4, -{v(x+3)}, -{v(x+4)}
        v_max3_f32 v2, v2, {v(x+5)}, {v(x+6)}
        v_max3_f32 v4, v4, -{v(x+5)}, -{v(x+6)}
        v_max3_f32 v2, v2, {v(x+7)}, {v(x+8)}
        v_max3_f32 v4, v4, -{v(x+7)}, -{v(x+8)}
        s_nop 1
        v_permlane32_swap_b32 v2, v4
        v_max_f32 v2, v2, v4
        v_mul_f32 v2, {s(T2)}, v2
        v_mov_b32 v4, v2
        s_nop 1
        v_permlane32_swap_b32 v2, v4''')
        for i in range(0, 8, 2):
            a(f'v_pk_fma_f32 {v(EP+i,2)}, {v(x+i,2)}, {s(T2,2)}, v[2:3] op_sel_hi:[1,1,0] neg_lo:[0,0,1] neg_hi:[0,0,1]')
        a(f'v_fma_f32 {v(EP+8)}, {v(x+8)}, {s(T2)}, -v2')
        for i in range(0, 8, 2):
            a(f'v_pk_fma_f32 {v(EM+i,2)}, {v(x+i,2)}, {s(T2,2)}, v[4:5] op_sel_hi:[1,1,0] neg_lo:[1,0,1] neg_hi:[1,0,1]')
        a(f'v_fma_f32 {v(EM+8)}, -{v(x+8)}, {s(T2)}, -v4')
        for E in (EP, EM):
            for i in range(9): a(f'v_exp_f32 {v(E+i)}, {v(E+i)}')
        a(f'''v_pk_add_f32 v[2:3], {v(EP,2)}, {v(EP+2,2)}
        v_pk_add_f32 v[4:5], {v(EM,2)}, {v(EM+2,2)}
        v_pk_add_f32 v[2:3], v[2:3], {v(EP+4,2)}
        v_pk_add_f32 v[4:5], v[4:5], {v(EM+4,2)}
        v_pk_add_f32 v[2:3], v[2:3], {v(EP+6,2)}
        v_pk_add_f32 v[4:5], v[4:5], {v(EM+6,2)}
        v_add_f32 v2, v2, {v(EP+8)}
        v_add_f32 v4, v4, {v(EM+8)}
        v_add_f32 v2, v2, v3
        v_add_f32 v4, v4, v5
        s_nop 1
        v_permlane32_swap_b32 v2, v4
        v_add_f32 v2, v2, v4
        v_rcp_f32 v2, v2
        s_nop 0
        v_mov_b32 v4, v2
        s_nop 1
        v_permlane32_swap_b32 v2, v4''')
        for E, t in ((EP, 2), (EM, 4)):
            for i in range(0, 8, 2): a(f'v_pk_mul_f32 {v(E+i,2)}, {v(E+i,2)}, {v(t,2)} op_sel_hi:[1,0]')
            a(f'v_mul_f32 {v(E+8)}, {v(E+8)}, {v(t)}')
        cvt8(a, EP, P); cvt8(a, EM, P+4)
        a(f'v_cvt_pk_bf16_f32 {v(P+8)}, {v(EP+8)}, {v(EM+8)}')
    for tt in range(2):
        P = PH[('k', tt)]
        softmax2(D[('k', tt)], P)
        o = 2560*tt
        a(f'''ds_write_b64 {v(vPh)}, {v(P,2)} offset:{o}
        ds_write_b64 {v(vPh)}, {v(P+2,2)} offset:{o+16}
        ds_write_b64 {v(vPh)}, {v(P+4,2)} offset:{o+32}
        ds_write_b64 {v(vPh)}, {v(P+6,2)} offset:{o+48}
        ds_write_b32 {v(vPh)}, {v(P+8)} offset:{o+64}''')
    a.c('kv partial of this wave: phi_k^T (transposed through LDS) x [v | 1]')
    KA = 144; KD = [80, 96]
    a('s_waitcnt lgkmcnt(0)')
    for k in range(4):
        for sg in range(2):
            for j in range(2):
                a(f'ds_read_b64_tr_b16 {v(KA+8*k+4*sg+2*j,2)}, {v(vPr+sg)} offset:{(16*k+8*j)*80 + 32*sg}')
    a(f'''s_mul_i32 {s(T0)}, {s(sW4)}, 5120
    v_add_u32 v6, {s(T0)}, {v(v16)}
    v_lshlrev_b32 v1, 3, v0
    v_add_u32 v7, {s(T0)}, v1
    s_waitcnt vmcnt(0) lgkmcnt(0)''')
    for k in range(4):
        for sg in range(2): mfma(a, KD[sg], KA+8*k+4*sg, Fv[0]+4*k, None if k == 0 else KD[sg])
    softmax2(D[('q', 0)], PH[('q', 0)])
    a(f'''ds_write_b128 v6, {v(KD[0],4)} offset:{XA}
    ds_write_b128 v6, {v(KD[0]+4,4)} offset:{XA+1024}
    ds_write_b64 v7, {v(KD[0]+8,2)} offset:{XA+2048}
    ds_write_b128 v6, {v(KD[1],4)} offset:{XA+2560}
    ds_write_b128 v6, {v(KD[1]+4,4)} offset:{XA+3584}
    s_waitcnt lgkmcnt(0)''')
    lds_arrive(a, C_KVX)
    a(f'''s_mul_i32 {s(T7)}, {s(sTH)}, 2560
    s_lshl_b32 {s(T1)}, {s(sMG)}, 10
    s_add_u32 {s(T7)}, {s(T7)}, {s(T1)}
    v_add_u32 v6, {s(T7)}, {v(v16)}
    s_lshl_b32 {s(T0)}, {s(sHA)}, 3
    s_add_u32 {s(T1)}, {s(T0)}, {s(sRB)}
    s_mul_i32 {s(T4)}, {s(T1)}, {KVPS}
    s_add_u32 {s(T4)}, {s(T4)}, {KVP:#x}
    s_add_u32 {s(T5)}, {s(T4)}, {s(T7)}
    s_lshl_b32 {s(T1)}, {s(T1)}, 7
    s_add_u32 {s(T1)}, {s(T1)}, {FL2:#x}''')
    lds_wait(a, 2, C_KVX, 4)
    R = 80
    for w in range(4): a(f'ds_read_b128 {v(R+4*w,4)}, v6 offset:{XA + 5120*w}')
    a(f's_cmp_lg_u32 {s(sW4)}, 3\ns_cbranch_scc1 L_kvx')
    for w in range(4): a(f'ds_read_b64 {v(R+16+2*w,2)}, v1 offset:{XA + 5120*w + 2048}')
    a('s_waitcnt lgkmcnt(0)')
    for w in range(1, 4): a(f'v_pk_add_f32 {v(R+16,2)}, {v(R+16,2)}, {v(R+16+2*w,2)}')
    a(f'buffer_store_dwordx2 {v(R+16,2)}, v1, {srd(sWS)}, {s(T4)} offen offset:2048 sc1')
    a.label('L_kvx')
    a('s_waitcnt lgkmcnt(0)')
    for w in range(1, 4):
        for k in range(2): a(f'v_pk_add_f32 {v(R+2*k,2)}, {v(R+2*k,2)}, {v(R+4*w+2*k,2)}')
    a(f'buffer_store_dwordx4 {v(R,4)}, {v(v16)}, {srd(sWS)}, {s(T5)} offen sc1')
    softmax2(D[('q', 1)], PH[('q', 1)])
    for tt in range(2): a(f'v_mov_b32 {v(PH[("q", tt)]+9)}, 0')
    a('s_waitcnt vmcnt(0)')
    last_signals(a, 2, C_F2, 4, T1)
    a.stamp(7)
    a.c('================= waves 4-7: kv total, numerator / denominator =================')
    a(f'''v_and_b32 v3, 7, v0
    s_lshl_b32 {s(T0)}, {s(sHA)}, 3
    v_add_u32 v3, {s(T0)}, v3
    v_lshlrev_b32 v3, 7, v3
    v_add_u32 v3, {FL2:#x}, v3
    s_mul_i32 {s(T4)}, {s(T0)}, {KVPS}
    s_add_u32 {s(T4)}, {s(T4)}, {KVP:#x}
    s_add_u32 {s(T5)}, {s(T4)}, {s(T7)}
    s_lshl_b32 {s(T7)}, {s(sTH)}, 10
    s_lshl_b32 {s(T0)}, {s(sMG)}, 3
    s_add_u32 {s(T7)}, {s(T7)}, {s(T0)}
    s_add_u32 {s(T7)}, {s(T7)}, {KVF}''')
    for kq in (0, 2, 1, 3): issue_blk(a, sAWO, kq, SLOT_A[kq])
    for kq in (0, 1): issue_blk(a, sBWO, kq, SLOT_B[kq])
    poll_flags(a, 3, 2, sl=4)
    for i in range(8):
        a(f'buffer_load_dwordx4 {v(R+4*i,4)}, {v(v16)}, {srd(sWS)}, {s(T5)} offen sc1')
        if i < 7: a(f's_add_u32 {s(T5)}, {s(T5)}, {KVPS}')
    a(f'v_add_u32 v3, {s(T7)}, {v(v16)}\nv_add_u32 v6, {KVF + 2048}, v1\ns_cmp_lg_u32 {s(sW4)}, 3\ns_cbranch_scc1 L_kvs')
    for i in range(8):
        a(f'buffer_load_dwordx2 {v(R+32+2*i,2)}, v1, {srd(sWS)}, {s(T4)} offen offset:2048 sc1')
        if i < 7: a(f's_add_u32 {s(T4)}, {s(T4)}, {KVPS}')
    a('s_waitcnt vmcnt(0)')
    for i in range(1, 8): a(f'v_pk_add_f32 {v(R+32,2)}, {v(R+32,2)}, {v(R+32+2*i,2)}')
    a(f'v_cvt_pk_bf16_f32 v4, {v(R+32)}, {v(R+33)}\nv_mov_b32 v5, 0\nds_write_b64 v6, v[4:5]')
    a.label('L_kvs')
    a('s_waitcnt vmcnt(0)')
    for i in range(1, 8):
        for k in range(2): a(f'v_pk_add_f32 {v(R+2*k,2)}, {v(R+2*k,2)}, {v(R+4*i+2*k,2)}')
    a(f'v_cvt_pk_bf16_f32 v10, {v(R)}, {v(R+1)}\nv_cvt_pk_bf16_f32 v11, {v(R+2)}, {v(R+3)}\nds_write_b64 v3, v[10:11]\ns_waitcnt lgkmcnt(0)')
    lds_arrive(a, C_KVF)
    lds_wait(a, 2, C_KVF, 4)
    KF = 144
    a(f'''v_add_u32 v3, {KVF}, {v(v16)}
    ds_read_b64 {v(KF+8,2)}, v6
    ds_read_b128 {v(KF,4)}, v3
    ds_read_b128 {v(KF+4,4)}, v3 offset:1024
    s_mov_b32 {s(T0)}, {s(T6)}
    s_waitcnt lgkmcnt(0)''')
    ND = [80, 96]
    for tt in range(2): mfma(a, ND[tt], KF+8, PH[('q', tt)]+8, None, '8')
    a.nop(9)
    for tt in range(2): mfma(a, ND[tt], KF, PH[('q', tt)], ND[tt])
    for tt in range(2): mfma(a, ND[tt], KF+4, PH[('q', tt)]+4, ND[tt])
    a.nop(3)
    o_publish(a, ND, [112, 120], sHA, OAM, OAL, False)
    flag_addr(a, T1, sRB, sHA, 5, FL3)
    a('s_waitcnt vmcnt(0)')
    last_signals(a, 2, C_F3, 4, T1)
    a.stamp(8)
    a.c('================= waves 4-7: out projection of A (operands first, MFMAs after the attention) =================')
    W, O1, O2, AC = 16, 124, 160, 196
    X = (8, 9, 10, 11); Y = (12, 13, 14, 15)
    sM, sM2, sL = T2, T3, T4
    a(f's_mul_i32 {s(T6)}, {s(sMG)}, {WBLK}\ns_add_u32 {s(T6)}, {s(T6)}, {SLOT_A[0]}')
    op_addr(a, *X, 2, T6)
    op_read_w(a, W, *X)
    for i in range(4): a(f'v_subrev_u32 {v(Y[i])}, {4*WBLK}, {v(X[i])}')
    a(f'''v_and_b32 v1, 31, v0
    v_lshrrev_b32 v2, 5, v0
    v_lshlrev_b32 v3, 2, v1
    v_lshl_add_u32 v5, v2, 9, v3
    s_lshr_b32 {s(T0)}, {s(sOT)}, 2
    s_lshl_b32 {s(T0)}, {s(T0)}, 5
    v_add_u32 v3, {s(T0)}, v1
    v_lshlrev_b32 v3, 7, v3
    v_add_u32 v3, {FL3:#x}, v3
    s_lshl_b32 {s(T1)}, {s(sOT)}, 1
    s_add_u32 {s(T5)}, {s(sTH)}, {s(T1)}
    s_lshl_b32 {s(T0)}, {s(T5)}, 5
    s_lshl_b32 {s(T1)}, {s(sMG)}, 4
    s_add_u32 {s(T7)}, {s(T0)}, {s(T1)}
    s_lshl_b32 {s(sM)}, {s(T7)}, 10
    s_add_u32 {s(sM)}, {s(sM)}, {OAM:#x}
    s_add_u32 {s(sM2)}, {s(sM)}, 4096
    s_lshl_b32 {s(sL)}, {s(T7)}, 7
    s_add_u32 {s(sL)}, {s(sL)}, {OAL:#x}
    s_waitcnt lgkmcnt(0)''')
    lds_arrive(a, C_W1)
    lds_wait(a, 4, C_W1, 4)
    for kq in (2, 3): issue_blk(a, sBWO, kq, SLOT_B[kq])
    poll_flags(a, 3, 4, sl=4)
    op_load_o(a, O1, v16, 5, sM, sM2, sL, OPT.get('thr', 1))
    a(f's_add_u32 {s(sM)}, {s(sM)}, 8192\ns_add_u32 {s(sM2)}, {s(sM2)}, 8192\ns_add_u32 {s(sL)}, {s(sL)}, 1024')
    op_load_o(a, O2, v16, 5, sM, sM2, sL, OPT.get('thr', 1))
    a('s_waitcnt vmcnt(0)')
    a.stamp(9)
    a('s_barrier')
    a(f'ds_read_b32 v7, {v(vCnt)} offset:{C_BAD}\ns_waitcnt lgkmcnt(0)\nv_readfirstlane_b32 {s(T0)}, v7\ns_cmp_eq_u32 {s(T0)}, 0\ns_cbranch_scc1 L_l_ok')
    a('s_barrier\ns_barrier')
    a.label('L_l_ok')
    a(f's_setprio {opt.get("prio2", 0)}')
    for ps, (O, nxt) in enumerate(((O1, Y), (O2, X))):
        for st in range(9):
            if ps == 1 and st == 0: a('s_waitcnt lgkmcnt(6)')
            if ps == 1 and st == 8: a('s_waitcnt lgkmcnt(12)')
            for T in range(3):
                mfma(a, AC + 16*T, W + 12*st + 4*T, O + 4*st, None if (ps == 0 and st == 0) else AC + 16*T)
            if st: a(op_w_reads(W, *nxt, st - 1))
        a(op_w_reads(W, *nxt, 8))
    lds_wait(a, 3, C_F4, 4)
    a(f'''s_mul_i32 {s(T0)}, {s(sW4)}, 5120
    s_add_u32 {s(T0)}, {s(T0)}, {XA}
    v_add_u32 v4, {s(T0)}, {v(v16)}
    s_xor_b32 {s(T0)}, {s(sW4)}, 2
    s_mul_i32 {s(T0)}, {s(T0)}, 5120
    s_add_u32 {s(T0)}, {s(T0)}, {XA}
    v_add_u32 v5, {s(T0)}, {v(v16)}
    v_mul_u32_u24 v7, 2304, v1
    v_lshl_add_u32 v6, v2, 3, v7
    v_lshl_add_u32 v7, v2, 4, v7
    s_mul_i32 {s(T0)}, {s(T5)}, {32*2304}
    s_mul_i32 {s(T1)}, {s(sOC)}, 144
    s_add_u32 {s(T7)}, {s(T0)}, {s(T1)}
    s_lshl_b32 {s(T1)}, {s(sMG)}, 6
    s_add_u32 {s(T5)}, {s(T7)}, {s(T1)}
    s_cmp_eq_u32 {s(sMG)}, 0
    s_cbranch_scc1 L_opa0''')
    for q in range(4): a(f'ds_write_b128 v4, {v(AC+4*q,4)} offset:{1024*q}')
    a(f'ds_write_b128 v4, {v(AC+32,4)} offset:4096')
    for i in range(0, 16, 2): a(f'v_pk_mov_b32 {v(AC+i,2)}, {v(AC+16+i,2)}, {v(AC+16+i,2)} op_sel:[0,1]')
    a('s_branch L_opa1')
    a.label('L_opa0')
    for q in range(4): a(f'ds_write_b128 v4, {v(AC+16+4*q,4)} offset:{1024*q}')
    a.label('L_opa1')
    a('s_waitcnt lgkmcnt(0)')
    lds_arrive(a, C_OPA)
    lds_wait(a, 3, C_OPA, 4)
    R = 124
    for q in range(5): a(f'ds_read_b128 {v(R+4*q,4)}, v5 offset:{1024*q}')
    a('s_waitcnt lgkmcnt(0)')
    for i in range(0, 16, 2): a(f'v_pk_add_f32 {v(AC+i,2)}, {v(AC+i,2)}, {v(R+i,2)}')
    for i in range(8): a(f'v_cvt_pk_bf16_f32 {v(R+24+i)}, {v(AC+2*i)}, {v(AC+2*i+1)}')
    a(f'''s_nop 1
    v_permlane32_swap_b32 {v(R+24)}, {v(R+26)}
    v_permlane32_swap_b32 {v(R+25)}, {v(R+27)}
    v_permlane32_swap_b32 {v(R+28)}, {v(R+30)}
    v_permlane32_swap_b32 {v(R+29)}, {v(R+31)}
    buffer_store_dwordx4 {v(R+24,4)}, v7, {srd(sOUT)}, {s(T5)} offen
    buffer_store_dwordx4 {v(R+28,4)}, v7, {srd(sOUT)}, {s(T5)} offen offset:32
    s_cmp_lg_u32 {s(sMG)}, 0
    s_cbranch_scc1 L_opa2
    v_pk_add_f32 {v(R+16,2)}, {v(R+16,2)}, {v(AC+32,2)}
    v_pk_add_f32 {v(R+18,2)}, {v(R+18,2)}, {v(AC+34,2)}
    v_cvt_pk_bf16_f32 {v(R+20)}, {v(R+16)}, {v(R+17)}
    v_cvt_pk_bf16_f32 {v(R+21)}, {v(R+18)}, {v(R+19)}
    buffer_store_dwordx2 {v(R+20,2)}, v6, {srd(sOUT)}, {s(T7)} offen offset:128''')
    a.label('L_opa2')

HEADER = '''; Fused hedgehog linear attention (A) + softmax MHA (B), one persistent launch of 256 workgroups.
; kernarg: A_x A_wqkv A_w_phi A_wo B_x B_wqkv B_wo out debug ws (8-byte pointers, in that order)
; @launch grid=(256,1,1) block=(512,1,1) lds=%d
.amdgcn_target "amdgcn-amd-amdhsa--gfx950"
.text
.globl %s_kernel
.p2align 8
.type %s_kernel,@function
%s_kernel:
''' % (LDS_BYTES, NAME, NAME, NAME)
FOOTER = '''.section .rodata,"a"
.p2align 6
.amdhsa_kernel %s_kernel
  .amdhsa_next_free_vgpr 256
  .amdhsa_next_free_sgpr 102
  .amdhsa_accum_offset 256
  .amdhsa_group_segment_fixed_size 0
  .amdhsa_kernarg_size 80
  .amdhsa_user_sgpr_count 2
  .amdhsa_user_sgpr_kernarg_segment_ptr 1
  .amdhsa_system_sgpr_workgroup_id_x 1
.end_amdhsa_kernel
''' % NAME

OPT = {}
def generate(diag=False, **opt):
    OPT.clear(); OPT.update(opt)
    a = Asm(diag)
    prologue(a, opt)
    gemm(a, opt)
    p_path(a, opt)
    a_chain(a, opt)
    final(a)
    body = a.text()
    bad = lint(body)
    for x in bad: print(f"HAZARD line {x[0]} -> {x[1]}: {x[2]} need {x[3]} have {x[4]}\n    {x[5]}\n    {x[6]}", file=sys.stderr)
    return HEADER + body + FOOTER, len(bad)

if __name__ == '__main__':
    import argparse
    ap = argparse.ArgumentParser()
    ap.add_argument('-o', default=f'cdna_kernels/{NAME}.s')
    ap.add_argument('--diag', action='store_true')
    ap.add_argument('--opt', action='append', default=[])
    g = ap.parse_args()
    opt = {}
    for o in g.opt:
        k, val = o.split('='); opt[k] = int(val)
    text, nbad = generate(g.diag, **opt)
    open(g.o, 'w').write(text)
    print(f'wrote {g.o}: {len(text)} bytes, {nbad} hazards')
```

```python
import sys, struct
from lint import lint

NAME = 'concat_heads__linear_kernel_hedgehog__softmax_full_mha__prompt'
OOB = 0x40000000
QM, QL, KV = 0x0, 0x200000, 0x240000
REC = 2432; HREC = 64 * REC
AOFF = 0x700000
OAM, OAL, OBM, OBL = 0xE00000, 0x1000000, 0x1040000, 0x1240000
KVP = 0x1280000; KVPS = 4608
FL1, FL1A, FL2, FL3, FL4 = 0x13A0000, 0x13A8000, 0x13B0000, 0x13B8000, 0x13C0000
EPOCH = 0x13C8000
STAMPS = 0x1400000
WS_BYTES = 0x1800000
XA = 0
WBLK = 21504
WS0 = 28672
SLOT_A = [WS0 + 4*WBLK, WS0, WS0 + 5*WBLK, WS0 + WBLK]
SLOT_B = [WS0 + 2*WBLK, WS0 + 3*WBLK, WS0 + 4*WBLK, WS0 + 5*WBLK]
CNT = WS0 + 6*WBLK
KVF = CNT + 256
LDS_BYTES = 163840
C_F1, C_F1A, C_KVX, C_F2, C_KVF, C_F3, C_OPA, C_F4, C_BAD, C_W1, C_TOK, C_G, C_GO = [4 * i for i in range(13)]
sBX, sBW, sAX, sAW, sPHI, sAWO, sBWO, sOUT, sDBG, sWS = 4, 8, 12, 16, 20, 24, 28, 32, 36, 40
sWave, sCT, sRT, sH = 44, 45, 46, 47
T0, T1, T2, T3, T4, T5, T6, T7 = range(48, 56)
sB = [56, 57, 58]; sHS = [59, 60, 61]; sTS = [62, 63, 64]; sSc = [65, 66, 67]
sQB, sRot, sFree, sOT, sOC, sTok, sLoc, sXcd = 68, 69, 70, 71, 72, 73, 74, 75
sHA, sRB = sH, sQB
sSpin, sTH, sMG, sTile = 76, 77, 78, 79
SSTAMP = 80
sW4, sImg, sXB, sWB, sLh2, sLt2 = 96, 97, 98, 99, 100, 101
v16, vQL, vCnt, vOne, vZero, vPoll, vTok = 244, 245, 246, 247, 248, 249, 250
vVf = 252
vVS, vLs, vLb0, vLh0, vLt0, vLb1, vSc0, vInit = range(216, 224)
vWO = 224
vX, vW, XAc, WAc, XAr, WAr = 228, 232, 24, 28, 32, 36
ACC = {('a', 0): 96, ('a', 1): 112, ('b', 0): 128, ('b', 1): 144, 'X': 160}
FP = dict(x=176, w=184); FQ = dict(x=196, w=204)

LOG2E = 1.4426950408889634
def f2u(x): return struct.unpack('<I', struct.pack('<f', x))[0]
QSCALE = f2u(18 ** -0.5 * LOG2E)

def v(a, n=1): return f'v{a}' if n == 1 else f'v[{a}:{a+n-1}]'
def s(a, n=1): return f's{a}' if n == 1 else f's[{a}:{a+n-1}]'
def srd(a): return s(a, 4)

class Asm:
    def __init__(self, diag=False):
        self.L = []; self.uid = 0; self.diag = diag; self.lock = False
    def __call__(self, t):
        for x in t.split('\n'):
            x = x.strip()
            if x: self.L.append('    ' + x)
    def label(self, n): self.L.append(n + ':')
    def c(self, t): self.L.append('    ; ' + t)
    def new(self, p):
        self.uid += 1; return f'L_{p}{self.uid}'
    def nop(self, n):
        while n > 0:
            k = min(n, 16); self(f's_nop {k-1}'); n -= k
    def stamp(self, k):
        if self.diag and not self.lock:
            self(f's_memrealtime {s(94,2)}\ns_waitcnt lgkmcnt(0)\ns_mov_b32 {s(SSTAMP+k)}, s94')
    def lstamp(self, sreg, base=0):
        if self.diag:
            self(f's_memrealtime s[94:95]\ns_add_u32 s95, {sreg}, {base}\ns_mov_b32 s93, s95\ns_waitcnt lgkmcnt(0)\nv_writelane_b32 v254, s94, s93'.replace('s_add_u32 s95', 's_add_u32 s93').replace('s_mov_b32 s93, s95\n', '').replace('v_writelane_b32 v254, s94, s93', 's_mov_b32 m0, s93\nv_writelane_b32 v254, s94, m0'))
    def cyc0(self):
        if self.diag: self('s_memtime s[94:95]\ns_waitcnt lgkmcnt(0)\ns_mov_b32 s93, s94')
    def cyc1(self):
        if self.diag: self('s_memtime s[94:95]\ns_waitcnt lgkmcnt(0)\ns_sub_u32 s93, s94, s93')
    def text(self): return '\n'.join(self.L) + '\n'

class VM:
    def __init__(self): self.q = []
    def add(self, tag, n=1): self.q += [tag] * n
    def after(self, tag):
        i = max(k for k, t in enumerate(self.q) if t == tag)
        return len(self.q) - 1 - i

def mfma_s(d, x, y, c=None, kind='16'):
    op = {'16': 'v_mfma_f32_32x32x16_bf16', '8': 'v_mfma_f32_32x32x8_bf16', '2b': 'v_mfma_f32_32x32x4_2b_bf16'}[kind]
    nd = 32 if kind == '2b' else 16; na = 4 if kind == '16' else 2
    return f'{op} {v(d,nd)}, {v(x,na)}, {v(y,na)}, {"0" if c is None else v(c,nd)}'
def mfma(a, *k, **kw): a(mfma_s(*k, **kw))

def opol(k): return ['', ' sc1', ' nt', ' sc0 sc1', ' sc1 nt'][OPT.get(k, 0)]

def cvt8(a, src, dst):
    for i in range(4): a(f'v_cvt_pk_bf16_f32 {v(dst+i)}, {v(src+2*i)}, {v(src+2*i+1)}')

SRDS = {sAX: (48, 2048*1152), sAW: (50, 576*3456), sPHI: (52, 32*648), sAWO: (54, 576*1152), sBX: (56, 2048*1152),
        sBW: (58, 576*3456), sBWO: (60, 576*1152), sOUT: (62, 2048*2304), sDBG: (64, 256), sWS: (66, WS_BYTES)}
def mk_srd(a, r):
    p, nbytes = SRDS[r]
    a(f's_mov_b32 {s(r)}, {s(p)}\ns_mov_b32 {s(r+1)}, {s(p+1)}\ns_mov_b32 {s(r+2)}, {nbytes:#x}\ns_mov_b32 {s(r+3)}, 0x20000')

def spin_tail(a, top, sl=1):
    a(f's_sleep {sl}\ns_sub_u32 {s(sSpin)}, {s(sSpin)}, 1\ns_cbranch_scc0 {top}\ns_endpgm')

def token_issue(a):
    a(f'buffer_load_dwordx2 {v(vTok,2)}, {v(vZero)}, {srd(sDBG)}, 0 offen sc1')
def token_check(a):
    top = a.new('tok'); done = a.new('tokd')
    a.label(top)
    a(f'v_readfirstlane_b32 {s(T0)}, {v(vTok+1)}\nv_readfirstlane_b32 {s(sTok)}, {v(vTok)}\ns_cmp_lg_u32 {s(T0)}, 0\ns_cbranch_scc1 {done}')
    token_issue(a)
    a('s_waitcnt vmcnt(0)')
    spin_tail(a, top)
    a.label(done)

def poll_flags(a, vaddr, vt, preloaded=False, sl=1):
    top = a.new('poll'); done = a.new('polld'); chk = a.new('pollc')
    if preloaded: a(f's_branch {chk}')
    a.label(top)
    a(f'buffer_load_dword {v(vt)}, {v(vaddr)}, {srd(sWS)}, 0 offen sc1\ns_waitcnt vmcnt(0)')
    a.label(chk)
    a(f'v_cmp_ne_u32 vcc, {s(sTok)}, {v(vt)}\ns_cbranch_vccz {done}')
    spin_tail(a, top, sl)
    a.label(done)

def last_signals(a, vt, ctr, n, sflag):
    skip = a.new('nsig')
    a(f's_mov_b64 exec, 1\nds_add_rtn_u32 {v(vt)}, {v(vCnt)}, {v(vOne)} offset:{ctr}\ns_waitcnt lgkmcnt(0)')
    a(f'v_readfirstlane_b32 {s(T0)}, {v(vt)}\nv_mov_b32 {v(vt)}, {s(sflag)}\nv_mov_b32 {v(vt+1)}, {s(sTok)}\ns_cmp_lg_u32 {s(T0)}, {n-1}\ns_cbranch_scc1 {skip}')
    a(f'buffer_store_dword {v(vt+1)}, {v(vt)}, {srd(sWS)}, 0 offen sc1')
    a.label(skip)
    a('s_mov_b64 exec, -1')

def lds_arrive(a, ctr):
    a(f's_mov_b64 exec, 1\nds_add_u32 {v(vCnt)}, {v(vOne)} offset:{ctr}\ns_mov_b64 exec, -1')

def lds_wait(a, vt, ctr, n, sl=2):
    top = a.new('lw'); done = a.new('lwd')
    a.label(top)
    a(f'ds_read_b32 {v(vt)}, {v(vCnt)} offset:{ctr}\ns_waitcnt lgkmcnt(0)\nv_readfirstlane_b32 {s(T0)}, {v(vt)}\ns_cmp_ge_u32 {s(T0)}, {n}\ns_cbranch_scc1 {done}')
    spin_tail(a, top, sl)
    a.label(done)

def flag_addr(a, dst, shi, slo, sh, base):
    a(f's_lshl_b32 {s(dst)}, {s(shi)}, {sh}\ns_add_u32 {s(dst)}, {s(dst)}, {s(slo)}\ns_lshl_b32 {s(dst)}, {s(dst)}, 7\ns_add_u32 {s(dst)}, {s(dst)}, {base:#x}')

def issue_chunk(a, j):
    slot = (j % 4) * 32768; c = j % 9
    X, W = (sBX, sBW) if j < 9 else (sAX, sAW)
    nx = ' nt' if OPT.get('nt', 0) & 1 else ''; nw = ' nt' if OPT.get('nt', 0) & 2 else ''
    if OPT.get('rot', 0):
        a(f'''s_add_u32 vcc_lo, {s(sRot)}, {c}
        s_cmp_ge_u32 vcc_lo, 9
        s_cselect_b32 vcc_hi, 9, 0
        s_sub_u32 vcc_lo, vcc_lo, vcc_hi
        s_mul_i32 vcc_hi, vcc_lo, {64*3456}
        s_add_u32 vcc_hi, vcc_hi, {s(sWB)}
        s_lshl_b32 vcc_lo, vcc_lo, 7
        s_add_u32 vcc_lo, vcc_lo, {s(sXB)}
        s_lshl_b32 s3, {s(sW4)}, 12
        s_add_u32 m0, s3, {slot}
        s_nop 0''')
    else:
        a(f's_lshl_b32 s3, {s(sW4)}, 12\ns_add_u32 m0, s3, {slot}\ns_add_u32 vcc_lo, {s(sXB)}, {128*c}\ns_add_u32 vcc_hi, {s(sWB)}, {64*3456*c}')
    for i in range(4): a(f'buffer_load_dwordx4 {v(vX+i)}, {srd(X)}, vcc_lo offen offset:{1024*i}{nx} lds')
    a(f's_add_u32 m0, s3, {slot + 16384}\ns_nop 0')
    for i in range(4): a(f'buffer_load_dwordx4 {v(vW+i)}, {srd(W)}, vcc_hi offen offset:{1024*i}{nw} lds')

def su_loader(a):
    a.c('loader lane offsets: x rows (xor-swizzled 16-byte pieces), w rows (12 main pieces, 3 leftover pieces, 1 zero piece)')
    a(f'''v_lshrrev_b32 v1, 3, v0
    v_and_b32 v2, 7, v0
    v_lshrrev_b32 v3, 1, v1
    v_xor_b32 v2, v2, v3
    v_mul_u32_u24 v1, 1152, v1
    v_lshl_add_u32 {v(vX)}, v2, 4, v1
    v_xor_b32 v2, 4, v2
    v_lshl_add_u32 {v(vX+1)}, v2, 4, v1
    v_add_u32 {v(vX+1)}, {8*1152-1024}, {v(vX+1)}
    v_add_u32 {v(vX+2)}, {2*(8*1152-1024)}, {v(vX)}
    v_add_u32 {v(vX+3)}, {2*(8*1152-1024)}, {v(vX+1)}
    v_lshrrev_b32 v1, 4, v0
    v_lshlrev_b32 v2, 2, v1
    v_sub_u32 v2, v0, v2
    v_and_b32 v2, 15, v2
    v_and_b32 v3, 3, v2
    v_lshrrev_b32 v4, 2, v2
    v_mul_u32_u24 v5, 72, v4
    v_lshl_add_u32 v5, v3, 4, v5
    v_lshrrev_b32 v6, 1, v3
    v_lshl_add_u32 v5, v6, 3, v5
    v_mul_u32_u24 v6, 72, v3
    v_add_u32 v6, 32, v6
    v_cmp_eq_u32 vcc, 3, v4
    v_mul_u32_u24 v1, 3456, v1
    v_mov_b32 v7, {OOB:#x}
    v_cndmask_b32 v5, v5, v6, vcc
    v_cmp_eq_u32 vcc, 15, v2
    v_add_u32 v5, v5, v1
    s_lshl_b32 {s(sXB)}, {s(sRT)}, 2
    v_cndmask_b32 {v(vW)}, v5, v7, vcc''')
    for i in range(1, 4): a(f'v_add_u32 {v(vW+i)}, {i*(4*3456-1024)}, {v(vW)}')
    a(f'''s_add_u32 {s(sXB)}, {s(sXB)}, {s(sW4)}
    s_mul_i32 {s(sXB)}, {s(sXB)}, {32*1152}
    s_mul_i32 {s(sWB)}, {s(sW4)}, {16*3456}
    s_mul_i32 s3, {s(sCT)}, 216
    s_add_u32 {s(sWB)}, {s(sWB)}, s3''')

def su_ids2(a):
    a(f'''s_lshl_b32 s3, {s(sXcd)}, 2
    s_and_b32 {s(sH)}, {s(sLoc)}, 3
    s_add_u32 {s(sH)}, {s(sH)}, s3
    s_lshr_b32 {s(sQB)}, {s(sLoc)}, 2
    s_lshr_b32 {s(sOT)}, {s(sLoc)}, 3
    s_add_u32 {s(sOT)}, {s(sOT)}, s3
    s_and_b32 {s(sOC)}, {s(sLoc)}, 7
    s_mov_b32 {s(sSpin)}, 0x40000
    s_and_b32 {s(sTH)}, {s(sWave)}, 1
    s_lshr_b32 {s(sMG)}, {s(sW4)}, 1
    s_cmp_lt_u32 {s(sWave)}, 4
    s_cselect_b32 {s(sImg)}, 0, {AOFF:#x}
    v_mov_b32 {v(vZero)}, 0
    v_mov_b32 {v(vCnt)}, {CNT}
    v_mov_b32 {v(vOne)}, 1''')

def su_token(a, part):
    lb = a.new('notok')
    a(f's_or_b32 s3, s2, {s(sWave)}\ns_cmp_lg_u32 s3, 0\ns_cbranch_scc1 {lb}\ns_mov_b32 {s(T0)}, {EPOCH:#x}')
    if part == 0:
        a(f'buffer_load_dword v8, {v(vZero)}, {srd(sWS)}, {s(T0)} offen sc1')
    else:
        a(f'''s_mov_b32 {s(T1)}, 1664525
        s_waitcnt vmcnt(0)
        v_mul_lo_u32 v6, v8, {s(T1)}
        v_add_u32 v6, 0x3c6ef35f, v6
        v_mov_b32 v7, 1
        s_mov_b64 exec, 1
        buffer_store_dwordx2 v[6:7], {v(vZero)}, {srd(sDBG)}, 0 offen sc1
        buffer_store_dword v6, {v(vZero)}, {srd(sWS)}, {s(T0)} offen sc1
        s_mov_b64 exec, -1''')
    a.label(lb)
    if part == 0:
        a(f's_cmp_lg_u32 {s(sWave)}, 1\ns_cbranch_scc1 L_nocnt\nv_lshlrev_b32 v1, 2, v0\nv_add_u32 v1, {CNT}, v1\nds_write_b32 v1, {v(vZero)}')
        a.label('L_nocnt')

def su_gaddr(a):
    lb = a.new('mg0')
    a.c('gemm fragment addresses')
    a(f'''v_and_b32 v1, 31, v0
    v_lshrrev_b32 v2, 5, v0
    v_bfe_u32 v3, v0, 1, 3
    v_xor_b32 v3, v3, v2
    s_lshl_b32 s3, {s(sTH)}, 13
    v_lshl_add_u32 v4, v1, 7, s3''')
    for k in range(4):
        a(f'v_xor_b32 v5, {2*k}, v3\nv_lshl_add_u32 {v(XAc+k)}, v5, 4, v4')
    a(f'''v_bfe_u32 v3, v0, 2, 2
    v_and_b32 v4, 3, v0
    v_bfe_u32 v5, v0, 4, 1
    v_lshl_add_u32 v4, v5, 2, v4
    v_lshl_add_u32 v5, v2, 3, v3
    v_lshlrev_b32 v5, 8, v5
    v_add_u32 v5, 16384, v5
    v_lshrrev_b32 v6, 1, v4
    v_lshl_add_u32 v6, v3, 2, v6
    v_and_b32 v7, 1, v4
    v_lshl_add_u32 v7, v7, 3, v5
    s_lshl_b32 s3, {s(sMG)}, 3
    v_add_u32 {v(WAc)}, s3, v6
    v_and_b32 {v(WAc)}, 15, {v(WAc)}
    v_lshl_add_u32 {v(WAc)}, {v(WAc)}, 4, v7
    v_add_u32 {v(WAc+1)}, 4, v6
    v_and_b32 {v(WAc+1)}, 15, {v(WAc+1)}
    v_lshl_add_u32 {v(WAc+1)}, {v(WAc+1)}, 4, v7
    v_min_u32 v6, 3, v4
    v_lshl_add_u32 v6, v3, 2, v6
    v_add_u32 v6, 12, v6
    v_and_b32 v6, 15, v6
    v_lshl_add_u32 {v(WAc+2)}, v6, 4, v5
    s_cmp_eq_u32 {s(sMG)}, 0
    s_cbranch_scc1 {lb}
    v_mov_b32 {v(WAc+1)}, {v(WAc+2)}''')
    a.label(lb)

def su_epi(a, part):
    if part == 0: su_epi0(a)
    else: su_epi1(a)

def su_epi0(a):
    a.c('epilogue parameters')
    a('v_and_b32 v1, 31, v0\nv_lshrrev_b32 v2, 5, v0')
    a(f'''s_lshl_b32 {s(sTile)}, {s(sRT)}, 2
    s_lshl_b32 s3, {s(sTH)}, 1
    s_add_u32 {s(sTile)}, {s(sTile)}, s3
    s_cmp_lt_u32 {s(sWave)}, 4
    s_cselect_b32 s3, {QSCALE:#x}, 1.0''')
    for p in range(3):
        a(f'''s_mul_i32 {s(T0)}, {s(sCT)}, 6
        s_add_u32 {s(T0)}, {s(T0)}, {2*p}
        s_and_b32 {s(T1)}, {s(T0)}, 31
        s_mov_b32 {s(T6)}, {HREC}
        s_movk_i32 {s(T7)}, {REC}
        s_cmp_lt_u32 {s(T0)}, 32
        s_cselect_b32 {s(sHS[p])}, 0x10000, {s(T6)}
        s_cselect_b32 {s(sTS[p])}, 0x400, {s(T7)}
        s_cselect_b32 {s(T2)}, {QM}, {KV:#x}
        s_cselect_b32 {s(sSc[p])}, s3, 1.0
        s_add_u32 {s(T2)}, {s(T2)}, {s(sImg)}
        s_mul_i32 {s(T3)}, {s(T1)}, {s(sHS[p])}
        s_add_u32 {s(T2)}, {s(T2)}, {s(T3)}
        s_mul_i32 {s(T3)}, {s(sTile)}, {s(sTS[p])}
        s_add_u32 {s(sB[p])}, {s(T2)}, {s(T3)}
        s_lshl_b32 {s(T4)}, {s(T1)}, 13
        s_lshl_b32 {s(T5)}, {s(sTile)}, 7
        s_add_u32 {s(T4)}, {s(T4)}, {s(T5)}
        s_add_u32 {s(T4)}, {s(T4)}, {QL:#x}
        s_add_u32 {s(T4)}, {s(T4)}, {s(sImg)}
        s_add_u32 {s(T5)}, {s(sB[p])}, 2304
        s_cmp_lt_u32 {s(T0)}, 32
        s_cselect_b32 {s(T4)}, {s(T4)}, {s(T5)}
        s_cselect_b32 {s(T5)}, 0x2000, {s(T6)}
        s_cselect_b32 {s(T6)}, 0x80, {s(T7)}
        s_cmp_lt_u32 {s(T0)}, 64
        s_cselect_b32 {s(T4)}, {s(T4)}, {OOB:#x}''')
        if p == 0:
            a(f'v_mov_b32 {v(vLb0)}, {s(T4)}\nv_mov_b32 {v(vLh0)}, {s(T5)}\nv_mov_b32 {v(vLt0)}, {s(T6)}\nv_mov_b32 {v(vSc0)}, {s(sSc[0])}')
        elif p == 1:
            a(f'''s_mov_b32 exec_lo, 0
            v_mov_b32 {v(vLb0)}, {s(T4)}
            v_mov_b32 {v(vLh0)}, {s(T5)}
            v_mov_b32 {v(vLt0)}, {s(T6)}
            v_mov_b32 {v(vSc0)}, {s(sSc[1])}
            v_mov_b32 {v(vLb1)}, {OOB:#x}''')
        else:
            a(f's_mov_b32 exec_lo, -1\ns_mov_b32 exec_hi, 0\nv_mov_b32 {v(vLb1)}, {s(T4)}\ns_mov_b64 exec, -1')
            a(f's_mov_b32 {s(sLh2)}, {s(T5)}\ns_mov_b32 {s(sLt2)}, {s(T6)}')

def su_epi1(a):
    a('v_and_b32 v1, 31, v0\nv_lshrrev_b32 v2, 5, v0')
    a(f'''v_lshl_add_u32 {v(vLb0)}, v1, 2, {v(vLb0)}
    v_lshl_add_u32 {v(vLb1)}, v1, 2, {v(vLb1)}
    v_lshlrev_b32 {v(v16)}, 4, v0
    v_lshlrev_b32 {v(vQL)}, 2, v0
    v_lshrrev_b32 v3, 4, v1
    v_mul_u32_u24 v3, {HREC}, v3
    v_and_b32 v4, 15, v0
    v_lshlrev_b32 v4, 4, v4
    v_lshl_add_u32 v4, v2, 8, v4
    v_add_u32 {v(vVS)}, v3, v4
    v_lshrrev_b32 v3, 1, v1
    v_and_b32 v4, 1, v1
    v_subrev_u32 v5, 12, v1
    v_cmp_le_u32 vcc, 12, v1
    v_mov_b32 v6, 2
    v_mov_b32 v7, 3
    v_cndmask_b32 v3, v3, v5, vcc
    v_cndmask_b32 v4, v4, v6, vcc
    v_subrev_u32 v5, 18, v1
    v_cmp_le_u32 vcc, 18, v1
    s_mul_i32 {s(T0)}, {s(sCT)}, 6
    s_sub_u32 {s(T0)}, {s(T0)}, 64
    v_cndmask_b32 v3, v3, v5, vcc
    v_cndmask_b32 v4, v4, v7, vcc
    v_add_u32 v3, {s(T0)}, v3
    v_mul_u32_u24 v5, {HREC}, v3
    v_lshl_add_u32 v5, v4, 4, v5
    v_lshl_add_u32 v5, v2, 6, v5
    v_mov_b32 v6, {OOB:#x}
    v_cmp_gt_u32 vcc, 32, v3
    v_cmp_gt_u32 {s(T2,2)}, 24, v1
    s_and_b64 vcc, vcc, {s(T2,2)}
    v_mov_b32 v7, 1.0
    s_nop 0
    v_cndmask_b32 {v(vLs)}, v6, v5, vcc
    v_cmp_eq_u32 vcc, 2, v4
    s_cmp_ge_u32 {s(sCT)}, 10
    s_cselect_b32 {s(T0)}, {s(sMG)}, 0
    s_cmp_lg_u32 {s(T0)}, 0
    s_cselect_b64 vcc, vcc, 0
    v_cndmask_b32 {v(vInit)}, {v(vZero)}, v7, vcc''')

def su_vgat(a):
    a.c('V fragment gather offsets inside a key-tile record')
    a('v_and_b32 v1, 31, v0\nv_lshrrev_b32 v2, 5, v0')
    a(f'''v_lshlrev_b32 v3, 4, v1
    v_lshl_add_u32 v3, v2, 8, v3
    v_add_u32 v3, 1024, v3
    v_subrev_u32 v4, 16, v1
    v_cmp_eq_u32 vcc, 22, v1
    v_mov_b32 v5, 2
    v_mov_b32 v7, {OOB:#x}
    v_cndmask_b32 v4, v4, v5, vcc
    v_lshlrev_b32 v5, 4, v4
    v_lshl_add_u32 v5, v2, 6, v5
    v_add_u32 v5, 2048, v5
    v_cmp_gt_u32 vcc, 3, v4
    v_add_u32 v6, 128, v5
    s_nop 0
    v_cndmask_b32 v5, v7, v5, vcc
    v_cndmask_b32 v6, v7, v6, vcc
    v_cmp_gt_u32 vcc, 16, v1
    v_add_u32 v4, 512, v3
    s_nop 0
    v_cndmask_b32 {v(vVf)}, v5, v3, vcc
    v_cndmask_b32 {v(vVf+1)}, v6, v4, vcc''')

def su_acc(a, part):
    if part == 0:
        for r in list(range(96, 128)) + list(range(160, 176)) + list(range(196, 216)): a(f'v_mov_b32 {v(r)}, 0')
    else:
        for r in range(128, 160): a(f'v_mov_b32 {v(r)}, {v(vInit)}')

def prologue(a, opt):
    a(f's_cmp_ge_u32 s2, 256\ns_cbranch_scc1 L_end')
    a(f's_load_dwordx16 s[48:63], s[0:1], 0\ns_load_dwordx4 s[64:67], s[0:1], 64')
    if a.diag or opt.get('padto'): a(f's_memrealtime {s(SSTAMP,2)}')
    a(f'v_lshrrev_b32 v1, 6, v0\nv_and_b32 v0, 63, v0\nv_readfirstlane_b32 {s(sWave)}, v1')
    a(f'''s_and_b32 {s(sXcd)}, s2, 7
    s_lshr_b32 {s(sLoc)}, s2, 3
    s_and_b32 s3, {s(sXcd)}, 1
    s_lshl_b32 s3, s3, 3
    s_and_b32 {s(sCT)}, {s(sLoc)}, 7
    s_add_u32 {s(sCT)}, {s(sCT)}, s3
    s_lshr_b32 s3, {s(sXcd)}, 1
    s_lshl_b32 s3, s3, 2
    s_lshr_b32 {s(sRT)}, {s(sLoc)}, 3
    s_add_u32 {s(sRT)}, {s(sRT)}, s3
    s_and_b32 {s(sW4)}, {s(sWave)}, 3''')
    r = opt.get('rot', 0)
    if r == 1:
        a(f's_and_b32 {s(sRot)}, {s(sLoc)}, 7\ns_lshr_b32 s3, {s(sLoc)}, 3\ns_lshl_b32 s3, s3, 1\ns_add_u32 {s(sRot)}, {s(sRot)}, s3')
    elif r == 2:
        a(f's_lshr_b32 s3, {s(sLoc)}, 3\ns_add_u32 s3, s3, {s(sLoc)}\ns_and_b32 s3, s3, 3\ns_min_u32 s3, s3, 2\ns_mul_i32 {s(sRot)}, s3, 3')
    elif r == 3:
        a(f's_lshr_b32 s3, {s(sLoc)}, 3\ns_add_u32 s3, s3, {s(sLoc)}\ns_and_b32 s3, s3, 1\ns_mul_i32 {s(sRot)}, s3, 4')
    elif r == 4:
        a(f's_lshr_b32 s3, {s(sLoc)}, 3\ns_add_u32 s3, s3, {s(sLoc)}\ns_and_b32 {s(sRot)}, s3, 3')
    if r: a(f's_cmp_ge_u32 {s(sRot)}, 9\ns_cselect_b32 s3, 9, 0\ns_sub_u32 {s(sRot)}, {s(sRot)}, s3')
    su_ids2(a)
    a(f's_cmp_lt_u32 {s(sWave)}, 4\ns_cbranch_scc1 L_pset')
    a.c('================= waves 4-7: load the B tile =================')
    su_loader(a)
    a('s_waitcnt lgkmcnt(0)')
    for r in (sBX, sBW): mk_srd(a, r)
    vm = VM()
    for j in range(2): issue_chunk(a, j); vm.add(j, 8)
    for r in (sAX, sAW, sPHI, sAWO, sBWO, sOUT, sDBG, sWS): mk_srd(a, r)
    LA = opt.get('la', 3)
    su_epi(a, 0); su_acc(a, 0)
    a.stamp(1)
    for j in range(9):
        a(f's_waitcnt vmcnt({vm.after(j)})')
        if opt.get('p1') == 1: a.stamp(3 + j)
        a('s_barrier')
        if opt.get('p1') == 2: a.stamp(3 + j)
        if opt.get('p1') == 2 and j == 0: a.cyc0()
        if opt.get('p1') == 2 and j == 8: a.cyc1()
        if j == 1: su_gaddr(a)
        if j == 2: su_epi(a, 1)
        if j == 3: su_vgat(a)
        if j == 4: su_acc(a, 1)
        sw = opt.get('sw', 5)
        for c in ([j + 2] if j < sw else [j + 2, j + 3] if j == sw else [j + 3]):
            issue_chunk(a, c); vm.add(c, 8)
            if c == 9: token_issue(a); vm.add('tok')
    a(f's_waitcnt vmcnt({vm.after("tok")})')
    token_check(a)
    a(f'ds_write_b32 {v(vCnt)}, {v(vTok)} offset:{C_TOK}\ns_mov_b32 {s(T6)}, {(9 % 4) * 32768}\ns_waitcnt lgkmcnt(0)')
    a(f's_setprio {opt.get("prio", 1)}')
    a.stamp(2)
    if opt.get('p1'): a.lock = True
    a('s_branch L_gemm')
    a.label('L_pset')
    a.c('================= waves 0-3: set-up =================')
    su_gaddr(a); su_loader(a); su_vgat(a); su_acc(a, 0)
    a('s_waitcnt lgkmcnt(0)')
    for r in (sWS, sDBG, sAX, sAW, sOUT): mk_srd(a, r)
    su_token(a, 0); su_epi(a, 0); su_epi(a, 1); su_acc(a, 1); su_token(a, 1)
    a(f's_waitcnt lgkmcnt(0)\ns_mov_b32 {s(T6)}, 0')
    a.stamp(1)
    if a.diag: a('s_mov_b32 s82, 0')

def gemm(a, opt):
    sSlot, sIt = T6, T7
    a.label('L_gemm')
    a.c('================= qkv gemm (waves 0-3: B, waves 4-7: A) =================')
    a(f'''s_mov_b32 {s(sIt)}, 9
    s_cmp_lt_u32 {s(sCT)}, 10
    s_cbranch_scc1 L_gNN
    s_cmp_gt_u32 {s(sCT)}, 10
    s_cbranch_scc1 L_gSS
    s_cmp_eq_u32 {s(sMG)}, 0
    s_cbranch_scc1 L_gNN1
    s_branch L_gSS1''')
    def mid():
        lb = a.new('mid')
        a(f's_cmp_ge_u32 {s(sWave)}, 4\ns_cbranch_scc1 {lb}\ns_barrier')
        a.label(lb)
    def loop(name, o, extra):
        nw = 3 if extra == 'c' else 2
        def reads(F, k):
            rd = lambda w, j: f'ds_read_b64_tr_b16 {v(F["w"]+4*w+2*j,2)}, {v(WAr+w)} offset:{4096*k+1024*j}'
            rx = lambda tt: f'ds_read_b128 {v(F["x"]+4*tt,4)}, {v(XAr+k)} offset:{4096*tt}'
            r = [rd(0, 0), rd(0, 1), rx(0), rx(1), rd(1, 0), rd(1, 1)]
            if nw == 3: r += [rd(2, 0), rd(2, 1)]
            if opt.get('nord') == 1: r = ['s_nop 0'] * len(r)
            if opt.get('nord') == 2: r = [x if 'tr' in x else 's_nop 0' for x in r]
            if opt.get('nord') == 3: r = [x if 'tr' not in x else 's_nop 0' for x in r]
            return r
        def mms(F):
            m = []
            for w, nm in enumerate('ab'):
                for tt in range(2):
                    x, wf = F['x']+4*tt, F['w']+4*w
                    m.append(mfma_s(ACC[(nm, tt)], wf, x, ACC[(nm, tt)]) if o == 'N' else mfma_s(ACC[(nm, tt)], x, wf, ACC[(nm, tt)]))
            if extra == 'c': m.append(mfma_s(ACC['X'], F['w']+8, F['x'], ACC['X']))
            if extra == 'b': m.append(mfma_s(ACC['X'], F['w']+4, F['x']+4, ACC['X']))
            if opt.get('m16'):
                import re
                def two(x):
                    g = re.match(r'\S+ v\[(\d+):\d+\], (\S+), (\S+), ', x); d = int(g.group(1))
                    return '\n'.join(f'v_mfma_f32_16x16x32_bf16 {v(d+4*i,4)}, {g.group(2)}, {g.group(3)}, {v(d+4*i,4)}' for i in range(2))
                m = [two(x) for x in m]
            if opt.get('nomm'): m = ['s_nop 0'] * len(m)
            return m
        nr = 2 + 2*nw
        def kstep(Fm, Fr, k, x1='', x3='', x0='', x2=''):
            m = mms(Fm); r = reads(Fr, k)
            a(f's_waitcnt lgkmcnt({nr-3})'); a(m[0]); a(r[0]); a(r[1]); a(x0)
            a(f's_waitcnt lgkmcnt({nr-2})'); a(m[1]); a(r[2]); a(r[3]); a(x1)
            a(f's_waitcnt lgkmcnt({nr-2})'); a(m[2]); a(r[4]); a(r[5]); a(x2)
            a(m[3]); a(x3)
            if nw == 3: a('s_waitcnt lgkmcnt(6)'); a(m[4]); a(r[6]); a(r[7])
            elif len(m) == 5: a(m[4])
        def addr():
            for k in range(4): a(f'v_add_u32 {v(XAr+k)}, {s(sSlot)}, {v(XAc+k)}')
            for w in range(nw): a(f'v_add_u32 {v(WAr+w)}, {s(sSlot)}, {v(WAc+w)}')
        m = mms(FQ); r = reads(FP, 0)
        a.label(f'L_g{name}')
        addr()
        a(f's_add_u32 {s(sSlot)}, {s(sSlot)}, 0x8000\ns_and_b32 {s(sSlot)}, {s(sSlot)}, 0x1ffff\ns_barrier')
        a(r[0]); a(r[1]); a(r[2]); a(m[1]); a(r[3]); a(r[4]); a(r[5]); a(m[2])
        if nw == 3: a(r[6]); a(r[7])
        for x in m[3:]: a(x)
        kstep(FP, FQ, 1); kstep(FQ, FP, 2); kstep(FP, FQ, 3)
        a(f's_waitcnt lgkmcnt({nr-3})'); a(m[0])
        w8 = a.new('w8')
        a(f's_cmp_eq_u32 {s(sIt)}, 9\ns_cbranch_scc1 {w8}\ns_waitcnt vmcnt(0)')
        a.label(w8)
        a(f's_sub_u32 {s(sIt)}, {s(sIt)}, 1\ns_cmp_lg_u32 {s(sIt)}, 0\ns_waitcnt vmcnt(8) lgkmcnt(0)\ns_cbranch_scc1 L_g{name}')
        a(f's_cmp_ge_u32 {s(sWave)}, 4\ns_cbranch_scc1 L_gf{name}\ns_barrier\ns_setprio 2\nds_read_b32 {v(vTok)}, {v(vCnt)} offset:{C_TOK}')
        a.label(f'L_gf{name}')
        for x in m[1:]: a(x)
        a.stamp(3)
    def epi_nmain(nm, p):
        sc = T2 if p != 1 else T4
        for tt in range(2):
            r = ACC[(nm, tt)]
            for hb in range(2):
                for i in range(4): a(f'v_pk_mul_f32 {v(r+8*hb+2*i,2)}, {v(r+8*hb+2*i,2)}, {s(sc,2)} op_sel_hi:[1,0]')
                cvt8(a, r + 8*hb, r + 8*hb)
                if (tt, hb) == (0, 0): so = sB[p]
                elif (tt, hb) == (0, 1): a(f's_add_u32 {s(T0)}, {s(sB[p])}, {s(sHS[p])}'); so = T0
                elif (tt, hb) == (1, 0): a(f's_add_u32 {s(T1)}, {s(sB[p])}, {s(sTS[p])}'); so = T1
                else: a(f's_add_u32 {s(T0)}, {s(T1)}, {s(sHS[p])}'); so = T0
                a(f'buffer_store_dwordx4 {v(r+8*hb,4)}, {v(v16)}, {srd(sWS)}, {s(so)} offen sc1')
    def epi_smain(nm, p):
        for tt in range(2):
            r = ACC[(nm, tt)]
            a(f's_add_u32 {s(T0)}, {s(sB[p])}, {1024 + REC*tt}')
            for f in range(2):
                cvt8(a, r + 8*f, r + 8*f)
                a(f'buffer_store_dwordx4 {v(r+8*f,4)}, {v(vVS)}, {srd(sWS)}, {s(T0)} offen offset:{512*f} sc1')
    def epi_ln(r, tt):
        for i in range(4): a(f'v_mul_f32 {v(r+i)}, {v(vSc0)}, {v(r+i)}')
        for i in range(4, 8): a(f'v_mul_f32 {v(r+i)}, {s(sSc[2])}, {v(r+i)}')
        cvt8(a, r, r)
        if tt: a(f'v_add_u32 v1, {v(vLb0)}, {v(vLt0)}\nv_add_u32 v3, {s(sLt2)}, {v(vLb1)}')
        else: a(f'v_mov_b32 v1, {v(vLb0)}\nv_mov_b32 v3, {v(vLb1)}')
        a(f'''v_add_u32 v2, v1, {v(vLh0)}
        v_add_u32 v4, {s(sLh2)}, v3
        buffer_store_dword {v(r)}, v1, {srd(sWS)}, 0 offen sc1
        buffer_store_dword {v(r+1)}, v2, {srd(sWS)}, 0 offen sc1
        buffer_store_dword {v(r+2)}, v3, {srd(sWS)}, 0 offen sc1
        buffer_store_dword {v(r+3)}, v4, {srd(sWS)}, 0 offen sc1''')
    def epi_ls():
        for tt in range(2):
            r = ACC[('b', tt)]
            a(f's_add_u32 {s(T0)}, {s(sTile)}, {tt}\ns_mul_i32 {s(T0)}, {s(T0)}, {REC}\ns_add_u32 {s(T0)}, {s(T0)}, {KV + 2048:#x}\ns_add_u32 {s(T0)}, {s(T0)}, {s(sImg)}')
            for f in range(2):
                cvt8(a, r + 8*f, r + 8*f)
                a(f'buffer_store_dwordx4 {v(r+8*f,4)}, {v(vLs)}, {srd(sWS)}, {s(T0)} offen offset:{128*f} sc1')
    def scale_prep(ps):
        for p in ps: a(f's_mov_b32 {s(T2 if p != 1 else T4)}, {s(sSc[p])}')
    loop('NN', 'N', None)
    a(f's_cmp_eq_u32 {s(sMG)}, 0\ns_cbranch_scc0 L_eV2')
    scale_prep([0, 1]); a.nop(2); epi_nmain('a', 0); mid(); epi_nmain('b', 1); a('s_branch L_epi_done')
    a.label('L_eV2')
    scale_prep([2]); a.nop(3); epi_nmain('a', 2); mid(); epi_ln(ACC[('b', 0)], 0); epi_ln(ACC[('b', 1)], 1); a('s_branch L_epi_done')
    loop('SS', 'S', None)
    a(f's_cmp_eq_u32 {s(sMG)}, 0\ns_cbranch_scc0 L_eV3')
    a.nop(3); epi_smain('a', 0); mid(); epi_smain('b', 1); a('s_branch L_epi_done')
    a.label('L_eV3')
    a.nop(3); epi_smain('a', 2); mid(); epi_ls(); a('s_branch L_epi_done')
    loop('NN1', 'N', 'c')
    scale_prep([0, 1]); a.nop(3); epi_nmain('a', 0); mid(); epi_nmain('b', 1); epi_ln(ACC['X'], 0); a('s_branch L_epi_done')
    loop('SS1', 'S', 'b')
    a.nop(4); epi_smain('a', 2); mid(); epi_ls(); epi_ln(ACC['X'], 1)
    a.label('L_epi_done')
    a.stamp(4)
    a(f's_cmp_ge_u32 {s(sWave)}, 4\ns_cbranch_scc1 L_achain')

def op_addr(a, vm, vm2, vl, vl2, vt, skq_bytes):
    t0, t1, t2, t3, t4 = vt, vt+1, vt+2, vt+3, vt+4
    a(f'''v_bfe_u32 {v(t0)}, v0, 2, 2
    v_lshrrev_b32 {v(t1)}, 5, v0
    v_and_b32 {v(t2)}, 3, v0
    v_bfe_u32 {v(t3)}, v0, 4, 1
    v_lshl_add_u32 {v(t2)}, {v(t3)}, 2, {v(t2)}
    v_lshl_add_u32 {v(t3)}, {v(t1)}, 2, {v(t0)}
    v_mul_u32_u24 {v(t3)}, 144, {v(t3)}
    v_add_u32 {v(t3)}, {s(skq_bytes)}, {v(t3)}
    v_lshl_add_u32 {v(vm)}, {v(t2)}, 3, {v(t3)}
    v_and_b32 {v(t4)}, 1, v0
    v_lshlrev_b32 {v(t4)}, 3, {v(t4)}
    v_add_u32 {v(t4)}, 128, {v(t4)}
    v_add_u32 {v(vm2)}, {v(t4)}, {v(t3)}
    v_mul_u32_u24 {v(t1)}, 72, {v(t1)}
    v_and_b32 {v(t3)}, 2, {v(t0)}
    v_and_b32 {v(t0)}, 1, {v(t0)}
    v_add3_u32 {v(t1)}, {v(t1)}, {v(t3)}, {v(t0)}
    v_add_u32 {v(t1)}, 16, {v(t1)}
    v_mul_u32_u24 {v(t1)}, 144, {v(t1)}
    v_add_u32 {v(t1)}, {s(skq_bytes)}, {v(t1)}
    v_lshl_add_u32 {v(vl)}, {v(t2)}, 3, {v(t1)}
    v_add_u32 {v(vl2)}, {v(t4)}, {v(t1)}''')

def op_w_reads(W, vm, vm2, vl, vl2, st):
    r = []
    for T in range(3):
        for j in range(2):
            if st < 8:
                off = (18*st + 8*j + (2 if st & 1 else 0)) * 144; base = vm if T < 2 else vm2
            else:
                off = 36*j*144; base = vl if T < 2 else vl2
            r.append(f'ds_read_b64_tr_b16 {v(W + 12*st + 4*T + 2*j, 2)}, {v(base)} offset:{off + (64 if T == 1 else 0)}')
    return '\n'.join(r)
def op_read_w(a, W, vm, vm2, vl, vl2):
    for st in range(9): a(op_w_reads(W, vm, vm2, vl, vl2, st))

def op_load_o(a, O, vo16, vol, sM, sM2, sL, thr=False):
    for i in range(8):
        a(f'buffer_load_dwordx4 {v(O+4*i,4)}, {v(vo16)}, {srd(sWS)}, {s(sM if i < 4 else sM2)} offen offset:{1024*(i&3)} sc1')
        if thr and i % 4 == 3: a('s_waitcnt vmcnt(0)')
    for i in range(4):
        a(f'buffer_load_dword {v(O+32+i)}, {v(vol)}, {srd(sWS)}, {s(sL)} offen offset:{128*i} sc1')

def op_mfma(a, AC, W, O, first):
    for st in range(9):
        a(f's_waitcnt vmcnt({11 - st if st < 8 else 0})')
        for T in range(3):
            mfma(a, AC + 16*T, W + 12*st + 4*T, O + 4*st, None if (first and st == 0) else AC + 16*T)

def issue_blk(a, sr, kq, slot):
    a(f's_mul_i32 {s(T0)}, {s(sOC)}, 144\ns_add_u32 {s(T0)}, {s(T0)}, {144*kq*1152}\ns_lshl_b32 {s(T1)}, {s(sW4)}, 10')
    for P in range(3):
        skip = a.new('r8')
        if P == 2: a(f's_cmp_ge_u32 {s(sW4)}, 3\ns_cbranch_scc1 {skip}')
        a(f's_add_u32 m0, {s(T1)}, {slot + 9*1024*P}\ns_nop 0\nbuffer_load_dwordx4 {v(vWO)}, {srd(sr)}, {s(T0)} offen lds')
        if P < 2:
            a(f'''s_add_u32 m0, {s(T1)}, {slot + 9*1024*P + 4096}
            s_cmp_lg_u32 {s(sW4)}, {2*(kq & 1) + P}
            buffer_load_dwordx4 {v(vWO+1)}, {srd(sr)}, {s(T0)} offen lds
            s_cbranch_scc1 {skip}
            s_mov_b32 m0, {slot + 9*1024*P + 8192}
            s_nop 0
            buffer_load_dwordx4 {v(vWO+2)}, {srd(sr)}, {s(T0)} offen lds''')
        a.label(skip)
        if OPT.get('thr', 1): a(f's_waitcnt vmcnt({OPT.get("thr", 1) - 1})')
        if P < 2: a(f's_add_u32 {s(T0)}, {s(T0)}, {64*1152}')

def p_path(a, opt):
    vK, vKL, vV0, vV1 = 8, 10, 12, 14
    Qr, QLr, M = 16, 32, 36
    Kb, KLb, Vb, Sb, Ob = 40, 56, 64, 96, 160
    sCur, sNext, sLo, sHi, sN = T2, T3, T4, T5, T6
    sQm, sQl, sChk = 56, 57, 58
    a.c('================= waves 0-3: load the rest of the A tile, publish B =================')
    vm = VM()
    for j in (12, 13): issue_chunk(a, j); vm.add(j, 8)
    a(f'''v_and_b32 v1, 31, v0
    v_mov_b32 {v(vK)}, {v(v16)}
    v_lshlrev_b32 {v(vKL)}, 2, v1
    v_add_u32 {v(vKL)}, 2304, {v(vKL)}
    v_mov_b32 {v(vV0)}, {v(vVf)}
    v_mov_b32 {v(vV1)}, {v(vVf+1)}''')
    for r in (vK, vKL, vV0, vV1): a(f'v_add_u32 {v(r+1)}, {2*REC}, {v(r)}')
    a(f'''s_add_u32 {s(T0)}, {s(sH)}, 32
    s_mul_i32 {s(T0)}, {s(T0)}, 43
    s_lshr_b32 {s(T0)}, {s(T0)}, 8
    s_add_u32 {s(T1)}, {s(sH)}, 64
    s_mul_i32 {s(T1)}, {s(T1)}, 43
    s_lshr_b32 {s(T1)}, {s(T1)}, 8
    s_mul_i32 {s(T2)}, {s(sH)}, 43
    s_lshr_b32 {s(T2)}, {s(T2)}, 8
    s_lshl_b32 {s(T3)}, {s(sMG)}, 3
    s_lshl_b32 {s(T0)}, {s(T0)}, 4
    s_add_u32 {s(T0)}, {s(T0)}, {s(T3)}
    s_lshl_b32 {s(T1)}, {s(T1)}, 4
    s_add_u32 {s(T1)}, {s(T1)}, {s(T3)}
    s_sub_u32 {s(T1)}, {s(T1)}, 8
    s_lshl_b32 {s(T2)}, {s(T2)}, 4
    s_lshl_b32 {s(T3)}, {s(sQB)}, 1
    s_add_u32 {s(T2)}, {s(T2)}, {s(T3)}
    s_add_u32 {s(T2)}, {s(T2)}, {s(sTH)}
    v_add_u32 v3, {s(T0)}, v0
    v_add_u32 v4, {s(T1)}, v0
    v_mov_b32 v5, {s(T2)}
    v_cmp_gt_u32 vcc, 16, v0
    s_nop 1
    v_cndmask_b32 v5, v5, v4, vcc
    v_cmp_gt_u32 vcc, 8, v0
    s_nop 1
    v_cndmask_b32 v5, v5, v3, vcc
    v_lshlrev_b32 v5, 7, v5
    v_add_u32 {v(vPoll)}, {FL1:#x}, v5''')
    for r in (QLr+1, QLr+3, KLb+1, KLb+3, KLb+5, KLb+7): a(f'v_mov_b32 {v(r)}, 0')
    a(f'''s_lshl_b32 {s(T0)}, {s(sH)}, 6
    s_lshl_b32 {s(T1)}, {s(sMG)}, 5
    s_add_u32 {s(T0)}, {s(T0)}, {s(T1)}
    s_mul_i32 {s(sLo)}, {s(T0)}, {REC}
    s_add_u32 {s(sLo)}, {s(sLo)}, {KV:#x}
    s_add_u32 {s(sHi)}, {s(sLo)}, {32*REC}
    s_lshl_b32 {s(T0)}, {s(sQB)}, 1
    s_add_u32 {s(T0)}, {s(T0)}, {s(sTH)}
    s_lshl_b32 {s(T1)}, {s(sH)}, 4
    s_add_u32 {s(T0)}, {s(T0)}, {s(T1)}
    s_lshl_b32 {s(sQm)}, {s(T0)}, 12
    s_lshl_b32 {s(sQl)}, {s(T0)}, 9
    s_add_u32 {s(sQl)}, {s(sQl)}, {QL:#x}''')
    flag_addr(a, T1, sCT, sRT, 4, FL1)
    a('s_waitcnt lgkmcnt(0)')
    a.c('================= waves 0-3: attention =================')
    def kv_loads(b, sreg):
        o = REC * (b & 1); u = b >> 1
        return [f'buffer_load_dwordx4 {v(Kb+4*b,4)}, {v(vK+u)}, {srd(sWS)}, {s(sreg)} offen offset:{o} sc1',
                f'buffer_load_dword {v(KLb+2*b)}, {v(vKL+u)}, {srd(sWS)}, {s(sreg)} offen offset:{o} sc1',
                f'buffer_load_dwordx4 {v(Vb+8*b,4)}, {v(vV0+u)}, {srd(sWS)}, {s(sreg)} offen offset:{o} sc1',
                f'buffer_load_dwordx4 {v(Vb+8*b+4,4)}, {v(vV1+u)}, {srd(sWS)}, {s(sreg)} offen offset:{o} sc1']
    def start_groups():
        a(f'''s_mul_i32 {s(sCur)}, {s(sQB)}, {4*REC}
        s_add_u32 {s(sCur)}, {s(sCur)}, {s(sLo)}
        s_add_u32 {s(sNext)}, {s(sCur)}, {4*REC}
        s_cmp_eq_u32 {s(sNext)}, {s(sHi)}
        s_cselect_b32 {s(sNext)}, {s(sLo)}, {s(sNext)}
        s_mov_b32 {s(sN)}, 8''')
    adv_groups = f'''s_mov_b32 {s(sCur)}, {s(sNext)}
        s_add_u32 {s(sNext)}, {s(sNext)}, {4*REC}
        s_cmp_eq_u32 {s(sNext)}, {s(sHi)}
        s_cselect_b32 {s(sNext)}, {s(sLo)}, {s(sNext)}'''
    def qk(N, kb, qp):
        return (mfma_s(N, KLb+2*kb, QLr+2*qp, None, '2b'), mfma_s(N, Kb+4*kb, Qr+8*qp, N), mfma_s(N+16, Kb+4*kb, Qr+8*qp+4, N+16))
    def step(qp, kb, ins, sub):
        S = Sb + 32*qp; N = Sb + 32*(1-qp)
        nkb = kb if qp == 0 else (kb+1) % 4
        pkb = (kb-1) % 4 if qp == 0 else kb
        QLm, Q0m, Q1m = qk(N, nkb, 1-qp)
        def E(x, y):
            for i in range(x, y):
                if sub: a(f'v_sub_f32 {v(S+i)}, {v(S+i)}, {v(M + 2*qp + i//16)}')
                a(f'v_exp_f32 {v(S+i)}, {v(S+i)}')
        def C(x, y):
            for j in range(x, y):
                b = S + 16*(j//8); k = j % 8
                a(f'v_cvt_pk_bf16_f32 {v(b + (k % 4) + 8*(k//4))}, {v(b+2*k)}, {v(b+2*k+1)}')
        def PV(t, f):
            o = Ob + 32*qp + 16*t
            mfma(a, o, Vb + 8*kb + 4*f, S + 16*t + 8*f, o)
        def I(k):
            if k in ins: a(ins[k])
        E(0, 2)
        o = Ob + 32*(1-qp) + 16
        mfma(a, o, Vb + 8*pkb + 4, N + 24, o); I('p')
        E(2, 5); a(QLm); I('q'); E(5, 9); C(0, 4); E(9, 11); PV(0, 0); I('m0'); E(11, 17); C(4, 6); a(Q0m); I('m1')
        C(6, 8); E(17, 19); PV(0, 1); I('m2'); E(19, 25); C(8, 12); a(Q1m); I('m3'); E(25, 28); PV(1, 0); I('m4'); E(28, 32); C(12, 16)
    def attn_init_a():
        for r in range(Ob+16, Ob+64): a(f'v_mov_b32 {v(r)}, 0')
        for r in range(Vb+28, Vb+32): a(f'v_mov_b32 {v(r)}, 0')
    def attn_init_b():
        for r in range(Ob, Ob+16): a(f'v_mov_b32 {v(r)}, 0')
        for r in range(Sb+56, Sb+60): a(f'v_mov_b32 {v(r)}, 0')
    def attn_init(): attn_init_a(); attn_init_b()
    def attn_loop(name, sub):
        if sub:
            for b in range(3):
                for x in kv_loads(b, sCur): a(x)
        a('s_waitcnt vmcnt(8)')
        m = qk(Sb, 0, 0); a(m[0]); a.nop(18); a(m[1]); a(m[2]); a.nop(11)
        if not sub: a.stamp(7); a.cyc0()
        a('.p2align 6')
        a.label(name)
        for t in range(4):
            ld = kv_loads((t+3) % 4, sCur if t == 0 else sNext)
            step(0, t, {'q': ld[0], 'm0': ld[1], 'm1': ld[2], 'm2': ld[3]}, sub)
            ins = {'p': 's_waitcnt vmcnt(8)'}
            if t == 3:
                ins['m0'] = adv_groups
                ins['m1'] = f's_sub_u32 {s(sN)}, {s(sN)}, 1'
                ins['m4'] = f's_cmp_lg_u32 {s(sN)}, 0'
            step(1, t, ins, sub)
        a(f's_cbranch_scc1 {name}')
        a.nop(1)
        mfma(a, Ob + 48, Vb + 28, Sb + 56, Ob + 48)
    def first_loads():
        for t in range(4): a(f'buffer_load_dwordx4 {v(Qr+4*t,4)}, {v(v16)}, {srd(sWS)}, {s(sQm)} offen offset:{1024*t} sc1')
        for j in range(2): a(f'buffer_load_dword {v(QLr+2*j)}, {v(vQL)}, {srd(sWS)}, {s(sQl)} offen offset:{256*j} sc1')
        for b in range(3):
            for x in kv_loads(b, sCur): a(x)
    a(f'v_readfirstlane_b32 {s(sTok)}, {v(vTok)}\ns_barrier')
    issue_chunk(a, 14); vm.add(14, 8)
    start_groups(); attn_init_a()
    for j in range(12, 16):
        a(f's_waitcnt vmcnt({vm.after(j)})')
        if j == 12:
            last_signals(a, 2, C_F1, 4, T1)
            a.stamp(5)
        a('s_barrier')
        if j == 14: a(f'buffer_load_dword v2, {v(vPoll)}, {srd(sWS)}, 0 offen sc1'); vm.add('fl')
        if j + 3 <= 17: issue_chunk(a, j + 3); vm.add(j + 3, 8)
        if j == 12: attn_init_b()
    a(f's_waitcnt vmcnt(8)\nv_cmp_ne_u32 vcc, {s(sTok)}, v2\ns_cbranch_vccnz L_late')
    first_loads()
    a('s_barrier\ns_waitcnt vmcnt(18)\ns_barrier\ns_branch L_go')
    a.label('L_late')
    a('s_barrier\ns_waitcnt vmcnt(0)\ns_barrier')
    if a.diag: a('s_mov_b32 s82, -1')
    poll_flags(a, vPoll, 2)
    first_loads()
    a.label('L_go')
    a('s_setprio 0')
    a.stamp(6)
    attn_loop('L_attn', False)
    a.cyc1()
    a.stamp(8)
    a.c('the softmax above used 0 in place of the row max; check on the partial sums that this was safe')
    a('s_waitcnt vmcnt(0)')
    lds_wait(a, 2, C_KVF, 4)
    a(f's_mov_b32 {s(T0)}, {f2u(2.0**-64):#x}\ns_mov_b32 {s(T1)}, {f2u(2.0**64):#x}\ns_mov_b32 {s(T7)}, {f2u(2.0**120):#x}\ns_mov_b64 {s(T2,2)}, 0')
    for t in range(4):
        o = Ob + 16*t
        a(f'''v_pk_add_f32 v[2:3], {v(o,2)}, {v(o+2,2)}
        v_pk_add_f32 v[4:5], {v(o+4,2)}, {v(o+6,2)}
        v_pk_add_f32 v[2:3], v[2:3], {v(o+8,2)}
        v_cmp_nle_f32 vcc, {s(T0)}, {v(o+10)}
        v_pk_add_f32 v[2:3], v[2:3], v[4:5]
        s_or_b64 {s(T2,2)}, {s(T2,2)}, vcc
        v_cmp_nge_f32 vcc, {s(T1)}, {v(o+10)}
        v_add_f32 v2, v2, v3
        s_or_b64 {s(T2,2)}, {s(T2,2)}, vcc
        v_cmp_ngt_f32 vcc, {s(T7)}, abs(v2)
        s_or_b64 {s(T2,2)}, {s(T2,2)}, vcc''')
    a(f's_cmp_eq_u64 {s(T2,2)}, 0\ns_cbranch_scc1 L_chk_ok')
    a(f'ds_write_b32 {v(vCnt)}, {v(vOne)} offset:{C_BAD}')
    a.label('L_chk_ok')
    a(f's_mov_b32 {s(sChk)}, 1')
    a.label('L_reduce')
    a(f'''s_mul_i32 {s(T0)}, {s(sWave)}, 6144
    v_add_u32 v1, {s(T0)}, {v(v16)}
    s_xor_b32 {s(T0)}, {s(sWave)}, 2
    s_mul_i32 {s(T0)}, {s(T0)}, 6144
    v_add_u32 v6, {s(T0)}, {v(v16)}
    s_cmp_eq_u32 {s(sMG)}, 0
    s_cbranch_scc1 L_red0''')
    def red_write(o0):
        for t in range(2):
            o = o0 + 16*t
            a(f'ds_write_b128 v1, {v(o,4)} offset:{3072*t}\nds_write_b128 v1, {v(o+4,4)} offset:{3072*t+1024}\nds_write_b96 v1, {v(o+8,3)} offset:{3072*t+2048}')
    red_write(Ob)
    for t in range(2):
        for i in range(0, 12, 2): a(f'v_pk_mov_b32 {v(Ob+16*t+i,2)}, {v(Ob+32+16*t+i,2)}, {v(Ob+32+16*t+i,2)} op_sel:[0,1]')
    a('s_branch L_red1')
    a.label('L_red0')
    red_write(Ob + 32)
    a.label('L_red1')
    a('s_waitcnt lgkmcnt(0)\ns_barrier')
    a(f'ds_read_b32 v7, {v(vCnt)} offset:{C_BAD}')
    for t in range(2):
        o = Ob + 32 + 16*t
        a(f'ds_read_b128 {v(o,4)}, v6 offset:{3072*t}\nds_read_b128 {v(o+4,4)}, v6 offset:{3072*t+1024}\nds_read_b96 {v(o+8,3)}, v6 offset:{3072*t+2048}')
    a(f's_waitcnt lgkmcnt(6)\nv_readfirstlane_b32 {s(T0)}, v7\ns_and_b32 {s(T0)}, {s(T0)}, {s(sChk)}\ns_cmp_lg_u32 {s(T0)}, 0\ns_cbranch_scc1 L_fallback')
    a(f'''s_lshl_b32 {s(T0)}, {s(sQB)}, 3
    s_lshl_b32 {s(T1)}, {s(sTH)}, 2
    s_add_u32 {s(T0)}, {s(T0)}, {s(T1)}
    s_lshl_b32 {s(T1)}, {s(sMG)}, 1
    s_add_u32 {s(T0)}, {s(T0)}, {s(T1)}''')
    o_publish(a, [Ob, Ob + 16], [Ob + 32, Ob + 48], sH, OBM, OBL, True)
    a.stamp(9)
    flag_addr(a, T1, sQB, sH, 5, FL4)
    final_prep(a)
    a('s_waitcnt vmcnt(0)')
    last_signals(a, 2, C_F4, 4, T1)
    a(f'''s_cmp_lg_u32 {s(sWave)}, 0
    s_cbranch_scc1 L_final
    v_and_b32 v1, 31, v0
    s_lshr_b32 {s(T0)}, {s(sOT)}, 2
    s_lshl_b32 {s(T0)}, {s(T0)}, 5
    v_add_u32 v3, {s(T0)}, v1
    v_lshlrev_b32 v3, 7, v3
    v_add_u32 v3, {FL4:#x}, v3''')
    poll_flags(a, 3, 2)
    a('s_branch L_final')

    a.label('L_fallback')
    a.c('the stand-in was unsafe somewhere in this workgroup: redo with the true row max')
    a(f's_waitcnt lgkmcnt(0)\ns_mov_b32 {s(sChk)}, 0')
    for t in range(4): a(f'v_mov_b32 {v(M+t)}, 0xff800000')
    a(f's_mov_b32 {s(sCur)}, {s(sLo)}')
    a.label('L_maxloop')
    for x in kv_loads(0, sCur)[:2]: a(x)
    a('s_waitcnt vmcnt(0)')
    for qp in range(2): a(qk(Sb + 32*qp, 0, qp)[0])
    a.nop(18)
    for qp in range(2): a(qk(Sb + 32*qp, 0, qp)[1]); a(qk(Sb + 32*qp, 0, qp)[2])
    a.nop(12)
    for t in range(4):
        for i in range(0, 16, 2): a(f'v_max3_f32 {v(M+t)}, {v(Sb+16*t+i)}, {v(Sb+16*t+i+1)}, {v(M+t)}')
    a(f's_add_u32 {s(sCur)}, {s(sCur)}, {REC}\ns_cmp_lg_u32 {s(sCur)}, {s(sHi)}\ns_cbranch_scc1 L_maxloop')
    for t in range(4): a(f'v_mov_b32 {v(Sb+t)}, {v(M+t)}')
    a.nop(2)
    for t in range(4): a(f'v_permlane32_swap_b32 {v(Sb+t)}, {v(M+t)}')
    a.nop(1)
    for t in range(4): a(f'v_max_f32 {v(M+t)}, {v(M+t)}, {v(Sb+t)}')
    a(f'''s_lshl_b32 {s(T0)}, {s(sWave)}, 10
    s_add_u32 {s(T0)}, {s(T0)}, 24576
    v_add_u32 v1, {s(T0)}, {v(v16)}
    v_xor_b32 v6, 2048, v1
    ds_write_b128 v1, {v(M,4)}
    s_waitcnt lgkmcnt(0)
    s_barrier
    ds_read_b128 {v(Sb,4)}, v6
    s_waitcnt lgkmcnt(0)''')
    for t in range(4): a(f'v_max_f32 {v(M+t)}, {v(M+t)}, {v(Sb+t)}')
    start_groups(); attn_init()
    attn_loop('L_attn2', True)
    a('s_waitcnt vmcnt(0)')
    a.nop(12)
    a('s_branch L_reduce')

def o_publish(a, O, P, shead, M_, L_, add):
    a(f'''s_lshl_b32 {s(T0)}, {s(T0)}, 5
    s_add_u32 {s(T0)}, {s(T0)}, {s(shead)}
    s_lshl_b32 {s(T2)}, {s(T0)}, 10
    s_add_u32 {s(T2)}, {s(T2)}, {M_:#x}
    s_add_u32 {s(T3)}, {s(T2)}, 0x8000
    s_lshl_b32 {s(T4)}, {s(T0)}, 7
    s_add_u32 {s(T4)}, {s(T4)}, {L_:#x}
    s_add_u32 {s(T5)}, {s(T4)}, 0x1000''')
    for t in range(2):
        o, p = O[t], P[t]
        if add:
            a(f's_waitcnt lgkmcnt({3 - 3*t})\nv_add_f32 {v(o+10)}, {v(o+10)}, {v(p+10)}')
            a(f'v_pk_add_f32 {v(o,2)}, {v(o,2)}, {v(p,2)}\nv_rcp_f32 {v(o+10)}, {v(o+10)}')
            for i in range(2, 10, 2): a(f'v_pk_add_f32 {v(o+i,2)}, {v(o+i,2)}, {v(p+i,2)}')
        else:
            a(f'v_add_f32 {v(o+10)}, {f2u(1e-6):#x}, {v(o+10)}\nv_rcp_f32 {v(o+10)}, {v(o+10)}\ns_nop 0')
        for i in range(0, 10, 2): a(f'v_pk_mul_f32 {v(o+i,2)}, {v(o+i,2)}, {v(o+10,2)} op_sel_hi:[1,0]')
        cvt8(a, o, p)
        a(f'v_cvt_pk_bf16_f32 {v(p+4)}, {v(o+8)}, {v(o+9)}')
        a(f'buffer_store_dwordx4 {v(p,4)}, {v(v16)}, {srd(sWS)}, {s(T2+t)} offen sc1')
        a(f's_mov_b32 exec_hi, 0\nbuffer_store_dword {v(p+4)}, {v(vQL)}, {srd(sWS)}, {s(T4+t)} offen sc1\ns_mov_b32 exec_hi, -1')

FW, FO, FA = 16, 128, 168
vFm, vFm2, vFl, vFl2, vFol = 8, 9, 10, 11, 13
def final_prep(a):
    a(f's_lshr_b32 {s(T6)}, {s(sWave)}, 1\ns_mul_i32 {s(T6)}, {s(T6)}, {WBLK}\ns_add_u32 {s(T6)}, {s(T6)}, {SLOT_B[0]}')
    op_addr(a, vFm, vFm2, vFl, vFl2, 2, T6)
    op_read_w(a, FW, vFm, vFm2, vFl, vFl2)

def final(a):
    a.label('L_final')
    a.c('================= all waves: out projection of B =================')
    sM, sM2, sL = T2, T3, T4
    a(f'''v_and_b32 v1, 31, v0
    v_lshrrev_b32 v2, 5, v0
    v_lshlrev_b32 v3, 2, v1
    v_lshl_add_u32 {v(vFol)}, v2, 9, v3
    s_lshl_b32 {s(T1)}, {s(sOT)}, 1
    s_add_u32 {s(T5)}, {s(sTH)}, {s(T1)}
    s_lshl_b32 {s(T0)}, {s(T5)}, 5
    s_lshr_b32 {s(T6)}, {s(sWave)}, 1
    s_lshl_b32 {s(T1)}, {s(T6)}, 3
    s_add_u32 {s(T0)}, {s(T0)}, {s(T1)}
    s_lshl_b32 {s(sM)}, {s(T0)}, 10
    s_add_u32 {s(sM)}, {s(sM)}, {OBM:#x}
    s_add_u32 {s(sM2)}, {s(sM)}, 4096
    s_lshl_b32 {s(sL)}, {s(T0)}, 7
    s_add_u32 {s(sL)}, {s(sL)}, {OBL:#x}
    s_waitcnt lgkmcnt(0)
    s_barrier''')
    a.stamp(10)
    op_load_o(a, FO, v16, vFol, sM, sM2, sL)
    a(f'''s_mul_i32 {s(T0)}, {s(sWave)}, 9216
    v_add_u32 v4, {s(T0)}, {v(v16)}
    s_mul_i32 {s(T0)}, {s(sTH)}, 9216
    s_lshl_b32 {s(T1)}, {s(T6)}, 11
    s_add_u32 {s(T1)}, {s(T1)}, {s(T0)}
    v_add_u32 v5, {s(T1)}, {v(v16)}
    v_add_u32 v6, {s(T0)}, {v(v16)}
    v_mul_u32_u24 v7, 2304, v1
    v_lshl_add_u32 v14, v2, 3, v7
    v_lshl_add_u32 v7, v2, 4, v7
    s_mul_i32 {s(T0)}, {s(T5)}, {32*2304}
    s_mul_i32 {s(T1)}, {s(sOC)}, 144
    s_add_u32 {s(T0)}, {s(T0)}, {s(T1)}
    s_add_u32 {s(T7)}, {s(T0)}, 1152
    s_lshl_b32 {s(T1)}, {s(T6)}, 5
    s_add_u32 {s(T5)}, {s(T7)}, {s(T1)}''')
    op_mfma(a, FA, FW, FO, True)
    a.nop(10)
    for q in range(9): a(f'ds_write_b128 v4, {v(FA+4*q,4)} offset:{1024*q}')
    a('s_waitcnt lgkmcnt(0)\ns_barrier')
    a.stamp(11)
    R = 16
    for k in range(4):
        for q in range(2): a(f'ds_read_b128 {v(R+8*k+4*q,4)}, v5 offset:{18432*k + 1024*q}')
    a(f's_cmp_lg_u32 {s(T6)}, 0\ns_cbranch_scc1 L_fin_a')
    for k in range(4): a(f'ds_read_b128 {v(R+32+4*k,4)}, v6 offset:{18432*k + 8192}')
    a('s_waitcnt lgkmcnt(0)')
    for k in range(1, 4):
        for i in range(2): a(f'v_pk_add_f32 {v(R+32+2*i,2)}, {v(R+32+2*i,2)}, {v(R+32+4*k+2*i,2)}')
    a(f'v_cvt_pk_bf16_f32 {v(R+40)}, {v(R+32)}, {v(R+33)}\nv_cvt_pk_bf16_f32 {v(R+41)}, {v(R+34)}, {v(R+35)}')
    a(f'buffer_store_dwordx2 {v(R+40,2)}, v14, {srd(sOUT)}, {s(T7)} offen offset:128{opol("osb")}')
    a.label('L_fin_a')
    a('s_waitcnt lgkmcnt(0)')
    for k in range(1, 4):
        for i in range(4): a(f'v_pk_add_f32 {v(R+2*i,2)}, {v(R+2*i,2)}, {v(R+8*k+2*i,2)}')
    for i in range(4): a(f'v_cvt_pk_bf16_f32 {v(R+8+i)}, {v(R+2*i)}, {v(R+2*i+1)}')
    a(f's_nop 1\nv_permlane32_swap_b32 {v(R+8)}, {v(R+10)}\nv_permlane32_swap_b32 {v(R+9)}, {v(R+11)}')
    a(f'buffer_store_dwordx4 {v(R+8,4)}, v7, {srd(sOUT)}, {s(T5)} offen{opol("osb")}')
    if OPT.get('padto'):
        a.label('L_pad')
        a(f's_memrealtime s[94:95]\ns_waitcnt lgkmcnt(0)\ns_sub_u32 s94, s94, s80\ns_cmp_lt_u32 s94, {OPT["padto"]}\ns_cbranch_scc1 L_pad')
    if a.diag:
        a('s_waitcnt vmcnt(0)')
        a.stamp(12)
        a.label('L_dump')
        a(f's_lshl_b32 {s(T0)}, s2, 3\ns_add_u32 {s(T0)}, {s(T0)}, {s(sWave)}\ns_lshl_b32 {s(T0)}, {s(T0)}, 7\ns_add_u32 {s(T0)}, {s(T0)}, {STAMPS:#x}')
        for k in range(16): a(f'v_mov_b32 {v(16+k)}, {s(SSTAMP+k)}')
        a(f's_lshl_b32 {s(T1)}, {s(T0)}, 1\ns_sub_u32 {s(T1)}, {s(T1)}, {STAMPS - 0x80000:#x}\nbuffer_store_dword v254, {v(vQL)}, {srd(sWS)}, {s(T1)} offen')
        a('v_mov_b32 v1, 0\ns_mov_b64 exec, 1')
        for k in range(4): a(f'buffer_store_dwordx4 {v(16+4*k,4)}, v1, {srd(sWS)}, {s(T0)} offen offset:{16*k}')
    a.label('L_end')
    a('s_endpgm')

def a_chain(a, opt):
    WPH, WL, WLq, WLk = 24, 28, 30, 32
    Fq, Fk, Fl, Fv = [36, 40], [44, 48], [52, 54], [56, 64]
    a.label('L_achain')
    a.c('================= waves 4-7: publish A qkv, feature maps =================')
    a(f'''v_and_b32 v1, 31, v0
    v_lshrrev_b32 v2, 5, v0
    v_cmp_eq_u32 vcc, 20, v1
    v_mov_b32 v3, 17
    v_mov_b32 v4, {OOB:#x}
    v_cndmask_b32 v3, v1, v3, vcc
    v_cmp_ge_u32 {s(T0,2)}, 16, v1
    s_or_b64 vcc, vcc, {s(T0,2)}
    v_lshlrev_b32 v3, 1, v3
    s_mul_i32 {s(T2)}, {s(sHA)}, 648
    v_cndmask_b32 v3, v4, v3, vcc
    v_mul_u32_u24 v5, 144, v2
    v_add_u32 v4, v3, v5
    s_and_b32 {s(T0)}, {s(sHA)}, 1
    s_mul_i32 {s(T1)}, {s(T0)}, 72
    s_add_u32 {s(T3)}, {s(T2)}, {s(T1)}
    s_mul_i32 {s(T1)}, {s(T0)}, 576
    s_sub_u32 {s(T2)}, {s(T2)}, {s(T1)}
    s_add_u32 {s(T2)}, {s(T2)}, 576''')
    for e in range(8):
        a(f'buffer_load_ushort {v(8 + e)}, v4, {srd(sPHI)}, {s(T3)} offen offset:{((e & 3) + 8*(e >> 2))*36}')
    a(f'buffer_load_ushort v34, v3, {srd(sPHI)}, {s(T2)} offen\nbuffer_load_ushort v35, v3, {srd(sPHI)}, {s(T2)} offen offset:36')
    for k in range(3):
        if k < 2: a(f's_add_u32 {s(T0)}, {s(sW4)}, {4*k}\ns_lshl_b32 {s(T0)}, {s(T0)}, 6\nv_add_u32 v3, {s(T0)}, v0')
        else: a('v_add_u32 v3, 512, v0')
        a(f'''v_mul_u32_u24 v4, 7282, v3
        v_lshrrev_b32 v4, 16, v4
        v_mul_u32_u24 v5, 9, v4
        v_sub_u32 v5, v3, v5
        v_mul_u32_u24 v6, 1152, v4
        v_lshl_add_u32 {v(vWO+k)}, v5, 4, v6''')
    a(f'''v_min_u32 v3, 2, v0
    v_lshlrev_b32 v3, 5, v3
    v_add_u32 v3, {s(sHA)}, v3
    v_mul_u32_u24 v3, 43, v3
    v_lshrrev_b32 v3, 8, v3
    s_lshl_b32 {s(T0)}, {s(sRB)}, 1
    s_add_u32 {s(T0)}, {s(T0)}, {s(sMG)}
    v_lshl_add_u32 v3, v3, 4, {s(T0)}
    v_lshlrev_b32 v3, 7, v3
    v_add_u32 {v(vPoll)}, {FL1A:#x}, v3''')
    a(f'''s_lshl_b32 {s(T6)}, {s(sRB)}, 3
    s_lshl_b32 {s(T1)}, {s(sW4)}, 1
    s_add_u32 {s(T6)}, {s(T6)}, {s(T1)}
    s_lshl_b32 {s(T1)}, {s(sHA)}, 6
    s_add_u32 {s(T0)}, {s(T6)}, {s(T1)}
    s_lshl_b32 {s(T4)}, {s(T0)}, 10
    s_add_u32 {s(T4)}, {s(T4)}, {QM + AOFF:#x}
    s_mul_i32 {s(T5)}, {s(T0)}, {REC}
    s_add_u32 {s(T5)}, {s(T5)}, {KV + AOFF:#x}
    s_lshl_b32 {s(T0)}, {s(T0)}, 7
    s_add_u32 {s(T0)}, {s(T0)}, {QL + AOFF:#x}
    s_add_u32 {s(T1)}, {s(T5)}, 2304
    v_mov_b32 v3, {s(T0)}
    v_mov_b32 v4, {s(T1)}
    v_mov_b32 v5, 128
    v_mov_b32 v6, {REC}
    v_cmp_gt_u32 vcc, 32, v0
    v_mov_b32 {v(WLq+1)}, 0
    v_mov_b32 {v(WLk+1)}, 0
    v_cndmask_b32 v3, v4, v3, vcc
    v_cndmask_b32 v5, v6, v5, vcc
    v_lshl_add_u32 v7, v1, 2, v3
    v_add_u32 v6, v7, v5
    v_mov_b32 {v(Fl[0]+1)}, 0
    v_mov_b32 {v(Fl[1]+1)}, 0''')
    flag_addr(a, T1, sCT, sRT, 4, FL1A)
    a('s_waitcnt vmcnt(0)')
    last_signals(a, 2, C_F1A, 4, T1)
    for i in range(4): a(f'v_lshl_or_b32 {v(WPH + i)}, {v(9 + 2*i)}, 16, {v(8 + 2*i)}')
    a(f'v_lshl_or_b32 {v(WL)}, v35, 16, v34\nv_cmp_gt_u32 vcc, 32, v0\ns_nop 1\nv_cndmask_b32 {v(WLq)}, {v(vZero)}, {v(WL)}, vcc\nv_cndmask_b32 {v(WLk)}, {v(WL)}, {v(vZero)}, vcc')
    a.stamp(5)
    poll_flags(a, vPoll, 2, sl=4)
    a.stamp(6)
    for tt in range(2):
        a(f'buffer_load_dwordx4 {v(Fk[tt],4)}, {v(v16)}, {srd(sWS)}, {s(T5)} offen offset:{REC*tt} sc1')
        a(f'buffer_load_dword {v(Fl[tt])}, {v(7 - tt)}, {srd(sWS)}, 0 offen sc1')
    for tt in range(2): a(f'buffer_load_dwordx4 {v(Fq[tt],4)}, {v(v16)}, {srd(sWS)}, {s(T4)} offen offset:{1024*tt} sc1')
    for tt in range(2):
        for f in range(2): a(f'buffer_load_dwordx4 {v(Fv[tt]+4*f,4)}, {v(vVf+f)}, {srd(sWS)}, {s(T5)} offen offset:{REC*tt} sc1')
    vPh, vPr = 8, 9
    lds_wait(a, 2, C_F1A, 4)
    a(f'''s_mul_i32 {s(T0)}, {s(sW4)}, 5120
    s_add_u32 {s(T0)}, {s(T0)}, {XA}
    v_lshrrev_b32 v2, 5, v0
    v_mul_u32_u24 v3, 80, v1
    v_lshl_add_u32 v3, v2, 3, v3
    v_add_u32 {v(vPh)}, {s(T0)}, v3
    v_bfe_u32 v3, v0, 2, 2
    v_lshl_add_u32 v5, v2, 2, v3
    v_mul_u32_u24 v5, 80, v5
    v_add_u32 v5, {s(T0)}, v5
    v_and_b32 v4, 3, v0
    v_lshlrev_b32 v6, 3, v4
    v_and_b32 v3, 1, v0
    v_lshlrev_b32 v3, 3, v3
    v_add_u32 v3, 64, v3
    v_bfe_u32 v4, v0, 4, 1
    v_cmp_eq_u32 vcc, 0, v4
    v_add_u32 {v(vPr+1)}, v5, v6
    s_mov_b32 {s(T2)}, {f2u(LOG2E):#x}
    v_cndmask_b32 v6, v3, v6, vcc
    s_mov_b32 {s(T3)}, {f2u(LOG2E):#x}
    v_add_u32 {v(vPr)}, v5, v6''')
    D = {('k', 0): 80, ('k', 1): 96, ('q', 0): 112, ('q', 1): 128}
    a('s_waitcnt vmcnt(6)')
    for tt in range(2): mfma(a, D[('k', tt)], WLk, Fl[tt], None, '8')
    for tt in range(2): mfma(a, D[('q', tt)], WLq, Fl[tt], None, '8')
    a.nop(7)
    for tt in range(2): mfma(a, D[('k', tt)], WPH, Fk[tt], D[('k', tt)])
    a('s_waitcnt vmcnt(4)')
    for tt in range(2): mfma(a, D[('q', tt)], WPH, Fq[tt], D[('q', tt)])
    a.nop(8)
    EP, EM = 144, 156
    PH = {('q', 0): 204, ('q', 1): 214, ('k', 0): 168, ('k', 1): 178}
    def softmax2(x, P):
        a(f'''v_max3_f32 v2, {v(x)}, {v(x+1)}, {v(x+2)}
        v_max3_f32 v4, -{v(x)}, -{v(x+1)}, -{v(x+2)}
        v_max3_f32 v2, v2, {v(x+3)}, {v(x+4)}
        v_max3_f32 v4, v4, -{v(x+3)}, -{v(x+4)}
        v_max3_f32 v2, v2, {v(x+5)}, {v(x+6)}
        v_max3_f32 v4, v4, -{v(x+5)}, -{v(x+6)}
        v_max3_f32 v2, v2, {v(x+7)}, {v(x+8)}
        v_max3_f32 v4, v4, -{v(x+7)}, -{v(x+8)}
        s_nop 1
        v_permlane32_swap_b32 v2, v4
        v_max_f32 v2, v2, v4
        v_mul_f32 v2, {s(T2)}, v2
        v_mov_b32 v4, v2
        s_nop 1
        v_permlane32_swap_b32 v2, v4''')
        for i in range(0, 8, 2):
            a(f'v_pk_fma_f32 {v(EP+i,2)}, {v(x+i,2)}, {s(T2,2)}, v[2:3] op_sel_hi:[1,1,0] neg_lo:[0,0,1] neg_hi:[0,0,1]')
        a(f'v_fma_f32 {v(EP+8)}, {v(x+8)}, {s(T2)}, -v2')
        for i in range(0, 8, 2):
            a(f'v_pk_fma_f32 {v(EM+i,2)}, {v(x+i,2)}, {s(T2,2)}, v[4:5] op_sel_hi:[1,1,0] neg_lo:[1,0,1] neg_hi:[1,0,1]')
        a(f'v_fma_f32 {v(EM+8)}, -{v(x+8)}, {s(T2)}, -v4')
        for E in (EP, EM):
            for i in range(9): a(f'v_exp_f32 {v(E+i)}, {v(E+i)}')
        a(f'''v_pk_add_f32 v[2:3], {v(EP,2)}, {v(EP+2,2)}
        v_pk_add_f32 v[4:5], {v(EM,2)}, {v(EM+2,2)}
        v_pk_add_f32 v[2:3], v[2:3], {v(EP+4,2)}
        v_pk_add_f32 v[4:5], v[4:5], {v(EM+4,2)}
        v_pk_add_f32 v[2:3], v[2:3], {v(EP+6,2)}
        v_pk_add_f32 v[4:5], v[4:5], {v(EM+6,2)}
        v_add_f32 v2, v2, {v(EP+8)}
        v_add_f32 v4, v4, {v(EM+8)}
        v_add_f32 v2, v2, v3
        v_add_f32 v4, v4, v5
        s_nop 1
        v_permlane32_swap_b32 v2, v4
        v_add_f32 v2, v2, v4
        v_rcp_f32 v2, v2
        s_nop 0
        v_mov_b32 v4, v2
        s_nop 1
        v_permlane32_swap_b32 v2, v4''')
        for E, t in ((EP, 2), (EM, 4)):
            for i in range(0, 8, 2): a(f'v_pk_mul_f32 {v(E+i,2)}, {v(E+i,2)}, {v(t,2)} op_sel_hi:[1,0]')
            a(f'v_mul_f32 {v(E+8)}, {v(E+8)}, {v(t)}')
        cvt8(a, EP, P); cvt8(a, EM, P+4)
        a(f'v_cvt_pk_bf16_f32 {v(P+8)}, {v(EP+8)}, {v(EM+8)}')
    for tt in range(2):
        P = PH[('k', tt)]
        softmax2(D[('k', tt)], P)
        o = 2560*tt
        a(f'''ds_write_b64 {v(vPh)}, {v(P,2)} offset:{o}
        ds_write_b64 {v(vPh)}, {v(P+2,2)} offset:{o+16}
        ds_write_b64 {v(vPh)}, {v(P+4,2)} offset:{o+32}
        ds_write_b64 {v(vPh)}, {v(P+6,2)} offset:{o+48}
        ds_write_b32 {v(vPh)}, {v(P+8)} offset:{o+64}''')
    a.c('kv partial of this wave: phi_k^T (transposed through LDS) x [v | 1]')
    KA = 144; KD = [80, 96]
    a('s_waitcnt lgkmcnt(0)')
    for k in range(4):
        for sg in range(2):
            for j in range(2):
                a(f'ds_read_b64_tr_b16 {v(KA+8*k+4*sg+2*j,2)}, {v(vPr+sg)} offset:{(16*k+8*j)*80 + 32*sg}')
    a(f'''s_mul_i32 {s(T0)}, {s(sW4)}, 5120
    v_add_u32 v6, {s(T0)}, {v(v16)}
    v_lshlrev_b32 v1, 3, v0
    v_add_u32 v7, {s(T0)}, v1
    s_waitcnt vmcnt(0) lgkmcnt(0)''')
    for k in range(4):
        for sg in range(2): mfma(a, KD[sg], KA+8*k+4*sg, Fv[0]+4*k, None if k == 0 else KD[sg])
    softmax2(D[('q', 0)], PH[('q', 0)])
    a(f'''ds_write_b128 v6, {v(KD[0],4)} offset:{XA}
    ds_write_b128 v6, {v(KD[0]+4,4)} offset:{XA+1024}
    ds_write_b64 v7, {v(KD[0]+8,2)} offset:{XA+2048}
    ds_write_b128 v6, {v(KD[1],4)} offset:{XA+2560}
    ds_write_b128 v6, {v(KD[1]+4,4)} offset:{XA+3584}
    s_waitcnt lgkmcnt(0)''')
    lds_arrive(a, C_KVX)
    a(f'''s_mul_i32 {s(T7)}, {s(sTH)}, 2560
    s_lshl_b32 {s(T1)}, {s(sMG)}, 10
    s_add_u32 {s(T7)}, {s(T7)}, {s(T1)}
    v_add_u32 v6, {s(T7)}, {v(v16)}
    s_lshl_b32 {s(T0)}, {s(sHA)}, 3
    s_add_u32 {s(T1)}, {s(T0)}, {s(sRB)}
    s_mul_i32 {s(T4)}, {s(T1)}, {KVPS}
    s_add_u32 {s(T4)}, {s(T4)}, {KVP:#x}
    s_add_u32 {s(T5)}, {s(T4)}, {s(T7)}
    s_lshl_b32 {s(T1)}, {s(T1)}, 7
    s_add_u32 {s(T1)}, {s(T1)}, {FL2:#x}''')
    lds_wait(a, 2, C_KVX, 4)
    R = 80
    for w in range(4): a(f'ds_read_b128 {v(R+4*w,4)}, v6 offset:{XA + 5120*w}')
    a(f's_cmp_lg_u32 {s(sW4)}, 3\ns_cbranch_scc1 L_kvx')
    for w in range(4): a(f'ds_read_b64 {v(R+16+2*w,2)}, v1 offset:{XA + 5120*w + 2048}')
    a('s_waitcnt lgkmcnt(0)')
    for w in range(1, 4): a(f'v_pk_add_f32 {v(R+16,2)}, {v(R+16,2)}, {v(R+16+2*w,2)}')
    a(f'buffer_store_dwordx2 {v(R+16,2)}, v1, {srd(sWS)}, {s(T4)} offen offset:2048 sc1')
    a.label('L_kvx')
    a('s_waitcnt lgkmcnt(0)')
    for w in range(1, 4):
        for k in range(2): a(f'v_pk_add_f32 {v(R+2*k,2)}, {v(R+2*k,2)}, {v(R+4*w+2*k,2)}')
    a(f'buffer_store_dwordx4 {v(R,4)}, {v(v16)}, {srd(sWS)}, {s(T5)} offen sc1')
    softmax2(D[('q', 1)], PH[('q', 1)])
    for tt in range(2): a(f'v_mov_b32 {v(PH[("q", tt)]+9)}, 0')
    a('s_waitcnt vmcnt(0)')
    last_signals(a, 2, C_F2, 4, T1)
    a.stamp(7)
    a.c('================= waves 4-7: kv total, numerator / denominator =================')
    a(f'''v_and_b32 v3, 7, v0
    s_lshl_b32 {s(T0)}, {s(sHA)}, 3
    v_add_u32 v3, {s(T0)}, v3
    v_lshlrev_b32 v3, 7, v3
    v_add_u32 v3, {FL2:#x}, v3
    s_mul_i32 {s(T4)}, {s(T0)}, {KVPS}
    s_add_u32 {s(T4)}, {s(T4)}, {KVP:#x}
    s_add_u32 {s(T5)}, {s(T4)}, {s(T7)}
    s_lshl_b32 {s(T7)}, {s(sTH)}, 10
    s_lshl_b32 {s(T0)}, {s(sMG)}, 3
    s_add_u32 {s(T7)}, {s(T7)}, {s(T0)}
    s_add_u32 {s(T7)}, {s(T7)}, {KVF}''')
    for kq in (0, 2, 1, 3): issue_blk(a, sAWO, kq, SLOT_A[kq])
    for kq in (0, 1): issue_blk(a, sBWO, kq, SLOT_B[kq])
    poll_flags(a, 3, 2, sl=4)
    for i in range(8):
        a(f'buffer_load_dwordx4 {v(R+4*i,4)}, {v(v16)}, {srd(sWS)}, {s(T5)} offen sc1')
        if i < 7: a(f's_add_u32 {s(T5)}, {s(T5)}, {KVPS}')
    a(f'v_add_u32 v3, {s(T7)}, {v(v16)}\nv_add_u32 v6, {KVF + 2048}, v1\ns_cmp_lg_u32 {s(sW4)}, 3\ns_cbranch_scc1 L_kvs')
    for i in range(8):
        a(f'buffer_load_dwordx2 {v(R+32+2*i,2)}, v1, {srd(sWS)}, {s(T4)} offen offset:2048 sc1')
        if i < 7: a(f's_add_u32 {s(T4)}, {s(T4)}, {KVPS}')
    a('s_waitcnt vmcnt(0)')
    for i in range(1, 8): a(f'v_pk_add_f32 {v(R+32,2)}, {v(R+32,2)}, {v(R+32+2*i,2)}')
    a(f'v_cvt_pk_bf16_f32 v4, {v(R+32)}, {v(R+33)}\nv_mov_b32 v5, 0\nds_write_b64 v6, v[4:5]')
    a.label('L_kvs')
    a('s_waitcnt vmcnt(0)')
    for i in range(1, 8):
        for k in range(2): a(f'v_pk_add_f32 {v(R+2*k,2)}, {v(R+2*k,2)}, {v(R+4*i+2*k,2)}')
    a(f'v_cvt_pk_bf16_f32 v10, {v(R)}, {v(R+1)}\nv_cvt_pk_bf16_f32 v11, {v(R+2)}, {v(R+3)}\nds_write_b64 v3, v[10:11]\ns_waitcnt lgkmcnt(0)')
    lds_arrive(a, C_KVF)
    lds_wait(a, 2, C_KVF, 4)
    KF = 144
    a(f'''v_add_u32 v3, {KVF}, {v(v16)}
    ds_read_b64 {v(KF+8,2)}, v6
    ds_read_b128 {v(KF,4)}, v3
    ds_read_b128 {v(KF+4,4)}, v3 offset:1024
    s_mov_b32 {s(T0)}, {s(T6)}
    s_waitcnt lgkmcnt(0)''')
    ND = [80, 96]
    for tt in range(2): mfma(a, ND[tt], KF+8, PH[('q', tt)]+8, None, '8')
    a.nop(9)
    for tt in range(2): mfma(a, ND[tt], KF, PH[('q', tt)], ND[tt])
    for tt in range(2): mfma(a, ND[tt], KF+4, PH[('q', tt)]+4, ND[tt])
    a.nop(3)
    o_publish(a, ND, [112, 120], sHA, OAM, OAL, False)
    flag_addr(a, T1, sRB, sHA, 5, FL3)
    a('s_waitcnt vmcnt(0)')
    last_signals(a, 2, C_F3, 4, T1)
    a.stamp(8)
    a.c('================= waves 4-7: out projection of A (operands first, MFMAs after the attention) =================')
    W, O1, O2, AC = 16, 124, 160, 196
    X = (8, 9, 10, 11); Y = (12, 13, 14, 15)
    sM, sM2, sL = T2, T3, T4
    a(f's_mul_i32 {s(T6)}, {s(sMG)}, {WBLK}\ns_add_u32 {s(T6)}, {s(T6)}, {SLOT_A[0]}')
    op_addr(a, *X, 2, T6)
    op_read_w(a, W, *X)
    for i in range(4): a(f'v_subrev_u32 {v(Y[i])}, {4*WBLK}, {v(X[i])}')
    a(f'''v_and_b32 v1, 31, v0
    v_lshrrev_b32 v2, 5, v0
    v_lshlrev_b32 v3, 2, v1
    v_lshl_add_u32 v5, v2, 9, v3
    s_lshr_b32 {s(T0)}, {s(sOT)}, 2
    s_lshl_b32 {s(T0)}, {s(T0)}, 5
    v_add_u32 v3, {s(T0)}, v1
    v_lshlrev_b32 v3, 7, v3
    v_add_u32 v3, {FL3:#x}, v3
    s_lshl_b32 {s(T1)}, {s(sOT)}, 1
    s_add_u32 {s(T5)}, {s(sTH)}, {s(T1)}
    s_lshl_b32 {s(T0)}, {s(T5)}, 5
    s_lshl_b32 {s(T1)}, {s(sMG)}, 4
    s_add_u32 {s(T7)}, {s(T0)}, {s(T1)}
    s_lshl_b32 {s(sM)}, {s(T7)}, 10
    s_add_u32 {s(sM)}, {s(sM)}, {OAM:#x}
    s_add_u32 {s(sM2)}, {s(sM)}, 4096
    s_lshl_b32 {s(sL)}, {s(T7)}, 7
    s_add_u32 {s(sL)}, {s(sL)}, {OAL:#x}
    s_waitcnt lgkmcnt(0)''')
    lds_arrive(a, C_W1)
    lds_wait(a, 4, C_W1, 4)
    for kq in (2, 3): issue_blk(a, sBWO, kq, SLOT_B[kq])
    poll_flags(a, 3, 4, sl=4)
    op_load_o(a, O1, v16, 5, sM, sM2, sL, OPT.get('thr', 1))
    a(f's_add_u32 {s(sM)}, {s(sM)}, 8192\ns_add_u32 {s(sM2)}, {s(sM2)}, 8192\ns_add_u32 {s(sL)}, {s(sL)}, 1024')
    op_load_o(a, O2, v16, 5, sM, sM2, sL, OPT.get('thr', 1))
    a('s_waitcnt vmcnt(0)')
    a.stamp(9)
    a('s_barrier')
    a(f'ds_read_b32 v7, {v(vCnt)} offset:{C_BAD}\ns_waitcnt lgkmcnt(0)\nv_readfirstlane_b32 {s(T0)}, v7\ns_cmp_eq_u32 {s(T0)}, 0\ns_cbranch_scc1 L_l_ok')
    a('s_barrier\ns_barrier')
    a.label('L_l_ok')
    a(f's_setprio {opt.get("prio2", 0)}')
    for ps, (O, nxt) in enumerate(((O1, Y), (O2, X))):
        for st in range(9):
            if ps == 1 and st == 0: a('s_waitcnt lgkmcnt(6)')
            if ps == 1 and st == 8: a('s_waitcnt lgkmcnt(12)')
            for T in range(3):
                mfma(a, AC + 16*T, W + 12*st + 4*T, O + 4*st, None if (ps == 0 and st == 0) else AC + 16*T)
            if st: a(op_w_reads(W, *nxt, st - 1))
        a(op_w_reads(W, *nxt, 8))
    lds_wait(a, 3, C_F4, 4)
    a(f'''s_mul_i32 {s(T0)}, {s(sW4)}, 5120
    s_add_u32 {s(T0)}, {s(T0)}, {XA}
    v_add_u32 v4, {s(T0)}, {v(v16)}
    s_xor_b32 {s(T0)}, {s(sW4)}, 2
    s_mul_i32 {s(T0)}, {s(T0)}, 5120
    s_add_u32 {s(T0)}, {s(T0)}, {XA}
    v_add_u32 v5, {s(T0)}, {v(v16)}
    v_mul_u32_u24 v7, 2304, v1
    v_lshl_add_u32 v6, v2, 3, v7
    v_lshl_add_u32 v7, v2, 4, v7
    s_mul_i32 {s(T0)}, {s(T5)}, {32*2304}
    s_mul_i32 {s(T1)}, {s(sOC)}, 144
    s_add_u32 {s(T7)}, {s(T0)}, {s(T1)}
    s_lshl_b32 {s(T1)}, {s(sMG)}, 6
    s_add_u32 {s(T5)}, {s(T7)}, {s(T1)}
    s_cmp_eq_u32 {s(sMG)}, 0
    s_cbranch_scc1 L_opa0''')
    for q in range(4): a(f'ds_write_b128 v4, {v(AC+4*q,4)} offset:{1024*q}')
    a(f'ds_write_b128 v4, {v(AC+32,4)} offset:4096')
    for i in range(0, 16, 2): a(f'v_pk_mov_b32 {v(AC+i,2)}, {v(AC+16+i,2)}, {v(AC+16+i,2)} op_sel:[0,1]')
    a('s_branch L_opa1')
    a.label('L_opa0')
    for q in range(4): a(f'ds_write_b128 v4, {v(AC+16+4*q,4)} offset:{1024*q}')
    a.label('L_opa1')
    a('s_waitcnt lgkmcnt(0)')
    lds_arrive(a, C_OPA)
    lds_wait(a, 3, C_OPA, 4)
    R = 124
    for q in range(5): a(f'ds_read_b128 {v(R+4*q,4)}, v5 offset:{1024*q}')
    a('s_waitcnt lgkmcnt(0)')
    for i in range(0, 16, 2): a(f'v_pk_add_f32 {v(AC+i,2)}, {v(AC+i,2)}, {v(R+i,2)}')
    for i in range(8): a(f'v_cvt_pk_bf16_f32 {v(R+24+i)}, {v(AC+2*i)}, {v(AC+2*i+1)}')
    a(f'''s_nop 1
    v_permlane32_swap_b32 {v(R+24)}, {v(R+26)}
    v_permlane32_swap_b32 {v(R+25)}, {v(R+27)}
    v_permlane32_swap_b32 {v(R+28)}, {v(R+30)}
    v_permlane32_swap_b32 {v(R+29)}, {v(R+31)}
    buffer_store_dwordx4 {v(R+24,4)}, v7, {srd(sOUT)}, {s(T5)} offen{opol("osa")}
    buffer_store_dwordx4 {v(R+28,4)}, v7, {srd(sOUT)}, {s(T5)} offen offset:32{opol("osa")}
    s_cmp_lg_u32 {s(sMG)}, 0
    s_cbranch_scc1 L_opa2
    v_pk_add_f32 {v(R+16,2)}, {v(R+16,2)}, {v(AC+32,2)}
    v_pk_add_f32 {v(R+18,2)}, {v(R+18,2)}, {v(AC+34,2)}
    v_cvt_pk_bf16_f32 {v(R+20)}, {v(R+16)}, {v(R+17)}
    v_cvt_pk_bf16_f32 {v(R+21)}, {v(R+18)}, {v(R+19)}
    buffer_store_dwordx2 {v(R+20,2)}, v6, {srd(sOUT)}, {s(T7)} offen offset:128{opol("osa")}''')
    a.label('L_opa2')

HEADER = '''; Fused hedgehog linear attention (A) + softmax MHA (B), one persistent launch of 256 workgroups.
; kernarg: A_x A_wqkv A_w_phi A_wo B_x B_wqkv B_wo out debug ws (8-byte pointers, in that order)
; @launch grid=(256,1,1) block=(512,1,1) lds=%d
.amdgcn_target "amdgcn-amd-amdhsa--gfx950"
.text
.globl %s_kernel
.p2align 8
.type %s_kernel,@function
%s_kernel:
''' % (LDS_BYTES, NAME, NAME, NAME)
FOOTER = '''.section .rodata,"a"
.p2align 6
.amdhsa_kernel %s_kernel
  .amdhsa_next_free_vgpr 256
  .amdhsa_next_free_sgpr 102
  .amdhsa_accum_offset 256
  .amdhsa_group_segment_fixed_size 0
  .amdhsa_kernarg_size 80
  .amdhsa_user_sgpr_count 2
  .amdhsa_user_sgpr_kernarg_segment_ptr 1
  .amdhsa_system_sgpr_workgroup_id_x 1
.end_amdhsa_kernel
''' % NAME

OPT = {}
def generate(diag=False, **opt):
    OPT.clear(); OPT.update(opt)
    a = Asm(diag)
    prologue(a, opt)
    gemm(a, opt)
    p_path(a, opt)
    a_chain(a, opt)
    final(a)
    body = a.text()
    bad = lint(body)
    for x in bad: print(f"HAZARD line {x[0]} -> {x[1]}: {x[2]} need {x[3]} have {x[4]}\n    {x[5]}\n    {x[6]}", file=sys.stderr)
    return HEADER + body + FOOTER, len(bad)

if __name__ == '__main__':
    import argparse
    ap = argparse.ArgumentParser()
    ap.add_argument('-o', default=f'cdna_kernels/{NAME}.s')
    ap.add_argument('--diag', action='store_true')
    ap.add_argument('--opt', action='append', default=[])
    g = ap.parse_args()
    opt = {}
    for o in g.opt:
        k, val = o.split('='); opt[k] = int(val)
    text, nbad = generate(g.diag, **opt)
    open(g.o, 'w').write(text)
    print(f'wrote {g.o}: {len(text)} bytes, {nbad} hazards')
```

```python
import sys, struct
from lint import lint

NAME = 'concat_heads__linear_kernel_hedgehog__softmax_full_mha__prompt'
OOB = 0x40000000
QM, QL, KV = 0x0, 0x200000, 0x240000
REC = 2560; HREC = 64 * REC
VLOFF, ONEOFF, KLOFF = 2048, 2176, 2304
AOFF = 0x740000
OAM, OAL, OBM, OBL = 0xE80000, 0x1080000, 0x10C0000, 0x12C0000
KVP = 0x1300000; KVPS = 4608
FL1, FL1A, FL2, FL3, FL4 = 0x1420000, 0x1428000, 0x1430000, 0x1438000, 0x1440000
EPOCH = 0x1448000
STAMPS = 0x1500000
WS_BYTES = 0x1800000
XA = 0
PHS = 28672
WBLK = 21504
WS0 = 28672
SLOT_A = [WS0 + 4*WBLK, WS0, WS0 + 5*WBLK, WS0 + WBLK]
SLOT_B = [WS0 + 2*WBLK, WS0 + 3*WBLK, WS0 + 4*WBLK, WS0 + 5*WBLK]
EAX = 131072
CNT = WS0 + 6*WBLK
KVF = CNT + 256
LDS_BYTES = 163840
C_F1, C_F1A, C_KVX, C_F2, C_KVF, C_F3, C_OPA, C_F4, C_BAD, C_W1, C_TOK, C_W2, C_W3 = [4 * i for i in range(13)]
sBX, sBW, sAX, sAW, sPHI, sAWO, sBWO, sOUT, sDBG, sWS = 4, 8, 12, 16, 20, 24, 28, 32, 36, 40
sWave, sCT, sRT, sH = 44, 45, 46, 47
T0, T1, T2, T3, T4, T5, T6, T7 = range(48, 56)
sTab, sS0, sDoSc, sIdle = 64, 65, 66, 67
sQB, sRot, sFree, sOT, sOC, sTok, sLoc, sXcd = 68, 69, 70, 71, 72, 73, 74, 75
sHA, sRB = sH, sQB
sSpin, sTH, sMG, sTile = 76, 77, 78, 79
SSTAMP = 80
sW4, sImg, sXB, sWB, sLh2, sLt2 = 96, 97, 98, 99, 100, 101
v16, vQL, vCnt, vOne, vZero, vPoll, vTok = 244, 245, 246, 247, 248, 249, 250
vVf = 252
EA, ES = 72, 84
vWO = 224
vX, vW, XAc, WAc, XAr, WAr, vTab = 228, 232, 24, 28, 32, 36, 39
ACC = {('a', 0): 96, ('a', 1): 112, ('b', 0): 128, ('b', 1): 144}
FS = [176, 192, 40, 56]
def m_of(sl): return 9*(sl >> 2) + 2*(sl & 1) + 5*((sl >> 1) & 1)
def ct_table(ct):
    lo = 32*ct; s0 = next(x for x in range(200) if m_of(x) >= lo)
    used = {m_of(x) + d for x in range(s0, s0 + 12) for d in (0, 1)}
    misc = [m - lo for m in range(lo, lo + 32) if m not in used]
    assert misc[4:] == [28, 29, 30, 31]
    return sum(c << (5*i) for i, c in enumerate(misc[:4])) | (s0 << 20)

LOG2E = 1.4426950408889634
def f2u(x): return struct.unpack('<I', struct.pack('<f', x))[0]
QSCALE = f2u(18 ** -0.5 * LOG2E)

def v(a, n=1): return f'v{a}' if n == 1 else f'v[{a}:{a+n-1}]'
def s(a, n=1): return f's{a}' if n == 1 else f's[{a}:{a+n-1}]'
def srd(a): return s(a, 4)

import re
def unpack(x):
    m = re.match(r'v_pk_(add_f32|mul_f32|mov_b32) ([vs])\[(\d+):\d+\], ([vs])\[(\d+):\d+\], ([vs])\[(\d+):\d+\](.*)', x)
    op, _, d, k0, a0, k1, a1, mod = m.groups(); d, a0, a1 = int(d), int(a0), int(a1); mod = mod.strip()
    if op == 'mov_b32':
        assert mod == 'op_sel:[0,1]'
        return [f'v_mov_b32 v{d}, v{a0}', f'v_mov_b32 v{d+1}, v{a1+1}']
    assert mod in ('', 'op_sel_hi:[1,0]') and k0 == 'v'
    h = 0 if mod else 1
    return [f'v_{op} v{d}, {k1}{a1}, v{a0}', f'v_{op} v{d+1}, {k1}{a1+h}, v{a0+1}']

class Asm:
    def __init__(self, diag=False):
        self.L = []; self.uid = 0; self.diag = diag; self.lock = False; self.nopk = False
    def __call__(self, t):
        for x in t.split('\n'):
            x = x.strip()
            if not x: continue
            if self.nopk and x.startswith('v_pk_'): self.L += ['    ' + y for y in unpack(x)]
            else: self.L.append('    ' + x)
    def label(self, n): self.L.append(n + ':')
    def c(self, t): self.L.append('    ; ' + t)
    def new(self, p):
        self.uid += 1; return f'L_{p}{self.uid}'
    def nop(self, n):
        while n > 0:
            k = min(n, 16); self(f's_nop {k-1}'); n -= k
    def stamp(self, k):
        if self.diag and not self.lock:
            self(f's_memrealtime {s(94,2)}\ns_waitcnt lgkmcnt(0)\ns_mov_b32 {s(SSTAMP+k)}, s94')
    def lstamp(self, sreg, base=0):
        if self.diag:
            self(f's_memrealtime s[94:95]\ns_add_u32 s95, {sreg}, {base}\ns_mov_b32 s93, s95\ns_waitcnt lgkmcnt(0)\nv_writelane_b32 v254, s94, s93'.replace('s_add_u32 s95', 's_add_u32 s93').replace('s_mov_b32 s93, s95\n', '').replace('v_writelane_b32 v254, s94, s93', 's_mov_b32 m0, s93\nv_writelane_b32 v254, s94, m0'))
    def cyc0(self):
        if self.diag: self('s_memtime s[94:95]\ns_waitcnt lgkmcnt(0)\ns_mov_b32 s93, s94')
    def cyc1(self):
        if self.diag: self('s_memtime s[94:95]\ns_waitcnt lgkmcnt(0)\ns_sub_u32 s93, s94, s93')
    def text(self): return '\n'.join(self.L) + '\n'

class VM:
    def __init__(self): self.q = []
    def add(self, tag, n=1): self.q += [tag] * n
    def after(self, tag):
        i = max(k for k, t in enumerate(self.q) if t == tag)
        return len(self.q) - 1 - i

def mfma_s(d, x, y, c=None, kind='16'):
    op = {'16': 'v_mfma_f32_32x32x16_bf16', '8': 'v_mfma_f32_32x32x8_bf16', '2b': 'v_mfma_f32_32x32x4_2b_bf16'}[kind]
    nd = 32 if kind == '2b' else 16; na = 4 if kind == '16' else 2
    return f'{op} {v(d,nd)}, {v(x,na)}, {v(y,na)}, {"0" if c is None else v(c,nd)}'
def mfma(a, *k, **kw): a(mfma_s(*k, **kw))

def opol(k): return ['', ' sc1', ' nt', ' sc0 sc1', ' sc1 nt'][OPT.get(k, 0)]

def cvt8(a, src, dst):
    for i in range(4): a(f'v_cvt_pk_bf16_f32 {v(dst+i)}, {v(src+2*i)}, {v(src+2*i+1)}')

SRDS = {sAX: (48, 2048*1152), sAW: (50, 576*3456), sPHI: (52, 32*648), sAWO: (54, 576*1152), sBX: (56, 2048*1152),
        sBW: (58, 576*3456), sBWO: (60, 576*1152), sOUT: (62, 2048*2304), sDBG: (64, 256), sWS: (66, WS_BYTES)}
def mk_srd(a, r):
    p, nbytes = SRDS[r]
    a(f's_mov_b32 {s(r)}, {s(p)}\ns_mov_b32 {s(r+1)}, {s(p+1)}\ns_mov_b32 {s(r+2)}, {nbytes:#x}\ns_mov_b32 {s(r+3)}, 0x20000')

def spin_tail(a, top, sl=1):
    a(f's_sleep {sl}\ns_sub_u32 {s(sSpin)}, {s(sSpin)}, 1\ns_cbranch_scc0 {top}\ns_endpgm')

def token_issue(a):
    a(f'buffer_load_dwordx2 {v(vTok,2)}, {v(vZero)}, {srd(sDBG)}, 0 offen sc1')
def token_check(a):
    top = a.new('tok'); done = a.new('tokd')
    a.label(top)
    a(f'v_readfirstlane_b32 {s(T0)}, {v(vTok+1)}\nv_readfirstlane_b32 {s(sTok)}, {v(vTok)}\ns_cmp_lg_u32 {s(T0)}, 0\ns_cbranch_scc1 {done}')
    token_issue(a)
    a('s_waitcnt vmcnt(0)')
    spin_tail(a, top)
    a.label(done)

def poll_flags(a, vaddr, vt, preloaded=False, sl=1):
    top = a.new('poll'); done = a.new('polld'); chk = a.new('pollc')
    if preloaded: a(f's_branch {chk}')
    a.label(top)
    a(f'buffer_load_dword {v(vt)}, {v(vaddr)}, {srd(sWS)}, 0 offen sc1\ns_waitcnt vmcnt(0)')
    a.label(chk)
    a(f'v_cmp_ne_u32 vcc, {s(sTok)}, {v(vt)}\ns_cbranch_vccz {done}')
    spin_tail(a, top, sl)
    a.label(done)

def last_signals(a, vt, ctr, n, sflag):
    skip = a.new('nsig')
    a(f's_mov_b64 exec, 1\nds_add_rtn_u32 {v(vt)}, {v(vCnt)}, {v(vOne)} offset:{ctr}\ns_waitcnt lgkmcnt(0)')
    a(f'v_readfirstlane_b32 {s(T0)}, {v(vt)}\nv_mov_b32 {v(vt)}, {s(sflag)}\nv_mov_b32 {v(vt+1)}, {s(sTok)}\ns_cmp_lg_u32 {s(T0)}, {n-1}\ns_cbranch_scc1 {skip}')
    a(f'buffer_store_dword {v(vt+1)}, {v(vt)}, {srd(sWS)}, 0 offen sc1')
    a.label(skip)
    a('s_mov_b64 exec, -1')

def lds_arrive(a, ctr):
    a(f's_mov_b64 exec, 1\nds_add_u32 {v(vCnt)}, {v(vOne)} offset:{ctr}\ns_mov_b64 exec, -1')

def lds_wait(a, vt, ctr, n, sl=2):
    top = a.new('lw'); done = a.new('lwd')
    a.label(top)
    a(f'ds_read_b32 {v(vt)}, {v(vCnt)} offset:{ctr}\ns_waitcnt lgkmcnt(0)\nv_readfirstlane_b32 {s(T0)}, {v(vt)}\ns_cmp_ge_u32 {s(T0)}, {n}\ns_cbranch_scc1 {done}')
    spin_tail(a, top, sl)
    a.label(done)

def flag_addr(a, dst, shi, slo, sh, base):
    a(f's_lshl_b32 {s(dst)}, {s(shi)}, {sh}\ns_add_u32 {s(dst)}, {s(dst)}, {s(slo)}\ns_lshl_b32 {s(dst)}, {s(dst)}, 7\ns_add_u32 {s(dst)}, {s(dst)}, {base:#x}')

def kl_const(a, dst, shead):
    a(f's_bitcmp1_b32 {s(shead)}, 0\ns_mov_b32 {s(dst)}, {HREC + KLOFF}\ns_cselect_b32 {s(dst)}, {KLOFF + 4}, {s(dst)}')

def producer_ct(a, d, ty, last, shead, t):
    a(f'''s_lshr_b32 {s(T0)}, {s(shead)}, 1
    s_mul_i32 {s(T0)}, {s(T0)}, 36
    s_and_b32 {s(T1)}, {s(shead)}, 1
    s_lshl_b32 {s(T1)}, {s(T1)}, 4
    s_add_u32 {s(T0)}, {s(T0)}, {s(T1)}
    v_mul_u32_u24 {v(d)}, 576, {v(ty)}
    v_mul_u32_u24 {v(t)}, 19, {v(last)}
    v_add3_u32 {v(d)}, {v(d)}, {v(t)}, {s(T0)}
    v_lshrrev_b32 {v(d)}, 7, {v(d)}''')

def issue_chunk(a, j):
    if OPT.get('nodma') and j > 1: return
    slot = (j % 4) * 32768; c = j % 9
    if OPT.get('samek'): c = 0
    X, W = (sBX, sBW) if j < 9 else (sAX, sAW)
    nx = ' nt' if OPT.get('nt', 0) & 1 else ''; nw = ' nt' if OPT.get('nt', 0) & 2 else ''
    if OPT.get('rot', 0):
        a(f'''s_add_u32 vcc_lo, {s(sRot)}, {c}
        s_cmp_ge_u32 vcc_lo, 9
        s_cselect_b32 vcc_hi, 9, 0
        s_sub_u32 vcc_lo, vcc_lo, vcc_hi
        s_mul_i32 vcc_hi, vcc_lo, {64*3456}
        s_add_u32 vcc_hi, vcc_hi, {s(sWB)}
        s_lshl_b32 vcc_lo, vcc_lo, 7
        s_add_u32 vcc_lo, vcc_lo, {s(sXB)}
        s_lshl_b32 s3, {s(sW4)}, 12
        s_add_u32 m0, s3, {slot}
        s_nop 0''')
    else:
        a(f's_lshl_b32 s3, {s(sW4)}, 12\ns_add_u32 m0, s3, {slot}\ns_add_u32 vcc_lo, {s(sXB)}, {128*c}\ns_add_u32 vcc_hi, {s(sWB)}, {64*3456*c}')
    for i in range(4): a(f'buffer_load_dwordx4 {v(vX+i)}, {srd(X)}, vcc_lo offen offset:{1024*i}{nx} lds')
    a(f's_add_u32 m0, s3, {slot + 16384}\ns_nop 0')
    for i in range(4): a(f'buffer_load_dwordx4 {v(vW+i)}, {srd(W)}, vcc_hi offen offset:{1024*i}{nw} lds')

def su_loader(a):
    a.c('loader lane offsets: x rows (xor-swizzled 16-byte pieces), w rows (16 pieces, rotated by four per row)')
    a(f'''v_lshrrev_b32 v1, 3, v0
    v_and_b32 v2, 7, v0
    v_lshrrev_b32 v3, 1, v1
    v_xor_b32 v2, v2, v3
    v_mul_u32_u24 v1, 1152, v1
    v_lshl_add_u32 {v(vX)}, v2, 4, v1
    v_xor_b32 v2, 4, v2
    v_lshl_add_u32 {v(vX+1)}, v2, 4, v1
    v_add_u32 {v(vX+1)}, {8*1152-1024}, {v(vX+1)}
    v_add_u32 {v(vX+2)}, {2*(8*1152-1024)}, {v(vX)}
    v_add_u32 {v(vX+3)}, {2*(8*1152-1024)}, {v(vX+1)}
    v_lshrrev_b32 v1, 4, v0
    v_lshlrev_b32 v2, 2, v1
    v_sub_u32 v2, v0, v2
    v_and_b32 v2, 15, v2
    v_mul_u32_u24 v1, 3456, v1
    v_lshl_add_u32 v5, v2, 4, v1
    s_cmp_eq_u32 {s(sCT)}, 13
    s_cselect_b32 s3, 8, 16
    v_cmp_gt_u32 vcc, s3, v2
    v_mov_b32 v7, {OOB:#x}
    s_nop 0
    v_cndmask_b32 {v(vW)}, v7, v5, vcc''')
    for i in range(1, 4): a(f'v_add_u32 {v(vW+i)}, {i*(4*3456-1024)}, {v(vW)}')
    su_loader_s(a)

def su_loader_s(a):
    a(f'''s_lshl_b32 {s(sXB)}, {s(sRT)}, 2
    s_add_u32 {s(sXB)}, {s(sXB)}, {s(sW4)}
    s_mul_i32 {s(sXB)}, {s(sXB)}, {32*1152}
    s_mul_i32 {s(sWB)}, {s(sW4)}, {16*3456}
    s_lshl_b32 s3, {s(sCT)}, 8
    s_add_u32 {s(sWB)}, {s(sWB)}, s3''')

def su_ids2(a):
    a(f'''s_lshl_b32 s3, {s(sXcd)}, 2
    s_and_b32 {s(sH)}, {s(sLoc)}, 3
    s_add_u32 {s(sH)}, {s(sH)}, s3
    s_lshr_b32 {s(sQB)}, {s(sLoc)}, 2
    s_lshr_b32 {s(sOT)}, {s(sLoc)}, 3
    s_add_u32 {s(sOT)}, {s(sOT)}, s3
    s_and_b32 {s(sOC)}, {s(sLoc)}, 7
    s_mov_b32 {s(sSpin)}, 0x40000
    s_and_b32 {s(sTH)}, {s(sWave)}, 1
    s_lshr_b32 {s(sMG)}, {s(sW4)}, 1
    s_cmp_lt_u32 {s(sWave)}, 4
    s_cselect_b32 {s(sImg)}, 0, {AOFF:#x}
    v_mov_b32 {v(vZero)}, 0
    v_mov_b32 {v(vCnt)}, {CNT}
    v_mov_b32 {v(vOne)}, 1''')

def su_token(a, part):
    lb = a.new('notok')
    a(f's_or_b32 s3, s2, {s(sWave)}\ns_cmp_lg_u32 s3, 0\ns_cbranch_scc1 {lb}\ns_mov_b32 {s(T0)}, {EPOCH:#x}')
    if part == 0:
        a(f'buffer_load_dword v10, {v(vZero)}, {srd(sWS)}, {s(T0)} offen sc1')
    else:
        a(f'''s_mov_b32 {s(T1)}, 1664525
        s_waitcnt vmcnt(0)
        v_mul_lo_u32 v6, v10, {s(T1)}
        v_add_u32 v6, 0x3c6ef35f, v6
        v_mov_b32 v7, 1
        s_mov_b64 exec, 1
        buffer_store_dwordx2 v[6:7], {v(vZero)}, {srd(sDBG)}, 0 offen sc1
        buffer_store_dword v6, {v(vZero)}, {srd(sWS)}, {s(T0)} offen sc1
        s_mov_b64 exec, -1''')
    a.label(lb)
    if part == 0:
        a(f's_cmp_lg_u32 {s(sWave)}, 1\ns_cbranch_scc1 L_nocnt\nv_lshlrev_b32 v1, 2, v0\nv_add_u32 v1, {CNT}, v1\nds_write_b32 v1, {v(vZero)}')
        a.label('L_nocnt')

def su_gaddr(a):
    lb = a.new('mg0')
    a.c('gemm fragment addresses')
    a(f'''v_and_b32 v1, 31, v0
    v_lshrrev_b32 v2, 5, v0
    v_bfe_u32 v3, v0, 1, 3
    v_xor_b32 v3, v3, v2
    s_lshl_b32 s3, {s(sTH)}, 13
    v_lshl_add_u32 v4, v1, 7, s3''')
    for k in range(4):
        a(f'v_xor_b32 v5, {2*k}, v3\nv_lshl_add_u32 {v(XAc+k)}, v5, 4, v4')
    a.c('which four-column chunk each lane group reads for the two 32-column tiles of this wave')
    a(f'''v_bfe_u32 v3, v0, 2, 2
    v_and_b32 v4, 3, v0
    v_bfe_u32 v5, v0, 4, 1
    v_lshl_add_u32 v4, v5, 2, v4
    v_lshl_add_u32 v5, v2, 3, v3
    v_lshlrev_b32 v5, 8, v5
    v_add_u32 v5, 16384, v5
    v_lshlrev_b32 v3, 2, v3
    s_lshl_b32 s3, {s(sMG)}, 4''')
    for u in range(2): a(f'v_add_u32 {v(WAc+u)}, s3, v4' + (f'\nv_add_u32 {v(WAc+u)}, 8, {v(WAc+u)}' if u else ''))
    a(f's_cmp_ge_u32 {s(sCT)}, 9\ns_cbranch_scc1 {lb}')
    a(f'''v_lshrrev_b32 v6, 2, v4
    v_and_b32 v7, 1, v4
    v_lshl_add_u32 v6, v6, 1, v7
    s_lshl_b32 s3, {s(sMG)}, 3
    s_add_u32 s3, s3, {s(sS0)}
    v_add_u32 v6, s3, v6
    v_lshrrev_b32 v7, 2, v6
    v_mul_u32_u24 v7, 9, v7
    v_and_b32 v1, 1, v6
    v_lshl_add_u32 v7, v1, 1, v7
    v_bfe_u32 v1, v6, 1, 1
    v_mul_u32_u24 v1, 5, v1
    v_bfe_u32 v6, v4, 1, 1
    v_add3_u32 v7, v7, v1, v6
    s_lshl_b32 s3, {s(sCT)}, 5
    v_subrev_u32 {v(WAc)}, s3, v7
    v_add_u32 {v(WAc+1)}, 9, {v(WAc)}
    s_cmp_eq_u32 {s(sMG)}, 0
    s_cbranch_scc1 {lb}''')
    misc_chunk(a, WAc+1, 4, 6)
    a.label(lb)
    for u in range(2):
        a(f'''v_lshrrev_b32 v6, 1, {v(WAc+u)}
        v_add_u32 v6, v6, v3
        v_and_b32 v6, 15, v6
        v_lshl_add_u32 v6, v6, 4, v5
        v_and_b32 {v(WAc+u)}, 1, {v(WAc+u)}
        v_lshl_add_u32 {v(WAc+u)}, {v(WAc+u)}, 3, v6''')

def misc_chunk(a, d, c8, t):
    a(f'''v_mul_u32_u24 {v(t)}, 5, {v(c8)}
    v_lshrrev_b32 {v(t)}, {v(t)}, {v(vTab)}
    v_and_b32 {v(t)}, 31, {v(t)}
    v_cmp_gt_u32 vcc, 4, {v(c8)}
    v_add_u32 {v(d)}, 24, {v(c8)}
    s_nop 0
    v_cndmask_b32 {v(d)}, {v(d)}, {v(t)}, vcc''')

def su_tab(a):
    a(f's_mov_b32 {s(sTab)}, {ct_table(0):#x}')
    for ct in range(1, 9): a(f's_cmp_eq_u32 {s(sCT)}, {ct}\ns_cselect_b32 {s(sTab)}, {ct_table(ct):#x}, {s(sTab)}')
    a(f'''s_lshr_b32 {s(sS0)}, {s(sTab)}, 20
    v_mov_b32 {v(vTab)}, {s(sTab)}
    s_lshl_b32 {s(sTile)}, {s(sRT)}, 2
    s_lshl_b32 s3, {s(sTH)}, 1
    s_add_u32 {s(sTile)}, {s(sTile)}, s3
    s_cmp_le_u32 {s(sCT)}, 4
    s_cselect_b32 {s(sDoSc)}, 1, 0
    s_cmp_eq_u32 {s(sImg)}, 0
    s_cselect_b32 {s(sDoSc)}, {s(sDoSc)}, 0
    s_cmp_ge_u32 {s(sLoc)}, 28
    s_cselect_b32 {s(sIdle)}, 1, 0
    v_lshlrev_b32 {v(v16)}, 4, v0
    v_lshlrev_b32 {v(vQL)}, 2, v0''')

def head_base(a, g, d0, st, sc):
    a(f'''v_lshl_add_u32 {v(d0)}, {v(g)}, 16, {s(T0)}
    v_mul_u32_u24 v5, {HREC}, {v(g)}
    v_cmp_gt_u32 vcc, 32, {v(g)}
    v_add_u32 v5, {s(T1)}, v5
    v_mov_b32 {v(sc)}, {QSCALE:#x}
    v_cndmask_b32 {v(d0)}, v5, {v(d0)}, vcc
    v_cndmask_b32 {v(st)}, v7, v6, vcc
    v_cndmask_b32 {v(sc)}, 1.0, {v(sc)}, vcc''')

def su_epi(a, part):
    u = min(part, 1)
    lbS = a.new('es'); lbM = a.new('em'); done = a.new('ed')
    a(f'''v_and_b32 v1, 31, v0
    v_lshrrev_b32 v2, 5, v0
    s_mul_i32 {s(T1)}, {s(sTile)}, {REC}
    s_cmp_ge_u32 {s(sCT)}, 9
    s_cbranch_scc1 {lbS if part < 2 else done}
    s_add_u32 {s(T1)}, {s(T1)}, {(KV - 32*HREC) & 0xffffffff:#x}
    s_lshl_b32 {s(T0)}, {s(sTile)}, 10
    v_mov_b32 v6, 1024
    v_mov_b32 v7, {REC}''')
    if u: a(f's_cmp_lg_u32 {s(sMG)}, 0\ns_cbranch_scc1 {lbM}')
    for qp in range(2 if part < 2 else 0):
        e = EA + 4*u + 2*qp
        a(f'''s_lshl_b32 s3, {s(sMG)}, 3
        s_add_u32 s3, s3, {s(sS0)}
        s_add_u32 s3, s3, {4*u + 2*qp}
        v_add_u32 v3, s3, v2
        v_lshrrev_b32 v4, 1, v3''')
        head_base(a, 4, e, e+1, ES + 2*u + qp)
        a(f'''v_and_b32 v3, 1, v3
        v_lshl_add_u32 {v(e)}, v3, 9, {v(e)}
        v_lshl_add_u32 {v(e)}, v1, 4, {v(e)}
        v_add_u32 {v(e+1)}, {v(e)}, {v(e+1)}''')
    a(f's_branch {done}')
    if u:
        a.label(lbM)
        a(f'''s_lshl_b32 {s(T2)}, {s(sTile)}, 8
        s_add_u32 {s(T2)}, {s(T2)}, {QL:#x}
        s_add_u32 {s(T3)}, {s(T1)}, {HREC + KLOFF}
        s_lshl_b32 {s(T4)}, {s(sCT)}, 5''')
        for q in range(part - 1, part):
            e = EA + 4 + 2*q
            a(f'v_add_u32 v3, {2*q}, v2')
            misc_chunk(a, 4, 3, 5)
            a(f'''v_add_u32 v4, {s(T4)}, v4
            v_mul_u32_u24 v3, 7282, v4
            v_lshrrev_b32 v3, 16, v3
            v_mul_u32_u24 v5, 9, v3
            v_sub_u32 v8, v4, v5
            v_cmp_lt_u32 vcc, 4, v8
            v_lshlrev_b32 v3, 1, v3
            v_subrev_u32 v9, 5, v8
            v_addc_co_u32 v4, vcc, 0, v3, vcc
            v_min_u32 v9, v8, v9''')
            head_base(a, 4, e, e+1, ES + 2 + q)
            a(f'''v_lshrrev_b32 v4, 1, v9
            v_lshl_add_u32 {v(e)}, v4, 9, {v(e)}
            v_and_b32 v4, 1, v9
            v_lshl_add_u32 {v(e)}, v4, 3, {v(e)}
            v_lshl_add_u32 {v(e)}, v1, 4, {v(e)}
            v_lshl_add_u32 v4, v3, 13, {s(T2)}
            v_mul_u32_u24 v5, {HREC}, v3
            v_add_u32 v5, {s(T3)}, v5
            v_mov_b32 v9, 256
            v_cndmask_b32 v4, v5, v4, vcc
            v_cndmask_b32 v9, v7, v9, vcc
            v_cmp_eq_u32 vcc, 4, v8
            v_lshl_add_u32 v4, v1, 3, v4
            s_nop 0
            v_cndmask_b32 {v(e)}, {v(e)}, v4, vcc
            v_cndmask_b32 {v(e+1)}, {v(e+1)}, v9, vcc
            v_add_u32 {v(e+1)}, {v(e)}, {v(e+1)}''')
        a(f's_branch {done}')
    if part >= 2:
        a.label(done); return
    a.label(lbS)
    e = EA + 2*u
    a(f'''s_add_u32 {s(T1)}, {s(T1)}, {KV:#x}
    s_sub_u32 {s(T2)}, {s(sCT)}, 9
    s_lshl_b32 {s(T2)}, {s(T2)}, 7
    s_lshl_b32 s3, {s(sMG)}, 6
    s_add_u32 s3, s3, {s(T2)}
    s_add_u32 s3, s3, {32*u}
    v_add_u32 v3, s3, v1
    v_mul_u32_u24 v4, 3641, v3
    v_lshrrev_b32 v4, 16, v4
    v_mul_u32_u24 v5, 18, v4
    v_sub_u32 v3, v3, v5
    v_and_b32 v5, 1, v4
    v_lshlrev_b32 v5, 1, v5
    v_sub_u32 v3, v3, v5
    v_add_u32 v5, 18, v3
    v_min_u32 v3, v3, v5
    v_mul_u32_u24 v5, {HREC}, v4
    v_add_u32 v5, {s(T1)}, v5
    v_lshl_add_u32 v5, v3, 4, v5
    v_lshl_add_u32 v6, v2, 8, v5
    v_add_u32 v6, 1024, v6
    v_lshl_add_u32 v7, v2, 5, v5
    v_add_u32 v7, {VLOFF - 256}, v7
    v_cmp_gt_u32 vcc, 16, v3
    v_add_u32 v8, 512, v6
    v_add_u32 v9, 64, v7
    v_cndmask_b32 v6, v7, v6, vcc
    v_cndmask_b32 v8, v9, v8, vcc
    v_cmp_gt_u32 vcc, 32, v4
    v_mov_b32 v7, {OOB:#x}
    s_nop 0
    v_cndmask_b32 {v(e)}, v7, v6, vcc
    v_cndmask_b32 {v(e+1)}, v7, v8, vcc''')
    if u:
        a.c('the row of ones of every head whose first column is in this tile')
        a(f'''s_add_u32 s3, {s(T2)}, 17
        s_mul_i32 s3, s3, 3641
        s_lshr_b32 s3, s3, 16
        v_and_b32 v3, 7, v0
        v_add_u32 v3, s3, v3
        v_mul_u32_u24 v4, 18, v3
        s_add_u32 {s(T2)}, {s(T2)}, 128
        s_min_u32 {s(T2)}, {s(T2)}, 576
        v_cmp_gt_u32 vcc, {s(T2)}, v4
        v_cmp_gt_u32 {s(T4,2)}, 16, v0
        s_and_b64 vcc, vcc, {s(T4,2)}
        v_mul_u32_u24 v3, {HREC}, v3
        v_bfe_u32 v4, v0, 3, 1
        v_mul_u32_u24 v4, {REC}, v4
        v_add3_u32 v3, v3, v4, {s(T1)}
        v_add_u32 v3, {ONEOFF}, v3
        v_cndmask_b32 {v(EA+4)}, v7, v3, vcc''')
    a.label(done)

def su_vgat(a):
    a.c('V fragment gather offsets inside a key-tile record')
    a('v_and_b32 v1, 31, v0\nv_lshrrev_b32 v2, 5, v0')
    a(f'''v_lshlrev_b32 v3, 4, v1
    v_lshl_add_u32 v3, v2, 8, v3
    v_add_u32 v3, 1024, v3
    v_subrev_u32 v4, 16, v1
    v_lshlrev_b32 v5, 4, v4
    v_lshl_add_u32 v5, v2, 5, v5
    v_add_u32 v5, {VLOFF}, v5
    v_cmp_gt_u32 vcc, 2, v4
    v_add_u32 v6, 64, v5
    v_mov_b32 v7, {OOB:#x}
    v_cndmask_b32 v5, v7, v5, vcc
    v_cndmask_b32 v6, v7, v6, vcc
    v_and_b32 v4, 27, v1
    v_cmp_eq_u32 vcc, 18, v4
    v_mov_b32 v7, {ONEOFF}
    s_nop 0
    v_cndmask_b32 v5, v5, v7, vcc
    v_cndmask_b32 v6, v6, v7, vcc
    v_cmp_gt_u32 vcc, 16, v1
    v_add_u32 v4, 512, v3
    s_nop 0
    v_cndmask_b32 {v(vVf)}, v5, v3, vcc
    v_cndmask_b32 {v(vVf+1)}, v6, v4, vcc''')

def prefetch_a(a):
    if not OPT.get('pf', 1): return
    top = a.new('pf'); isw = a.new('pfw'); nxt = a.new('pfn')
    a(f'''s_sub_u32 {s(T0)}, {s(sLoc)}, 28
    s_lshl_b32 {s(T0)}, {s(T0)}, 3
    s_add_u32 {s(T0)}, {s(T0)}, {s(sWave)}
    v_mul_u32_u24 v1, 1152, v0
    v_mul_u32_u24 v2, 3456, v0
    s_lshr_b32 {s(T4)}, {s(sXcd)}, 1
    s_mul_i32 {s(T4)}, {s(T4)}, {512*1152}
    s_and_b32 {s(T5)}, {s(sXcd)}, 1
    s_mul_i32 {s(T5)}, {s(T5)}, {7*256}''')
    a.label(top)
    a(f'''s_mul_i32 {s(T1)}, {s(T0)}, 2979
    s_lshr_b32 {s(T1)}, {s(T1)}, 16
    s_mul_i32 {s(T2)}, {s(T1)}, 22
    s_sub_u32 {s(T2)}, {s(T0)}, {s(T2)}
    s_cmp_ge_u32 {s(T2)}, 8
    s_cbranch_scc1 {isw}
    s_mul_i32 {s(T2)}, {s(T2)}, {64*1152}
    s_lshl_b32 {s(T1)}, {s(T1)}, 7
    s_add_u32 {s(T2)}, {s(T2)}, {s(T1)}
    s_add_u32 {s(T2)}, {s(T2)}, {s(T4)}
    buffer_load_dword v3, v1, {srd(sAX)}, {s(T2)} offen
    s_branch {nxt}''')
    a.label(isw)
    a(f'''s_sub_u32 {s(T2)}, {s(T2)}, 8
    s_lshl_b32 {s(T2)}, {s(T2)}, 7
    s_mul_i32 {s(T1)}, {s(T1)}, {64*3456}
    s_add_u32 {s(T2)}, {s(T2)}, {s(T1)}
    s_add_u32 {s(T2)}, {s(T2)}, {s(T5)}
    buffer_load_dword v3, v2, {srd(sAW)}, {s(T2)} offen''')
    a.label(nxt)
    a(f's_add_u32 {s(T0)}, {s(T0)}, 32\ns_cmp_lt_u32 {s(T0)}, 198\ns_cbranch_scc1 {top}')

def su_acc(a, part, pk=False):
    rg = (range(96, 128), range(128, 160), range(40, 72))[part]
    if pk:
        for r in rg[::2]: a(f'v_pk_mov_b32 {v(r,2)}, {v(vZero,2)}, {v(vZero,2)}')
    else:
        for r in rg: a(f'v_mov_b32 {v(r)}, 0')

def su_share(a, regs, put, first=0):
    a(f's_mul_i32 s3, {s(sW4)}, 6656\ns_add_u32 s3, s3, {EAX}\nv_add_u32 v1, s3, {v(v16)}')
    off = first
    for r, n in regs:
        if n == 4: a(f'ds_write_b128 v1, {v(r,4)} offset:{off}' if put else f'ds_read_b128 {v(r,4)}, v1 offset:{off}')
        off += 1024
SH_P = [(XAc, 4), (WAc, 4)]
SH_L = [(EA, 4), (EA+4, 4), (EA+8, 4), (ES, 4), (ES+4, 4), (236, 4)]

def slot_addr(a):
    for k in range(4): a(f'v_add_u32 {v(XAr+k)}, {s(T6)}, {v(XAc+k)}')
    for w in range(2): a(f'v_add_u32 {v(WAr+w)}, {s(T6)}, {v(WAc+w)}')
    a(f's_add_u32 {s(T6)}, {s(T6)}, 0x8000\ns_and_b32 {s(T6)}, {s(T6)}, 0x1ffff')

def prologue(a, opt):
    a(f's_cmp_ge_u32 s2, 256\ns_cbranch_scc1 L_end')
    a(f's_load_dwordx16 s[48:63], s[0:1], 0\ns_load_dwordx4 s[64:67], s[0:1], 64')
    if a.diag:
        for k in range(2, 14): a(f's_mov_b32 {s(SSTAMP+k)}, 0')
    if a.diag or opt.get('padto'): a(f's_memrealtime {s(SSTAMP,2)}')
    if opt.get('ipf', 1):
        a.c('workgroups without a gemm tile pull this code towards L2 (one dword per 128-byte line)')
        a(f'''s_cmp_lt_u32 s2, 224
        s_cbranch_scc1 L_noipf
        s_getpc_b64 s[66:67]'''.replace('s[66:67]', 's[98:99]'))
        a.label('L_pc')
        a(f'''v_lshlrev_b32 v1, 7, v0
        v_cmp_gt_u32 vcc, L_end-L_pc, v1
        s_and_saveexec_b64 s[100:101], vcc
        s_cbranch_execz L_ipfx
        global_load_dword v254, v1, s[98:99]''')
        a.label('L_ipfx')
        a('s_mov_b64 exec, s[100:101]')
        a.label('L_noipf')
    a(f'v_lshrrev_b32 v1, 6, v0\nv_and_b32 v0, 63, v0\nv_readfirstlane_b32 {s(sWave)}, v1')
    a(f'''s_and_b32 {s(sXcd)}, s2, 7
    s_lshr_b32 {s(sLoc)}, s2, 3
    s_mul_i32 {s(sRT)}, {s(sLoc)}, 37
    s_lshr_b32 {s(sRT)}, {s(sRT)}, 8
    s_mul_i32 s3, {s(sRT)}, 7
    s_sub_u32 {s(sCT)}, {s(sLoc)}, s3
    s_add_u32 {s(sRot)}, {s(sCT)}, {s(sRT)}
    s_and_b32 s3, {s(sXcd)}, 1
    s_mul_i32 s3, s3, 7
    s_add_u32 {s(sCT)}, {s(sCT)}, s3
    s_lshr_b32 s3, {s(sXcd)}, 1
    s_lshl_b32 s3, s3, 2
    s_add_u32 {s(sRT)}, {s(sRT)}, s3
    s_and_b32 {s(sW4)}, {s(sWave)}, 3''')
    r = opt.get('rot', 0)
    if r == 2:
        a(f's_mul_i32 s3, {s(sRot)}, 86\ns_lshr_b32 s3, s3, 8\ns_mul_i32 s3, s3, 3\ns_sub_u32 {s(sRot)}, {s(sRot)}, s3\ns_mul_i32 {s(sRot)}, {s(sRot)}, 3')
    elif r == 4:
        a(f's_and_b32 {s(sRot)}, {s(sRot)}, 3')
    elif r == 3:
        a(f's_and_b32 {s(sRot)}, {s(sRot)}, 1\ns_lshl_b32 {s(sRot)}, {s(sRot)}, 2')
    su_ids2(a)
    a(f's_cmp_eq_u32 {s(sImg)}, 0\ns_cbranch_scc1 L_pset')
    a.c('================= waves 4-7: load the B tile =================')
    su_loader(a)
    a('s_waitcnt lgkmcnt(0)')
    for r in (sBX, sBW): mk_srd(a, r)
    vm = VM()
    a(f's_cmp_ge_u32 {s(sLoc)}, 28\ns_cbranch_scc1 L_lnoiss')
    for j in range(2): issue_chunk(a, j); vm.add(j, 8)
    a.label('L_lnoiss')
    for r in (sAX, sAW, sPHI, sAWO, sBWO, sOUT, sDBG, sWS): mk_srd(a, r)
    su_tab(a)
    for p in range(3): su_acc(a, p, True)
    a(f'v_mov_b32 {v(EA)}, {OOB:#x}')
    for r in range(EA + 1, EA + 20): a(f'v_mov_b32 {v(r)}, {v(EA)}')
    a.stamp(1)
    a(f's_cmp_lg_u32 {s(sIdle)}, 0\ns_cbranch_scc1 L_lidle')
    for j in range(9):
        a(f's_waitcnt vmcnt({vm.after(j)})')
        if opt.get('p1') == 1: a.stamp(3 + j)
        a('s_barrier')
        if opt.get('p1') == 2: a.stamp(3 + j)
        if opt.get('p1') == 2 and j == 0: a.cyc0()
        if opt.get('p1') == 2 and j == 8: a.cyc1()
        sw = opt.get('sw', 9)
        for c in ([j + 2] if j < sw else [j + 2, j + 3] if j == sw else [j + 3]):
            issue_chunk(a, c); vm.add(c, 8)
            if c == 9: token_issue(a); vm.add('tok')
        if j == 0: su_share(a, SH_P, False); su_vgat(a); a('s_waitcnt lgkmcnt(0)')
        if 1 <= j <= 5: su_epi(a, j - 1)
        if j == 6:
            a(f'v_mov_b32 {v(ES+6)}, {v(vVf)}\nv_mov_b32 {v(ES+7)}, {v(vVf+1)}')
            a(f'v_mov_b32 v236, {v(vX)}\nv_mov_b32 v237, {v(vX+1)}\nv_mov_b32 v238, {v(vW)}')
            su_share(a, SH_L, True)
        if j == 7:
            a('s_waitcnt lgkmcnt(0)')
            for r in range(EA, EA + 12): a(f'v_add_u32 {v(r)}, {AOFF:#x}, {v(r)}')
    a(f's_waitcnt vmcnt({vm.after("tok")})')
    token_check(a)
    a(f'ds_write_b32 {v(vCnt)}, {v(vTok)} offset:{C_TOK}\ns_mov_b32 {s(T6)}, {(9 % 4) * 32768}\ns_waitcnt lgkmcnt(0)')
    a(f's_setprio {opt.get("prio", 1)}')
    a.stamp(2)
    if opt.get('p1'): a.lock = True
    if sw == 9:
        slot_addr(a)
        a(f's_mov_b32 {s(T7)}, 9\ns_barrier')
        issue_chunk(a, 11)
        a(f's_cmp_ge_u32 {s(sCT)}, 9\ns_cbranch_scc1 L_gSb\ns_branch L_gNb')
    else: a('s_branch L_gemm')
    a.label('L_lidle')
    a.c('four workgroups per group of 32 have no gemm tile')
    prefetch_a(a)
    a('s_waitcnt vmcnt(0)')
    su_vgat(a)
    token_issue(a)
    a('s_waitcnt vmcnt(0)')
    token_check(a)
    a(f's_barrier\nds_write_b32 {v(vCnt)}, {v(vTok)} offset:{C_TOK}\ns_setprio {opt.get("prio", 1)}\ns_waitcnt lgkmcnt(0)\ns_barrier\ns_branch L_achain')
    a.label('L_pset')
    a.c('================= waves 0-3: set-up =================')
    su_loader_s(a)
    for p in range(3): su_acc(a, p, True)
    a('s_waitcnt lgkmcnt(0)')
    for r in (sWS, sDBG, sAX, sAW, sOUT, sPHI, sAWO, sBWO): mk_srd(a, r)
    su_token(a, 0); su_tab(a); su_gaddr(a)
    a(f's_cmp_eq_u32 {s(sIdle)}, 0\ns_cbranch_scc1 L_pbusy')
    prefetch_a(a)
    a('s_waitcnt vmcnt(0)')
    su_vgat(a)
    for r in range(vX, vX + 8): a(f'v_mov_b32 {v(r)}, {OOB:#x}')
    a(f's_waitcnt lgkmcnt(0)\ns_barrier\ns_barrier\nds_read_b32 {v(vTok)}, {v(vCnt)} offset:{C_TOK}\ns_branch L_ppath')
    a.label('L_pbusy')
    su_share(a, SH_P, True); su_token(a, 1)
    a(f's_waitcnt lgkmcnt(0)\ns_mov_b32 {s(T6)}, 0')
    a.stamp(1)
    if a.diag: a('s_mov_b32 s82, 0')

def gemm(a, opt):
    sSlot, sIt = T6, T7
    a.label('L_gemm')
    a.c('================= qkv gemm (waves 0-3: B, waves 4-7: A) =================')
    a(f's_mov_b32 {s(sIt)}, 9\ns_cmp_ge_u32 {s(sCT)}, 9\ns_cbranch_scc1 L_gS')
    def mid():
        lb = a.new('mid')
        a(f's_cmp_lg_u32 {s(sImg)}, 0\ns_cbranch_scc1 {lb}\ns_barrier')
        issue_chunk(a, 13)
        a.label(lb)
    def loop(o):
        def reads(k):
            F = FS[k]
            rd = lambda w, j: f'ds_read_b64_tr_b16 {v(F+8+4*w+2*j,2)}, {v(WAr+w)} offset:{4096*k+1024*j}'
            rx = lambda tt: f'ds_read_b128 {v(F+4*tt,4)}, {v(XAr+k)} offset:{4096*tt}'
            if opt.get('nord'): return ['s_nop 0'] * 6
            return [rd(0, 0), rd(0, 1), rx(0), rx(1), rd(1, 0), rd(1, 1)]
        def mms(k):
            m = []
            for w, nm in enumerate('ab'):
                for tt in range(2):
                    x, wf = FS[k]+4*tt, FS[k]+8+4*w
                    m.append(mfma_s(ACC[(nm, tt)], wf, x, ACC[(nm, tt)]) if o == 'N' else mfma_s(ACC[(nm, tt)], x, wf, ACC[(nm, tt)]))
            if opt.get('nomm'): m = ['s_nop 0'] * 4
            if opt.get('m16'):
                def two(x, i0):
                    g = re.match(r'\S+ v\[(\d+):\d+\], (\S+), (\S+), ', x); d = int(g.group(1))
                    return '\n'.join(f'v_mfma_f32_16x16x32_bf16 {v(d+4*i,4)}, {g.group(2)}, {g.group(3)}, {v(d+4*i,4)}' for i in (i0, i0+1))
                m = [two(x, 2*(k & 1)) for x in m]
            return m
        def grp(km, kr, wait=None):
            m = mms(km); r = reads(kr)
            if wait is not None: a(f's_waitcnt lgkmcnt({wait})')
            a(m[0]); a(r[0]); a(r[1]); a(r[2]); a(m[1]); a(r[3]); a(r[4]); a(r[5]); a(m[2]); a(m[3])
        a.label(f'L_g{o}')
        slot_addr(a)
        if opt.get('p3'): a.lstamp(s(sIt), 16)
        a('s_barrier')
        a.label(f'L_g{o}b')
        if opt.get('p3'): a.lstamp(s(sIt), 32)
        grp(2, 0); grp(3, 1); grp(0, 2, 6); grp(1, 3, 6)
        w8 = a.new('w8')
        a(f's_cmp_eq_u32 {s(sIt)}, 9\ns_cbranch_scc1 {w8}\ns_waitcnt vmcnt(0)')
        a.label(w8)
        if opt.get('lp0', 0):
            lo = a.new('lo')
            a(f's_cmp_lg_u32 {s(sIt)}, 2\ns_cbranch_scc1 {lo}\ns_setprio 0')
            a.label(lo)
        a(f's_sub_u32 {s(sIt)}, {s(sIt)}, 1\ns_cmp_lg_u32 {s(sIt)}, 0\ns_waitcnt vmcnt(8) lgkmcnt(0)\ns_cbranch_scc1 L_g{o}')
        m = mms(2) + mms(3)
        a(f's_cmp_lg_u32 {s(sImg)}, 0\ns_cbranch_scc1 L_gf{o}\ns_setprio 2')
        su_share(a, SH_L, False)
        a(f'''s_barrier
        ds_read_b32 {v(vTok)}, {v(vCnt)} offset:{C_TOK}
        s_waitcnt lgkmcnt(1)
        v_mov_b32 {v(vX)}, v236
        v_mov_b32 {v(vX+1)}, v237
        v_add_u32 {v(vX+2)}, {2*(8*1152-1024)}, v236
        v_add_u32 {v(vX+3)}, {2*(8*1152-1024)}, v237
        v_mov_b32 {v(vW)}, v238''')
        for i in range(1, 4): a(f'v_add_u32 {v(vW+i)}, {i*(4*3456-1024)}, v238')
        a(f'v_mov_b32 {v(vVf)}, {v(ES+6)}\nv_mov_b32 {v(vVf+1)}, {v(ES+7)}')
        issue_chunk(a, 12)
        a.label(f'L_gf{o}')
        for i in (0, 1, 4, 5, 2, 3, 6, 7): a(m[i])
        if opt.get('lp0', 0):
            lo = a.new('lo')
            a(f's_cmp_eq_u32 {s(sImg)}, 0\ns_cbranch_scc1 {lo}\ns_setprio 1')
            a.label(lo)
        a.stamp(3)
    def scale(nm, sc, n):
        lb = a.new('nosc')
        a(f's_cmp_eq_u32 {s(sDoSc)}, 0\ns_cbranch_scc1 {lb}')
        for tt in range(2):
            for i in range(16): a(f'v_mul_f32 {v(ACC[(nm, tt)]+i)}, {v(sc + i//n)}, {v(ACC[(nm, tt)]+i)}')
        a.label(lb)
    def epi_main(u):
        nm = 'ab'[u]
        scale(nm, ES + 2*u, 8)
        for tt in range(2):
            for qp in range(2):
                r = ACC[(nm, tt)] + 8*qp
                cvt8(a, r, r)
                a(f'buffer_store_dwordx4 {v(r,4)}, {v(EA + 4*u + 2*qp + tt)}, {srd(sWS)}, 0 offen sc1')
    def epi_misc():
        scale('b', ES + 2, 4)
        for tt in range(2):
            for h in range(2):
                r = ACC[('b', tt)] + 8*h
                cvt8(a, r, r)
                for q in range(2): a(f'buffer_store_dwordx2 {v(r+2*q,2)}, {v(EA + 4 + 2*(2*h+q) + tt)}, {srd(sWS)}, 0 offen sc1')
    def epi_v(u):
        nm = 'ab'[u]
        for tt in range(2):
            for f in range(2):
                r = ACC[(nm, tt)] + 8*f
                cvt8(a, r, r)
                a(f'buffer_store_dwordx4 {v(r,4)}, {v(EA + 2*u + f)}, {srd(sWS)}, 0 offen offset:{REC*tt} sc1')
    loop('N')
    a.nop(6); epi_main(0); mid()
    a(f's_cmp_lg_u32 {s(sMG)}, 0\ns_cbranch_scc1 L_emisc')
    epi_main(1); a('s_branch L_epi_done')
    a.label('L_emisc')
    epi_misc(); a('s_branch L_epi_done')
    loop('S')
    for i in range(4): a(f'v_mov_b32 {v(4+i)}, 0x3f803f80')
    a.nop(4); epi_v(0); mid(); epi_v(1)
    a(f's_cmp_lg_u32 {s(sMG)}, 0\ns_cbranch_scc1 L_epi_done\nbuffer_store_dwordx4 v[4:7], {v(EA+4)}, {srd(sWS)}, 0 offen sc1')
    a.label('L_epi_done')
    a.stamp(4)
    a(f's_cmp_lg_u32 {s(sImg)}, 0\ns_cbranch_scc1 L_achain')
    a.label('L_ppath')

def op_addr(a, vm, vm2, vl, vl2, vt, skq_bytes):
    t0, t1, t2, t3, t4 = vt, vt+1, vt+2, vt+3, vt+4
    a(f'''v_bfe_u32 {v(t0)}, v0, 2, 2
    v_lshrrev_b32 {v(t1)}, 5, v0
    v_and_b32 {v(t2)}, 3, v0
    v_bfe_u32 {v(t3)}, v0, 4, 1
    v_lshl_add_u32 {v(t2)}, {v(t3)}, 2, {v(t2)}
    v_lshl_add_u32 {v(t3)}, {v(t1)}, 2, {v(t0)}
    v_mul_u32_u24 {v(t3)}, 144, {v(t3)}
    v_add_u32 {v(t3)}, {s(skq_bytes)}, {v(t3)}
    v_lshl_add_u32 {v(vm)}, {v(t2)}, 3, {v(t3)}
    v_and_b32 {v(t4)}, 1, v0
    v_lshlrev_b32 {v(t4)}, 3, {v(t4)}
    v_add_u32 {v(t4)}, 128, {v(t4)}
    v_add_u32 {v(vm2)}, {v(t4)}, {v(t3)}
    v_mul_u32_u24 {v(t1)}, 72, {v(t1)}
    v_and_b32 {v(t3)}, 2, {v(t0)}
    v_and_b32 {v(t0)}, 1, {v(t0)}
    v_add3_u32 {v(t1)}, {v(t1)}, {v(t3)}, {v(t0)}
    v_add_u32 {v(t1)}, 16, {v(t1)}
    v_mul_u32_u24 {v(t1)}, 144, {v(t1)}
    v_add_u32 {v(t1)}, {s(skq_bytes)}, {v(t1)}
    v_lshl_add_u32 {v(vl)}, {v(t2)}, 3, {v(t1)}
    v_add_u32 {v(vl2)}, {v(t4)}, {v(t1)}''')

def op_w_reads(W, vm, vm2, vl, vl2, st):
    r = []
    for T in range(3):
        for j in range(2):
            if st < 8:
                off = (18*st + 8*j + (2 if st & 1 else 0)) * 144; base = vm if T < 2 else vm2
            else:
                off = 36*j*144; base = vl if T < 2 else vl2
            r.append(f'ds_read_b64_tr_b16 {v(W + 12*st + 4*T + 2*j, 2)}, {v(base)} offset:{off + (64 if T == 1 else 0)}')
    return '\n'.join(r)
def op_read_w(a, W, vm, vm2, vl, vl2):
    for st in range(9): a(op_w_reads(W, vm, vm2, vl, vl2, st))

def op_load_o(a, O, vo16, vol, sM, sM2, sL, thr=False):
    for i in range(8):
        a(f'buffer_load_dwordx4 {v(O+4*i,4)}, {v(vo16)}, {srd(sWS)}, {s(sM if i < 4 else sM2)} offen offset:{1024*(i&3)} sc1')
        if thr and i % 4 == 3: a('s_waitcnt vmcnt(0)')
    for i in range(4):
        a(f'buffer_load_dword {v(O+32+i)}, {v(vol)}, {srd(sWS)}, {s(sL)} offen offset:{128*i} sc1')

def op_mfma(a, AC, W, O, first):
    for st in range(9):
        a(f's_waitcnt vmcnt({11 - st if st < 8 else 0})')
        for T in range(3):
            mfma(a, AC + 16*T, W + 12*st + 4*T, O + 4*st, None if (first and st == 0) else AC + 16*T)

def issue_grp(a, sr, kq, slot, P):
    skip = a.new('r8')
    if P == 2: a(f's_cmp_ge_u32 {s(sW4)}, 3\ns_cbranch_scc1 {skip}')
    a(f'''s_lshl_b32 s3, {s(sW4)}, 10
    s_add_u32 m0, s3, {slot + 9*1024*P}
    s_add_u32 {s(sFree)}, {s(sWB)}, {(144*kq + 64*P)*1152}
    buffer_load_dwordx4 {v(vWO)}, {srd(sr)}, {s(sFree)} offen lds''')
    if P < 2:
        a(f'''s_add_u32 m0, s3, {slot + 9*1024*P + 4096}
        s_cmp_lg_u32 {s(sW4)}, {2*(kq & 1) + P}
        buffer_load_dwordx4 {v(vWO+1)}, {srd(sr)}, {s(sFree)} offen lds
        s_cbranch_scc1 {skip}
        s_mov_b32 m0, {slot + 9*1024*P + 8192}
        s_nop 0
        buffer_load_dwordx4 {v(vWO+2)}, {srd(sr)}, {s(sFree)} offen lds''')
    a.label(skip)
def issue_blk(a, sr, kq, slot):
    for P in range(3):
        issue_grp(a, sr, kq, slot, P)
        if OPT.get('thr', 3): a(f's_waitcnt vmcnt({OPT.get("thr", 3) - 1})')

def p_path(a, opt):
    vK, vKL, vV0, vV1 = 8, 10, 12, 14
    Qr, QLr, M = 16, 32, 36
    Kb, KLb, Vb, Sb, Ob = 40, 56, 64, 96, 160
    sCur, sNext, sLo, sHi, sN = T2, T3, T4, T5, T6
    sQm, sQl, sChk = 56, 57, 58
    sLo2, sHi2, sCur2 = 60, 61, 62
    a.c('================= waves 0-3: load the rest of the A tile, publish B =================')
    vm = VM()
    vm.add(12, 8); vm.add('sa', 4); vm.add(13, 8); vm.add('sb', 4)
    kl_const(a, T0, sH)
    a(f'''v_and_b32 v1, 31, v0
    v_mov_b32 {v(vK)}, {v(v16)}
    v_lshl_add_u32 {v(vKL)}, v1, 3, {s(T0)}
    v_mov_b32 {v(vV0)}, {v(vVf)}
    v_mov_b32 {v(vV1)}, {v(vVf+1)}''')
    for r in (vK, vKL, vV0, vV1): a(f'v_add_u32 {v(r+1)}, {2*REC}, {v(r)}')
    a.c('flags this wave waits for: lanes 0-15 k, 16-31 v (8 row tiles x first/last column tile), 32.. q')
    a(f'''v_lshrrev_b32 v2, 4, v0
    v_add_u32 v2, 1, v2
    v_cmp_gt_u32 vcc, 32, v0
    v_bfe_u32 v3, v0, 3, 1
    v_and_b32 v4, 1, v0
    v_cndmask_b32 v2, 0, v2, vcc
    v_cndmask_b32 v3, v4, v3, vcc
    s_lshl_b32 {s(T2)}, {s(sMG)}, 3
    v_and_b32 v4, 7, v0
    v_add_u32 v4, {s(T2)}, v4
    s_lshl_b32 {s(T3)}, {s(sQB)}, 1
    s_add_u32 {s(T3)}, {s(T3)}, {s(sTH)}
    v_mov_b32 v5, {s(T3)}
    v_cndmask_b32 v4, v5, v4, vcc''')
    producer_ct(a, 5, 2, 3, sH, 6)
    a(f'v_lshl_add_u32 v5, v5, 4, v4\nv_lshlrev_b32 v5, 7, v5\nv_add_u32 {v(vPoll)}, {FL1:#x}, v5\nv_lshlrev_b32 v7, 3, v0')
    for r in (QLr+1, QLr+3, KLb+1, KLb+3, KLb+5, KLb+7): a(f'v_mov_b32 {v(r)}, 0')
    a(f'''s_lshl_b32 {s(T0)}, {s(sH)}, 6
    s_lshl_b32 {s(T1)}, {s(sMG)}, 5
    s_add_u32 {s(T0)}, {s(T0)}, {s(T1)}
    s_mul_i32 {s(sLo)}, {s(T0)}, {REC}
    s_add_u32 {s(sLo)}, {s(sLo)}, {KV:#x}
    s_add_u32 {s(sHi)}, {s(sLo)}, {32*REC}
    s_lshl_b32 {s(T0)}, {s(sQB)}, 1
    s_add_u32 {s(T0)}, {s(T0)}, {s(sTH)}
    s_lshl_b32 {s(T1)}, {s(sH)}, 4
    s_add_u32 {s(T0)}, {s(T0)}, {s(T1)}
    s_lshl_b32 {s(sQm)}, {s(T0)}, 12
    s_lshr_b32 {s(T1)}, {s(sH)}, 1
    s_lshl_b32 {s(T1)}, {s(T1)}, 4
    s_add_u32 {s(T1)}, {s(T1)}, {s(T3)}
    s_lshl_b32 {s(sQl)}, {s(T1)}, 10
    s_and_b32 {s(T1)}, {s(sH)}, 1
    s_lshl_b32 {s(T1)}, {s(T1)}, 2
    s_add_u32 {s(sQl)}, {s(sQl)}, {s(T1)}
    s_add_u32 {s(sQl)}, {s(sQl)}, {QL:#x}''')
    flag_addr(a, T1, sCT, sRT, 4, FL1)
    a('s_waitcnt lgkmcnt(0)')
    a.c('================= waves 0-3: attention =================')
    def kv_loads(b, sreg):
        o = REC * (b & 1); u = b >> 1
        return [f'buffer_load_dwordx4 {v(Kb+4*b,4)}, {v(vK+u)}, {srd(sWS)}, {s(sreg)} offen offset:{o} sc1',
                f'buffer_load_dword {v(KLb+2*b)}, {v(vKL+u)}, {srd(sWS)}, {s(sreg)} offen offset:{o} sc1',
                f'buffer_load_dwordx4 {v(Vb+8*b,4)}, {v(vV0+u)}, {srd(sWS)}, {s(sreg)} offen offset:{o} sc1',
                f'buffer_load_dwordx4 {v(Vb+8*b+4,4)}, {v(vV1+u)}, {srd(sWS)}, {s(sreg)} offen offset:{o} sc1']
    def start_groups():
        a(f'''s_mul_i32 {s(sCur)}, {s(sQB)}, {4*REC}
        s_add_u32 {s(sCur)}, {s(sCur)}, {s(sLo)}
        s_add_u32 {s(sNext)}, {s(sCur)}, {4*REC}
        s_cmp_eq_u32 {s(sNext)}, {s(sHi)}
        s_cselect_b32 {s(sNext)}, {s(sLo)}, {s(sNext)}
        s_mov_b32 {s(sN)}, 8''')
    adv_groups = f'''s_mov_b32 {s(sCur)}, {s(sNext)}
        s_add_u32 {s(sNext)}, {s(sNext)}, {4*REC}
        s_cmp_eq_u32 {s(sNext)}, {s(sHi)}
        s_cselect_b32 {s(sNext)}, {s(sLo)}, {s(sNext)}
        s_cmp_eq_u32 {s(sN)}, 2
        s_cselect_b32 {s(sNext)}, {OOB:#x}, {s(sNext)}'''
    def qk(N, kb, qp):
        return (mfma_s(N, KLb+2*kb, QLr+2*qp, None, '2b'), mfma_s(N, Kb+4*kb, Qr+8*qp, N), mfma_s(N+16, Kb+4*kb, Qr+8*qp+4, N+16))
    def step(qp, kb, ins, sub):
        S = Sb + 32*qp; N = Sb + 32*(1-qp)
        nkb = kb if qp == 0 else (kb+1) % 4
        pkb = (kb-1) % 4 if qp == 0 else kb
        QLm, Q0m, Q1m = qk(N, nkb, 1-qp)
        def E(x, y):
            for i in range(x, y):
                if sub: a(f'v_sub_f32 {v(S+i)}, {v(S+i)}, {v(M + 2*qp + i//16)}')
                a(f'v_exp_f32 {v(S+i)}, {v(S+i)}')
        def C(x, y):
            for j in range(x, y):
                b = S + 16*(j//8); k = j % 8
                if opt.get('perm'): a(f'v_perm_b32 {v(b + (k % 4) + 8*(k//4))}, {v(b+2*k+1)}, {v(b+2*k)}, {s(59)}')
                else: a(f'v_cvt_pk_bf16_f32 {v(b + (k % 4) + 8*(k//4))}, {v(b+2*k)}, {v(b+2*k+1)}')
        def PV(t, f):
            o = Ob + 32*qp + 16*t
            mfma(a, o, Vb + 8*kb + 4*f, S + 16*t + 8*f, o)
        def I(k):
            if k in ins: a(ins[k])
        E(0, 2)
        o = Ob + 32*(1-qp) + 16
        mfma(a, o, Vb + 8*pkb + 4, N + 24, o); I('p')
        if opt.get('x8'):
            L0 = mfma_s(N, KLb+2*nkb, QLr+2*(1-qp), None, '8'); L1 = mfma_s(N+16, KLb+2*nkb, QLr+2*(1-qp), None, '8')
            E(2, 5); a(L0); I('q'); E(5, 9); a(L1); C(0, 4); E(9, 11); PV(0, 0); I('m0'); E(11, 17); C(4, 6); a(Q0m); I('m1')
        elif opt.get('noql'):
            Q0m = mfma_s(N, Kb+4*nkb, Qr+8*(1-qp), None); Q1m = mfma_s(N+16, Kb+4*nkb, Qr+8*(1-qp)+4, None)
            E(2, 5); I('q'); E(5, 9); C(0, 4); E(9, 11); PV(0, 0); I('m0'); E(11, 17); C(4, 6); a(Q0m); I('m1')
        else:
            E(2, 5); a(QLm); I('q'); E(5, 9); C(0, 4); E(9, 11); PV(0, 0); I('m0'); E(11, 17); C(4, 6); a(Q0m); I('m1')
        C(6, 8); E(17, 19); PV(0, 1); I('m2'); E(19, 25); C(8, 12); a(Q1m); I('m3'); E(25, 28); PV(1, 0); I('m4'); E(28, 32); C(12, 16)
    def attn_init_a():
        for r in range(Ob+16, Ob+64): a(f'v_mov_b32 {v(r)}, 0')
        for r in range(Vb+28, Vb+32): a(f'v_mov_b32 {v(r)}, 0')
    def attn_init_b():
        for r in range(Ob, Ob+16): a(f'v_mov_b32 {v(r)}, 0')
        for r in range(Sb+56, Sb+60): a(f'v_mov_b32 {v(r)}, 0')
    def attn_init(): attn_init_a(); attn_init_b()
    def attn_loop(name, sub):
        a('s_waitcnt vmcnt(8)')
        m = qk(Sb, 0, 0); a(m[0]); a.nop(18); a(m[1]); a(m[2]); a.nop(11)
        if not sub: a.stamp(7); a.cyc0()
        a('.p2align 6')
        a.label(name)
        for t in range(4):
            ld = kv_loads((t+3) % 4, sCur if t == 0 else sNext)
            lp = opt.get('ldp', 0)
            J = '\n'.join
            ins0, ins = [({'q': ld[0], 'm0': ld[1], 'm1': ld[2], 'm2': ld[3]}, {}),
                         ({'q': J(ld)}, {}),
                         ({'q': J(ld[:2]), 'm1': J(ld[2:])}, {}),
                         ({'q': J(ld[:2])}, {'q': J(ld[2:])}),
                         ({'q': ld[0], 'm1': ld[1]}, {'q': ld[2], 'm3': ld[3]}),
                         ({'m0': ld[0], 'm2': ld[1], 'm4': ld[2]}, {'m2': ld[3]})][lp]
            step(0, t, ins0, sub)
            ins['p'] = f's_waitcnt vmcnt({8 - sum(len(x.split(chr(10))) for x in ins.values())})'
            if t == 3:
                ins['m3'] = ins.get('m3', '') + '\n' + adv_groups
                ins['m4'] = f's_sub_u32 {s(sN)}, {s(sN)}, 1\ns_cmp_lg_u32 {s(sN)}, 0'
            step(1, t, ins, sub)
        a(f's_cbranch_scc1 {name}')
        a.nop(1)
        mfma(a, Ob + 48, Vb + 28, Sb + 56, Ob + 48)
    def first_loads():
        for t in range(4): a(f'buffer_load_dwordx4 {v(Qr+4*t,4)}, {v(v16)}, {srd(sWS)}, {s(sQm)} offen offset:{1024*t} sc1')
        for j in range(2): a(f'buffer_load_dword {v(QLr+2*j)}, v7, {srd(sWS)}, {s(sQl)} offen offset:{512*j} sc1')
        for b in range(3):
            for x in kv_loads(b, sCur): a(x)
    a(f'v_readfirstlane_b32 {s(sTok)}, {v(vTok)}\ns_cmp_lg_u32 {s(sIdle)}, 0\ns_cbranch_scc1 L_pidle\ns_barrier')
    issue_chunk(a, 14); vm.add(14, 8)
    start_groups(); attn_init_a()
    for j in range(12, 16):
        sig = opt.get('sig', 13)
        a(f's_waitcnt vmcnt({min(vm.after(j), vm.after("sb")) if j == sig else vm.after(j)})')
        if j == sig:
            last_signals(a, 2, C_F1, 4, T1)
            a.stamp(5)
        a('s_barrier')
        if j == 14: a(f'buffer_load_dword v2, {v(vPoll)}, {srd(sWS)}, 0 offen sc1'); vm.add('fl')
        if j + 3 <= 17: issue_chunk(a, j + 3); vm.add(j + 3, 8)
        if j == sig: attn_init_b()
    a(f's_waitcnt vmcnt(8)\nv_cmp_ne_u32 vcc, {s(sTok)}, v2\ns_cbranch_vccnz L_late')
    first_loads()
    a('s_barrier\ns_waitcnt vmcnt(18)\ns_barrier\ns_branch L_go')
    a.label('L_late')
    a('s_barrier\ns_waitcnt vmcnt(0)\ns_barrier')
    if a.diag: a('s_mov_b32 s82, -1')
    a('s_branch L_poll')
    a.label('L_pidle')
    start_groups(); attn_init()
    a.label('L_poll')
    poll_flags(a, vPoll, 2)
    first_loads()
    a.label('L_go')
    a('s_setprio 0\ns_mov_b32 s59, 0x07060302')
    a.stamp(6)
    attn_loop('L_attn', False)
    a.cyc1()
    a.stamp(8)
    a.nopk = bool(opt.get('nopk', 1))
    a(f'''s_setprio 2
    s_mul_i32 {s(T0)}, {s(sWave)}, 6144
    v_add_u32 v1, {s(T0)}, {v(v16)}
    s_xor_b32 {s(T0)}, {s(sWave)}, 2
    s_mul_i32 {s(T0)}, {s(T0)}, 6144
    v_add_u32 v6, {s(T0)}, {v(v16)}
    s_lshl_b32 {s(T0)}, {s(sQB)}, 3
    s_lshl_b32 {s(T1)}, {s(sTH)}, 2
    s_add_u32 {s(T0)}, {s(T0)}, {s(T1)}
    s_lshl_b32 {s(T1)}, {s(sMG)}, 1
    s_add_u32 {s(T0)}, {s(T0)}, {s(T1)}
    s_cmp_eq_u32 {s(sMG)}, 0
    s_cbranch_scc1 L_red0''')
    def red_write(o0):
        for t in range(2):
            o = o0 + 16*t
            a(f'ds_write_b128 v1, {v(o,4)} offset:{3072*t}\nds_write_b128 v1, {v(o+4,4)} offset:{3072*t+1024}\nds_write_b96 v1, {v(o+8,3)} offset:{3072*t+2048}')
    a.c('exchange partial sums with the wave that did the other half of the keys; keep query pair kh in Ob..Ob+31')
    red_write(Ob)
    for t in range(2):
        for i in range(0, 12, 2): a(f'v_pk_mov_b32 {v(Ob+16*t+i,2)}, {v(Ob+32+16*t+i,2)}, {v(Ob+32+16*t+i,2)} op_sel:[0,1]')
    a('s_branch L_red1')
    a.label('L_red0')
    red_write(Ob + 32)
    a.label('L_red1')
    o_addr(a, sH, OBM, OBL)
    flag_addr(a, T1, sQB, sH, 5, FL4)
    a(f's_mov_b32 {s(T0)}, {f2u(2.0**-64):#x}\ns_mov_b32 {s(T6)}, {f2u(2.0**64):#x}\ns_mov_b32 {s(T7)}, {f2u(2.0**120):#x}')
    if opt.get('p4'): a.stamp(3)
    a('s_waitcnt vmcnt(0) lgkmcnt(0)')
    if opt.get('p4'): a.stamp(4)
    a('s_barrier')
    if opt.get('p4'): a.stamp(5)
    for part in range(3):
        for t in range(2):
            o = Ob + 32 + 16*t
            a([f'ds_read_b96 {v(o+8,3)}, v6 offset:{3072*t+2048}', f'ds_read_b128 {v(o,4)}, v6 offset:{3072*t}', f'ds_read_b128 {v(o+4,4)}, v6 offset:{3072*t+1024}'][part])
    O2 = [Ob, Ob + 16]; P2 = [Ob + 32, Ob + 48]
    a.c('the softmax above used 0 in place of the row max: safe only while the sums stay finite and well away from 0')
    a('s_waitcnt lgkmcnt(4)')
    for t in range(2): a(f'v_add_f32 {v(O2[t]+10)}, {v(O2[t]+10)}, {v(P2[t]+10)}')
    for t in range(2): a(f'v_pk_add_f32 {v(O2[t]+8,2)}, {v(O2[t]+8,2)}, {v(P2[t]+8,2)}')
    a(f'''v_min_f32 v2, {v(O2[0]+10)}, {v(O2[1]+10)}
    v_add_f32 v3, {v(O2[0]+10)}, {v(O2[1]+10)}
    v_cmp_nle_f32 {s(sChk,2)}, {s(T0)}, v2
    v_cmp_nge_f32 vcc, {s(T6)}, v3
    s_waitcnt lgkmcnt(2)''')
    for i in (0, 2):
        for t in range(2): a(f'v_pk_add_f32 {v(O2[t]+i,2)}, {v(O2[t]+i,2)}, {v(P2[t]+i,2)}')
    a(f's_or_b64 {s(sChk,2)}, {s(sChk,2)}, vcc\ns_waitcnt lgkmcnt(0)')
    for i in (4, 6):
        for t in range(2): a(f'v_pk_add_f32 {v(O2[t]+i,2)}, {v(O2[t]+i,2)}, {v(P2[t]+i,2)}')
    a(f'''v_pk_add_f32 v[2:3], {v(O2[0],2)}, {v(O2[1],2)}
    v_pk_add_f32 v[4:5], {v(O2[0]+2,2)}, {v(O2[1]+2,2)}
    v_pk_add_f32 v[8:9], {v(O2[0]+4,2)}, {v(O2[1]+4,2)}
    v_pk_add_f32 v[10:11], {v(O2[0]+6,2)}, {v(O2[1]+6,2)}
    v_pk_add_f32 v[12:13], {v(O2[0]+8,2)}, {v(O2[1]+8,2)}
    v_pk_add_f32 v[2:3], v[2:3], v[4:5]
    v_pk_add_f32 v[8:9], v[8:9], v[10:11]
    v_pk_add_f32 v[2:3], v[2:3], v[12:13]
    v_pk_add_f32 v[2:3], v[2:3], v[8:9]
    v_add_f32 v2, v2, v3
    v_cmp_ngt_f32 vcc, {s(T7)}, abs(v2)
    s_or_b64 {s(sChk,2)}, {s(sChk,2)}, vcc
    s_cbranch_scc1 L_fallback''')
    a.label('L_norm')
    o_publish(a, O2, P2, False)
    a.stamp(9)
    a('s_waitcnt vmcnt(0)')
    if opt.get('p4'): a.stamp(1)
    last_signals(a, 2, C_F4, 4, T1)
    if opt.get('p4'): a.stamp(2)
    a('s_setprio 0')
    final_setup(a)
    flag_ld(a)
    final_prep(a)
    a('s_branch L_final')

    a.nopk = False
    a.label('L_fallback')
    a.c('the stand-in was unsafe for one of this wave\'s rows: redo its two query tiles over all keys with the true row max')
    vK2, vKL2 = 2, 3
    kl_const(a, sCur2, sH)
    a(f'''v_and_b32 v3, 31, v0
    v_lshl_add_u32 v3, v3, 3, {s(sCur2)}
    s_mul_i32 {s(sLo2)}, {s(sH)}, {HREC}
    s_add_u32 {s(sLo2)}, {s(sLo2)}, {KV:#x}
    s_add_u32 {s(sHi2)}, {s(sLo2)}, {HREC}
    s_cmp_eq_u32 {s(sMG)}, 0
    s_cbranch_scc1 L_fb0''')
    for i in range(8): a(f'v_mov_b32 {v(Qr+i)}, {v(Qr+8+i)}')
    a(f'v_mov_b32 {v(QLr)}, {v(QLr+2)}')
    a.label('L_fb0')
    for t in range(2): a(f'v_mov_b32 {v(M+t)}, 0xff800000')
    for r in range(Ob, Ob + 32): a(f'v_mov_b32 {v(r)}, 0')
    for ps in range(2):
        a(f's_mov_b32 {s(sCur2)}, {s(sLo2)}')
        a.label(f'L_fbloop{ps}')
        a(f'buffer_load_dwordx4 {v(Kb,4)}, {v(v16)}, {srd(sWS)}, {s(sCur2)} offen sc1\nbuffer_load_dword {v(KLb)}, v3, {srd(sWS)}, {s(sCur2)} offen sc1')
        if ps:
            for f in range(2): a(f'buffer_load_dwordx4 {v(Vb+4*f,4)}, {v(vVf+f)}, {srd(sWS)}, {s(sCur2)} offen sc1')
        a('s_waitcnt vmcnt(0)')
        m = qk(Sb, 0, 0); a(m[0]); a.nop(18); a(m[1]); a(m[2]); a.nop(12)
        if ps == 0:
            for t in range(2):
                for i in range(0, 16, 2): a(f'v_max3_f32 {v(M+t)}, {v(Sb+16*t+i)}, {v(Sb+16*t+i+1)}, {v(M+t)}')
        else:
            for i in range(32): a(f'v_sub_f32 {v(Sb+i)}, {v(Sb+i)}, {v(M + i//16)}')
            for i in range(32): a(f'v_exp_f32 {v(Sb+i)}, {v(Sb+i)}')
            for q in range(4): cvt8(a, Sb + 8*q, Sb + 8*q)
            a.nop(1)
            for t in range(2):
                for f in range(2): mfma(a, Ob + 16*t, Vb + 4*f, Sb + 16*t + 8*f, Ob + 16*t)
        a(f's_add_u32 {s(sCur2)}, {s(sCur2)}, {REC}\ns_cmp_lg_u32 {s(sCur2)}, {s(sHi2)}\ns_cbranch_scc1 L_fbloop{ps}')
        if ps == 0:
            for t in range(2): a(f'v_mov_b32 {v(Sb+t)}, {v(M+t)}')
            a.nop(2)
            for t in range(2): a(f'v_permlane32_swap_b32 {v(Sb+t)}, {v(M+t)}')
            a.nop(1)
            for t in range(2): a(f'v_max_f32 {v(M+t)}, {v(M+t)}, {v(Sb+t)}')
    a.nop(12)
    a('s_branch L_norm')

def o_addr(a, shead, M_, L_):
    a(f'''s_lshl_b32 {s(T0)}, {s(T0)}, 5
    s_add_u32 {s(T0)}, {s(T0)}, {s(shead)}
    s_lshl_b32 {s(T2)}, {s(T0)}, 10
    s_add_u32 {s(T2)}, {s(T2)}, {M_:#x}
    s_add_u32 {s(T3)}, {s(T2)}, 0x8000
    s_lshl_b32 {s(T4)}, {s(T0)}, 7
    s_add_u32 {s(T4)}, {s(T4)}, {L_:#x}
    s_add_u32 {s(T5)}, {s(T4)}, 0x1000''')

def o_publish(a, O, P, eps):
    for o in O:
        if eps: a(f'v_add_f32 {v(o+10)}, {f2u(1e-6):#x}, {v(o+10)}')
    for o in O: a(f'v_rcp_f32 {v(o+10)}, {v(o+10)}')
    for t in range(2):
        o, p = O[t], P[t]
        if t == 0: a('s_nop 0')
        for i in range(0, 10, 2): a(f'v_pk_mul_f32 {v(o+i,2)}, {v(o+i,2)}, {v(o+10,2)} op_sel_hi:[1,0]')
        cvt8(a, o, p)
        a(f'buffer_store_dwordx4 {v(p,4)}, {v(v16)}, {srd(sWS)}, {s(T2+t)} offen sc1')
        a(f'v_cvt_pk_bf16_f32 {v(p+4)}, {v(o+8)}, {v(o+9)}')
    a('s_mov_b32 exec_hi, 0')
    for t in range(2): a(f'buffer_store_dword {v(P[t]+4)}, {v(vQL)}, {srd(sWS)}, {s(T4+t)} offen sc1')
    a('s_mov_b32 exec_hi, -1')

FW, FO, FA = 16, 124, 160
vFm, vFm2, vFl, vFl2 = 8, 9, 10, 11
vFlg, vFol, vWr, vRd, vOut = 250, 251, 252, 253, 255
ACA = [212, 228, 196]
QS = 1088; WSTR = 9*QS; ARED = 8*WSTR
sM, sM2, sL, sA, sB_, sO = T2, T3, T4, 56, 57, T7
def piece_addr(a, vp, rd, ou):
    a(f'''v_mul_u32_u24 v2, 7282, {v(vp)}
    v_lshrrev_b32 v2, 16, v2
    v_mul_u32_u24 v3, 9, v2
    v_sub_u32 v3, {v(vp)}, v3
    v_mul_u32_u24 {v(ou)}, 2304, v2
    v_lshl_add_u32 {v(ou)}, v3, 4, {v(ou)}
    v_mul_u32_u24 v3, {QS}, v3
    v_lshrrev_b32 {v(rd)}, 5, v2
    v_mul_u32_u24 {v(rd)}, {WSTR}, {v(rd)}
    v_and_b32 v2, 31, v2
    v_lshl_add_u32 v3, v2, 4, v3
    v_add_u32 {v(rd)}, {v(rd)}, v3''')
def final_setup(a):
    a(f'''v_and_b32 v1, 31, v0
    v_lshrrev_b32 v2, 5, v0
    v_lshlrev_b32 v3, 2, v1
    v_lshl_add_u32 {v(vFol)}, v2, 9, v3
    s_lshl_b32 {s(T1)}, {s(sOT)}, 1
    s_add_u32 {s(T5)}, {s(sTH)}, {s(T1)}
    s_lshl_b32 {s(T0)}, {s(T5)}, 5
    s_lshr_b32 {s(T6)}, {s(sWave)}, 1
    s_lshl_b32 {s(T1)}, {s(T6)}, 3
    s_add_u32 {s(T0)}, {s(T0)}, {s(T1)}
    s_lshl_b32 {s(sM)}, {s(T0)}, 10
    s_add_u32 {s(sM)}, {s(sM)}, {OBM:#x}
    s_add_u32 {s(sM2)}, {s(sM)}, 4096
    s_lshl_b32 {s(sL)}, {s(T0)}, 7
    s_add_u32 {s(sL)}, {s(sL)}, {OBL:#x}
    s_lshr_b32 {s(T0)}, {s(sOT)}, 2
    s_lshl_b32 {s(T0)}, {s(T0)}, 5
    s_add_u32 {s(T0)}, {s(T0)}, {s(T1)}
    v_and_b32 v3, 7, v0
    v_add_u32 v3, {s(T0)}, v3
    v_lshlrev_b32 v3, 7, v3
    v_add_u32 {v(vPoll)}, {FL4:#x}, v3
    s_mul_i32 {s(T0)}, {s(sWave)}, {WSTR}
    v_add_u32 {v(vWr)}, {s(T0)}, {v(v16)}
    s_lshl_b32 {s(T0)}, {s(sWave)}, 6
    v_add_u32 v1, {s(T0)}, v0
    s_mul_i32 {s(T0)}, {s(sOT)}, {64*2304}
    s_mul_i32 {s(T1)}, {s(sOC)}, 144
    s_add_u32 {s(sO)}, {s(T0)}, {s(T1)}
    s_add_u32 {s(T5)}, {s(sO)}, 1152
    s_mov_b32 {s(sA)}, 0
    s_mov_b32 {s(sB_)}, 0''')
    piece_addr(a, 1, vRd, vOut)
def flag_ld(a): a(f'buffer_load_dword {v(vFlg)}, {v(vPoll)}, {srd(sWS)}, 0 offen sc1')
def half_try(a):
    for h, st in ((0, sA), (1, sB_)):
        lb = a.new('fl')
        a(f's_and_b32 {s(T0)}, vcc_lo, {0xf0 if h else 0x0f}\ns_or_b32 {s(T0)}, {s(T0)}, {s(st)}\ns_cbranch_scc1 {lb}\ns_mov_b32 {s(st)}, 1')
        for i in range(4): a(f'buffer_load_dwordx4 {v(FO+16*h+4*i,4)}, {v(v16)}, {srd(sWS)}, {s(sM2 if h else sM)} offen offset:{1024*i} sc1')
        a.label(lb)
def final_prep(a):
    a(f's_mul_i32 {s(T0)}, {s(T6)}, {WBLK}\ns_add_u32 {s(T0)}, {s(T0)}, {SLOT_B[0]}')
    op_addr(a, vFm, vFm2, vFl, vFl2, 2, T0)
    op_read_w(a, FW, vFm, vFm2, vFl, vFl2)

def final(a):
    a.label('L_final')
    a.c('================= all waves: out projection of B =================')
    a.c('this wave needs 8 heads, 4 from each of two producer groups: load each half as soon as its flags are up')
    def half_mm(h):
        for st in range(4*h, 4*h + 4):
            for T in range(3): mfma(a, FA + 16*T, FW + 12*st + 4*T, FO + 4*st, None if st == 0 else FA + 16*T)
    def pending0():
        lb = a.new('fm')
        a(f's_cmp_lg_u32 {s(sA)}, 1\ns_cbranch_scc1 {lb}\ns_mov_b32 {s(sA)}, 2')
        half_mm(0)
        a.label(lb)
    a.label('L_fpoll')
    a(f's_waitcnt vmcnt(0) lgkmcnt(0)\nv_cmp_ne_u32 vcc, {s(sTok)}, {v(vFlg)}')
    pending0()
    half_try(a)
    a(f's_min_u32 {s(T0)}, {s(sA)}, {s(sB_)}\ns_cmp_lg_u32 {s(T0)}, 0\ns_cbranch_scc1 L_fgo')
    flag_ld(a)
    spin_tail(a, 'L_fpoll')
    a.label('L_fgo')
    a.stamp(10)
    for i in range(4): a(f'buffer_load_dword {v(FO+32+i)}, {v(vFol)}, {srd(sWS)}, {s(sL)} offen offset:{128*i} sc1')
    a('s_waitcnt vmcnt(4)')
    pending0()
    half_mm(1)
    a('s_waitcnt vmcnt(0)')
    for T in range(3): mfma(a, FA + 16*T, FW + 96 + 4*T, FO + 32, FA + 16*T)
    a('s_barrier')
    a(f's_cmp_eq_u32 {s(sImg)}, 0\ns_cbranch_scc1 L_fw\nv_add_u32 v1, {ARED - 4*WSTR}, {v(vWr)}')
    for q in range(8): a(f'ds_write_b128 v1, {v(ACA[0]+4*q,4)} offset:{QS*q}')
    a(f'ds_write_b128 v1, v[208:211] offset:{QS*8}')
    a.label('L_fw')
    a(f'v_add_u32 v6, 512, v0\nv_add_u32 v7, {ARED}, {v(vRd)}')
    piece_addr(a, 6, 4, 5)
    for q in range(9): a(f'ds_write_b128 {v(vWr)}, {v(FA+4*q,4)} offset:{QS*q}')
    a('s_waitcnt lgkmcnt(0)\ns_barrier')
    a.stamp(11)
    a.c('sum the partials in output order: one 16-byte piece of a row per lane')
    def rd(R, vr, n):
        for k in range(n):
            for h in range(2): a(f'ds_read_b128 {v(R+8*k+4*h,4)}, {v(vr)} offset:{2*WSTR*k + 512*h}')
    def fin(R, n, vo, so, pol):
        for k in range(1, n):
            for i in range(4): a(f'v_pk_add_f32 {v(R+2*i,2)}, {v(R+2*i,2)}, {v(R+8*k+2*i,2)}')
        cvt8(a, R, R)
        a(f'buffer_store_dwordx4 {v(R,4)}, {v(vo)}, {srd(sOUT)}, {s(so)} offen{opol(pol)}')
    rd(16, vRd, 4); rd(48, 7, 2)
    a(f's_cmp_gt_u32 {s(sWave)}, 1\ns_cbranch_scc1 L_fin_a\ns_cmp_eq_u32 {s(sWave)}, 1\ns_cbranch_scc1 L_fin_x')
    rd(64, 4, 4); a('s_waitcnt lgkmcnt(0)'); fin(64, 4, 5, T5, 'osb'); a('s_branch L_fin_a')
    a.label('L_fin_x')
    a(f'v_add_u32 v4, {ARED}, v4')
    rd(64, 4, 2); a('s_waitcnt lgkmcnt(0)'); fin(64, 2, 5, sO, 'osa')
    a.label('L_fin_a')
    a('s_waitcnt lgkmcnt(4)'); fin(16, 4, vOut, T5, 'osb')
    a('s_waitcnt lgkmcnt(0)'); fin(48, 2, vOut, sO, 'osa')
    if OPT.get('padto'):
        a.label('L_pad')
        a(f's_memrealtime s[94:95]\ns_waitcnt lgkmcnt(0)\ns_sub_u32 s94, s94, s80\ns_cmp_lt_u32 s94, {OPT["padto"]}\ns_cbranch_scc1 L_pad')
    if a.diag:
        a('s_waitcnt vmcnt(0)')
        a.stamp(12)
        a.label('L_dump')
        a(f's_lshl_b32 {s(T0)}, s2, 3\ns_add_u32 {s(T0)}, {s(T0)}, {s(sWave)}\ns_lshl_b32 {s(T0)}, {s(T0)}, 7\ns_add_u32 {s(T0)}, {s(T0)}, {STAMPS:#x}')
        for k in range(16): a(f'v_mov_b32 {v(16+k)}, {s(SSTAMP+k)}')
        a(f's_lshl_b32 {s(T1)}, {s(T0)}, 1\ns_sub_u32 {s(T1)}, {s(T1)}, {STAMPS - 0x80000:#x}\nbuffer_store_dword v254, {v(vQL)}, {srd(sWS)}, {s(T1)} offen')
        a('v_mov_b32 v1, 0\ns_mov_b64 exec, 1')
        for k in range(4): a(f'buffer_store_dwordx4 {v(16+4*k,4)}, v1, {srd(sWS)}, {s(T0)} offen offset:{16*k}')
    a.label('L_end')
    a('s_endpgm')

def a_chain(a, opt):
    WPH, WL, WLq, WLk = 24, 28, 30, 32
    Fq, Fk, Fl, Fv = [36, 40], [44, 48], [52, 54], [56, 64]
    def lprio(x):
        if opt.get('lp', 1): a(f's_setprio {x}')
    a.label('L_achain')
    a.c('================= waves 4-7: publish A qkv, feature maps =================')
    a(f'''v_and_b32 v1, 31, v0
    v_lshrrev_b32 v2, 5, v0
    v_cmp_eq_u32 vcc, 20, v1
    v_mov_b32 v3, 17
    v_mov_b32 v4, {OOB:#x}
    v_cndmask_b32 v3, v1, v3, vcc
    v_cmp_ge_u32 {s(T0,2)}, 16, v1
    s_or_b64 vcc, vcc, {s(T0,2)}
    v_lshlrev_b32 v3, 1, v3
    s_mul_i32 {s(T2)}, {s(sHA)}, 648
    v_cndmask_b32 v3, v4, v3, vcc
    v_mul_u32_u24 v5, 288, v2
    v_add_u32 v4, v3, v5
    s_and_b32 {s(T0)}, {s(sHA)}, 1
    s_mul_i32 {s(T1)}, {s(T0)}, 72
    s_add_u32 {s(T3)}, {s(T2)}, {s(T1)}
    s_mul_i32 {s(T1)}, {s(T0)}, 576
    s_sub_u32 {s(T2)}, {s(T2)}, {s(T1)}
    s_add_u32 {s(T2)}, {s(T2)}, 576''')
    for e in range(8):
        a(f'buffer_load_ushort {v(8 + e)}, v4, {srd(sPHI)}, {s(T3)} offen offset:{e*36}')
    a(f'buffer_load_ushort v34, v3, {srd(sPHI)}, {s(T2)} offen\nbuffer_load_ushort v35, v3, {srd(sPHI)}, {s(T2)} offen offset:36')
    for k in range(3):
        if k < 2: a(f's_add_u32 {s(T0)}, {s(sW4)}, {4*k}\ns_lshl_b32 {s(T0)}, {s(T0)}, 6\nv_add_u32 v3, {s(T0)}, v0')
        else: a('v_add_u32 v3, 512, v0')
        a(f'''v_mul_u32_u24 v4, 7282, v3
        v_lshrrev_b32 v4, 16, v4
        v_mul_u32_u24 v5, 9, v4
        v_sub_u32 v5, v3, v5
        v_mul_u32_u24 v6, 1152, v4
        v_lshl_add_u32 {v(vWO+k)}, v5, 4, v6''')
    a(f's_mul_i32 {s(sWB)}, {s(sOC)}, 144')
    bg = [(sAWO, kq, SLOT_A[kq], P) for kq in (0, 2, 3) for P in range(3)] + [(sBWO, kq, SLOT_B[kq], P) for kq in (0, 1) for P in range(3)]
    def bgdma():
        if bg: issue_grp(a, *bg.pop(0))
    a('v_lshrrev_b32 v4, 1, v0\nv_min_u32 v4, 2, v4\nv_and_b32 v5, 1, v0')
    producer_ct(a, 3, 4, 5, sHA, 6)
    a(f'''s_lshl_b32 {s(T0)}, {s(sRB)}, 1
    s_add_u32 {s(T0)}, {s(T0)}, {s(sMG)}
    v_lshl_add_u32 v3, v3, 4, {s(T0)}
    v_lshlrev_b32 v3, 7, v3
    v_add_u32 {v(vPoll)}, {FL1A:#x}, v3''')
    a(f'''s_lshl_b32 {s(T6)}, {s(sRB)}, 3
    s_lshl_b32 {s(T1)}, {s(sW4)}, 1
    s_add_u32 {s(T6)}, {s(T6)}, {s(T1)}
    s_lshl_b32 {s(T1)}, {s(sHA)}, 6
    s_add_u32 {s(T0)}, {s(T6)}, {s(T1)}
    s_lshl_b32 {s(T4)}, {s(T0)}, 10
    s_add_u32 {s(T4)}, {s(T4)}, {QM + AOFF:#x}
    s_mul_i32 {s(T5)}, {s(T0)}, {REC}
    s_add_u32 {s(T5)}, {s(T5)}, {KV + AOFF:#x}
    s_lshr_b32 {s(T0)}, {s(sHA)}, 1
    s_lshl_b32 {s(T0)}, {s(T0)}, 6
    s_add_u32 {s(T0)}, {s(T0)}, {s(T6)}
    s_lshl_b32 {s(T0)}, {s(T0)}, 8
    s_and_b32 {s(T1)}, {s(sHA)}, 1
    s_lshl_b32 {s(T1)}, {s(T1)}, 2
    s_add_u32 {s(T0)}, {s(T0)}, {s(T1)}
    s_add_u32 {s(T0)}, {s(T0)}, {QL + AOFF:#x}
    v_mov_b32 v3, {s(T0)}''')
    kl_const(a, T1, sHA)
    a(f'''s_add_u32 {s(T1)}, {s(T1)}, {s(T5)}
    v_mov_b32 v4, {s(T1)}
    v_mov_b32 v5, 256
    v_mov_b32 v6, {REC}
    v_cmp_gt_u32 vcc, 32, v0
    v_mov_b32 {v(WLq+1)}, 0
    v_mov_b32 {v(WLk+1)}, 0
    v_cndmask_b32 v3, v4, v3, vcc
    v_cndmask_b32 v5, v6, v5, vcc
    v_lshl_add_u32 v7, v1, 3, v3
    v_add_u32 v6, v7, v5
    v_mov_b32 {v(Fl[0]+1)}, 0
    v_mov_b32 {v(Fl[1]+1)}, 0''')
    flag_addr(a, T1, sCT, sRT, 4, FL1A)
    a(f's_cmp_lg_u32 {s(sIdle)}, 0\ns_cselect_b32 {s(T1)}, {OOB:#x}, {s(T1)}')
    a('s_waitcnt vmcnt(0)')
    last_signals(a, 2, C_F1A, 4, T1)
    for i in range(4): a(f'v_lshl_or_b32 {v(WPH + i)}, {v(9 + 2*i)}, 16, {v(8 + 2*i)}')
    a(f'v_lshl_or_b32 {v(WL)}, v35, 16, v34\nv_cmp_gt_u32 vcc, 32, v0\ns_nop 1\nv_cndmask_b32 {v(WLq)}, {v(vZero)}, {v(WL)}, vcc\nv_cndmask_b32 {v(WLk)}, {v(WL)}, {v(vZero)}, vcc')
    a.stamp(5)
    poll_flags(a, vPoll, 2, sl=4)
    a.stamp(6)
    for tt in range(2):
        a(f'buffer_load_dwordx4 {v(Fk[tt],4)}, {v(v16)}, {srd(sWS)}, {s(T5)} offen offset:{REC*tt} sc1')
        a(f'buffer_load_dword {v(Fl[tt])}, {v(7 - tt)}, {srd(sWS)}, 0 offen sc1')
    for tt in range(2): a(f'buffer_load_dwordx4 {v(Fq[tt],4)}, {v(v16)}, {srd(sWS)}, {s(T4)} offen offset:{1024*tt} sc1')
    for tt in range(2):
        for f in range(2): a(f'buffer_load_dwordx4 {v(Fv[tt]+4*f,4)}, {v(vVf+f)}, {srd(sWS)}, {s(T5)} offen offset:{REC*tt} sc1')
    vPh, vPr = 8, 9
    lds_wait(a, 2, C_F1A, 4)
    a(f'''s_mul_i32 {s(T0)}, {s(sW4)}, 5120
    s_add_u32 {s(T0)}, {s(T0)}, {PHS}
    v_lshrrev_b32 v2, 5, v0
    v_mul_u32_u24 v3, 80, v1
    v_lshl_add_u32 v3, v2, 3, v3
    v_add_u32 {v(vPh)}, {s(T0)}, v3
    v_bfe_u32 v3, v0, 2, 2
    v_lshl_add_u32 v5, v2, 2, v3
    v_mul_u32_u24 v5, 80, v5
    v_add_u32 v5, {s(T0)}, v5
    v_and_b32 v4, 3, v0
    v_lshlrev_b32 v6, 3, v4
    v_and_b32 v3, 1, v0
    v_lshlrev_b32 v3, 3, v3
    v_add_u32 v3, 64, v3
    v_bfe_u32 v4, v0, 4, 1
    v_cmp_eq_u32 vcc, 0, v4
    v_add_u32 {v(vPr+1)}, v5, v6
    s_mov_b32 {s(T2)}, {f2u(LOG2E):#x}
    v_cndmask_b32 v6, v3, v6, vcc
    s_mov_b32 {s(T3)}, {f2u(LOG2E):#x}
    v_add_u32 {v(vPr)}, v5, v6''')
    D = {('k', 0): 80, ('k', 1): 96, ('q', 0): 112, ('q', 1): 128}
    a('s_waitcnt vmcnt(6)')
    lprio(0)
    for tt in range(2): mfma(a, D[('k', tt)], WLk, Fl[tt], None, '8')
    for tt in range(2): mfma(a, D[('q', tt)], WLq, Fl[tt], None, '8')
    a.nop(7)
    for tt in range(2): mfma(a, D[('k', tt)], WPH, Fk[tt], D[('k', tt)])
    a('s_waitcnt vmcnt(4)')
    for tt in range(2): mfma(a, D[('q', tt)], WPH, Fq[tt], D[('q', tt)])
    a.nop(8)
    lprio(1)
    EP, EM = 144, 156
    PH = {('q', 0): 204, ('q', 1): 214, ('k', 0): 168, ('k', 1): 178}
    def softmax2(x, P):
        a(f'''v_max3_f32 v2, {v(x)}, {v(x+1)}, {v(x+2)}
        v_max3_f32 v4, -{v(x)}, -{v(x+1)}, -{v(x+2)}
        v_max3_f32 v2, v2, {v(x+3)}, {v(x+4)}
        v_max3_f32 v4, v4, -{v(x+3)}, -{v(x+4)}
        v_max3_f32 v2, v2, {v(x+5)}, {v(x+6)}
        v_max3_f32 v4, v4, -{v(x+5)}, -{v(x+6)}
        v_max3_f32 v2, v2, {v(x+7)}, {v(x+8)}
        v_max3_f32 v4, v4, -{v(x+7)}, -{v(x+8)}
        s_nop 1
        v_permlane32_swap_b32 v2, v4
        v_max_f32 v2, v2, v4
        v_mul_f32 v2, {s(T2)}, v2
        v_mov_b32 v4, v2
        s_nop 1
        v_permlane32_swap_b32 v2, v4''')
        bgdma()
        for i in range(0, 8, 2):
            a(f'v_pk_fma_f32 {v(EP+i,2)}, {v(x+i,2)}, {s(T2,2)}, v[2:3] op_sel_hi:[1,1,0] neg_lo:[0,0,1] neg_hi:[0,0,1]')
        a(f'v_fma_f32 {v(EP+8)}, {v(x+8)}, {s(T2)}, -v2')
        for i in range(0, 8, 2):
            a(f'v_pk_fma_f32 {v(EM+i,2)}, {v(x+i,2)}, {s(T2,2)}, v[4:5] op_sel_hi:[1,1,0] neg_lo:[1,0,1] neg_hi:[1,0,1]')
        a(f'v_fma_f32 {v(EM+8)}, -{v(x+8)}, {s(T2)}, -v4')
        for E in (EP, EM):
            for i in range(9): a(f'v_exp_f32 {v(E+i)}, {v(E+i)}')
            bgdma()
        a(f'''v_pk_add_f32 v[2:3], {v(EP,2)}, {v(EP+2,2)}
        v_pk_add_f32 v[4:5], {v(EM,2)}, {v(EM+2,2)}
        v_pk_add_f32 v[2:3], v[2:3], {v(EP+4,2)}
        v_pk_add_f32 v[4:5], v[4:5], {v(EM+4,2)}
        v_pk_add_f32 v[2:3], v[2:3], {v(EP+6,2)}
        v_pk_add_f32 v[4:5], v[4:5], {v(EM+6,2)}
        v_add_f32 v2, v2, {v(EP+8)}
        v_add_f32 v4, v4, {v(EM+8)}
        v_add_f32 v2, v2, v3
        v_add_f32 v4, v4, v5
        s_nop 1
        v_permlane32_swap_b32 v2, v4
        v_add_f32 v2, v2, v4
        v_rcp_f32 v2, v2
        s_nop 0
        v_mov_b32 v4, v2
        s_nop 1
        v_permlane32_swap_b32 v2, v4''')
        for E, t in ((EP, 2), (EM, 4)):
            for i in range(0, 8, 2): a(f'v_pk_mul_f32 {v(E+i,2)}, {v(E+i,2)}, {v(t,2)} op_sel_hi:[1,0]')
            a(f'v_mul_f32 {v(E+8)}, {v(E+8)}, {v(t)}')
        bgdma()
        cvt8(a, EP, P); cvt8(a, EM, P+4)
        a(f'v_cvt_pk_bf16_f32 {v(P+8)}, {v(EP+8)}, {v(EM+8)}')
    for tt in range(2):
        P = PH[('k', tt)]
        softmax2(D[('k', tt)], P)
        o = 2560*tt
        a(f'''ds_write_b64 {v(vPh)}, {v(P,2)} offset:{o}
        ds_write_b64 {v(vPh)}, {v(P+2,2)} offset:{o+16}
        ds_write_b64 {v(vPh)}, {v(P+4,2)} offset:{o+32}
        ds_write_b64 {v(vPh)}, {v(P+6,2)} offset:{o+48}
        ds_write_b32 {v(vPh)}, {v(P+8)} offset:{o+64}''')
    a.c('kv partial of this wave: phi_k^T (transposed through LDS) x [v | 1]')
    KA = 144; KD = [80, 96]
    a('s_waitcnt lgkmcnt(0)')
    for k in range(4):
        for sg in range(2):
            for j in range(2):
                a(f'ds_read_b64_tr_b16 {v(KA+8*k+4*sg+2*j,2)}, {v(vPr+sg)} offset:{(16*k+8*j)*80 + 32*sg}')
    a(f'''s_mul_i32 {s(T0)}, {s(sW4)}, 5120
    v_add_u32 v6, {s(T0)}, {v(v16)}
    v_lshlrev_b32 v1, 3, v0
    v_add_u32 v7, {s(T0)}, v1
    s_waitcnt vmcnt(12) lgkmcnt(0)''')
    lprio(0)
    for k in range(4):
        for sg in range(2): mfma(a, KD[sg], KA+8*k+4*sg, Fv[0]+4*k, None if k == 0 else KD[sg])
    lprio(1)
    softmax2(D[('q', 0)], PH[('q', 0)])
    a(f'''ds_write_b128 v6, {v(KD[0],4)} offset:{PHS}
    ds_write_b128 v6, {v(KD[0]+4,4)} offset:{PHS+1024}
    ds_write_b64 v7, {v(KD[0]+8,2)} offset:{PHS+2048}
    ds_write_b128 v6, {v(KD[1],4)} offset:{PHS+2560}
    ds_write_b128 v6, {v(KD[1]+4,4)} offset:{PHS+3584}
    s_waitcnt lgkmcnt(0)''')
    lds_arrive(a, C_KVX)
    a(f'''s_mul_i32 {s(T7)}, {s(sTH)}, 2560
    s_lshl_b32 {s(T1)}, {s(sMG)}, 10
    s_add_u32 {s(T7)}, {s(T7)}, {s(T1)}
    v_add_u32 v6, {s(T7)}, {v(v16)}
    s_lshl_b32 {s(T0)}, {s(sHA)}, 3
    s_add_u32 {s(T1)}, {s(T0)}, {s(sRB)}
    s_mul_i32 {s(T4)}, {s(T1)}, {KVPS}
    s_add_u32 {s(T4)}, {s(T4)}, {KVP:#x}
    s_add_u32 {s(T5)}, {s(T4)}, {s(T7)}
    s_lshl_b32 {s(T1)}, {s(T1)}, 7
    s_add_u32 {s(T1)}, {s(T1)}, {FL2:#x}''')
    lds_wait(a, 2, C_KVX, 4)
    R = 80
    for w in range(4): a(f'ds_read_b128 {v(R+4*w,4)}, v6 offset:{PHS + 5120*w}')
    a(f's_cmp_lg_u32 {s(sW4)}, 3\ns_cbranch_scc1 L_kvx')
    for w in range(4): a(f'ds_read_b64 {v(R+16+2*w,2)}, v1 offset:{PHS + 5120*w + 2048}')
    a('s_waitcnt lgkmcnt(0)')
    for w in range(1, 4): a(f'v_pk_add_f32 {v(R+16,2)}, {v(R+16,2)}, {v(R+16+2*w,2)}')
    a(f'buffer_store_dwordx2 {v(R+16,2)}, v1, {srd(sWS)}, {s(T4)} offen offset:2048 sc1')
    a.label('L_kvx')
    a('s_waitcnt lgkmcnt(0)')
    for w in range(1, 4):
        for k in range(2): a(f'v_pk_add_f32 {v(R+2*k,2)}, {v(R+2*k,2)}, {v(R+4*w+2*k,2)}')
    a(f'buffer_store_dwordx4 {v(R,4)}, {v(v16)}, {srd(sWS)}, {s(T5)} offen sc1')
    softmax2(D[('q', 1)], PH[('q', 1)])
    for tt in range(2): a(f'v_mov_b32 {v(PH[("q", tt)]+9)}, 0')
    a('s_waitcnt vmcnt(0)')
    last_signals(a, 2, C_F2, 4, T1)
    a.stamp(7)
    a.c('================= waves 4-7: kv total, numerator / denominator =================')
    a(f'''v_and_b32 v3, 7, v0
    s_lshl_b32 {s(T0)}, {s(sHA)}, 3
    v_add_u32 v3, {s(T0)}, v3
    v_lshlrev_b32 v3, 7, v3
    v_add_u32 v3, {FL2:#x}, v3
    s_mul_i32 {s(T4)}, {s(T0)}, {KVPS}
    s_add_u32 {s(T4)}, {s(T4)}, {KVP:#x}
    s_add_u32 {s(T5)}, {s(T4)}, {s(T7)}
    s_lshl_b32 {s(T7)}, {s(sTH)}, 10
    s_lshl_b32 {s(T0)}, {s(sMG)}, 3
    s_add_u32 {s(T7)}, {s(T7)}, {s(T0)}
    s_add_u32 {s(T7)}, {s(T7)}, {KVF}''')
    assert not bg
    lds_wait(a, 2, C_F2, 4)
    issue_blk(a, sAWO, 1, SLOT_A[1])
    poll_flags(a, 3, 2, sl=4)
    for i in range(8):
        a(f'buffer_load_dwordx4 {v(R+4*i,4)}, {v(v16)}, {srd(sWS)}, {s(T5)} offen sc1')
        if i < 7: a(f's_add_u32 {s(T5)}, {s(T5)}, {KVPS}')
    a(f'v_add_u32 v3, {s(T7)}, {v(v16)}\nv_add_u32 v6, {KVF + 2048}, v1\ns_cmp_lg_u32 {s(sW4)}, 3\ns_cbranch_scc1 L_kvs')
    for i in range(8):
        a(f'buffer_load_dwordx2 {v(R+32+2*i,2)}, v1, {srd(sWS)}, {s(T4)} offen offset:2048 sc1')
        if i < 7: a(f's_add_u32 {s(T4)}, {s(T4)}, {KVPS}')
    a('s_waitcnt vmcnt(0)')
    for i in range(1, 8): a(f'v_pk_add_f32 {v(R+32,2)}, {v(R+32,2)}, {v(R+32+2*i,2)}')
    a(f'v_cvt_pk_bf16_f32 v4, {v(R+32)}, {v(R+33)}\nv_mov_b32 v5, 0\nds_write_b64 v6, v[4:5]')
    a.label('L_kvs')
    a('s_waitcnt vmcnt(0)')
    for i in range(1, 8):
        for k in range(2): a(f'v_pk_add_f32 {v(R+2*k,2)}, {v(R+2*k,2)}, {v(R+4*i+2*k,2)}')
    a(f'v_cvt_pk_bf16_f32 v10, {v(R)}, {v(R+1)}\nv_cvt_pk_bf16_f32 v11, {v(R+2)}, {v(R+3)}\nds_write_b64 v3, v[10:11]\ns_waitcnt lgkmcnt(0)')
    lds_arrive(a, C_KVF)
    lds_wait(a, 2, C_KVF, 4)
    KF = 144
    a(f'''v_add_u32 v3, {KVF}, {v(v16)}
    ds_read_b64 {v(KF+8,2)}, v6
    ds_read_b128 {v(KF,4)}, v3
    ds_read_b128 {v(KF+4,4)}, v3 offset:1024
    s_mov_b32 {s(T0)}, {s(T6)}''')
    o_addr(a, sHA, OAM, OAL)
    a('s_waitcnt lgkmcnt(0)')
    ND = [80, 96]
    lprio(0)
    for tt in range(2): mfma(a, ND[tt], KF+8, PH[('q', tt)]+8, None, '8')
    a.nop(9)
    for tt in range(2): mfma(a, ND[tt], KF, PH[('q', tt)], ND[tt])
    for tt in range(2): mfma(a, ND[tt], KF+4, PH[('q', tt)]+4, ND[tt])
    a.nop(11)
    lprio(1)
    o_publish(a, ND, [112, 120], True)
    flag_addr(a, T1, sRB, sHA, 5, FL3)
    a('s_waitcnt vmcnt(0)')
    last_signals(a, 2, C_F3, 4, T1)
    a.stamp(8)
    a.c('================= waves 4-7: out projection of A (operands first, MFMAs after the attention) =================')
    W, O1, O2 = 16, 124, 160
    X = (8, 9, 10, 11); Y = (12, 13, 14, 15)
    sM, sM2, sL = T2, T3, T4
    a(f's_mul_i32 {s(T6)}, {s(sMG)}, {WBLK}\ns_add_u32 {s(T6)}, {s(T6)}, {SLOT_A[0]}')
    op_addr(a, *X, 2, T6)
    op_read_w(a, W, *X)
    for i in range(4): a(f'v_subrev_u32 {v(Y[i])}, {4*WBLK}, {v(X[i])}')
    a(f'''v_and_b32 v1, 31, v0
    v_lshrrev_b32 v2, 5, v0
    v_lshlrev_b32 v3, 2, v1
    v_lshl_add_u32 v5, v2, 9, v3
    s_lshr_b32 {s(T0)}, {s(sOT)}, 2
    s_lshl_b32 {s(T0)}, {s(T0)}, 5
    v_add_u32 v3, {s(T0)}, v1
    v_lshlrev_b32 v3, 7, v3
    v_add_u32 v3, {FL3:#x}, v3
    s_lshl_b32 {s(T1)}, {s(sOT)}, 1
    s_add_u32 {s(T5)}, {s(sTH)}, {s(T1)}
    s_lshl_b32 {s(T0)}, {s(T5)}, 5
    s_lshl_b32 {s(T1)}, {s(sMG)}, 4
    s_add_u32 {s(T7)}, {s(T0)}, {s(T1)}
    s_lshl_b32 {s(sM)}, {s(T7)}, 10
    s_add_u32 {s(sM)}, {s(sM)}, {OAM:#x}
    s_add_u32 {s(sM2)}, {s(sM)}, 4096
    s_lshl_b32 {s(sL)}, {s(T7)}, 7
    s_add_u32 {s(sL)}, {s(sL)}, {OAL:#x}
    s_waitcnt lgkmcnt(0)''')
    lds_arrive(a, C_W1)
    lds_wait(a, 4, C_W1, 4)
    for kq in (2, 3): issue_blk(a, sBWO, kq, SLOT_B[kq])
    poll_flags(a, 3, 4, sl=4)
    op_load_o(a, O1, v16, 5, sM, sM2, sL, OPT.get('thr', 1))
    a(f's_add_u32 {s(sM)}, {s(sM)}, 8192\ns_add_u32 {s(sM2)}, {s(sM2)}, 8192\ns_add_u32 {s(sL)}, {s(sL)}, 1024')
    op_load_o(a, O2, v16, 5, sM, sM2, sL, OPT.get('thr', 1))
    a('s_waitcnt vmcnt(0)')
    final_setup(a)
    a.stamp(9)
    pre = opt.get('pre', 0)
    mid = opt.get('mid', 1)
    a('s_setprio 0')
    for ps, (O, nxt) in enumerate(((O1, Y), (O2, X))):
        if ps == 1 and mid:
            a(f's_waitcnt vmcnt(0) lgkmcnt(6)\nv_cmp_ne_u32 vcc, {s(sTok)}, {v(vFlg)}')
            half_try(a)
        elif ps == 1: a('s_waitcnt lgkmcnt(6)')
        for st in range(9):
            if 9*ps + st == pre: a(f's_barrier\ns_setprio {opt.get("prio2", 0)}')
            if ps == 1 and st == 8: a('s_waitcnt lgkmcnt(12)')
            for T in range(3):
                mfma(a, ACA[T], W + 12*st + 4*T, O + 4*st, None if (ps == 0 and st == 0) else ACA[T])
            if st: a(op_w_reads(W, *nxt, st - 1))
            if (ps, st) == (1, 5) or (mid and (ps, st) == (0, max(pre, mid))): flag_ld(a)
        a(op_w_reads(W, *nxt, 8))
    a.nop(6)
    for i in range(4): a(f'v_mov_b32 {v(208+i)}, {v(ACA[2]+i)}')
    a.stamp(2)

HEADER = '''; Fused hedgehog linear attention (A) + softmax MHA (B), one persistent launch of 256 workgroups.
; kernarg: A_x A_wqkv A_w_phi A_wo B_x B_wqkv B_wo out debug ws (8-byte pointers, in that order)
; @launch grid=(256,1,1) block=(512,1,1) lds=%d
.amdgcn_target "amdgcn-amd-amdhsa--gfx950"
.text
.globl %s_kernel
.p2align 8
.type %s_kernel,@function
%s_kernel:
''' % (LDS_BYTES, NAME, NAME, NAME)
FOOTER = '''.section .rodata,"a"
.p2align 6
.amdhsa_kernel %s_kernel
  .amdhsa_next_free_vgpr 256
  .amdhsa_next_free_sgpr 102
  .amdhsa_accum_offset 256
  .amdhsa_group_segment_fixed_size 0
  .amdhsa_kernarg_size 80
  .amdhsa_user_sgpr_count 2
  .amdhsa_user_sgpr_kernarg_segment_ptr 1
  .amdhsa_system_sgpr_workgroup_id_x 1
.end_amdhsa_kernel
''' % NAME

OPT = {}
def generate(diag=False, **opt):
    opt = {**dict(rot=0, thr=3, sig=12, ldp=1), **opt}
    OPT.clear(); OPT.update(opt)
    a = Asm(diag)
    prologue(a, opt)
    gemm(a, opt)
    p_path(a, opt)
    a_chain(a, opt)
    final(a)
    body = a.text()
    bad = lint(body)
    for x in bad: print(f"HAZARD line {x[0]} -> {x[1]}: {x[2]} need {x[3]} have {x[4]}\n    {x[5]}\n    {x[6]}", file=sys.stderr)
    return HEADER + (f'    ; stamps={STAMPS:#x}\n' if diag else '') + body + FOOTER, len(bad)

if __name__ == '__main__':
    import argparse
    ap = argparse.ArgumentParser()
    ap.add_argument('-o', default=f'cdna_kernels/{NAME}.s')
    ap.add_argument('--diag', action='store_true')
    ap.add_argument('--opt', action='append', default=[])
    g = ap.parse_args()
    opt = {}
    for o in g.opt:
        k, val = o.split('='); opt[k] = int(val)
    text, nbad = generate(g.diag, **opt)
    open(g.o, 'w').write(text)
    print(f'wrote {g.o}: {len(text)} bytes, {nbad} hazards')
```

```python
import sys, struct
from lint import lint

NAME = 'concat_heads__linear_kernel_hedgehog__softmax_full_mha__prompt'
OOB = 0x40000000
QM, QL, KV = 0x0, 0x200000, 0x240000
REC = 2560; HREC = 64 * REC
VLOFF, ONEOFF, KLOFF = 2048, 2176, 2304
AOFF = 0x740000
OAM, OAL, OBM, OBL = 0xE80000, 0x1080000, 0x10C0000, 0x12C0000
KVP = 0x1300000; KVPS = 4608
FL1, FL1A, FL2, FL3, FL4 = 0x1420000, 0x1428000, 0x1430000, 0x1438000, 0x1440000
EPOCH = 0x1448000
STAMPS = 0x1500000
WS_BYTES = 0x1800000
XA = 0
PHS = 28672
WBLK = 21504
WS0 = 28672
SLOT_A = [WS0 + 4*WBLK, WS0, WS0 + 5*WBLK, WS0 + WBLK]
SLOT_B = [WS0 + 2*WBLK, WS0 + 3*WBLK, WS0 + 4*WBLK, WS0 + 5*WBLK]
EAX = 131072
CNT = WS0 + 6*WBLK
KVF = CNT + 256
LDS_BYTES = 163840
C_F1, C_F1A, C_KVX, C_F2, C_KVF, C_F3, C_OPA, C_F4, C_BAD, C_W1, C_TOK, C_W2, C_W3 = [4 * i for i in range(13)]
sBX, sBW, sAX, sAW, sPHI, sAWO, sBWO, sOUT, sDBG, sWS = 4, 8, 12, 16, 20, 24, 28, 32, 36, 40
sWave, sCT, sRT, sH = 44, 45, 46, 47
T0, T1, T2, T3, T4, T5, T6, T7 = range(48, 56)
sTab, sS0, sDoSc, sIdle = 64, 65, 66, 67
sQB, sRot, sFree, sOT, sOC, sTok, sLoc, sXcd = 68, 69, 70, 71, 72, 73, 74, 75
sHA, sRB = sH, sQB
sSpin, sTH, sMG, sTile = 76, 77, 78, 79
SSTAMP = 80
sW4, sImg, sXB, sWB, sLh2, sLt2 = 96, 97, 98, 99, 100, 101
v16, vQL, vCnt, vOne, vZero, vPoll, vTok = 244, 245, 246, 247, 248, 249, 250
vVf = 252
EA, ES = 72, 84
vWO = 224
vX, vW, XAc, WAc, XAr, WAr, vTab = 228, 232, 24, 28, 32, 36, 39
ACC = {('a', 0): 96, ('a', 1): 112, ('b', 0): 128, ('b', 1): 144}
FS = [176, 192, 40, 56]
def m_of(sl): return 9*(sl >> 2) + 2*(sl & 1) + 5*((sl >> 1) & 1)
def ct_table(ct):
    lo = 32*ct; s0 = next(x for x in range(200) if m_of(x) >= lo)
    used = {m_of(x) + d for x in range(s0, s0 + 12) for d in (0, 1)}
    misc = [m - lo for m in range(lo, lo + 32) if m not in used]
    assert misc[4:] == [28, 29, 30, 31]
    return sum(c << (5*i) for i, c in enumerate(misc[:4])) | (s0 << 20)

LOG2E = 1.4426950408889634
def f2u(x): return struct.unpack('<I', struct.pack('<f', x))[0]
QSCALE = f2u(18 ** -0.5 * LOG2E)

def v(a, n=1): return f'v{a}' if n == 1 else f'v[{a}:{a+n-1}]'
def s(a, n=1): return f's{a}' if n == 1 else f's[{a}:{a+n-1}]'
def srd(a): return s(a, 4)

import re
def unpack(x):
    m = re.match(r'v_pk_(add_f32|mul_f32|mov_b32) ([vs])\[(\d+):\d+\], ([vs])\[(\d+):\d+\], ([vs])\[(\d+):\d+\](.*)', x)
    op, _, d, k0, a0, k1, a1, mod = m.groups(); d, a0, a1 = int(d), int(a0), int(a1); mod = mod.strip()
    if op == 'mov_b32':
        assert mod == 'op_sel:[0,1]'
        return [f'v_mov_b32 v{d}, v{a0}', f'v_mov_b32 v{d+1}, v{a1+1}']
    assert mod in ('', 'op_sel_hi:[1,0]') and k0 == 'v'
    h = 0 if mod else 1
    return [f'v_{op} v{d}, {k1}{a1}, v{a0}', f'v_{op} v{d+1}, {k1}{a1+h}, v{a0+1}']

class Asm:
    def __init__(self, diag=False):
        self.L = []; self.uid = 0; self.diag = diag; self.lock = False; self.nopk = False
    def __call__(self, t):
        for x in t.split('\n'):
            x = x.strip()
            if not x: continue
            if self.nopk and x.startswith('v_pk_'): self.L += ['    ' + y for y in unpack(x)]
            else: self.L.append('    ' + x)
    def label(self, n): self.L.append(n + ':')
    def c(self, t): self.L.append('    ; ' + t)
    def new(self, p):
        self.uid += 1; return f'L_{p}{self.uid}'
    def nop(self, n):
        while n > 0:
            k = min(n, 16); self(f's_nop {k-1}'); n -= k
    def stamp(self, k):
        if self.diag and not self.lock:
            self(f's_memrealtime {s(94,2)}\ns_waitcnt lgkmcnt(0)\ns_mov_b32 {s(SSTAMP+k)}, s94')
    def lstamp(self, sreg, base=0):
        if self.diag:
            self(f's_memrealtime s[94:95]\ns_add_u32 s95, {sreg}, {base}\ns_mov_b32 s93, s95\ns_waitcnt lgkmcnt(0)\nv_writelane_b32 v254, s94, s93'.replace('s_add_u32 s95', 's_add_u32 s93').replace('s_mov_b32 s93, s95\n', '').replace('v_writelane_b32 v254, s94, s93', 's_mov_b32 m0, s93\nv_writelane_b32 v254, s94, m0'))
    def cyc0(self):
        if self.diag: self('s_memtime s[94:95]\ns_waitcnt lgkmcnt(0)\ns_mov_b32 s93, s94')
    def cyc1(self):
        if self.diag: self('s_memtime s[94:95]\ns_waitcnt lgkmcnt(0)\ns_sub_u32 s93, s94, s93')
    def text(self): return '\n'.join(self.L) + '\n'

class VM:
    def __init__(self): self.q = []
    def add(self, tag, n=1): self.q += [tag] * n
    def after(self, tag):
        i = max(k for k, t in enumerate(self.q) if t == tag)
        return len(self.q) - 1 - i

def mfma_s(d, x, y, c=None, kind='16'):
    op = {'16': 'v_mfma_f32_32x32x16_bf16', '8': 'v_mfma_f32_32x32x8_bf16', '2b': 'v_mfma_f32_32x32x4_2b_bf16'}[kind]
    nd = 32 if kind == '2b' else 16; na = 4 if kind == '16' else 2
    return f'{op} {v(d,nd)}, {v(x,na)}, {v(y,na)}, {"0" if c is None else v(c,nd)}'
def mfma(a, *k, **kw): a(mfma_s(*k, **kw))

def opol(k): return ['', ' sc1', ' nt', ' sc0 sc1', ' sc1 nt'][OPT.get(k, 0)]

def cvt8(a, src, dst):
    for i in range(4): a(f'v_cvt_pk_bf16_f32 {v(dst+i)}, {v(src+2*i)}, {v(src+2*i+1)}')

SRDS = {sAX: (48, 2048*1152), sAW: (50, 576*3456), sPHI: (52, 32*648), sAWO: (54, 576*1152), sBX: (56, 2048*1152),
        sBW: (58, 576*3456), sBWO: (60, 576*1152), sOUT: (62, 2048*2304), sDBG: (64, 256), sWS: (66, WS_BYTES)}
def mk_srd(a, r):
    p, nbytes = SRDS[r]
    a(f's_mov_b32 {s(r)}, {s(p)}\ns_mov_b32 {s(r+1)}, {s(p+1)}\ns_mov_b32 {s(r+2)}, {nbytes:#x}\ns_mov_b32 {s(r+3)}, 0x20000')

def spin_tail(a, top, sl=1):
    a(f's_sleep {sl}\ns_sub_u32 {s(sSpin)}, {s(sSpin)}, 1\ns_cbranch_scc0 {top}\ns_endpgm')

def token_issue(a):
    a(f'buffer_load_dwordx2 {v(vTok,2)}, {v(vZero)}, {srd(sDBG)}, 0 offen sc1')
def token_check(a):
    top = a.new('tok'); done = a.new('tokd')
    a.label(top)
    a(f'v_readfirstlane_b32 {s(T0)}, {v(vTok+1)}\nv_readfirstlane_b32 {s(sTok)}, {v(vTok)}\ns_cmp_lg_u32 {s(T0)}, 0\ns_cbranch_scc1 {done}')
    token_issue(a)
    a('s_waitcnt vmcnt(0)')
    spin_tail(a, top)
    a.label(done)

def poll_flags(a, vaddr, vt, preloaded=False, sl=1):
    top = a.new('poll'); done = a.new('polld'); chk = a.new('pollc')
    if preloaded: a(f's_branch {chk}')
    a.label(top)
    a(f'buffer_load_dword {v(vt)}, {v(vaddr)}, {srd(sWS)}, 0 offen sc1\ns_waitcnt vmcnt(0)')
    a.label(chk)
    a(f'v_cmp_ne_u32 vcc, {s(sTok)}, {v(vt)}\ns_cbranch_vccz {done}')
    spin_tail(a, top, sl)
    a.label(done)

def last_signals(a, vt, ctr, n, sflag):
    skip = a.new('nsig')
    a(f's_mov_b64 exec, 1\nds_add_rtn_u32 {v(vt)}, {v(vCnt)}, {v(vOne)} offset:{ctr}\ns_waitcnt lgkmcnt(0)')
    a(f'v_readfirstlane_b32 {s(T0)}, {v(vt)}\nv_mov_b32 {v(vt)}, {s(sflag)}\nv_mov_b32 {v(vt+1)}, {s(sTok)}\ns_cmp_lg_u32 {s(T0)}, {n-1}\ns_cbranch_scc1 {skip}')
    a(f'buffer_store_dword {v(vt+1)}, {v(vt)}, {srd(sWS)}, 0 offen sc1')
    a.label(skip)
    a('s_mov_b64 exec, -1')

def lds_arrive(a, ctr):
    a(f's_mov_b64 exec, 1\nds_add_u32 {v(vCnt)}, {v(vOne)} offset:{ctr}\ns_mov_b64 exec, -1')

def lds_wait(a, vt, ctr, n, sl=2):
    top = a.new('lw'); done = a.new('lwd')
    a.label(top)
    a(f'ds_read_b32 {v(vt)}, {v(vCnt)} offset:{ctr}\ns_waitcnt lgkmcnt(0)\nv_readfirstlane_b32 {s(T0)}, {v(vt)}\ns_cmp_ge_u32 {s(T0)}, {n}\ns_cbranch_scc1 {done}')
    spin_tail(a, top, sl)
    a.label(done)

def flag_addr(a, dst, shi, slo, sh, base):
    a(f's_lshl_b32 {s(dst)}, {s(shi)}, {sh}\ns_add_u32 {s(dst)}, {s(dst)}, {s(slo)}\ns_lshl_b32 {s(dst)}, {s(dst)}, 7\ns_add_u32 {s(dst)}, {s(dst)}, {base:#x}')

def kl_const(a, dst, shead):
    a(f's_bitcmp1_b32 {s(shead)}, 0\ns_mov_b32 {s(dst)}, {HREC + KLOFF}\ns_cselect_b32 {s(dst)}, {KLOFF + 4}, {s(dst)}')

def producer_ct(a, d, ty, last, shead, t):
    a(f'''s_lshr_b32 {s(T0)}, {s(shead)}, 1
    s_mul_i32 {s(T0)}, {s(T0)}, 36
    s_and_b32 {s(T1)}, {s(shead)}, 1
    s_lshl_b32 {s(T1)}, {s(T1)}, 4
    s_add_u32 {s(T0)}, {s(T0)}, {s(T1)}
    v_mul_u32_u24 {v(d)}, 576, {v(ty)}
    v_mul_u32_u24 {v(t)}, 19, {v(last)}
    v_add3_u32 {v(d)}, {v(d)}, {v(t)}, {s(T0)}
    v_lshrrev_b32 {v(d)}, 7, {v(d)}''')

def issue_chunk(a, j):
    if OPT.get('nodma') and j > 1: return
    slot = (j % 4) * 32768; c = j % 9
    if OPT.get('samek'): c = 0
    X, W = (sBX, sBW) if j < 9 else (sAX, sAW)
    nx = ' nt' if OPT.get('nt', 0) & 1 else ''; nw = ' nt' if OPT.get('nt', 0) & 2 else ''
    if OPT.get('rot', 0):
        a(f'''s_add_u32 vcc_lo, {s(sRot)}, {c}
        s_cmp_ge_u32 vcc_lo, 9
        s_cselect_b32 vcc_hi, 9, 0
        s_sub_u32 vcc_lo, vcc_lo, vcc_hi
        s_mul_i32 vcc_hi, vcc_lo, {64*3456}
        s_add_u32 vcc_hi, vcc_hi, {s(sWB)}
        s_lshl_b32 vcc_lo, vcc_lo, 7
        s_add_u32 vcc_lo, vcc_lo, {s(sXB)}
        s_lshl_b32 s3, {s(sW4)}, 12
        s_add_u32 m0, s3, {slot}
        s_nop 0''')
    else:
        a(f's_lshl_b32 s3, {s(sW4)}, 12\ns_add_u32 m0, s3, {slot}\ns_add_u32 vcc_lo, {s(sXB)}, {128*c}\ns_add_u32 vcc_hi, {s(sWB)}, {64*3456*c}')
    for i in range(4): a(f'buffer_load_dwordx4 {v(vX+i)}, {srd(X)}, vcc_lo offen offset:{1024*i}{nx} lds')
    a(f's_add_u32 m0, s3, {slot + 16384}\ns_nop 0')
    for i in range(4): a(f'buffer_load_dwordx4 {v(vW+i)}, {srd(W)}, vcc_hi offen offset:{1024*i}{nw} lds')

def su_loader(a):
    a.c('loader lane offsets: x rows (xor-swizzled 16-byte pieces), w rows (16 pieces, rotated by four per row)')
    a(f'''v_lshrrev_b32 v1, 3, v0
    v_and_b32 v2, 7, v0
    v_lshrrev_b32 v3, 1, v1
    v_xor_b32 v2, v2, v3
    v_mul_u32_u24 v1, 1152, v1
    v_lshl_add_u32 {v(vX)}, v2, 4, v1
    v_xor_b32 v2, 4, v2
    v_lshl_add_u32 {v(vX+1)}, v2, 4, v1
    v_add_u32 {v(vX+1)}, {8*1152-1024}, {v(vX+1)}
    v_add_u32 {v(vX+2)}, {2*(8*1152-1024)}, {v(vX)}
    v_add_u32 {v(vX+3)}, {2*(8*1152-1024)}, {v(vX+1)}
    v_lshrrev_b32 v1, 4, v0
    v_lshlrev_b32 v2, 2, v1
    v_sub_u32 v2, v0, v2
    v_and_b32 v2, 15, v2
    v_mul_u32_u24 v1, 3456, v1
    v_lshl_add_u32 v5, v2, 4, v1
    s_cmp_eq_u32 {s(sCT)}, 13
    s_cselect_b32 s3, 8, 16
    v_cmp_gt_u32 vcc, s3, v2
    v_mov_b32 v7, {OOB:#x}
    s_nop 0
    v_cndmask_b32 {v(vW)}, v7, v5, vcc''')
    for i in range(1, 4): a(f'v_add_u32 {v(vW+i)}, {i*(4*3456-1024)}, {v(vW)}')
    su_loader_s(a)

def su_loader_s(a):
    a(f'''s_lshl_b32 {s(sXB)}, {s(sRT)}, 2
    s_add_u32 {s(sXB)}, {s(sXB)}, {s(sW4)}
    s_mul_i32 {s(sXB)}, {s(sXB)}, {32*1152}
    s_mul_i32 {s(sWB)}, {s(sW4)}, {16*3456}
    s_lshl_b32 s3, {s(sCT)}, 8
    s_add_u32 {s(sWB)}, {s(sWB)}, s3''')

def su_ids2(a):
    a(f'''s_lshl_b32 s3, {s(sXcd)}, 2
    s_and_b32 {s(sH)}, {s(sLoc)}, 3
    s_add_u32 {s(sH)}, {s(sH)}, s3
    s_lshr_b32 {s(sQB)}, {s(sLoc)}, 2
    s_lshr_b32 {s(sOT)}, {s(sLoc)}, 3
    s_add_u32 {s(sOT)}, {s(sOT)}, s3
    s_and_b32 {s(sOC)}, {s(sLoc)}, 7
    s_mov_b32 {s(sSpin)}, 0x40000
    s_and_b32 {s(sTH)}, {s(sWave)}, 1
    s_lshr_b32 {s(sMG)}, {s(sW4)}, 1
    s_cmp_lt_u32 {s(sWave)}, 4
    s_cselect_b32 {s(sImg)}, 0, {AOFF:#x}
    v_mov_b32 {v(vZero)}, 0
    v_mov_b32 {v(vCnt)}, {CNT}
    v_mov_b32 {v(vOne)}, 1''')

def su_token(a, part):
    lb = a.new('notok')
    a(f's_or_b32 s3, s2, {s(sWave)}\ns_cmp_lg_u32 s3, 0\ns_cbranch_scc1 {lb}\ns_mov_b32 {s(T0)}, {EPOCH:#x}')
    if part == 0:
        a(f'buffer_load_dword v10, {v(vZero)}, {srd(sWS)}, {s(T0)} offen sc1')
    else:
        a(f'''s_mov_b32 {s(T1)}, 1664525
        s_waitcnt vmcnt(0)
        v_mul_lo_u32 v6, v10, {s(T1)}
        v_add_u32 v6, 0x3c6ef35f, v6
        v_mov_b32 v7, 1
        s_mov_b64 exec, 1
        buffer_store_dwordx2 v[6:7], {v(vZero)}, {srd(sDBG)}, 0 offen sc1
        buffer_store_dword v6, {v(vZero)}, {srd(sWS)}, {s(T0)} offen sc1
        s_mov_b64 exec, -1''')
    a.label(lb)
    if part == 0:
        a(f's_cmp_lg_u32 {s(sWave)}, 1\ns_cbranch_scc1 L_nocnt\nv_lshlrev_b32 v1, 2, v0\nv_add_u32 v1, {CNT}, v1\nds_write_b32 v1, {v(vZero)}')
        a.label('L_nocnt')

def su_gaddr(a):
    lb = a.new('mg0')
    a.c('gemm fragment addresses')
    a(f'''v_and_b32 v1, 31, v0
    v_lshrrev_b32 v2, 5, v0
    v_bfe_u32 v3, v0, 1, 3
    v_xor_b32 v3, v3, v2
    s_lshl_b32 s3, {s(sTH)}, 13
    v_lshl_add_u32 v4, v1, 7, s3''')
    for k in range(4):
        a(f'v_xor_b32 v5, {2*k}, v3\nv_lshl_add_u32 {v(XAc+k)}, v5, 4, v4')
    a.c('which four-column chunk each lane group reads for the two 32-column tiles of this wave')
    a(f'''v_bfe_u32 v3, v0, 2, 2
    v_and_b32 v4, 3, v0
    v_bfe_u32 v5, v0, 4, 1
    v_lshl_add_u32 v4, v5, 2, v4
    v_lshl_add_u32 v5, v2, 3, v3
    v_lshlrev_b32 v5, 8, v5
    v_add_u32 v5, 16384, v5
    v_lshlrev_b32 v3, 2, v3
    s_lshl_b32 s3, {s(sMG)}, 4''')
    for u in range(2): a(f'v_add_u32 {v(WAc+u)}, s3, v4' + (f'\nv_add_u32 {v(WAc+u)}, 8, {v(WAc+u)}' if u else ''))
    a(f's_cmp_ge_u32 {s(sCT)}, 9\ns_cbranch_scc1 {lb}')
    a(f'''v_lshrrev_b32 v6, 2, v4
    v_and_b32 v7, 1, v4
    v_lshl_add_u32 v6, v6, 1, v7
    s_lshl_b32 s3, {s(sMG)}, 3
    s_add_u32 s3, s3, {s(sS0)}
    v_add_u32 v6, s3, v6
    v_lshrrev_b32 v7, 2, v6
    v_mul_u32_u24 v7, 9, v7
    v_and_b32 v1, 1, v6
    v_lshl_add_u32 v7, v1, 1, v7
    v_bfe_u32 v1, v6, 1, 1
    v_mul_u32_u24 v1, 5, v1
    v_bfe_u32 v6, v4, 1, 1
    v_add3_u32 v7, v7, v1, v6
    s_lshl_b32 s3, {s(sCT)}, 5
    v_subrev_u32 {v(WAc)}, s3, v7
    v_add_u32 {v(WAc+1)}, 9, {v(WAc)}
    s_cmp_eq_u32 {s(sMG)}, 0
    s_cbranch_scc1 {lb}''')
    misc_chunk(a, WAc+1, 4, 6)
    a.label(lb)
    for u in range(2):
        a(f'''v_lshrrev_b32 v6, 1, {v(WAc+u)}
        v_add_u32 v6, v6, v3
        v_and_b32 v6, 15, v6
        v_lshl_add_u32 v6, v6, 4, v5
        v_and_b32 {v(WAc+u)}, 1, {v(WAc+u)}
        v_lshl_add_u32 {v(WAc+u)}, {v(WAc+u)}, 3, v6''')

def misc_chunk(a, d, c8, t):
    a(f'''v_mul_u32_u24 {v(t)}, 5, {v(c8)}
    v_lshrrev_b32 {v(t)}, {v(t)}, {v(vTab)}
    v_and_b32 {v(t)}, 31, {v(t)}
    v_cmp_gt_u32 vcc, 4, {v(c8)}
    v_add_u32 {v(d)}, 24, {v(c8)}
    s_nop 0
    v_cndmask_b32 {v(d)}, {v(d)}, {v(t)}, vcc''')

def su_tab(a):
    a(f's_mov_b32 {s(sTab)}, {ct_table(0):#x}')
    for ct in range(1, 9): a(f's_cmp_eq_u32 {s(sCT)}, {ct}\ns_cselect_b32 {s(sTab)}, {ct_table(ct):#x}, {s(sTab)}')
    a(f'''s_lshr_b32 {s(sS0)}, {s(sTab)}, 20
    v_mov_b32 {v(vTab)}, {s(sTab)}
    s_lshl_b32 {s(sTile)}, {s(sRT)}, 2
    s_lshl_b32 s3, {s(sTH)}, 1
    s_add_u32 {s(sTile)}, {s(sTile)}, s3
    s_cmp_le_u32 {s(sCT)}, 4
    s_cselect_b32 {s(sDoSc)}, 1, 0
    s_cmp_eq_u32 {s(sImg)}, 0
    s_cselect_b32 {s(sDoSc)}, {s(sDoSc)}, 0
    s_cmp_ge_u32 {s(sLoc)}, 28
    s_cselect_b32 {s(sIdle)}, 1, 0
    v_lshlrev_b32 {v(v16)}, 4, v0
    v_lshlrev_b32 {v(vQL)}, 2, v0''')

def head_base(a, g, d0, st, sc):
    a(f'''v_lshl_add_u32 {v(d0)}, {v(g)}, 16, {s(T0)}
    v_mul_u32_u24 v5, {HREC}, {v(g)}
    v_cmp_gt_u32 vcc, 32, {v(g)}
    v_add_u32 v5, {s(T1)}, v5
    v_mov_b32 {v(sc)}, {QSCALE:#x}
    v_cndmask_b32 {v(d0)}, v5, {v(d0)}, vcc
    v_cndmask_b32 {v(st)}, v7, v6, vcc
    v_cndmask_b32 {v(sc)}, 1.0, {v(sc)}, vcc''')

def su_epi(a, part):
    u = min(part, 1)
    lbS = a.new('es'); lbM = a.new('em'); done = a.new('ed')
    a(f'''v_and_b32 v1, 31, v0
    v_lshrrev_b32 v2, 5, v0
    s_mul_i32 {s(T1)}, {s(sTile)}, {REC}
    s_cmp_ge_u32 {s(sCT)}, 9
    s_cbranch_scc1 {lbS if part < 2 else done}
    s_add_u32 {s(T1)}, {s(T1)}, {(KV - 32*HREC) & 0xffffffff:#x}
    s_lshl_b32 {s(T0)}, {s(sTile)}, 10
    v_mov_b32 v6, 1024
    v_mov_b32 v7, {REC}''')
    if u: a(f's_cmp_lg_u32 {s(sMG)}, 0\ns_cbranch_scc1 {lbM}')
    for qp in range(2 if part < 2 else 0):
        e = EA + 4*u + 2*qp
        a(f'''s_lshl_b32 s3, {s(sMG)}, 3
        s_add_u32 s3, s3, {s(sS0)}
        s_add_u32 s3, s3, {4*u + 2*qp}
        v_add_u32 v3, s3, v2
        v_lshrrev_b32 v4, 1, v3''')
        head_base(a, 4, e, e+1, ES + 2*u + qp)
        a(f'''v_and_b32 v3, 1, v3
        v_lshl_add_u32 {v(e)}, v3, 9, {v(e)}
        v_lshl_add_u32 {v(e)}, v1, 4, {v(e)}
        v_add_u32 {v(e+1)}, {v(e)}, {v(e+1)}''')
    a(f's_branch {done}')
    if u:
        a.label(lbM)
        a(f'''s_lshl_b32 {s(T2)}, {s(sTile)}, 8
        s_add_u32 {s(T2)}, {s(T2)}, {QL:#x}
        s_add_u32 {s(T3)}, {s(T1)}, {HREC + KLOFF}
        s_lshl_b32 {s(T4)}, {s(sCT)}, 5''')
        for q in range(part - 1, part):
            e = EA + 4 + 2*q
            a(f'v_add_u32 v3, {2*q}, v2')
            misc_chunk(a, 4, 3, 5)
            a(f'''v_add_u32 v4, {s(T4)}, v4
            v_mul_u32_u24 v3, 7282, v4
            v_lshrrev_b32 v3, 16, v3
            v_mul_u32_u24 v5, 9, v3
            v_sub_u32 v8, v4, v5
            v_cmp_lt_u32 vcc, 4, v8
            v_lshlrev_b32 v3, 1, v3
            v_subrev_u32 v9, 5, v8
            v_addc_co_u32 v4, vcc, 0, v3, vcc
            v_min_u32 v9, v8, v9''')
            head_base(a, 4, e, e+1, ES + 2 + q)
            a(f'''v_lshrrev_b32 v4, 1, v9
            v_lshl_add_u32 {v(e)}, v4, 9, {v(e)}
            v_and_b32 v4, 1, v9
            v_lshl_add_u32 {v(e)}, v4, 3, {v(e)}
            v_lshl_add_u32 {v(e)}, v1, 4, {v(e)}
            v_lshl_add_u32 v4, v3, 13, {s(T2)}
            v_mul_u32_u24 v5, {HREC}, v3
            v_add_u32 v5, {s(T3)}, v5
            v_mov_b32 v9, 256
            v_cndmask_b32 v4, v5, v4, vcc
            v_cndmask_b32 v9, v7, v9, vcc
            v_cmp_eq_u32 vcc, 4, v8
            v_lshl_add_u32 v4, v1, 3, v4
            s_nop 0
            v_cndmask_b32 {v(e)}, {v(e)}, v4, vcc
            v_cndmask_b32 {v(e+1)}, {v(e+1)}, v9, vcc
            v_add_u32 {v(e+1)}, {v(e)}, {v(e+1)}''')
        a(f's_branch {done}')
    if part >= 2:
        a.label(done); return
    a.label(lbS)
    e = EA + 2*u
    a(f'''s_add_u32 {s(T1)}, {s(T1)}, {KV:#x}
    s_sub_u32 {s(T2)}, {s(sCT)}, 9
    s_lshl_b32 {s(T2)}, {s(T2)}, 7
    s_lshl_b32 s3, {s(sMG)}, 6
    s_add_u32 s3, s3, {s(T2)}
    s_add_u32 s3, s3, {32*u}
    v_add_u32 v3, s3, v1
    v_mul_u32_u24 v4, 3641, v3
    v_lshrrev_b32 v4, 16, v4
    v_mul_u32_u24 v5, 18, v4
    v_sub_u32 v3, v3, v5
    v_and_b32 v5, 1, v4
    v_lshlrev_b32 v5, 1, v5
    v_sub_u32 v3, v3, v5
    v_add_u32 v5, 18, v3
    v_min_u32 v3, v3, v5
    v_mul_u32_u24 v5, {HREC}, v4
    v_add_u32 v5, {s(T1)}, v5
    v_lshl_add_u32 v5, v3, 4, v5
    v_lshl_add_u32 v6, v2, 8, v5
    v_add_u32 v6, 1024, v6
    v_lshl_add_u32 v7, v2, 5, v5
    v_add_u32 v7, {VLOFF - 256}, v7
    v_cmp_gt_u32 vcc, 16, v3
    v_add_u32 v8, 512, v6
    v_add_u32 v9, 64, v7
    v_cndmask_b32 v6, v7, v6, vcc
    v_cndmask_b32 v8, v9, v8, vcc
    v_cmp_gt_u32 vcc, 32, v4
    v_mov_b32 v7, {OOB:#x}
    s_nop 0
    v_cndmask_b32 {v(e)}, v7, v6, vcc
    v_cndmask_b32 {v(e+1)}, v7, v8, vcc''')
    if u:
        a.c('the row of ones of every head whose first column is in this tile')
        a(f'''s_add_u32 s3, {s(T2)}, 17
        s_mul_i32 s3, s3, 3641
        s_lshr_b32 s3, s3, 16
        v_and_b32 v3, 7, v0
        v_add_u32 v3, s3, v3
        v_mul_u32_u24 v4, 18, v3
        s_add_u32 {s(T2)}, {s(T2)}, 128
        s_min_u32 {s(T2)}, {s(T2)}, 576
        v_cmp_gt_u32 vcc, {s(T2)}, v4
        v_cmp_gt_u32 {s(T4,2)}, 16, v0
        s_and_b64 vcc, vcc, {s(T4,2)}
        v_mul_u32_u24 v3, {HREC}, v3
        v_bfe_u32 v4, v0, 3, 1
        v_mul_u32_u24 v4, {REC}, v4
        v_add3_u32 v3, v3, v4, {s(T1)}
        v_add_u32 v3, {ONEOFF}, v3
        v_cndmask_b32 {v(EA+4)}, v7, v3, vcc''')
    a.label(done)

def su_vgat(a):
    a.c('V fragment gather offsets inside a key-tile record')
    a('v_and_b32 v1, 31, v0\nv_lshrrev_b32 v2, 5, v0')
    a(f'''v_lshlrev_b32 v3, 4, v1
    v_lshl_add_u32 v3, v2, 8, v3
    v_add_u32 v3, 1024, v3
    v_subrev_u32 v4, 16, v1
    v_lshlrev_b32 v5, 4, v4
    v_lshl_add_u32 v5, v2, 5, v5
    v_add_u32 v5, {VLOFF}, v5
    v_cmp_gt_u32 vcc, 2, v4
    v_add_u32 v6, 64, v5
    v_mov_b32 v7, {OOB:#x}
    v_cndmask_b32 v5, v7, v5, vcc
    v_cndmask_b32 v6, v7, v6, vcc
    v_and_b32 v4, 27, v1
    v_cmp_eq_u32 vcc, 18, v4
    v_mov_b32 v7, {ONEOFF}
    s_nop 0
    v_cndmask_b32 v5, v5, v7, vcc
    v_cndmask_b32 v6, v6, v7, vcc
    v_cmp_gt_u32 vcc, 16, v1
    v_add_u32 v4, 512, v3
    s_nop 0
    v_cndmask_b32 {v(vVf)}, v5, v3, vcc
    v_cndmask_b32 {v(vVf+1)}, v6, v4, vcc''')

def prefetch_a(a):
    if not OPT.get('pf', 1): return
    top = a.new('pf'); isw = a.new('pfw'); nxt = a.new('pfn')
    a(f'''s_sub_u32 {s(T0)}, {s(sLoc)}, 28
    s_lshl_b32 {s(T0)}, {s(T0)}, 3
    s_add_u32 {s(T0)}, {s(T0)}, {s(sWave)}
    v_mul_u32_u24 v1, 1152, v0
    v_mul_u32_u24 v2, 3456, v0
    s_lshr_b32 {s(T4)}, {s(sXcd)}, 1
    s_mul_i32 {s(T4)}, {s(T4)}, {512*1152}
    s_and_b32 {s(T5)}, {s(sXcd)}, 1
    s_mul_i32 {s(T5)}, {s(T5)}, {7*256}''')
    a.label(top)
    a(f'''s_mul_i32 {s(T1)}, {s(T0)}, 2979
    s_lshr_b32 {s(T1)}, {s(T1)}, 16
    s_mul_i32 {s(T2)}, {s(T1)}, 22
    s_sub_u32 {s(T2)}, {s(T0)}, {s(T2)}
    s_cmp_ge_u32 {s(T2)}, 8
    s_cbranch_scc1 {isw}
    s_mul_i32 {s(T2)}, {s(T2)}, {64*1152}
    s_lshl_b32 {s(T1)}, {s(T1)}, 7
    s_add_u32 {s(T2)}, {s(T2)}, {s(T1)}
    s_add_u32 {s(T2)}, {s(T2)}, {s(T4)}
    buffer_load_dword v3, v1, {srd(sAX)}, {s(T2)} offen
    s_branch {nxt}''')
    a.label(isw)
    a(f'''s_sub_u32 {s(T2)}, {s(T2)}, 8
    s_lshl_b32 {s(T2)}, {s(T2)}, 7
    s_mul_i32 {s(T1)}, {s(T1)}, {64*3456}
    s_add_u32 {s(T2)}, {s(T2)}, {s(T1)}
    s_add_u32 {s(T2)}, {s(T2)}, {s(T5)}
    buffer_load_dword v3, v2, {srd(sAW)}, {s(T2)} offen''')
    a.label(nxt)
    a(f's_add_u32 {s(T0)}, {s(T0)}, 32\ns_cmp_lt_u32 {s(T0)}, 198\ns_cbranch_scc1 {top}')

def su_acc(a, part, pk=False):
    rg = (range(96, 128), range(128, 160), range(40, 72))[part]
    if pk:
        for r in rg[::2]: a(f'v_pk_mov_b32 {v(r,2)}, {v(vZero,2)}, {v(vZero,2)}')
    else:
        for r in rg: a(f'v_mov_b32 {v(r)}, 0')

def su_share(a, regs, put, first=0):
    a(f's_mul_i32 s3, {s(sW4)}, 6656\ns_add_u32 s3, s3, {EAX}\nv_add_u32 v1, s3, {v(v16)}')
    off = first
    for r, n in regs:
        if n == 4: a(f'ds_write_b128 v1, {v(r,4)} offset:{off}' if put else f'ds_read_b128 {v(r,4)}, v1 offset:{off}')
        off += 1024
SH_P = [(XAc, 4), (WAc, 4)]
SH_L = [(EA, 4), (EA+4, 4), (EA+8, 4), (ES, 4), (ES+4, 4), (236, 4)]

def slot_addr(a):
    for k in range(4): a(f'v_add_u32 {v(XAr+k)}, {s(T6)}, {v(XAc+k)}')
    for w in range(2): a(f'v_add_u32 {v(WAr+w)}, {s(T6)}, {v(WAc+w)}')
    a(f's_add_u32 {s(T6)}, {s(T6)}, 0x8000\ns_and_b32 {s(T6)}, {s(T6)}, 0x1ffff')

def prologue(a, opt):
    a(f's_cmp_ge_u32 s2, 256\ns_cbranch_scc1 L_end')
    a(f's_load_dwordx16 s[48:63], s[0:1], 0\ns_load_dwordx4 s[64:67], s[0:1], 64')
    if a.diag:
        for k in range(2, 14): a(f's_mov_b32 {s(SSTAMP+k)}, 0')
    if a.diag or opt.get('padto'): a(f's_memrealtime {s(SSTAMP,2)}')
    if opt.get('ipf', 1):
        a.c('workgroups without a gemm tile pull this code towards L2 (one dword per 128-byte line)')
        a(f'''s_cmp_lt_u32 s2, 224
        s_cbranch_scc1 L_noipf
        s_getpc_b64 s[66:67]'''.replace('s[66:67]', 's[98:99]'))
        a.label('L_pc')
        a(f'''v_lshlrev_b32 v1, 7, v0
        v_cmp_gt_u32 vcc, L_end-L_pc, v1
        s_and_saveexec_b64 s[100:101], vcc
        s_cbranch_execz L_ipfx
        global_load_dword v254, v1, s[98:99]''')
        a.label('L_ipfx')
        a('s_mov_b64 exec, s[100:101]')
        a.label('L_noipf')
    a(f'v_lshrrev_b32 v1, 6, v0\nv_and_b32 v0, 63, v0\nv_readfirstlane_b32 {s(sWave)}, v1')
    a(f'''s_and_b32 {s(sXcd)}, s2, 7
    s_lshr_b32 {s(sLoc)}, s2, 3
    s_mul_i32 {s(sRT)}, {s(sLoc)}, 37
    s_lshr_b32 {s(sRT)}, {s(sRT)}, 8
    s_mul_i32 s3, {s(sRT)}, 7
    s_sub_u32 {s(sCT)}, {s(sLoc)}, s3
    s_add_u32 {s(sRot)}, {s(sCT)}, {s(sRT)}
    s_and_b32 s3, {s(sXcd)}, 1
    s_mul_i32 s3, s3, 7
    s_add_u32 {s(sCT)}, {s(sCT)}, s3
    s_lshr_b32 s3, {s(sXcd)}, 1
    s_lshl_b32 s3, s3, 2
    s_add_u32 {s(sRT)}, {s(sRT)}, s3
    s_and_b32 {s(sW4)}, {s(sWave)}, 3''')
    r = opt.get('rot', 0)
    if r == 2:
        a(f's_mul_i32 s3, {s(sRot)}, 86\ns_lshr_b32 s3, s3, 8\ns_mul_i32 s3, s3, 3\ns_sub_u32 {s(sRot)}, {s(sRot)}, s3\ns_mul_i32 {s(sRot)}, {s(sRot)}, 3')
    elif r == 4:
        a(f's_and_b32 {s(sRot)}, {s(sRot)}, 3')
    elif r == 3:
        a(f's_and_b32 {s(sRot)}, {s(sRot)}, 1\ns_lshl_b32 {s(sRot)}, {s(sRot)}, 2')
    su_ids2(a)
    a(f's_cmp_eq_u32 {s(sImg)}, 0\ns_cbranch_scc1 L_pset')
    a.c('================= waves 4-7: load the B tile =================')
    su_loader(a)
    a('s_waitcnt lgkmcnt(0)')
    for r in (sBX, sBW): mk_srd(a, r)
    vm = VM()
    a(f's_cmp_ge_u32 {s(sLoc)}, 28\ns_cbranch_scc1 L_lnoiss')
    for j in range(2): issue_chunk(a, j); vm.add(j, 8)
    a.label('L_lnoiss')
    for r in (sAX, sAW, sPHI, sAWO, sBWO, sOUT, sDBG, sWS): mk_srd(a, r)
    su_tab(a)
    for p in range(3): su_acc(a, p, True)
    a(f'v_mov_b32 {v(EA)}, {OOB:#x}')
    for r in range(EA + 1, EA + 20): a(f'v_mov_b32 {v(r)}, {v(EA)}')
    a.stamp(1)
    a(f's_cmp_lg_u32 {s(sIdle)}, 0\ns_cbranch_scc1 L_lidle')
    for j in range(9):
        a(f's_waitcnt vmcnt({vm.after(j)})')
        if opt.get('p1') == 1: a.stamp(3 + j)
        a('s_barrier')
        if opt.get('p1') == 2: a.stamp(3 + j)
        if opt.get('p1') == 2 and j == 0: a.cyc0()
        if opt.get('p1') == 2 and j == 8: a.cyc1()
        sw = opt.get('sw', 9)
        for c in ([j + 2] if j < sw else [j + 2, j + 3] if j == sw else [j + 3]):
            issue_chunk(a, c); vm.add(c, 8)
            if c == 9: token_issue(a); vm.add('tok')
        if j == 0: su_share(a, SH_P, False); su_vgat(a); a('s_waitcnt lgkmcnt(0)')
        if 1 <= j <= 5: su_epi(a, j - 1)
        if j == 6:
            a(f'v_mov_b32 {v(ES+6)}, {v(vVf)}\nv_mov_b32 {v(ES+7)}, {v(vVf+1)}')
            a(f'v_mov_b32 v236, {v(vX)}\nv_mov_b32 v237, {v(vX+1)}\nv_mov_b32 v238, {v(vW)}')
            su_share(a, SH_L, True)
        if j == 7:
            a('s_waitcnt lgkmcnt(0)')
            for r in range(EA, EA + 12): a(f'v_add_u32 {v(r)}, {AOFF:#x}, {v(r)}')
    a(f's_waitcnt vmcnt({vm.after("tok")})')
    token_check(a)
    a(f'ds_write_b32 {v(vCnt)}, {v(vTok)} offset:{C_TOK}\ns_mov_b32 {s(T6)}, {(9 % 4) * 32768}\ns_waitcnt lgkmcnt(0)')
    a(f's_setprio {opt.get("prio", 1)}')
    a.stamp(2)
    if opt.get('p1'): a.lock = True
    if sw == 9:
        slot_addr(a)
        a(f's_mov_b32 {s(T7)}, 9\ns_barrier')
        issue_chunk(a, 11)
        a(f's_cmp_ge_u32 {s(sCT)}, 9\ns_cbranch_scc1 L_gSb\ns_branch L_gNb')
    else: a('s_branch L_gemm')
    a.label('L_lidle')
    a.c('four workgroups per group of 32 have no gemm tile')
    prefetch_a(a)
    a('s_waitcnt vmcnt(0)')
    su_vgat(a)
    token_issue(a)
    a('s_waitcnt vmcnt(0)')
    token_check(a)
    a(f's_barrier\nds_write_b32 {v(vCnt)}, {v(vTok)} offset:{C_TOK}\ns_setprio {opt.get("prio", 1)}\ns_waitcnt lgkmcnt(0)\ns_barrier\ns_branch L_achain')
    a.label('L_pset')
    a.c('================= waves 0-3: set-up =================')
    su_loader_s(a)
    for p in range(3): su_acc(a, p, True)
    a('s_waitcnt lgkmcnt(0)')
    for r in (sWS, sDBG, sAX, sAW, sOUT, sPHI, sAWO, sBWO): mk_srd(a, r)
    su_token(a, 0); su_tab(a); su_gaddr(a)
    a(f's_cmp_eq_u32 {s(sIdle)}, 0\ns_cbranch_scc1 L_pbusy')
    prefetch_a(a)
    a('s_waitcnt vmcnt(0)')
    su_vgat(a)
    for r in range(vX, vX + 8): a(f'v_mov_b32 {v(r)}, {OOB:#x}')
    a(f's_waitcnt lgkmcnt(0)\ns_barrier\ns_barrier\nds_read_b32 {v(vTok)}, {v(vCnt)} offset:{C_TOK}\ns_branch L_ppath')
    a.label('L_pbusy')
    su_share(a, SH_P, True); su_token(a, 1)
    a(f's_waitcnt lgkmcnt(0)\ns_mov_b32 {s(T6)}, 0')
    a.stamp(1)
    if a.diag: a('s_mov_b32 s82, 0')

def gemm(a, opt):
    sSlot, sIt = T6, T7
    a.label('L_gemm')
    a.c('================= qkv gemm (waves 0-3: B, waves 4-7: A) =================')
    a(f's_mov_b32 {s(sIt)}, 9\ns_cmp_ge_u32 {s(sCT)}, 9\ns_cbranch_scc1 L_gS')
    def mid():
        lb = a.new('mid')
        a(f's_cmp_lg_u32 {s(sImg)}, 0\ns_cbranch_scc1 {lb}\ns_barrier')
        issue_chunk(a, 13)
        a.label(lb)
    def loop(o):
        def reads(k):
            F = FS[k]
            rd = lambda w, j: f'ds_read_b64_tr_b16 {v(F+8+4*w+2*j,2)}, {v(WAr+w)} offset:{4096*k+1024*j}'
            rx = lambda tt: f'ds_read_b128 {v(F+4*tt,4)}, {v(XAr+k)} offset:{4096*tt}'
            if opt.get('nord'): return ['s_nop 0'] * 6
            return [rd(0, 0), rd(0, 1), rx(0), rx(1), rd(1, 0), rd(1, 1)]
        def mms(k):
            m = []
            for w, nm in enumerate('ab'):
                for tt in range(2):
                    x, wf = FS[k]+4*tt, FS[k]+8+4*w
                    m.append(mfma_s(ACC[(nm, tt)], wf, x, ACC[(nm, tt)]) if o == 'N' else mfma_s(ACC[(nm, tt)], x, wf, ACC[(nm, tt)]))
            if opt.get('nomm'): m = ['s_nop 0'] * 4
            if opt.get('m16'):
                def two(x, i0):
                    g = re.match(r'\S+ v\[(\d+):\d+\], (\S+), (\S+), ', x); d = int(g.group(1))
                    return '\n'.join(f'v_mfma_f32_16x16x32_bf16 {v(d+4*i,4)}, {g.group(2)}, {g.group(3)}, {v(d+4*i,4)}' for i in (i0, i0+1))
                m = [two(x, 2*(k & 1)) for x in m]
            return m
        def grp(km, kr, wait=None):
            m = mms(km); r = reads(kr)
            if wait is not None: a(f's_waitcnt lgkmcnt({wait})')
            a(m[0]); a(r[0]); a(r[1]); a(r[2]); a(m[1]); a(r[3]); a(r[4]); a(r[5]); a(m[2]); a(m[3])
        a.label(f'L_g{o}')
        slot_addr(a)
        if opt.get('p3'): a.lstamp(s(sIt), 16)
        a('s_barrier')
        a.label(f'L_g{o}b')
        if opt.get('p3'): a.lstamp(s(sIt), 32)
        grp(2, 0); grp(3, 1); grp(0, 2, 6); grp(1, 3, 6)
        w8 = a.new('w8')
        a(f's_cmp_eq_u32 {s(sIt)}, 9\ns_cbranch_scc1 {w8}\ns_waitcnt vmcnt(0)')
        a.label(w8)
        if opt.get('lp0', 0):
            lo = a.new('lo')
            a(f's_cmp_lg_u32 {s(sIt)}, 2\ns_cbranch_scc1 {lo}\ns_setprio 0')
            a.label(lo)
        a(f's_sub_u32 {s(sIt)}, {s(sIt)}, 1\ns_cmp_lg_u32 {s(sIt)}, 0\ns_waitcnt vmcnt(8) lgkmcnt(0)\ns_cbranch_scc1 L_g{o}')
        m = mms(2) + mms(3)
        a(f's_cmp_lg_u32 {s(sImg)}, 0\ns_cbranch_scc1 L_gf{o}\ns_setprio 2')
        su_share(a, SH_L, False)
        a(f'''s_barrier
        ds_read_b32 {v(vTok)}, {v(vCnt)} offset:{C_TOK}
        s_waitcnt lgkmcnt(1)
        v_mov_b32 {v(vX)}, v236
        v_mov_b32 {v(vX+1)}, v237
        v_add_u32 {v(vX+2)}, {2*(8*1152-1024)}, v236
        v_add_u32 {v(vX+3)}, {2*(8*1152-1024)}, v237
        v_mov_b32 {v(vW)}, v238''')
        for i in range(1, 4): a(f'v_add_u32 {v(vW+i)}, {i*(4*3456-1024)}, v238')
        a(f'v_mov_b32 {v(vVf)}, {v(ES+6)}\nv_mov_b32 {v(vVf+1)}, {v(ES+7)}')
        issue_chunk(a, 12)
        a.label(f'L_gf{o}')
        for i in (0, 1, 4, 5, 2, 3, 6, 7): a(m[i])
        if opt.get('lp0', 0):
            lo = a.new('lo')
            a(f's_cmp_eq_u32 {s(sImg)}, 0\ns_cbranch_scc1 {lo}\ns_setprio 1')
            a.label(lo)
        a.stamp(3)
    def scale(nm, sc, n):
        lb = a.new('nosc')
        a(f's_cmp_eq_u32 {s(sDoSc)}, 0\ns_cbranch_scc1 {lb}')
        for tt in range(2):
            for i in range(16): a(f'v_mul_f32 {v(ACC[(nm, tt)]+i)}, {v(sc + i//n)}, {v(ACC[(nm, tt)]+i)}')
        a.label(lb)
    def epi_main(u):
        nm = 'ab'[u]
        scale(nm, ES + 2*u, 8)
        for tt in range(2):
            for qp in range(2):
                r = ACC[(nm, tt)] + 8*qp
                cvt8(a, r, r)
                a(f'buffer_store_dwordx4 {v(r,4)}, {v(EA + 4*u + 2*qp + tt)}, {srd(sWS)}, 0 offen sc1')
    def epi_misc():
        scale('b', ES + 2, 4)
        for tt in range(2):
            for h in range(2):
                r = ACC[('b', tt)] + 8*h
                cvt8(a, r, r)
                for q in range(2): a(f'buffer_store_dwordx2 {v(r+2*q,2)}, {v(EA + 4 + 2*(2*h+q) + tt)}, {srd(sWS)}, 0 offen sc1')
    def epi_v(u):
        nm = 'ab'[u]
        for tt in range(2):
            for f in range(2):
                r = ACC[(nm, tt)] + 8*f
                cvt8(a, r, r)
                a(f'buffer_store_dwordx4 {v(r,4)}, {v(EA + 2*u + f)}, {srd(sWS)}, 0 offen offset:{REC*tt} sc1')
    loop('N')
    a.nop(6); epi_main(0); mid()
    a(f's_cmp_lg_u32 {s(sMG)}, 0\ns_cbranch_scc1 L_emisc')
    epi_main(1); a('s_branch L_epi_done')
    a.label('L_emisc')
    epi_misc(); a('s_branch L_epi_done')
    loop('S')
    for i in range(4): a(f'v_mov_b32 {v(4+i)}, 0x3f803f80')
    a.nop(4); epi_v(0); mid(); epi_v(1)
    a(f's_cmp_lg_u32 {s(sMG)}, 0\ns_cbranch_scc1 L_epi_done\nbuffer_store_dwordx4 v[4:7], {v(EA+4)}, {srd(sWS)}, 0 offen sc1')
    a.label('L_epi_done')
    a.stamp(4)
    a(f's_cmp_lg_u32 {s(sImg)}, 0\ns_cbranch_scc1 L_achain')
    a.label('L_ppath')

def op_addr(a, vm, vm2, vl, vl2, vt, skq_bytes):
    t0, t1, t2, t3, t4 = vt, vt+1, vt+2, vt+3, vt+4
    a(f'''v_bfe_u32 {v(t0)}, v0, 2, 2
    v_lshrrev_b32 {v(t1)}, 5, v0
    v_and_b32 {v(t2)}, 3, v0
    v_bfe_u32 {v(t3)}, v0, 4, 1
    v_lshl_add_u32 {v(t2)}, {v(t3)}, 2, {v(t2)}
    v_lshl_add_u32 {v(t3)}, {v(t1)}, 2, {v(t0)}
    v_mul_u32_u24 {v(t3)}, 144, {v(t3)}
    v_add_u32 {v(t3)}, {s(skq_bytes)}, {v(t3)}
    v_lshl_add_u32 {v(vm)}, {v(t2)}, 3, {v(t3)}
    v_and_b32 {v(t4)}, 1, v0
    v_lshlrev_b32 {v(t4)}, 3, {v(t4)}
    v_add_u32 {v(t4)}, 128, {v(t4)}
    v_add_u32 {v(vm2)}, {v(t4)}, {v(t3)}
    v_mul_u32_u24 {v(t1)}, 72, {v(t1)}
    v_and_b32 {v(t3)}, 2, {v(t0)}
    v_and_b32 {v(t0)}, 1, {v(t0)}
    v_add3_u32 {v(t1)}, {v(t1)}, {v(t3)}, {v(t0)}
    v_add_u32 {v(t1)}, 16, {v(t1)}
    v_mul_u32_u24 {v(t1)}, 144, {v(t1)}
    v_add_u32 {v(t1)}, {s(skq_bytes)}, {v(t1)}
    v_lshl_add_u32 {v(vl)}, {v(t2)}, 3, {v(t1)}
    v_add_u32 {v(vl2)}, {v(t4)}, {v(t1)}''')

def op_w_reads(W, vm, vm2, vl, vl2, st):
    r = []
    for T in range(3):
        for j in range(2):
            if st < 8:
                off = (18*st + 8*j + (2 if st & 1 else 0)) * 144; base = vm if T < 2 else vm2
            else:
                off = 36*j*144; base = vl if T < 2 else vl2
            r.append(f'ds_read_b64_tr_b16 {v(W + 12*st + 4*T + 2*j, 2)}, {v(base)} offset:{off + (64 if T == 1 else 0)}')
    return '\n'.join(r)
def op_read_w(a, W, vm, vm2, vl, vl2):
    for st in range(9): a(op_w_reads(W, vm, vm2, vl, vl2, st))

def op_load_o(a, O, vo16, vol, sM, sM2, sL, thr=False):
    for i in range(8):
        a(f'buffer_load_dwordx4 {v(O+4*i,4)}, {v(vo16)}, {srd(sWS)}, {s(sM if i < 4 else sM2)} offen offset:{1024*(i&3)} sc1')
        if thr and i % 4 == 3: a('s_waitcnt vmcnt(0)')
    for i in range(4):
        a(f'buffer_load_dword {v(O+32+i)}, {v(vol)}, {srd(sWS)}, {s(sL)} offen offset:{128*i} sc1')

def op_mfma(a, AC, W, O, first):
    for st in range(9):
        a(f's_waitcnt vmcnt({11 - st if st < 8 else 0})')
        for T in range(3):
            mfma(a, AC + 16*T, W + 12*st + 4*T, O + 4*st, None if (first and st == 0) else AC + 16*T)

def issue_grp(a, sr, kq, slot, P):
    skip = a.new('r8')
    if P == 2: a(f's_cmp_ge_u32 {s(sW4)}, 3\ns_cbranch_scc1 {skip}')
    a(f'''s_lshl_b32 s3, {s(sW4)}, 10
    s_add_u32 m0, s3, {slot + 9*1024*P}
    s_add_u32 {s(sFree)}, {s(sWB)}, {(144*kq + 64*P)*1152}
    buffer_load_dwordx4 {v(vWO)}, {srd(sr)}, {s(sFree)} offen lds''')
    if P < 2:
        a(f'''s_add_u32 m0, s3, {slot + 9*1024*P + 4096}
        s_cmp_lg_u32 {s(sW4)}, {2*(kq & 1) + P}
        buffer_load_dwordx4 {v(vWO+1)}, {srd(sr)}, {s(sFree)} offen lds
        s_cbranch_scc1 {skip}
        s_mov_b32 m0, {slot + 9*1024*P + 8192}
        s_nop 0
        buffer_load_dwordx4 {v(vWO+2)}, {srd(sr)}, {s(sFree)} offen lds''')
    a.label(skip)
def issue_blk(a, sr, kq, slot):
    for P in range(3):
        issue_grp(a, sr, kq, slot, P)
        if OPT.get('thr', 3): a(f's_waitcnt vmcnt({OPT.get("thr", 3) - 1})')

def p_path(a, opt):
    vK, vKL, vV0, vV1 = 8, 10, 12, 14
    Qr, QLr, M = 16, 32, 36
    Kb, KLb, Vb, Sb, Ob = 40, 56, 64, 96, 160
    sCur, sNext, sLo, sHi, sN = T2, T3, T4, T5, T6
    sQm, sQl, sChk = 56, 57, 58
    sLo2, sHi2, sCur2 = 60, 61, 62
    a.c('================= waves 0-3: load the rest of the A tile, publish B =================')
    vm = VM()
    vm.add(12, 8); vm.add('sa', 4); vm.add(13, 8); vm.add('sb', 4)
    kl_const(a, T0, sH)
    a(f'''v_and_b32 v1, 31, v0
    v_mov_b32 {v(vK)}, {v(v16)}
    v_lshl_add_u32 {v(vKL)}, v1, 3, {s(T0)}
    v_mov_b32 {v(vV0)}, {v(vVf)}
    v_mov_b32 {v(vV1)}, {v(vVf+1)}''')
    for r in (vK, vKL, vV0, vV1): a(f'v_add_u32 {v(r+1)}, {2*REC}, {v(r)}')
    a.c('flags this wave waits for: lanes 0-15 k, 16-31 v (8 row tiles x first/last column tile), 32.. q')
    a(f'''v_lshrrev_b32 v2, 4, v0
    v_add_u32 v2, 1, v2
    v_cmp_gt_u32 vcc, 32, v0
    v_bfe_u32 v3, v0, 3, 1
    v_and_b32 v4, 1, v0
    v_cndmask_b32 v2, 0, v2, vcc
    v_cndmask_b32 v3, v4, v3, vcc
    s_lshl_b32 {s(T2)}, {s(sMG)}, 3
    v_and_b32 v4, 7, v0
    v_add_u32 v4, {s(T2)}, v4
    s_lshl_b32 {s(T3)}, {s(sQB)}, 1
    s_add_u32 {s(T3)}, {s(T3)}, {s(sTH)}
    v_mov_b32 v5, {s(T3)}
    v_cndmask_b32 v4, v5, v4, vcc''')
    producer_ct(a, 5, 2, 3, sH, 6)
    a(f'v_lshl_add_u32 v5, v5, 4, v4\nv_lshlrev_b32 v5, 7, v5\nv_add_u32 {v(vPoll)}, {FL1:#x}, v5\nv_lshlrev_b32 v7, 3, v0')
    for r in (QLr+1, QLr+3, KLb+1, KLb+3, KLb+5, KLb+7): a(f'v_mov_b32 {v(r)}, 0')
    a(f'''s_lshl_b32 {s(T0)}, {s(sH)}, 6
    s_lshl_b32 {s(T1)}, {s(sMG)}, 5
    s_add_u32 {s(T0)}, {s(T0)}, {s(T1)}
    s_mul_i32 {s(sLo)}, {s(T0)}, {REC}
    s_add_u32 {s(sLo)}, {s(sLo)}, {KV:#x}
    s_add_u32 {s(sHi)}, {s(sLo)}, {32*REC}
    s_lshl_b32 {s(T0)}, {s(sQB)}, 1
    s_add_u32 {s(T0)}, {s(T0)}, {s(sTH)}
    s_lshl_b32 {s(T1)}, {s(sH)}, 4
    s_add_u32 {s(T0)}, {s(T0)}, {s(T1)}
    s_lshl_b32 {s(sQm)}, {s(T0)}, 12
    s_lshr_b32 {s(T1)}, {s(sH)}, 1
    s_lshl_b32 {s(T1)}, {s(T1)}, 4
    s_add_u32 {s(T1)}, {s(T1)}, {s(T3)}
    s_lshl_b32 {s(sQl)}, {s(T1)}, 10
    s_and_b32 {s(T1)}, {s(sH)}, 1
    s_lshl_b32 {s(T1)}, {s(T1)}, 2
    s_add_u32 {s(sQl)}, {s(sQl)}, {s(T1)}
    s_add_u32 {s(sQl)}, {s(sQl)}, {QL:#x}''')
    flag_addr(a, T1, sCT, sRT, 4, FL1)
    a('s_waitcnt lgkmcnt(0)')
    a.c('================= waves 0-3: attention =================')
    def kv_loads(b, sreg):
        o = REC * (b & 1); u = b >> 1
        return [f'buffer_load_dwordx4 {v(Kb+4*b,4)}, {v(vK+u)}, {srd(sWS)}, {s(sreg)} offen offset:{o} sc1',
                f'buffer_load_dword {v(KLb+2*b)}, {v(vKL+u)}, {srd(sWS)}, {s(sreg)} offen offset:{o} sc1',
                f'buffer_load_dwordx4 {v(Vb+8*b,4)}, {v(vV0+u)}, {srd(sWS)}, {s(sreg)} offen offset:{o} sc1',
                f'buffer_load_dwordx4 {v(Vb+8*b+4,4)}, {v(vV1+u)}, {srd(sWS)}, {s(sreg)} offen offset:{o} sc1']
    def start_groups():
        a(f'''s_mul_i32 {s(sCur)}, {s(sQB)}, {4*REC}
        s_add_u32 {s(sCur)}, {s(sCur)}, {s(sLo)}
        s_add_u32 {s(sNext)}, {s(sCur)}, {4*REC}
        s_cmp_eq_u32 {s(sNext)}, {s(sHi)}
        s_cselect_b32 {s(sNext)}, {s(sLo)}, {s(sNext)}
        s_mov_b32 {s(sN)}, 8''')
    adv_groups = f'''s_mov_b32 {s(sCur)}, {s(sNext)}
        s_add_u32 {s(sNext)}, {s(sNext)}, {4*REC}
        s_cmp_eq_u32 {s(sNext)}, {s(sHi)}
        s_cselect_b32 {s(sNext)}, {s(sLo)}, {s(sNext)}
        s_cmp_eq_u32 {s(sN)}, 2
        s_cselect_b32 {s(sNext)}, {OOB:#x}, {s(sNext)}'''
    def qk(N, kb, qp):
        return (mfma_s(N, KLb+2*kb, QLr+2*qp, None, '2b'), mfma_s(N, Kb+4*kb, Qr+8*qp, N), mfma_s(N+16, Kb+4*kb, Qr+8*qp+4, N+16))
    def step(qp, kb, ins, sub):
        S = Sb + 32*qp; N = Sb + 32*(1-qp)
        nkb = kb if qp == 0 else (kb+1) % 4
        pkb = (kb-1) % 4 if qp == 0 else kb
        QLm, Q0m, Q1m = qk(N, nkb, 1-qp)
        def E(x, y):
            for i in range(x, y):
                if sub: a(f'v_sub_f32 {v(S+i)}, {v(S+i)}, {v(M + 2*qp + i//16)}')
                a(f'v_exp_f32 {v(S+i)}, {v(S+i)}')
        def C(x, y):
            for j in range(x, y):
                b = S + 16*(j//8); k = j % 8
                if opt.get('perm'): a(f'v_perm_b32 {v(b + (k % 4) + 8*(k//4))}, {v(b+2*k+1)}, {v(b+2*k)}, {s(59)}')
                else: a(f'v_cvt_pk_bf16_f32 {v(b + (k % 4) + 8*(k//4))}, {v(b+2*k)}, {v(b+2*k+1)}')
        def PV(t, f):
            o = Ob + 32*qp + 16*t
            mfma(a, o, Vb + 8*kb + 4*f, S + 16*t + 8*f, o)
        def I(k):
            if k in ins: a(ins[k])
        E(0, 2)
        o = Ob + 32*(1-qp) + 16
        mfma(a, o, Vb + 8*pkb + 4, N + 24, o); I('p')
        if opt.get('x8'):
            L0 = mfma_s(N, KLb+2*nkb, QLr+2*(1-qp), None, '8'); L1 = mfma_s(N+16, KLb+2*nkb, QLr+2*(1-qp), None, '8')
            E(2, 5); a(L0); I('q'); E(5, 9); a(L1); C(0, 4); E(9, 11); PV(0, 0); I('m0'); E(11, 17); C(4, 6); a(Q0m); I('m1')
        elif opt.get('noql'):
            Q0m = mfma_s(N, Kb+4*nkb, Qr+8*(1-qp), None); Q1m = mfma_s(N+16, Kb+4*nkb, Qr+8*(1-qp)+4, None)
            E(2, 5); I('q'); E(5, 9); C(0, 4); E(9, 11); PV(0, 0); I('m0'); E(11, 17); C(4, 6); a(Q0m); I('m1')
        else:
            E(2, 5); a(QLm); I('q'); E(5, 9); C(0, 4); E(9, 11); PV(0, 0); I('m0'); E(11, 17); C(4, 6); a(Q0m); I('m1')
        C(6, 8); E(17, 19); PV(0, 1); I('m2'); E(19, 25); C(8, 12); a(Q1m); I('m3'); E(25, 28); PV(1, 0); I('m4'); E(28, 32); C(12, 16)
    def attn_init_a():
        for r in range(Ob+16, Ob+64): a(f'v_mov_b32 {v(r)}, 0')
        for r in range(Vb+28, Vb+32): a(f'v_mov_b32 {v(r)}, 0')
    def attn_init_b():
        for r in range(Ob, Ob+16): a(f'v_mov_b32 {v(r)}, 0')
        for r in range(Sb+56, Sb+60): a(f'v_mov_b32 {v(r)}, 0')
    def attn_init(): attn_init_a(); attn_init_b()
    def attn_loop(name, sub):
        a('s_waitcnt vmcnt(8)')
        m = qk(Sb, 0, 0); a(m[0]); a.nop(18); a(m[1]); a(m[2]); a.nop(11)
        if not sub: a.stamp(7); a.cyc0()
        a('.p2align 6')
        a.label(name)
        for t in range(4):
            ld = kv_loads((t+3) % 4, sCur if t == 0 else sNext)
            lp = opt.get('ldp', 0)
            J = '\n'.join
            ins0, ins = [({'q': ld[0], 'm0': ld[1], 'm1': ld[2], 'm2': ld[3]}, {}),
                         ({'q': J(ld)}, {}),
                         ({'q': J(ld[:2]), 'm1': J(ld[2:])}, {}),
                         ({'q': J(ld[:2])}, {'q': J(ld[2:])}),
                         ({'q': ld[0], 'm1': ld[1]}, {'q': ld[2], 'm3': ld[3]}),
                         ({'m0': ld[0], 'm2': ld[1], 'm4': ld[2]}, {'m2': ld[3]})][lp]
            step(0, t, ins0, sub)
            ins['p'] = f's_waitcnt vmcnt({8 - sum(len(x.split(chr(10))) for x in ins.values())})'
            if t == 3:
                ins['m3'] = ins.get('m3', '') + '\n' + adv_groups
                ins['m4'] = f's_sub_u32 {s(sN)}, {s(sN)}, 1\ns_cmp_lg_u32 {s(sN)}, 0'
            step(1, t, ins, sub)
        a(f's_cbranch_scc1 {name}')
        a.nop(1)
        mfma(a, Ob + 48, Vb + 28, Sb + 56, Ob + 48)
    def first_loads():
        for t in range(4): a(f'buffer_load_dwordx4 {v(Qr+4*t,4)}, {v(v16)}, {srd(sWS)}, {s(sQm)} offen offset:{1024*t} sc1')
        for j in range(2): a(f'buffer_load_dword {v(QLr+2*j)}, v7, {srd(sWS)}, {s(sQl)} offen offset:{512*j} sc1')
        for b in range(3):
            for x in kv_loads(b, sCur): a(x)
    a(f'v_readfirstlane_b32 {s(sTok)}, {v(vTok)}\ns_cmp_lg_u32 {s(sIdle)}, 0\ns_cbranch_scc1 L_pidle\ns_barrier')
    issue_chunk(a, 14); vm.add(14, 8)
    start_groups(); attn_init_a()
    for j in range(12, 16):
        sig = opt.get('sig', 13)
        a(f's_waitcnt vmcnt({min(vm.after(j), vm.after("sb")) if j == sig else vm.after(j)})')
        if j == sig:
            last_signals(a, 2, C_F1, 4, T1)
            a.stamp(5)
        a('s_barrier')
        if j == 14: a(f'buffer_load_dword v2, {v(vPoll)}, {srd(sWS)}, 0 offen sc1'); vm.add('fl')
        if j + 3 <= 17: issue_chunk(a, j + 3); vm.add(j + 3, 8)
        if j == sig: attn_init_b()
    a(f's_waitcnt vmcnt(8)\nv_cmp_ne_u32 vcc, {s(sTok)}, v2\ns_cbranch_vccnz L_late')
    first_loads()
    a('s_barrier\ns_waitcnt vmcnt(18)\ns_barrier\ns_branch L_go')
    a.label('L_late')
    a('s_barrier\ns_waitcnt vmcnt(0)\ns_barrier')
    if a.diag: a('s_mov_b32 s82, -1')
    a('s_branch L_poll')
    a.label('L_pidle')
    start_groups(); attn_init()
    a.label('L_poll')
    poll_flags(a, vPoll, 2)
    first_loads()
    a.label('L_go')
    a('s_setprio 0\ns_mov_b32 s59, 0x07060302')
    a.stamp(6)
    attn_loop('L_attn', False)
    a.cyc1()
    a.stamp(8)
    a.nopk = bool(opt.get('nopk', 1))
    a(f'''s_setprio 2
    s_mul_i32 {s(T0)}, {s(sWave)}, 6144
    v_add_u32 v1, {s(T0)}, {v(v16)}
    s_xor_b32 {s(T0)}, {s(sWave)}, 2
    s_mul_i32 {s(T0)}, {s(T0)}, 6144
    v_add_u32 v6, {s(T0)}, {v(v16)}
    s_lshl_b32 {s(T0)}, {s(sQB)}, 3
    s_lshl_b32 {s(T1)}, {s(sTH)}, 2
    s_add_u32 {s(T0)}, {s(T0)}, {s(T1)}
    s_lshl_b32 {s(T1)}, {s(sMG)}, 1
    s_add_u32 {s(T0)}, {s(T0)}, {s(T1)}
    s_cmp_eq_u32 {s(sMG)}, 0
    s_cbranch_scc1 L_red0''')
    def red_write(o0):
        for t in range(2):
            o = o0 + 16*t
            a(f'ds_write_b128 v1, {v(o,4)} offset:{3072*t}\nds_write_b128 v1, {v(o+4,4)} offset:{3072*t+1024}\nds_write_b96 v1, {v(o+8,3)} offset:{3072*t+2048}')
    a.c('exchange partial sums with the wave that did the other half of the keys; keep query pair kh in Ob..Ob+31')
    red_write(Ob)
    for t in range(2):
        for i in range(0, 12, 2): a(f'v_pk_mov_b32 {v(Ob+16*t+i,2)}, {v(Ob+32+16*t+i,2)}, {v(Ob+32+16*t+i,2)} op_sel:[0,1]')
    a('s_branch L_red1')
    a.label('L_red0')
    red_write(Ob + 32)
    a.label('L_red1')
    o_addr(a, sH, OBM, OBL)
    flag_addr(a, T1, sQB, sH, 5, FL4)
    a(f's_mov_b32 {s(T0)}, {f2u(2.0**-64):#x}\ns_mov_b32 {s(T6)}, {f2u(2.0**64):#x}\ns_mov_b32 {s(T7)}, {f2u(2.0**120):#x}')
    if opt.get('p4'): a.stamp(3)
    a('s_waitcnt vmcnt(0) lgkmcnt(0)')
    if opt.get('p4'): a.stamp(4)
    a('s_barrier')
    if opt.get('p4'): a.stamp(5)
    for part in range(3):
        for t in range(2):
            o = Ob + 32 + 16*t
            a([f'ds_read_b96 {v(o+8,3)}, v6 offset:{3072*t+2048}', f'ds_read_b128 {v(o,4)}, v6 offset:{3072*t}', f'ds_read_b128 {v(o+4,4)}, v6 offset:{3072*t+1024}'][part])
    O2 = [Ob, Ob + 16]; P2 = [Ob + 32, Ob + 48]
    a.c('the softmax above used 0 in place of the row max: safe only while the sums stay finite and well away from 0')
    a('s_waitcnt lgkmcnt(4)')
    for t in range(2): a(f'v_add_f32 {v(O2[t]+10)}, {v(O2[t]+10)}, {v(P2[t]+10)}')
    for t in range(2): a(f'v_pk_add_f32 {v(O2[t]+8,2)}, {v(O2[t]+8,2)}, {v(P2[t]+8,2)}')
    a(f'''v_min_f32 v2, {v(O2[0]+10)}, {v(O2[1]+10)}
    v_add_f32 v3, {v(O2[0]+10)}, {v(O2[1]+10)}
    v_cmp_nle_f32 {s(sChk,2)}, {s(T0)}, v2
    v_cmp_nge_f32 vcc, {s(T6)}, v3
    s_waitcnt lgkmcnt(2)''')
    for i in (0, 2):
        for t in range(2): a(f'v_pk_add_f32 {v(O2[t]+i,2)}, {v(O2[t]+i,2)}, {v(P2[t]+i,2)}')
    a(f's_or_b64 {s(sChk,2)}, {s(sChk,2)}, vcc\ns_waitcnt lgkmcnt(0)')
    for i in (4, 6):
        for t in range(2): a(f'v_pk_add_f32 {v(O2[t]+i,2)}, {v(O2[t]+i,2)}, {v(P2[t]+i,2)}')
    a(f'''v_pk_add_f32 v[2:3], {v(O2[0],2)}, {v(O2[1],2)}
    v_pk_add_f32 v[4:5], {v(O2[0]+2,2)}, {v(O2[1]+2,2)}
    v_pk_add_f32 v[8:9], {v(O2[0]+4,2)}, {v(O2[1]+4,2)}
    v_pk_add_f32 v[10:11], {v(O2[0]+6,2)}, {v(O2[1]+6,2)}
    v_pk_add_f32 v[12:13], {v(O2[0]+8,2)}, {v(O2[1]+8,2)}
    v_pk_add_f32 v[2:3], v[2:3], v[4:5]
    v_pk_add_f32 v[8:9], v[8:9], v[10:11]
    v_pk_add_f32 v[2:3], v[2:3], v[12:13]
    v_pk_add_f32 v[2:3], v[2:3], v[8:9]
    v_add_f32 v2, v2, v3
    v_cmp_ngt_f32 vcc, {s(T7)}, abs(v2)
    s_or_b64 {s(sChk,2)}, {s(sChk,2)}, vcc
    s_cbranch_scc1 L_fallback''')
    a.label('L_norm')
    o_publish(a, O2, P2, False)
    a.stamp(9)
    a('s_waitcnt vmcnt(0)')
    if opt.get('p4'): a.stamp(1)
    last_signals(a, 2, C_F4, 4, T1)
    if opt.get('p4'): a.stamp(2)
    a('s_setprio 0')
    final_setup(a)
    flag_ld(a)
    final_prep(a)
    a('s_branch L_final')

    a.nopk = False
    a.label('L_fallback')
    a.c('the stand-in was unsafe for one of this wave\'s rows: redo its two query tiles over all keys with the true row max')
    vK2, vKL2 = 2, 3
    kl_const(a, sCur2, sH)
    a(f'''v_and_b32 v3, 31, v0
    v_lshl_add_u32 v3, v3, 3, {s(sCur2)}
    s_mul_i32 {s(sLo2)}, {s(sH)}, {HREC}
    s_add_u32 {s(sLo2)}, {s(sLo2)}, {KV:#x}
    s_add_u32 {s(sHi2)}, {s(sLo2)}, {HREC}
    s_cmp_eq_u32 {s(sMG)}, 0
    s_cbranch_scc1 L_fb0''')
    for i in range(8): a(f'v_mov_b32 {v(Qr+i)}, {v(Qr+8+i)}')
    a(f'v_mov_b32 {v(QLr)}, {v(QLr+2)}')
    a.label('L_fb0')
    for t in range(2): a(f'v_mov_b32 {v(M+t)}, 0xff800000')
    for r in range(Ob, Ob + 32): a(f'v_mov_b32 {v(r)}, 0')
    for ps in range(2):
        a(f's_mov_b32 {s(sCur2)}, {s(sLo2)}')
        a.label(f'L_fbloop{ps}')
        a(f'buffer_load_dwordx4 {v(Kb,4)}, {v(v16)}, {srd(sWS)}, {s(sCur2)} offen sc1\nbuffer_load_dword {v(KLb)}, v3, {srd(sWS)}, {s(sCur2)} offen sc1')
        if ps:
            for f in range(2): a(f'buffer_load_dwordx4 {v(Vb+4*f,4)}, {v(vVf+f)}, {srd(sWS)}, {s(sCur2)} offen sc1')
        a('s_waitcnt vmcnt(0)')
        m = qk(Sb, 0, 0); a(m[0]); a.nop(18); a(m[1]); a(m[2]); a.nop(12)
        if ps == 0:
            for t in range(2):
                for i in range(0, 16, 2): a(f'v_max3_f32 {v(M+t)}, {v(Sb+16*t+i)}, {v(Sb+16*t+i+1)}, {v(M+t)}')
        else:
            for i in range(32): a(f'v_sub_f32 {v(Sb+i)}, {v(Sb+i)}, {v(M + i//16)}')
            for i in range(32): a(f'v_exp_f32 {v(Sb+i)}, {v(Sb+i)}')
            for q in range(4): cvt8(a, Sb + 8*q, Sb + 8*q)
            a.nop(1)
            for t in range(2):
                for f in range(2): mfma(a, Ob + 16*t, Vb + 4*f, Sb + 16*t + 8*f, Ob + 16*t)
        a(f's_add_u32 {s(sCur2)}, {s(sCur2)}, {REC}\ns_cmp_lg_u32 {s(sCur2)}, {s(sHi2)}\ns_cbranch_scc1 L_fbloop{ps}')
        if ps == 0:
            for t in range(2): a(f'v_mov_b32 {v(Sb+t)}, {v(M+t)}')
            a.nop(2)
            for t in range(2): a(f'v_permlane32_swap_b32 {v(Sb+t)}, {v(M+t)}')
            a.nop(1)
            for t in range(2): a(f'v_max_f32 {v(M+t)}, {v(M+t)}, {v(Sb+t)}')
    a.nop(12)
    a('s_branch L_norm')

def o_addr(a, shead, M_, L_):
    a(f'''s_lshl_b32 {s(T0)}, {s(T0)}, 5
    s_add_u32 {s(T0)}, {s(T0)}, {s(shead)}
    s_lshl_b32 {s(T2)}, {s(T0)}, 10
    s_add_u32 {s(T2)}, {s(T2)}, {M_:#x}
    s_add_u32 {s(T3)}, {s(T2)}, 0x8000
    s_lshl_b32 {s(T4)}, {s(T0)}, 7
    s_add_u32 {s(T4)}, {s(T4)}, {L_:#x}
    s_add_u32 {s(T5)}, {s(T4)}, 0x1000''')

def o_publish(a, O, P, eps):
    for o in O:
        if eps: a(f'v_add_f32 {v(o+10)}, {f2u(1e-6):#x}, {v(o+10)}')
    for o in O: a(f'v_rcp_f32 {v(o+10)}, {v(o+10)}')
    for t in range(2):
        o, p = O[t], P[t]
        if t == 0: a('s_nop 0')
        for i in range(0, 10, 2): a(f'v_pk_mul_f32 {v(o+i,2)}, {v(o+i,2)}, {v(o+10,2)} op_sel_hi:[1,0]')
        cvt8(a, o, p)
        a(f'buffer_store_dwordx4 {v(p,4)}, {v(v16)}, {srd(sWS)}, {s(T2+t)} offen sc1')
        a(f'v_cvt_pk_bf16_f32 {v(p+4)}, {v(o+8)}, {v(o+9)}')
    a('s_mov_b32 exec_hi, 0')
    for t in range(2): a(f'buffer_store_dword {v(P[t]+4)}, {v(vQL)}, {srd(sWS)}, {s(T4+t)} offen sc1')
    a('s_mov_b32 exec_hi, -1')

FW, FO, FA = 16, 124, 160
vFm, vFm2, vFl, vFl2 = 8, 9, 10, 11
vFlg, vFol, vWr, vRd, vOut = 250, 251, 252, 253, 255
ACA = [212, 228, 196]
QS = 1088; WSTR = 9*QS; ARED = 8*WSTR
sM, sM2, sL, sA, sB_, sO = T2, T3, T4, 56, 57, T7
def piece_addr(a, vp, rd, ou):
    a(f'''v_mul_u32_u24 v2, 7282, {v(vp)}
    v_lshrrev_b32 v2, 16, v2
    v_mul_u32_u24 v3, 9, v2
    v_sub_u32 v3, {v(vp)}, v3
    v_mul_u32_u24 {v(ou)}, 2304, v2
    v_lshl_add_u32 {v(ou)}, v3, 4, {v(ou)}
    v_mul_u32_u24 v3, {QS}, v3
    v_lshrrev_b32 {v(rd)}, 5, v2
    v_mul_u32_u24 {v(rd)}, {WSTR}, {v(rd)}
    v_and_b32 v2, 31, v2
    v_lshl_add_u32 v3, v2, 4, v3
    v_add_u32 {v(rd)}, {v(rd)}, v3''')
def final_setup(a):
    a(f'''v_and_b32 v1, 31, v0
    v_lshrrev_b32 v2, 5, v0
    v_lshlrev_b32 v3, 2, v1
    v_lshl_add_u32 {v(vFol)}, v2, 9, v3
    s_lshl_b32 {s(T1)}, {s(sOT)}, 1
    s_add_u32 {s(T5)}, {s(sTH)}, {s(T1)}
    s_lshl_b32 {s(T0)}, {s(T5)}, 5
    s_lshr_b32 {s(T6)}, {s(sWave)}, 1
    s_lshl_b32 {s(T1)}, {s(T6)}, 3
    s_add_u32 {s(T0)}, {s(T0)}, {s(T1)}
    s_lshl_b32 {s(sM)}, {s(T0)}, 10
    s_add_u32 {s(sM)}, {s(sM)}, {OBM:#x}
    s_add_u32 {s(sM2)}, {s(sM)}, 4096
    s_lshl_b32 {s(sL)}, {s(T0)}, 7
    s_add_u32 {s(sL)}, {s(sL)}, {OBL:#x}
    s_lshr_b32 {s(T0)}, {s(sOT)}, 2
    s_lshl_b32 {s(T0)}, {s(T0)}, 5
    s_add_u32 {s(T0)}, {s(T0)}, {s(T1)}
    v_and_b32 v3, 7, v0
    v_add_u32 v3, {s(T0)}, v3
    v_lshlrev_b32 v3, 7, v3
    v_add_u32 {v(vPoll)}, {FL4:#x}, v3
    s_mul_i32 {s(T0)}, {s(sWave)}, {WSTR}
    v_add_u32 {v(vWr)}, {s(T0)}, {v(v16)}
    s_lshl_b32 {s(T0)}, {s(sWave)}, 6
    v_add_u32 v1, {s(T0)}, v0
    s_mul_i32 {s(T0)}, {s(sOT)}, {64*2304}
    s_mul_i32 {s(T1)}, {s(sOC)}, 144
    s_add_u32 {s(sO)}, {s(T0)}, {s(T1)}
    s_add_u32 {s(T5)}, {s(sO)}, 1152
    s_mov_b32 {s(sA)}, 0
    s_mov_b32 {s(sB_)}, 0''')
    piece_addr(a, 1, vRd, vOut)
def flag_ld(a): a(f'buffer_load_dword {v(vFlg)}, {v(vPoll)}, {srd(sWS)}, 0 offen sc1')
def half_try(a):
    for h, st in ((0, sA), (1, sB_)):
        lb = a.new('fl')
        a(f's_and_b32 {s(T0)}, vcc_lo, {0xf0 if h else 0x0f}\ns_or_b32 {s(T0)}, {s(T0)}, {s(st)}\ns_cbranch_scc1 {lb}\ns_mov_b32 {s(st)}, 1')
        for i in range(4): a(f'buffer_load_dwordx4 {v(FO+16*h+4*i,4)}, {v(v16)}, {srd(sWS)}, {s(sM2 if h else sM)} offen offset:{1024*i} sc1')
        a.label(lb)
def final_prep(a):
    a(f's_mul_i32 {s(T0)}, {s(T6)}, {WBLK}\ns_add_u32 {s(T0)}, {s(T0)}, {SLOT_B[0]}')
    op_addr(a, vFm, vFm2, vFl, vFl2, 2, T0)
    op_read_w(a, FW, vFm, vFm2, vFl, vFl2)

def final(a):
    a.label('L_final')
    a.c('================= all waves: out projection of B =================')
    a.c('this wave needs 8 heads, 4 from each of two producer groups: load each half as soon as its flags are up')
    def half_mm(h):
        for st in range(4*h, 4*h + 4):
            for T in range(3): mfma(a, FA + 16*T, FW + 12*st + 4*T, FO + 4*st, None if st == 0 else FA + 16*T)
    def pending0():
        lb = a.new('fm')
        a(f's_cmp_lg_u32 {s(sA)}, 1\ns_cbranch_scc1 {lb}\ns_mov_b32 {s(sA)}, 2')
        half_mm(0)
        a.label(lb)
    a.label('L_fpoll')
    a(f's_waitcnt vmcnt(0) lgkmcnt(0)\nv_cmp_ne_u32 vcc, {s(sTok)}, {v(vFlg)}')
    pending0()
    half_try(a)
    a(f's_min_u32 {s(T0)}, {s(sA)}, {s(sB_)}\ns_cmp_lg_u32 {s(T0)}, 0\ns_cbranch_scc1 L_fgo')
    flag_ld(a)
    spin_tail(a, 'L_fpoll')
    a.label('L_fgo')
    a.stamp(10)
    for i in range(4): a(f'buffer_load_dword {v(FO+32+i)}, {v(vFol)}, {srd(sWS)}, {s(sL)} offen offset:{128*i} sc1')
    a('s_waitcnt vmcnt(4)')
    pending0()
    half_mm(1)
    a('s_waitcnt vmcnt(0)')
    for T in range(3): mfma(a, FA + 16*T, FW + 96 + 4*T, FO + 32, FA + 16*T)
    a('s_barrier')
    a(f's_cmp_eq_u32 {s(sImg)}, 0\ns_cbranch_scc1 L_fw\nv_add_u32 v1, {ARED - 4*WSTR}, {v(vWr)}')
    for q in range(8): a(f'ds_write_b128 v1, {v(ACA[0]+4*q,4)} offset:{QS*q}')
    a(f'ds_write_b128 v1, v[208:211] offset:{QS*8}')
    a.label('L_fw')
    a(f'v_add_u32 v6, 512, v0\nv_add_u32 v7, {ARED}, {v(vRd)}')
    piece_addr(a, 6, 4, 5)
    for q in range(9): a(f'ds_write_b128 {v(vWr)}, {v(FA+4*q,4)} offset:{QS*q}')
    a('s_waitcnt lgkmcnt(0)\ns_barrier')
    a.stamp(11)
    a.c('sum the partials in output order: one 16-byte piece of a row per lane')
    def rd(R, vr, n):
        for k in range(n):
            for h in range(2): a(f'ds_read_b128 {v(R+8*k+4*h,4)}, {v(vr)} offset:{2*WSTR*k + 512*h}')
    def fin(R, n, vo, so, pol):
        for k in range(1, n):
            for i in range(4): a(f'v_pk_add_f32 {v(R+2*i,2)}, {v(R+2*i,2)}, {v(R+8*k+2*i,2)}')
        cvt8(a, R, R)
        a(f'buffer_store_dwordx4 {v(R,4)}, {v(vo)}, {srd(sOUT)}, {s(so)} offen{opol(pol)}')
    rd(16, vRd, 4); rd(48, 7, 2)
    a(f's_cmp_gt_u32 {s(sWave)}, 1\ns_cbranch_scc1 L_fin_a\ns_cmp_eq_u32 {s(sWave)}, 1\ns_cbranch_scc1 L_fin_x')
    rd(64, 4, 4); a('s_waitcnt lgkmcnt(0)'); fin(64, 4, 5, T5, 'osb'); a('s_branch L_fin_a')
    a.label('L_fin_x')
    a(f'v_add_u32 v4, {ARED}, v4')
    rd(64, 4, 2); a('s_waitcnt lgkmcnt(0)'); fin(64, 2, 5, sO, 'osa')
    a.label('L_fin_a')
    a('s_waitcnt lgkmcnt(4)'); fin(16, 4, vOut, T5, 'osb')
    a('s_waitcnt lgkmcnt(0)'); fin(48, 2, vOut, sO, 'osa')
    if OPT.get('padto'):
        a.label('L_pad')
        a(f's_memrealtime s[94:95]\ns_waitcnt lgkmcnt(0)\ns_sub_u32 s94, s94, s80\ns_cmp_lt_u32 s94, {OPT["padto"]}\ns_cbranch_scc1 L_pad')
    if a.diag:
        a('s_waitcnt vmcnt(0)')
        a.stamp(12)
        a.label('L_dump')
        a(f's_lshl_b32 {s(T0)}, s2, 3\ns_add_u32 {s(T0)}, {s(T0)}, {s(sWave)}\ns_lshl_b32 {s(T0)}, {s(T0)}, 7\ns_add_u32 {s(T0)}, {s(T0)}, {STAMPS:#x}')
        for k in range(16): a(f'v_mov_b32 {v(16+k)}, {s(SSTAMP+k)}')
        a(f's_lshl_b32 {s(T1)}, {s(T0)}, 1\ns_sub_u32 {s(T1)}, {s(T1)}, {STAMPS - 0x80000:#x}\nbuffer_store_dword v254, {v(vQL)}, {srd(sWS)}, {s(T1)} offen')
        a('v_mov_b32 v1, 0\ns_mov_b64 exec, 1')
        for k in range(4): a(f'buffer_store_dwordx4 {v(16+4*k,4)}, v1, {srd(sWS)}, {s(T0)} offen offset:{16*k}')
        if OPT.get('dbg'):
            a(f's_cmp_lg_u32 s2, {OPT["dbg"]}\ns_cbranch_scc1 L_end\ns_and_b32 s3, {s(sWave)}, 3\ns_cmp_lg_u32 s3, 0\ns_cbranch_scc1 L_end')
            pk = OPT.get('dbgset', 0)
            sel = [((1, 3, 4, 5, 7, 8, 12), (1, 3, 4, 5, 6, 7, 9)), ((1, 1, 1, 1, 1, 1, 1), (1, 3, 4, 5, 8, 11, 2))][pk]
            a(f's_cmp_eq_u32 {s(sImg)}, 0\ns_cselect_b32 s3, 8, 36\nv_mov_b32 v1, s3\ns_cbranch_scc0 L_dbgL')
            for w, lab in ((0, None), (1, 'L_dbgL')):
                if lab: a.label(lab)
                for i, k in enumerate(sel[w]):
                    a(f's_sub_u32 s3, {s(SSTAMP+k)}, {s(SSTAMP)}\nv_mov_b32 v2, s3\nbuffer_store_dword v2, v1, {srd(sDBG)}, 0 offen offset:{4*i}')
                a('s_endpgm')
    a.label('L_end')
    a('s_endpgm')

def a_chain(a, opt):
    WPH, WL, WLq, WLk = 24, 28, 30, 32
    Fq, Fk, Fl, Fv = [36, 40], [44, 48], [52, 54], [56, 64]
    def lprio(x):
        if opt.get('lp', 1): a(f's_setprio {x}')
    a.label('L_achain')
    a.c('================= waves 4-7: publish A qkv, feature maps =================')
    a(f'''v_and_b32 v1, 31, v0
    v_lshrrev_b32 v2, 5, v0
    v_cmp_eq_u32 vcc, 20, v1
    v_mov_b32 v3, 17
    v_mov_b32 v4, {OOB:#x}
    v_cndmask_b32 v3, v1, v3, vcc
    v_cmp_ge_u32 {s(T0,2)}, 16, v1
    s_or_b64 vcc, vcc, {s(T0,2)}
    v_lshlrev_b32 v3, 1, v3
    s_mul_i32 {s(T2)}, {s(sHA)}, 648
    v_cndmask_b32 v3, v4, v3, vcc
    v_mul_u32_u24 v5, 288, v2
    v_add_u32 v4, v3, v5
    s_and_b32 {s(T0)}, {s(sHA)}, 1
    s_mul_i32 {s(T1)}, {s(T0)}, 72
    s_add_u32 {s(T3)}, {s(T2)}, {s(T1)}
    s_mul_i32 {s(T1)}, {s(T0)}, 576
    s_sub_u32 {s(T2)}, {s(T2)}, {s(T1)}
    s_add_u32 {s(T2)}, {s(T2)}, 576''')
    for e in range(8):
        a(f'buffer_load_ushort {v(8 + e)}, v4, {srd(sPHI)}, {s(T3)} offen offset:{e*36}')
    a(f'buffer_load_ushort v34, v3, {srd(sPHI)}, {s(T2)} offen\nbuffer_load_ushort v35, v3, {srd(sPHI)}, {s(T2)} offen offset:36')
    for k in range(3):
        if k < 2: a(f's_add_u32 {s(T0)}, {s(sW4)}, {4*k}\ns_lshl_b32 {s(T0)}, {s(T0)}, 6\nv_add_u32 v3, {s(T0)}, v0')
        else: a('v_add_u32 v3, 512, v0')
        a(f'''v_mul_u32_u24 v4, 7282, v3
        v_lshrrev_b32 v4, 16, v4
        v_mul_u32_u24 v5, 9, v4
        v_sub_u32 v5, v3, v5
        v_mul_u32_u24 v6, 1152, v4
        v_lshl_add_u32 {v(vWO+k)}, v5, 4, v6''')
    a(f's_mul_i32 {s(sWB)}, {s(sOC)}, 144')
    bg = [(sAWO, kq, SLOT_A[kq], P) for kq in (0, 2, 3) for P in range(3)] + [(sBWO, kq, SLOT_B[kq], P) for kq in (0, 1) for P in range(3)]
    def bgdma():
        if bg: issue_grp(a, *bg.pop(0))
    a('v_lshrrev_b32 v4, 1, v0\nv_min_u32 v4, 2, v4\nv_and_b32 v5, 1, v0')
    producer_ct(a, 3, 4, 5, sHA, 6)
    a(f'''s_lshl_b32 {s(T0)}, {s(sRB)}, 1
    s_add_u32 {s(T0)}, {s(T0)}, {s(sMG)}
    v_lshl_add_u32 v3, v3, 4, {s(T0)}
    v_lshlrev_b32 v3, 7, v3
    v_add_u32 {v(vPoll)}, {FL1A:#x}, v3''')
    a(f'''s_lshl_b32 {s(T6)}, {s(sRB)}, 3
    s_lshl_b32 {s(T1)}, {s(sW4)}, 1
    s_add_u32 {s(T6)}, {s(T6)}, {s(T1)}
    s_lshl_b32 {s(T1)}, {s(sHA)}, 6
    s_add_u32 {s(T0)}, {s(T6)}, {s(T1)}
    s_lshl_b32 {s(T4)}, {s(T0)}, 10
    s_add_u32 {s(T4)}, {s(T4)}, {QM + AOFF:#x}
    s_mul_i32 {s(T5)}, {s(T0)}, {REC}
    s_add_u32 {s(T5)}, {s(T5)}, {KV + AOFF:#x}
    s_lshr_b32 {s(T0)}, {s(sHA)}, 1
    s_lshl_b32 {s(T0)}, {s(T0)}, 6
    s_add_u32 {s(T0)}, {s(T0)}, {s(T6)}
    s_lshl_b32 {s(T0)}, {s(T0)}, 8
    s_and_b32 {s(T1)}, {s(sHA)}, 1
    s_lshl_b32 {s(T1)}, {s(T1)}, 2
    s_add_u32 {s(T0)}, {s(T0)}, {s(T1)}
    s_add_u32 {s(T0)}, {s(T0)}, {QL + AOFF:#x}
    v_mov_b32 v3, {s(T0)}''')
    kl_const(a, T1, sHA)
    a(f'''s_add_u32 {s(T1)}, {s(T1)}, {s(T5)}
    v_mov_b32 v4, {s(T1)}
    v_mov_b32 v5, 256
    v_mov_b32 v6, {REC}
    v_cmp_gt_u32 vcc, 32, v0
    v_mov_b32 {v(WLq+1)}, 0
    v_mov_b32 {v(WLk+1)}, 0
    v_cndmask_b32 v3, v4, v3, vcc
    v_cndmask_b32 v5, v6, v5, vcc
    v_lshl_add_u32 v7, v1, 3, v3
    v_add_u32 v6, v7, v5
    v_mov_b32 {v(Fl[0]+1)}, 0
    v_mov_b32 {v(Fl[1]+1)}, 0''')
    flag_addr(a, T1, sCT, sRT, 4, FL1A)
    a(f's_cmp_lg_u32 {s(sIdle)}, 0\ns_cselect_b32 {s(T1)}, {OOB:#x}, {s(T1)}')
    a('s_waitcnt vmcnt(0)')
    last_signals(a, 2, C_F1A, 4, T1)
    for i in range(4): a(f'v_lshl_or_b32 {v(WPH + i)}, {v(9 + 2*i)}, 16, {v(8 + 2*i)}')
    a(f'v_lshl_or_b32 {v(WL)}, v35, 16, v34\nv_cmp_gt_u32 vcc, 32, v0\ns_nop 1\nv_cndmask_b32 {v(WLq)}, {v(vZero)}, {v(WL)}, vcc\nv_cndmask_b32 {v(WLk)}, {v(WL)}, {v(vZero)}, vcc')
    a.stamp(5)
    poll_flags(a, vPoll, 2, sl=4)
    a.stamp(6)
    for tt in range(2):
        a(f'buffer_load_dwordx4 {v(Fk[tt],4)}, {v(v16)}, {srd(sWS)}, {s(T5)} offen offset:{REC*tt} sc1')
        a(f'buffer_load_dword {v(Fl[tt])}, {v(7 - tt)}, {srd(sWS)}, 0 offen sc1')
    for tt in range(2): a(f'buffer_load_dwordx4 {v(Fq[tt],4)}, {v(v16)}, {srd(sWS)}, {s(T4)} offen offset:{1024*tt} sc1')
    for tt in range(2):
        for f in range(2): a(f'buffer_load_dwordx4 {v(Fv[tt]+4*f,4)}, {v(vVf+f)}, {srd(sWS)}, {s(T5)} offen offset:{REC*tt} sc1')
    vPh, vPr = 8, 9
    lds_wait(a, 2, C_F1A, 4)
    a(f'''s_mul_i32 {s(T0)}, {s(sW4)}, 5120
    s_add_u32 {s(T0)}, {s(T0)}, {PHS}
    v_lshrrev_b32 v2, 5, v0
    v_mul_u32_u24 v3, 80, v1
    v_lshl_add_u32 v3, v2, 3, v3
    v_add_u32 {v(vPh)}, {s(T0)}, v3
    v_bfe_u32 v3, v0, 2, 2
    v_lshl_add_u32 v5, v2, 2, v3
    v_mul_u32_u24 v5, 80, v5
    v_add_u32 v5, {s(T0)}, v5
    v_and_b32 v4, 3, v0
    v_lshlrev_b32 v6, 3, v4
    v_and_b32 v3, 1, v0
    v_lshlrev_b32 v3, 3, v3
    v_add_u32 v3, 64, v3
    v_bfe_u32 v4, v0, 4, 1
    v_cmp_eq_u32 vcc, 0, v4
    v_add_u32 {v(vPr+1)}, v5, v6
    s_mov_b32 {s(T2)}, {f2u(LOG2E):#x}
    v_cndmask_b32 v6, v3, v6, vcc
    s_mov_b32 {s(T3)}, {f2u(LOG2E):#x}
    v_add_u32 {v(vPr)}, v5, v6''')
    D = {('k', 0): 80, ('k', 1): 96, ('q', 0): 112, ('q', 1): 128}
    a('s_waitcnt vmcnt(6)')
    lprio(0)
    for tt in range(2): mfma(a, D[('k', tt)], WLk, Fl[tt], None, '8')
    for tt in range(2): mfma(a, D[('q', tt)], WLq, Fl[tt], None, '8')
    a.nop(7)
    for tt in range(2): mfma(a, D[('k', tt)], WPH, Fk[tt], D[('k', tt)])
    a('s_waitcnt vmcnt(4)')
    for tt in range(2): mfma(a, D[('q', tt)], WPH, Fq[tt], D[('q', tt)])
    a.nop(8)
    lprio(1)
    EP, EM = 144, 156
    PH = {('q', 0): 204, ('q', 1): 214, ('k', 0): 168, ('k', 1): 178}
    def softmax2(x, P):
        a(f'''v_max3_f32 v2, {v(x)}, {v(x+1)}, {v(x+2)}
        v_max3_f32 v4, -{v(x)}, -{v(x+1)}, -{v(x+2)}
        v_max3_f32 v2, v2, {v(x+3)}, {v(x+4)}
        v_max3_f32 v4, v4, -{v(x+3)}, -{v(x+4)}
        v_max3_f32 v2, v2, {v(x+5)}, {v(x+6)}
        v_max3_f32 v4, v4, -{v(x+5)}, -{v(x+6)}
        v_max3_f32 v2, v2, {v(x+7)}, {v(x+8)}
        v_max3_f32 v4, v4, -{v(x+7)}, -{v(x+8)}
        s_nop 1
        v_permlane32_swap_b32 v2, v4
        v_max_f32 v2, v2, v4
        v_mul_f32 v2, {s(T2)}, v2
        v_mov_b32 v4, v2
        s_nop 1
        v_permlane32_swap_b32 v2, v4''')
        bgdma()
        for i in range(0, 8, 2):
            a(f'v_pk_fma_f32 {v(EP+i,2)}, {v(x+i,2)}, {s(T2,2)}, v[2:3] op_sel_hi:[1,1,0] neg_lo:[0,0,1] neg_hi:[0,0,1]')
        a(f'v_fma_f32 {v(EP+8)}, {v(x+8)}, {s(T2)}, -v2')
        for i in range(0, 8, 2):
            a(f'v_pk_fma_f32 {v(EM+i,2)}, {v(x+i,2)}, {s(T2,2)}, v[4:5] op_sel_hi:[1,1,0] neg_lo:[1,0,1] neg_hi:[1,0,1]')
        a(f'v_fma_f32 {v(EM+8)}, -{v(x+8)}, {s(T2)}, -v4')
        for E in (EP, EM):
            for i in range(9): a(f'v_exp_f32 {v(E+i)}, {v(E+i)}')
            bgdma()
        a(f'''v_pk_add_f32 v[2:3], {v(EP,2)}, {v(EP+2,2)}
        v_pk_add_f32 v[4:5], {v(EM,2)}, {v(EM+2,2)}
        v_pk_add_f32 v[2:3], v[2:3], {v(EP+4,2)}
        v_pk_add_f32 v[4:5], v[4:5], {v(EM+4,2)}
        v_pk_add_f32 v[2:3], v[2:3], {v(EP+6,2)}
        v_pk_add_f32 v[4:5], v[4:5], {v(EM+6,2)}
        v_add_f32 v2, v2, {v(EP+8)}
        v_add_f32 v4, v4, {v(EM+8)}
        v_add_f32 v2, v2, v3
        v_add_f32 v4, v4, v5
        s_nop 1
        v_permlane32_swap_b32 v2, v4
        v_add_f32 v2, v2, v4
        v_rcp_f32 v2, v2
        s_nop 0
        v_mov_b32 v4, v2
        s_nop 1
        v_permlane32_swap_b32 v2, v4''')
        for E, t in ((EP, 2), (EM, 4)):
            for i in range(0, 8, 2): a(f'v_pk_mul_f32 {v(E+i,2)}, {v(E+i,2)}, {v(t,2)} op_sel_hi:[1,0]')
            a(f'v_mul_f32 {v(E+8)}, {v(E+8)}, {v(t)}')
        bgdma()
        cvt8(a, EP, P); cvt8(a, EM, P+4)
        a(f'v_cvt_pk_bf16_f32 {v(P+8)}, {v(EP+8)}, {v(EM+8)}')
    for tt in range(2):
        P = PH[('k', tt)]
        softmax2(D[('k', tt)], P)
        o = 2560*tt
        a(f'''ds_write_b64 {v(vPh)}, {v(P,2)} offset:{o}
        ds_write_b64 {v(vPh)}, {v(P+2,2)} offset:{o+16}
        ds_write_b64 {v(vPh)}, {v(P+4,2)} offset:{o+32}
        ds_write_b64 {v(vPh)}, {v(P+6,2)} offset:{o+48}
        ds_write_b32 {v(vPh)}, {v(P+8)} offset:{o+64}''')
    a.c('kv partial of this wave: phi_k^T (transposed through LDS) x [v | 1]')
    KA = 144; KD = [80, 96]
    a('s_waitcnt lgkmcnt(0)')
    for k in range(4):
        for sg in range(2):
            for j in range(2):
                a(f'ds_read_b64_tr_b16 {v(KA+8*k+4*sg+2*j,2)}, {v(vPr+sg)} offset:{(16*k+8*j)*80 + 32*sg}')
    a(f'''s_mul_i32 {s(T0)}, {s(sW4)}, 5120
    v_add_u32 v6, {s(T0)}, {v(v16)}
    v_lshlrev_b32 v1, 3, v0
    v_add_u32 v7, {s(T0)}, v1
    s_waitcnt vmcnt(12) lgkmcnt(0)''')
    lprio(0)
    for k in range(4):
        for sg in range(2): mfma(a, KD[sg], KA+8*k+4*sg, Fv[0]+4*k, None if k == 0 else KD[sg])
    lprio(1)
    softmax2(D[('q', 0)], PH[('q', 0)])
    a(f'''ds_write_b128 v6, {v(KD[0],4)} offset:{PHS}
    ds_write_b128 v6, {v(KD[0]+4,4)} offset:{PHS+1024}
    ds_write_b64 v7, {v(KD[0]+8,2)} offset:{PHS+2048}
    ds_write_b128 v6, {v(KD[1],4)} offset:{PHS+2560}
    ds_write_b128 v6, {v(KD[1]+4,4)} offset:{PHS+3584}
    s_waitcnt lgkmcnt(0)''')
    lds_arrive(a, C_KVX)
    a(f'''s_mul_i32 {s(T7)}, {s(sTH)}, 2560
    s_lshl_b32 {s(T1)}, {s(sMG)}, 10
    s_add_u32 {s(T7)}, {s(T7)}, {s(T1)}
    v_add_u32 v6, {s(T7)}, {v(v16)}
    s_lshl_b32 {s(T0)}, {s(sHA)}, 3
    s_add_u32 {s(T1)}, {s(T0)}, {s(sRB)}
    s_mul_i32 {s(T4)}, {s(T1)}, {KVPS}
    s_add_u32 {s(T4)}, {s(T4)}, {KVP:#x}
    s_add_u32 {s(T5)}, {s(T4)}, {s(T7)}
    s_lshl_b32 {s(T1)}, {s(T1)}, 7
    s_add_u32 {s(T1)}, {s(T1)}, {FL2:#x}''')
    lds_wait(a, 2, C_KVX, 4)
    R = 80
    for w in range(4): a(f'ds_read_b128 {v(R+4*w,4)}, v6 offset:{PHS + 5120*w}')
    a(f's_cmp_lg_u32 {s(sW4)}, 3\ns_cbranch_scc1 L_kvx')
    for w in range(4): a(f'ds_read_b64 {v(R+16+2*w,2)}, v1 offset:{PHS + 5120*w + 2048}')
    a('s_waitcnt lgkmcnt(0)')
    for w in range(1, 4): a(f'v_pk_add_f32 {v(R+16,2)}, {v(R+16,2)}, {v(R+16+2*w,2)}')
    a(f'buffer_store_dwordx2 {v(R+16,2)}, v1, {srd(sWS)}, {s(T4)} offen offset:2048 sc1')
    a.label('L_kvx')
    a('s_waitcnt lgkmcnt(0)')
    for w in range(1, 4):
        for k in range(2): a(f'v_pk_add_f32 {v(R+2*k,2)}, {v(R+2*k,2)}, {v(R+4*w+2*k,2)}')
    a(f'buffer_store_dwordx4 {v(R,4)}, {v(v16)}, {srd(sWS)}, {s(T5)} offen sc1')
    softmax2(D[('q', 1)], PH[('q', 1)])
    for tt in range(2): a(f'v_mov_b32 {v(PH[("q", tt)]+9)}, 0')
    a('s_waitcnt vmcnt(0)')
    last_signals(a, 2, C_F2, 4, T1)
    a.stamp(7)
    a.c('================= waves 4-7: kv total, numerator / denominator =================')
    a(f'''v_and_b32 v3, 7, v0
    s_lshl_b32 {s(T0)}, {s(sHA)}, 3
    v_add_u32 v3, {s(T0)}, v3
    v_lshlrev_b32 v3, 7, v3
    v_add_u32 v3, {FL2:#x}, v3
    s_mul_i32 {s(T4)}, {s(T0)}, {KVPS}
    s_add_u32 {s(T4)}, {s(T4)}, {KVP:#x}
    s_add_u32 {s(T5)}, {s(T4)}, {s(T7)}
    s_lshl_b32 {s(T7)}, {s(sTH)}, 10
    s_lshl_b32 {s(T0)}, {s(sMG)}, 3
    s_add_u32 {s(T7)}, {s(T7)}, {s(T0)}
    s_add_u32 {s(T7)}, {s(T7)}, {KVF}''')
    assert not bg
    lds_wait(a, 2, C_F2, 4)
    issue_blk(a, sAWO, 1, SLOT_A[1])
    poll_flags(a, 3, 2, sl=4)
    for i in range(8):
        a(f'buffer_load_dwordx4 {v(R+4*i,4)}, {v(v16)}, {srd(sWS)}, {s(T5)} offen sc1')
        if i < 7: a(f's_add_u32 {s(T5)}, {s(T5)}, {KVPS}')
    a(f'v_add_u32 v3, {s(T7)}, {v(v16)}\nv_add_u32 v6, {KVF + 2048}, v1\ns_cmp_lg_u32 {s(sW4)}, 3\ns_cbranch_scc1 L_kvs')
    for i in range(8):
        a(f'buffer_load_dwordx2 {v(R+32+2*i,2)}, v1, {srd(sWS)}, {s(T4)} offen offset:2048 sc1')
        if i < 7: a(f's_add_u32 {s(T4)}, {s(T4)}, {KVPS}')
    a('s_waitcnt vmcnt(0)')
    for i in range(1, 8): a(f'v_pk_add_f32 {v(R+32,2)}, {v(R+32,2)}, {v(R+32+2*i,2)}')
    a(f'v_cvt_pk_bf16_f32 v4, {v(R+32)}, {v(R+33)}\nv_mov_b32 v5, 0\nds_write_b64 v6, v[4:5]')
    a.label('L_kvs')
    a('s_waitcnt vmcnt(0)')
    for i in range(1, 8):
        for k in range(2): a(f'v_pk_add_f32 {v(R+2*k,2)}, {v(R+2*k,2)}, {v(R+4*i+2*k,2)}')
    a(f'v_cvt_pk_bf16_f32 v10, {v(R)}, {v(R+1)}\nv_cvt_pk_bf16_f32 v11, {v(R+2)}, {v(R+3)}\nds_write_b64 v3, v[10:11]\ns_waitcnt lgkmcnt(0)')
    lds_arrive(a, C_KVF)
    lds_wait(a, 2, C_KVF, 4)
    KF = 144
    a(f'''v_add_u32 v3, {KVF}, {v(v16)}
    ds_read_b64 {v(KF+8,2)}, v6
    ds_read_b128 {v(KF,4)}, v3
    ds_read_b128 {v(KF+4,4)}, v3 offset:1024
    s_mov_b32 {s(T0)}, {s(T6)}''')
    o_addr(a, sHA, OAM, OAL)
    a('s_waitcnt lgkmcnt(0)')
    ND = [80, 96]
    lprio(0)
    for tt in range(2): mfma(a, ND[tt], KF+8, PH[('q', tt)]+8, None, '8')
    a.nop(9)
    for tt in range(2): mfma(a, ND[tt], KF, PH[('q', tt)], ND[tt])
    for tt in range(2): mfma(a, ND[tt], KF+4, PH[('q', tt)]+4, ND[tt])
    a.nop(11)
    lprio(1)
    o_publish(a, ND, [112, 120], True)
    flag_addr(a, T1, sRB, sHA, 5, FL3)
    a('s_waitcnt vmcnt(0)')
    last_signals(a, 2, C_F3, 4, T1)
    a.stamp(8)
    a.c('================= waves 4-7: out projection of A (operands first, MFMAs after the attention) =================')
    W, O1, O2 = 16, 124, 160
    X = (8, 9, 10, 11); Y = (12, 13, 14, 15)
    sM, sM2, sL = T2, T3, T4
    a(f's_mul_i32 {s(T6)}, {s(sMG)}, {WBLK}\ns_add_u32 {s(T6)}, {s(T6)}, {SLOT_A[0]}')
    op_addr(a, *X, 2, T6)
    op_read_w(a, W, *X)
    for i in range(4): a(f'v_subrev_u32 {v(Y[i])}, {4*WBLK}, {v(X[i])}')
    a(f'''v_and_b32 v1, 31, v0
    v_lshrrev_b32 v2, 5, v0
    v_lshlrev_b32 v3, 2, v1
    v_lshl_add_u32 v5, v2, 9, v3
    s_lshr_b32 {s(T0)}, {s(sOT)}, 2
    s_lshl_b32 {s(T0)}, {s(T0)}, 5
    v_add_u32 v3, {s(T0)}, v1
    v_lshlrev_b32 v3, 7, v3
    v_add_u32 v3, {FL3:#x}, v3
    s_lshl_b32 {s(T1)}, {s(sOT)}, 1
    s_add_u32 {s(T5)}, {s(sTH)}, {s(T1)}
    s_lshl_b32 {s(T0)}, {s(T5)}, 5
    s_lshl_b32 {s(T1)}, {s(sMG)}, 4
    s_add_u32 {s(T7)}, {s(T0)}, {s(T1)}
    s_lshl_b32 {s(sM)}, {s(T7)}, 10
    s_add_u32 {s(sM)}, {s(sM)}, {OAM:#x}
    s_add_u32 {s(sM2)}, {s(sM)}, 4096
    s_lshl_b32 {s(sL)}, {s(T7)}, 7
    s_add_u32 {s(sL)}, {s(sL)}, {OAL:#x}
    s_waitcnt lgkmcnt(0)''')
    lds_arrive(a, C_W1)
    lds_wait(a, 4, C_W1, 4)
    for kq in (2, 3): issue_blk(a, sBWO, kq, SLOT_B[kq])
    poll_flags(a, 3, 4, sl=4)
    op_load_o(a, O1, v16, 5, sM, sM2, sL, OPT.get('thr', 1))
    a(f's_add_u32 {s(sM)}, {s(sM)}, 8192\ns_add_u32 {s(sM2)}, {s(sM2)}, 8192\ns_add_u32 {s(sL)}, {s(sL)}, 1024')
    op_load_o(a, O2, v16, 5, sM, sM2, sL, OPT.get('thr', 1))
    a('s_waitcnt vmcnt(0)')
    final_setup(a)
    a.stamp(9)
    pre = opt.get('pre', 0)
    mid = opt.get('mid', 1)
    a('s_setprio 0')
    for ps, (O, nxt) in enumerate(((O1, Y), (O2, X))):
        if ps == 1 and mid:
            a(f's_waitcnt vmcnt(0) lgkmcnt(6)\nv_cmp_ne_u32 vcc, {s(sTok)}, {v(vFlg)}')
            half_try(a)
        elif ps == 1: a('s_waitcnt lgkmcnt(6)')
        for st in range(9):
            if 9*ps + st == pre: a(f's_barrier\ns_setprio {opt.get("prio2", 0)}')
            if ps == 1 and st == 8: a('s_waitcnt lgkmcnt(12)')
            for T in range(3):
                mfma(a, ACA[T], W + 12*st + 4*T, O + 4*st, None if (ps == 0 and st == 0) else ACA[T])
            if st: a(op_w_reads(W, *nxt, st - 1))
            if (ps, st) == (1, 5) or (mid and (ps, st) == (0, max(pre, mid))): flag_ld(a)
        a(op_w_reads(W, *nxt, 8))
    a.nop(6)
    for i in range(4): a(f'v_mov_b32 {v(208+i)}, {v(ACA[2]+i)}')
    a.stamp(2)

HEADER = '''; Fused hedgehog linear attention (A) + softmax MHA (B), one persistent launch of 256 workgroups.
; kernarg: A_x A_wqkv A_w_phi A_wo B_x B_wqkv B_wo out debug ws (8-byte pointers, in that order)
; @launch grid=(256,1,1) block=(512,1,1) lds=%d
.amdgcn_target "amdgcn-amd-amdhsa--gfx950"
.text
.globl %s_kernel
.p2align 8
.type %s_kernel,@function
%s_kernel:
''' % (LDS_BYTES, NAME, NAME, NAME)
FOOTER = '''.section .rodata,"a"
.p2align 6
.amdhsa_kernel %s_kernel
  .amdhsa_next_free_vgpr 256
  .amdhsa_next_free_sgpr 102
  .amdhsa_accum_offset 256
  .amdhsa_group_segment_fixed_size 0
  .amdhsa_kernarg_size 80
  .amdhsa_user_sgpr_count 2
  .amdhsa_user_sgpr_kernarg_segment_ptr 1
  .amdhsa_system_sgpr_workgroup_id_x 1
.end_amdhsa_kernel
''' % NAME

OPT = {}
def generate(diag=False, **opt):
    opt = {**dict(rot=0, thr=3, sig=12, ldp=1), **opt}
    OPT.clear(); OPT.update(opt)
    a = Asm(diag)
    prologue(a, opt)
    gemm(a, opt)
    p_path(a, opt)
    a_chain(a, opt)
    final(a)
    body = a.text()
    bad = lint(body)
    for x in bad: print(f"HAZARD line {x[0]} -> {x[1]}: {x[2]} need {x[3]} have {x[4]}\n    {x[5]}\n    {x[6]}", file=sys.stderr)
    return HEADER + (f'    ; stamps={STAMPS:#x}\n' if diag else '') + body + FOOTER, len(bad)

if __name__ == '__main__':
    import argparse
    ap = argparse.ArgumentParser()
    ap.add_argument('-o', default=f'cdna_kernels/{NAME}.s')
    ap.add_argument('--diag', action='store_true')
    ap.add_argument('--opt', action='append', default=[])
    g = ap.parse_args()
    opt = {}
    for o in g.opt:
        k, val = o.split('='); opt[k] = int(val)
    text, nbad = generate(g.diag, **opt)
    open(g.o, 'w').write(text)
    print(f'wrote {g.o}: {len(text)} bytes, {nbad} hazards')
```

```python
import sys, struct
from lint import lint

NAME = 'concat_heads__linear_kernel_hedgehog__softmax_full_mha__prompt'
OOB = 0x40000000
QM, QL, KV = 0x0, 0x200000, 0x240000
REC = 2560; HREC = 64 * REC
VLOFF, ONEOFF, KLOFF = 2048, 2176, 2304
AOFF = 0x740000
OAM, OAL, OBM, OBL = 0xE80000, 0x1080000, 0x10C0000, 0x12C0000
KVP = 0x1300000; KVPS = 4608
FL1, FL1A, FL2, FL3, FL4 = 0x1420000, 0x1428000, 0x1430000, 0x1438000, 0x1440000
EPOCH = 0x1448000
STAMPS = 0x1500000
WS_BYTES = 0x1800000
XA = 0
PHS = 28672
WBLK = 21504
WS0 = 28672
SLOT_A = [WS0 + 4*WBLK, WS0, WS0 + 5*WBLK, WS0 + WBLK]
SLOT_B = [WS0 + 2*WBLK, WS0 + 3*WBLK, WS0 + 4*WBLK, WS0 + 5*WBLK]
EAX = 131072
CNT = WS0 + 6*WBLK
KVF = CNT + 256
LDS_BYTES = 163840
C_F1, C_F1A, C_KVX, C_F2, C_KVF, C_F3, C_OPA, C_F4, C_BAD, C_W1, C_TOK, C_W2, C_W3 = [4 * i for i in range(13)]
sBX, sBW, sAX, sAW, sPHI, sAWO, sBWO, sOUT, sDBG, sWS = 4, 8, 12, 16, 20, 24, 28, 32, 36, 40
sWave, sCT, sRT, sH = 44, 45, 46, 47
T0, T1, T2, T3, T4, T5, T6, T7 = range(48, 56)
sTab, sS0, sDoSc, sIdle = 64, 65, 66, 67
sQB, sRot, sFree, sOT, sOC, sTok, sLoc, sXcd = 68, 69, 70, 71, 72, 73, 74, 75
sHA, sRB = sH, sQB
sSpin, sTH, sMG, sTile = 76, 77, 78, 79
SSTAMP = 80
sW4, sImg, sXB, sWB, sLh2, sLt2 = 96, 97, 98, 99, 100, 101
v16, vQL, vCnt, vOne, vZero, vPoll, vTok = 244, 245, 246, 247, 248, 249, 250
vVf = 252
EA, ES = 72, 84
vWO = 224
vX, vW, XAc, WAc, XAr, WAr, vTab = 228, 232, 24, 28, 32, 36, 39
ACC = {('a', 0): 96, ('a', 1): 112, ('b', 0): 128, ('b', 1): 144}
FS = [176, 192, 40, 56]
def m_of(sl): return 9*(sl >> 2) + 2*(sl & 1) + 5*((sl >> 1) & 1)
def ct_table(ct):
    lo = 32*ct; s0 = next(x for x in range(200) if m_of(x) >= lo)
    used = {m_of(x) + d for x in range(s0, s0 + 12) for d in (0, 1)}
    misc = [m - lo for m in range(lo, lo + 32) if m not in used]
    assert misc[4:] == [28, 29, 30, 31]
    return sum(c << (5*i) for i, c in enumerate(misc[:4])) | (s0 << 20)

LOG2E = 1.4426950408889634
def f2u(x): return struct.unpack('<I', struct.pack('<f', x))[0]
QSCALE = f2u(18 ** -0.5 * LOG2E)

def v(a, n=1): return f'v{a}' if n == 1 else f'v[{a}:{a+n-1}]'
def s(a, n=1): return f's{a}' if n == 1 else f's[{a}:{a+n-1}]'
def srd(a): return s(a, 4)

import re
def unpack(x):
    m = re.match(r'v_pk_(add_f32|mul_f32|mov_b32) ([vs])\[(\d+):\d+\], ([vs])\[(\d+):\d+\], ([vs])\[(\d+):\d+\](.*)', x)
    op, _, d, k0, a0, k1, a1, mod = m.groups(); d, a0, a1 = int(d), int(a0), int(a1); mod = mod.strip()
    if op == 'mov_b32':
        assert mod == 'op_sel:[0,1]'
        return [f'v_mov_b32 v{d}, v{a0}', f'v_mov_b32 v{d+1}, v{a1+1}']
    assert mod in ('', 'op_sel_hi:[1,0]') and k0 == 'v'
    h = 0 if mod else 1
    return [f'v_{op} v{d}, {k1}{a1}, v{a0}', f'v_{op} v{d+1}, {k1}{a1+h}, v{a0+1}']

class Asm:
    def __init__(self, diag=False):
        self.L = []; self.uid = 0; self.diag = diag; self.lock = False; self.nopk = False
    def __call__(self, t):
        for x in t.split('\n'):
            x = x.strip()
            if not x: continue
            if self.nopk and x.startswith('v_pk_'): self.L += ['    ' + y for y in unpack(x)]
            else: self.L.append('    ' + x)
    def label(self, n): self.L.append(n + ':')
    def c(self, t): self.L.append('    ; ' + t)
    def new(self, p):
        self.uid += 1; return f'L_{p}{self.uid}'
    def nop(self, n):
        while n > 0:
            k = min(n, 16); self(f's_nop {k-1}'); n -= k
    def stamp(self, k):
        if self.diag and not self.lock:
            self(f's_memrealtime {s(94,2)}\ns_waitcnt lgkmcnt(0)\ns_mov_b32 {s(SSTAMP+k)}, s94')
    def lstamp(self, sreg, base=0):
        if self.diag:
            self(f's_memrealtime s[94:95]\ns_add_u32 s95, {sreg}, {base}\ns_mov_b32 s93, s95\ns_waitcnt lgkmcnt(0)\nv_writelane_b32 v254, s94, s93'.replace('s_add_u32 s95', 's_add_u32 s93').replace('s_mov_b32 s93, s95\n', '').replace('v_writelane_b32 v254, s94, s93', 's_mov_b32 m0, s93\nv_writelane_b32 v254, s94, m0'))
    def cyc0(self):
        if self.diag: self('s_memtime s[94:95]\ns_waitcnt lgkmcnt(0)\ns_mov_b32 s93, s94')
    def cyc1(self):
        if self.diag: self('s_memtime s[94:95]\ns_waitcnt lgkmcnt(0)\ns_sub_u32 s93, s94, s93')
    def text(self): return '\n'.join(self.L) + '\n'

class VM:
    def __init__(self): self.q = []
    def add(self, tag, n=1): self.q += [tag] * n
    def after(self, tag):
        i = max(k for k, t in enumerate(self.q) if t == tag)
        return len(self.q) - 1 - i

def mfma_s(d, x, y, c=None, kind='16'):
    op = {'16': 'v_mfma_f32_32x32x16_bf16', '8': 'v_mfma_f32_32x32x8_bf16', '2b': 'v_mfma_f32_32x32x4_2b_bf16'}[kind]
    nd = 32 if kind == '2b' else 16; na = 4 if kind == '16' else 2
    return f'{op} {v(d,nd)}, {v(x,na)}, {v(y,na)}, {"0" if c is None else v(c,nd)}'
def mfma(a, *k, **kw): a(mfma_s(*k, **kw))

def opol(k): return ['', ' sc1', ' nt', ' sc0 sc1', ' sc1 nt'][OPT.get(k, 0)]

def cvt8(a, src, dst):
    for i in range(4): a(f'v_cvt_pk_bf16_f32 {v(dst+i)}, {v(src+2*i)}, {v(src+2*i+1)}')

SRDS = {sAX: (48, 2048*1152), sAW: (50, 576*3456), sPHI: (52, 32*648), sAWO: (54, 576*1152), sBX: (56, 2048*1152),
        sBW: (58, 576*3456), sBWO: (60, 576*1152), sOUT: (62, 2048*2304), sDBG: (64, 256), sWS: (66, WS_BYTES)}
def mk_srd(a, r):
    p, nbytes = SRDS[r]
    a(f's_mov_b32 {s(r)}, {s(p)}\ns_mov_b32 {s(r+1)}, {s(p+1)}\ns_mov_b32 {s(r+2)}, {nbytes:#x}\ns_mov_b32 {s(r+3)}, 0x20000')

def spin_tail(a, top, sl=1):
    a(f's_sleep {sl}\ns_sub_u32 {s(sSpin)}, {s(sSpin)}, 1\ns_cbranch_scc0 {top}\ns_endpgm')

def token_issue(a):
    a(f'buffer_load_dwordx2 {v(vTok,2)}, {v(vZero)}, {srd(sDBG)}, 0 offen sc1')
def token_check(a):
    top = a.new('tok'); done = a.new('tokd')
    a.label(top)
    a(f'v_readfirstlane_b32 {s(T0)}, {v(vTok+1)}\nv_readfirstlane_b32 {s(sTok)}, {v(vTok)}\ns_cmp_lg_u32 {s(T0)}, 0\ns_cbranch_scc1 {done}')
    token_issue(a)
    a('s_waitcnt vmcnt(0)')
    spin_tail(a, top)
    a.label(done)

def poll_flags(a, vaddr, vt, preloaded=False, sl=1):
    top = a.new('poll'); done = a.new('polld'); chk = a.new('pollc')
    if preloaded: a(f's_branch {chk}')
    a.label(top)
    a(f'buffer_load_dword {v(vt)}, {v(vaddr)}, {srd(sWS)}, 0 offen sc1\ns_waitcnt vmcnt(0)')
    a.label(chk)
    a(f'v_cmp_ne_u32 vcc, {s(sTok)}, {v(vt)}\ns_cbranch_vccz {done}')
    spin_tail(a, top, sl)
    a.label(done)

def last_signals(a, vt, ctr, n, sflag):
    skip = a.new('nsig')
    a(f's_mov_b64 exec, 1\nds_add_rtn_u32 {v(vt)}, {v(vCnt)}, {v(vOne)} offset:{ctr}\ns_waitcnt lgkmcnt(0)')
    a(f'v_readfirstlane_b32 {s(T0)}, {v(vt)}\nv_mov_b32 {v(vt)}, {s(sflag)}\nv_mov_b32 {v(vt+1)}, {s(sTok)}\ns_cmp_lg_u32 {s(T0)}, {n-1}\ns_cbranch_scc1 {skip}')
    a(f'buffer_store_dword {v(vt+1)}, {v(vt)}, {srd(sWS)}, 0 offen sc1')
    a.label(skip)
    a('s_mov_b64 exec, -1')

def lds_arrive(a, ctr):
    a(f's_mov_b64 exec, 1\nds_add_u32 {v(vCnt)}, {v(vOne)} offset:{ctr}\ns_mov_b64 exec, -1')

def lds_wait(a, vt, ctr, n, sl=2):
    top = a.new('lw'); done = a.new('lwd')
    a.label(top)
    a(f'ds_read_b32 {v(vt)}, {v(vCnt)} offset:{ctr}\ns_waitcnt lgkmcnt(0)\nv_readfirstlane_b32 {s(T0)}, {v(vt)}\ns_cmp_ge_u32 {s(T0)}, {n}\ns_cbranch_scc1 {done}')
    spin_tail(a, top, sl)
    a.label(done)

def flag_addr(a, dst, shi, slo, sh, base):
    a(f's_lshl_b32 {s(dst)}, {s(shi)}, {sh}\ns_add_u32 {s(dst)}, {s(dst)}, {s(slo)}\ns_lshl_b32 {s(dst)}, {s(dst)}, 7\ns_add_u32 {s(dst)}, {s(dst)}, {base:#x}')

def kl_const(a, dst, shead):
    a(f's_bitcmp1_b32 {s(shead)}, 0\ns_mov_b32 {s(dst)}, {HREC + KLOFF}\ns_cselect_b32 {s(dst)}, {KLOFF + 4}, {s(dst)}')

def producer_ct(a, d, ty, last, shead, t):
    a(f'''s_lshr_b32 {s(T0)}, {s(shead)}, 1
    s_mul_i32 {s(T0)}, {s(T0)}, 36
    s_and_b32 {s(T1)}, {s(shead)}, 1
    s_lshl_b32 {s(T1)}, {s(T1)}, 4
    s_add_u32 {s(T0)}, {s(T0)}, {s(T1)}
    v_mul_u32_u24 {v(d)}, 576, {v(ty)}
    v_mul_u32_u24 {v(t)}, 19, {v(last)}
    v_add3_u32 {v(d)}, {v(d)}, {v(t)}, {s(T0)}
    v_lshrrev_b32 {v(d)}, 7, {v(d)}''')

def issue_chunk(a, j):
    if OPT.get('nodma') and j > 1: return
    slot = (j % 4) * 32768; c = j % 9
    if OPT.get('samek'): c = 0
    X, W = (sBX, sBW) if j < 9 else (sAX, sAW)
    nx = ' nt' if OPT.get('nt', 0) & 1 else ''; nw = ' nt' if OPT.get('nt', 0) & 2 else ''
    if OPT.get('rot', 0):
        a(f'''s_add_u32 vcc_lo, {s(sRot)}, {c}
        s_cmp_ge_u32 vcc_lo, 9
        s_cselect_b32 vcc_hi, 9, 0
        s_sub_u32 vcc_lo, vcc_lo, vcc_hi
        s_mul_i32 vcc_hi, vcc_lo, {64*3456}
        s_add_u32 vcc_hi, vcc_hi, {s(sWB)}
        s_lshl_b32 vcc_lo, vcc_lo, 7
        s_add_u32 vcc_lo, vcc_lo, {s(sXB)}
        s_lshl_b32 s3, {s(sW4)}, 12
        s_add_u32 m0, s3, {slot}
        s_nop 0''')
    else:
        a(f's_lshl_b32 s3, {s(sW4)}, 12\ns_add_u32 m0, s3, {slot}\ns_add_u32 vcc_lo, {s(sXB)}, {128*c}\ns_add_u32 vcc_hi, {s(sWB)}, {64*3456*c}')
    for i in range(4): a(f'buffer_load_dwordx4 {v(vX+i)}, {srd(X)}, vcc_lo offen offset:{1024*i}{nx} lds')
    a(f's_add_u32 m0, s3, {slot + 16384}\ns_nop 0')
    for i in range(4): a(f'buffer_load_dwordx4 {v(vW+i)}, {srd(W)}, vcc_hi offen offset:{1024*i}{nw} lds')

def su_loader(a):
    a.c('loader lane offsets: x rows (xor-swizzled 16-byte pieces), w rows (16 pieces, rotated by four per row)')
    a(f'''v_lshrrev_b32 v1, 3, v0
    v_and_b32 v2, 7, v0
    v_lshrrev_b32 v3, 1, v1
    v_xor_b32 v2, v2, v3
    v_mul_u32_u24 v1, 1152, v1
    v_lshl_add_u32 {v(vX)}, v2, 4, v1
    v_xor_b32 v2, 4, v2
    v_lshl_add_u32 {v(vX+1)}, v2, 4, v1
    v_add_u32 {v(vX+1)}, {8*1152-1024}, {v(vX+1)}
    v_add_u32 {v(vX+2)}, {2*(8*1152-1024)}, {v(vX)}
    v_add_u32 {v(vX+3)}, {2*(8*1152-1024)}, {v(vX+1)}
    v_lshrrev_b32 v1, 4, v0
    v_lshlrev_b32 v2, 2, v1
    v_sub_u32 v2, v0, v2
    v_and_b32 v2, 15, v2
    v_mul_u32_u24 v1, 3456, v1
    v_lshl_add_u32 v5, v2, 4, v1
    s_cmp_eq_u32 {s(sCT)}, 13
    s_cselect_b32 s3, 8, 16
    v_cmp_gt_u32 vcc, s3, v2
    v_mov_b32 v7, {OOB:#x}
    s_nop 0
    v_cndmask_b32 {v(vW)}, v7, v5, vcc''')
    for i in range(1, 4): a(f'v_add_u32 {v(vW+i)}, {i*(4*3456-1024)}, {v(vW)}')
    su_loader_s(a)

def su_loader_s(a):
    a(f'''s_lshl_b32 {s(sXB)}, {s(sRT)}, 2
    s_add_u32 {s(sXB)}, {s(sXB)}, {s(sW4)}
    s_mul_i32 {s(sXB)}, {s(sXB)}, {32*1152}
    s_mul_i32 {s(sWB)}, {s(sW4)}, {16*3456}
    s_lshl_b32 s3, {s(sCT)}, 8
    s_add_u32 {s(sWB)}, {s(sWB)}, s3''')

def su_ids2(a):
    a(f'''s_lshl_b32 s3, {s(sXcd)}, 2
    s_and_b32 {s(sH)}, {s(sLoc)}, 3
    s_add_u32 {s(sH)}, {s(sH)}, s3
    s_lshr_b32 {s(sQB)}, {s(sLoc)}, 2
    s_lshr_b32 {s(sOT)}, {s(sLoc)}, 3
    s_add_u32 {s(sOT)}, {s(sOT)}, s3
    s_and_b32 {s(sOC)}, {s(sLoc)}, 7
    s_mov_b32 {s(sSpin)}, 0x40000
    s_and_b32 {s(sTH)}, {s(sWave)}, 1
    s_lshr_b32 {s(sMG)}, {s(sW4)}, 1
    s_cmp_lt_u32 {s(sWave)}, 4
    s_cselect_b32 {s(sImg)}, 0, {AOFF:#x}
    v_mov_b32 {v(vZero)}, 0
    v_mov_b32 {v(vCnt)}, {CNT}
    v_mov_b32 {v(vOne)}, 1''')

def su_token(a, part):
    lb = a.new('notok')
    a(f's_or_b32 s3, s2, {s(sWave)}\ns_cmp_lg_u32 s3, 0\ns_cbranch_scc1 {lb}\ns_mov_b32 {s(T0)}, {EPOCH:#x}')
    if part == 0:
        a(f'buffer_load_dword v10, {v(vZero)}, {srd(sWS)}, {s(T0)} offen sc1')
    else:
        a(f'''s_mov_b32 {s(T1)}, 1664525
        s_waitcnt vmcnt(0)
        v_mul_lo_u32 v6, v10, {s(T1)}
        v_add_u32 v6, 0x3c6ef35f, v6
        v_mov_b32 v7, 1
        s_mov_b64 exec, 1
        buffer_store_dwordx2 v[6:7], {v(vZero)}, {srd(sDBG)}, 0 offen sc1
        buffer_store_dword v6, {v(vZero)}, {srd(sWS)}, {s(T0)} offen sc1
        s_mov_b64 exec, -1''')
    a.label(lb)
    if part == 0:
        a(f's_cmp_lg_u32 {s(sWave)}, 1\ns_cbranch_scc1 L_nocnt\nv_lshlrev_b32 v1, 2, v0\nv_add_u32 v1, {CNT}, v1\nds_write_b32 v1, {v(vZero)}')
        a.label('L_nocnt')

def su_gaddr(a):
    lb = a.new('mg0')
    a.c('gemm fragment addresses')
    a(f'''v_and_b32 v1, 31, v0
    v_lshrrev_b32 v2, 5, v0
    v_bfe_u32 v3, v0, 1, 3
    v_xor_b32 v3, v3, v2
    s_lshl_b32 s3, {s(sTH)}, 13
    v_lshl_add_u32 v4, v1, 7, s3''')
    for k in range(4):
        a(f'v_xor_b32 v5, {2*k}, v3\nv_lshl_add_u32 {v(XAc+k)}, v5, 4, v4')
    a.c('which four-column chunk each lane group reads for the two 32-column tiles of this wave')
    a(f'''v_bfe_u32 v3, v0, 2, 2
    v_and_b32 v4, 3, v0
    v_bfe_u32 v5, v0, 4, 1
    v_lshl_add_u32 v4, v5, 2, v4
    v_lshl_add_u32 v5, v2, 3, v3
    v_lshlrev_b32 v5, 8, v5
    v_add_u32 v5, 16384, v5
    v_lshlrev_b32 v3, 2, v3
    s_lshl_b32 s3, {s(sMG)}, 4''')
    for u in range(2): a(f'v_add_u32 {v(WAc+u)}, s3, v4' + (f'\nv_add_u32 {v(WAc+u)}, 8, {v(WAc+u)}' if u else ''))
    a(f's_cmp_ge_u32 {s(sCT)}, 9\ns_cbranch_scc1 {lb}')
    a(f'''v_lshrrev_b32 v6, 2, v4
    v_and_b32 v7, 1, v4
    v_lshl_add_u32 v6, v6, 1, v7
    s_lshl_b32 s3, {s(sMG)}, 3
    s_add_u32 s3, s3, {s(sS0)}
    v_add_u32 v6, s3, v6
    v_lshrrev_b32 v7, 2, v6
    v_mul_u32_u24 v7, 9, v7
    v_and_b32 v1, 1, v6
    v_lshl_add_u32 v7, v1, 1, v7
    v_bfe_u32 v1, v6, 1, 1
    v_mul_u32_u24 v1, 5, v1
    v_bfe_u32 v6, v4, 1, 1
    v_add3_u32 v7, v7, v1, v6
    s_lshl_b32 s3, {s(sCT)}, 5
    v_subrev_u32 {v(WAc)}, s3, v7
    v_add_u32 {v(WAc+1)}, 9, {v(WAc)}
    s_cmp_eq_u32 {s(sMG)}, 0
    s_cbranch_scc1 {lb}''')
    misc_chunk(a, WAc+1, 4, 6)
    a.label(lb)
    for u in range(2):
        a(f'''v_lshrrev_b32 v6, 1, {v(WAc+u)}
        v_add_u32 v6, v6, v3
        v_and_b32 v6, 15, v6
        v_lshl_add_u32 v6, v6, 4, v5
        v_and_b32 {v(WAc+u)}, 1, {v(WAc+u)}
        v_lshl_add_u32 {v(WAc+u)}, {v(WAc+u)}, 3, v6''')

def misc_chunk(a, d, c8, t):
    a(f'''v_mul_u32_u24 {v(t)}, 5, {v(c8)}
    v_lshrrev_b32 {v(t)}, {v(t)}, {v(vTab)}
    v_and_b32 {v(t)}, 31, {v(t)}
    v_cmp_gt_u32 vcc, 4, {v(c8)}
    v_add_u32 {v(d)}, 24, {v(c8)}
    s_nop 0
    v_cndmask_b32 {v(d)}, {v(d)}, {v(t)}, vcc''')

def su_tab(a):
    a(f's_mov_b32 {s(sTab)}, {ct_table(0):#x}')
    for ct in range(1, 9): a(f's_cmp_eq_u32 {s(sCT)}, {ct}\ns_cselect_b32 {s(sTab)}, {ct_table(ct):#x}, {s(sTab)}')
    a(f'''s_lshr_b32 {s(sS0)}, {s(sTab)}, 20
    v_mov_b32 {v(vTab)}, {s(sTab)}
    s_lshl_b32 {s(sTile)}, {s(sRT)}, 2
    s_lshl_b32 s3, {s(sTH)}, 1
    s_add_u32 {s(sTile)}, {s(sTile)}, s3
    s_cmp_le_u32 {s(sCT)}, 4
    s_cselect_b32 {s(sDoSc)}, 1, 0
    s_cmp_eq_u32 {s(sImg)}, 0
    s_cselect_b32 {s(sDoSc)}, {s(sDoSc)}, 0
    s_cmp_ge_u32 {s(sLoc)}, 28
    s_cselect_b32 {s(sIdle)}, 1, 0
    v_lshlrev_b32 {v(v16)}, 4, v0
    v_lshlrev_b32 {v(vQL)}, 2, v0''')

def head_base(a, g, d0, st, sc):
    a(f'''v_lshl_add_u32 {v(d0)}, {v(g)}, 16, {s(T0)}
    v_mul_u32_u24 v5, {HREC}, {v(g)}
    v_cmp_gt_u32 vcc, 32, {v(g)}
    v_add_u32 v5, {s(T1)}, v5
    v_mov_b32 {v(sc)}, {QSCALE:#x}
    v_cndmask_b32 {v(d0)}, v5, {v(d0)}, vcc
    v_cndmask_b32 {v(st)}, v7, v6, vcc
    v_cndmask_b32 {v(sc)}, 1.0, {v(sc)}, vcc''')

def su_epi(a, part):
    u = min(part, 1)
    lbS = a.new('es'); lbM = a.new('em'); done = a.new('ed')
    a(f'''v_and_b32 v1, 31, v0
    v_lshrrev_b32 v2, 5, v0
    s_mul_i32 {s(T1)}, {s(sTile)}, {REC}
    s_cmp_ge_u32 {s(sCT)}, 9
    s_cbranch_scc1 {lbS if part < 2 else done}
    s_add_u32 {s(T1)}, {s(T1)}, {(KV - 32*HREC) & 0xffffffff:#x}
    s_lshl_b32 {s(T0)}, {s(sTile)}, 10
    v_mov_b32 v6, 1024
    v_mov_b32 v7, {REC}''')
    if u: a(f's_cmp_lg_u32 {s(sMG)}, 0\ns_cbranch_scc1 {lbM}')
    for qp in range(2 if part < 2 else 0):
        e = EA + 4*u + 2*qp
        a(f'''s_lshl_b32 s3, {s(sMG)}, 3
        s_add_u32 s3, s3, {s(sS0)}
        s_add_u32 s3, s3, {4*u + 2*qp}
        v_add_u32 v3, s3, v2
        v_lshrrev_b32 v4, 1, v3''')
        head_base(a, 4, e, e+1, ES + 2*u + qp)
        a(f'''v_and_b32 v3, 1, v3
        v_lshl_add_u32 {v(e)}, v3, 9, {v(e)}
        v_lshl_add_u32 {v(e)}, v1, 4, {v(e)}
        v_add_u32 {v(e+1)}, {v(e)}, {v(e+1)}''')
    a(f's_branch {done}')
    if u:
        a.label(lbM)
        a(f'''s_lshl_b32 {s(T2)}, {s(sTile)}, 8
        s_add_u32 {s(T2)}, {s(T2)}, {QL:#x}
        s_add_u32 {s(T3)}, {s(T1)}, {HREC + KLOFF}
        s_lshl_b32 {s(T4)}, {s(sCT)}, 5''')
        for q in range(part - 1, part):
            e = EA + 4 + 2*q
            a(f'v_add_u32 v3, {2*q}, v2')
            misc_chunk(a, 4, 3, 5)
            a(f'''v_add_u32 v4, {s(T4)}, v4
            v_mul_u32_u24 v3, 7282, v4
            v_lshrrev_b32 v3, 16, v3
            v_mul_u32_u24 v5, 9, v3
            v_sub_u32 v8, v4, v5
            v_cmp_lt_u32 vcc, 4, v8
            v_lshlrev_b32 v3, 1, v3
            v_subrev_u32 v9, 5, v8
            v_addc_co_u32 v4, vcc, 0, v3, vcc
            v_min_u32 v9, v8, v9''')
            head_base(a, 4, e, e+1, ES + 2 + q)
            a(f'''v_lshrrev_b32 v4, 1, v9
            v_lshl_add_u32 {v(e)}, v4, 9, {v(e)}
            v_and_b32 v4, 1, v9
            v_lshl_add_u32 {v(e)}, v4, 3, {v(e)}
            v_lshl_add_u32 {v(e)}, v1, 4, {v(e)}
            v_lshl_add_u32 v4, v3, 13, {s(T2)}
            v_mul_u32_u24 v5, {HREC}, v3
            v_add_u32 v5, {s(T3)}, v5
            v_mov_b32 v9, 256
            v_cndmask_b32 v4, v5, v4, vcc
            v_cndmask_b32 v9, v7, v9, vcc
            v_cmp_eq_u32 vcc, 4, v8
            v_lshl_add_u32 v4, v1, 3, v4
            s_nop 0
            v_cndmask_b32 {v(e)}, {v(e)}, v4, vcc
            v_cndmask_b32 {v(e+1)}, {v(e+1)}, v9, vcc
            v_add_u32 {v(e+1)}, {v(e)}, {v(e+1)}''')
        a(f's_branch {done}')
    if part >= 2:
        a.label(done); return
    a.label(lbS)
    e = EA + 2*u
    a(f'''s_add_u32 {s(T1)}, {s(T1)}, {KV:#x}
    s_sub_u32 {s(T2)}, {s(sCT)}, 9
    s_lshl_b32 {s(T2)}, {s(T2)}, 7
    s_lshl_b32 s3, {s(sMG)}, 6
    s_add_u32 s3, s3, {s(T2)}
    s_add_u32 s3, s3, {32*u}
    v_add_u32 v3, s3, v1
    v_mul_u32_u24 v4, 3641, v3
    v_lshrrev_b32 v4, 16, v4
    v_mul_u32_u24 v5, 18, v4
    v_sub_u32 v3, v3, v5
    v_and_b32 v5, 1, v4
    v_lshlrev_b32 v5, 1, v5
    v_sub_u32 v3, v3, v5
    v_add_u32 v5, 18, v3
    v_min_u32 v3, v3, v5
    v_mul_u32_u24 v5, {HREC}, v4
    v_add_u32 v5, {s(T1)}, v5
    v_lshl_add_u32 v5, v3, 4, v5
    v_lshl_add_u32 v6, v2, 8, v5
    v_add_u32 v6, 1024, v6
    v_lshl_add_u32 v7, v2, 5, v5
    v_add_u32 v7, {VLOFF - 256}, v7
    v_cmp_gt_u32 vcc, 16, v3
    v_add_u32 v8, 512, v6
    v_add_u32 v9, 64, v7
    v_cndmask_b32 v6, v7, v6, vcc
    v_cndmask_b32 v8, v9, v8, vcc
    v_cmp_gt_u32 vcc, 32, v4
    v_mov_b32 v7, {OOB:#x}
    s_nop 0
    v_cndmask_b32 {v(e)}, v7, v6, vcc
    v_cndmask_b32 {v(e+1)}, v7, v8, vcc''')
    if u:
        a.c('the row of ones of every head whose first column is in this tile')
        a(f'''s_add_u32 s3, {s(T2)}, 17
        s_mul_i32 s3, s3, 3641
        s_lshr_b32 s3, s3, 16
        v_and_b32 v3, 7, v0
        v_add_u32 v3, s3, v3
        v_mul_u32_u24 v4, 18, v3
        s_add_u32 {s(T2)}, {s(T2)}, 128
        s_min_u32 {s(T2)}, {s(T2)}, 576
        v_cmp_gt_u32 vcc, {s(T2)}, v4
        v_cmp_gt_u32 {s(T4,2)}, 16, v0
        s_and_b64 vcc, vcc, {s(T4,2)}
        v_mul_u32_u24 v3, {HREC}, v3
        v_bfe_u32 v4, v0, 3, 1
        v_mul_u32_u24 v4, {REC}, v4
        v_add3_u32 v3, v3, v4, {s(T1)}
        v_add_u32 v3, {ONEOFF}, v3
        v_cndmask_b32 {v(EA+4)}, v7, v3, vcc''')
    a.label(done)

def su_vgat(a):
    a.c('V fragment gather offsets inside a key-tile record')
    a('v_and_b32 v1, 31, v0\nv_lshrrev_b32 v2, 5, v0')
    a(f'''v_lshlrev_b32 v3, 4, v1
    v_lshl_add_u32 v3, v2, 8, v3
    v_add_u32 v3, 1024, v3
    v_subrev_u32 v4, 16, v1
    v_lshlrev_b32 v5, 4, v4
    v_lshl_add_u32 v5, v2, 5, v5
    v_add_u32 v5, {VLOFF}, v5
    v_cmp_gt_u32 vcc, 2, v4
    v_add_u32 v6, 64, v5
    v_mov_b32 v7, {OOB:#x}
    v_cndmask_b32 v5, v7, v5, vcc
    v_cndmask_b32 v6, v7, v6, vcc
    v_and_b32 v4, 27, v1
    v_cmp_eq_u32 vcc, 18, v4
    v_mov_b32 v7, {ONEOFF}
    s_nop 0
    v_cndmask_b32 v5, v5, v7, vcc
    v_cndmask_b32 v6, v6, v7, vcc
    v_cmp_gt_u32 vcc, 16, v1
    v_add_u32 v4, 512, v3
    s_nop 0
    v_cndmask_b32 {v(vVf)}, v5, v3, vcc
    v_cndmask_b32 {v(vVf+1)}, v6, v4, vcc''')

def prefetch_a(a):
    if not OPT.get('pf', 1): return
    top = a.new('pf'); isw = a.new('pfw'); nxt = a.new('pfn')
    a(f'''s_sub_u32 {s(T0)}, {s(sLoc)}, 28
    s_lshl_b32 {s(T0)}, {s(T0)}, 3
    s_add_u32 {s(T0)}, {s(T0)}, {s(sWave)}
    v_mul_u32_u24 v1, 1152, v0
    v_mul_u32_u24 v2, 3456, v0
    s_lshr_b32 {s(T4)}, {s(sXcd)}, 1
    s_mul_i32 {s(T4)}, {s(T4)}, {512*1152}
    s_and_b32 {s(T5)}, {s(sXcd)}, 1
    s_mul_i32 {s(T5)}, {s(T5)}, {7*256}''')
    a.label(top)
    a(f'''s_mul_i32 {s(T1)}, {s(T0)}, 2979
    s_lshr_b32 {s(T1)}, {s(T1)}, 16
    s_mul_i32 {s(T2)}, {s(T1)}, 22
    s_sub_u32 {s(T2)}, {s(T0)}, {s(T2)}
    s_cmp_ge_u32 {s(T2)}, 8
    s_cbranch_scc1 {isw}
    s_mul_i32 {s(T2)}, {s(T2)}, {64*1152}
    s_lshl_b32 {s(T1)}, {s(T1)}, 7
    s_add_u32 {s(T2)}, {s(T2)}, {s(T1)}
    s_add_u32 {s(T2)}, {s(T2)}, {s(T4)}
    buffer_load_dword v3, v1, {srd(sAX)}, {s(T2)} offen
    s_branch {nxt}''')
    a.label(isw)
    a(f'''s_sub_u32 {s(T2)}, {s(T2)}, 8
    s_lshl_b32 {s(T2)}, {s(T2)}, 7
    s_mul_i32 {s(T1)}, {s(T1)}, {64*3456}
    s_add_u32 {s(T2)}, {s(T2)}, {s(T1)}
    s_add_u32 {s(T2)}, {s(T2)}, {s(T5)}
    buffer_load_dword v3, v2, {srd(sAW)}, {s(T2)} offen''')
    a.label(nxt)
    a(f's_add_u32 {s(T0)}, {s(T0)}, 32\ns_cmp_lt_u32 {s(T0)}, 198\ns_cbranch_scc1 {top}')

def su_acc(a, part, pk=False):
    rg = (range(96, 128), range(128, 160), range(40, 72))[part]
    if pk:
        for r in rg[::2]: a(f'v_pk_mov_b32 {v(r,2)}, {v(vZero,2)}, {v(vZero,2)}')
    else:
        for r in rg: a(f'v_mov_b32 {v(r)}, 0')

def su_share(a, regs, put, first=0):
    a(f's_mul_i32 s3, {s(sW4)}, 6656\ns_add_u32 s3, s3, {EAX}\nv_add_u32 v1, s3, {v(v16)}')
    off = first
    for r, n in regs:
        if n == 4: a(f'ds_write_b128 v1, {v(r,4)} offset:{off}' if put else f'ds_read_b128 {v(r,4)}, v1 offset:{off}')
        off += 1024
SH_P = [(XAc, 4), (WAc, 4)]
SH_L = [(EA, 4), (EA+4, 4), (EA+8, 4), (ES, 4), (ES+4, 4), (236, 4)]

def slot_addr(a):
    for k in range(4): a(f'v_add_u32 {v(XAr+k)}, {s(T6)}, {v(XAc+k)}')
    for w in range(2): a(f'v_add_u32 {v(WAr+w)}, {s(T6)}, {v(WAc+w)}')
    a(f's_add_u32 {s(T6)}, {s(T6)}, 0x8000\ns_and_b32 {s(T6)}, {s(T6)}, 0x1ffff')

def prologue(a, opt):
    a(f's_cmp_ge_u32 s2, 256\ns_cbranch_scc1 L_end')
    a(f's_load_dwordx16 s[48:63], s[0:1], 0\ns_load_dwordx4 s[64:67], s[0:1], 64')
    if a.diag:
        for k in range(2, 14): a(f's_mov_b32 {s(SSTAMP+k)}, 0')
    if a.diag or opt.get('padto'): a(f's_memrealtime {s(SSTAMP,2)}')
    if opt.get('ipf', 1):
        a.c('workgroups without a gemm tile pull this code towards L2 (one dword per 128-byte line)')
        a(f'''s_cmp_lt_u32 s2, 224
        s_cbranch_scc1 L_noipf
        s_getpc_b64 s[66:67]'''.replace('s[66:67]', 's[98:99]'))
        a.label('L_pc')
        a(f'''v_lshlrev_b32 v1, 7, v0
        v_cmp_gt_u32 vcc, L_end-L_pc, v1
        s_and_saveexec_b64 s[100:101], vcc
        s_cbranch_execz L_ipfx
        global_load_dword v254, v1, s[98:99]''')
        a.label('L_ipfx')
        a('s_mov_b64 exec, s[100:101]')
        a.label('L_noipf')
    a(f'v_lshrrev_b32 v1, 6, v0\nv_and_b32 v0, 63, v0\nv_readfirstlane_b32 {s(sWave)}, v1')
    a(f'''s_and_b32 {s(sXcd)}, s2, 7
    s_lshr_b32 {s(sLoc)}, s2, 3
    s_mul_i32 {s(sRT)}, {s(sLoc)}, 37
    s_lshr_b32 {s(sRT)}, {s(sRT)}, 8
    s_mul_i32 s3, {s(sRT)}, 7
    s_sub_u32 {s(sCT)}, {s(sLoc)}, s3
    s_add_u32 {s(sRot)}, {s(sCT)}, {s(sRT)}
    s_and_b32 s3, {s(sXcd)}, 1
    s_mul_i32 s3, s3, 7
    s_add_u32 {s(sCT)}, {s(sCT)}, s3
    s_lshr_b32 s3, {s(sXcd)}, 1
    s_lshl_b32 s3, s3, 2
    s_add_u32 {s(sRT)}, {s(sRT)}, s3
    s_and_b32 {s(sW4)}, {s(sWave)}, 3''')
    r = opt.get('rot', 0)
    if r == 2:
        a(f's_mul_i32 s3, {s(sRot)}, 86\ns_lshr_b32 s3, s3, 8\ns_mul_i32 s3, s3, 3\ns_sub_u32 {s(sRot)}, {s(sRot)}, s3\ns_mul_i32 {s(sRot)}, {s(sRot)}, 3')
    elif r == 4:
        a(f's_and_b32 {s(sRot)}, {s(sRot)}, 3')
    elif r == 3:
        a(f's_and_b32 {s(sRot)}, {s(sRot)}, 1\ns_lshl_b32 {s(sRot)}, {s(sRot)}, 2')
    su_ids2(a)
    a(f's_cmp_eq_u32 {s(sImg)}, 0\ns_cbranch_scc1 L_pset')
    a.c('================= waves 4-7: load the B tile =================')
    if opt.get('lp1', 1): a('s_setprio 1')
    su_loader(a)
    a('s_waitcnt lgkmcnt(0)')
    for r in (sBX, sBW): mk_srd(a, r)
    vm = VM()
    a(f's_cmp_ge_u32 {s(sLoc)}, 28\ns_cbranch_scc1 L_lnoiss')
    for j in range(2): issue_chunk(a, j); vm.add(j, 8)
    a.label('L_lnoiss')
    for r in (sAX, sAW, sPHI, sAWO, sBWO, sOUT, sDBG, sWS): mk_srd(a, r)
    su_tab(a)
    for p in range(3): su_acc(a, p, True)
    a(f'v_mov_b32 {v(EA)}, {OOB:#x}')
    for r in range(EA + 1, EA + 20): a(f'v_mov_b32 {v(r)}, {v(EA)}')
    a.stamp(1)
    a(f's_cmp_lg_u32 {s(sIdle)}, 0\ns_cbranch_scc1 L_lidle')
    for j in range(9):
        a(f's_waitcnt vmcnt({vm.after(j)})')
        if opt.get('p1') == 1: a.stamp(3 + j)
        a('s_barrier')
        if opt.get('p1') == 2: a.stamp(3 + j)
        if opt.get('p1') == 2 and j == 0: a.cyc0()
        if opt.get('p1') == 2 and j == 8: a.cyc1()
        sw = opt.get('sw', 9)
        for c in ([j + 2] if j < sw else [j + 2, j + 3] if j == sw else [j + 3]):
            issue_chunk(a, c); vm.add(c, 8)
            if c == 9: token_issue(a); vm.add('tok')
        if j == 0: su_share(a, SH_P, False); su_vgat(a); a('s_waitcnt lgkmcnt(0)')
        if 1 <= j <= 5: su_epi(a, j - 1)
        if j == 6:
            a(f'v_mov_b32 {v(ES+6)}, {v(vVf)}\nv_mov_b32 {v(ES+7)}, {v(vVf+1)}')
            a(f'v_mov_b32 v236, {v(vX)}\nv_mov_b32 v237, {v(vX+1)}\nv_mov_b32 v238, {v(vW)}')
            su_share(a, SH_L, True)
        if j == 7:
            a('s_waitcnt lgkmcnt(0)')
            for r in range(EA, EA + 12): a(f'v_add_u32 {v(r)}, {AOFF:#x}, {v(r)}')
    a(f's_waitcnt vmcnt({vm.after("tok")})')
    token_check(a)
    a(f'ds_write_b32 {v(vCnt)}, {v(vTok)} offset:{C_TOK}\ns_mov_b32 {s(T6)}, {(9 % 4) * 32768}\ns_waitcnt lgkmcnt(0)')
    a(f's_setprio {opt.get("prio", 1)}')
    a.stamp(2)
    if opt.get('p1'): a.lock = True
    if sw == 9:
        slot_addr(a)
        a(f's_mov_b32 {s(T7)}, 9\ns_barrier')
        issue_chunk(a, 11)
        a(f's_cmp_ge_u32 {s(sCT)}, 9\ns_cbranch_scc1 L_gSb\ns_branch L_gNb')
    else: a('s_branch L_gemm')
    a.label('L_lidle')
    a.c('four workgroups per group of 32 have no gemm tile')
    prefetch_a(a)
    a('s_waitcnt vmcnt(0)')
    su_vgat(a)
    token_issue(a)
    a('s_waitcnt vmcnt(0)')
    token_check(a)
    a(f's_barrier\nds_write_b32 {v(vCnt)}, {v(vTok)} offset:{C_TOK}\ns_setprio {opt.get("prio", 1)}\ns_waitcnt lgkmcnt(0)\ns_barrier\ns_branch L_achain')
    a.label('L_pset')
    a.c('================= waves 0-3: set-up =================')
    su_loader_s(a)
    for p in range(3): su_acc(a, p, True)
    a('s_waitcnt lgkmcnt(0)')
    for r in (sWS, sDBG, sAX, sAW, sOUT, sPHI, sAWO, sBWO): mk_srd(a, r)
    su_token(a, 0); su_tab(a); su_gaddr(a)
    a(f's_cmp_eq_u32 {s(sIdle)}, 0\ns_cbranch_scc1 L_pbusy')
    prefetch_a(a)
    a('s_waitcnt vmcnt(0)')
    su_vgat(a)
    for r in range(vX, vX + 8): a(f'v_mov_b32 {v(r)}, {OOB:#x}')
    a(f's_waitcnt lgkmcnt(0)\ns_barrier\ns_barrier\nds_read_b32 {v(vTok)}, {v(vCnt)} offset:{C_TOK}\ns_branch L_ppath')
    a.label('L_pbusy')
    su_share(a, SH_P, True); su_token(a, 1)
    a(f's_waitcnt lgkmcnt(0)\ns_mov_b32 {s(T6)}, 0')
    a.stamp(1)
    if a.diag: a('s_mov_b32 s82, 0')

def gemm(a, opt):
    sSlot, sIt = T6, T7
    a.label('L_gemm')
    a.c('================= qkv gemm (waves 0-3: B, waves 4-7: A) =================')
    a(f's_mov_b32 {s(sIt)}, 9\ns_cmp_ge_u32 {s(sCT)}, 9\ns_cbranch_scc1 L_gS')
    def mid():
        lb = a.new('mid')
        a(f's_cmp_lg_u32 {s(sImg)}, 0\ns_cbranch_scc1 {lb}\ns_barrier')
        issue_chunk(a, 13)
        a.label(lb)
    def loop(o):
        def reads(k):
            F = FS[k]
            rd = lambda w, j: f'ds_read_b64_tr_b16 {v(F+8+4*w+2*j,2)}, {v(WAr+w)} offset:{4096*k+1024*j}'
            rx = lambda tt: f'ds_read_b128 {v(F+4*tt,4)}, {v(XAr+k)} offset:{4096*tt}'
            if opt.get('nord'): return ['s_nop 0'] * 6
            return [rd(0, 0), rd(0, 1), rx(0), rx(1), rd(1, 0), rd(1, 1)]
        def mms(k):
            m = []
            for w, nm in enumerate('ab'):
                for tt in range(2):
                    x, wf = FS[k]+4*tt, FS[k]+8+4*w
                    m.append(mfma_s(ACC[(nm, tt)], wf, x, ACC[(nm, tt)]) if o == 'N' else mfma_s(ACC[(nm, tt)], x, wf, ACC[(nm, tt)]))
            if opt.get('nomm'): m = ['s_nop 0'] * 4
            if opt.get('m16'):
                def two(x, i0):
                    g = re.match(r'\S+ v\[(\d+):\d+\], (\S+), (\S+), ', x); d = int(g.group(1))
                    return '\n'.join(f'v_mfma_f32_16x16x32_bf16 {v(d+4*i,4)}, {g.group(2)}, {g.group(3)}, {v(d+4*i,4)}' for i in (i0, i0+1))
                m = [two(x, 2*(k & 1)) for x in m]
            return m
        def grp(km, kr, wait=None):
            m = mms(km); r = reads(kr)
            if wait is not None: a(f's_waitcnt lgkmcnt({wait})')
            a(m[0]); a(r[0]); a(r[1]); a(r[2]); a(m[1]); a(r[3]); a(r[4]); a(r[5]); a(m[2]); a(m[3])
        a.label(f'L_g{o}')
        slot_addr(a)
        if opt.get('p3'): a.lstamp(s(sIt), 16)
        a('s_barrier')
        a.label(f'L_g{o}b')
        if opt.get('p3'): a.lstamp(s(sIt), 32)
        grp(2, 0); grp(3, 1); grp(0, 2, 6); grp(1, 3, 6)
        w8 = a.new('w8')
        a(f's_cmp_eq_u32 {s(sIt)}, 9\ns_cbranch_scc1 {w8}\ns_waitcnt vmcnt(0)')
        a.label(w8)
        if opt.get('lp0', 0):
            lo = a.new('lo')
            a(f's_cmp_lg_u32 {s(sIt)}, 2\ns_cbranch_scc1 {lo}\ns_setprio 0')
            a.label(lo)
        a(f's_sub_u32 {s(sIt)}, {s(sIt)}, 1\ns_cmp_lg_u32 {s(sIt)}, 0\ns_waitcnt vmcnt(8) lgkmcnt(0)\ns_cbranch_scc1 L_g{o}')
        m = mms(2) + mms(3)
        a(f's_cmp_lg_u32 {s(sImg)}, 0\ns_cbranch_scc1 L_gf{o}\ns_setprio 2')
        su_share(a, SH_L, False)
        a(f'''s_barrier
        ds_read_b32 {v(vTok)}, {v(vCnt)} offset:{C_TOK}
        s_waitcnt lgkmcnt(1)
        v_mov_b32 {v(vX)}, v236
        v_mov_b32 {v(vX+1)}, v237
        v_add_u32 {v(vX+2)}, {2*(8*1152-1024)}, v236
        v_add_u32 {v(vX+3)}, {2*(8*1152-1024)}, v237
        v_mov_b32 {v(vW)}, v238''')
        for i in range(1, 4): a(f'v_add_u32 {v(vW+i)}, {i*(4*3456-1024)}, v238')
        a(f'v_mov_b32 {v(vVf)}, {v(ES+6)}\nv_mov_b32 {v(vVf+1)}, {v(ES+7)}')
        issue_chunk(a, 12)
        a.label(f'L_gf{o}')
        for i in (0, 1, 4, 5, 2, 3, 6, 7): a(m[i])
        if opt.get('lp0', 0):
            lo = a.new('lo')
            a(f's_cmp_eq_u32 {s(sImg)}, 0\ns_cbranch_scc1 {lo}\ns_setprio 1')
            a.label(lo)
        a.stamp(3)
    def scale(nm, sc, n):
        lb = a.new('nosc')
        a(f's_cmp_eq_u32 {s(sDoSc)}, 0\ns_cbranch_scc1 {lb}')
        for tt in range(2):
            for i in range(16): a(f'v_mul_f32 {v(ACC[(nm, tt)]+i)}, {v(sc + i//n)}, {v(ACC[(nm, tt)]+i)}')
        a.label(lb)
    def epi_main(u):
        nm = 'ab'[u]
        scale(nm, ES + 2*u, 8)
        for tt in range(2):
            for qp in range(2):
                r = ACC[(nm, tt)] + 8*qp
                cvt8(a, r, r)
                a(f'buffer_store_dwordx4 {v(r,4)}, {v(EA + 4*u + 2*qp + tt)}, {srd(sWS)}, 0 offen sc1')
    def epi_misc():
        scale('b', ES + 2, 4)
        for tt in range(2):
            for h in range(2):
                r = ACC[('b', tt)] + 8*h
                cvt8(a, r, r)
                for q in range(2): a(f'buffer_store_dwordx2 {v(r+2*q,2)}, {v(EA + 4 + 2*(2*h+q) + tt)}, {srd(sWS)}, 0 offen sc1')
    def epi_v(u):
        nm = 'ab'[u]
        for tt in range(2):
            for f in range(2):
                r = ACC[(nm, tt)] + 8*f
                cvt8(a, r, r)
                a(f'buffer_store_dwordx4 {v(r,4)}, {v(EA + 2*u + f)}, {srd(sWS)}, 0 offen offset:{REC*tt} sc1')
    loop('N')
    a.nop(6); epi_main(0); mid()
    a(f's_cmp_lg_u32 {s(sMG)}, 0\ns_cbranch_scc1 L_emisc')
    epi_main(1); a('s_branch L_epi_done')
    a.label('L_emisc')
    epi_misc(); a('s_branch L_epi_done')
    loop('S')
    for i in range(4): a(f'v_mov_b32 {v(4+i)}, 0x3f803f80')
    a.nop(4); epi_v(0); mid(); epi_v(1)
    a(f's_cmp_lg_u32 {s(sMG)}, 0\ns_cbranch_scc1 L_epi_done\nbuffer_store_dwordx4 v[4:7], {v(EA+4)}, {srd(sWS)}, 0 offen sc1')
    a.label('L_epi_done')
    a.stamp(4)
    a(f's_cmp_lg_u32 {s(sImg)}, 0\ns_cbranch_scc1 L_achain')
    a.label('L_ppath')

def op_addr(a, vm, vm2, vl, vl2, vt, skq_bytes):
    t0, t1, t2, t3, t4 = vt, vt+1, vt+2, vt+3, vt+4
    a(f'''v_bfe_u32 {v(t0)}, v0, 2, 2
    v_lshrrev_b32 {v(t1)}, 5, v0
    v_and_b32 {v(t2)}, 3, v0
    v_bfe_u32 {v(t3)}, v0, 4, 1
    v_lshl_add_u32 {v(t2)}, {v(t3)}, 2, {v(t2)}
    v_lshl_add_u32 {v(t3)}, {v(t1)}, 2, {v(t0)}
    v_mul_u32_u24 {v(t3)}, 144, {v(t3)}
    v_add_u32 {v(t3)}, {s(skq_bytes)}, {v(t3)}
    v_lshl_add_u32 {v(vm)}, {v(t2)}, 3, {v(t3)}
    v_and_b32 {v(t4)}, 1, v0
    v_lshlrev_b32 {v(t4)}, 3, {v(t4)}
    v_add_u32 {v(t4)}, 128, {v(t4)}
    v_add_u32 {v(vm2)}, {v(t4)}, {v(t3)}
    v_mul_u32_u24 {v(t1)}, 72, {v(t1)}
    v_and_b32 {v(t3)}, 2, {v(t0)}
    v_and_b32 {v(t0)}, 1, {v(t0)}
    v_add3_u32 {v(t1)}, {v(t1)}, {v(t3)}, {v(t0)}
    v_add_u32 {v(t1)}, 16, {v(t1)}
    v_mul_u32_u24 {v(t1)}, 144, {v(t1)}
    v_add_u32 {v(t1)}, {s(skq_bytes)}, {v(t1)}
    v_lshl_add_u32 {v(vl)}, {v(t2)}, 3, {v(t1)}
    v_add_u32 {v(vl2)}, {v(t4)}, {v(t1)}''')

def op_w_reads(W, vm, vm2, vl, vl2, st):
    r = []
    for T in range(3):
        for j in range(2):
            if st < 8:
                off = (18*st + 8*j + (2 if st & 1 else 0)) * 144; base = vm if T < 2 else vm2
            else:
                off = 36*j*144; base = vl if T < 2 else vl2
            r.append(f'ds_read_b64_tr_b16 {v(W + 12*st + 4*T + 2*j, 2)}, {v(base)} offset:{off + (64 if T == 1 else 0)}')
    return '\n'.join(r)
def op_read_w(a, W, vm, vm2, vl, vl2):
    for st in range(9): a(op_w_reads(W, vm, vm2, vl, vl2, st))

def op_load_o(a, O, vo16, vol, sM, sM2, sL, thr=False):
    for i in range(8):
        a(f'buffer_load_dwordx4 {v(O+4*i,4)}, {v(vo16)}, {srd(sWS)}, {s(sM if i < 4 else sM2)} offen offset:{1024*(i&3)} sc1')
        if thr and i % 4 == 3: a('s_waitcnt vmcnt(0)')
    for i in range(4):
        a(f'buffer_load_dword {v(O+32+i)}, {v(vol)}, {srd(sWS)}, {s(sL)} offen offset:{128*i} sc1')

def op_mfma(a, AC, W, O, first):
    for st in range(9):
        a(f's_waitcnt vmcnt({11 - st if st < 8 else 0})')
        for T in range(3):
            mfma(a, AC + 16*T, W + 12*st + 4*T, O + 4*st, None if (first and st == 0) else AC + 16*T)

def issue_grp(a, sr, kq, slot, P):
    skip = a.new('r8')
    if P == 2: a(f's_cmp_ge_u32 {s(sW4)}, 3\ns_cbranch_scc1 {skip}')
    a(f'''s_lshl_b32 s3, {s(sW4)}, 10
    s_add_u32 m0, s3, {slot + 9*1024*P}
    s_add_u32 {s(sFree)}, {s(sWB)}, {(144*kq + 64*P)*1152}
    buffer_load_dwordx4 {v(vWO)}, {srd(sr)}, {s(sFree)} offen lds''')
    if P < 2:
        a(f'''s_add_u32 m0, s3, {slot + 9*1024*P + 4096}
        s_cmp_lg_u32 {s(sW4)}, {2*(kq & 1) + P}
        buffer_load_dwordx4 {v(vWO+1)}, {srd(sr)}, {s(sFree)} offen lds
        s_cbranch_scc1 {skip}
        s_mov_b32 m0, {slot + 9*1024*P + 8192}
        s_nop 0
        buffer_load_dwordx4 {v(vWO+2)}, {srd(sr)}, {s(sFree)} offen lds''')
    a.label(skip)
def issue_blk(a, sr, kq, slot):
    for P in range(3):
        issue_grp(a, sr, kq, slot, P)
        if OPT.get('thr', 3): a(f's_waitcnt vmcnt({OPT.get("thr", 3) - 1})')

def p_path(a, opt):
    vK, vKL, vV0, vV1 = 8, 10, 12, 14
    Qr, QLr, M = 16, 32, 36
    Kb, KLb, Vb, Sb, Ob = 40, 56, 64, 96, 160
    sCur, sNext, sLo, sHi, sN = T2, T3, T4, T5, T6
    sQm, sQl, sChk = 56, 57, 58
    sLo2, sHi2, sCur2 = 60, 61, 62
    a.c('================= waves 0-3: load the rest of the A tile, publish B =================')
    vm = VM()
    vm.add(12, 8); vm.add('sa', 4); vm.add(13, 8); vm.add('sb', 4)
    kl_const(a, T0, sH)
    a(f'''v_and_b32 v1, 31, v0
    v_mov_b32 {v(vK)}, {v(v16)}
    v_lshl_add_u32 {v(vKL)}, v1, 3, {s(T0)}
    v_mov_b32 {v(vV0)}, {v(vVf)}
    v_mov_b32 {v(vV1)}, {v(vVf+1)}''')
    for r in (vK, vKL, vV0, vV1): a(f'v_add_u32 {v(r+1)}, {2*REC}, {v(r)}')
    a.c('flags this wave waits for: lanes 0-15 k, 16-31 v (8 row tiles x first/last column tile), 32.. q')
    a(f'''v_lshrrev_b32 v2, 4, v0
    v_add_u32 v2, 1, v2
    v_cmp_gt_u32 vcc, 32, v0
    v_bfe_u32 v3, v0, 3, 1
    v_and_b32 v4, 1, v0
    v_cndmask_b32 v2, 0, v2, vcc
    v_cndmask_b32 v3, v4, v3, vcc
    s_lshl_b32 {s(T2)}, {s(sMG)}, 3
    v_and_b32 v4, 7, v0
    v_add_u32 v4, {s(T2)}, v4
    s_lshl_b32 {s(T3)}, {s(sQB)}, 1
    s_add_u32 {s(T3)}, {s(T3)}, {s(sTH)}
    v_mov_b32 v5, {s(T3)}
    v_cndmask_b32 v4, v5, v4, vcc''')
    producer_ct(a, 5, 2, 3, sH, 6)
    a(f'v_lshl_add_u32 v5, v5, 4, v4\nv_lshlrev_b32 v5, 7, v5\nv_add_u32 {v(vPoll)}, {FL1:#x}, v5\nv_lshlrev_b32 v7, 3, v0')
    for r in (QLr+1, QLr+3, KLb+1, KLb+3, KLb+5, KLb+7): a(f'v_mov_b32 {v(r)}, 0')
    a(f'''s_lshl_b32 {s(T0)}, {s(sH)}, 6
    s_lshl_b32 {s(T1)}, {s(sMG)}, 5
    s_add_u32 {s(T0)}, {s(T0)}, {s(T1)}
    s_mul_i32 {s(sLo)}, {s(T0)}, {REC}
    s_add_u32 {s(sLo)}, {s(sLo)}, {KV:#x}
    s_add_u32 {s(sHi)}, {s(sLo)}, {32*REC}
    s_lshl_b32 {s(T0)}, {s(sQB)}, 1
    s_add_u32 {s(T0)}, {s(T0)}, {s(sTH)}
    s_lshl_b32 {s(T1)}, {s(sH)}, 4
    s_add_u32 {s(T0)}, {s(T0)}, {s(T1)}
    s_lshl_b32 {s(sQm)}, {s(T0)}, 12
    s_lshr_b32 {s(T1)}, {s(sH)}, 1
    s_lshl_b32 {s(T1)}, {s(T1)}, 4
    s_add_u32 {s(T1)}, {s(T1)}, {s(T3)}
    s_lshl_b32 {s(sQl)}, {s(T1)}, 10
    s_and_b32 {s(T1)}, {s(sH)}, 1
    s_lshl_b32 {s(T1)}, {s(T1)}, 2
    s_add_u32 {s(sQl)}, {s(sQl)}, {s(T1)}
    s_add_u32 {s(sQl)}, {s(sQl)}, {QL:#x}''')
    flag_addr(a, T1, sCT, sRT, 4, FL1)
    a('s_waitcnt lgkmcnt(0)')
    a.c('================= waves 0-3: attention =================')
    def kv_loads(b, sreg):
        o = REC * (b & 1); u = b >> 1
        return [f'buffer_load_dwordx4 {v(Kb+4*b,4)}, {v(vK+u)}, {srd(sWS)}, {s(sreg)} offen offset:{o} sc1',
                f'buffer_load_dword {v(KLb+2*b)}, {v(vKL+u)}, {srd(sWS)}, {s(sreg)} offen offset:{o} sc1',
                f'buffer_load_dwordx4 {v(Vb+8*b,4)}, {v(vV0+u)}, {srd(sWS)}, {s(sreg)} offen offset:{o} sc1',
                f'buffer_load_dwordx4 {v(Vb+8*b+4,4)}, {v(vV1+u)}, {srd(sWS)}, {s(sreg)} offen offset:{o} sc1']
    def start_groups():
        a(f'''s_mul_i32 {s(sCur)}, {s(sQB)}, {4*REC}
        s_add_u32 {s(sCur)}, {s(sCur)}, {s(sLo)}
        s_add_u32 {s(sNext)}, {s(sCur)}, {4*REC}
        s_cmp_eq_u32 {s(sNext)}, {s(sHi)}
        s_cselect_b32 {s(sNext)}, {s(sLo)}, {s(sNext)}
        s_mov_b32 {s(sN)}, 8''')
    adv_groups = f'''s_mov_b32 {s(sCur)}, {s(sNext)}
        s_add_u32 {s(sNext)}, {s(sNext)}, {4*REC}
        s_cmp_eq_u32 {s(sNext)}, {s(sHi)}
        s_cselect_b32 {s(sNext)}, {s(sLo)}, {s(sNext)}
        s_cmp_eq_u32 {s(sN)}, 2
        s_cselect_b32 {s(sNext)}, {OOB:#x}, {s(sNext)}'''
    def qk(N, kb, qp):
        return (mfma_s(N, KLb+2*kb, QLr+2*qp, None, '2b'), mfma_s(N, Kb+4*kb, Qr+8*qp, N), mfma_s(N+16, Kb+4*kb, Qr+8*qp+4, N+16))
    def step(qp, kb, ins, sub):
        S = Sb + 32*qp; N = Sb + 32*(1-qp)
        nkb = kb if qp == 0 else (kb+1) % 4
        pkb = (kb-1) % 4 if qp == 0 else kb
        QLm, Q0m, Q1m = qk(N, nkb, 1-qp)
        def E(x, y):
            for i in range(x, y):
                if sub: a(f'v_sub_f32 {v(S+i)}, {v(S+i)}, {v(M + 2*qp + i//16)}')
                a(f'v_exp_f32 {v(S+i)}, {v(S+i)}')
        def C(x, y):
            for j in range(x, y):
                b = S + 16*(j//8); k = j % 8
                if opt.get('perm'): a(f'v_perm_b32 {v(b + (k % 4) + 8*(k//4))}, {v(b+2*k+1)}, {v(b+2*k)}, {s(59)}')
                else: a(f'v_cvt_pk_bf16_f32 {v(b + (k % 4) + 8*(k//4))}, {v(b+2*k)}, {v(b+2*k+1)}')
        def PV(t, f):
            o = Ob + 32*qp + 16*t
            mfma(a, o, Vb + 8*kb + 4*f, S + 16*t + 8*f, o)
        def I(k):
            if k in ins: a(ins[k])
        E(0, 2)
        o = Ob + 32*(1-qp) + 16
        mfma(a, o, Vb + 8*pkb + 4, N + 24, o); I('p')
        if opt.get('x8'):
            L0 = mfma_s(N, KLb+2*nkb, QLr+2*(1-qp), None, '8'); L1 = mfma_s(N+16, KLb+2*nkb, QLr+2*(1-qp), None, '8')
            E(2, 5); a(L0); I('q'); E(5, 9); a(L1); C(0, 4); E(9, 11); PV(0, 0); I('m0'); E(11, 17); C(4, 6); a(Q0m); I('m1')
        elif opt.get('noql'):
            Q0m = mfma_s(N, Kb+4*nkb, Qr+8*(1-qp), None); Q1m = mfma_s(N+16, Kb+4*nkb, Qr+8*(1-qp)+4, None)
            E(2, 5); I('q'); E(5, 9); C(0, 4); E(9, 11); PV(0, 0); I('m0'); E(11, 17); C(4, 6); a(Q0m); I('m1')
        else:
            E(2, 5); a(QLm); I('q'); E(5, 9); C(0, 4); E(9, 11); PV(0, 0); I('m0'); E(11, 17); C(4, 6); a(Q0m); I('m1')
        C(6, 8); E(17, 19); PV(0, 1); I('m2'); E(19, 25); C(8, 12); a(Q1m); I('m3'); E(25, 28); PV(1, 0); I('m4'); E(28, 32); C(12, 16)
    def attn_init_a():
        for r in range(Ob+16, Ob+64): a(f'v_mov_b32 {v(r)}, 0')
        for r in range(Vb+28, Vb+32): a(f'v_mov_b32 {v(r)}, 0')
    def attn_init_b():
        for r in range(Ob, Ob+16): a(f'v_mov_b32 {v(r)}, 0')
        for r in range(Sb+56, Sb+60): a(f'v_mov_b32 {v(r)}, 0')
    def attn_init(): attn_init_a(); attn_init_b()
    def attn_loop(name, sub):
        a('s_waitcnt vmcnt(8)')
        m = qk(Sb, 0, 0); a(m[0]); a.nop(18); a(m[1]); a(m[2]); a.nop(11)
        if not sub: a.stamp(7); a.cyc0()
        a('.p2align 6')
        a.label(name)
        for t in range(4):
            ld = kv_loads((t+3) % 4, sCur if t == 0 else sNext)
            lp = opt.get('ldp', 0)
            J = '\n'.join
            ins0, ins = [({'q': ld[0], 'm0': ld[1], 'm1': ld[2], 'm2': ld[3]}, {}),
                         ({'q': J(ld)}, {}),
                         ({'q': J(ld[:2]), 'm1': J(ld[2:])}, {}),
                         ({'q': J(ld[:2])}, {'q': J(ld[2:])}),
                         ({'q': ld[0], 'm1': ld[1]}, {'q': ld[2], 'm3': ld[3]}),
                         ({'m0': ld[0], 'm2': ld[1], 'm4': ld[2]}, {'m2': ld[3]})][lp]
            step(0, t, ins0, sub)
            ins['p'] = f's_waitcnt vmcnt({8 - sum(len(x.split(chr(10))) for x in ins.values())})'
            if t == 3:
                ins['m3'] = ins.get('m3', '') + '\n' + adv_groups
                ins['m4'] = f's_sub_u32 {s(sN)}, {s(sN)}, 1\ns_cmp_lg_u32 {s(sN)}, 0'
            step(1, t, ins, sub)
        a(f's_cbranch_scc1 {name}')
        a.nop(1)
        mfma(a, Ob + 48, Vb + 28, Sb + 56, Ob + 48)
    def first_loads():
        for t in range(4): a(f'buffer_load_dwordx4 {v(Qr+4*t,4)}, {v(v16)}, {srd(sWS)}, {s(sQm)} offen offset:{1024*t} sc1')
        for j in range(2): a(f'buffer_load_dword {v(QLr+2*j)}, v7, {srd(sWS)}, {s(sQl)} offen offset:{512*j} sc1')
        for b in range(3):
            for x in kv_loads(b, sCur): a(x)
    a(f'v_readfirstlane_b32 {s(sTok)}, {v(vTok)}\ns_cmp_lg_u32 {s(sIdle)}, 0\ns_cbranch_scc1 L_pidle\ns_barrier')
    issue_chunk(a, 14); vm.add(14, 8)
    start_groups(); attn_init_a()
    for j in range(12, 16):
        sig = opt.get('sig', 13)
        a(f's_waitcnt vmcnt({min(vm.after(j), vm.after("sb")) if j == sig else vm.after(j)})')
        if j == sig:
            last_signals(a, 2, C_F1, 4, T1)
            a.stamp(5)
        a('s_barrier')
        if j == 14: a(f'buffer_load_dword v2, {v(vPoll)}, {srd(sWS)}, 0 offen sc1'); vm.add('fl')
        if j + 3 <= 17: issue_chunk(a, j + 3); vm.add(j + 3, 8)
        if j == sig: attn_init_b()
    a(f's_waitcnt vmcnt(8)\nv_cmp_ne_u32 vcc, {s(sTok)}, v2\ns_cbranch_vccnz L_late')
    first_loads()
    a('s_barrier\ns_waitcnt vmcnt(18)\ns_barrier\ns_branch L_go')
    a.label('L_late')
    a('s_barrier\ns_waitcnt vmcnt(0)\ns_barrier')
    if a.diag: a('s_mov_b32 s82, -1')
    a('s_branch L_poll')
    a.label('L_pidle')
    start_groups(); attn_init()
    a.label('L_poll')
    poll_flags(a, vPoll, 2)
    first_loads()
    a.label('L_go')
    a('s_setprio 0\ns_mov_b32 s59, 0x07060302')
    a.stamp(6)
    attn_loop('L_attn', False)
    a.cyc1()
    a.stamp(8)
    a.nopk = bool(opt.get('nopk', 1))
    a(f'''s_setprio 2
    s_mul_i32 {s(T0)}, {s(sWave)}, 6144
    v_add_u32 v1, {s(T0)}, {v(v16)}
    s_xor_b32 {s(T0)}, {s(sWave)}, 2
    s_mul_i32 {s(T0)}, {s(T0)}, 6144
    v_add_u32 v6, {s(T0)}, {v(v16)}
    s_lshl_b32 {s(T0)}, {s(sQB)}, 3
    s_lshl_b32 {s(T1)}, {s(sTH)}, 2
    s_add_u32 {s(T0)}, {s(T0)}, {s(T1)}
    s_lshl_b32 {s(T1)}, {s(sMG)}, 1
    s_add_u32 {s(T0)}, {s(T0)}, {s(T1)}
    s_cmp_eq_u32 {s(sMG)}, 0
    s_cbranch_scc1 L_red0''')
    def red_write(o0):
        for t in range(2):
            o = o0 + 16*t
            a(f'ds_write_b128 v1, {v(o,4)} offset:{3072*t}\nds_write_b128 v1, {v(o+4,4)} offset:{3072*t+1024}\nds_write_b96 v1, {v(o+8,3)} offset:{3072*t+2048}')
    a.c('exchange partial sums with the wave that did the other half of the keys; keep query pair kh in Ob..Ob+31')
    red_write(Ob)
    for t in range(2):
        for i in range(0, 12, 2): a(f'v_pk_mov_b32 {v(Ob+16*t+i,2)}, {v(Ob+32+16*t+i,2)}, {v(Ob+32+16*t+i,2)} op_sel:[0,1]')
    a('s_branch L_red1')
    a.label('L_red0')
    red_write(Ob + 32)
    a.label('L_red1')
    o_addr(a, sH, OBM, OBL)
    flag_addr(a, T1, sQB, sH, 5, FL4)
    a(f's_mov_b32 {s(T0)}, {f2u(2.0**-64):#x}\ns_mov_b32 {s(T6)}, {f2u(2.0**64):#x}\ns_mov_b32 {s(T7)}, {f2u(2.0**120):#x}')
    if opt.get('p4'): a.stamp(3)
    a('s_waitcnt vmcnt(0) lgkmcnt(0)')
    if opt.get('p4'): a.stamp(4)
    a('s_barrier')
    if opt.get('p4'): a.stamp(5)
    for part in range(3):
        for t in range(2):
            o = Ob + 32 + 16*t
            a([f'ds_read_b96 {v(o+8,3)}, v6 offset:{3072*t+2048}', f'ds_read_b128 {v(o,4)}, v6 offset:{3072*t}', f'ds_read_b128 {v(o+4,4)}, v6 offset:{3072*t+1024}'][part])
    O2 = [Ob, Ob + 16]; P2 = [Ob + 32, Ob + 48]
    a.c('the softmax above used 0 in place of the row max: safe only while the sums stay finite and well away from 0')
    a('s_waitcnt lgkmcnt(4)')
    for t in range(2): a(f'v_add_f32 {v(O2[t]+10)}, {v(O2[t]+10)}, {v(P2[t]+10)}')
    for t in range(2): a(f'v_pk_add_f32 {v(O2[t]+8,2)}, {v(O2[t]+8,2)}, {v(P2[t]+8,2)}')
    a(f'''v_min_f32 v2, {v(O2[0]+10)}, {v(O2[1]+10)}
    v_add_f32 v3, {v(O2[0]+10)}, {v(O2[1]+10)}
    v_cmp_nle_f32 {s(sChk,2)}, {s(T0)}, v2
    v_cmp_nge_f32 vcc, {s(T6)}, v3
    s_waitcnt lgkmcnt(2)''')
    for i in (0, 2):
        for t in range(2): a(f'v_pk_add_f32 {v(O2[t]+i,2)}, {v(O2[t]+i,2)}, {v(P2[t]+i,2)}')
    a(f's_or_b64 {s(sChk,2)}, {s(sChk,2)}, vcc\ns_waitcnt lgkmcnt(0)')
    for i in (4, 6):
        for t in range(2): a(f'v_pk_add_f32 {v(O2[t]+i,2)}, {v(O2[t]+i,2)}, {v(P2[t]+i,2)}')
    a(f'''v_pk_add_f32 v[2:3], {v(O2[0],2)}, {v(O2[1],2)}
    v_pk_add_f32 v[4:5], {v(O2[0]+2,2)}, {v(O2[1]+2,2)}
    v_pk_add_f32 v[8:9], {v(O2[0]+4,2)}, {v(O2[1]+4,2)}
    v_pk_add_f32 v[10:11], {v(O2[0]+6,2)}, {v(O2[1]+6,2)}
    v_pk_add_f32 v[12:13], {v(O2[0]+8,2)}, {v(O2[1]+8,2)}
    v_pk_add_f32 v[2:3], v[2:3], v[4:5]
    v_pk_add_f32 v[8:9], v[8:9], v[10:11]
    v_pk_add_f32 v[2:3], v[2:3], v[12:13]
    v_pk_add_f32 v[2:3], v[2:3], v[8:9]
    v_add_f32 v2, v2, v3
    v_cmp_ngt_f32 vcc, {s(T7)}, abs(v2)
    s_or_b64 {s(sChk,2)}, {s(sChk,2)}, vcc
    s_cbranch_scc1 L_fallback''')
    a.label('L_norm')
    o_publish(a, O2, P2, False)
    a.stamp(9)
    a('s_waitcnt vmcnt(0)')
    if opt.get('p4'): a.stamp(1)
    last_signals(a, 2, C_F4, 4, T1)
    if opt.get('p4'): a.stamp(2)
    a('s_setprio 0')
    final_setup(a)
    flag_ld(a)
    final_prep(a)
    a('s_branch L_final')

    a.nopk = False
    a.label('L_fallback')
    a.c('the stand-in was unsafe for one of this wave\'s rows: redo its two query tiles over all keys with the true row max')
    vK2, vKL2 = 2, 3
    kl_const(a, sCur2, sH)
    a(f'''v_and_b32 v3, 31, v0
    v_lshl_add_u32 v3, v3, 3, {s(sCur2)}
    s_mul_i32 {s(sLo2)}, {s(sH)}, {HREC}
    s_add_u32 {s(sLo2)}, {s(sLo2)}, {KV:#x}
    s_add_u32 {s(sHi2)}, {s(sLo2)}, {HREC}
    s_cmp_eq_u32 {s(sMG)}, 0
    s_cbranch_scc1 L_fb0''')
    for i in range(8): a(f'v_mov_b32 {v(Qr+i)}, {v(Qr+8+i)}')
    a(f'v_mov_b32 {v(QLr)}, {v(QLr+2)}')
    a.label('L_fb0')
    for t in range(2): a(f'v_mov_b32 {v(M+t)}, 0xff800000')
    for r in range(Ob, Ob + 32): a(f'v_mov_b32 {v(r)}, 0')
    for ps in range(2):
        a(f's_mov_b32 {s(sCur2)}, {s(sLo2)}')
        a.label(f'L_fbloop{ps}')
        a(f'buffer_load_dwordx4 {v(Kb,4)}, {v(v16)}, {srd(sWS)}, {s(sCur2)} offen sc1\nbuffer_load_dword {v(KLb)}, v3, {srd(sWS)}, {s(sCur2)} offen sc1')
        if ps:
            for f in range(2): a(f'buffer_load_dwordx4 {v(Vb+4*f,4)}, {v(vVf+f)}, {srd(sWS)}, {s(sCur2)} offen sc1')
        a('s_waitcnt vmcnt(0)')
        m = qk(Sb, 0, 0); a(m[0]); a.nop(18); a(m[1]); a(m[2]); a.nop(12)
        if ps == 0:
            for t in range(2):
                for i in range(0, 16, 2): a(f'v_max3_f32 {v(M+t)}, {v(Sb+16*t+i)}, {v(Sb+16*t+i+1)}, {v(M+t)}')
        else:
            for i in range(32): a(f'v_sub_f32 {v(Sb+i)}, {v(Sb+i)}, {v(M + i//16)}')
            for i in range(32): a(f'v_exp_f32 {v(Sb+i)}, {v(Sb+i)}')
            for q in range(4): cvt8(a, Sb + 8*q, Sb + 8*q)
            a.nop(1)
            for t in range(2):
                for f in range(2): mfma(a, Ob + 16*t, Vb + 4*f, Sb + 16*t + 8*f, Ob + 16*t)
        a(f's_add_u32 {s(sCur2)}, {s(sCur2)}, {REC}\ns_cmp_lg_u32 {s(sCur2)}, {s(sHi2)}\ns_cbranch_scc1 L_fbloop{ps}')
        if ps == 0:
            for t in range(2): a(f'v_mov_b32 {v(Sb+t)}, {v(M+t)}')
            a.nop(2)
            for t in range(2): a(f'v_permlane32_swap_b32 {v(Sb+t)}, {v(M+t)}')
            a.nop(1)
            for t in range(2): a(f'v_max_f32 {v(M+t)}, {v(M+t)}, {v(Sb+t)}')
    a.nop(12)
    a('s_branch L_norm')

def o_addr(a, shead, M_, L_):
    a(f'''s_lshl_b32 {s(T0)}, {s(T0)}, 5
    s_add_u32 {s(T0)}, {s(T0)}, {s(shead)}
    s_lshl_b32 {s(T2)}, {s(T0)}, 10
    s_add_u32 {s(T2)}, {s(T2)}, {M_:#x}
    s_add_u32 {s(T3)}, {s(T2)}, 0x8000
    s_lshl_b32 {s(T4)}, {s(T0)}, 7
    s_add_u32 {s(T4)}, {s(T4)}, {L_:#x}
    s_add_u32 {s(T5)}, {s(T4)}, 0x1000''')

def o_publish(a, O, P, eps):
    for o in O:
        if eps: a(f'v_add_f32 {v(o+10)}, {f2u(1e-6):#x}, {v(o+10)}')
    for o in O: a(f'v_rcp_f32 {v(o+10)}, {v(o+10)}')
    for t in range(2):
        o, p = O[t], P[t]
        if t == 0: a('s_nop 0')
        for i in range(0, 10, 2): a(f'v_pk_mul_f32 {v(o+i,2)}, {v(o+i,2)}, {v(o+10,2)} op_sel_hi:[1,0]')
        cvt8(a, o, p)
        a(f'buffer_store_dwordx4 {v(p,4)}, {v(v16)}, {srd(sWS)}, {s(T2+t)} offen sc1')
        a(f'v_cvt_pk_bf16_f32 {v(p+4)}, {v(o+8)}, {v(o+9)}')
    a('s_mov_b32 exec_hi, 0')
    for t in range(2): a(f'buffer_store_dword {v(P[t]+4)}, {v(vQL)}, {srd(sWS)}, {s(T4+t)} offen sc1')
    a('s_mov_b32 exec_hi, -1')

FW, FO, FA = 16, 124, 160
vFm, vFm2, vFl, vFl2 = 8, 9, 10, 11
vFlg, vFol, vWr, vRd, vOut = 250, 251, 252, 253, 255
ACA = [212, 228, 196]
QS = 1088; WSTR = 9*QS; ARED = 8*WSTR
sM, sM2, sL, sA, sB_, sO = T2, T3, T4, 56, 57, T7
def piece_addr(a, vp, rd, ou):
    a(f'''v_mul_u32_u24 v2, 7282, {v(vp)}
    v_lshrrev_b32 v2, 16, v2
    v_mul_u32_u24 v3, 9, v2
    v_sub_u32 v3, {v(vp)}, v3
    v_mul_u32_u24 {v(ou)}, 2304, v2
    v_lshl_add_u32 {v(ou)}, v3, 4, {v(ou)}
    v_mul_u32_u24 v3, {QS}, v3
    v_lshrrev_b32 {v(rd)}, 5, v2
    v_mul_u32_u24 {v(rd)}, {WSTR}, {v(rd)}
    v_and_b32 v2, 31, v2
    v_lshl_add_u32 v3, v2, 4, v3
    v_add_u32 {v(rd)}, {v(rd)}, v3''')
def final_setup(a):
    a(f'''v_and_b32 v1, 31, v0
    v_lshrrev_b32 v2, 5, v0
    v_lshlrev_b32 v3, 2, v1
    v_lshl_add_u32 {v(vFol)}, v2, 9, v3
    s_lshl_b32 {s(T1)}, {s(sOT)}, 1
    s_add_u32 {s(T5)}, {s(sTH)}, {s(T1)}
    s_lshl_b32 {s(T0)}, {s(T5)}, 5
    s_lshr_b32 {s(T6)}, {s(sWave)}, 1
    s_lshl_b32 {s(T1)}, {s(T6)}, 3
    s_add_u32 {s(T0)}, {s(T0)}, {s(T1)}
    s_lshl_b32 {s(sM)}, {s(T0)}, 10
    s_add_u32 {s(sM)}, {s(sM)}, {OBM:#x}
    s_add_u32 {s(sM2)}, {s(sM)}, 4096
    s_lshl_b32 {s(sL)}, {s(T0)}, 7
    s_add_u32 {s(sL)}, {s(sL)}, {OBL:#x}
    s_lshr_b32 {s(T0)}, {s(sOT)}, 2
    s_lshl_b32 {s(T0)}, {s(T0)}, 5
    s_add_u32 {s(T0)}, {s(T0)}, {s(T1)}
    v_and_b32 v3, 7, v0
    v_add_u32 v3, {s(T0)}, v3
    v_lshlrev_b32 v3, 7, v3
    v_add_u32 {v(vPoll)}, {FL4:#x}, v3
    s_mul_i32 {s(T0)}, {s(sWave)}, {WSTR}
    v_add_u32 {v(vWr)}, {s(T0)}, {v(v16)}
    s_lshl_b32 {s(T0)}, {s(sWave)}, 6
    v_add_u32 v1, {s(T0)}, v0
    s_mul_i32 {s(T0)}, {s(sOT)}, {64*2304}
    s_mul_i32 {s(T1)}, {s(sOC)}, 144
    s_add_u32 {s(sO)}, {s(T0)}, {s(T1)}
    s_add_u32 {s(T5)}, {s(sO)}, 1152
    s_mov_b32 {s(sA)}, 0
    s_mov_b32 {s(sB_)}, 0''')
    piece_addr(a, 1, vRd, vOut)
def flag_ld(a): a(f'buffer_load_dword {v(vFlg)}, {v(vPoll)}, {srd(sWS)}, 0 offen sc1')
def half_try(a):
    for h, st in ((0, sA), (1, sB_)):
        lb = a.new('fl')
        a(f's_and_b32 {s(T0)}, vcc_lo, {0xf0 if h else 0x0f}\ns_or_b32 {s(T0)}, {s(T0)}, {s(st)}\ns_cbranch_scc1 {lb}\ns_mov_b32 {s(st)}, 1')
        for i in range(4): a(f'buffer_load_dwordx4 {v(FO+16*h+4*i,4)}, {v(v16)}, {srd(sWS)}, {s(sM2 if h else sM)} offen offset:{1024*i} sc1')
        a.label(lb)
def final_prep(a):
    a(f's_mul_i32 {s(T0)}, {s(T6)}, {WBLK}\ns_add_u32 {s(T0)}, {s(T0)}, {SLOT_B[0]}')
    op_addr(a, vFm, vFm2, vFl, vFl2, 2, T0)
    op_read_w(a, FW, vFm, vFm2, vFl, vFl2)

def final(a):
    a.label('L_final')
    a.c('================= all waves: out projection of B =================')
    a.c('this wave needs 8 heads, 4 from each of two producer groups: load each half as soon as its flags are up')
    def half_mm(h):
        for st in range(4*h, 4*h + 4):
            for T in range(3): mfma(a, FA + 16*T, FW + 12*st + 4*T, FO + 4*st, None if st == 0 else FA + 16*T)
    def pending0():
        lb = a.new('fm')
        a(f's_cmp_lg_u32 {s(sA)}, 1\ns_cbranch_scc1 {lb}\ns_mov_b32 {s(sA)}, 2')
        half_mm(0)
        a.label(lb)
    a.label('L_fpoll')
    a(f's_waitcnt vmcnt(0) lgkmcnt(0)\nv_cmp_ne_u32 vcc, {s(sTok)}, {v(vFlg)}')
    pending0()
    half_try(a)
    a(f's_min_u32 {s(T0)}, {s(sA)}, {s(sB_)}\ns_cmp_lg_u32 {s(T0)}, 0\ns_cbranch_scc1 L_fgo')
    flag_ld(a)
    spin_tail(a, 'L_fpoll')
    a.label('L_fgo')
    a.stamp(10)
    for i in range(4): a(f'buffer_load_dword {v(FO+32+i)}, {v(vFol)}, {srd(sWS)}, {s(sL)} offen offset:{128*i} sc1')
    a('s_waitcnt vmcnt(4)')
    pending0()
    half_mm(1)
    a('s_waitcnt vmcnt(0)')
    for T in range(3): mfma(a, FA + 16*T, FW + 96 + 4*T, FO + 32, FA + 16*T)
    a('s_barrier')
    a(f's_cmp_eq_u32 {s(sImg)}, 0\ns_cbranch_scc1 L_fw\nv_add_u32 v1, {ARED - 4*WSTR}, {v(vWr)}')
    for q in range(8): a(f'ds_write_b128 v1, {v(ACA[0]+4*q,4)} offset:{QS*q}')
    a(f'ds_write_b128 v1, v[208:211] offset:{QS*8}')
    a.label('L_fw')
    a(f'v_add_u32 v6, 512, v0\nv_add_u32 v7, {ARED}, {v(vRd)}')
    piece_addr(a, 6, 4, 5)
    for q in range(9): a(f'ds_write_b128 {v(vWr)}, {v(FA+4*q,4)} offset:{QS*q}')
    a('s_waitcnt lgkmcnt(0)\ns_barrier')
    a.stamp(11)
    a.c('sum the partials in output order: one 16-byte piece of a row per lane')
    def rd(R, vr, n):
        for k in range(n):
            for h in range(2): a(f'ds_read_b128 {v(R+8*k+4*h,4)}, {v(vr)} offset:{2*WSTR*k + 512*h}')
    def fin(R, n, vo, so, pol):
        for k in range(1, n):
            for i in range(4): a(f'v_pk_add_f32 {v(R+2*i,2)}, {v(R+2*i,2)}, {v(R+8*k+2*i,2)}')
        cvt8(a, R, R)
        a(f'buffer_store_dwordx4 {v(R,4)}, {v(vo)}, {srd(sOUT)}, {s(so)} offen{opol(pol)}')
    rd(16, vRd, 4); rd(48, 7, 2)
    a(f's_cmp_gt_u32 {s(sWave)}, 1\ns_cbranch_scc1 L_fin_a\ns_cmp_eq_u32 {s(sWave)}, 1\ns_cbranch_scc1 L_fin_x')
    rd(64, 4, 4); a('s_waitcnt lgkmcnt(0)'); fin(64, 4, 5, T5, 'osb'); a('s_branch L_fin_a')
    a.label('L_fin_x')
    a(f'v_add_u32 v4, {ARED}, v4')
    rd(64, 4, 2); a('s_waitcnt lgkmcnt(0)'); fin(64, 2, 5, sO, 'osa')
    a.label('L_fin_a')
    a('s_waitcnt lgkmcnt(4)'); fin(16, 4, vOut, T5, 'osb')
    a('s_waitcnt lgkmcnt(0)'); fin(48, 2, vOut, sO, 'osa')
    if OPT.get('padto'):
        a.label('L_pad')
        a(f's_memrealtime s[94:95]\ns_waitcnt lgkmcnt(0)\ns_sub_u32 s94, s94, s80\ns_cmp_lt_u32 s94, {OPT["padto"]}\ns_cbranch_scc1 L_pad')
    if a.diag:
        a('s_waitcnt vmcnt(0)')
        a.stamp(12)
        a.label('L_dump')
        a(f's_lshl_b32 {s(T0)}, s2, 3\ns_add_u32 {s(T0)}, {s(T0)}, {s(sWave)}\ns_lshl_b32 {s(T0)}, {s(T0)}, 7\ns_add_u32 {s(T0)}, {s(T0)}, {STAMPS:#x}')
        for k in range(16): a(f'v_mov_b32 {v(16+k)}, {s(SSTAMP+k)}')
        a(f's_lshl_b32 {s(T1)}, {s(T0)}, 1\ns_sub_u32 {s(T1)}, {s(T1)}, {STAMPS - 0x80000:#x}\nbuffer_store_dword v254, {v(vQL)}, {srd(sWS)}, {s(T1)} offen')
        a('v_mov_b32 v1, 0\ns_mov_b64 exec, 1')
        for k in range(4): a(f'buffer_store_dwordx4 {v(16+4*k,4)}, v1, {srd(sWS)}, {s(T0)} offen offset:{16*k}')
    a.label('L_end')
    a('s_endpgm')

def a_chain(a, opt):
    WPH, WL, WLq, WLk = 24, 28, 30, 32
    Fq, Fk, Fl, Fv = [36, 40], [44, 48], [52, 54], [56, 64]
    def lprio(x):
        if opt.get('lp', 1): a(f's_setprio {x}')
    a.label('L_achain')
    a.c('================= waves 4-7: publish A qkv, feature maps =================')
    a(f'''v_and_b32 v1, 31, v0
    v_lshrrev_b32 v2, 5, v0
    v_cmp_eq_u32 vcc, 20, v1
    v_mov_b32 v3, 17
    v_mov_b32 v4, {OOB:#x}
    v_cndmask_b32 v3, v1, v3, vcc
    v_cmp_ge_u32 {s(T0,2)}, 16, v1
    s_or_b64 vcc, vcc, {s(T0,2)}
    v_lshlrev_b32 v3, 1, v3
    s_mul_i32 {s(T2)}, {s(sHA)}, 648
    v_cndmask_b32 v3, v4, v3, vcc
    v_mul_u32_u24 v5, 288, v2
    v_add_u32 v4, v3, v5
    s_and_b32 {s(T0)}, {s(sHA)}, 1
    s_mul_i32 {s(T1)}, {s(T0)}, 72
    s_add_u32 {s(T3)}, {s(T2)}, {s(T1)}
    s_mul_i32 {s(T1)}, {s(T0)}, 576
    s_sub_u32 {s(T2)}, {s(T2)}, {s(T1)}
    s_add_u32 {s(T2)}, {s(T2)}, 576''')
    for e in range(8):
        a(f'buffer_load_ushort {v(8 + e)}, v4, {srd(sPHI)}, {s(T3)} offen offset:{e*36}')
    a(f'buffer_load_ushort v34, v3, {srd(sPHI)}, {s(T2)} offen\nbuffer_load_ushort v35, v3, {srd(sPHI)}, {s(T2)} offen offset:36')
    for k in range(3):
        if k < 2: a(f's_add_u32 {s(T0)}, {s(sW4)}, {4*k}\ns_lshl_b32 {s(T0)}, {s(T0)}, 6\nv_add_u32 v3, {s(T0)}, v0')
        else: a('v_add_u32 v3, 512, v0')
        a(f'''v_mul_u32_u24 v4, 7282, v3
        v_lshrrev_b32 v4, 16, v4
        v_mul_u32_u24 v5, 9, v4
        v_sub_u32 v5, v3, v5
        v_mul_u32_u24 v6, 1152, v4
        v_lshl_add_u32 {v(vWO+k)}, v5, 4, v6''')
    a(f's_mul_i32 {s(sWB)}, {s(sOC)}, 144')
    bg = [(sAWO, kq, SLOT_A[kq], P) for kq in (0, 2, 3) for P in range(3)] + [(sBWO, kq, SLOT_B[kq], P) for kq in (0, 1) for P in range(3)]
    def bgdma():
        if bg: issue_grp(a, *bg.pop(0))
    a('v_lshrrev_b32 v4, 1, v0\nv_min_u32 v4, 2, v4\nv_and_b32 v5, 1, v0')
    producer_ct(a, 3, 4, 5, sHA, 6)
    a(f'''s_lshl_b32 {s(T0)}, {s(sRB)}, 1
    s_add_u32 {s(T0)}, {s(T0)}, {s(sMG)}
    v_lshl_add_u32 v3, v3, 4, {s(T0)}
    v_lshlrev_b32 v3, 7, v3
    v_add_u32 {v(vPoll)}, {FL1A:#x}, v3''')
    a(f'''s_lshl_b32 {s(T6)}, {s(sRB)}, 3
    s_lshl_b32 {s(T1)}, {s(sW4)}, 1
    s_add_u32 {s(T6)}, {s(T6)}, {s(T1)}
    s_lshl_b32 {s(T1)}, {s(sHA)}, 6
    s_add_u32 {s(T0)}, {s(T6)}, {s(T1)}
    s_lshl_b32 {s(T4)}, {s(T0)}, 10
    s_add_u32 {s(T4)}, {s(T4)}, {QM + AOFF:#x}
    s_mul_i32 {s(T5)}, {s(T0)}, {REC}
    s_add_u32 {s(T5)}, {s(T5)}, {KV + AOFF:#x}
    s_lshr_b32 {s(T0)}, {s(sHA)}, 1
    s_lshl_b32 {s(T0)}, {s(T0)}, 6
    s_add_u32 {s(T0)}, {s(T0)}, {s(T6)}
    s_lshl_b32 {s(T0)}, {s(T0)}, 8
    s_and_b32 {s(T1)}, {s(sHA)}, 1
    s_lshl_b32 {s(T1)}, {s(T1)}, 2
    s_add_u32 {s(T0)}, {s(T0)}, {s(T1)}
    s_add_u32 {s(T0)}, {s(T0)}, {QL + AOFF:#x}
    v_mov_b32 v3, {s(T0)}''')
    kl_const(a, T1, sHA)
    a(f'''s_add_u32 {s(T1)}, {s(T1)}, {s(T5)}
    v_mov_b32 v4, {s(T1)}
    v_mov_b32 v5, 256
    v_mov_b32 v6, {REC}
    v_cmp_gt_u32 vcc, 32, v0
    v_mov_b32 {v(WLq+1)}, 0
    v_mov_b32 {v(WLk+1)}, 0
    v_cndmask_b32 v3, v4, v3, vcc
    v_cndmask_b32 v5, v6, v5, vcc
    v_lshl_add_u32 v7, v1, 3, v3
    v_add_u32 v6, v7, v5
    v_mov_b32 {v(Fl[0]+1)}, 0
    v_mov_b32 {v(Fl[1]+1)}, 0''')
    flag_addr(a, T1, sCT, sRT, 4, FL1A)
    a(f's_cmp_lg_u32 {s(sIdle)}, 0\ns_cselect_b32 {s(T1)}, {OOB:#x}, {s(T1)}')
    a('s_waitcnt vmcnt(0)')
    last_signals(a, 2, C_F1A, 4, T1)
    for i in range(4): a(f'v_lshl_or_b32 {v(WPH + i)}, {v(9 + 2*i)}, 16, {v(8 + 2*i)}')
    a(f'v_lshl_or_b32 {v(WL)}, v35, 16, v34\nv_cmp_gt_u32 vcc, 32, v0\ns_nop 1\nv_cndmask_b32 {v(WLq)}, {v(vZero)}, {v(WL)}, vcc\nv_cndmask_b32 {v(WLk)}, {v(WL)}, {v(vZero)}, vcc')
    a.stamp(5)
    poll_flags(a, vPoll, 2, sl=4)
    a.stamp(6)
    for tt in range(2):
        a(f'buffer_load_dwordx4 {v(Fk[tt],4)}, {v(v16)}, {srd(sWS)}, {s(T5)} offen offset:{REC*tt} sc1')
        a(f'buffer_load_dword {v(Fl[tt])}, {v(7 - tt)}, {srd(sWS)}, 0 offen sc1')
    for tt in range(2): a(f'buffer_load_dwordx4 {v(Fq[tt],4)}, {v(v16)}, {srd(sWS)}, {s(T4)} offen offset:{1024*tt} sc1')
    for tt in range(2):
        for f in range(2): a(f'buffer_load_dwordx4 {v(Fv[tt]+4*f,4)}, {v(vVf+f)}, {srd(sWS)}, {s(T5)} offen offset:{REC*tt} sc1')
    vPh, vPr = 8, 9
    lds_wait(a, 2, C_F1A, 4)
    a(f'''s_mul_i32 {s(T0)}, {s(sW4)}, 5120
    s_add_u32 {s(T0)}, {s(T0)}, {PHS}
    v_lshrrev_b32 v2, 5, v0
    v_mul_u32_u24 v3, 80, v1
    v_lshl_add_u32 v3, v2, 3, v3
    v_add_u32 {v(vPh)}, {s(T0)}, v3
    v_bfe_u32 v3, v0, 2, 2
    v_lshl_add_u32 v5, v2, 2, v3
    v_mul_u32_u24 v5, 80, v5
    v_add_u32 v5, {s(T0)}, v5
    v_and_b32 v4, 3, v0
    v_lshlrev_b32 v6, 3, v4
    v_and_b32 v3, 1, v0
    v_lshlrev_b32 v3, 3, v3
    v_add_u32 v3, 64, v3
    v_bfe_u32 v4, v0, 4, 1
    v_cmp_eq_u32 vcc, 0, v4
    v_add_u32 {v(vPr+1)}, v5, v6
    s_mov_b32 {s(T2)}, {f2u(LOG2E):#x}
    v_cndmask_b32 v6, v3, v6, vcc
    s_mov_b32 {s(T3)}, {f2u(LOG2E):#x}
    v_add_u32 {v(vPr)}, v5, v6''')
    D = {('k', 0): 80, ('k', 1): 96, ('q', 0): 112, ('q', 1): 128}
    a('s_waitcnt vmcnt(6)')
    lprio(0)
    for tt in range(2): mfma(a, D[('k', tt)], WLk, Fl[tt], None, '8')
    for tt in range(2): mfma(a, D[('q', tt)], WLq, Fl[tt], None, '8')
    a.nop(7)
    for tt in range(2): mfma(a, D[('k', tt)], WPH, Fk[tt], D[('k', tt)])
    a('s_waitcnt vmcnt(4)')
    for tt in range(2): mfma(a, D[('q', tt)], WPH, Fq[tt], D[('q', tt)])
    a.nop(8)
    lprio(1)
    EP, EM = 144, 156
    PH = {('q', 0): 204, ('q', 1): 214, ('k', 0): 168, ('k', 1): 178}
    def softmax2(x, P):
        a(f'''v_max3_f32 v2, {v(x)}, {v(x+1)}, {v(x+2)}
        v_max3_f32 v4, -{v(x)}, -{v(x+1)}, -{v(x+2)}
        v_max3_f32 v2, v2, {v(x+3)}, {v(x+4)}
        v_max3_f32 v4, v4, -{v(x+3)}, -{v(x+4)}
        v_max3_f32 v2, v2, {v(x+5)}, {v(x+6)}
        v_max3_f32 v4, v4, -{v(x+5)}, -{v(x+6)}
        v_max3_f32 v2, v2, {v(x+7)}, {v(x+8)}
        v_max3_f32 v4, v4, -{v(x+7)}, -{v(x+8)}
        s_nop 1
        v_permlane32_swap_b32 v2, v4
        v_max_f32 v2, v2, v4
        v_mul_f32 v2, {s(T2)}, v2
        v_mov_b32 v4, v2
        s_nop 1
        v_permlane32_swap_b32 v2, v4''')
        bgdma()
        for i in range(0, 8, 2):
            a(f'v_pk_fma_f32 {v(EP+i,2)}, {v(x+i,2)}, {s(T2,2)}, v[2:3] op_sel_hi:[1,1,0] neg_lo:[0,0,1] neg_hi:[0,0,1]')
        a(f'v_fma_f32 {v(EP+8)}, {v(x+8)}, {s(T2)}, -v2')
        for i in range(0, 8, 2):
            a(f'v_pk_fma_f32 {v(EM+i,2)}, {v(x+i,2)}, {s(T2,2)}, v[4:5] op_sel_hi:[1,1,0] neg_lo:[1,0,1] neg_hi:[1,0,1]')
        a(f'v_fma_f32 {v(EM+8)}, -{v(x+8)}, {s(T2)}, -v4')
        for E in (EP, EM):
            for i in range(9): a(f'v_exp_f32 {v(E+i)}, {v(E+i)}')
            bgdma()
        a(f'''v_pk_add_f32 v[2:3], {v(EP,2)}, {v(EP+2,2)}
        v_pk_add_f32 v[4:5], {v(EM,2)}, {v(EM+2,2)}
        v_pk_add_f32 v[2:3], v[2:3], {v(EP+4,2)}
        v_pk_add_f32 v[4:5], v[4:5], {v(EM+4,2)}
        v_pk_add_f32 v[2:3], v[2:3], {v(EP+6,2)}
        v_pk_add_f32 v[4:5], v[4:5], {v(EM+6,2)}
        v_add_f32 v2, v2, {v(EP+8)}
        v_add_f32 v4, v4, {v(EM+8)}
        v_add_f32 v2, v2, v3
        v_add_f32 v4, v4, v5
        s_nop 1
        v_permlane32_swap_b32 v2, v4
        v_add_f32 v2, v2, v4
        v_rcp_f32 v2, v2
        s_nop 0
        v_mov_b32 v4, v2
        s_nop 1
        v_permlane32_swap_b32 v2, v4''')
        for E, t in ((EP, 2), (EM, 4)):
            for i in range(0, 8, 2): a(f'v_pk_mul_f32 {v(E+i,2)}, {v(E+i,2)}, {v(t,2)} op_sel_hi:[1,0]')
            a(f'v_mul_f32 {v(E+8)}, {v(E+8)}, {v(t)}')
        bgdma()
        cvt8(a, EP, P); cvt8(a, EM, P+4)
        a(f'v_cvt_pk_bf16_f32 {v(P+8)}, {v(EP+8)}, {v(EM+8)}')
    for tt in range(2):
        P = PH[('k', tt)]
        softmax2(D[('k', tt)], P)
        o = 2560*tt
        a(f'''ds_write_b64 {v(vPh)}, {v(P,2)} offset:{o}
        ds_write_b64 {v(vPh)}, {v(P+2,2)} offset:{o+16}
        ds_write_b64 {v(vPh)}, {v(P+4,2)} offset:{o+32}
        ds_write_b64 {v(vPh)}, {v(P+6,2)} offset:{o+48}
        ds_write_b32 {v(vPh)}, {v(P+8)} offset:{o+64}''')
    a.c('kv partial of this wave: phi_k^T (transposed through LDS) x [v | 1]')
    KA = 144; KD = [80, 96]
    a('s_waitcnt lgkmcnt(0)')
    for k in range(4):
        for sg in range(2):
            for j in range(2):
                a(f'ds_read_b64_tr_b16 {v(KA+8*k+4*sg+2*j,2)}, {v(vPr+sg)} offset:{(16*k+8*j)*80 + 32*sg}')
    a(f'''s_mul_i32 {s(T0)}, {s(sW4)}, 5120
    v_add_u32 v6, {s(T0)}, {v(v16)}
    v_lshlrev_b32 v1, 3, v0
    v_add_u32 v7, {s(T0)}, v1
    s_waitcnt vmcnt(12) lgkmcnt(0)''')
    lprio(0)
    for k in range(4):
        for sg in range(2): mfma(a, KD[sg], KA+8*k+4*sg, Fv[0]+4*k, None if k == 0 else KD[sg])
    lprio(1)
    softmax2(D[('q', 0)], PH[('q', 0)])
    a(f'''ds_write_b128 v6, {v(KD[0],4)} offset:{PHS}
    ds_write_b128 v6, {v(KD[0]+4,4)} offset:{PHS+1024}
    ds_write_b64 v7, {v(KD[0]+8,2)} offset:{PHS+2048}
    ds_write_b128 v6, {v(KD[1],4)} offset:{PHS+2560}
    ds_write_b128 v6, {v(KD[1]+4,4)} offset:{PHS+3584}
    s_waitcnt lgkmcnt(0)''')
    lds_arrive(a, C_KVX)
    a(f'''s_mul_i32 {s(T7)}, {s(sTH)}, 2560
    s_lshl_b32 {s(T1)}, {s(sMG)}, 10
    s_add_u32 {s(T7)}, {s(T7)}, {s(T1)}
    v_add_u32 v6, {s(T7)}, {v(v16)}
    s_lshl_b32 {s(T0)}, {s(sHA)}, 3
    s_add_u32 {s(T1)}, {s(T0)}, {s(sRB)}
    s_mul_i32 {s(T4)}, {s(T1)}, {KVPS}
    s_add_u32 {s(T4)}, {s(T4)}, {KVP:#x}
    s_add_u32 {s(T5)}, {s(T4)}, {s(T7)}
    s_lshl_b32 {s(T1)}, {s(T1)}, 7
    s_add_u32 {s(T1)}, {s(T1)}, {FL2:#x}''')
    lds_wait(a, 2, C_KVX, 4)
    R = 80
    for w in range(4): a(f'ds_read_b128 {v(R+4*w,4)}, v6 offset:{PHS + 5120*w}')
    a(f's_cmp_lg_u32 {s(sW4)}, 3\ns_cbranch_scc1 L_kvx')
    for w in range(4): a(f'ds_read_b64 {v(R+16+2*w,2)}, v1 offset:{PHS + 5120*w + 2048}')
    a('s_waitcnt lgkmcnt(0)')
    for w in range(1, 4): a(f'v_pk_add_f32 {v(R+16,2)}, {v(R+16,2)}, {v(R+16+2*w,2)}')
    a(f'buffer_store_dwordx2 {v(R+16,2)}, v1, {srd(sWS)}, {s(T4)} offen offset:2048 sc1')
    a.label('L_kvx')
    a('s_waitcnt lgkmcnt(0)')
    for w in range(1, 4):
        for k in range(2): a(f'v_pk_add_f32 {v(R+2*k,2)}, {v(R+2*k,2)}, {v(R+4*w+2*k,2)}')
    a(f'buffer_store_dwordx4 {v(R,4)}, {v(v16)}, {srd(sWS)}, {s(T5)} offen sc1')
    softmax2(D[('q', 1)], PH[('q', 1)])
    for tt in range(2): a(f'v_mov_b32 {v(PH[("q", tt)]+9)}, 0')
    a('s_waitcnt vmcnt(0)')
    last_signals(a, 2, C_F2, 4, T1)
    a.stamp(7)
    a.c('================= waves 4-7: kv total, numerator / denominator =================')
    a(f'''v_and_b32 v3, 7, v0
    s_lshl_b32 {s(T0)}, {s(sHA)}, 3
    v_add_u32 v3, {s(T0)}, v3
    v_lshlrev_b32 v3, 7, v3
    v_add_u32 v3, {FL2:#x}, v3
    s_mul_i32 {s(T4)}, {s(T0)}, {KVPS}
    s_add_u32 {s(T4)}, {s(T4)}, {KVP:#x}
    s_add_u32 {s(T5)}, {s(T4)}, {s(T7)}
    s_lshl_b32 {s(T7)}, {s(sTH)}, 10
    s_lshl_b32 {s(T0)}, {s(sMG)}, 3
    s_add_u32 {s(T7)}, {s(T7)}, {s(T0)}
    s_add_u32 {s(T7)}, {s(T7)}, {KVF}''')
    assert not bg
    lds_wait(a, 2, C_F2, 4)
    issue_blk(a, sAWO, 1, SLOT_A[1])
    poll_flags(a, 3, 2, sl=4)
    for i in range(8):
        a(f'buffer_load_dwordx4 {v(R+4*i,4)}, {v(v16)}, {srd(sWS)}, {s(T5)} offen sc1')
        if i < 7: a(f's_add_u32 {s(T5)}, {s(T5)}, {KVPS}')
    a(f'v_add_u32 v3, {s(T7)}, {v(v16)}\nv_add_u32 v6, {KVF + 2048}, v1\ns_cmp_lg_u32 {s(sW4)}, 3\ns_cbranch_scc1 L_kvs')
    for i in range(8):
        a(f'buffer_load_dwordx2 {v(R+32+2*i,2)}, v1, {srd(sWS)}, {s(T4)} offen offset:2048 sc1')
        if i < 7: a(f's_add_u32 {s(T4)}, {s(T4)}, {KVPS}')
    a('s_waitcnt vmcnt(0)')
    for i in range(1, 8): a(f'v_pk_add_f32 {v(R+32,2)}, {v(R+32,2)}, {v(R+32+2*i,2)}')
    a(f'v_cvt_pk_bf16_f32 v4, {v(R+32)}, {v(R+33)}\nv_mov_b32 v5, 0\nds_write_b64 v6, v[4:5]')
    a.label('L_kvs')
    a('s_waitcnt vmcnt(0)')
    for i in range(1, 8):
        for k in range(2): a(f'v_pk_add_f32 {v(R+2*k,2)}, {v(R+2*k,2)}, {v(R+4*i+2*k,2)}')
    a(f'v_cvt_pk_bf16_f32 v10, {v(R)}, {v(R+1)}\nv_cvt_pk_bf16_f32 v11, {v(R+2)}, {v(R+3)}\nds_write_b64 v3, v[10:11]\ns_waitcnt lgkmcnt(0)')
    lds_arrive(a, C_KVF)
    lds_wait(a, 2, C_KVF, 4)
    KF = 144
    a(f'''v_add_u32 v3, {KVF}, {v(v16)}
    ds_read_b64 {v(KF+8,2)}, v6
    ds_read_b128 {v(KF,4)}, v3
    ds_read_b128 {v(KF+4,4)}, v3 offset:1024
    s_mov_b32 {s(T0)}, {s(T6)}''')
    o_addr(a, sHA, OAM, OAL)
    a('s_waitcnt lgkmcnt(0)')
    ND = [80, 96]
    lprio(0)
    for tt in range(2): mfma(a, ND[tt], KF+8, PH[('q', tt)]+8, None, '8')
    a.nop(9)
    for tt in range(2): mfma(a, ND[tt], KF, PH[('q', tt)], ND[tt])
    for tt in range(2): mfma(a, ND[tt], KF+4, PH[('q', tt)]+4, ND[tt])
    a.nop(11)
    lprio(1)
    o_publish(a, ND, [112, 120], True)
    flag_addr(a, T1, sRB, sHA, 5, FL3)
    a('s_waitcnt vmcnt(0)')
    last_signals(a, 2, C_F3, 4, T1)
    a.stamp(8)
    a.c('================= waves 4-7: out projection of A (operands first, MFMAs after the attention) =================')
    W, O1, O2 = 16, 124, 160
    X = (8, 9, 10, 11); Y = (12, 13, 14, 15)
    sM, sM2, sL = T2, T3, T4
    a(f's_mul_i32 {s(T6)}, {s(sMG)}, {WBLK}\ns_add_u32 {s(T6)}, {s(T6)}, {SLOT_A[0]}')
    op_addr(a, *X, 2, T6)
    op_read_w(a, W, *X)
    for i in range(4): a(f'v_subrev_u32 {v(Y[i])}, {4*WBLK}, {v(X[i])}')
    a(f'''v_and_b32 v1, 31, v0
    v_lshrrev_b32 v2, 5, v0
    v_lshlrev_b32 v3, 2, v1
    v_lshl_add_u32 v5, v2, 9, v3
    s_lshr_b32 {s(T0)}, {s(sOT)}, 2
    s_lshl_b32 {s(T0)}, {s(T0)}, 5
    v_add_u32 v3, {s(T0)}, v1
    v_lshlrev_b32 v3, 7, v3
    v_add_u32 v3, {FL3:#x}, v3
    s_lshl_b32 {s(T1)}, {s(sOT)}, 1
    s_add_u32 {s(T5)}, {s(sTH)}, {s(T1)}
    s_lshl_b32 {s(T0)}, {s(T5)}, 5
    s_lshl_b32 {s(T1)}, {s(sMG)}, 4
    s_add_u32 {s(T7)}, {s(T0)}, {s(T1)}
    s_lshl_b32 {s(sM)}, {s(T7)}, 10
    s_add_u32 {s(sM)}, {s(sM)}, {OAM:#x}
    s_add_u32 {s(sM2)}, {s(sM)}, 4096
    s_lshl_b32 {s(sL)}, {s(T7)}, 7
    s_add_u32 {s(sL)}, {s(sL)}, {OAL:#x}
    s_waitcnt lgkmcnt(0)''')
    lds_arrive(a, C_W1)
    lds_wait(a, 4, C_W1, 4)
    for kq in (2, 3): issue_blk(a, sBWO, kq, SLOT_B[kq])
    poll_flags(a, 3, 4, sl=4)
    op_load_o(a, O1, v16, 5, sM, sM2, sL, OPT.get('thr', 1))
    a(f's_add_u32 {s(sM)}, {s(sM)}, 8192\ns_add_u32 {s(sM2)}, {s(sM2)}, 8192\ns_add_u32 {s(sL)}, {s(sL)}, 1024')
    op_load_o(a, O2, v16, 5, sM, sM2, sL, OPT.get('thr', 1))
    a('s_waitcnt vmcnt(0)')
    final_setup(a)
    a.stamp(9)
    pre = opt.get('pre', 0)
    mid = opt.get('mid', 1)
    a('s_setprio 0')
    for ps, (O, nxt) in enumerate(((O1, Y), (O2, X))):
        if ps == 1 and mid:
            a(f's_waitcnt vmcnt(0) lgkmcnt(6)\nv_cmp_ne_u32 vcc, {s(sTok)}, {v(vFlg)}')
            half_try(a)
        elif ps == 1: a('s_waitcnt lgkmcnt(6)')
        for st in range(9):
            if 9*ps + st == pre: a(f's_barrier\ns_setprio {opt.get("prio2", 0)}')
            if ps == 1 and st == 8: a('s_waitcnt lgkmcnt(12)')
            for T in range(3):
                mfma(a, ACA[T], W + 12*st + 4*T, O + 4*st, None if (ps == 0 and st == 0) else ACA[T])
            if st: a(op_w_reads(W, *nxt, st - 1))
            if (ps, st) == (1, 5) or (mid and (ps, st) == (0, max(pre, mid))): flag_ld(a)
        a(op_w_reads(W, *nxt, 8))
    a.nop(6)
    for i in range(4): a(f'v_mov_b32 {v(208+i)}, {v(ACA[2]+i)}')
    a.stamp(2)

HEADER = '''; Fused hedgehog linear attention (A) + softmax MHA (B), one persistent launch of 256 workgroups.
; kernarg: A_x A_wqkv A_w_phi A_wo B_x B_wqkv B_wo out debug ws (8-byte pointers, in that order)
; @launch grid=(256,1,1) block=(512,1,1) lds=%d
.amdgcn_target "amdgcn-amd-amdhsa--gfx950"
.text
.globl %s_kernel
.p2align 8
.type %s_kernel,@function
%s_kernel:
''' % (LDS_BYTES, NAME, NAME, NAME)
FOOTER = '''.section .rodata,"a"
.p2align 6
.amdhsa_kernel %s_kernel
  .amdhsa_next_free_vgpr 256
  .amdhsa_next_free_sgpr 102
  .amdhsa_accum_offset 256
  .amdhsa_group_segment_fixed_size 0
  .amdhsa_kernarg_size 80
  .amdhsa_user_sgpr_count 2
  .amdhsa_user_sgpr_kernarg_segment_ptr 1
  .amdhsa_system_sgpr_workgroup_id_x 1
.end_amdhsa_kernel
''' % NAME

OPT = {}
def generate(diag=False, **opt):
    opt = {**dict(rot=0, thr=3, sig=12, ldp=1), **opt}
    OPT.clear(); OPT.update(opt)
    a = Asm(diag)
    prologue(a, opt)
    gemm(a, opt)
    p_path(a, opt)
    a_chain(a, opt)
    final(a)
    body = a.text()
    bad = lint(body)
    for x in bad: print(f"HAZARD line {x[0]} -> {x[1]}: {x[2]} need {x[3]} have {x[4]}\n    {x[5]}\n    {x[6]}", file=sys.stderr)
    return HEADER + (f'    ; stamps={STAMPS:#x}\n' if diag else '') + body + FOOTER, len(bad)

if __name__ == '__main__':
    import argparse
    ap = argparse.ArgumentParser()
    ap.add_argument('-o', default=f'cdna_kernels/{NAME}.s')
    ap.add_argument('--diag', action='store_true')
    ap.add_argument('--opt', action='append', default=[])
    g = ap.parse_args()
    opt = {}
    for o in g.opt:
        k, val = o.split('='); opt[k] = int(val)
    text, nbad = generate(g.diag, **opt)
    open(g.o, 'w').write(text)
    print(f'wrote {g.o}: {len(text)} bytes, {nbad} hazards')
```

```python
import sys, struct
from lint import lint

NAME = 'concat_heads__linear_kernel_hedgehog__softmax_full_mha__prompt'
OOB = 0x40000000
QM, QL, KV = 0x0, 0x200000, 0x240000
REC = 2560; HREC = 64 * REC
VLOFF, ONEOFF, KLOFF = 2048, 2176, 2304
AOFF = 0x740000
OAM, OAL, OBM, OBL = 0xE80000, 0x1080000, 0x10C0000, 0x12C0000
KVP = 0x1300000; KVPS = 4608
FL1, FL1A, FL2, FL3, FL4 = 0x1420000, 0x1428000, 0x1430000, 0x1440000, 0x1460000
EPOCH = 0x1438000
STAMPS = 0x1500000
WS_BYTES = 0x1800000
XA = 0
PHS = 28672
WBLK = 21504
WS0 = 28672
SLOT_A = [WS0 + 4*WBLK, WS0, WS0 + 5*WBLK, WS0 + WBLK]
SLOT_B = [WS0 + 2*WBLK, WS0 + 3*WBLK, WS0 + 4*WBLK, WS0 + 5*WBLK]
EAX = 131072
CNT = WS0 + 6*WBLK
KVF = CNT + 256
LDS_BYTES = 163840
C_F1, C_F1A, C_KVX, C_F2, C_KVF, C_F3, C_OPA, C_F4, C_BAD, C_W1, C_TOK, C_G, C_W3 = [4 * i for i in range(13)]
sBX, sBW, sAX, sAW, sPHI, sAWO, sBWO, sOUT, sDBG, sWS = 4, 8, 12, 16, 20, 24, 28, 32, 36, 40
sWave, sCT, sRT, sH = 44, 45, 46, 47
T0, T1, T2, T3, T4, T5, T6, T7 = range(48, 56)
sTab, sS0, sDoSc, sIdle = 64, 65, 66, 67
sQB, sRot, sFree, sOT, sOC, sTok, sLoc, sXcd = 68, 69, 70, 71, 72, 73, 74, 75
sHA, sRB = sH, sQB
sSpin, sTH, sMG, sTile = 76, 77, 78, 79
SSTAMP = 80
sW4, sImg, sXB, sWB, sLh2, sLt2 = 96, 97, 98, 99, 100, 101
v16, vQL, vCnt, vOne, vZero, vPoll, vTok = 244, 245, 246, 247, 248, 249, 250
vVf = 252
EA, ES = 72, 84
vWO = 224
vX, vW, XAc, WAc, XAr, WAr, vTab = 228, 232, 24, 28, 32, 36, 39
ACC = {('a', 0): 96, ('a', 1): 112, ('b', 0): 128, ('b', 1): 144}
FS = [176, 192, 40, 56]
def m_of(sl): return 9*(sl >> 2) + 2*(sl & 1) + 5*((sl >> 1) & 1)
def ct_table(ct):
    lo = 32*ct; s0 = next(x for x in range(200) if m_of(x) >= lo)
    used = {m_of(x) + d for x in range(s0, s0 + 12) for d in (0, 1)}
    misc = [m - lo for m in range(lo, lo + 32) if m not in used]
    assert misc[4:] == [28, 29, 30, 31]
    return sum(c << (5*i) for i, c in enumerate(misc[:4])) | (s0 << 20)

LOG2E = 1.4426950408889634
def f2u(x): return struct.unpack('<I', struct.pack('<f', x))[0]
QSCALE = f2u(18 ** -0.5 * LOG2E)

def v(a, n=1): return f'v{a}' if n == 1 else f'v[{a}:{a+n-1}]'
def s(a, n=1): return f's{a}' if n == 1 else f's[{a}:{a+n-1}]'
def srd(a): return s(a, 4)

import re
def unpack(x):
    m = re.match(r'v_pk_(add_f32|mul_f32|mov_b32) ([vs])\[(\d+):\d+\], ([vs])\[(\d+):\d+\], ([vs])\[(\d+):\d+\](.*)', x)
    op, _, d, k0, a0, k1, a1, mod = m.groups(); d, a0, a1 = int(d), int(a0), int(a1); mod = mod.strip()
    if op == 'mov_b32':
        assert mod == 'op_sel:[0,1]'
        return [f'v_mov_b32 v{d}, v{a0}', f'v_mov_b32 v{d+1}, v{a1+1}']
    assert mod in ('', 'op_sel_hi:[1,0]') and k0 == 'v'
    h = 0 if mod else 1
    return [f'v_{op} v{d}, {k1}{a1}, v{a0}', f'v_{op} v{d+1}, {k1}{a1+h}, v{a0+1}']

class Asm:
    def __init__(self, diag=False):
        self.L = []; self.uid = 0; self.diag = diag; self.lock = False; self.nopk = False; self.late = []
    def __call__(self, t):
        for x in t.split('\n'):
            x = x.strip()
            if not x: continue
            if self.nopk and x.startswith('v_pk_'): self.L += ['    ' + y for y in unpack(x)]
            else: self.L.append('    ' + x)
    def label(self, n): self.L.append(n + ':')
    def c(self, t): self.L.append('    ; ' + t)
    def new(self, p):
        self.uid += 1; return f'L_{p}{self.uid}'
    def nop(self, n):
        while n > 0:
            k = min(n, 16); self(f's_nop {k-1}'); n -= k
    def stamp(self, k):
        if self.diag and not self.lock:
            self(f's_memrealtime {s(94,2)}\ns_waitcnt lgkmcnt(0)\ns_mov_b32 {s(SSTAMP+k)}, s94')
    def lstamp(self, sreg, base=0):
        if self.diag:
            self(f's_memrealtime s[94:95]\ns_add_u32 s95, {sreg}, {base}\ns_mov_b32 s93, s95\ns_waitcnt lgkmcnt(0)\nv_writelane_b32 v254, s94, s93'.replace('s_add_u32 s95', 's_add_u32 s93').replace('s_mov_b32 s93, s95\n', '').replace('v_writelane_b32 v254, s94, s93', 's_mov_b32 m0, s93\nv_writelane_b32 v254, s94, m0'))
    def cyc0(self):
        if self.diag: self('s_memtime s[94:95]\ns_waitcnt lgkmcnt(0)\ns_mov_b32 s93, s94')
    def cyc1(self):
        if self.diag: self('s_memtime s[94:95]\ns_waitcnt lgkmcnt(0)\ns_sub_u32 s93, s94, s93')
    def text(self): return '\n'.join(self.L) + '\n'

class VM:
    def __init__(self): self.q = []
    def add(self, tag, n=1): self.q += [tag] * n
    def after(self, tag):
        i = max(k for k, t in enumerate(self.q) if t == tag)
        return len(self.q) - 1 - i

def mfma_s(d, x, y, c=None, kind='16'):
    op = {'16': 'v_mfma_f32_32x32x16_bf16', '8': 'v_mfma_f32_32x32x8_bf16', '2b': 'v_mfma_f32_32x32x4_2b_bf16'}[kind]
    nd = 32 if kind == '2b' else 16; na = 4 if kind == '16' else 2
    return f'{op} {v(d,nd)}, {v(x,na)}, {v(y,na)}, {"0" if c is None else v(c,nd)}'
def mfma(a, *k, **kw): a(mfma_s(*k, **kw))

def opol(k): return ['', ' sc1', ' nt', ' sc0 sc1', ' sc1 nt'][OPT.get(k, 0)]

def cvt8(a, src, dst):
    for i in range(4): a(f'v_cvt_pk_bf16_f32 {v(dst+i)}, {v(src+2*i)}, {v(src+2*i+1)}')

SRDS = {sAX: (0, 2048*1152), sAW: (8, 576*3456), sPHI: (16, 32*648), sAWO: (24, 576*1152), sBX: (32, 2048*1152),
        sBW: (40, 576*3456), sBWO: (48, 576*1152), sOUT: (56, 2048*2304), sDBG: (64, 256), sWS: (72, WS_BYTES)}
def ld_srd(a, rs):
    for r in rs: a(f's_load_dwordx2 {s(r,2)}, s[0:1], {SRDS[r][0]}')
def mk_srd(a, rs):
    for r in rs:
        if r == sWS and OPT.get('wsoff'): a(f's_waitcnt lgkmcnt(0)\ns_add_u32 {s(r)}, {s(r)}, {OPT["wsoff"] << 20:#x}\ns_addc_u32 {s(r+1)}, {s(r+1)}, 0')
    for r in rs: a(f's_mov_b32 {s(r+2)}, {SRDS[r][1]:#x}\ns_mov_b32 {s(r+3)}, 0x20000')

def spin_tail(a, top, sl=1):
    a((f's_sleep {sl}\n' if sl else '') + f's_sub_u32 {s(sSpin)}, {s(sSpin)}, 1\ns_cbranch_scc0 {top}\ns_endpgm')

def token_issue(a):
    a(f'buffer_load_dwordx2 {v(vTok,2)}, {v(vZero)}, {srd(sDBG)}, 0 offen sc1')
def token_check(a):
    top = a.new('tok'); done = a.new('tokd')
    a.label(top)
    a(f'v_readfirstlane_b32 {s(T0)}, {v(vTok+1)}\nv_readfirstlane_b32 {s(sTok)}, {v(vTok)}\ns_cmp_lg_u32 {s(T0)}, 0\ns_cbranch_scc1 {done}')
    token_issue(a)
    a('s_waitcnt vmcnt(0)')
    spin_tail(a, top)
    a.label(done)

def poll_flags(a, vaddr, vt, preloaded=False, sl=1):
    top = a.new('poll'); done = a.new('polld'); chk = a.new('pollc')
    if preloaded: a(f's_branch {chk}')
    a.label(top)
    a(f'buffer_load_dword {v(vt)}, {v(vaddr)}, {srd(sWS)}, 0 offen sc1\ns_waitcnt vmcnt(0)')
    a.label(chk)
    a(f'v_cmp_ne_u32 vcc, {s(sTok)}, {v(vt)}\ns_cbranch_vccz {done}')
    spin_tail(a, top, sl)
    a.label(done)

def last_signals(a, vt, ctr, n, sflag):
    skip = a.new('nsig')
    a(f's_mov_b64 exec, 1\nds_add_rtn_u32 {v(vt)}, {v(vCnt)}, {v(vOne)} offset:{ctr}\ns_waitcnt lgkmcnt(0)')
    a(f'v_readfirstlane_b32 {s(T0)}, {v(vt)}\nv_mov_b32 {v(vt)}, {s(sflag)}\nv_mov_b32 {v(vt+1)}, {s(sTok)}\ns_cmp_lg_u32 {s(T0)}, {n-1}\ns_cbranch_scc1 {skip}')
    a(f'buffer_store_dword {v(vt+1)}, {v(vt)}, {srd(sWS)}, 0 offen sc1')
    a.label(skip)
    a('s_mov_b64 exec, -1')

def wave_signals(a, vt, sflag):
    a(f'v_mov_b32 {v(vt)}, {s(sflag)}\nv_mov_b32 {v(vt+1)}, {s(sTok)}\ns_waitcnt vmcnt(0)\ns_mov_b64 exec, 1')
    a(f'buffer_store_dword {v(vt+1)}, {v(vt)}, {srd(sWS)}, 0 offen sc1\ns_mov_b64 exec, -1')

def lds_arrive(a, ctr):
    a(f's_mov_b64 exec, 1\nds_add_u32 {v(vCnt)}, {v(vOne)} offset:{ctr}\ns_mov_b64 exec, -1')

def lds_wait(a, vt, ctr, n, sl=2):
    top = a.new('lw'); done = a.new('lwd')
    a.label(top)
    a(f'ds_read_b32 {v(vt)}, {v(vCnt)} offset:{ctr}\ns_waitcnt lgkmcnt(0)\nv_readfirstlane_b32 {s(T0)}, {v(vt)}\ns_cmp_ge_u32 {s(T0)}, {n}\ns_cbranch_scc1 {done}')
    spin_tail(a, top, sl)
    a.label(done)

def flag_addr(a, dst, shi, slo, sh, base):
    a(f's_lshl_b32 {s(dst)}, {s(shi)}, {sh}\ns_add_u32 {s(dst)}, {s(dst)}, {s(slo)}\ns_lshl_b32 {s(dst)}, {s(dst)}, 7\ns_add_u32 {s(dst)}, {s(dst)}, {base:#x}')

def kl_const(a, dst, shead):
    a(f's_bitcmp1_b32 {s(shead)}, 0\ns_mov_b32 {s(dst)}, {HREC + KLOFF}\ns_cselect_b32 {s(dst)}, {KLOFF + 4}, {s(dst)}')

def producer_ct(a, d, ty, last, shead, t):
    a(f'''s_lshr_b32 {s(T0)}, {s(shead)}, 1
    s_mul_i32 {s(T0)}, {s(T0)}, 36
    s_and_b32 {s(T1)}, {s(shead)}, 1
    s_lshl_b32 {s(T1)}, {s(T1)}, 4
    s_add_u32 {s(T0)}, {s(T0)}, {s(T1)}
    v_mul_u32_u24 {v(d)}, 576, {v(ty)}
    v_mul_u32_u24 {v(t)}, 19, {v(last)}
    v_add3_u32 {v(d)}, {v(d)}, {v(t)}, {s(T0)}
    v_lshrrev_b32 {v(d)}, 7, {v(d)}''')

def issue_chunk(a, j):
    if OPT.get('nodma') and j > 1: return
    slot = (j % 4) * 32768; c = j % 9
    if OPT.get('samek'): c = 0
    X, W = (sBX, sBW) if j < 9 else (sAX, sAW)
    nx = ' nt' if OPT.get('nt', 0) & 1 else ''; nw = ' nt' if OPT.get('nt', 0) & 2 else ''
    if OPT.get('rot', 0):
        a(f'''s_add_u32 vcc_lo, {s(sRot)}, {c}
        s_cmp_ge_u32 vcc_lo, 9
        s_cselect_b32 vcc_hi, 9, 0
        s_sub_u32 vcc_lo, vcc_lo, vcc_hi
        s_mul_i32 vcc_hi, vcc_lo, {64*3456}
        s_add_u32 vcc_hi, vcc_hi, {s(sWB)}
        s_lshl_b32 vcc_lo, vcc_lo, 7
        s_add_u32 vcc_lo, vcc_lo, {s(sXB)}
        s_lshl_b32 s3, {s(sW4)}, 12
        s_add_u32 m0, s3, {slot}
        s_nop 0''')
    else:
        a(f's_lshl_b32 s3, {s(sW4)}, 12\ns_add_u32 m0, s3, {slot}\ns_add_u32 vcc_lo, {s(sXB)}, {128*c}\ns_add_u32 vcc_hi, {s(sWB)}, {64*3456*c}')
    for i in range(4): a(f'buffer_load_dwordx4 {v(vX+i)}, {srd(X)}, vcc_lo offen offset:{1024*i}{nx} lds')
    a(f's_add_u32 m0, s3, {slot + 16384}\ns_nop 0')
    for i in range(4): a(f'buffer_load_dwordx4 {v(vW+i)}, {srd(W)}, vcc_hi offen offset:{1024*i}{nw} lds')

def su_loader(a):
    a.c('loader lane offsets: x rows (xor-swizzled 16-byte pieces), w rows (16 pieces, rotated by four per row)')
    a(f'''v_lshrrev_b32 v1, 3, v0
    v_and_b32 v2, 7, v0
    v_lshrrev_b32 v3, 1, v1
    v_xor_b32 v2, v2, v3
    v_mul_u32_u24 v1, 1152, v1
    v_lshl_add_u32 {v(vX)}, v2, 4, v1
    v_xor_b32 v2, 4, v2
    v_lshl_add_u32 {v(vX+1)}, v2, 4, v1
    v_add_u32 {v(vX+1)}, {8*1152-1024}, {v(vX+1)}
    v_add_u32 {v(vX+2)}, {2*(8*1152-1024)}, {v(vX)}
    v_add_u32 {v(vX+3)}, {2*(8*1152-1024)}, {v(vX+1)}
    v_lshrrev_b32 v1, 4, v0
    v_lshlrev_b32 v2, 2, v1
    v_sub_u32 v2, v0, v2
    v_and_b32 v2, 15, v2
    v_mul_u32_u24 v1, 3456, v1
    v_lshl_add_u32 v5, v2, 4, v1
    s_cmp_eq_u32 {s(sCT)}, 13
    s_cselect_b32 s3, 8, 16
    v_cmp_gt_u32 vcc, s3, v2
    v_mov_b32 v7, {OOB:#x}
    s_nop 0
    v_cndmask_b32 {v(vW)}, v7, v5, vcc''')
    for i in range(1, 4): a(f'v_add_u32 {v(vW+i)}, {i*(4*3456-1024)}, {v(vW)}')
    su_loader_s(a)

def su_loader_s(a):
    a(f'''s_lshl_b32 {s(sXB)}, {s(sRT)}, 2
    s_add_u32 {s(sXB)}, {s(sXB)}, {s(sW4)}
    s_mul_i32 {s(sXB)}, {s(sXB)}, {32*1152}
    s_mul_i32 {s(sWB)}, {s(sW4)}, {16*3456}
    s_lshl_b32 s3, {s(sCT)}, 8
    s_add_u32 {s(sWB)}, {s(sWB)}, s3''')

def su_ids2(a):
    a(f'''s_lshl_b32 s3, {s(sXcd)}, 2
    s_and_b32 {s(sH)}, {s(sLoc)}, 3
    s_add_u32 {s(sH)}, {s(sH)}, s3
    s_lshr_b32 {s(sQB)}, {s(sLoc)}, 2
    s_lshr_b32 {s(sOT)}, {s(sLoc)}, 3
    s_add_u32 {s(sOT)}, {s(sOT)}, s3
    s_and_b32 {s(sOC)}, {s(sLoc)}, 7
    s_mov_b32 {s(sSpin)}, 0x40000
    s_and_b32 {s(sTH)}, {s(sWave)}, 1
    s_lshr_b32 {s(sMG)}, {s(sW4)}, 1
    s_cmp_lt_u32 {s(sWave)}, 4
    s_cselect_b32 {s(sImg)}, 0, {AOFF:#x}
    v_mov_b32 {v(vZero)}, 0
    v_mov_b32 {v(vCnt)}, {CNT}
    v_mov_b32 {v(vOne)}, 1''')

def su_token(a, part):
    lb = a.new('notok')
    a(f's_or_b32 s3, s2, {s(sWave)}\ns_cmp_lg_u32 s3, 0\ns_cbranch_scc1 {lb}\ns_mov_b32 {s(T0)}, {EPOCH:#x}')
    if part == 0:
        a(f'buffer_load_dword v10, {v(vZero)}, {srd(sWS)}, {s(T0)} offen sc1')
    else:
        a(f'''s_mov_b32 {s(T1)}, 1664525
        s_waitcnt vmcnt(0)
        v_mul_lo_u32 v6, v10, {s(T1)}
        v_add_u32 v6, 0x3c6ef35f, v6
        v_mov_b32 v7, 1
        s_mov_b64 exec, 1
        buffer_store_dwordx2 v[6:7], {v(vZero)}, {srd(sDBG)}, 0 offen sc1
        buffer_store_dword v6, {v(vZero)}, {srd(sWS)}, {s(T0)} offen sc1
        s_mov_b64 exec, -1''')
    a.label(lb)
    if part == 0:
        a(f's_cmp_lg_u32 {s(sWave)}, 1\ns_cbranch_scc1 L_nocnt\nv_lshlrev_b32 v1, 2, v0\nv_add_u32 v1, {CNT}, v1\nds_write_b32 v1, {v(vZero)}')
        a.label('L_nocnt')

def su_gaddr(a):
    lb = a.new('mg0')
    a.c('gemm fragment addresses')
    a(f'''v_and_b32 v1, 31, v0
    v_lshrrev_b32 v2, 5, v0
    v_bfe_u32 v3, v0, 1, 3
    v_xor_b32 v3, v3, v2
    s_lshl_b32 s3, {s(sTH)}, 13
    v_lshl_add_u32 v4, v1, 7, s3''')
    for k in range(4):
        a(f'v_xor_b32 v5, {2*k}, v3\nv_lshl_add_u32 {v(XAc+k)}, v5, 4, v4')
    a.c('which four-column chunk each lane group reads for the two 32-column tiles of this wave')
    a(f'''v_bfe_u32 v3, v0, 2, 2
    v_and_b32 v4, 3, v0
    v_bfe_u32 v5, v0, 4, 1
    v_lshl_add_u32 v4, v5, 2, v4
    v_lshl_add_u32 v5, v2, 3, v3
    v_lshlrev_b32 v5, 8, v5
    v_add_u32 v5, 16384, v5
    v_lshlrev_b32 v3, 2, v3
    s_lshl_b32 s3, {s(sMG)}, 4''')
    for u in range(2): a(f'v_add_u32 {v(WAc+u)}, s3, v4' + (f'\nv_add_u32 {v(WAc+u)}, 8, {v(WAc+u)}' if u else ''))
    a(f's_cmp_ge_u32 {s(sCT)}, 9\ns_cbranch_scc1 {lb}')
    a(f'''v_lshrrev_b32 v6, 2, v4
    v_and_b32 v7, 1, v4
    v_lshl_add_u32 v6, v6, 1, v7
    s_lshl_b32 s3, {s(sMG)}, 3
    s_add_u32 s3, s3, {s(sS0)}
    v_add_u32 v6, s3, v6
    v_lshrrev_b32 v7, 2, v6
    v_mul_u32_u24 v7, 9, v7
    v_and_b32 v1, 1, v6
    v_lshl_add_u32 v7, v1, 1, v7
    v_bfe_u32 v1, v6, 1, 1
    v_mul_u32_u24 v1, 5, v1
    v_bfe_u32 v6, v4, 1, 1
    v_add3_u32 v7, v7, v1, v6
    s_lshl_b32 s3, {s(sCT)}, 5
    v_subrev_u32 {v(WAc)}, s3, v7
    v_add_u32 {v(WAc+1)}, 9, {v(WAc)}
    s_cmp_eq_u32 {s(sMG)}, 0
    s_cbranch_scc1 {lb}''')
    misc_chunk(a, WAc+1, 4, 6)
    a.label(lb)
    for u in range(2):
        a(f'''v_lshrrev_b32 v6, 1, {v(WAc+u)}
        v_add_u32 v6, v6, v3
        v_and_b32 v6, 15, v6
        v_lshl_add_u32 v6, v6, 4, v5
        v_and_b32 {v(WAc+u)}, 1, {v(WAc+u)}
        v_lshl_add_u32 {v(WAc+u)}, {v(WAc+u)}, 3, v6''')

def misc_chunk(a, d, c8, t):
    a(f'''v_mul_u32_u24 {v(t)}, 5, {v(c8)}
    v_lshrrev_b32 {v(t)}, {v(t)}, {v(vTab)}
    v_and_b32 {v(t)}, 31, {v(t)}
    v_cmp_gt_u32 vcc, 4, {v(c8)}
    v_add_u32 {v(d)}, 24, {v(c8)}
    s_nop 0
    v_cndmask_b32 {v(d)}, {v(d)}, {v(t)}, vcc''')

def su_tab(a):
    a(f's_mov_b32 {s(sTab)}, {ct_table(0):#x}')
    for ct in range(1, 9): a(f's_cmp_eq_u32 {s(sCT)}, {ct}\ns_cselect_b32 {s(sTab)}, {ct_table(ct):#x}, {s(sTab)}')
    a(f'''s_lshr_b32 {s(sS0)}, {s(sTab)}, 20
    v_mov_b32 {v(vTab)}, {s(sTab)}
    s_lshl_b32 {s(sTile)}, {s(sRT)}, 2
    s_lshl_b32 s3, {s(sTH)}, 1
    s_add_u32 {s(sTile)}, {s(sTile)}, s3
    s_cmp_le_u32 {s(sCT)}, 4
    s_cselect_b32 {s(sDoSc)}, 1, 0
    s_cmp_eq_u32 {s(sImg)}, 0
    s_cselect_b32 {s(sDoSc)}, {s(sDoSc)}, 0
    s_cmp_ge_u32 {s(sLoc)}, 28
    s_cselect_b32 {s(sIdle)}, 1, 0
    v_lshlrev_b32 {v(v16)}, 4, v0
    v_lshlrev_b32 {v(vQL)}, 2, v0''')

def su_epi(a):
    lbS = a.new('es'); done = a.new('ed')
    a(f'''v_and_b32 v1, 31, v0
    v_lshrrev_b32 v2, 5, v0
    s_mul_i32 {s(T1)}, {s(sTile)}, {REC}
    s_cmp_ge_u32 {s(sCT)}, 9
    s_cbranch_scc1 {lbS}''')
    a.c('lane i < 12 works out where item i goes: a 16-byte slot (first chunk) or a single chunk of the mixed tile')
    a(f'''s_lshl_b32 s3, {s(sMG)}, 3
    s_add_u32 s3, s3, {s(sS0)}
    v_add_u32 v3, s3, v1
    v_lshrrev_b32 v4, 2, v3
    v_mul_u32_u24 v4, 9, v4
    v_and_b32 v5, 1, v3
    v_lshl_add_u32 v4, v5, 1, v4
    v_bfe_u32 v5, v3, 1, 1
    v_mad_u32_u24 v8, v5, 5, v4
    v_subrev_u32 v3, 4, v1''')
    misc_chunk(a, 4, 3, 5)
    a(f'''s_lshl_b32 {s(T4)}, {s(sCT)}, 5
    s_cmp_eq_u32 {s(sMG)}, 0
    s_cselect_b32 s3, 32, 4
    v_cmp_gt_u32 vcc, s3, v1
    v_add_u32 v4, {s(T4)}, v4
    s_add_u32 {s(T1)}, {s(T1)}, {(KV - 32*HREC) & 0xffffffff:#x}
    v_cndmask_b32 v4, v4, v8, vcc
    v_mul_u32_u24 v3, 7282, v4
    v_lshrrev_b32 v3, 16, v3
    v_mul_u32_u24 v5, 9, v3
    v_sub_u32 v8, v4, v5
    v_cmp_lt_u32 vcc, 4, v8
    v_lshlrev_b32 v3, 1, v3
    v_subrev_u32 v9, 5, v8
    v_addc_co_u32 v4, vcc, 0, v3, vcc
    v_min_u32 v9, v8, v9
    s_lshl_b32 {s(T0)}, {s(sTile)}, 10
    v_lshl_add_u32 v6, v4, 16, {s(T0)}
    v_mul_u32_u24 v5, {HREC}, v4
    v_cmp_gt_u32 vcc, 32, v4
    v_add_u32 v5, {s(T1)}, v5
    s_lshl_b32 {s(T2)}, {s(sTile)}, 8
    s_add_u32 {s(T2)}, {s(T2)}, {QL:#x}
    v_cndmask_b32 v6, v5, v6, vcc
    v_lshrrev_b32 v4, 1, v9
    v_lshl_add_u32 v6, v4, 9, v6
    v_and_b32 v4, 1, v9
    v_lshl_add_u32 v6, v4, 3, v6
    v_lshl_add_u32 v4, v3, 13, {s(T2)}
    v_mul_u32_u24 v5, {HREC}, v3
    s_add_u32 {s(T3)}, {s(T1)}, {HREC + KLOFF}
    v_add_u32 v5, {s(T3)}, v5
    v_mov_b32 v7, {REC + 16}
    v_mov_b32 v9, {1024 + 16}
    v_cndmask_b32 v4, v5, v4, vcc
    v_cndmask_b32 v7, v7, v9, vcc
    v_mov_b32 v5, {REC + 8}
    v_mov_b32 v9, {256 + 8}
    v_cndmask_b32 v5, v5, v9, vcc
    v_mov_b32 v9, {QSCALE:#x}
    v_cndmask_b32 v9, 1.0, v9, vcc
    v_cmp_eq_u32 vcc, 4, v8
    v_lshlrev_b32 v2, 2, v2
    s_nop 0
    v_cndmask_b32 v6, v6, v4, vcc
    v_cndmask_b32 v7, v7, v5, vcc''')
    for k in range(6):
        a(f'ds_bpermute_b32 {v(EA+2*k)}, v2, v6 offset:{8*k}\nds_bpermute_b32 {v(EA+2*k+1)}, v2, v7 offset:{8*k}')
    for k in range(6):
        a(f's_waitcnt lgkmcnt({10 - 2*k + k})\nds_bpermute_b32 {v(ES+k)}, v2, v9 offset:{8*k}')
        a(f'''v_and_b32 v3, 31, {v(EA+2*k+1)}
        v_mad_u32_u24 {v(EA+2*k)}, v1, v3, {v(EA+2*k)}
        v_sub_u32 v3, {v(EA+2*k+1)}, v3
        v_add_u32 {v(EA+2*k+1)}, {v(EA+2*k)}, v3''')
    a(f's_branch {done}')
    a.label(lbS)
    a(f's_add_u32 {s(T1)}, {s(T1)}, {KV:#x}\ns_sub_u32 {s(T2)}, {s(sCT)}, 9\ns_lshl_b32 {s(T2)}, {s(T2)}, 7')
    for u in range(2): su_epi_v(a, u)
    a.label(done)

def su_epi_v(a, u):
    e = EA + 2*u
    a(f'''s_lshl_b32 s3, {s(sMG)}, 6
    s_add_u32 s3, s3, {s(T2)}
    s_add_u32 s3, s3, {32*u}
    v_add_u32 v3, s3, v1
    v_mul_u32_u24 v4, 3641, v3
    v_lshrrev_b32 v4, 16, v4
    v_mul_u32_u24 v5, 18, v4
    v_sub_u32 v3, v3, v5
    v_and_b32 v5, 1, v4
    v_lshlrev_b32 v5, 1, v5
    v_sub_u32 v3, v3, v5
    v_add_u32 v5, 18, v3
    v_min_u32 v3, v3, v5
    v_mul_u32_u24 v5, {HREC}, v4
    v_add_u32 v5, {s(T1)}, v5
    v_lshl_add_u32 v5, v3, 4, v5
    v_lshl_add_u32 v6, v2, 8, v5
    v_add_u32 v6, 1024, v6
    v_lshl_add_u32 v7, v2, 5, v5
    v_add_u32 v7, {VLOFF - 256}, v7
    v_cmp_gt_u32 vcc, 16, v3
    v_add_u32 v8, 512, v6
    v_add_u32 v9, 64, v7
    v_cndmask_b32 v6, v7, v6, vcc
    v_cndmask_b32 v8, v9, v8, vcc
    v_cmp_gt_u32 vcc, 32, v4
    v_mov_b32 v7, {OOB:#x}
    s_nop 0
    v_cndmask_b32 {v(e)}, v7, v6, vcc
    v_cndmask_b32 {v(e+1)}, v7, v8, vcc''')
    if u:
        a.c('the row of ones of every head whose first column is in this tile')
        a(f'''s_add_u32 s3, {s(T2)}, 17
        s_mul_i32 s3, s3, 3641
        s_lshr_b32 s3, s3, 16
        v_and_b32 v3, 7, v0
        v_add_u32 v3, s3, v3
        v_mul_u32_u24 v4, 18, v3
        s_add_u32 {s(T2)}, {s(T2)}, 128
        s_min_u32 {s(T2)}, {s(T2)}, 576
        v_cmp_gt_u32 vcc, {s(T2)}, v4
        v_cmp_gt_u32 {s(T4,2)}, 16, v0
        s_and_b64 vcc, vcc, {s(T4,2)}
        v_mul_u32_u24 v3, {HREC}, v3
        v_bfe_u32 v4, v0, 3, 1
        v_mul_u32_u24 v4, {REC}, v4
        v_add3_u32 v3, v3, v4, {s(T1)}
        v_add_u32 v3, {ONEOFF}, v3
        v_cndmask_b32 {v(EA+4)}, v7, v3, vcc''')

def su_vgat(a):
    a.c('V fragment gather offsets inside a key-tile record')
    a('v_and_b32 v1, 31, v0\nv_lshrrev_b32 v2, 5, v0')
    a(f'''v_lshlrev_b32 v3, 4, v1
    v_lshl_add_u32 v3, v2, 8, v3
    v_add_u32 v3, 1024, v3
    v_subrev_u32 v4, 16, v1
    v_lshlrev_b32 v5, 4, v4
    v_lshl_add_u32 v5, v2, 5, v5
    v_add_u32 v5, {VLOFF}, v5
    v_cmp_gt_u32 vcc, 2, v4
    v_add_u32 v6, 64, v5
    v_mov_b32 v7, {OOB:#x}
    v_cndmask_b32 v5, v7, v5, vcc
    v_cndmask_b32 v6, v7, v6, vcc
    v_and_b32 v4, 27, v1
    v_cmp_eq_u32 vcc, 18, v4
    v_mov_b32 v7, {ONEOFF}
    s_nop 0
    v_cndmask_b32 v5, v5, v7, vcc
    v_cndmask_b32 v6, v6, v7, vcc
    v_cmp_gt_u32 vcc, 16, v1
    v_add_u32 v4, 512, v3
    s_nop 0
    v_cndmask_b32 {v(vVf)}, v5, v3, vcc
    v_cndmask_b32 {v(vVf+1)}, v6, v4, vcc''')

def prefetch_a(a):
    if not OPT.get('pf', 1): return
    top = a.new('pf'); isw = a.new('pfw'); nxt = a.new('pfn')
    a(f'''s_sub_u32 {s(T0)}, {s(sLoc)}, 28
    s_lshl_b32 {s(T0)}, {s(T0)}, 3
    s_add_u32 {s(T0)}, {s(T0)}, {s(sWave)}
    v_mul_u32_u24 v1, 1152, v0
    v_mul_u32_u24 v2, 3456, v0
    s_lshr_b32 {s(T4)}, {s(sXcd)}, 1
    s_mul_i32 {s(T4)}, {s(T4)}, {512*1152}
    s_and_b32 {s(T5)}, {s(sXcd)}, 1
    s_mul_i32 {s(T5)}, {s(T5)}, {7*256}''')
    a.label(top)
    a(f'''s_mul_i32 {s(T1)}, {s(T0)}, 2979
    s_lshr_b32 {s(T1)}, {s(T1)}, 16
    s_mul_i32 {s(T2)}, {s(T1)}, 22
    s_sub_u32 {s(T2)}, {s(T0)}, {s(T2)}
    s_cmp_ge_u32 {s(T2)}, 8
    s_cbranch_scc1 {isw}
    s_mul_i32 {s(T2)}, {s(T2)}, {64*1152}
    s_lshl_b32 {s(T1)}, {s(T1)}, 7
    s_add_u32 {s(T2)}, {s(T2)}, {s(T1)}
    s_add_u32 {s(T2)}, {s(T2)}, {s(T4)}
    buffer_load_dword v3, v1, {srd(sAX)}, {s(T2)} offen
    s_branch {nxt}''')
    a.label(isw)
    a(f'''s_sub_u32 {s(T2)}, {s(T2)}, 8
    s_lshl_b32 {s(T2)}, {s(T2)}, 7
    s_mul_i32 {s(T1)}, {s(T1)}, {64*3456}
    s_add_u32 {s(T2)}, {s(T2)}, {s(T1)}
    s_add_u32 {s(T2)}, {s(T2)}, {s(T5)}
    buffer_load_dword v3, v2, {srd(sAW)}, {s(T2)} offen''')
    a.label(nxt)
    a(f's_add_u32 {s(T0)}, {s(T0)}, 32\ns_cmp_lt_u32 {s(T0)}, 198\ns_cbranch_scc1 {top}')

def prefetch_wo(a):
    if not OPT.get('pfo', 0): return
    top = a.new('pfo')
    a(f'''s_sub_u32 {s(T0)}, {s(sLoc)}, 28
    s_lshl_b32 {s(T0)}, {s(T0)}, 2
    s_add_u32 {s(T0)}, {s(T0)}, {s(sW4)}
    s_lshl_b32 {s(T0)}, {s(T0)}, 13
    v_lshlrev_b32 v1, 7, v0''')
    a.label(top)
    a(f'''buffer_load_dword v3, v1, {srd(sAWO)}, {s(T0)} offen
    buffer_load_dword v3, v1, {srd(sBWO)}, {s(T0)} offen
    s_add_u32 {s(T0)}, {s(T0)}, {16*8192}
    s_cmp_lt_u32 {s(T0)}, {576*1152}
    s_cbranch_scc1 {top}''')

def su_acc(a):
    for r in range(40, 72, 2): a(f'v_pk_mov_b32 {v(r,2)}, {v(vZero,2)}, {v(vZero,2)}')
    for d in ACC.values(): mfma(a, d, 40, 44, None)

def su_share(a, regs, put, first=0):
    a(f's_mul_i32 s3, {s(sW4)}, 6656\ns_add_u32 s3, s3, {EAX}\nv_add_u32 v1, s3, {v(v16)}')
    off = first
    for r, n in regs:
        if n == 4: a(f'ds_write_b128 v1, {v(r,4)} offset:{off}' if put else f'ds_read_b128 {v(r,4)}, v1 offset:{off}')
        off += 1024
SH_P = [(XAc, 4), (WAc, 4), (EA, 4), (EA+4, 4), (EA+8, 4)]
SH_L = [(EA, 4), (EA+4, 4), (EA+8, 4), (ES, 4), (ES+4, 4)]

def slot_addr(a):
    for k in range(4): a(f'v_add_u32 {v(XAr+k)}, {s(T6)}, {v(XAc+k)}')
    for w in range(2): a(f'v_add_u32 {v(WAr+w)}, {s(T6)}, {v(WAc+w)}')
    a(f's_add_u32 {s(T6)}, {s(T6)}, 0x8000\ns_and_b32 {s(T6)}, {s(T6)}, 0x1ffff')

def prologue(a, opt):
    a(f's_cmp_ge_u32 s2, 256\ns_cbranch_scc1 L_end')
    ld_srd(a, (sBX, sBW, sWS, sDBG, sAX, sAW))
    if a.diag:
        for k in range(2, 14): a(f's_mov_b32 {s(SSTAMP+k)}, 0')
    if a.diag or opt.get('padto'): a(f's_memrealtime {s(SSTAMP,2)}')
    if opt.get('ipf', 1):
        a.c('workgroups without a gemm tile pull this code towards L2 (one dword per 128-byte line)')
        a(f'''s_cmp_lt_u32 s2, 224
        s_cbranch_scc1 L_noipf
        s_getpc_b64 s[66:67]'''.replace('s[66:67]', 's[98:99]'))
        a.label('L_pc')
        a(f'''v_lshlrev_b32 v1, 7, v0
        v_cmp_gt_u32 vcc, L_end-L_pc, v1
        s_and_saveexec_b64 s[100:101], vcc
        s_cbranch_execz L_ipfx
        global_load_dword v254, v1, s[98:99]''')
        a.label('L_ipfx')
        a('s_mov_b64 exec, s[100:101]')
        a.label('L_noipf')
    a(f'v_lshrrev_b32 v1, 6, v0\nv_and_b32 v0, 63, v0\nv_readfirstlane_b32 {s(sWave)}, v1')
    a(f'''s_and_b32 {s(sXcd)}, s2, 7
    s_lshr_b32 {s(sLoc)}, s2, 3
    s_mul_i32 {s(sRT)}, {s(sLoc)}, 37
    s_lshr_b32 {s(sRT)}, {s(sRT)}, 8
    s_mul_i32 s3, {s(sRT)}, 7
    s_sub_u32 {s(sCT)}, {s(sLoc)}, s3
    s_add_u32 {s(sRot)}, {s(sCT)}, {s(sRT)}
    s_and_b32 s3, {s(sXcd)}, 1
    s_mul_i32 s3, s3, 7
    s_add_u32 {s(sCT)}, {s(sCT)}, s3
    s_lshr_b32 s3, {s(sXcd)}, 1
    s_lshl_b32 s3, s3, 2
    s_add_u32 {s(sRT)}, {s(sRT)}, s3
    s_and_b32 {s(sW4)}, {s(sWave)}, 3''')
    r = opt.get('rot', 0)
    if r == 2:
        a(f's_mul_i32 s3, {s(sRot)}, 86\ns_lshr_b32 s3, s3, 8\ns_mul_i32 s3, s3, 3\ns_sub_u32 {s(sRot)}, {s(sRot)}, s3\ns_mul_i32 {s(sRot)}, {s(sRot)}, 3')
    elif r == 4:
        a(f's_and_b32 {s(sRot)}, {s(sRot)}, 3')
    elif r == 3:
        a(f's_and_b32 {s(sRot)}, {s(sRot)}, 1\ns_lshl_b32 {s(sRot)}, {s(sRot)}, 2')
    su_ids2(a)
    su_loader(a)
    mk_srd(a, (sBX, sBW))
    a(f's_cmp_eq_u32 {s(sImg)}, 0\ns_cbranch_scc1 L_pset')
    vm = VM()
    a(f's_setprio 1\ns_waitcnt lgkmcnt(0)\ns_cmp_ge_u32 {s(sLoc)}, 28\ns_cbranch_scc1 L_lset')
    for j in range(2): issue_chunk(a, j); vm.add(j, 8)
    a('s_branch L_lset')
    p_setup(a, opt)
    a.lock = bool(opt.get('p1'))
    gemm(a, opt)
    a.lock = False
    p_path(a, opt)
    a.label('L_pidle0')
    prefetch_a(a)
    a(f's_waitcnt vmcnt(0) lgkmcnt(0)\ns_barrier\ns_barrier\nds_read_b32 {v(vTok)}, {v(vCnt)} offset:{C_TOK}\ns_branch L_ppath')
    a.label('L_lset')
    a.c('================= waves 4-7: load the B tile =================')
    ld_srd(a, (sPHI, sAWO, sBWO, sOUT))
    mk_srd(a, (sAX, sAW, sPHI, sAWO, sBWO, sOUT, sDBG, sWS))
    su_tab(a)
    su_acc(a)
    a('s_waitcnt lgkmcnt(0)')
    if opt.get('epil'):
        a(f'v_mov_b32 {v(EA+4)}, {OOB:#x}')
        for r in range(EA + 5, EA + 20): a(f'v_mov_b32 {v(r)}, {v(EA+4)}')
        su_epi(a)
        a('s_waitcnt lgkmcnt(0)')
    a.stamp(1)
    a(f's_cmp_lg_u32 {s(sIdle)}, 0\ns_cbranch_scc1 L_lidle')
    for j in range(9):
        a(f's_waitcnt vmcnt({vm.after(j)})')
        if opt.get('p1') == 1: a.stamp(3 + j)
        a('s_barrier')
        if opt.get('p1') == 2: a.stamp(3 + j)
        if opt.get('p1') == 2 and j == 0: a.cyc0()
        if opt.get('p1') == 2 and j == 8: a.cyc1()
        sw = opt.get('sw', 9)
        for c in ([j + 2] if j < sw else [j + 2, j + 3] if j == sw else [j + 3]):
            issue_chunk(a, c); vm.add(c, 8)
            if c == 9: token_issue(a); vm.add('tok')
        if j == 0: su_vgat(a)
        if j == 1: su_share(a, SH_P if not opt.get('epil') else SH_P[:2], False)
        if j == opt.get('epil', 99): su_share(a, SH_L, True, 1536)
        if j == max(2, opt.get('epil', 0)):
            a('s_waitcnt lgkmcnt(0)')
            for r in range(EA, EA + 12): a(f'v_add_u32 {v(r)}, {AOFF:#x}, {v(r)}')
        if j == 3: a_setup(a, 0); vm.add('phi', 10)
        if j in (4, 5, 6): a_setup(a, j - 3)
        if j == 7: assert vm.after('phi') >= 24; a_setup(a, 4)
    a(f's_waitcnt vmcnt({vm.after("tok")})')
    token_check(a)
    a(f'ds_write_b32 {v(vCnt)}, {v(vTok)} offset:{C_TOK}\ns_mov_b32 {s(T6)}, {(9 % 4) * 32768}\ns_waitcnt lgkmcnt(0)')
    a(f's_setprio {opt.get("prio", 1)}')
    a.stamp(2)
    if opt.get('p1'): a.lock = True
    slot_addr(a)
    a(f's_mov_b32 {s(T7)}, 9\ns_mov_b32 {s(T5)}, {8 if opt.get("cs") else 0}\ns_barrier')
    if sw == 9: issue_chunk(a, 11)
    a(f's_cmp_ge_u32 {s(sCT)}, 9\ns_cbranch_scc1 L_gSb\ns_branch L_gNb')
    a.label('L_lidle')
    a.c('four workgroups per group of 32 have no gemm tile')
    prefetch_a(a)
    a('s_waitcnt vmcnt(0)')
    prefetch_wo(a)
    a('s_waitcnt vmcnt(0)')
    su_vgat(a)
    for p in range(4): a_setup(a, p)
    token_issue(a)
    a('s_waitcnt vmcnt(0)')
    a_setup(a, 4)
    token_check(a)
    a(f's_barrier\nds_write_b32 {v(vCnt)}, {v(vTok)} offset:{C_TOK}\ns_setprio {opt.get("prio", 1)}\ns_waitcnt lgkmcnt(0)\ns_barrier\ns_branch L_achain')

def p_setup(a, opt):
    a.label('L_pset')
    a.c('================= waves 0-3: set-up =================')
    su_tab(a); su_gaddr(a)
    a(f'v_mov_b32 {v(EA+4)}, {OOB:#x}')
    for r in range(EA + 5, EA + 12): a(f'v_mov_b32 {v(r)}, {v(EA+4)}')
    a('s_waitcnt lgkmcnt(0)')
    ld_srd(a, (sOUT,))
    mk_srd(a, (sWS, sDBG, sAX, sAW, sOUT))
    su_token(a, 0)
    a(f's_cmp_lg_u32 {s(sIdle)}, 0\ns_cbranch_scc1 L_pidle0')
    a('s_waitcnt lgkmcnt(0)')
    if not opt.get('epil'): su_epi(a)
    su_share(a, SH_P if not opt.get('epil') else SH_P[:2], True)
    su_acc(a)
    su_token(a, 1)
    a(f's_waitcnt lgkmcnt(0)\ns_mov_b32 {s(T6)}, 0')
    a.stamp(1)
    if a.diag: a('s_mov_b32 s82, 0')

def gemm(a, opt):
    sSlot, sIt, sCnt = T6, T7, T5
    a.label('L_gemm')
    a.c('================= qkv gemm (waves 0-3: B, waves 4-7: A) =================')
    slot_addr(a)
    a(f's_mov_b32 {s(sIt)}, 9\ns_mov_b32 {s(sCnt)}, 0\ns_cmp_ge_u32 {s(sCT)}, 9\ns_cbranch_scc1 L_gS')
    def mid():
        lb = a.new('mid')
        a(f's_cmp_lg_u32 {s(sImg)}, 0\ns_cbranch_scc1 {lb}')
        if opt.get('cs'): lds_wait(a, 1, C_G, 4, sl=0)
        else: a('s_barrier')
        issue_chunk(a, 13)
        a.label(lb)
    def loop(o):
        def reads(k):
            F = FS[k]
            rd = lambda w, j: f'ds_read_b64_tr_b16 {v(F+8+4*w+2*j,2)}, {v(WAr+w)} offset:{4096*k+1024*j}'
            rx = lambda tt: f'ds_read_b128 {v(F+4*tt,4)}, {v(XAr+k)} offset:{4096*tt}'
            if opt.get('nord'): return ['s_nop 0'] * 6
            return [rd(0, 0), rd(0, 1), rx(0), rx(1), rd(1, 0), rd(1, 1)]
        def mms(k):
            m = []
            for w, nm in enumerate('ab'):
                for tt in range(2):
                    x, wf = FS[k]+4*tt, FS[k]+8+4*w
                    m.append(mfma_s(ACC[(nm, tt)], wf, x, ACC[(nm, tt)]) if o == 'N' else mfma_s(ACC[(nm, tt)], x, wf, ACC[(nm, tt)]))
            if opt.get('nomm'): m = ['s_nop 0'] * 4
            if opt.get('m16'):
                def two(x, i0):
                    g = re.match(r'\S+ v\[(\d+):\d+\], (\S+), (\S+), ', x); d = int(g.group(1))
                    return '\n'.join(f'v_mfma_f32_16x16x32_bf16 {v(d+4*i,4)}, {g.group(2)}, {g.group(3)}, {v(d+4*i,4)}' for i in (i0, i0+1))
                m = [two(x, 2*(k & 1)) for x in m]
            return m
        def grp(km, kr, wait=None, x1=None, x2=None):
            m = mms(km); r = reads(kr)
            if wait is not None: a(f's_waitcnt lgkmcnt({wait})')
            a(m[0]); a(r[0]); a(r[1]); a(r[2]); a(m[1]); a(r[3]); a(r[4]); a(r[5])
            if x1: x1()
            a(m[2])
            if x2: x2()
            a(m[3])
        a.label(f'L_g{o}')
        if opt.get('p3'): a.lstamp(s(sIt), 16)
        if opt.get('cs'): a(f's_cmp_lg_u32 {s(sCnt)}, 0\ns_cbranch_scc1 L_g{o}c')
        a('s_barrier')
        a.label(f'L_g{o}b')
        if opt.get('p3'): a.lstamp(s(sIt), 32)
        def book():
            w8 = a.new('w8')
            a(f's_cmp_eq_u32 {s(sIt)}, 9\ns_cbranch_scc1 {w8}\ns_waitcnt vmcnt(0)')
            a.label(w8)
            if opt.get('lp0', 1):
                lo = a.new('lo')
                a(f's_cmp_lg_u32 {s(sIt)}, 2\ns_cbranch_scc1 {lo}\ns_setprio 0')
                a.label(lo)
            a(f's_sub_u32 {s(sIt)}, {s(sIt)}, 1\ns_cmp_lg_u32 {s(sIt)}, 0')
        grp(2, 0); grp(3, 1); grp(0, 2, 6); grp(1, 3, 6, lambda: slot_addr(a), book)
        a(f's_waitcnt vmcnt(8) lgkmcnt(0)\ns_cbranch_scc1 L_g{o}')
        if opt.get('cs'):
            def cs_block(o=o):
                a.label(f'L_g{o}c')
                lds_arrive(a, C_G)
                a(f's_sub_u32 {s(sCnt)}, {s(sCnt)}, 4\ns_sub_u32 {s(T1)}, 8, {s(sCnt)}')
                lds_wait(a, 1, C_G, s(T1), sl=0)
                a(f's_branch L_g{o}b')
            a.late.append(cs_block)
        m = mms(2) + mms(3)
        a(f's_cmp_lg_u32 {s(sImg)}, 0\ns_cbranch_scc1 L_gf{o}\ns_barrier\ns_setprio 2\nds_read_b32 {v(vTok)}, {v(vCnt)} offset:{C_TOK}')
        if opt.get('epil'): su_share(a, SH_L, False, 1536)
        issue_chunk(a, 12)
        a.label(f'L_gf{o}')
        for i in (0, 1, 4, 5, 2, 3, 6, 7): a(m[i])
        if opt.get('lp0', 1):
            lo = a.new('lo')
            a(f's_cmp_eq_u32 {s(sImg)}, 0\ns_cbranch_scc1 {lo}\ns_setprio 1')
            a.label(lo)
        if opt.get('epil'): a('s_waitcnt lgkmcnt(0)')
        a.stamp(3)
    def scale(nm, sc, n):
        lb = a.new('nosc')
        a(f's_cmp_eq_u32 {s(sDoSc)}, 0\ns_cbranch_scc1 {lb}')
        for tt in range(2):
            for i in range(16): a(f'v_mul_f32 {v(ACC[(nm, tt)]+i)}, {v(sc + i//n)}, {v(ACC[(nm, tt)]+i)}')
        a.label(lb)
    def epi_main(u):
        nm = 'ab'[u]
        scale(nm, ES + 2*u, 8)
        for tt in range(2):
            for qp in range(2):
                r = ACC[(nm, tt)] + 8*qp
                cvt8(a, r, r)
                a(f'buffer_store_dwordx4 {v(r,4)}, {v(EA + 4*u + 2*qp + tt)}, {srd(sWS)}, 0 offen sc1')
    def epi_misc():
        scale('b', ES + 2, 4)
        for tt in range(2):
            for h in range(2):
                r = ACC[('b', tt)] + 8*h
                cvt8(a, r, r)
                for q in range(2): a(f'buffer_store_dwordx2 {v(r+2*q,2)}, {v(EA + 4 + 2*(2*h+q) + tt)}, {srd(sWS)}, 0 offen sc1')
    def epi_v(u):
        nm = 'ab'[u]
        for tt in range(2):
            for f in range(2):
                r = ACC[(nm, tt)] + 8*f
                cvt8(a, r, r)
                a(f'buffer_store_dwordx4 {v(r,4)}, {v(EA + 2*u + f)}, {srd(sWS)}, 0 offen offset:{REC*tt} sc1')
    loop('N')
    a.nop(6); epi_main(0); mid()
    a(f's_cmp_lg_u32 {s(sMG)}, 0\ns_cbranch_scc1 L_emisc')
    epi_main(1); a('s_branch L_epi_done')
    a.label('L_emisc')
    epi_misc(); a('s_branch L_epi_done')
    loop('S')
    for i in range(4): a(f'v_mov_b32 {v(4+i)}, 0x3f803f80')
    a.nop(4); epi_v(0); mid(); epi_v(1)
    a(f's_cmp_lg_u32 {s(sMG)}, 0\ns_cbranch_scc1 L_epi_done\nbuffer_store_dwordx4 v[4:7], {v(EA+4)}, {srd(sWS)}, 0 offen sc1')
    a.label('L_epi_done')
    a.stamp(4)
    a(f's_cmp_lg_u32 {s(sImg)}, 0\ns_cbranch_scc1 L_achain')
    a.label('L_ppath')

def op_addr(a, vm, vm2, vl, vl2, vt, skq_bytes):
    t0, t1, t2, t3, t4 = vt, vt+1, vt+2, vt+3, vt+4
    a(f'''v_bfe_u32 {v(t0)}, v0, 2, 2
    v_lshrrev_b32 {v(t1)}, 5, v0
    v_and_b32 {v(t2)}, 3, v0
    v_bfe_u32 {v(t3)}, v0, 4, 1
    v_lshl_add_u32 {v(t2)}, {v(t3)}, 2, {v(t2)}
    v_lshl_add_u32 {v(t3)}, {v(t1)}, 2, {v(t0)}
    v_mul_u32_u24 {v(t3)}, 144, {v(t3)}
    v_add_u32 {v(t3)}, {s(skq_bytes)}, {v(t3)}
    v_lshl_add_u32 {v(vm)}, {v(t2)}, 3, {v(t3)}
    v_and_b32 {v(t4)}, 1, v0
    v_lshlrev_b32 {v(t4)}, 3, {v(t4)}
    v_add_u32 {v(t4)}, 128, {v(t4)}
    v_add_u32 {v(vm2)}, {v(t4)}, {v(t3)}
    v_mul_u32_u24 {v(t1)}, 72, {v(t1)}
    v_and_b32 {v(t3)}, 2, {v(t0)}
    v_and_b32 {v(t0)}, 1, {v(t0)}
    v_add3_u32 {v(t1)}, {v(t1)}, {v(t3)}, {v(t0)}
    v_add_u32 {v(t1)}, 16, {v(t1)}
    v_mul_u32_u24 {v(t1)}, 144, {v(t1)}
    v_add_u32 {v(t1)}, {s(skq_bytes)}, {v(t1)}
    v_lshl_add_u32 {v(vl)}, {v(t2)}, 3, {v(t1)}
    v_add_u32 {v(vl2)}, {v(t4)}, {v(t1)}''')

def op_w_reads(W, vm, vm2, vl, vl2, st):
    r = []
    for T in range(3):
        for j in range(2):
            if st < 8:
                off = (18*st + 8*j + (2 if st & 1 else 0)) * 144; base = vm if T < 2 else vm2
            else:
                off = 36*j*144; base = vl if T < 2 else vl2
            r.append(f'ds_read_b64_tr_b16 {v(W + 12*st + 4*T + 2*j, 2)}, {v(base)} offset:{off + (64 if T == 1 else 0)}')
    return '\n'.join(r)
def op_read_w(a, W, vm, vm2, vl, vl2):
    for st in range(9): a(op_w_reads(W, vm, vm2, vl, vl2, st))

def op_load_o(a, O, vo16, vol, sM, sM2, sL, thr=False):
    for i in range(8):
        a(f'buffer_load_dwordx4 {v(O+4*i,4)}, {v(vo16)}, {srd(sWS)}, {s(sM if i < 4 else sM2)} offen offset:{1024*(i&3)} sc1')
        if thr and i % 4 == 3: a('s_waitcnt vmcnt(0)')
    for i in range(4):
        a(f'buffer_load_dword {v(O+32+i)}, {v(vol)}, {srd(sWS)}, {s(sL)} offen offset:{128*i} sc1')

def op_mfma(a, AC, W, O, first):
    for st in range(9):
        a(f's_waitcnt vmcnt({11 - st if st < 8 else 0})')
        for T in range(3):
            mfma(a, AC + 16*T, W + 12*st + 4*T, O + 4*st, None if (first and st == 0) else AC + 16*T)

def issue_grp(a, sr, kq, slot, P):
    skip = a.new('r8')
    if P == 2: a(f's_cmp_ge_u32 {s(sW4)}, 3\ns_cbranch_scc1 {skip}')
    a(f'''s_lshl_b32 s3, {s(sW4)}, 10
    s_add_u32 m0, s3, {slot + 9*1024*P}
    s_add_u32 {s(sFree)}, {s(sWB)}, {(144*kq + 64*P)*1152}
    buffer_load_dwordx4 {v(vWO)}, {srd(sr)}, {s(sFree)} offen lds''')
    if P < 2:
        a(f'''s_add_u32 m0, s3, {slot + 9*1024*P + 4096}
        s_cmp_lg_u32 {s(sW4)}, {2*(kq & 1) + P}
        buffer_load_dwordx4 {v(vWO+1)}, {srd(sr)}, {s(sFree)} offen lds
        s_cbranch_scc1 {skip}
        s_mov_b32 m0, {slot + 9*1024*P + 8192}
        s_nop 0
        buffer_load_dwordx4 {v(vWO+2)}, {srd(sr)}, {s(sFree)} offen lds''')
    a.label(skip)
def issue_blk(a, sr, kq, slot):
    for P in range(3):
        issue_grp(a, sr, kq, slot, P)
        if OPT.get('thr', 3): a(f's_waitcnt vmcnt({OPT.get("thr", 3) - 1})')

def p_path(a, opt):
    vK, vKL, vV0, vV1 = 8, 10, 12, 14
    Qr, QLr, M = 16, 32, 36
    Kb, KLb, Vb, Sb, Ob = 40, 56, 64, 96, 160
    sCur, sNext, sLo, sHi, sN = T2, T3, T4, T5, T6
    sQm, sQl, sChk = 56, 57, 58
    sLo2, sHi2, sCur2 = 60, 61, 62
    a.c('================= waves 0-3: load the rest of the A tile, publish B =================')
    vm = VM()
    vm.add(12, 8); vm.add('sa', 4); vm.add(13, 8); vm.add('sb', 4)
    su_vgat(a)
    kl_const(a, T0, sH)
    a(f'''v_and_b32 v1, 31, v0
    v_mov_b32 {v(vK)}, {v(v16)}
    v_lshl_add_u32 {v(vKL)}, v1, 3, {s(T0)}
    v_mov_b32 {v(vV0)}, {v(vVf)}
    v_mov_b32 {v(vV1)}, {v(vVf+1)}''')
    for r in (vK, vKL, vV0, vV1): a(f'v_add_u32 {v(r+1)}, {2*REC}, {v(r)}')
    a.c('flags this wave waits for: lanes 0-15 k, 16-31 v (8 row tiles x first/last column tile), 32.. q')
    a(f'''v_lshrrev_b32 v2, 4, v0
    v_add_u32 v2, 1, v2
    v_cmp_gt_u32 vcc, 32, v0
    v_bfe_u32 v3, v0, 3, 1
    v_and_b32 v4, 1, v0
    v_cndmask_b32 v2, 0, v2, vcc
    v_cndmask_b32 v3, v4, v3, vcc
    s_lshl_b32 {s(T2)}, {s(sMG)}, 3
    v_and_b32 v4, 7, v0
    v_add_u32 v4, {s(T2)}, v4
    s_lshl_b32 {s(T3)}, {s(sQB)}, 1
    s_add_u32 {s(T3)}, {s(T3)}, {s(sTH)}
    v_mov_b32 v5, {s(T3)}
    v_cndmask_b32 v4, v5, v4, vcc''')
    producer_ct(a, 5, 2, 3, sH, 6)
    a(f'v_lshl_add_u32 v5, v5, 4, v4\nv_lshlrev_b32 v5, 7, v5\nv_add_u32 {v(vPoll)}, {FL1:#x}, v5\nv_lshlrev_b32 v7, 3, v0')
    for r in (QLr+1, QLr+3, KLb+1, KLb+3, KLb+5, KLb+7): a(f'v_mov_b32 {v(r)}, 0')
    a(f'''s_lshl_b32 {s(T0)}, {s(sH)}, 6
    s_lshl_b32 {s(T1)}, {s(sMG)}, 5
    s_add_u32 {s(T0)}, {s(T0)}, {s(T1)}
    s_mul_i32 {s(sLo)}, {s(T0)}, {REC}
    s_add_u32 {s(sLo)}, {s(sLo)}, {KV:#x}
    s_add_u32 {s(sHi)}, {s(sLo)}, {32*REC}
    s_lshl_b32 {s(T0)}, {s(sQB)}, 1
    s_add_u32 {s(T0)}, {s(T0)}, {s(sTH)}
    s_lshl_b32 {s(T1)}, {s(sH)}, 4
    s_add_u32 {s(T0)}, {s(T0)}, {s(T1)}
    s_lshl_b32 {s(sQm)}, {s(T0)}, 12
    s_lshr_b32 {s(T1)}, {s(sH)}, 1
    s_lshl_b32 {s(T1)}, {s(T1)}, 4
    s_add_u32 {s(T1)}, {s(T1)}, {s(T3)}
    s_lshl_b32 {s(sQl)}, {s(T1)}, 10
    s_and_b32 {s(T1)}, {s(sH)}, 1
    s_lshl_b32 {s(T1)}, {s(T1)}, 2
    s_add_u32 {s(sQl)}, {s(sQl)}, {s(T1)}
    s_add_u32 {s(sQl)}, {s(sQl)}, {QL:#x}''')
    flag_addr(a, T1, sCT, sRT, 4, FL1)
    a('s_waitcnt lgkmcnt(0)')
    a.c('================= waves 0-3: attention =================')
    def kv_loads(b, sreg):
        o = REC * (b & 1); u = b >> 1
        return [f'buffer_load_dwordx4 {v(Kb+4*b,4)}, {v(vK+u)}, {srd(sWS)}, {s(sreg)} offen offset:{o} sc1',
                f'buffer_load_dword {v(KLb+2*b)}, {v(vKL+u)}, {srd(sWS)}, {s(sreg)} offen offset:{o} sc1',
                f'buffer_load_dwordx4 {v(Vb+8*b,4)}, {v(vV0+u)}, {srd(sWS)}, {s(sreg)} offen offset:{o} sc1',
                f'buffer_load_dwordx4 {v(Vb+8*b+4,4)}, {v(vV1+u)}, {srd(sWS)}, {s(sreg)} offen offset:{o} sc1']
    def start_groups():
        a(f'''s_mul_i32 {s(sCur)}, {s(sQB)}, {4*REC}
        s_add_u32 {s(sCur)}, {s(sCur)}, {s(sLo)}
        s_add_u32 {s(sNext)}, {s(sCur)}, {4*REC}
        s_cmp_eq_u32 {s(sNext)}, {s(sHi)}
        s_cselect_b32 {s(sNext)}, {s(sLo)}, {s(sNext)}
        s_mov_b32 {s(sN)}, 8''')
    adv_groups = f'''s_mov_b32 {s(sCur)}, {s(sNext)}
        s_add_u32 {s(sNext)}, {s(sNext)}, {4*REC}
        s_cmp_eq_u32 {s(sNext)}, {s(sHi)}
        s_cselect_b32 {s(sNext)}, {s(sLo)}, {s(sNext)}
        s_cmp_eq_u32 {s(sN)}, 2
        s_cselect_b32 {s(sNext)}, {OOB:#x}, {s(sNext)}'''
    def qk(N, kb, qp):
        return (mfma_s(N, KLb+2*kb, QLr+2*qp, None, '2b'), mfma_s(N, Kb+4*kb, Qr+8*qp, N), mfma_s(N+16, Kb+4*kb, Qr+8*qp+4, N+16))
    def step(qp, kb, ins, sub):
        S = Sb + 32*qp; N = Sb + 32*(1-qp)
        nkb = kb if qp == 0 else (kb+1) % 4
        pkb = (kb-1) % 4 if qp == 0 else kb
        QLm, Q0m, Q1m = qk(N, nkb, 1-qp)
        def E(x, y):
            for i in range(x, y):
                if sub: a(f'v_sub_f32 {v(S+i)}, {v(S+i)}, {v(M + 2*qp + i//16)}')
                a(f'v_exp_f32 {v(S+i)}, {v(S+i)}')
        def C(x, y):
            for j in range(x, y):
                b = S + 16*(j//8); k = j % 8
                if opt.get('perm'): a(f'v_perm_b32 {v(b + (k % 4) + 8*(k//4))}, {v(b+2*k+1)}, {v(b+2*k)}, {s(59)}')
                else: a(f'v_cvt_pk_bf16_f32 {v(b + (k % 4) + 8*(k//4))}, {v(b+2*k)}, {v(b+2*k+1)}')
        def PV(t, f):
            o = Ob + 32*qp + 16*t
            mfma(a, o, Vb + 8*kb + 4*f, S + 16*t + 8*f, o)
        def I(k):
            if k in ins: a(ins[k])
        E(0, 2)
        o = Ob + 32*(1-qp) + 16
        mfma(a, o, Vb + 8*pkb + 4, N + 24, o); I('p')
        if opt.get('x8'):
            L0 = mfma_s(N, KLb+2*nkb, QLr+2*(1-qp), None, '8'); L1 = mfma_s(N+16, KLb+2*nkb, QLr+2*(1-qp), None, '8')
            E(2, 5); a(L0); I('q'); E(5, 9); a(L1); C(0, 4); E(9, 11); PV(0, 0); I('m0'); E(11, 17); C(4, 6); a(Q0m); I('m1')
        elif opt.get('noql'):
            Q0m = mfma_s(N, Kb+4*nkb, Qr+8*(1-qp), None); Q1m = mfma_s(N+16, Kb+4*nkb, Qr+8*(1-qp)+4, None)
            E(2, 5); I('q'); E(5, 9); C(0, 4); E(9, 11); PV(0, 0); I('m0'); E(11, 17); C(4, 6); a(Q0m); I('m1')
        else:
            E(2, 5); a(QLm); I('q'); E(5, 9); C(0, 4); E(9, 11); PV(0, 0); I('m0'); E(11, 17); C(4, 6); a(Q0m); I('m1')
        C(6, 8); E(17, 19); PV(0, 1); I('m2'); E(19, 25); C(8, 12); a(Q1m); I('m3'); E(25, 28); PV(1, 0); I('m4'); E(28, 32); C(12, 16)
    def attn_init_a():
        for r in range(Ob+16, Ob+64): a(f'v_mov_b32 {v(r)}, 0')
        for r in range(Vb+28, Vb+32): a(f'v_mov_b32 {v(r)}, 0')
    def attn_init_b():
        for r in range(Ob, Ob+16): a(f'v_mov_b32 {v(r)}, 0')
        for r in range(Sb+56, Sb+60): a(f'v_mov_b32 {v(r)}, 0')
    def attn_init(): attn_init_a(); attn_init_b()
    def attn_loop(name, sub):
        a(f's_waitcnt vmcnt({12 if opt.get("deep") else 8})')
        m = qk(Sb, 0, 0); a(m[0]); a.nop(18); a(m[1]); a(m[2]); a.nop(10); a('s_setprio 0')
        if not sub: a.stamp(7); a.cyc0()
        a('.p2align 6')
        a.label(name)
        for t in range(4):
            ld = kv_loads((t+3) % 4, sCur if t == 0 else sNext)
            lp = opt.get('ldp', 0)
            if opt.get('xl') == 1 and t & 1: ld = [ld[0], '', ld[2], ld[3]]
            if opt.get('xl') == 2: ld = ['', '', '', '']
            if opt.get('xl') == 3: ld = [x.replace(' sc1', '') for x in ld]
            J = '\n'.join
            ins0, ins = [({'q': ld[0], 'm0': ld[1], 'm1': ld[2], 'm2': ld[3]}, {}),
                         ({'q': J(ld)}, {}),
                         ({'q': J(ld[:2]), 'm1': J(ld[2:])}, {}),
                         ({'q': J(ld[:2])}, {'q': J(ld[2:])}),
                         ({'q': ld[0], 'm1': ld[1]}, {'q': ld[2], 'm3': ld[3]}),
                         ({'m0': ld[0], 'm2': ld[1], 'm4': ld[2]}, {'m2': ld[3]})][lp]
            if opt.get('deep'):
                ins0 = {'q': J(ld[2:]) + '\ns_waitcnt vmcnt(12)'}
                ins = {'q': J(kv_loads(t, sNext)[:2])}
            step(0, t, ins0, sub)
            ins['p'] = f's_waitcnt vmcnt({10 if opt.get("deep") else 8 - sum(len(x.split(chr(10))) for x in ins.values())})'
            if t == 3:
                ins['m3'] = ins.get('m3', '') + '\n' + adv_groups
                ins['m4'] = f's_sub_u32 {s(sN)}, {s(sN)}, 1\ns_cmp_lg_u32 {s(sN)}, 0'
            step(1, t, ins, sub)
        if opt.get('p5'):
            a(f's_memtime s[94:95]\ns_waitcnt lgkmcnt(0)\ns_mov_b32 m0, {s(sN)}\ns_sub_u32 s94, s94, s93\nv_writelane_b32 v254, s94, m0\ns_cmp_lg_u32 {s(sN)}, 0')
        a(f's_cbranch_scc1 {name}')
        a.nop(1)
        mfma(a, Ob + 48, Vb + 28, Sb + 56, Ob + 48)
    def first_loads():
        for t in range(4): a(f'buffer_load_dwordx4 {v(Qr+4*t,4)}, {v(v16)}, {srd(sWS)}, {s(sQm)} offen offset:{1024*t} sc1')
        for j in range(2): a(f'buffer_load_dword {v(QLr+2*j)}, v7, {srd(sWS)}, {s(sQl)} offen offset:{512*j} sc1')
        for b in range(3):
            for x in kv_loads(b, sCur): a(x)
        if opt.get('deep'):
            for x in kv_loads(3, sCur)[:2]: a(x)
    a(f'v_readfirstlane_b32 {s(sTok)}, {v(vTok)}\ns_cmp_lg_u32 {s(sIdle)}, 0\ns_cbranch_scc1 L_pidle')
    if opt.get('cs'): lds_wait(a, 2, C_G, 8, sl=0)
    else: a('s_barrier')
    issue_chunk(a, 14); vm.add(14, 8)
    start_groups(); attn_init_a()
    for j in range(12, 16):
        sig = opt.get('sig', 13)
        a(f's_waitcnt vmcnt({min(vm.after(j), vm.after("sb")) if j == sig else vm.after(j)})')
        if j == sig:
            last_signals(a, 2, C_F1, 4, T1)
            a.stamp(5)
        a('s_barrier')
        if j == 14: a(f'buffer_load_dword v2, {v(vPoll)}, {srd(sWS)}, 0 offen sc1'); vm.add('fl')
        if j + 3 <= 17: issue_chunk(a, j + 3); vm.add(j + 3, 8)
        if j == sig: attn_init_b()
    a(f's_waitcnt vmcnt(8)\nv_cmp_ne_u32 vcc, {s(sTok)}, v2\ns_cbranch_vccnz L_late')
    first_loads()
    a(f's_barrier\ns_waitcnt vmcnt({20 if opt.get("deep") else 18})\ns_barrier\ns_branch L_go')
    a.label('L_late')
    a('s_barrier\ns_waitcnt vmcnt(0)\ns_barrier')
    if a.diag: a('s_mov_b32 s82, -1')
    a('s_branch L_poll')
    a.label('L_pidle')
    start_groups(); attn_init()
    a.label('L_poll')
    poll_flags(a, vPoll, 2)
    first_loads()
    a.label('L_go')
    a('s_mov_b32 s59, 0x07060302')
    a.stamp(6)
    attn_loop('L_attn', False)
    a.cyc1()
    a.stamp(8)
    a.nopk = bool(opt.get('nopk', 1))
    a(f'''s_setprio 2
    s_mul_i32 {s(T0)}, {s(sWave)}, 6144
    v_add_u32 v1, {s(T0)}, {v(v16)}
    s_xor_b32 {s(T0)}, {s(sWave)}, 2
    s_mul_i32 {s(T0)}, {s(T0)}, 6144
    v_add_u32 v6, {s(T0)}, {v(v16)}
    s_lshl_b32 {s(T0)}, {s(sQB)}, 3
    s_lshl_b32 {s(T1)}, {s(sTH)}, 2
    s_add_u32 {s(T0)}, {s(T0)}, {s(T1)}
    s_lshl_b32 {s(T1)}, {s(sMG)}, 1
    s_add_u32 {s(T0)}, {s(T0)}, {s(T1)}
    s_cmp_eq_u32 {s(sMG)}, 0
    s_cbranch_scc1 L_red0''')
    def red_write(o0):
        for t in range(2):
            o = o0 + 16*t
            a(f'ds_write_b128 v1, {v(o,4)} offset:{3072*t}\nds_write_b128 v1, {v(o+4,4)} offset:{3072*t+1024}\nds_write_b96 v1, {v(o+8,3)} offset:{3072*t+2048}')
    a.c('exchange partial sums with the wave that did the other half of the keys; keep query pair kh in Ob..Ob+31')
    red_write(Ob)
    for t in range(2):
        for i in range(0, 12, 2): a(f'v_pk_mov_b32 {v(Ob+16*t+i,2)}, {v(Ob+32+16*t+i,2)}, {v(Ob+32+16*t+i,2)} op_sel:[0,1]')
    a('s_branch L_red1')
    a.label('L_red0')
    red_write(Ob + 32)
    a.label('L_red1')
    a(f's_lshr_b32 {s(T6)}, {s(T0)}, 1')
    flag_addr(a, T1, T6, sH, 5, FL4)
    o_addr(a, sH, OBM, OBL)
    a(f's_mov_b32 {s(T0)}, {f2u(2.0**-64):#x}\ns_mov_b32 {s(T6)}, {f2u(2.0**64):#x}\ns_mov_b32 {s(T7)}, {f2u(2.0**120):#x}')
    if opt.get('p4'): a.stamp(3)
    a('s_waitcnt vmcnt(0) lgkmcnt(0)')
    if opt.get('p4'): a.stamp(4)
    a('s_barrier')
    if opt.get('p4'): a.stamp(5)
    for part in range(3):
        for t in range(2):
            o = Ob + 32 + 16*t
            a([f'ds_read_b96 {v(o+8,3)}, v6 offset:{3072*t+2048}', f'ds_read_b128 {v(o,4)}, v6 offset:{3072*t}', f'ds_read_b128 {v(o+4,4)}, v6 offset:{3072*t+1024}'][part])
    O2 = [Ob, Ob + 16]; P2 = [Ob + 32, Ob + 48]
    a.c('the softmax above used 0 in place of the row max: safe only while the sums stay finite and well away from 0')
    a('s_waitcnt lgkmcnt(4)')
    for t in range(2): a(f'v_add_f32 {v(O2[t]+10)}, {v(O2[t]+10)}, {v(P2[t]+10)}')
    for t in range(2): a(f'v_pk_add_f32 {v(O2[t]+8,2)}, {v(O2[t]+8,2)}, {v(P2[t]+8,2)}')
    a(f'''v_min_f32 v2, {v(O2[0]+10)}, {v(O2[1]+10)}
    v_add_f32 v3, {v(O2[0]+10)}, {v(O2[1]+10)}
    v_cmp_nle_f32 {s(sChk,2)}, {s(T0)}, v2
    v_cmp_nge_f32 vcc, {s(T6)}, v3
    s_waitcnt lgkmcnt(2)''')
    for i in (0, 2):
        for t in range(2): a(f'v_pk_add_f32 {v(O2[t]+i,2)}, {v(O2[t]+i,2)}, {v(P2[t]+i,2)}')
    a(f's_or_b64 {s(sChk,2)}, {s(sChk,2)}, vcc\ns_waitcnt lgkmcnt(0)')
    for i in (4, 6):
        for t in range(2): a(f'v_pk_add_f32 {v(O2[t]+i,2)}, {v(O2[t]+i,2)}, {v(P2[t]+i,2)}')
    a(f'''v_pk_add_f32 v[2:3], {v(O2[0],2)}, {v(O2[1],2)}
    v_pk_add_f32 v[4:5], {v(O2[0]+2,2)}, {v(O2[1]+2,2)}
    v_pk_add_f32 v[8:9], {v(O2[0]+4,2)}, {v(O2[1]+4,2)}
    v_pk_add_f32 v[10:11], {v(O2[0]+6,2)}, {v(O2[1]+6,2)}
    v_pk_add_f32 v[12:13], {v(O2[0]+8,2)}, {v(O2[1]+8,2)}
    v_pk_add_f32 v[2:3], v[2:3], v[4:5]
    v_pk_add_f32 v[8:9], v[8:9], v[10:11]
    v_pk_add_f32 v[2:3], v[2:3], v[12:13]
    v_pk_add_f32 v[2:3], v[2:3], v[8:9]
    v_add_f32 v2, v2, v3
    v_cmp_ngt_f32 vcc, {s(T7)}, abs(v2)
    s_or_b64 {s(sChk,2)}, {s(sChk,2)}, vcc
    s_cbranch_scc1 L_fallback''')
    a.label('L_norm')
    o_publish(a, O2, P2, False)
    a.stamp(9)
    wave_signals(a, 2, T1)
    if opt.get('p4'): a.stamp(2)
    a('s_setprio 0')
    final_setup(a)
    flag_ld(a)
    final_prep(a)
    a('s_branch L_final')

    a.nopk = False
    a.label('L_fallback')
    a.c('the stand-in was unsafe for one of this wave\'s rows: redo its two query tiles over all keys with the true row max')
    vK2, vKL2 = 2, 3
    kl_const(a, sCur2, sH)
    a(f'''v_and_b32 v3, 31, v0
    v_lshl_add_u32 v3, v3, 3, {s(sCur2)}
    s_mul_i32 {s(sLo2)}, {s(sH)}, {HREC}
    s_add_u32 {s(sLo2)}, {s(sLo2)}, {KV:#x}
    s_add_u32 {s(sHi2)}, {s(sLo2)}, {HREC}
    s_cmp_eq_u32 {s(sMG)}, 0
    s_cbranch_scc1 L_fb0''')
    for i in range(8): a(f'v_mov_b32 {v(Qr+i)}, {v(Qr+8+i)}')
    a(f'v_mov_b32 {v(QLr)}, {v(QLr+2)}')
    a.label('L_fb0')
    for t in range(2): a(f'v_mov_b32 {v(M+t)}, 0xff800000')
    for r in range(Ob, Ob + 32): a(f'v_mov_b32 {v(r)}, 0')
    for ps in range(2):
        a(f's_mov_b32 {s(sCur2)}, {s(sLo2)}')
        a.label(f'L_fbloop{ps}')
        a(f'buffer_load_dwordx4 {v(Kb,4)}, {v(v16)}, {srd(sWS)}, {s(sCur2)} offen sc1\nbuffer_load_dword {v(KLb)}, v3, {srd(sWS)}, {s(sCur2)} offen sc1')
        if ps:
            for f in range(2): a(f'buffer_load_dwordx4 {v(Vb+4*f,4)}, {v(vVf+f)}, {srd(sWS)}, {s(sCur2)} offen sc1')
        a('s_waitcnt vmcnt(0)')
        m = qk(Sb, 0, 0); a(m[0]); a.nop(18); a(m[1]); a(m[2]); a.nop(12)
        if ps == 0:
            for t in range(2):
                for i in range(0, 16, 2): a(f'v_max3_f32 {v(M+t)}, {v(Sb+16*t+i)}, {v(Sb+16*t+i+1)}, {v(M+t)}')
        else:
            for i in range(32): a(f'v_sub_f32 {v(Sb+i)}, {v(Sb+i)}, {v(M + i//16)}')
            for i in range(32): a(f'v_exp_f32 {v(Sb+i)}, {v(Sb+i)}')
            for q in range(4): cvt8(a, Sb + 8*q, Sb + 8*q)
            a.nop(1)
            for t in range(2):
                for f in range(2): mfma(a, Ob + 16*t, Vb + 4*f, Sb + 16*t + 8*f, Ob + 16*t)
        a(f's_add_u32 {s(sCur2)}, {s(sCur2)}, {REC}\ns_cmp_lg_u32 {s(sCur2)}, {s(sHi2)}\ns_cbranch_scc1 L_fbloop{ps}')
        if ps == 0:
            for t in range(2): a(f'v_mov_b32 {v(Sb+t)}, {v(M+t)}')
            a.nop(2)
            for t in range(2): a(f'v_permlane32_swap_b32 {v(Sb+t)}, {v(M+t)}')
            a.nop(1)
            for t in range(2): a(f'v_max_f32 {v(M+t)}, {v(M+t)}, {v(Sb+t)}')
    a.nop(12)
    a('s_branch L_norm')

def o_addr(a, shead, M_, L_):
    a(f'''s_lshl_b32 {s(T0)}, {s(T0)}, 5
    s_add_u32 {s(T0)}, {s(T0)}, {s(shead)}
    s_lshl_b32 {s(T2)}, {s(T0)}, 10
    s_add_u32 {s(T2)}, {s(T2)}, {M_:#x}
    s_add_u32 {s(T3)}, {s(T2)}, 0x8000
    s_lshl_b32 {s(T4)}, {s(T0)}, 7
    s_add_u32 {s(T4)}, {s(T4)}, {L_:#x}
    s_add_u32 {s(T5)}, {s(T4)}, 0x1000''')

def o_publish(a, O, P, eps):
    for o in O:
        if eps: a(f'v_add_f32 {v(o+10)}, {f2u(1e-6):#x}, {v(o+10)}')
    for o in O: a(f'v_rcp_f32 {v(o+10)}, {v(o+10)}')
    for t in range(2):
        o, p = O[t], P[t]
        if t == 0: a('s_nop 0')
        for i in range(0, 10, 2): a(f'v_pk_mul_f32 {v(o+i,2)}, {v(o+i,2)}, {v(o+10,2)} op_sel_hi:[1,0]')
        cvt8(a, o, p)
        a(f'buffer_store_dwordx4 {v(p,4)}, {v(v16)}, {srd(sWS)}, {s(T2+t)} offen sc1')
        a(f'v_cvt_pk_bf16_f32 {v(p+4)}, {v(o+8)}, {v(o+9)}')
    a('s_mov_b32 exec_hi, 0')
    for t in range(2): a(f'buffer_store_dword {v(P[t]+4)}, {v(vQL)}, {srd(sWS)}, {s(T4+t)} offen sc1')
    a('s_mov_b32 exec_hi, -1')

FW, FO, FA = 16, 124, 160
vFm, vFm2, vFl, vFl2 = 8, 9, 10, 11
vFlg, vFol, vWr, vRd, vOut = 250, 251, 252, 253, 255
ACA = [212, 228, 196]
QS = 1088; WSTR = 9*QS; ARED = WS0; BRED = WS0 + 2*WBLK
sM, sM2, sL, sA, sB_, sO = T2, T3, T4, 56, 57, T7
def piece_addr(a, vp, rd, ou):
    a(f'''v_mul_u32_u24 v2, 7282, {v(vp)}
    v_lshrrev_b32 v2, 16, v2
    v_mul_u32_u24 v3, 9, v2
    v_sub_u32 v3, {v(vp)}, v3
    v_mul_u32_u24 {v(ou)}, 2304, v2
    v_lshl_add_u32 {v(ou)}, v3, 4, {v(ou)}
    v_mul_u32_u24 v3, {QS}, v3
    v_lshrrev_b32 {v(rd)}, 5, v2
    v_mul_u32_u24 {v(rd)}, {WSTR}, {v(rd)}
    v_and_b32 v2, 31, v2
    v_lshl_add_u32 v3, v2, 4, v3
    v_add_u32 {v(rd)}, {v(rd)}, v3''')
def final_setup(a):
    a(f'''v_and_b32 v1, 31, v0
    v_lshrrev_b32 v2, 5, v0
    v_lshlrev_b32 v3, 2, v1
    v_lshl_add_u32 {v(vFol)}, v2, 9, v3
    s_lshl_b32 {s(T1)}, {s(sOT)}, 1
    s_add_u32 {s(T5)}, {s(sTH)}, {s(T1)}
    s_lshl_b32 {s(T0)}, {s(T5)}, 5
    s_lshr_b32 {s(T6)}, {s(sWave)}, 1
    s_lshl_b32 {s(T1)}, {s(T6)}, 3
    s_add_u32 {s(T0)}, {s(T0)}, {s(T1)}
    s_lshl_b32 {s(sM)}, {s(T0)}, 10
    s_add_u32 {s(sM)}, {s(sM)}, {OBM:#x}
    s_add_u32 {s(sM2)}, {s(sM)}, 4096
    s_lshl_b32 {s(sL)}, {s(T0)}, 7
    s_add_u32 {s(sL)}, {s(sL)}, {OBL:#x}
    s_lshl_b32 {s(T0)}, {s(sOT)}, 5
    s_add_u32 {s(T0)}, {s(T0)}, {s(T1)}
    v_and_b32 v3, 7, v0
    v_add_u32 v3, {s(T0)}, v3
    v_lshlrev_b32 v3, 7, v3
    v_add_u32 {v(vPoll)}, {FL4:#x}, v3
    s_mul_i32 {s(T0)}, {s(sWave)}, {WSTR}
    s_add_u32 {s(T0)}, {s(T0)}, {BRED}
    v_add_u32 {v(vWr)}, {s(T0)}, {v(v16)}
    s_lshl_b32 {s(T0)}, {s(sWave)}, 6
    v_add_u32 v1, {s(T0)}, v0
    s_mul_i32 {s(T0)}, {s(sOT)}, {64*2304}
    s_mul_i32 {s(T1)}, {s(sOC)}, 144
    s_add_u32 {s(sO)}, {s(T0)}, {s(T1)}
    s_add_u32 {s(T5)}, {s(sO)}, 1152
    s_mov_b32 {s(sA)}, 0
    s_mov_b32 {s(sB_)}, 0''')
    piece_addr(a, 1, vRd, vOut)
def flag_ld(a, r=vFlg): a(f'buffer_load_dword {v(r)}, {v(vPoll)}, {srd(sWS)}, 0 offen sc1')
def half_try(a):
    for h, st in ((0, sA), (1, sB_)):
        lb = a.new('fl')
        a(f's_and_b32 {s(T0)}, vcc_lo, {0xf0 if h else 0x0f}\ns_or_b32 {s(T0)}, {s(T0)}, {s(st)}\ns_cbranch_scc1 {lb}\ns_mov_b32 {s(st)}, 1')
        for i in range(4): a(f'buffer_load_dwordx4 {v(FO+16*h+4*i,4)}, {v(v16)}, {srd(sWS)}, {s(sM2 if h else sM)} offen offset:{1024*i} sc1')
        a.label(lb)
def final_prep(a):
    a(f's_mul_i32 {s(T0)}, {s(T6)}, {WBLK}\ns_add_u32 {s(T0)}, {s(T0)}, {SLOT_B[0]}')
    op_addr(a, vFm, vFm2, vFl, vFl2, 2, T0)
    op_read_w(a, FW, vFm, vFm2, vFl, vFl2)

def final(a):
    a.label('L_final')
    a.c('================= all waves: out projection of B =================')
    a.c('this wave needs 8 heads, 4 from each of two producer groups: load each half as soon as its flags are up')
    def half_mm(h):
        for st in range(4*h, 4*h + 4):
            for T in range(3): mfma(a, FA + 16*T, FW + 12*st + 4*T, FO + 4*st, None if st == 0 else FA + 16*T)
    def pending0(need):
        lb = a.new('fm'); l2 = a.new('fn')
        a(f's_cmp_eq_u32 {s(sA)}, 0\ns_cbranch_scc1 {lb}\ns_cmp_gt_u32 {s(sA)}, 3\ns_cbranch_scc1 {lb}')
        if need > 1: a(f's_add_u32 {s(sA)}, {s(sA)}, 1\ns_cmp_le_u32 {s(sA)}, {need}\ns_cbranch_scc1 {lb}')
        a(f's_mov_b32 {s(sA)}, 9')
        half_mm(0)
        a.label(lb)
    ps = OPT.get('fsl', 4)
    FR = [vFlg, 2, 3]
    a(f's_waitcnt vmcnt(0) lgkmcnt(0)\nv_cmp_ne_u32 vcc, {s(sTok)}, {v(vFlg)}')
    pending0(1)
    half_try(a)
    a(f's_min_u32 {s(T0)}, {s(sA)}, {s(sB_)}\ns_cmp_lg_u32 {s(T0)}, 0\ns_cbranch_scc1 L_fgo')
    for r in FR[:2]:
        flag_ld(a, r); a(f's_sleep {ps}')
    a.label('L_fpoll')
    for i in range(3):
        flag_ld(a, FR[(i + 2) % 3])
        a(f's_waitcnt vmcnt(2)\nv_cmp_ne_u32 vcc, {s(sTok)}, {v(FR[i])}')
        if i == 0: pending0(1) if False else None
        half_try(a)
        a(f's_min_u32 {s(T0)}, {s(sA)}, {s(sB_)}\ns_cmp_lg_u32 {s(T0)}, 0\ns_cbranch_scc1 L_fgo')
        if i == 2:
            a.c('loads started in an earlier round of this loop are older than the two flag loads just left in flight')
            pending0(2)
        else: a(f's_sleep {ps}')
    spin_tail(a, 'L_fpoll', ps)
    a.label('L_fgo')
    a.stamp(10)
    for i in range(4): a(f'buffer_load_dword {v(FO+32+i)}, {v(vFol)}, {srd(sWS)}, {s(sL)} offen offset:{128*i} sc1')
    a('s_waitcnt vmcnt(4)')
    pending0(1)
    half_mm(1)
    a('s_waitcnt vmcnt(0)')
    for T in range(3): mfma(a, FA + 16*T, FW + 96 + 4*T, FO + 32, FA + 16*T)
    a('s_barrier')
    a(f'v_add_u32 v6, 512, v0\nv_add_u32 v7, {ARED}, {v(vRd)}\nv_add_u32 {v(vRd)}, {BRED}, {v(vRd)}')
    piece_addr(a, 6, 4, 5)
    for q in range(9): a(f'ds_write_b128 {v(vWr)}, {v(FA+4*q,4)} offset:{QS*q}')
    a('s_waitcnt lgkmcnt(0)\ns_barrier')
    a.stamp(11)
    a.c('sum the partials in output order: one 16-byte piece of a row per lane')
    def rd(R, vr, n):
        for k in range(n):
            for h in range(2): a(f'ds_read_b128 {v(R+8*k+4*h,4)}, {v(vr)} offset:{2*WSTR*k + 512*h}')
    def fin(R, n, vo, so, pol):
        for k in range(1, n):
            for i in range(4): a(f'v_pk_add_f32 {v(R+2*i,2)}, {v(R+2*i,2)}, {v(R+8*k+2*i,2)}')
        cvt8(a, R, R)
        a(f'buffer_store_dwordx4 {v(R,4)}, {v(vo)}, {srd(sOUT)}, {s(so)} offen{opol(pol)}')
    rd(16, vRd, 4); rd(48, 7, 2)
    a(f's_cmp_gt_u32 {s(sWave)}, 1\ns_cbranch_scc1 L_fin_a\ns_cmp_eq_u32 {s(sWave)}, 1\ns_cbranch_scc1 L_fin_x')
    a(f'v_add_u32 v4, {BRED}, v4')
    rd(64, 4, 4); a('s_waitcnt lgkmcnt(0)'); fin(64, 4, 5, T5, 'osb'); a('s_branch L_fin_a')
    a.label('L_fin_x')
    a(f'v_add_u32 v4, {ARED}, v4')
    rd(64, 4, 2); a('s_waitcnt lgkmcnt(0)'); fin(64, 2, 5, sO, 'osa')
    a.label('L_fin_a')
    a('s_waitcnt lgkmcnt(4)'); fin(16, 4, vOut, T5, 'osb')
    a('s_waitcnt lgkmcnt(0)'); fin(48, 2, vOut, sO, 'osa')
    if OPT.get('padto'):
        a.label('L_pad')
        a(f's_memrealtime s[94:95]\ns_waitcnt lgkmcnt(0)\ns_sub_u32 s94, s94, s80\ns_cmp_lt_u32 s94, {OPT["padto"]}\ns_cbranch_scc1 L_pad')
    if a.diag:
        a('s_waitcnt vmcnt(0)')
        a.stamp(12)
        a.label('L_dump')
        a(f's_lshl_b32 {s(T0)}, s2, 3\ns_add_u32 {s(T0)}, {s(T0)}, {s(sWave)}\ns_lshl_b32 {s(T0)}, {s(T0)}, 7\ns_add_u32 {s(T0)}, {s(T0)}, {STAMPS:#x}')
        for k in range(16): a(f'v_mov_b32 {v(16+k)}, {s(SSTAMP+k)}')
        a(f's_lshl_b32 {s(T1)}, {s(T0)}, 1\ns_sub_u32 {s(T1)}, {s(T1)}, {STAMPS - 0x80000:#x}\nbuffer_store_dword v254, {v(vQL)}, {srd(sWS)}, {s(T1)} offen')
        a('v_mov_b32 v1, 0\ns_mov_b64 exec, 1')
        for k in range(4): a(f'buffer_store_dwordx4 {v(16+4*k,4)}, v1, {srd(sWS)}, {s(T0)} offen offset:{16*k}')
    a('s_endpgm')
    for f in a.late: f()
    a.label('L_end')
    a('s_endpgm')

WPH, WLq, WLk, vG, vPh, vPr, RAW = 8, 12, 14, 16, 18, 19, 160
sQa, sRec, sTl, sF1A, sLoB, sHiB, sC2 = 56, 57, 58, 59, 60, 61, 62
vXs, vOl, vF3, vF2 = 236, 240, 241, 242
def a_setup(a, part):
    if part == 0:
        a.c('feature-map weights (rows follow the rotated dim order of odd heads)')
        a(f'''v_and_b32 v1, 31, v0
        v_lshrrev_b32 v2, 5, v0
        v_cmp_eq_u32 vcc, 20, v1
        v_mov_b32 v3, 17
        v_mov_b32 v4, {OOB:#x}
        v_cndmask_b32 v3, v1, v3, vcc
        v_cmp_ge_u32 {s(T0,2)}, 16, v1
        s_or_b64 vcc, vcc, {s(T0,2)}
        v_lshlrev_b32 v3, 1, v3
        s_mul_i32 {s(T2)}, {s(sHA)}, 648
        v_cndmask_b32 v3, v4, v3, vcc
        v_mul_u32_u24 v5, 288, v2
        v_add_u32 v4, v3, v5
        s_and_b32 {s(T0)}, {s(sHA)}, 1
        s_mul_i32 {s(T1)}, {s(T0)}, 72
        s_add_u32 {s(T3)}, {s(T2)}, {s(T1)}
        s_mul_i32 {s(T1)}, {s(T0)}, 576
        s_sub_u32 {s(T2)}, {s(T2)}, {s(T1)}
        s_add_u32 {s(T2)}, {s(T2)}, 576''')
        for e in range(8):
            a(f'buffer_load_ushort {v(RAW + e)}, v4, {srd(sPHI)}, {s(T3)} offen offset:{e*36}')
        a(f'buffer_load_ushort {v(RAW+8)}, v3, {srd(sPHI)}, {s(T2)} offen\nbuffer_load_ushort {v(RAW+9)}, v3, {srd(sPHI)}, {s(T2)} offen offset:36')
    if part == 1:
        a.c('wo image lane offsets; flags of the producers of this wave\'s rows')
        for k in range(3):
            if k < 2: a(f's_add_u32 {s(T0)}, {s(sW4)}, {4*k}\ns_lshl_b32 {s(T0)}, {s(T0)}, 6\nv_add_u32 v3, {s(T0)}, v0')
            else: a('v_add_u32 v3, 512, v0')
            a(f'''v_mul_u32_u24 v4, 7282, v3
            v_lshrrev_b32 v4, 16, v4
            v_mul_u32_u24 v5, 9, v4
            v_sub_u32 v5, v3, v5
            v_mul_u32_u24 v6, 1152, v4
            v_lshl_add_u32 {v(vWO+k)}, v5, 4, v6''')
        a('v_lshrrev_b32 v4, 1, v0\nv_min_u32 v4, 2, v4\nv_and_b32 v5, 1, v0')
        producer_ct(a, 3, 4, 5, sHA, 6)
        a(f'''s_lshl_b32 {s(T0)}, {s(sRB)}, 1
        s_add_u32 {s(T0)}, {s(T0)}, {s(sMG)}
        v_lshl_add_u32 v3, v3, 4, {s(T0)}
        v_lshlrev_b32 v3, 7, v3
        v_add_u32 {v(vPoll)}, {FL1A:#x}, v3''')
    if part == 2:
        a.c('image addresses: tile = 8rb + 2w; leftover gather (half 0: q, half 1: k)')
        a(f'''s_lshl_b32 {s(sTl)}, {s(sRB)}, 3
        s_lshl_b32 {s(T1)}, {s(sW4)}, 1
        s_add_u32 {s(sTl)}, {s(sTl)}, {s(T1)}
        s_lshl_b32 {s(T1)}, {s(sHA)}, 6
        s_add_u32 {s(T0)}, {s(sTl)}, {s(T1)}
        s_lshl_b32 {s(sQa)}, {s(T0)}, 10
        s_add_u32 {s(sQa)}, {s(sQa)}, {QM + AOFF:#x}
        s_mul_i32 {s(sRec)}, {s(T0)}, {REC}
        s_add_u32 {s(sRec)}, {s(sRec)}, {KV + AOFF:#x}
        s_lshr_b32 {s(T0)}, {s(sHA)}, 1
        s_lshl_b32 {s(T0)}, {s(T0)}, 6
        s_add_u32 {s(T0)}, {s(T0)}, {s(sTl)}
        s_lshl_b32 {s(T0)}, {s(T0)}, 8
        s_and_b32 {s(T1)}, {s(sHA)}, 1
        s_lshl_b32 {s(T1)}, {s(T1)}, 2
        s_add_u32 {s(T0)}, {s(T0)}, {s(T1)}
        s_add_u32 {s(T0)}, {s(T0)}, {QL + AOFF:#x}
        v_mov_b32 v3, {s(T0)}''')
        kl_const(a, T1, sHA)
        a(f'''s_add_u32 {s(T1)}, {s(T1)}, {s(sRec)}
        v_mov_b32 v4, {s(T1)}
        v_mov_b32 v5, 256
        v_mov_b32 v6, {REC}
        v_cmp_gt_u32 vcc, 32, v0
        v_and_b32 v1, 31, v0
        v_lshrrev_b32 v2, 5, v0
        v_cndmask_b32 v3, v4, v3, vcc
        v_cndmask_b32 v5, v6, v5, vcc
        v_lshl_add_u32 {v(vG)}, v1, 3, v3
        v_add_u32 {v(vG+1)}, {v(vG)}, v5''')
        flag_addr(a, sF1A, sCT, sRT, 4, FL1A)
        a(f's_cmp_lg_u32 {s(sIdle)}, 0\ns_cselect_b32 {s(sF1A)}, {OOB:#x}, {s(sF1A)}')
    if part == 3:
        a.c('phi scratch: row-per-token writes, transposed reads')
        a(f'''s_mul_i32 {s(T0)}, {s(sW4)}, 5120
        s_add_u32 {s(T0)}, {s(T0)}, {PHS}
        v_and_b32 v1, 31, v0
        v_lshrrev_b32 v2, 5, v0
        v_mul_u32_u24 v3, 80, v1
        v_lshl_add_u32 v3, v2, 3, v3
        v_add_u32 {v(vPh)}, {s(T0)}, v3
        v_bfe_u32 v3, v0, 2, 2
        v_lshl_add_u32 v5, v2, 2, v3
        v_mul_u32_u24 v5, 80, v5
        v_add_u32 v5, {s(T0)}, v5
        v_and_b32 v4, 3, v0
        v_lshlrev_b32 v6, 3, v4
        v_and_b32 v3, 1, v0
        v_lshlrev_b32 v3, 3, v3
        v_add_u32 v3, 64, v3
        v_bfe_u32 v4, v0, 4, 1
        v_cmp_eq_u32 vcc, 0, v4
        v_add_u32 {v(vPr+1)}, v5, v6
        v_mov_b32 {v(WLq+1)}, 0
        v_cndmask_b32 v6, v3, v6, vcc
        v_mov_b32 {v(WLk+1)}, 0
        v_add_u32 {v(vPr)}, v5, v6''')
    if part == 4:
        for i in range(4): a(f'v_lshl_or_b32 {v(WPH + i)}, {v(RAW+1 + 2*i)}, 16, {v(RAW + 2*i)}')
        a(f'v_lshl_or_b32 v3, {v(RAW+9)}, 16, {v(RAW+8)}\nv_cmp_gt_u32 vcc, 32, v0\ns_nop 1\nv_cndmask_b32 {v(WLq)}, {v(vZero)}, v3, vcc\nv_cndmask_b32 {v(WLk)}, v3, {v(vZero)}, vcc')

def a_chain(a, opt):
    Fq, Fk, Fl, Fv = [36, 40], [44, 48], [52, 54], [56, 64]
    def lprio(x):
        if opt.get('lp', 1): a(f's_setprio {x}')
    a.label('L_achain')
    a.c('================= waves 4-7: publish A qkv, feature maps =================')
    bg = [(sAWO, kq, SLOT_A[kq], P) for kq in (0, 2, 3) for P in range(3)] + [(sBWO, kq, SLOT_B[kq], P) for kq in (0, 1) for P in range(3)]
    def bgdma():
        if bg: issue_grp(a, *bg.pop(0))
    a(f'''s_mul_i32 {s(sWB)}, {s(sOC)}, 144
    s_mov_b32 {s(T2)}, {f2u(LOG2E):#x}
    s_mov_b32 {s(T3)}, {f2u(LOG2E):#x}
    v_mov_b32 {v(Fl[0]+1)}, 0
    v_mov_b32 {v(Fl[1]+1)}, 0
    s_waitcnt vmcnt(0)''')
    last_signals(a, 2, C_F1A, 4, sF1A)
    a.stamp(5)
    a.c('addresses for later stages, in the slots the attention leaves free while the producers finish')
    if opt.get('w1', 0) < 2: lprio(0)
    a(f's_mul_i32 {s(T6)}, {s(sMG)}, {WBLK}\ns_add_u32 {s(T6)}, {s(T6)}, {SLOT_A[0]}')
    op_addr(a, vXs, vXs+1, vXs+2, vXs+3, 2, T6)
    if opt.get('w1', 0): lprio(1)
    a(f'''v_and_b32 v1, 31, v0
    v_lshrrev_b32 v2, 5, v0
    v_lshlrev_b32 v3, 2, v1
    v_lshl_add_u32 {v(vOl)}, v2, 9, v3
    s_lshl_b32 {s(T0)}, {s(sOT)}, 1
    s_add_u32 {s(T0)}, {s(T0)}, {s(sMG)}
    s_lshl_b32 {s(T0)}, {s(T0)}, 11
    s_add_u32 {s(T0)}, {s(T0)}, {FL3:#x}
    v_and_b32 v3, 15, v0
    v_lshl_add_u32 {v(vF3)}, v3, 7, {s(T0)}
    v_and_b32 v3, 7, v0
    s_lshl_b32 {s(T0)}, {s(sHA)}, 10
    s_add_u32 {s(T0)}, {s(T0)}, {FL2:#x}
    v_lshl_add_u32 {v(vF2)}, v3, 7, {s(T0)}
    s_mov_b32 {s(sLoB)}, {f2u(2.0**-64):#x}
    s_mov_b32 {s(sHiB)}, {f2u(2.0**64):#x}''')
    lprio(1)
    poll_flags(a, vPoll, 2, sl=4)
    a.stamp(6)
    for tt in range(2):
        a(f'buffer_load_dwordx4 {v(Fk[tt],4)}, {v(v16)}, {srd(sWS)}, {s(sRec)} offen offset:{REC*tt} sc1')
        a(f'buffer_load_dword {v(Fl[tt])}, {v(vG + tt)}, {srd(sWS)}, 0 offen sc1')
    for tt in range(2): a(f'buffer_load_dwordx4 {v(Fq[tt],4)}, {v(v16)}, {srd(sWS)}, {s(sQa)} offen offset:{1024*tt} sc1')
    for tt in range(2):
        for f in range(2): a(f'buffer_load_dwordx4 {v(Fv[tt]+4*f,4)}, {v(vVf+f)}, {srd(sWS)}, {s(sRec)} offen offset:{REC*tt} sc1')
    lds_wait(a, 2, C_F1A, 4)
    D = {('k', 0): 80, ('k', 1): 96, ('q', 0): 112, ('q', 1): 128}
    a('s_waitcnt vmcnt(6)')
    lprio(0)
    for tt in range(2): mfma(a, D[('k', tt)], WLk, Fl[tt], None, '8')
    for tt in range(2): mfma(a, D[('q', tt)], WLq, Fl[tt], None, '8')
    a.nop(7)
    for tt in range(2): mfma(a, D[('k', tt)], WPH, Fk[tt], D[('k', tt)])
    a('s_waitcnt vmcnt(4)')
    for tt in range(2): mfma(a, D[('q', tt)], WPH, Fq[tt], D[('q', tt)])
    a.nop(8)
    lprio(1)
    EP, EM = 144, 156
    PH = {('q', 0): 204, ('q', 1): 214, ('k', 0): 168, ('k', 1): 178}
    def sums():
        a(f'''v_pk_add_f32 v[2:3], {v(EP,2)}, {v(EP+2,2)}
        v_pk_add_f32 v[4:5], {v(EM,2)}, {v(EM+2,2)}
        v_pk_add_f32 v[2:3], v[2:3], {v(EP+4,2)}
        v_pk_add_f32 v[4:5], v[4:5], {v(EM+4,2)}
        v_pk_add_f32 v[2:3], v[2:3], {v(EP+6,2)}
        v_pk_add_f32 v[4:5], v[4:5], {v(EM+6,2)}
        v_add_f32 v2, v2, {v(EP+8)}
        v_add_f32 v4, v4, {v(EM+8)}
        v_add_f32 v2, v2, v3
        v_add_f32 v4, v4, v5
        s_nop 1
        v_permlane32_swap_b32 v2, v4
        v_add_f32 v2, v2, v4''')
    def softmax_max(x, lab, back):
        a.label(lab)
        a(f'''v_max3_f32 v2, {v(x)}, {v(x+1)}, {v(x+2)}
        v_max3_f32 v4, -{v(x)}, -{v(x+1)}, -{v(x+2)}
        v_max3_f32 v2, v2, {v(x+3)}, {v(x+4)}
        v_max3_f32 v4, v4, -{v(x+3)}, -{v(x+4)}
        v_max3_f32 v2, v2, {v(x+5)}, {v(x+6)}
        v_max3_f32 v4, v4, -{v(x+5)}, -{v(x+6)}
        v_max3_f32 v2, v2, {v(x+7)}, {v(x+8)}
        v_max3_f32 v4, v4, -{v(x+7)}, -{v(x+8)}
        s_nop 1
        v_permlane32_swap_b32 v2, v4
        v_max_f32 v2, v2, v4
        v_mov_b32 v4, v2
        s_nop 1
        v_permlane32_swap_b32 v2, v4''')
        for i in range(9): a(f'v_sub_f32 {v(EP+i)}, {v(x+i)}, v2\nv_sub_f32 {v(EM+i)}, -{v(x+i)}, v4')
        for E in (EP, EM):
            for i in range(9): a(f'v_mul_f32 {v(E+i)}, {s(T2)}, {v(E+i)}')
        for E in (EP, EM):
            for i in range(9): a(f'v_exp_f32 {v(E+i)}, {v(E+i)}')
        sums()
        a(f's_branch {back}')
    def softmax2(x, P, lo=False):
        lab = a.new('smx'); back = a.new('smb')
        a.late.append(lambda: softmax_max(x, lab, back))
        for i in range(0, 8, 2): a(f'v_pk_mul_f32 {v(EM+i,2)}, {v(x+i,2)}, {s(T2,2)}')
        a(f'v_mul_f32 {v(EM+8)}, {s(T2)}, {v(x+8)}')
        bgdma()
        if lo: lprio(0)
        for i in range(9): a(f'v_exp_f32 {v(EP+i)}, {v(EM+i)}')
        bgdma()
        for i in range(9): a(f'v_exp_f32 {v(EM+i)}, -{v(EM+i)}')
        if lo: lprio(1)
        bgdma()
        sums()
        a(f'''v_cmp_nle_f32 {s(sC2,2)}, {s(sLoB)}, v2
        v_cmp_nge_f32 vcc, {s(sHiB)}, v2
        s_or_b64 vcc, vcc, {s(sC2,2)}
        s_cbranch_scc1 {lab}''')
        a.label(back)
        a(f'''v_rcp_f32 v2, v2
        s_nop 0
        v_mov_b32 v4, v2
        s_nop 1
        v_permlane32_swap_b32 v2, v4''')
        for E, t in ((EP, 2), (EM, 4)):
            for i in range(0, 8, 2): a(f'v_pk_mul_f32 {v(E+i,2)}, {v(E+i,2)}, {v(t,2)} op_sel_hi:[1,0]')
            a(f'v_mul_f32 {v(E+8)}, {v(E+8)}, {v(t)}')
        bgdma()
        cvt8(a, EP, P); cvt8(a, EM, P+4)
        if lo is not None and P in (PH[('q', 0)], PH[('q', 1)]): bgdma()
        a(f'v_cvt_pk_bf16_f32 {v(P+8)}, {v(EP+8)}, {v(EM+8)}')
    for tt in range(2):
        P = PH[('k', tt)]
        softmax2(D[('k', tt)], P)
        o = 2560*tt
        a(f'''ds_write_b64 {v(vPh)}, {v(P,2)} offset:{o}
        ds_write_b64 {v(vPh)}, {v(P+2,2)} offset:{o+16}
        ds_write_b64 {v(vPh)}, {v(P+4,2)} offset:{o+32}
        ds_write_b64 {v(vPh)}, {v(P+6,2)} offset:{o+48}
        ds_write_b32 {v(vPh)}, {v(P+8)} offset:{o+64}''')
    a.c('kv partial of this wave: phi_k^T (transposed through LDS) x [v | 1]')
    KA = 144; KD = [80, 96]
    a('s_waitcnt lgkmcnt(0)')
    for k in range(4):
        for sg in range(2):
            for j in range(2):
                a(f'ds_read_b64_tr_b16 {v(KA+8*k+4*sg+2*j,2)}, {v(vPr+sg)} offset:{(16*k+8*j)*80 + 32*sg}')
    a(f'''s_mul_i32 {s(T0)}, {s(sW4)}, 5120
    v_add_u32 v6, {s(T0)}, {v(v16)}
    v_lshlrev_b32 v1, 3, v0
    v_add_u32 v7, {s(T0)}, v1
    s_waitcnt vmcnt(12) lgkmcnt(0)''')
    lprio(0)
    for k in range(4):
        for sg in range(2): mfma(a, KD[sg], KA+8*k+4*sg, Fv[0]+4*k, None if k == 0 else KD[sg])
    a.nop(11)
    lprio(1)
    a(f'''ds_write_b128 v6, {v(KD[0],4)} offset:{PHS}
    ds_write_b128 v6, {v(KD[0]+4,4)} offset:{PHS+1024}
    ds_write_b64 v7, {v(KD[0]+8,2)} offset:{PHS+2048}
    ds_write_b128 v6, {v(KD[1],4)} offset:{PHS+2560}
    ds_write_b128 v6, {v(KD[1]+4,4)} offset:{PHS+3584}
    s_waitcnt lgkmcnt(0)''')
    lds_arrive(a, C_KVX)
    a(f'''s_mul_i32 {s(T7)}, {s(sTH)}, 2560
    s_lshl_b32 {s(T1)}, {s(sMG)}, 10
    s_add_u32 {s(T7)}, {s(T7)}, {s(T1)}
    v_add_u32 v6, {s(T7)}, {v(v16)}
    s_lshl_b32 {s(T0)}, {s(sHA)}, 3
    s_add_u32 {s(T1)}, {s(T0)}, {s(sRB)}
    s_mul_i32 {s(T4)}, {s(T1)}, {KVPS}
    s_add_u32 {s(T4)}, {s(T4)}, {KVP:#x}
    s_add_u32 {s(T5)}, {s(T4)}, {s(T7)}
    s_lshl_b32 {s(T1)}, {s(T1)}, 7
    s_add_u32 {s(T1)}, {s(T1)}, {FL2:#x}''')
    lds_wait(a, 2, C_KVX, 4)
    R = 80
    for w in range(4): a(f'ds_read_b128 {v(R+4*w,4)}, v6 offset:{PHS + 5120*w}')
    a(f's_cmp_lg_u32 {s(sW4)}, 3\ns_cbranch_scc1 L_kvx')
    for w in range(4): a(f'ds_read_b64 {v(R+16+2*w,2)}, v1 offset:{PHS + 5120*w + 2048}')
    a('s_waitcnt lgkmcnt(0)')
    for w in range(1, 4): a(f'v_pk_add_f32 {v(R+16,2)}, {v(R+16,2)}, {v(R+16+2*w,2)}')
    a(f'buffer_store_dwordx2 {v(R+16,2)}, v1, {srd(sWS)}, {s(T4)} offen offset:2048 sc1')
    a.label('L_kvx')
    a('s_waitcnt lgkmcnt(0)')
    for w in range(1, 4):
        for k in range(2): a(f'v_pk_add_f32 {v(R+2*k,2)}, {v(R+2*k,2)}, {v(R+4*w+2*k,2)}')
    a(f'buffer_store_dwordx4 {v(R,4)}, {v(v16)}, {srd(sWS)}, {s(T5)} offen sc1')
    a('s_waitcnt vmcnt(0)')
    last_signals(a, 2, C_F2, 4, T1)
    a.stamp(7)
    a.c('================= waves 4-7: kv total, numerator / denominator =================')
    a(f'''s_lshl_b32 {s(T0)}, {s(sHA)}, 3
    s_mul_i32 {s(T4)}, {s(T0)}, {KVPS}
    s_add_u32 {s(T4)}, {s(T4)}, {KVP:#x}
    s_add_u32 {s(T5)}, {s(T4)}, {s(T7)}
    s_lshl_b32 {s(T7)}, {s(sTH)}, 10
    s_lshl_b32 {s(T0)}, {s(sMG)}, 3
    s_add_u32 {s(T7)}, {s(T7)}, {s(T0)}
    s_add_u32 {s(T7)}, {s(T7)}, {KVF}''')
    lds_wait(a, 2, C_F2, 4)
    bg += [(sAWO, 1, SLOT_A[1], P) for P in range(3)]
    for tt in range(2):
        softmax2(D[('q', tt)], PH[('q', tt)], bool(opt.get('qlo', 0) >> tt & 1))
        a(f'v_mov_b32 {v(PH[("q", tt)]+9)}, 0')
    assert not bg
    poll_flags(a, vF2, 2, sl=4)
    for i in range(8):
        a(f'buffer_load_dwordx4 {v(R+4*i,4)}, {v(v16)}, {srd(sWS)}, {s(T5)} offen sc1')
        if i < 7: a(f's_add_u32 {s(T5)}, {s(T5)}, {KVPS}')
    a(f'v_add_u32 v3, {s(T7)}, {v(v16)}\nv_add_u32 v6, {KVF + 2048}, v1\ns_cmp_lg_u32 {s(sW4)}, 3\ns_cbranch_scc1 L_kvs')
    for i in range(8):
        a(f'buffer_load_dwordx2 {v(R+32+2*i,2)}, v1, {srd(sWS)}, {s(T4)} offen offset:2048 sc1')
        if i < 7: a(f's_add_u32 {s(T4)}, {s(T4)}, {KVPS}')
    a('s_waitcnt vmcnt(0)')
    for i in range(1, 8): a(f'v_pk_add_f32 {v(R+32,2)}, {v(R+32,2)}, {v(R+32+2*i,2)}')
    a(f'v_cvt_pk_bf16_f32 v4, {v(R+32)}, {v(R+33)}\nv_mov_b32 v5, 0\nds_write_b64 v6, v[4:5]')
    a.label('L_kvs')
    a('s_waitcnt vmcnt(0)')
    for i in range(1, 8):
        for k in range(2): a(f'v_pk_add_f32 {v(R+2*k,2)}, {v(R+2*k,2)}, {v(R+4*i+2*k,2)}')
    a(f'v_cvt_pk_bf16_f32 v10, {v(R)}, {v(R+1)}\nv_cvt_pk_bf16_f32 v11, {v(R+2)}, {v(R+3)}\nds_write_b64 v3, v[10:11]\ns_waitcnt lgkmcnt(0)')
    lds_arrive(a, C_KVF)
    lds_wait(a, 2, C_KVF, 4)
    KF = 144
    a(f'''v_add_u32 v3, {KVF}, {v(v16)}
    ds_read_b64 {v(KF+8,2)}, v6
    ds_read_b128 {v(KF,4)}, v3
    ds_read_b128 {v(KF+4,4)}, v3 offset:1024
    s_mov_b32 {s(T0)}, {s(sTl)}''')
    o_addr(a, sHA, OAM, OAL)
    a('s_waitcnt lgkmcnt(0)')
    ND = [80, 96]
    lprio(0)
    for tt in range(2): mfma(a, ND[tt], KF+8, PH[('q', tt)]+8, None, '8')
    a.nop(9)
    for tt in range(2): mfma(a, ND[tt], KF, PH[('q', tt)], ND[tt])
    for tt in range(2): mfma(a, ND[tt], KF+4, PH[('q', tt)]+4, ND[tt])
    a.nop(11)
    lprio(1)
    o_publish(a, ND, [112, 120], True)
    a(f's_lshr_b32 {s(T6)}, {s(sTl)}, 1')
    flag_addr(a, T1, T6, sHA, 5, FL3)
    wave_signals(a, 2, T1)
    a.stamp(8)
    a.c('================= waves 4-7: out projection of A (operands first, MFMAs after the attention) =================')
    W, O1, O2 = 16, 124, 160
    X = (8, 9, 10, 11); Y = (12, 13, 14, 15)
    sM, sM2, sL = T2, T3, T4
    op_read_w(a, W, vXs, vXs+1, vXs+2, vXs+3)
    a(f'''    s_lshl_b32 {s(T1)}, {s(sOT)}, 1
    s_add_u32 {s(T5)}, {s(sTH)}, {s(T1)}
    s_lshl_b32 {s(T0)}, {s(T5)}, 5
    s_lshl_b32 {s(T1)}, {s(sMG)}, 4
    s_add_u32 {s(T7)}, {s(T0)}, {s(T1)}
    s_lshl_b32 {s(sM)}, {s(T7)}, 10
    s_add_u32 {s(sM)}, {s(sM)}, {OAM:#x}
    s_add_u32 {s(sM2)}, {s(sM)}, 4096
    s_lshl_b32 {s(sL)}, {s(T7)}, 7
    s_add_u32 {s(sL)}, {s(sL)}, {OAL:#x}
    s_waitcnt lgkmcnt(0)''')
    lds_arrive(a, C_W1)
    lds_wait(a, 4, C_W1, 4)
    bg += [(sBWO, kq, SLOT_B[kq], P) for kq in (2, 3) for P in range(3)]
    bgdma(); bgdma()
    poll_flags(a, vF3, 4, sl=4)
    a.c('short batches keep the memory queue of the CU free for the attention waves')
    for O in (O1, O2):
        for h in range(2):
            for i in range(4): a(f'buffer_load_dwordx4 {v(O+16*h+4*i,4)}, {v(v16)}, {srd(sWS)}, {s(sM2 if h else sM)} offen offset:{1024*i} sc1')
            if h:
                for i in range(4): a(f'buffer_load_dword {v(O+32+i)}, {v(vOl)}, {srd(sWS)}, {s(sL)} offen offset:{128*i} sc1')
            bgdma()
            a(f's_waitcnt vmcnt({opt.get("othr", 2)})')
        if O == O1: a(f's_add_u32 {s(sM)}, {s(sM)}, 8192\ns_add_u32 {s(sM2)}, {s(sM2)}, 8192\ns_add_u32 {s(sL)}, {s(sL)}, 1024')
    assert not bg
    if opt.get('f0', 1): lprio(0)
    for i in range(4): a(f'v_mov_b32 {v(X[i])}, {v(vXs+i)}\nv_subrev_u32 {v(Y[i])}, {4*WBLK}, {v(vXs+i)}')
    final_setup(a)
    a('s_waitcnt vmcnt(0)')
    a.stamp(9)
    pre = opt.get('pre', 0)
    mid = opt.get('mid', 1)
    a('s_setprio 0')
    for ps, (O, nxt) in enumerate(((O1, Y), (O2, X))):
        if ps == 1:
            a('s_waitcnt lgkmcnt(0)')
            lds_arrive(a, C_W3)
            if mid:
                a(f's_waitcnt vmcnt(0)\nv_cmp_ne_u32 vcc, {s(sTok)}, {v(vFlg)}')
                half_try(a)
        for st in range(9):
            if 9*ps + st == pre: a(f's_barrier\ns_setprio {opt.get("prio2", 0)}')
            for T in range(3):
                mfma(a, ACA[T], W + 12*st + 4*T, O + 4*st, None if (ps == 0 and st == 0) else ACA[T])
            if st: a(op_w_reads(W, *nxt, st - 1))
            if (ps, st) == (1, 5) or (mid and (ps, st) == (0, max(pre, mid))): flag_ld(a)
        a(op_w_reads(W, *nxt, 8))
    lds_wait(a, 2, C_W3, 4, sl=0)
    a(f'v_subrev_u32 v1, {4*WSTR + BRED - ARED}, {v(vWr)}')
    for q in range(8): a(f'ds_write_b128 v1, {v(ACA[0]+4*q,4)} offset:{QS*q}')
    a(f'ds_write_b128 v1, {v(ACA[2],4)} offset:{QS*8}')
    a.stamp(2)

HEADER = '''; Fused hedgehog linear attention (A) + softmax MHA (B), one persistent launch of 256 workgroups.
; kernarg: A_x A_wqkv A_w_phi A_wo B_x B_wqkv B_wo out debug ws (8-byte pointers, in that order)
; @launch grid=(256,1,1) block=(512,1,1) lds=%d
.amdgcn_target "amdgcn-amd-amdhsa--gfx950"
.text
.globl %s_kernel
.p2align 8
.type %s_kernel,@function
%s_kernel:
''' % (LDS_BYTES, NAME, NAME, NAME)
FOOTER = '''.section .rodata,"a"
.p2align 6
.amdhsa_kernel %s_kernel
  .amdhsa_next_free_vgpr 256
  .amdhsa_next_free_sgpr 102
  .amdhsa_accum_offset 256
  .amdhsa_group_segment_fixed_size 0
  .amdhsa_kernarg_size 80
  .amdhsa_user_sgpr_count 2
  .amdhsa_user_sgpr_kernarg_segment_ptr 1
  .amdhsa_system_sgpr_workgroup_id_x 1
.end_amdhsa_kernel
''' % NAME

OPT = {}
def generate(diag=False, **opt):
    opt = {**dict(rot=0, thr=3, sig=12, ldp=1, qlo=3, w1=2), **opt}
    OPT.clear(); OPT.update(opt)
    a = Asm(diag)
    prologue(a, opt)
    a_chain(a, opt)
    final(a)
    body = a.text()
    bad = lint(body)
    for x in bad: print(f"HAZARD line {x[0]} -> {x[1]}: {x[2]} need {x[3]} have {x[4]}\n    {x[5]}\n    {x[6]}", file=sys.stderr)
    return HEADER + (f'    ; stamps={STAMPS + (opt.get("wsoff", 0) << 20):#x}\n' if diag else '') + body + FOOTER, len(bad)

if __name__ == '__main__':
    import argparse
    ap = argparse.ArgumentParser()
    ap.add_argument('-o', default=f'cdna_kernels/{NAME}.s')
    ap.add_argument('--diag', action='store_true')
    ap.add_argument('--opt', action='append', default=[])
    g = ap.parse_args()
    opt = {}
    for o in g.opt:
        k, val = o.split('='); opt[k] = int(val)
    text, nbad = generate(g.diag, **opt)
    open(g.o, 'w').write(text)
    print(f'wrote {g.o}: {len(text)} bytes, {nbad} hazards')
```

```python
import sys, struct
from lint import lint

NAME = 'concat_heads__linear_kernel_hedgehog__softmax_full_mha__prompt'
OOB = 0x40000000
QM, QL, KV = 0x0, 0x200000, 0x240000
REC = 2560; HREC = 64 * REC
VLOFF, ONEOFF, KLOFF = 2048, 2176, 2304
AOFF = 0x740000
OAM, OAL, OBM, OBL = 0xE80000, 0x1080000, 0x10C0000, 0x12C0000
KVP = 0x1300000; KVPS = 4608
FL1, FL1A, FL2, FL3, FL4 = 0x1420000, 0x1428000, 0x1430000, 0x1440000, 0x1460000
EPOCH = 0x1438000
STAMPS = 0x1500000
WS_BYTES = 0x1800000
XA = 0
PHS = 28672
WBLK = 21504
WS0 = 28672
SLOT_A = [WS0 + 4*WBLK, WS0, WS0 + 5*WBLK, WS0 + WBLK]
SLOT_B = [WS0 + 2*WBLK, WS0 + 3*WBLK, WS0 + 4*WBLK, WS0 + 5*WBLK]
EAX = 131072
CNT = WS0 + 6*WBLK
KVF = CNT + 256
LDS_BYTES = 163840
C_F1, C_F1A, C_KVX, C_F2, C_KVF, C_F3, C_OPA, C_F4, C_BAD, C_W1, C_TOK, C_G, C_W3 = [4 * i for i in range(13)]
sBX, sBW, sAX, sAW, sPHI, sAWO, sBWO, sOUT, sDBG, sWS = 4, 8, 12, 16, 20, 24, 28, 32, 36, 40
sWave, sCT, sRT, sH = 44, 45, 46, 47
T0, T1, T2, T3, T4, T5, T6, T7 = range(48, 56)
sTab, sS0, sDoSc, sIdle = 64, 65, 66, 67
sQB, sRot, sFree, sOT, sOC, sTok, sLoc, sXcd = 68, 69, 70, 71, 72, 73, 74, 75
sHA, sRB = sH, sQB
sSpin, sTH, sMG, sTile = 76, 77, 78, 79
SSTAMP = 80
sW4, sImg, sXB, sWB, sLh2, sLt2 = 96, 97, 98, 99, 100, 101
v16, vQL, vCnt, vOne, vZero, vPoll, vTok = 244, 245, 246, 247, 248, 249, 250
vVf = 252
EA, ES = 72, 84
vWO = 224
vX, vW, XAc, WAc, XAr, WAr, vTab = 228, 232, 24, 28, 32, 36, 39
ACC = {('a', 0): 96, ('a', 1): 112, ('b', 0): 128, ('b', 1): 144}
FS = [176, 192, 40, 56]
def m_of(sl): return 9*(sl >> 2) + 2*(sl & 1) + 5*((sl >> 1) & 1)
def ct_table(ct):
    lo = 32*ct; s0 = next(x for x in range(200) if m_of(x) >= lo)
    used = {m_of(x) + d for x in range(s0, s0 + 12) for d in (0, 1)}
    misc = [m - lo for m in range(lo, lo + 32) if m not in used]
    assert misc[4:] == [28, 29, 30, 31]
    return sum(c << (5*i) for i, c in enumerate(misc[:4])) | (s0 << 20)

LOG2E = 1.4426950408889634
def f2u(x): return struct.unpack('<I', struct.pack('<f', x))[0]
QSCALE = f2u(18 ** -0.5 * LOG2E)

def v(a, n=1): return f'v{a}' if n == 1 else f'v[{a}:{a+n-1}]'
def s(a, n=1): return f's{a}' if n == 1 else f's[{a}:{a+n-1}]'
def srd(a): return s(a, 4)

import re
def unpack(x):
    m = re.match(r'v_pk_(add_f32|mul_f32|mov_b32) ([vs])\[(\d+):\d+\], ([vs])\[(\d+):\d+\], ([vs])\[(\d+):\d+\](.*)', x)
    op, _, d, k0, a0, k1, a1, mod = m.groups(); d, a0, a1 = int(d), int(a0), int(a1); mod = mod.strip()
    if op == 'mov_b32':
        assert mod == 'op_sel:[0,1]'
        return [f'v_mov_b32 v{d}, v{a0}', f'v_mov_b32 v{d+1}, v{a1+1}']
    assert mod in ('', 'op_sel_hi:[1,0]') and k0 == 'v'
    h = 0 if mod else 1
    return [f'v_{op} v{d}, {k1}{a1}, v{a0}', f'v_{op} v{d+1}, {k1}{a1+h}, v{a0+1}']

class Asm:
    def __init__(self, diag=False):
        self.L = []; self.uid = 0; self.diag = diag; self.lock = False; self.nopk = False; self.late = []
    def __call__(self, t):
        for x in t.split('\n'):
            x = x.strip()
            if not x: continue
            if self.nopk and x.startswith('v_pk_'): self.L += ['    ' + y for y in unpack(x)]
            else: self.L.append('    ' + x)
    def label(self, n): self.L.append(n + ':')
    def c(self, t): self.L.append('    ; ' + t)
    def new(self, p):
        self.uid += 1; return f'L_{p}{self.uid}'
    def nop(self, n):
        while n > 0:
            k = min(n, 16); self(f's_nop {k-1}'); n -= k
    def stamp(self, k):
        if self.diag and not self.lock:
            self(f's_memrealtime {s(94,2)}\ns_waitcnt lgkmcnt(0)\ns_mov_b32 {s(SSTAMP+k)}, s94')
    def lstamp(self, sreg, base=0):
        if self.diag:
            self(f's_memrealtime s[94:95]\ns_add_u32 s95, {sreg}, {base}\ns_mov_b32 s93, s95\ns_waitcnt lgkmcnt(0)\nv_writelane_b32 v243, s94, s93'.replace('s_add_u32 s95', 's_add_u32 s93').replace('s_mov_b32 s93, s95\n', '').replace('v_writelane_b32 v243, s94, s93', 's_mov_b32 m0, s93\nv_writelane_b32 v243, s94, m0'))
    def cyc0(self):
        if self.diag: self('s_memtime s[94:95]\ns_waitcnt lgkmcnt(0)\ns_mov_b32 s93, s94')
    def cyc1(self):
        if self.diag: self('s_memtime s[94:95]\ns_waitcnt lgkmcnt(0)\ns_sub_u32 s93, s94, s93')
    def text(self): return '\n'.join(self.L) + '\n'

class VM:
    def __init__(self): self.q = []
    def add(self, tag, n=1): self.q += [tag] * n
    def after(self, tag):
        i = max(k for k, t in enumerate(self.q) if t == tag)
        return len(self.q) - 1 - i

def mfma_s(d, x, y, c=None, kind='16'):
    op = {'16': 'v_mfma_f32_32x32x16_bf16', '8': 'v_mfma_f32_32x32x8_bf16', '2b': 'v_mfma_f32_32x32x4_2b_bf16'}[kind]
    nd = 32 if kind == '2b' else 16; na = 4 if kind == '16' else 2
    return f'{op} {v(d,nd)}, {v(x,na)}, {v(y,na)}, {"0" if c is None else v(c,nd)}'
def mfma(a, *k, **kw): a(mfma_s(*k, **kw))

def opol(k): return ['', ' sc1', ' nt', ' sc0 sc1', ' sc1 nt'][OPT.get(k, 0)]

def cvt8(a, src, dst):
    for i in range(4): a(f'v_cvt_pk_bf16_f32 {v(dst+i)}, {v(src+2*i)}, {v(src+2*i+1)}')

SRDS = {sAX: (0, 2048*1152), sAW: (8, 576*3456), sPHI: (16, 32*648), sAWO: (24, 576*1152), sBX: (32, 2048*1152),
        sBW: (40, 576*3456), sBWO: (48, 576*1152), sOUT: (56, 2048*2304), sDBG: (64, 256), sWS: (72, WS_BYTES)}
def ld_srd(a, rs):
    for r in rs: a(f's_load_dwordx2 {s(r,2)}, s[0:1], {SRDS[r][0]}')
def mk_srd(a, rs):
    for r in rs:
        if r == sWS and OPT.get('wsoff'): a(f's_waitcnt lgkmcnt(0)\ns_add_u32 {s(r)}, {s(r)}, {OPT["wsoff"] << 20:#x}\ns_addc_u32 {s(r+1)}, {s(r+1)}, 0')
    for r in rs: a(f's_mov_b32 {s(r+2)}, {SRDS[r][1]:#x}\ns_mov_b32 {s(r+3)}, 0x20000')

def spin_tail(a, top, sl=1):
    a((f's_sleep {sl}\n' if sl else '') + f's_sub_u32 {s(sSpin)}, {s(sSpin)}, 1\ns_cbranch_scc0 {top}\ns_endpgm')

def token_issue(a):
    a(f'buffer_load_dwordx2 {v(vTok,2)}, {v(vZero)}, {srd(sDBG)}, 0 offen sc1')
def token_check(a):
    top = a.new('tok'); done = a.new('tokd')
    a.label(top)
    a(f'v_readfirstlane_b32 {s(T0)}, {v(vTok+1)}\nv_readfirstlane_b32 {s(sTok)}, {v(vTok)}\ns_cmp_lg_u32 {s(T0)}, 0\ns_cbranch_scc1 {done}')
    token_issue(a)
    a('s_waitcnt vmcnt(0)')
    spin_tail(a, top)
    a.label(done)

def poll_flags(a, vaddr, vt, preloaded=False, sl=1):
    top = a.new('poll'); done = a.new('polld'); chk = a.new('pollc')
    if preloaded: a(f's_branch {chk}')
    a.label(top)
    a(f'buffer_load_dword {v(vt)}, {v(vaddr)}, {srd(sWS)}, 0 offen sc1\ns_waitcnt vmcnt(0)')
    a.label(chk)
    a(f'v_cmp_ne_u32 vcc, {s(sTok)}, {v(vt)}\ns_cbranch_vccz {done}')
    spin_tail(a, top, sl)
    a.label(done)

def last_signals(a, vt, ctr, n, sflag):
    skip = a.new('nsig')
    a(f's_mov_b64 exec, 1\nds_add_rtn_u32 {v(vt)}, {v(vCnt)}, {v(vOne)} offset:{ctr}\ns_waitcnt lgkmcnt(0)')
    a(f'v_readfirstlane_b32 {s(T0)}, {v(vt)}\nv_mov_b32 {v(vt)}, {s(sflag)}\nv_mov_b32 {v(vt+1)}, {s(sTok)}\ns_cmp_lg_u32 {s(T0)}, {n-1}\ns_cbranch_scc1 {skip}')
    a(f'buffer_store_dword {v(vt+1)}, {v(vt)}, {srd(sWS)}, 0 offen sc1')
    a.label(skip)
    a('s_mov_b64 exec, -1')

def wave_signals(a, vt, sflag):
    a(f'v_mov_b32 {v(vt)}, {s(sflag)}\nv_mov_b32 {v(vt+1)}, {s(sTok)}\ns_waitcnt vmcnt(0)\ns_mov_b64 exec, 1')
    a(f'buffer_store_dword {v(vt+1)}, {v(vt)}, {srd(sWS)}, 0 offen sc1\ns_mov_b64 exec, -1')

def lds_arrive(a, ctr):
    a(f's_mov_b64 exec, 1\nds_add_u32 {v(vCnt)}, {v(vOne)} offset:{ctr}\ns_mov_b64 exec, -1')

def lds_wait(a, vt, ctr, n, sl=2):
    top = a.new('lw'); done = a.new('lwd')
    a.label(top)
    a(f'ds_read_b32 {v(vt)}, {v(vCnt)} offset:{ctr}\ns_waitcnt lgkmcnt(0)\nv_readfirstlane_b32 {s(T0)}, {v(vt)}\ns_cmp_ge_u32 {s(T0)}, {n}\ns_cbranch_scc1 {done}')
    spin_tail(a, top, sl)
    a.label(done)

def flag_addr(a, dst, shi, slo, sh, base):
    a(f's_lshl_b32 {s(dst)}, {s(shi)}, {sh}\ns_add_u32 {s(dst)}, {s(dst)}, {s(slo)}\ns_lshl_b32 {s(dst)}, {s(dst)}, 7\ns_add_u32 {s(dst)}, {s(dst)}, {base:#x}')

def kl_const(a, dst, shead):
    a(f's_bitcmp1_b32 {s(shead)}, 0\ns_mov_b32 {s(dst)}, {HREC + KLOFF}\ns_cselect_b32 {s(dst)}, {KLOFF + 4}, {s(dst)}')

def producer_ct(a, d, ty, last, shead, t):
    a(f'''s_lshr_b32 {s(T0)}, {s(shead)}, 1
    s_mul_i32 {s(T0)}, {s(T0)}, 36
    s_and_b32 {s(T1)}, {s(shead)}, 1
    s_lshl_b32 {s(T1)}, {s(T1)}, 4
    s_add_u32 {s(T0)}, {s(T0)}, {s(T1)}
    v_mul_u32_u24 {v(d)}, 576, {v(ty)}
    v_mul_u32_u24 {v(t)}, 19, {v(last)}
    v_add3_u32 {v(d)}, {v(d)}, {v(t)}, {s(T0)}
    v_lshrrev_b32 {v(d)}, 7, {v(d)}''')

def issue_chunk(a, j):
    if OPT.get('nodma') and j > 1: return
    slot = (j % 4) * 32768; c = j % 9
    if OPT.get('samek'): c = 0
    X, W = (sBX, sBW) if j < 9 else (sAX, sAW)
    nx = ' nt' if OPT.get('nt', 0) & 1 else ''; nw = ' nt' if OPT.get('nt', 0) & 2 else ''
    if OPT.get('rot', 0):
        a(f'''s_add_u32 vcc_lo, {s(sRot)}, {c}
        s_cmp_ge_u32 vcc_lo, 9
        s_cselect_b32 vcc_hi, 9, 0
        s_sub_u32 vcc_lo, vcc_lo, vcc_hi
        s_mul_i32 vcc_hi, vcc_lo, {64*3456}
        s_add_u32 vcc_hi, vcc_hi, {s(sWB)}
        s_lshl_b32 vcc_lo, vcc_lo, 7
        s_add_u32 vcc_lo, vcc_lo, {s(sXB)}
        s_lshl_b32 s3, {s(sW4)}, 12
        s_add_u32 m0, s3, {slot}
        s_nop 0''')
    else:
        a(f's_lshl_b32 s3, {s(sW4)}, 12\ns_add_u32 m0, s3, {slot}\ns_add_u32 vcc_lo, {s(sXB)}, {128*c}\ns_add_u32 vcc_hi, {s(sWB)}, {64*3456*c}')
    for i in range(4): a(f'buffer_load_dwordx4 {v(vX+i)}, {srd(X)}, vcc_lo offen offset:{1024*i}{nx} lds')
    a(f's_add_u32 m0, s3, {slot + 16384}\ns_nop 0')
    for i in range(4): a(f'buffer_load_dwordx4 {v(vW+i)}, {srd(W)}, vcc_hi offen offset:{1024*i}{nw} lds')

def su_loader(a):
    a.c('loader lane offsets: x rows (xor-swizzled 16-byte pieces), w rows (16 pieces, rotated by four per row)')
    a(f'''v_lshrrev_b32 v1, 3, v0
    v_and_b32 v2, 7, v0
    v_lshrrev_b32 v3, 1, v1
    v_xor_b32 v2, v2, v3
    v_mul_u32_u24 v1, 1152, v1
    v_lshl_add_u32 {v(vX)}, v2, 4, v1
    v_xor_b32 v2, 4, v2
    v_lshl_add_u32 {v(vX+1)}, v2, 4, v1
    v_add_u32 {v(vX+1)}, {8*1152-1024}, {v(vX+1)}
    v_add_u32 {v(vX+2)}, {2*(8*1152-1024)}, {v(vX)}
    v_add_u32 {v(vX+3)}, {2*(8*1152-1024)}, {v(vX+1)}
    v_lshrrev_b32 v1, 4, v0
    v_lshlrev_b32 v2, 2, v1
    v_sub_u32 v2, v0, v2
    v_and_b32 v2, 15, v2
    v_mul_u32_u24 v1, 3456, v1
    v_lshl_add_u32 v5, v2, 4, v1
    s_cmp_eq_u32 {s(sCT)}, 13
    s_cselect_b32 s3, 8, 16
    v_cmp_gt_u32 vcc, s3, v2
    v_mov_b32 v7, {OOB:#x}
    s_nop 0
    v_cndmask_b32 {v(vW)}, v7, v5, vcc''')
    for i in range(1, 4): a(f'v_add_u32 {v(vW+i)}, {i*(4*3456-1024)}, {v(vW)}')
    su_loader_s(a)

def su_loader_s(a):
    a(f'''s_lshl_b32 {s(sXB)}, {s(sRT)}, 2
    s_add_u32 {s(sXB)}, {s(sXB)}, {s(sW4)}
    s_mul_i32 {s(sXB)}, {s(sXB)}, {32*1152}
    s_mul_i32 {s(sWB)}, {s(sW4)}, {16*3456}
    s_lshl_b32 s3, {s(sCT)}, 8
    s_add_u32 {s(sWB)}, {s(sWB)}, s3''')

def su_ids2(a):
    a(f'''s_lshl_b32 s3, {s(sXcd)}, 2
    s_and_b32 {s(sH)}, {s(sLoc)}, 3
    s_add_u32 {s(sH)}, {s(sH)}, s3
    s_lshr_b32 {s(sQB)}, {s(sLoc)}, 2
    s_lshr_b32 {s(sOT)}, {s(sLoc)}, 3
    s_add_u32 {s(sOT)}, {s(sOT)}, s3
    s_and_b32 {s(sOC)}, {s(sLoc)}, 7
    s_mov_b32 {s(sSpin)}, 0x40000
    s_and_b32 {s(sTH)}, {s(sWave)}, 1
    s_lshr_b32 {s(sMG)}, {s(sW4)}, 1
    s_cmp_lt_u32 {s(sWave)}, 4
    s_cselect_b32 {s(sImg)}, 0, {AOFF:#x}
    v_mov_b32 {v(vZero)}, 0
    v_mov_b32 {v(vCnt)}, {CNT}
    v_mov_b32 {v(vOne)}, 1''')

def su_token(a, part):
    lb = a.new('notok')
    a(f's_or_b32 s3, s2, {s(sWave)}\ns_cmp_lg_u32 s3, 0\ns_cbranch_scc1 {lb}\ns_mov_b32 {s(T0)}, {EPOCH:#x}')
    if part == 0:
        a(f'buffer_load_dword v10, {v(vZero)}, {srd(sWS)}, {s(T0)} offen sc1')
    else:
        a(f'''s_mov_b32 {s(T1)}, 1664525
        s_waitcnt vmcnt(0)
        v_mul_lo_u32 v6, v10, {s(T1)}
        v_add_u32 v6, 0x3c6ef35f, v6
        v_mov_b32 v7, 1
        s_mov_b64 exec, 1
        buffer_store_dwordx2 v[6:7], {v(vZero)}, {srd(sDBG)}, 0 offen sc1
        buffer_store_dword v6, {v(vZero)}, {srd(sWS)}, {s(T0)} offen sc1
        s_mov_b64 exec, -1''')
    a.label(lb)
    if part == 0:
        a(f's_cmp_lg_u32 {s(sWave)}, 1\ns_cbranch_scc1 L_nocnt\nv_lshlrev_b32 v1, 2, v0\nv_add_u32 v1, {CNT}, v1\nds_write_b32 v1, {v(vZero)}')
        a.label('L_nocnt')

def su_gaddr(a):
    lb = a.new('mg0')
    a.c('gemm fragment addresses')
    a(f'''v_and_b32 v1, 31, v0
    v_lshrrev_b32 v2, 5, v0
    v_bfe_u32 v3, v0, 1, 3
    v_xor_b32 v3, v3, v2
    s_lshl_b32 s3, {s(sTH)}, 13
    v_lshl_add_u32 v4, v1, 7, s3''')
    for k in range(4):
        a(f'v_xor_b32 v5, {2*k}, v3\nv_lshl_add_u32 {v(XAc+k)}, v5, 4, v4')
    a.c('which four-column chunk each lane group reads for the two 32-column tiles of this wave')
    a(f'''v_bfe_u32 v3, v0, 2, 2
    v_and_b32 v4, 3, v0
    v_bfe_u32 v5, v0, 4, 1
    v_lshl_add_u32 v4, v5, 2, v4
    v_lshl_add_u32 v5, v2, 3, v3
    v_lshlrev_b32 v5, 8, v5
    v_add_u32 v5, 16384, v5
    v_lshlrev_b32 v3, 2, v3
    s_lshl_b32 s3, {s(sMG)}, 4''')
    for u in range(2): a(f'v_add_u32 {v(WAc+u)}, s3, v4' + (f'\nv_add_u32 {v(WAc+u)}, 8, {v(WAc+u)}' if u else ''))
    a(f's_cmp_ge_u32 {s(sCT)}, 9\ns_cbranch_scc1 {lb}')
    a(f'''v_lshrrev_b32 v6, 2, v4
    v_and_b32 v7, 1, v4
    v_lshl_add_u32 v6, v6, 1, v7
    s_lshl_b32 s3, {s(sMG)}, 3
    s_add_u32 s3, s3, {s(sS0)}
    v_add_u32 v6, s3, v6
    v_lshrrev_b32 v7, 2, v6
    v_mul_u32_u24 v7, 9, v7
    v_and_b32 v1, 1, v6
    v_lshl_add_u32 v7, v1, 1, v7
    v_bfe_u32 v1, v6, 1, 1
    v_mul_u32_u24 v1, 5, v1
    v_bfe_u32 v6, v4, 1, 1
    v_add3_u32 v7, v7, v1, v6
    s_lshl_b32 s3, {s(sCT)}, 5
    v_subrev_u32 {v(WAc)}, s3, v7
    v_add_u32 {v(WAc+1)}, 9, {v(WAc)}
    s_cmp_eq_u32 {s(sMG)}, 0
    s_cbranch_scc1 {lb}''')
    misc_chunk(a, WAc+1, 4, 6)
    a.label(lb)
    for u in range(2):
        a(f'''v_lshrrev_b32 v6, 1, {v(WAc+u)}
        v_add_u32 v6, v6, v3
        v_and_b32 v6, 15, v6
        v_lshl_add_u32 v6, v6, 4, v5
        v_and_b32 {v(WAc+u)}, 1, {v(WAc+u)}
        v_lshl_add_u32 {v(WAc+u)}, {v(WAc+u)}, 3, v6''')

def misc_chunk(a, d, c8, t):
    a(f'''v_mul_u32_u24 {v(t)}, 5, {v(c8)}
    v_lshrrev_b32 {v(t)}, {v(t)}, {v(vTab)}
    v_and_b32 {v(t)}, 31, {v(t)}
    v_cmp_gt_u32 vcc, 4, {v(c8)}
    v_add_u32 {v(d)}, 24, {v(c8)}
    s_nop 0
    v_cndmask_b32 {v(d)}, {v(d)}, {v(t)}, vcc''')

def su_tab(a):
    a(f's_mov_b32 {s(sTab)}, {ct_table(0):#x}')
    for ct in range(1, 9): a(f's_cmp_eq_u32 {s(sCT)}, {ct}\ns_cselect_b32 {s(sTab)}, {ct_table(ct):#x}, {s(sTab)}')
    a(f'''s_lshr_b32 {s(sS0)}, {s(sTab)}, 20
    v_mov_b32 {v(vTab)}, {s(sTab)}
    s_lshl_b32 {s(sTile)}, {s(sRT)}, 2
    s_lshl_b32 s3, {s(sTH)}, 1
    s_add_u32 {s(sTile)}, {s(sTile)}, s3
    s_cmp_le_u32 {s(sCT)}, 4
    s_cselect_b32 {s(sDoSc)}, 1, 0
    s_cmp_eq_u32 {s(sImg)}, 0
    s_cselect_b32 {s(sDoSc)}, {s(sDoSc)}, 0
    s_cmp_ge_u32 {s(sLoc)}, 28
    s_cselect_b32 {s(sIdle)}, 1, 0
    v_lshlrev_b32 {v(v16)}, 4, v0
    v_lshlrev_b32 {v(vQL)}, 2, v0''')

def su_epi(a):
    lbS = a.new('es'); done = a.new('ed')
    a(f'''v_and_b32 v1, 31, v0
    v_lshrrev_b32 v2, 5, v0
    s_mul_i32 {s(T1)}, {s(sTile)}, {REC}
    s_cmp_ge_u32 {s(sCT)}, 9
    s_cbranch_scc1 {lbS}''')
    a.c('lane i < 12 works out where item i goes: a 16-byte slot (first chunk) or a single chunk of the mixed tile')
    a(f'''s_lshl_b32 s3, {s(sMG)}, 3
    s_add_u32 s3, s3, {s(sS0)}
    v_add_u32 v3, s3, v1
    v_lshrrev_b32 v4, 2, v3
    v_mul_u32_u24 v4, 9, v4
    v_and_b32 v5, 1, v3
    v_lshl_add_u32 v4, v5, 1, v4
    v_bfe_u32 v5, v3, 1, 1
    v_mad_u32_u24 v8, v5, 5, v4
    v_subrev_u32 v3, 4, v1''')
    misc_chunk(a, 4, 3, 5)
    a(f'''s_lshl_b32 {s(T4)}, {s(sCT)}, 5
    s_cmp_eq_u32 {s(sMG)}, 0
    s_cselect_b32 s3, 32, 4
    v_cmp_gt_u32 vcc, s3, v1
    v_add_u32 v4, {s(T4)}, v4
    s_add_u32 {s(T1)}, {s(T1)}, {(KV - 32*HREC) & 0xffffffff:#x}
    v_cndmask_b32 v4, v4, v8, vcc
    v_mul_u32_u24 v3, 7282, v4
    v_lshrrev_b32 v3, 16, v3
    v_mul_u32_u24 v5, 9, v3
    v_sub_u32 v8, v4, v5
    v_cmp_lt_u32 vcc, 4, v8
    v_lshlrev_b32 v3, 1, v3
    v_subrev_u32 v9, 5, v8
    v_addc_co_u32 v4, vcc, 0, v3, vcc
    v_min_u32 v9, v8, v9
    s_lshl_b32 {s(T0)}, {s(sTile)}, 10
    v_lshl_add_u32 v6, v4, 16, {s(T0)}
    v_mul_u32_u24 v5, {HREC}, v4
    v_cmp_gt_u32 vcc, 32, v4
    v_add_u32 v5, {s(T1)}, v5
    s_lshl_b32 {s(T2)}, {s(sTile)}, 8
    s_add_u32 {s(T2)}, {s(T2)}, {QL:#x}
    v_cndmask_b32 v6, v5, v6, vcc
    v_lshrrev_b32 v4, 1, v9
    v_lshl_add_u32 v6, v4, 9, v6
    v_and_b32 v4, 1, v9
    v_lshl_add_u32 v6, v4, 3, v6
    v_lshl_add_u32 v4, v3, 13, {s(T2)}
    v_mul_u32_u24 v5, {HREC}, v3
    s_add_u32 {s(T3)}, {s(T1)}, {HREC + KLOFF}
    v_add_u32 v5, {s(T3)}, v5
    v_mov_b32 v7, {REC + 16}
    v_mov_b32 v9, {1024 + 16}
    v_cndmask_b32 v4, v5, v4, vcc
    v_cndmask_b32 v7, v7, v9, vcc
    v_mov_b32 v5, {REC + 8}
    v_mov_b32 v9, {256 + 8}
    v_cndmask_b32 v5, v5, v9, vcc
    v_mov_b32 v9, {QSCALE:#x}
    v_cndmask_b32 v9, 1.0, v9, vcc
    v_cmp_eq_u32 vcc, 4, v8
    v_lshlrev_b32 v2, 2, v2
    s_nop 0
    v_cndmask_b32 v6, v6, v4, vcc
    v_cndmask_b32 v7, v7, v5, vcc''')
    for k in range(6):
        a(f'ds_bpermute_b32 {v(EA+2*k)}, v2, v6 offset:{8*k}\nds_bpermute_b32 {v(EA+2*k+1)}, v2, v7 offset:{8*k}')
    for k in range(6):
        a(f's_waitcnt lgkmcnt({10 - 2*k + k})\nds_bpermute_b32 {v(ES+k)}, v2, v9 offset:{8*k}')
        a(f'''v_and_b32 v3, 31, {v(EA+2*k+1)}
        v_mad_u32_u24 {v(EA+2*k)}, v1, v3, {v(EA+2*k)}
        v_sub_u32 v3, {v(EA+2*k+1)}, v3
        v_add_u32 {v(EA+2*k+1)}, {v(EA+2*k)}, v3''')
    a(f's_branch {done}')
    a.label(lbS)
    a(f's_add_u32 {s(T1)}, {s(T1)}, {KV:#x}\ns_sub_u32 {s(T2)}, {s(sCT)}, 9\ns_lshl_b32 {s(T2)}, {s(T2)}, 7')
    for u in range(2): su_epi_v(a, u)
    a.label(done)

def su_epi_v(a, u):
    e = EA + 2*u
    a(f'''s_lshl_b32 s3, {s(sMG)}, 6
    s_add_u32 s3, s3, {s(T2)}
    s_add_u32 s3, s3, {32*u}
    v_add_u32 v3, s3, v1
    v_mul_u32_u24 v4, 3641, v3
    v_lshrrev_b32 v4, 16, v4
    v_mul_u32_u24 v5, 18, v4
    v_sub_u32 v3, v3, v5
    v_and_b32 v5, 1, v4
    v_lshlrev_b32 v5, 1, v5
    v_sub_u32 v3, v3, v5
    v_add_u32 v5, 18, v3
    v_min_u32 v3, v3, v5
    v_mul_u32_u24 v5, {HREC}, v4
    v_add_u32 v5, {s(T1)}, v5
    v_lshl_add_u32 v5, v3, 4, v5
    v_lshl_add_u32 v6, v2, 8, v5
    v_add_u32 v6, 1024, v6
    v_lshl_add_u32 v7, v2, 5, v5
    v_add_u32 v7, {VLOFF - 256}, v7
    v_cmp_gt_u32 vcc, 16, v3
    v_add_u32 v8, 512, v6
    v_add_u32 v9, 64, v7
    v_cndmask_b32 v6, v7, v6, vcc
    v_cndmask_b32 v8, v9, v8, vcc
    v_cmp_gt_u32 vcc, 32, v4
    v_mov_b32 v7, {OOB:#x}
    s_nop 0
    v_cndmask_b32 {v(e)}, v7, v6, vcc
    v_cndmask_b32 {v(e+1)}, v7, v8, vcc''')
    if u:
        a.c('the row of ones of every head whose first column is in this tile')
        a(f'''s_add_u32 s3, {s(T2)}, 17
        s_mul_i32 s3, s3, 3641
        s_lshr_b32 s3, s3, 16
        v_and_b32 v3, 7, v0
        v_add_u32 v3, s3, v3
        v_mul_u32_u24 v4, 18, v3
        s_add_u32 {s(T2)}, {s(T2)}, 128
        s_min_u32 {s(T2)}, {s(T2)}, 576
        v_cmp_gt_u32 vcc, {s(T2)}, v4
        v_cmp_gt_u32 {s(T4,2)}, 16, v0
        s_and_b64 vcc, vcc, {s(T4,2)}
        v_mul_u32_u24 v3, {HREC}, v3
        v_bfe_u32 v4, v0, 3, 1
        v_mul_u32_u24 v4, {REC}, v4
        v_add3_u32 v3, v3, v4, {s(T1)}
        v_add_u32 v3, {ONEOFF}, v3
        v_cndmask_b32 {v(EA+4)}, v7, v3, vcc''')

def su_vgat(a):
    a.c('V fragment gather offsets inside a key-tile record')
    a('v_and_b32 v1, 31, v0\nv_lshrrev_b32 v2, 5, v0')
    a(f'''v_lshlrev_b32 v3, 4, v1
    v_lshl_add_u32 v3, v2, 8, v3
    v_add_u32 v3, 1024, v3
    v_subrev_u32 v4, 16, v1
    v_lshlrev_b32 v5, 4, v4
    v_lshl_add_u32 v5, v2, 5, v5
    v_add_u32 v5, {VLOFF}, v5
    v_cmp_gt_u32 vcc, 2, v4
    v_add_u32 v6, 64, v5
    v_mov_b32 v7, {OOB:#x}
    v_cndmask_b32 v5, v7, v5, vcc
    v_cndmask_b32 v6, v7, v6, vcc
    v_and_b32 v4, 27, v1
    v_cmp_eq_u32 vcc, 18, v4
    v_mov_b32 v7, {ONEOFF}
    s_nop 0
    v_cndmask_b32 v5, v5, v7, vcc
    v_cndmask_b32 v6, v6, v7, vcc
    v_cmp_gt_u32 vcc, 16, v1
    v_add_u32 v4, 512, v3
    s_nop 0
    v_cndmask_b32 {v(vVf)}, v5, v3, vcc
    v_cndmask_b32 {v(vVf+1)}, v6, v4, vcc''')

def prefetch_a(a):
    if not OPT.get('pf', 1): return
    top = a.new('pf'); isw = a.new('pfw'); nxt = a.new('pfn')
    a(f'''s_sub_u32 {s(T0)}, {s(sLoc)}, 28
    s_lshl_b32 {s(T0)}, {s(T0)}, 3
    s_add_u32 {s(T0)}, {s(T0)}, {s(sWave)}
    v_mul_u32_u24 v1, 1152, v0
    v_mul_u32_u24 v2, 3456, v0
    s_lshr_b32 {s(T4)}, {s(sXcd)}, 1
    s_mul_i32 {s(T4)}, {s(T4)}, {512*1152}
    s_and_b32 {s(T5)}, {s(sXcd)}, 1
    s_mul_i32 {s(T5)}, {s(T5)}, {7*256}''')
    a.label(top)
    a(f'''s_mul_i32 {s(T1)}, {s(T0)}, 2979
    s_lshr_b32 {s(T1)}, {s(T1)}, 16
    s_mul_i32 {s(T2)}, {s(T1)}, 22
    s_sub_u32 {s(T2)}, {s(T0)}, {s(T2)}
    s_cmp_ge_u32 {s(T2)}, 8
    s_cbranch_scc1 {isw}
    s_mul_i32 {s(T2)}, {s(T2)}, {64*1152}
    s_lshl_b32 {s(T1)}, {s(T1)}, 7
    s_add_u32 {s(T2)}, {s(T2)}, {s(T1)}
    s_add_u32 {s(T2)}, {s(T2)}, {s(T4)}
    buffer_load_dword v3, v1, {srd(sAX)}, {s(T2)} offen
    s_branch {nxt}''')
    a.label(isw)
    a(f'''s_sub_u32 {s(T2)}, {s(T2)}, 8
    s_lshl_b32 {s(T2)}, {s(T2)}, 7
    s_mul_i32 {s(T1)}, {s(T1)}, {64*3456}
    s_add_u32 {s(T2)}, {s(T2)}, {s(T1)}
    s_add_u32 {s(T2)}, {s(T2)}, {s(T5)}
    buffer_load_dword v3, v2, {srd(sAW)}, {s(T2)} offen''')
    a.label(nxt)
    a(f's_add_u32 {s(T0)}, {s(T0)}, 32\ns_cmp_lt_u32 {s(T0)}, 198\ns_cbranch_scc1 {top}')

def prefetch_wo(a):
    if not OPT.get('pfo', 0): return
    top = a.new('pfo')
    a(f'''s_sub_u32 {s(T0)}, {s(sLoc)}, 28
    s_lshl_b32 {s(T0)}, {s(T0)}, 2
    s_add_u32 {s(T0)}, {s(T0)}, {s(sW4)}
    s_lshl_b32 {s(T0)}, {s(T0)}, 13
    v_lshlrev_b32 v1, 7, v0''')
    a.label(top)
    a(f'''buffer_load_dword v3, v1, {srd(sAWO)}, {s(T0)} offen
    buffer_load_dword v3, v1, {srd(sBWO)}, {s(T0)} offen
    s_add_u32 {s(T0)}, {s(T0)}, {16*8192}
    s_cmp_lt_u32 {s(T0)}, {576*1152}
    s_cbranch_scc1 {top}''')

def su_acc(a):
    for r in range(40, 72, 2): a(f'v_pk_mov_b32 {v(r,2)}, {v(vZero,2)}, {v(vZero,2)}')
    for d in ACC.values(): mfma(a, d, 40, 44, None)

def su_share(a, regs, put, first=0):
    a(f's_mul_i32 s3, {s(sW4)}, 6656\ns_add_u32 s3, s3, {EAX}\nv_add_u32 v1, s3, {v(v16)}')
    off = first
    for r, n in regs:
        if n == 4: a(f'ds_write_b128 v1, {v(r,4)} offset:{off}' if put else f'ds_read_b128 {v(r,4)}, v1 offset:{off}')
        off += 1024
SH_P = [(XAc, 4), (WAc, 4), (EA, 4), (EA+4, 4), (EA+8, 4)]
SH_L = [(EA, 4), (EA+4, 4), (EA+8, 4), (ES, 4), (ES+4, 4)]

def slot_addr(a):
    for k in range(4): a(f'v_add_u32 {v(XAr+k)}, {s(T6)}, {v(XAc+k)}')
    for w in range(2): a(f'v_add_u32 {v(WAr+w)}, {s(T6)}, {v(WAc+w)}')
    a(f's_add_u32 {s(T6)}, {s(T6)}, 0x8000\ns_and_b32 {s(T6)}, {s(T6)}, 0x1ffff')

def prologue(a, opt):
    a(f's_cmp_ge_u32 s2, 256\ns_cbranch_scc1 L_end')
    ld_srd(a, (sBX, sBW, sWS, sDBG, sAX, sAW))
    if a.diag:
        for k in range(2, 14): a(f's_mov_b32 {s(SSTAMP+k)}, 0')
    if a.diag or opt.get('padto') or opt.get('padA') or opt.get('padB'): a(f's_memrealtime {s(SSTAMP,2)}')
    if opt.get('ipf', 1):
        a.c('workgroups without a gemm tile pull this code towards L2 (one dword per 128-byte line)')
        a(f'''s_cmp_lt_u32 s2, 224
        s_cbranch_scc1 L_noipf
        s_getpc_b64 s[66:67]'''.replace('s[66:67]', 's[98:99]'))
        a.label('L_pc')
        a(f'''v_lshlrev_b32 v1, 7, v0
        v_cmp_gt_u32 vcc, L_end-L_pc, v1
        s_and_saveexec_b64 s[100:101], vcc
        s_cbranch_execz L_ipfx
        global_load_dword v254, v1, s[98:99]''')
        a.label('L_ipfx')
        a('s_mov_b64 exec, s[100:101]')
        a.label('L_noipf')
    a(f'v_lshrrev_b32 v1, 6, v0\nv_and_b32 v0, 63, v0\nv_readfirstlane_b32 {s(sWave)}, v1')
    a(f'''s_and_b32 {s(sXcd)}, s2, 7
    s_lshr_b32 {s(sLoc)}, s2, 3
    s_mul_i32 {s(sRT)}, {s(sLoc)}, 37
    s_lshr_b32 {s(sRT)}, {s(sRT)}, 8
    s_mul_i32 s3, {s(sRT)}, 7
    s_sub_u32 {s(sCT)}, {s(sLoc)}, s3
    s_add_u32 {s(sRot)}, {s(sCT)}, {s(sRT)}
    s_and_b32 s3, {s(sXcd)}, 1
    s_mul_i32 s3, s3, 7
    s_add_u32 {s(sCT)}, {s(sCT)}, s3
    s_lshr_b32 s3, {s(sXcd)}, 1
    s_lshl_b32 s3, s3, 2
    s_add_u32 {s(sRT)}, {s(sRT)}, s3
    s_and_b32 {s(sW4)}, {s(sWave)}, 3''')
    r = opt.get('rot', 0)
    if r == 2:
        a(f's_mul_i32 s3, {s(sRot)}, 86\ns_lshr_b32 s3, s3, 8\ns_mul_i32 s3, s3, 3\ns_sub_u32 {s(sRot)}, {s(sRot)}, s3\ns_mul_i32 {s(sRot)}, {s(sRot)}, 3')
    elif r == 4:
        a(f's_and_b32 {s(sRot)}, {s(sRot)}, 3')
    elif r == 3:
        a(f's_and_b32 {s(sRot)}, {s(sRot)}, 1\ns_lshl_b32 {s(sRot)}, {s(sRot)}, 2')
    su_ids2(a)
    su_loader(a)
    mk_srd(a, (sBX, sBW))
    a(f's_cmp_eq_u32 {s(sImg)}, 0\ns_cbranch_scc1 L_pset')
    vm = VM()
    a(f's_setprio 1\ns_waitcnt lgkmcnt(0)\ns_cmp_ge_u32 {s(sLoc)}, 28\ns_cbranch_scc1 L_lset')
    for j in range(2): issue_chunk(a, j); vm.add(j, 8)
    a('s_branch L_lset')
    p_setup(a, opt)
    a.lock = bool(opt.get('p1'))
    gemm(a, opt)
    a.lock = False
    p_path(a, opt)
    a.label('L_pidle0')
    prefetch_a(a)
    a(f's_waitcnt vmcnt(0) lgkmcnt(0)\ns_barrier\ns_barrier\nds_read_b32 {v(vTok)}, {v(vCnt)} offset:{C_TOK}\ns_branch L_ppath')
    a.label('L_lset')
    a.c('================= waves 4-7: load the B tile =================')
    ld_srd(a, (sPHI, sAWO, sBWO, sOUT))
    mk_srd(a, (sAX, sAW, sPHI, sAWO, sBWO, sOUT, sDBG, sWS))
    su_tab(a)
    su_acc(a)
    a('s_waitcnt lgkmcnt(0)')
    if opt.get('epil'):
        a(f'v_mov_b32 {v(EA+4)}, {OOB:#x}')
        for r in range(EA + 5, EA + 20): a(f'v_mov_b32 {v(r)}, {v(EA+4)}')
        su_epi(a)
        a('s_waitcnt lgkmcnt(0)')
    a.stamp(1)
    a(f's_cmp_lg_u32 {s(sIdle)}, 0\ns_cbranch_scc1 L_lidle')
    for j in range(9):
        a(f's_waitcnt vmcnt({vm.after(j)})')
        if opt.get('p1') == 1: a.stamp(3 + j)
        a('s_barrier')
        if opt.get('p1') == 2: a.stamp(3 + j)
        if opt.get('p1') == 2 and j == 0: a.cyc0()
        if opt.get('p1') == 2 and j == 8: a.cyc1()
        sw = opt.get('sw', 9)
        for c in ([j + 2] if j < sw else [j + 2, j + 3] if j == sw else [j + 3]):
            issue_chunk(a, c); vm.add(c, 8)
            if c == 9: token_issue(a); vm.add('tok')
        if j == 0: su_vgat(a)
        if j == 1: su_share(a, SH_P if not opt.get('epil') else SH_P[:2], False)
        if j == opt.get('epil', 99): su_share(a, SH_L, True, 1536)
        if j == max(2, opt.get('epil', 0)):
            a('s_waitcnt lgkmcnt(0)')
            for r in range(EA, EA + 12): a(f'v_add_u32 {v(r)}, {AOFF:#x}, {v(r)}')
        if j == 3: a_setup(a, 0); vm.add('phi', 10)
        if j in (4, 5, 6): a_setup(a, j - 3)
        if j == 7: assert vm.after('phi') >= 24; a_setup(a, 4)
    a(f's_waitcnt vmcnt({vm.after("tok")})')
    token_check(a)
    a(f'ds_write_b32 {v(vCnt)}, {v(vTok)} offset:{C_TOK}\ns_mov_b32 {s(T6)}, {(9 % 4) * 32768}\ns_waitcnt lgkmcnt(0)')
    a(f's_setprio {opt.get("prio", 1)}')
    a.stamp(2)
    if opt.get('p1'): a.lock = True
    slot_addr(a)
    a(f's_mov_b32 {s(T7)}, 9\ns_mov_b32 {s(T5)}, {8 if opt.get("cs") else 0}\ns_barrier')
    if sw == 9: issue_chunk(a, 11)
    a(f's_cmp_ge_u32 {s(sCT)}, 9\ns_cbranch_scc1 L_gSb\ns_branch L_gNb')
    a.label('L_lidle')
    a.c('four workgroups per group of 32 have no gemm tile')
    prefetch_a(a)
    a('s_waitcnt vmcnt(0)')
    prefetch_wo(a)
    a('s_waitcnt vmcnt(0)')
    su_vgat(a)
    for p in range(4): a_setup(a, p)
    token_issue(a)
    a('s_waitcnt vmcnt(0)')
    a_setup(a, 4)
    token_check(a)
    a(f's_barrier\nds_write_b32 {v(vCnt)}, {v(vTok)} offset:{C_TOK}\ns_setprio {opt.get("prio", 1)}\ns_waitcnt lgkmcnt(0)\ns_barrier\ns_branch L_achain')

def p_setup(a, opt):
    a.label('L_pset')
    a.c('================= waves 0-3: set-up =================')
    su_tab(a); su_gaddr(a)
    a(f'v_mov_b32 {v(EA+4)}, {OOB:#x}')
    for r in range(EA + 5, EA + 12): a(f'v_mov_b32 {v(r)}, {v(EA+4)}')
    a('s_waitcnt lgkmcnt(0)')
    ld_srd(a, (sOUT,))
    mk_srd(a, (sWS, sDBG, sAX, sAW, sOUT))
    su_token(a, 0)
    a(f's_cmp_lg_u32 {s(sIdle)}, 0\ns_cbranch_scc1 L_pidle0')
    a('s_waitcnt lgkmcnt(0)')
    if not opt.get('epil'): su_epi(a)
    su_share(a, SH_P if not opt.get('epil') else SH_P[:2], True)
    su_acc(a)
    su_token(a, 1)
    a(f's_waitcnt lgkmcnt(0)\ns_mov_b32 {s(T6)}, 0')
    a.stamp(1)
    if a.diag: a('s_mov_b32 s82, 0')

def gemm(a, opt):
    sSlot, sIt, sCnt = T6, T7, T5
    a.label('L_gemm')
    a.c('================= qkv gemm (waves 0-3: B, waves 4-7: A) =================')
    slot_addr(a)
    a(f's_mov_b32 {s(sIt)}, 9\ns_mov_b32 {s(sCnt)}, 0\ns_cmp_ge_u32 {s(sCT)}, 9\ns_cbranch_scc1 L_gS')
    def mid():
        lb = a.new('mid')
        a(f's_cmp_lg_u32 {s(sImg)}, 0\ns_cbranch_scc1 {lb}')
        if opt.get('cs'): lds_wait(a, 1, C_G, 4, sl=0)
        else: a('s_barrier')
        issue_chunk(a, 13)
        a.label(lb)
    def loop(o):
        def reads(k):
            F = FS[k]
            rd = lambda w, j: f'ds_read_b64_tr_b16 {v(F+8+4*w+2*j,2)}, {v(WAr+w)} offset:{4096*k+1024*j}'
            rx = lambda tt: f'ds_read_b128 {v(F+4*tt,4)}, {v(XAr+k)} offset:{4096*tt}'
            if opt.get('nord'): return ['s_nop 0'] * 6
            return [rd(0, 0), rd(0, 1), rx(0), rx(1), rd(1, 0), rd(1, 1)]
        def mms(k):
            m = []
            for w, nm in enumerate('ab'):
                for tt in range(2):
                    x, wf = FS[k]+4*tt, FS[k]+8+4*w
                    m.append(mfma_s(ACC[(nm, tt)], wf, x, ACC[(nm, tt)]) if o == 'N' else mfma_s(ACC[(nm, tt)], x, wf, ACC[(nm, tt)]))
            if opt.get('nomm'): m = ['s_nop 0'] * 4
            if opt.get('m16'):
                def two(x, i0):
                    g = re.match(r'\S+ v\[(\d+):\d+\], (\S+), (\S+), ', x); d = int(g.group(1))
                    return '\n'.join(f'v_mfma_f32_16x16x32_bf16 {v(d+4*i,4)}, {g.group(2)}, {g.group(3)}, {v(d+4*i,4)}' for i in (i0, i0+1))
                m = [two(x, 2*(k & 1)) for x in m]
            return m
        def grp(km, kr, wait=None, x1=None, x2=None):
            m = mms(km); r = reads(kr)
            if wait is not None: a(f's_waitcnt lgkmcnt({wait})')
            a(m[0]); a(r[0]); a(r[1]); a(r[2]); a(m[1]); a(r[3]); a(r[4]); a(r[5])
            if x1: x1()
            a(m[2])
            if x2: x2()
            a(m[3])
        a.label(f'L_g{o}')
        if opt.get('p3'): a.lstamp(s(sIt), 16)
        if opt.get('cs'): a(f's_cmp_lg_u32 {s(sCnt)}, 0\ns_cbranch_scc1 L_g{o}c')
        a('s_barrier')
        a.label(f'L_g{o}b')
        if opt.get('p3'): a.lstamp(s(sIt), 32)
        def book():
            w8 = a.new('w8')
            a(f's_cmp_eq_u32 {s(sIt)}, 9\ns_cbranch_scc1 {w8}\ns_waitcnt vmcnt(0)')
            a.label(w8)
            if opt.get('lp0', 1):
                lo = a.new('lo')
                a(f's_cmp_lg_u32 {s(sIt)}, 2\ns_cbranch_scc1 {lo}\ns_setprio 0')
                a.label(lo)
            a(f's_sub_u32 {s(sIt)}, {s(sIt)}, 1\ns_cmp_lg_u32 {s(sIt)}, 0')
        grp(2, 0); grp(3, 1); grp(0, 2, 6); grp(1, 3, 6, lambda: slot_addr(a), book)
        a(f's_waitcnt vmcnt(8) lgkmcnt(0)\ns_cbranch_scc1 L_g{o}')
        if opt.get('cs'):
            def cs_block(o=o):
                a.label(f'L_g{o}c')
                lds_arrive(a, C_G)
                a(f's_sub_u32 {s(sCnt)}, {s(sCnt)}, 4\ns_sub_u32 {s(T1)}, 8, {s(sCnt)}')
                lds_wait(a, 1, C_G, s(T1), sl=0)
                a(f's_branch L_g{o}b')
            a.late.append(cs_block)
        m = mms(2) + mms(3)
        a(f's_cmp_lg_u32 {s(sImg)}, 0\ns_cbranch_scc1 L_gf{o}\ns_barrier\ns_setprio 2\nds_read_b32 {v(vTok)}, {v(vCnt)} offset:{C_TOK}')
        if opt.get('epil'): su_share(a, SH_L, False, 1536)
        issue_chunk(a, 12)
        a.label(f'L_gf{o}')
        for i in (0, 1, 4, 5, 2, 3, 6, 7): a(m[i])
        if opt.get('lp0', 1):
            lo = a.new('lo')
            a(f's_cmp_eq_u32 {s(sImg)}, 0\ns_cbranch_scc1 {lo}\ns_setprio 1')
            a.label(lo)
        if opt.get('epil'): a('s_waitcnt lgkmcnt(0)')
        a.stamp(3)
    def scale(nm, sc, n):
        lb = a.new('nosc')
        a(f's_cmp_eq_u32 {s(sDoSc)}, 0\ns_cbranch_scc1 {lb}')
        for tt in range(2):
            for i in range(16): a(f'v_mul_f32 {v(ACC[(nm, tt)]+i)}, {v(sc + i//n)}, {v(ACC[(nm, tt)]+i)}')
        a.label(lb)
    def epi_main(u):
        nm = 'ab'[u]
        scale(nm, ES + 2*u, 8)
        for tt in range(2):
            for qp in range(2):
                r = ACC[(nm, tt)] + 8*qp
                cvt8(a, r, r)
                a(f'buffer_store_dwordx4 {v(r,4)}, {v(EA + 4*u + 2*qp + tt)}, {srd(sWS)}, 0 offen sc1')
    def epi_misc():
        scale('b', ES + 2, 4)
        for tt in range(2):
            for h in range(2):
                r = ACC[('b', tt)] + 8*h
                cvt8(a, r, r)
                for q in range(2): a(f'buffer_store_dwordx2 {v(r+2*q,2)}, {v(EA + 4 + 2*(2*h+q) + tt)}, {srd(sWS)}, 0 offen sc1')
    def epi_v(u):
        nm = 'ab'[u]
        for tt in range(2):
            for f in range(2):
                r = ACC[(nm, tt)] + 8*f
                cvt8(a, r, r)
                a(f'buffer_store_dwordx4 {v(r,4)}, {v(EA + 2*u + f)}, {srd(sWS)}, 0 offen offset:{REC*tt} sc1')
    loop('N')
    a.nop(6); epi_main(0); mid()
    a(f's_cmp_lg_u32 {s(sMG)}, 0\ns_cbranch_scc1 L_emisc')
    epi_main(1); a('s_branch L_epi_done')
    a.label('L_emisc')
    epi_misc(); a('s_branch L_epi_done')
    loop('S')
    for i in range(4): a(f'v_mov_b32 {v(4+i)}, 0x3f803f80')
    a.nop(4); epi_v(0); mid(); epi_v(1)
    a(f's_cmp_lg_u32 {s(sMG)}, 0\ns_cbranch_scc1 L_epi_done\nbuffer_store_dwordx4 v[4:7], {v(EA+4)}, {srd(sWS)}, 0 offen sc1')
    a.label('L_epi_done')
    a.stamp(4)
    a(f's_cmp_lg_u32 {s(sImg)}, 0\ns_cbranch_scc1 L_achain')
    a.label('L_ppath')

def op_addr(a, vm, vm2, vl, vl2, vt, skq_bytes):
    t0, t1, t2, t3, t4 = vt, vt+1, vt+2, vt+3, vt+4
    a(f'''v_bfe_u32 {v(t0)}, v0, 2, 2
    v_lshrrev_b32 {v(t1)}, 5, v0
    v_and_b32 {v(t2)}, 3, v0
    v_bfe_u32 {v(t3)}, v0, 4, 1
    v_lshl_add_u32 {v(t2)}, {v(t3)}, 2, {v(t2)}
    v_lshl_add_u32 {v(t3)}, {v(t1)}, 2, {v(t0)}
    v_mul_u32_u24 {v(t3)}, 144, {v(t3)}
    v_add_u32 {v(t3)}, {s(skq_bytes)}, {v(t3)}
    v_lshl_add_u32 {v(vm)}, {v(t2)}, 3, {v(t3)}
    v_and_b32 {v(t4)}, 1, v0
    v_lshlrev_b32 {v(t4)}, 3, {v(t4)}
    v_add_u32 {v(t4)}, 128, {v(t4)}
    v_add_u32 {v(vm2)}, {v(t4)}, {v(t3)}
    v_mul_u32_u24 {v(t1)}, 72, {v(t1)}
    v_and_b32 {v(t3)}, 2, {v(t0)}
    v_and_b32 {v(t0)}, 1, {v(t0)}
    v_add3_u32 {v(t1)}, {v(t1)}, {v(t3)}, {v(t0)}
    v_add_u32 {v(t1)}, 16, {v(t1)}
    v_mul_u32_u24 {v(t1)}, 144, {v(t1)}
    v_add_u32 {v(t1)}, {s(skq_bytes)}, {v(t1)}
    v_lshl_add_u32 {v(vl)}, {v(t2)}, 3, {v(t1)}
    v_add_u32 {v(vl2)}, {v(t4)}, {v(t1)}''')

def op_w_reads(W, vm, vm2, vl, vl2, st):
    r = []
    for T in range(3):
        for j in range(2):
            if st < 8:
                off = (18*st + 8*j + (2 if st & 1 else 0)) * 144; base = vm if T < 2 else vm2
            else:
                off = 36*j*144; base = vl if T < 2 else vl2
            r.append(f'ds_read_b64_tr_b16 {v(W + 12*st + 4*T + 2*j, 2)}, {v(base)} offset:{off + (64 if T == 1 else 0)}')
    return '\n'.join(r)
def op_read_w(a, W, vm, vm2, vl, vl2):
    for st in range(9): a(op_w_reads(W, vm, vm2, vl, vl2, st))

def op_load_o(a, O, vo16, vol, sM, sM2, sL, thr=False):
    for i in range(8):
        a(f'buffer_load_dwordx4 {v(O+4*i,4)}, {v(vo16)}, {srd(sWS)}, {s(sM if i < 4 else sM2)} offen offset:{1024*(i&3)} sc1')
        if thr and i % 4 == 3: a('s_waitcnt vmcnt(0)')
    for i in range(4):
        a(f'buffer_load_dword {v(O+32+i)}, {v(vol)}, {srd(sWS)}, {s(sL)} offen offset:{128*i} sc1')

def op_mfma(a, AC, W, O, first):
    for st in range(9):
        a(f's_waitcnt vmcnt({11 - st if st < 8 else 0})')
        for T in range(3):
            mfma(a, AC + 16*T, W + 12*st + 4*T, O + 4*st, None if (first and st == 0) else AC + 16*T)

def issue_grp(a, sr, kq, slot, P):
    skip = a.new('r8')
    if P == 2: a(f's_cmp_ge_u32 {s(sW4)}, 3\ns_cbranch_scc1 {skip}')
    a(f'''s_lshl_b32 s3, {s(sW4)}, 10
    s_add_u32 m0, s3, {slot + 9*1024*P}
    s_add_u32 {s(sFree)}, {s(sWB)}, {(144*kq + 64*P)*1152}
    buffer_load_dwordx4 {v(vWO)}, {srd(sr)}, {s(sFree)} offen lds''')
    if P < 2:
        a(f'''s_add_u32 m0, s3, {slot + 9*1024*P + 4096}
        s_cmp_lg_u32 {s(sW4)}, {2*(kq & 1) + P}
        buffer_load_dwordx4 {v(vWO+1)}, {srd(sr)}, {s(sFree)} offen lds
        s_cbranch_scc1 {skip}
        s_mov_b32 m0, {slot + 9*1024*P + 8192}
        s_nop 0
        buffer_load_dwordx4 {v(vWO+2)}, {srd(sr)}, {s(sFree)} offen lds''')
    a.label(skip)
def issue_blk(a, sr, kq, slot):
    for P in range(3):
        issue_grp(a, sr, kq, slot, P)
        if OPT.get('thr', 3): a(f's_waitcnt vmcnt({OPT.get("thr", 3) - 1})')

def p_path(a, opt):
    vK, vKL, vV0, vV1 = 8, 10, 12, 14
    Qr, QLr, M = 16, 32, 36
    Kb, KLb, Vb, Sb, Ob = 40, 56, 64, 96, 160
    sCur, sNext, sLo, sHi, sN = T2, T3, T4, T5, T6
    sQm, sQl, sChk = 56, 57, 58
    sLo2, sHi2, sCur2 = 60, 61, 62
    a.c('================= waves 0-3: load the rest of the A tile, publish B =================')
    vm = VM()
    vm.add(12, 8); vm.add('sa', 4); vm.add(13, 8); vm.add('sb', 4)
    su_vgat(a)
    kl_const(a, T0, sH)
    a(f'''v_and_b32 v1, 31, v0
    v_mov_b32 {v(vK)}, {v(v16)}
    v_lshl_add_u32 {v(vKL)}, v1, 3, {s(T0)}
    v_mov_b32 {v(vV0)}, {v(vVf)}
    v_mov_b32 {v(vV1)}, {v(vVf+1)}''')
    for r in (vK, vKL, vV0, vV1): a(f'v_add_u32 {v(r+1)}, {2*REC}, {v(r)}')
    a.c('flags this wave waits for: lanes 0-15 k, 16-31 v (8 row tiles x first/last column tile), 32.. q')
    a(f'''v_lshrrev_b32 v2, 4, v0
    v_add_u32 v2, 1, v2
    v_cmp_gt_u32 vcc, 32, v0
    v_bfe_u32 v3, v0, 3, 1
    v_and_b32 v4, 1, v0
    v_cndmask_b32 v2, 0, v2, vcc
    v_cndmask_b32 v3, v4, v3, vcc
    s_lshl_b32 {s(T2)}, {s(sMG)}, 3
    v_and_b32 v4, 7, v0
    v_add_u32 v4, {s(T2)}, v4
    s_lshl_b32 {s(T3)}, {s(sQB)}, 1
    s_add_u32 {s(T3)}, {s(T3)}, {s(sTH)}
    v_mov_b32 v5, {s(T3)}
    v_cndmask_b32 v4, v5, v4, vcc''')
    producer_ct(a, 5, 2, 3, sH, 6)
    a(f'v_lshl_add_u32 v5, v5, 4, v4\nv_lshlrev_b32 v5, 7, v5\nv_add_u32 {v(vPoll)}, {FL1:#x}, v5\nv_lshlrev_b32 v7, 3, v0')
    for r in (QLr+1, QLr+3, KLb+1, KLb+3, KLb+5, KLb+7): a(f'v_mov_b32 {v(r)}, 0')
    def tail_setup():
        final_setup(a)
        a(f's_mul_i32 {s(T0)}, {s(sMG)}, {WBLK}\ns_add_u32 {s(T0)}, {s(T0)}, {SLOT_B[0]}')
        op_addr(a, vWb, vWb+1, vWb+2, vWb+3, 1, T0)
    a(f'''s_lshl_b32 {s(T0)}, {s(sH)}, 6
    s_lshl_b32 {s(T1)}, {s(sMG)}, 5
    s_add_u32 {s(T0)}, {s(T0)}, {s(T1)}
    s_mul_i32 {s(sLo)}, {s(T0)}, {REC}
    s_add_u32 {s(sLo)}, {s(sLo)}, {KV:#x}
    s_add_u32 {s(sHi)}, {s(sLo)}, {32*REC}
    s_lshl_b32 {s(T0)}, {s(sQB)}, 1
    s_add_u32 {s(T0)}, {s(T0)}, {s(sTH)}
    s_lshl_b32 {s(T1)}, {s(sH)}, 4
    s_add_u32 {s(T0)}, {s(T0)}, {s(T1)}
    s_lshl_b32 {s(sQm)}, {s(T0)}, 12
    s_lshr_b32 {s(T1)}, {s(sH)}, 1
    s_lshl_b32 {s(T1)}, {s(T1)}, 4
    s_add_u32 {s(T1)}, {s(T1)}, {s(T3)}
    s_lshl_b32 {s(sQl)}, {s(T1)}, 10
    s_and_b32 {s(T1)}, {s(sH)}, 1
    s_lshl_b32 {s(T1)}, {s(T1)}, 2
    s_add_u32 {s(sQl)}, {s(sQl)}, {s(T1)}
    s_add_u32 {s(sQl)}, {s(sQl)}, {QL:#x}''')
    flag_addr(a, T1, sCT, sRT, 4, FL1)
    a('s_waitcnt lgkmcnt(0)')
    a.c('================= waves 0-3: attention =================')
    def kv_loads(b, sreg):
        o = REC * (b & 1); u = b >> 1
        return [f'buffer_load_dwordx4 {v(Kb+4*b,4)}, {v(vK+u)}, {srd(sWS)}, {s(sreg)} offen offset:{o} sc1',
                f'buffer_load_dword {v(KLb+2*b)}, {v(vKL+u)}, {srd(sWS)}, {s(sreg)} offen offset:{o} sc1',
                f'buffer_load_dwordx4 {v(Vb+8*b,4)}, {v(vV0+u)}, {srd(sWS)}, {s(sreg)} offen offset:{o} sc1',
                f'buffer_load_dwordx4 {v(Vb+8*b+4,4)}, {v(vV1+u)}, {srd(sWS)}, {s(sreg)} offen offset:{o} sc1']
    def start_groups():
        a(f'''s_mul_i32 {s(sCur)}, {s(sQB)}, {4*REC}
        s_add_u32 {s(sCur)}, {s(sCur)}, {s(sLo)}
        s_add_u32 {s(sNext)}, {s(sCur)}, {4*REC}
        s_cmp_eq_u32 {s(sNext)}, {s(sHi)}
        s_cselect_b32 {s(sNext)}, {s(sLo)}, {s(sNext)}
        s_mov_b32 {s(sN)}, 8''')
    adv_groups = f'''s_mov_b32 {s(sCur)}, {s(sNext)}
        s_add_u32 {s(sNext)}, {s(sNext)}, {4*REC}
        s_cmp_eq_u32 {s(sNext)}, {s(sHi)}
        s_cselect_b32 {s(sNext)}, {s(sLo)}, {s(sNext)}
        s_cmp_eq_u32 {s(sN)}, 2
        s_cselect_b32 {s(sNext)}, {OOB:#x}, {s(sNext)}'''
    def qk(N, kb, qp):
        return (mfma_s(N, KLb+2*kb, QLr+2*qp, None, '2b'), mfma_s(N, Kb+4*kb, Qr+8*qp, N), mfma_s(N+16, Kb+4*kb, Qr+8*qp+4, N+16))
    def step(qp, kb, ins, sub):
        S = Sb + 32*qp; N = Sb + 32*(1-qp)
        nkb = kb if qp == 0 else (kb+1) % 4
        pkb = (kb-1) % 4 if qp == 0 else kb
        QLm, Q0m, Q1m = qk(N, nkb, 1-qp)
        def E(x, y):
            for i in range(x, y):
                if sub: a(f'v_sub_f32 {v(S+i)}, {v(S+i)}, {v(M + 2*qp + i//16)}')
                a(f'v_exp_f32 {v(S+i)}, {v(S+i)}')
        def C(x, y):
            for j in range(x, y):
                b = S + 16*(j//8); k = j % 8
                if opt.get('perm'): a(f'v_perm_b32 {v(b + (k % 4) + 8*(k//4))}, {v(b+2*k+1)}, {v(b+2*k)}, {s(59)}')
                else: a(f'v_cvt_pk_bf16_f32 {v(b + (k % 4) + 8*(k//4))}, {v(b+2*k)}, {v(b+2*k+1)}')
        def PV(t, f):
            o = Ob + 32*qp + 16*t
            mfma(a, o, Vb + 8*kb + 4*f, S + 16*t + 8*f, o)
        def I(k):
            if k in ins: a(ins[k])
        E(0, 2)
        o = Ob + 32*(1-qp) + 16
        mfma(a, o, Vb + 8*pkb + 4, N + 24, o); I('p')
        if opt.get('x8'):
            L0 = mfma_s(N, KLb+2*nkb, QLr+2*(1-qp), None, '8'); L1 = mfma_s(N+16, KLb+2*nkb, QLr+2*(1-qp), None, '8')
            E(2, 5); a(L0); I('q'); E(5, 9); a(L1); C(0, 4); E(9, 11); PV(0, 0); I('m0'); E(11, 17); C(4, 6); a(Q0m); I('m1')
        elif opt.get('noql'):
            Q0m = mfma_s(N, Kb+4*nkb, Qr+8*(1-qp), None); Q1m = mfma_s(N+16, Kb+4*nkb, Qr+8*(1-qp)+4, None)
            E(2, 5); I('q'); E(5, 9); C(0, 4); E(9, 11); PV(0, 0); I('m0'); E(11, 17); C(4, 6); a(Q0m); I('m1')
        else:
            E(2, 5); a(QLm); I('q'); E(5, 9); C(0, 4); E(9, 11); PV(0, 0); I('m0'); E(11, 17); C(4, 6); a(Q0m); I('m1')
        C(6, 8); E(17, 19); PV(0, 1); I('m2'); E(19, 25); C(8, 12); a(Q1m); I('m3'); E(25, 28); PV(1, 0); I('m4'); E(28, 32); C(12, 16)
    def attn_init_a():
        for r in range(Ob+16, Ob+64): a(f'v_mov_b32 {v(r)}, 0')
        for r in range(Vb+28, Vb+32): a(f'v_mov_b32 {v(r)}, 0')
    def attn_init_b():
        for r in range(Ob, Ob+16): a(f'v_mov_b32 {v(r)}, 0')
        for r in range(Sb+56, Sb+60): a(f'v_mov_b32 {v(r)}, 0')
    def attn_init(): attn_init_a(); attn_init_b()
    def attn_loop(name, sub):
        a(f's_waitcnt vmcnt({12 if opt.get("deep") else 8})')
        m = qk(Sb, 0, 0); a(m[0]); a.nop(18); a(m[1]); a(m[2]); a.nop(10); a('s_setprio 0')
        if opt.get('padA'):
            a.label('L_padA')
            a(f's_memrealtime s[94:95]\ns_waitcnt lgkmcnt(0)\ns_sub_u32 s94, s94, s80\ns_cmp_lt_u32 s94, {opt["padA"]}\ns_cbranch_scc1 L_padA')
        if not sub: a.stamp(7); a.cyc0()
        a('.p2align 6')
        a.label(name)
        for t in range(4):
            ld = kv_loads((t+3) % 4, sCur if t == 0 else sNext)
            lp = opt.get('ldp', 0)
            if opt.get('xl') == 1 and t & 1: ld = [ld[0], '', ld[2], ld[3]]
            if opt.get('xl') == 2: ld = ['', '', '', '']
            if opt.get('xl') == 3: ld = [x.replace(' sc1', '') for x in ld]
            J = '\n'.join
            ins0, ins = [({'q': ld[0], 'm0': ld[1], 'm1': ld[2], 'm2': ld[3]}, {}),
                         ({'q': J(ld)}, {}),
                         ({'q': J(ld[:2]), 'm1': J(ld[2:])}, {}),
                         ({'q': J(ld[:2])}, {'q': J(ld[2:])}),
                         ({'q': ld[0], 'm1': ld[1]}, {'q': ld[2], 'm3': ld[3]}),
                         ({'m0': ld[0], 'm2': ld[1], 'm4': ld[2]}, {'m2': ld[3]})][lp]
            if opt.get('deep'):
                ins0 = {'q': J(ld[2:]) + '\ns_waitcnt vmcnt(12)'}
                ins = {'q': J(kv_loads(t, sNext)[:2])}
            step(0, t, ins0, sub)
            ins['p'] = f's_waitcnt vmcnt({10 if opt.get("deep") else 8 - sum(len(x.split(chr(10))) for x in ins.values())})'
            if t == 3:
                ins['m3'] = ins.get('m3', '') + '\n' + adv_groups
                ins['m4'] = f's_sub_u32 {s(sN)}, {s(sN)}, 1\ns_cmp_lg_u32 {s(sN)}, 0'
            step(1, t, ins, sub)
        if opt.get('p5'):
            a(f's_memtime s[94:95]\ns_waitcnt lgkmcnt(0)\ns_mov_b32 m0, {s(sN)}\ns_sub_u32 s94, s94, s93\nv_writelane_b32 v243, s94, m0\ns_cmp_lg_u32 {s(sN)}, 0')
        a(f's_cbranch_scc1 {name}')
        a.nop(1)
        mfma(a, Ob + 48, Vb + 28, Sb + 56, Ob + 48)
    def first_loads():
        for t in range(4): a(f'buffer_load_dwordx4 {v(Qr+4*t,4)}, {v(v16)}, {srd(sWS)}, {s(sQm)} offen offset:{1024*t} sc1')
        for j in range(2): a(f'buffer_load_dword {v(QLr+2*j)}, v7, {srd(sWS)}, {s(sQl)} offen offset:{512*j} sc1')
        for b in range(3):
            for x in kv_loads(b, sCur): a(x)
        if opt.get('deep'):
            for x in kv_loads(3, sCur)[:2]: a(x)
    a(f'v_readfirstlane_b32 {s(sTok)}, {v(vTok)}\ns_cmp_lg_u32 {s(sIdle)}, 0\ns_cbranch_scc1 L_pidle')
    if opt.get('cs'): lds_wait(a, 2, C_G, 8, sl=0)
    else: a('s_barrier')
    issue_chunk(a, 14); vm.add(14, 8)
    start_groups(); attn_init_a()
    for j in range(12, 16):
        sig = opt.get('sig', 13)
        a(f's_waitcnt vmcnt({min(vm.after(j), vm.after("sb")) if j == sig else vm.after(j)})')
        if j == sig:
            last_signals(a, 2, C_F1, 4, T1)
            a.stamp(5)
        a('s_barrier')
        if j == 14: a(f'buffer_load_dword v2, {v(vPoll)}, {srd(sWS)}, 0 offen sc1'); vm.add('fl')
        if j + 3 <= 17: issue_chunk(a, j + 3); vm.add(j + 3, 8)
        if j == sig: attn_init_b()
        if j == 13: tail_setup()
    a(f's_waitcnt vmcnt(8)\nv_cmp_ne_u32 vcc, {s(sTok)}, v2\ns_cbranch_vccnz L_late')
    first_loads()
    a(f's_barrier\ns_waitcnt vmcnt({20 if opt.get("deep") else 18})\ns_barrier\ns_branch L_go')
    a.label('L_late')
    a('s_barrier\ns_waitcnt vmcnt(0)\ns_barrier')
    if a.diag: a('s_mov_b32 s82, -1')
    a('s_branch L_poll')
    a.label('L_pidle')
    start_groups(); attn_init(); tail_setup()
    a.label('L_poll')
    poll_flags(a, vPoll, 2)
    first_loads()
    a.label('L_go')
    a('s_mov_b32 s59, 0x07060302')
    a.stamp(6)
    attn_loop('L_attn', False)
    a.cyc1()
    if opt.get('padB'):
        a.label('L_padB')
        a(f's_memrealtime s[94:95]\ns_waitcnt lgkmcnt(0)\ns_sub_u32 s94, s94, s80\ns_cmp_lt_u32 s94, {opt["padB"]}\ns_cbranch_scc1 L_padB')
    a.stamp(8)
    a.nopk = bool(opt.get('nopk', 1))
    a(f'''s_setprio 2
    s_mul_i32 {s(T0)}, {s(sWave)}, 6144
    v_add_u32 v1, {s(T0)}, {v(v16)}
    s_xor_b32 {s(T0)}, {s(sWave)}, 2
    s_mul_i32 {s(T0)}, {s(T0)}, 6144
    v_add_u32 v6, {s(T0)}, {v(v16)}
    s_lshl_b32 {s(T0)}, {s(sQB)}, 3
    s_lshl_b32 {s(T1)}, {s(sTH)}, 2
    s_add_u32 {s(T0)}, {s(T0)}, {s(T1)}
    s_lshl_b32 {s(T1)}, {s(sMG)}, 1
    s_add_u32 {s(T0)}, {s(T0)}, {s(T1)}
    s_cmp_eq_u32 {s(sMG)}, 0
    s_cbranch_scc1 L_red0''')
    def red_write(o0):
        for t in range(2):
            o = o0 + 16*t
            a(f'ds_write_b128 v1, {v(o,4)} offset:{3072*t}\nds_write_b128 v1, {v(o+4,4)} offset:{3072*t+1024}\nds_write_b96 v1, {v(o+8,3)} offset:{3072*t+2048}')
    a.c('exchange partial sums with the wave that did the other half of the keys; keep query pair kh in Ob..Ob+31')
    red_write(Ob)
    for t in range(2):
        for i in range(0, 12, 2): a(f'v_pk_mov_b32 {v(Ob+16*t+i,2)}, {v(Ob+32+16*t+i,2)}, {v(Ob+32+16*t+i,2)} op_sel:[0,1]')
    a('s_branch L_red1')
    a.label('L_red0')
    red_write(Ob + 32)
    a.label('L_red1')
    a(f's_lshr_b32 {s(T6)}, {s(T0)}, 1')
    flag_addr(a, T1, T6, sH, 5, FL4)
    a.c('hint for the consumers that this wave\'s rows are about to be written; they check the data itself against the marker')
    a(f'v_mov_b32 v2, {s(T1)}\nv_mov_b32 v3, {s(sTok)}\ns_mov_b64 exec, 1\nbuffer_store_dword v3, v2, {srd(sWS)}, 0 offen sc1\ns_mov_b64 exec, -1')
    o_addr(a, sH, OBM, OBL)
    a(f's_mov_b32 {s(T0)}, {f2u(2.0**-64):#x}\ns_mov_b32 {s(T6)}, {f2u(2.0**64):#x}\ns_mov_b32 {s(T7)}, {f2u(2.0**120):#x}')
    if opt.get('p4'): a.stamp(3)
    a('s_waitcnt vmcnt(1) lgkmcnt(0)')
    if opt.get('p4'): a.stamp(4)
    a('s_barrier')
    if opt.get('p4'): a.stamp(5)
    for part in range(3):
        for t in range(2):
            o = Ob + 32 + 16*t
            a([f'ds_read_b96 {v(o+8,3)}, v6 offset:{3072*t+2048}', f'ds_read_b128 {v(o,4)}, v6 offset:{3072*t}', f'ds_read_b128 {v(o+4,4)}, v6 offset:{3072*t+1024}'][part])
    O2 = [Ob, Ob + 16]; P2 = [Ob + 32, Ob + 48]
    a.c('the softmax above used 0 in place of the row max: safe only while the sums stay finite and well away from 0')
    a('s_waitcnt lgkmcnt(4)')
    for t in range(2): a(f'v_add_f32 {v(O2[t]+10)}, {v(O2[t]+10)}, {v(P2[t]+10)}')
    for t in range(2): a(f'v_pk_add_f32 {v(O2[t]+8,2)}, {v(O2[t]+8,2)}, {v(P2[t]+8,2)}')
    a(f'''v_min_f32 v2, {v(O2[0]+10)}, {v(O2[1]+10)}
    v_add_f32 v3, {v(O2[0]+10)}, {v(O2[1]+10)}
    v_cmp_nle_f32 {s(sChk,2)}, {s(T0)}, v2
    v_cmp_nge_f32 vcc, {s(T6)}, v3
    s_waitcnt lgkmcnt(2)''')
    for i in (0, 2):
        for t in range(2): a(f'v_pk_add_f32 {v(O2[t]+i,2)}, {v(O2[t]+i,2)}, {v(P2[t]+i,2)}')
    a(f's_or_b64 {s(sChk,2)}, {s(sChk,2)}, vcc\ns_waitcnt lgkmcnt(0)')
    for i in (4, 6):
        for t in range(2): a(f'v_pk_add_f32 {v(O2[t]+i,2)}, {v(O2[t]+i,2)}, {v(P2[t]+i,2)}')
    a(f'''v_pk_add_f32 v[2:3], {v(O2[0],2)}, {v(O2[1],2)}
    v_pk_add_f32 v[4:5], {v(O2[0]+2,2)}, {v(O2[1]+2,2)}
    v_pk_add_f32 v[8:9], {v(O2[0]+4,2)}, {v(O2[1]+4,2)}
    v_pk_add_f32 v[10:11], {v(O2[0]+6,2)}, {v(O2[1]+6,2)}
    v_pk_add_f32 v[12:13], {v(O2[0]+8,2)}, {v(O2[1]+8,2)}
    v_pk_add_f32 v[2:3], v[2:3], v[4:5]
    v_pk_add_f32 v[8:9], v[8:9], v[10:11]
    v_pk_add_f32 v[2:3], v[2:3], v[12:13]
    v_pk_add_f32 v[2:3], v[2:3], v[8:9]
    v_add_f32 v2, v2, v3
    v_cmp_ngt_f32 vcc, {s(T7)}, abs(v2)
    s_or_b64 {s(sChk,2)}, {s(sChk,2)}, vcc
    s_cbranch_scc1 L_fallback''')
    a.label('L_norm')
    o_publish(a, O2, P2, False)
    a.stamp(9)
    if opt.get('p4'): a.stamp(2)
    flag_ld(a)
    final_state(a)
    op_read_w(a, FW, vWb, vWb+1, vWb+2, vWb+3)
    a('s_setprio 0')
    a('s_branch L_final')

    a.nopk = False
    a.label('L_fallback')
    a.c('the stand-in was unsafe for one of this wave\'s rows: redo its two query tiles over all keys with the true row max')
    vK2, vKL2 = 2, 3
    a(f'v_mov_b32 v8, {v(vWr)}\nv_mov_b32 v9, {v(vRd)}')
    su_vgat(a)
    a(f'v_mov_b32 v10, {v(vVf)}\nv_mov_b32 v11, {v(vVf+1)}\nv_mov_b32 {v(vWr)}, v8\nv_mov_b32 {v(vRd)}, v9')
    kl_const(a, sCur2, sH)
    a(f'''v_and_b32 v3, 31, v0
    v_lshl_add_u32 v3, v3, 3, {s(sCur2)}
    s_mul_i32 {s(sLo2)}, {s(sH)}, {HREC}
    s_add_u32 {s(sLo2)}, {s(sLo2)}, {KV:#x}
    s_add_u32 {s(sHi2)}, {s(sLo2)}, {HREC}
    s_cmp_eq_u32 {s(sMG)}, 0
    s_cbranch_scc1 L_fb0''')
    for i in range(8): a(f'v_mov_b32 {v(Qr+i)}, {v(Qr+8+i)}')
    a(f'v_mov_b32 {v(QLr)}, {v(QLr+2)}')
    a.label('L_fb0')
    for t in range(2): a(f'v_mov_b32 {v(M+t)}, 0xff800000')
    for r in range(Ob, Ob + 32): a(f'v_mov_b32 {v(r)}, 0')
    for ps in range(2):
        a(f's_mov_b32 {s(sCur2)}, {s(sLo2)}')
        a.label(f'L_fbloop{ps}')
        a(f'buffer_load_dwordx4 {v(Kb,4)}, {v(v16)}, {srd(sWS)}, {s(sCur2)} offen sc1\nbuffer_load_dword {v(KLb)}, v3, {srd(sWS)}, {s(sCur2)} offen sc1')
        if ps:
            for f in range(2): a(f'buffer_load_dwordx4 {v(Vb+4*f,4)}, {v(10+f)}, {srd(sWS)}, {s(sCur2)} offen sc1')
        a('s_waitcnt vmcnt(0)')
        m = qk(Sb, 0, 0); a(m[0]); a.nop(18); a(m[1]); a(m[2]); a.nop(12)
        if ps == 0:
            for t in range(2):
                for i in range(0, 16, 2): a(f'v_max3_f32 {v(M+t)}, {v(Sb+16*t+i)}, {v(Sb+16*t+i+1)}, {v(M+t)}')
        else:
            for i in range(32): a(f'v_sub_f32 {v(Sb+i)}, {v(Sb+i)}, {v(M + i//16)}')
            for i in range(32): a(f'v_exp_f32 {v(Sb+i)}, {v(Sb+i)}')
            for q in range(4): cvt8(a, Sb + 8*q, Sb + 8*q)
            a.nop(1)
            for t in range(2):
                for f in range(2): mfma(a, Ob + 16*t, Vb + 4*f, Sb + 16*t + 8*f, Ob + 16*t)
        a(f's_add_u32 {s(sCur2)}, {s(sCur2)}, {REC}\ns_cmp_lg_u32 {s(sCur2)}, {s(sHi2)}\ns_cbranch_scc1 L_fbloop{ps}')
        if ps == 0:
            for t in range(2): a(f'v_mov_b32 {v(Sb+t)}, {v(M+t)}')
            a.nop(2)
            for t in range(2): a(f'v_permlane32_swap_b32 {v(Sb+t)}, {v(M+t)}')
            a.nop(1)
            for t in range(2): a(f'v_max_f32 {v(M+t)}, {v(M+t)}, {v(Sb+t)}')
    a.nop(12)
    a('s_branch L_norm')

def o_addr(a, shead, M_, L_):
    a(f'''s_lshl_b32 {s(T0)}, {s(T0)}, 5
    s_add_u32 {s(T0)}, {s(T0)}, {s(shead)}
    s_lshl_b32 {s(T2)}, {s(T0)}, 10
    s_add_u32 {s(T2)}, {s(T2)}, {M_:#x}
    s_add_u32 {s(T3)}, {s(T2)}, 0x8000
    s_lshl_b32 {s(T4)}, {s(T0)}, 7
    s_add_u32 {s(T4)}, {s(T4)}, {L_:#x}
    s_add_u32 {s(T5)}, {s(T4)}, 0x1000''')

def o_publish(a, O, P, eps):
    for o in O:
        if eps: a(f'v_add_f32 {v(o+10)}, {f2u(1e-6):#x}, {v(o+10)}')
    for o in O: a(f'v_rcp_f32 {v(o+10)}, {v(o+10)}')
    for t in range(2):
        o, p = O[t], P[t]
        if t == 0: a('s_nop 0')
        for i in range(0, 10, 2): a(f'v_pk_mul_f32 {v(o+i,2)}, {v(o+i,2)}, {v(o+10,2)} op_sel_hi:[1,0]')
        cvt8(a, o, p)
        if not eps:
            for i in range(4): a(f'v_min_u32 {v(p+i)}, -2, {v(p+i)}')
        a(f'buffer_store_dwordx4 {v(p,4)}, {v(v16)}, {srd(sWS)}, {s(T2+t)} offen sc1')
        a(f'v_cvt_pk_bf16_f32 {v(p+4)}, {v(o+8)}, {v(o+9)}')
        if not eps: a(f'v_min_u32 {v(p+4)}, -2, {v(p+4)}')
    a('s_mov_b32 exec_hi, 0')
    for t in range(2): a(f'buffer_store_dword {v(P[t]+4)}, {v(vQL)}, {srd(sWS)}, {s(T4+t)} offen sc1')
    a('s_mov_b32 exec_hi, -1')

FW, FO, FA = 16, 124, 160
vFm, vFm2, vFl, vFl2 = 8, 9, 10, 11
vFlg, vFol, vWr, vRd, vOut = 250, 251, 252, 253, 255
ACA = [212, 228, 196]
QS = 1088; WSTR = 9*QS; ARED = WS0; BRED = WS0 + 2*WBLK
sM, sM2, sL, sA, sB_, sC, sO, sO2 = 64, 65, 66, 56, 57, 63, 100, 101
vP4, vWb = 254, 236
def piece_addr(a, vp, rd, ou):
    a(f'''v_mul_u32_u24 v2, 7282, {v(vp)}
    v_lshrrev_b32 v2, 16, v2
    v_mul_u32_u24 v3, 9, v2
    v_sub_u32 v3, {v(vp)}, v3
    v_mul_u32_u24 {v(ou)}, 2304, v2
    v_lshl_add_u32 {v(ou)}, v3, 4, {v(ou)}
    v_mul_u32_u24 v3, {QS}, v3
    v_lshrrev_b32 {v(rd)}, 5, v2
    v_mul_u32_u24 {v(rd)}, {WSTR}, {v(rd)}
    v_and_b32 v2, 31, v2
    v_lshl_add_u32 v3, v2, 4, v3
    v_add_u32 {v(rd)}, {v(rd)}, v3''')
def final_setup(a):
    a(f'''v_and_b32 v1, 31, v0
    v_lshrrev_b32 v2, 5, v0
    v_lshlrev_b32 v3, 2, v1
    v_lshl_add_u32 {v(vFol)}, v2, 9, v3
    s_lshl_b32 {s(T1)}, {s(sOT)}, 1
    s_add_u32 {s(T0)}, {s(sTH)}, {s(T1)}
    s_lshl_b32 {s(T0)}, {s(T0)}, 5
    s_lshr_b32 {s(T1)}, {s(sWave)}, 1
    s_lshl_b32 {s(T1)}, {s(T1)}, 3
    s_add_u32 {s(T0)}, {s(T0)}, {s(T1)}
    s_lshl_b32 {s(sM)}, {s(T0)}, 10
    s_add_u32 {s(sM)}, {s(sM)}, {OBM:#x}
    s_add_u32 {s(sM2)}, {s(sM)}, 4096
    s_lshl_b32 {s(sL)}, {s(T0)}, 7
    s_add_u32 {s(sL)}, {s(sL)}, {OBL:#x}
    s_lshl_b32 {s(T0)}, {s(sOT)}, 5
    s_add_u32 {s(T0)}, {s(T0)}, {s(T1)}
    v_and_b32 v3, 7, v0
    v_add_u32 v3, {s(T0)}, v3
    v_lshlrev_b32 v3, 7, v3
    v_add_u32 {v(vP4)}, {FL4:#x}, v3
    s_mul_i32 {s(T0)}, {s(sWave)}, {WSTR}
    s_add_u32 {s(T0)}, {s(T0)}, {BRED}
    v_add_u32 {v(vWr)}, {s(T0)}, {v(v16)}
    s_lshl_b32 {s(T0)}, {s(sWave)}, 6
    v_add_u32 v1, {s(T0)}, v0
    s_mul_i32 {s(T0)}, {s(sOT)}, {64*2304}
    s_mul_i32 {s(T1)}, {s(sOC)}, 144
    s_add_u32 {s(sO)}, {s(T0)}, {s(T1)}
    s_add_u32 {s(sO2)}, {s(sO)}, 1152''')
    piece_addr(a, 1, vRd, vOut)
def flag_ld(a, r=vFlg): a(f'buffer_load_dword {v(r)}, {v(vP4)}, {srd(sWS)}, 0 offen sc1')
def final_state(a): a(f's_mov_b32 {s(sA)}, 0\ns_mov_b32 {s(sB_)}, 0\ns_mov_b32 {s(sC)}, 0')
def half_ld(a, h):
    for i in range(4): a(f'buffer_load_dwordx4 {v(FO+16*h+4*i,4)}, {v(v16)}, {srd(sWS)}, {s(sM2 if h else sM)} offen offset:{1024*i} sc1')
def left_ld(a):
    for i in range(4): a(f'buffer_load_dword {v(FO+32+i)}, {v(vFol)}, {srd(sWS)}, {s(sL)} offen offset:{128*i} sc1')
def half_try(a, again=False):
    for h, st in ((0, sA), (1, sB_)):
        lb = a.new('fl'); go = a.new('fg')
        if again: a(f's_cmp_eq_u32 {s(st)}, 1\ns_cbranch_scc1 {go}')
        a(f's_and_b32 {s(T0)}, vcc_lo, {0xf0 if h else 0x0f}\ns_or_b32 {s(T0)}, {s(T0)}, {s(st)}\ns_cbranch_scc1 {lb}\ns_mov_b32 {s(st)}, 1')
        a.label(go)
        half_ld(a, h)
        a.label(lb)
def final(a):
    a.label('L_final')
    a.c('================= all waves: out projection of B =================')
    a.c('this wave needs 8 heads, 4 from each of two producer groups: load each half as soon as its flags are up')
    def half_mm(h):
        for st in range(4*h, 4*h + 4):
            for T in range(3): mfma(a, FA + 16*T, FW + 12*st + 4*T, FO + 4*st, None if st == 0 else FA + 16*T)
    def pending0():
        lb = a.new('fm')
        a(f's_cmp_lg_u32 {s(sA)}, 2\ns_cbranch_scc1 {lb}\ns_mov_b32 {s(sA)}, 3')
        half_mm(0)
        a.label(lb)
    def verify(st, r, n):
        lb = a.new('fv')
        a(f's_cmp_lg_u32 {s(st)}, 1\ns_cbranch_scc1 {lb}')
        a(f'v_max3_u32 v2, {v(r)}, {v(r+1)}, {v(r+2)}')
        if n == 4: a(f'v_max_u32 v2, v2, {v(r+3)}')
        else:
            a(f'v_max3_u32 v3, {v(r+3)}, {v(r+4)}, {v(r+5)}')
            for i in range(6, 16, 4): a(f'v_max3_u32 v2, v2, {v(r+i)}, {v(r+i+1)}' + (f'\nv_max3_u32 v3, v3, {v(r+i+2)}, {v(r+i+3)}' if i + 3 < 16 else ''))
            a('v_max_u32 v2, v2, v3')
        a(f'v_cmp_eq_u32 {s(60,2)}, -1, v2\ns_cmp_lg_u64 {s(60,2)}, 0\ns_cselect_b32 {s(st)}, 1, 2')
        a.label(lb)
    a.label('L_fpoll')
    a('s_waitcnt vmcnt(0) lgkmcnt(0)')
    verify(sA, FO, 16); verify(sB_, FO + 16, 16); verify(sC, FO + 32, 4)
    a(f's_min_u32 {s(T0)}, {s(sA)}, {s(sB_)}\ns_min_u32 {s(T0)}, {s(T0)}, {s(sC)}\ns_cmp_ge_u32 {s(T0)}, 2\ns_cbranch_scc1 L_fgo')
    a(f'v_cmp_ne_u32 vcc, {s(sTok)}, {v(vFlg)}')
    half_try(a, True)
    lb = a.new('fc'); l2 = a.new('fd')
    a(f's_min_u32 {s(T0)}, {s(sA)}, {s(sB_)}\ns_cmp_eq_u32 {s(T0)}, 0\ns_cbranch_scc1 {lb}\ns_cmp_eq_u32 {s(sC)}, 2\ns_cbranch_scc1 {l2}\ns_mov_b32 {s(sC)}, 1')
    for i in range(4): a(f'buffer_load_dword {v(FO+32+i)}, {v(vFol)}, {srd(sWS)}, {s(sL)} offen offset:{128*i} sc1')
    a(f's_branch {l2}')
    a.label(lb)
    flag_ld(a)
    a.label(l2)
    pending0()
    spin_tail(a, 'L_fpoll', OPT.get('fsl', 0))
    a.label('L_fgo')
    a.stamp(10)
    pending0()
    half_mm(1)
    for T in range(3): mfma(a, FA + 16*T, FW + 96 + 4*T, FO + 32, FA + 16*T)
    a('s_barrier')
    a(f'v_add_u32 v6, 512, v0\nv_add_u32 v7, {ARED}, {v(vRd)}\nv_add_u32 {v(vRd)}, {BRED}, {v(vRd)}')
    piece_addr(a, 6, 4, 5)
    for q in range(9): a(f'ds_write_b128 {v(vWr)}, {v(FA+4*q,4)} offset:{QS*q}')
    a('s_waitcnt lgkmcnt(0)\ns_barrier')
    a.stamp(11)
    a.c('sum the partials in output order: one 16-byte piece of a row per lane')
    def rd(R, vr, n):
        for k in range(n):
            for h in range(2): a(f'ds_read_b128 {v(R+8*k+4*h,4)}, {v(vr)} offset:{2*WSTR*k + 512*h}')
    def fin(R, n, vo, so, pol):
        for k in range(1, n):
            for i in range(4): a(f'v_pk_add_f32 {v(R+2*i,2)}, {v(R+2*i,2)}, {v(R+8*k+2*i,2)}')
        cvt8(a, R, R)
        a(f'buffer_store_dwordx4 {v(R,4)}, {v(vo)}, {srd(sOUT)}, {s(so)} offen{opol(pol)}')
    rd(16, vRd, 4); rd(48, 7, 2)
    a(f's_cmp_gt_u32 {s(sWave)}, 1\ns_cbranch_scc1 L_fin_a\ns_cmp_eq_u32 {s(sWave)}, 1\ns_cbranch_scc1 L_fin_x')
    a(f'v_add_u32 v4, {BRED}, v4')
    rd(64, 4, 4); a('s_waitcnt lgkmcnt(0)'); fin(64, 4, 5, sO2, 'osb'); a('s_branch L_fin_a')
    a.label('L_fin_x')
    a(f'v_add_u32 v4, {ARED}, v4')
    rd(64, 4, 2); a('s_waitcnt lgkmcnt(0)'); fin(64, 2, 5, sO, 'osa')
    a.label('L_fin_a')
    a('s_waitcnt lgkmcnt(4)'); fin(16, 4, vOut, sO2, 'osb')
    a('s_waitcnt lgkmcnt(0)'); fin(48, 2, vOut, sO, 'osa')
    if OPT.get('padto'):
        a.label('L_pad')
        a(f's_memrealtime s[94:95]\ns_waitcnt lgkmcnt(0)\ns_sub_u32 s94, s94, s80\ns_cmp_lt_u32 s94, {OPT["padto"]}\ns_cbranch_scc1 L_pad')
    if a.diag:
        a('s_waitcnt vmcnt(0)')
        a.stamp(12)
        a.label('L_dump')
        a(f's_lshl_b32 {s(T0)}, s2, 3\ns_add_u32 {s(T0)}, {s(T0)}, {s(sWave)}\ns_lshl_b32 {s(T0)}, {s(T0)}, 7\ns_add_u32 {s(T0)}, {s(T0)}, {STAMPS:#x}')
        for k in range(16): a(f'v_mov_b32 {v(16+k)}, {s(SSTAMP+k)}')
        a(f's_lshl_b32 {s(T1)}, {s(T0)}, 1\ns_sub_u32 {s(T1)}, {s(T1)}, {STAMPS - 0x80000:#x}\nbuffer_store_dword v243, {v(vQL)}, {srd(sWS)}, {s(T1)} offen')
        a('v_mov_b32 v1, 0\ns_mov_b64 exec, 1')
        for k in range(4): a(f'buffer_store_dwordx4 {v(16+4*k,4)}, v1, {srd(sWS)}, {s(T0)} offen offset:{16*k}')
    a('s_endpgm')
    for f in a.late: f()
    a.label('L_end')
    a('s_endpgm')

WPH, WLq, WLk, vG, vPh, vPr, RAW = 8, 12, 14, 16, 18, 19, 160
sQa, sRec, sTl, sF1A, sLoB, sHiB, sC2 = 56, 57, 58, 59, 60, 61, 62
vXs, vOl, vF3, vF2 = 236, 240, 241, 242
def a_setup(a, part):
    if part == 0:
        a.c('feature-map weights (rows follow the rotated dim order of odd heads)')
        a(f'''v_and_b32 v1, 31, v0
        v_lshrrev_b32 v2, 5, v0
        v_cmp_eq_u32 vcc, 20, v1
        v_mov_b32 v3, 17
        v_mov_b32 v4, {OOB:#x}
        v_cndmask_b32 v3, v1, v3, vcc
        v_cmp_ge_u32 {s(T0,2)}, 16, v1
        s_or_b64 vcc, vcc, {s(T0,2)}
        v_lshlrev_b32 v3, 1, v3
        s_mul_i32 {s(T2)}, {s(sHA)}, 648
        v_cndmask_b32 v3, v4, v3, vcc
        v_mul_u32_u24 v5, 288, v2
        v_add_u32 v4, v3, v5
        s_and_b32 {s(T0)}, {s(sHA)}, 1
        s_mul_i32 {s(T1)}, {s(T0)}, 72
        s_add_u32 {s(T3)}, {s(T2)}, {s(T1)}
        s_mul_i32 {s(T1)}, {s(T0)}, 576
        s_sub_u32 {s(T2)}, {s(T2)}, {s(T1)}
        s_add_u32 {s(T2)}, {s(T2)}, 576''')
        for e in range(8):
            a(f'buffer_load_ushort {v(RAW + e)}, v4, {srd(sPHI)}, {s(T3)} offen offset:{e*36}')
        a(f'buffer_load_ushort {v(RAW+8)}, v3, {srd(sPHI)}, {s(T2)} offen\nbuffer_load_ushort {v(RAW+9)}, v3, {srd(sPHI)}, {s(T2)} offen offset:36')
    if part == 1:
        a.c('wo image lane offsets; flags of the producers of this wave\'s rows')
        for k in range(3):
            if k < 2: a(f's_add_u32 {s(T0)}, {s(sW4)}, {4*k}\ns_lshl_b32 {s(T0)}, {s(T0)}, 6\nv_add_u32 v3, {s(T0)}, v0')
            else: a('v_add_u32 v3, 512, v0')
            a(f'''v_mul_u32_u24 v4, 7282, v3
            v_lshrrev_b32 v4, 16, v4
            v_mul_u32_u24 v5, 9, v4
            v_sub_u32 v5, v3, v5
            v_mul_u32_u24 v6, 1152, v4
            v_lshl_add_u32 {v(vWO+k)}, v5, 4, v6''')
        a('v_lshrrev_b32 v4, 1, v0\nv_min_u32 v4, 2, v4\nv_and_b32 v5, 1, v0')
        producer_ct(a, 3, 4, 5, sHA, 6)
        a(f'''s_lshl_b32 {s(T0)}, {s(sRB)}, 1
        s_add_u32 {s(T0)}, {s(T0)}, {s(sMG)}
        v_lshl_add_u32 v3, v3, 4, {s(T0)}
        v_lshlrev_b32 v3, 7, v3
        v_add_u32 {v(vPoll)}, {FL1A:#x}, v3''')
    if part == 2:
        a.c('image addresses: tile = 8rb + 2w; leftover gather (half 0: q, half 1: k)')
        a(f'''s_lshl_b32 {s(sTl)}, {s(sRB)}, 3
        s_lshl_b32 {s(T1)}, {s(sW4)}, 1
        s_add_u32 {s(sTl)}, {s(sTl)}, {s(T1)}
        s_lshl_b32 {s(T1)}, {s(sHA)}, 6
        s_add_u32 {s(T0)}, {s(sTl)}, {s(T1)}
        s_lshl_b32 {s(sQa)}, {s(T0)}, 10
        s_add_u32 {s(sQa)}, {s(sQa)}, {QM + AOFF:#x}
        s_mul_i32 {s(sRec)}, {s(T0)}, {REC}
        s_add_u32 {s(sRec)}, {s(sRec)}, {KV + AOFF:#x}
        s_lshr_b32 {s(T0)}, {s(sHA)}, 1
        s_lshl_b32 {s(T0)}, {s(T0)}, 6
        s_add_u32 {s(T0)}, {s(T0)}, {s(sTl)}
        s_lshl_b32 {s(T0)}, {s(T0)}, 8
        s_and_b32 {s(T1)}, {s(sHA)}, 1
        s_lshl_b32 {s(T1)}, {s(T1)}, 2
        s_add_u32 {s(T0)}, {s(T0)}, {s(T1)}
        s_add_u32 {s(T0)}, {s(T0)}, {QL + AOFF:#x}
        v_mov_b32 v3, {s(T0)}''')
        kl_const(a, T1, sHA)
        a(f'''s_add_u32 {s(T1)}, {s(T1)}, {s(sRec)}
        v_mov_b32 v4, {s(T1)}
        v_mov_b32 v5, 256
        v_mov_b32 v6, {REC}
        v_cmp_gt_u32 vcc, 32, v0
        v_and_b32 v1, 31, v0
        v_lshrrev_b32 v2, 5, v0
        v_cndmask_b32 v3, v4, v3, vcc
        v_cndmask_b32 v5, v6, v5, vcc
        v_lshl_add_u32 {v(vG)}, v1, 3, v3
        v_add_u32 {v(vG+1)}, {v(vG)}, v5''')
        flag_addr(a, sF1A, sCT, sRT, 4, FL1A)
        a(f's_cmp_lg_u32 {s(sIdle)}, 0\ns_cselect_b32 {s(sF1A)}, {OOB:#x}, {s(sF1A)}')
    if part == 3:
        a.c('phi scratch: row-per-token writes, transposed reads')
        a(f'''s_mul_i32 {s(T0)}, {s(sW4)}, 5120
        s_add_u32 {s(T0)}, {s(T0)}, {PHS}
        v_and_b32 v1, 31, v0
        v_lshrrev_b32 v2, 5, v0
        v_mul_u32_u24 v3, 80, v1
        v_lshl_add_u32 v3, v2, 3, v3
        v_add_u32 {v(vPh)}, {s(T0)}, v3
        v_bfe_u32 v3, v0, 2, 2
        v_lshl_add_u32 v5, v2, 2, v3
        v_mul_u32_u24 v5, 80, v5
        v_add_u32 v5, {s(T0)}, v5
        v_and_b32 v4, 3, v0
        v_lshlrev_b32 v6, 3, v4
        v_and_b32 v3, 1, v0
        v_lshlrev_b32 v3, 3, v3
        v_add_u32 v3, 64, v3
        v_bfe_u32 v4, v0, 4, 1
        v_cmp_eq_u32 vcc, 0, v4
        v_add_u32 {v(vPr+1)}, v5, v6
        v_mov_b32 {v(WLq+1)}, 0
        v_cndmask_b32 v6, v3, v6, vcc
        v_mov_b32 {v(WLk+1)}, 0
        v_add_u32 {v(vPr)}, v5, v6''')
    if part == 4:
        for i in range(4): a(f'v_lshl_or_b32 {v(WPH + i)}, {v(RAW+1 + 2*i)}, 16, {v(RAW + 2*i)}')
        a(f'v_lshl_or_b32 v3, {v(RAW+9)}, 16, {v(RAW+8)}\nv_cmp_gt_u32 vcc, 32, v0\ns_nop 1\nv_cndmask_b32 {v(WLq)}, {v(vZero)}, v3, vcc\nv_cndmask_b32 {v(WLk)}, v3, {v(vZero)}, vcc')

def a_chain(a, opt):
    Fq, Fk, Fl, Fv = [36, 40], [44, 48], [52, 54], [56, 64]
    def lprio(x):
        if opt.get('lp', 1): a(f's_setprio {x}')
    a.label('L_achain')
    a.c('================= waves 4-7: publish A qkv, feature maps =================')
    bg = [(sAWO, kq, SLOT_A[kq], P) for kq in (0, 2, 3) for P in range(3)] + [(sBWO, kq, SLOT_B[kq], P) for kq in (0, 1) for P in range(3)]
    def bgdma():
        if bg: issue_grp(a, *bg.pop(0))
    a(f'''s_mul_i32 {s(sWB)}, {s(sOC)}, 144
    s_mov_b32 {s(T2)}, {f2u(LOG2E):#x}
    s_mov_b32 {s(T3)}, {f2u(LOG2E):#x}
    v_mov_b32 {v(Fl[0]+1)}, 0
    v_mov_b32 {v(Fl[1]+1)}, 0
    s_waitcnt vmcnt(0)''')
    last_signals(a, 2, C_F1A, 4, sF1A)
    a.stamp(5)
    a.c('addresses for later stages, in the slots the attention leaves free while the producers finish')
    if opt.get('w1', 0) < 2: lprio(0)
    a(f's_mul_i32 {s(T6)}, {s(sMG)}, {WBLK}\ns_add_u32 {s(T6)}, {s(T6)}, {SLOT_A[0]}')
    op_addr(a, vXs, vXs+1, vXs+2, vXs+3, 2, T6)
    if opt.get('w1', 0): lprio(1)
    a(f'''v_and_b32 v1, 31, v0
    v_lshrrev_b32 v2, 5, v0
    v_lshlrev_b32 v3, 2, v1
    v_lshl_add_u32 {v(vOl)}, v2, 9, v3
    s_lshl_b32 {s(T0)}, {s(sOT)}, 1
    s_add_u32 {s(T0)}, {s(T0)}, {s(sMG)}
    s_lshl_b32 {s(T0)}, {s(T0)}, 11
    s_add_u32 {s(T0)}, {s(T0)}, {FL3:#x}
    v_and_b32 v3, 15, v0
    v_lshl_add_u32 {v(vF3)}, v3, 7, {s(T0)}
    v_and_b32 v3, 7, v0
    s_lshl_b32 {s(T0)}, {s(sHA)}, 10
    s_add_u32 {s(T0)}, {s(T0)}, {FL2:#x}
    v_lshl_add_u32 {v(vF2)}, v3, 7, {s(T0)}
    s_mov_b32 {s(sLoB)}, {f2u(2.0**-64):#x}
    s_mov_b32 {s(sHiB)}, {f2u(2.0**64):#x}''')
    lprio(1)
    poll_flags(a, vPoll, 2, sl=4)
    a.stamp(6)
    for tt in range(2):
        a(f'buffer_load_dwordx4 {v(Fk[tt],4)}, {v(v16)}, {srd(sWS)}, {s(sRec)} offen offset:{REC*tt} sc1')
        a(f'buffer_load_dword {v(Fl[tt])}, {v(vG + tt)}, {srd(sWS)}, 0 offen sc1')
    for tt in range(2): a(f'buffer_load_dwordx4 {v(Fq[tt],4)}, {v(v16)}, {srd(sWS)}, {s(sQa)} offen offset:{1024*tt} sc1')
    for tt in range(2):
        for f in range(2): a(f'buffer_load_dwordx4 {v(Fv[tt]+4*f,4)}, {v(vVf+f)}, {srd(sWS)}, {s(sRec)} offen offset:{REC*tt} sc1')
    lds_wait(a, 2, C_F1A, 4)
    D = {('k', 0): 80, ('k', 1): 96, ('q', 0): 112, ('q', 1): 128}
    a('s_waitcnt vmcnt(6)')
    lprio(0)
    for tt in range(2): mfma(a, D[('k', tt)], WLk, Fl[tt], None, '8')
    for tt in range(2): mfma(a, D[('q', tt)], WLq, Fl[tt], None, '8')
    a.nop(7)
    for tt in range(2): mfma(a, D[('k', tt)], WPH, Fk[tt], D[('k', tt)])
    a('s_waitcnt vmcnt(4)')
    for tt in range(2): mfma(a, D[('q', tt)], WPH, Fq[tt], D[('q', tt)])
    a.nop(8)
    lprio(1)
    EP, EM = 144, 156
    PH = {('q', 0): 204, ('q', 1): 214, ('k', 0): 168, ('k', 1): 178}
    def sums():
        a(f'''v_pk_add_f32 v[2:3], {v(EP,2)}, {v(EP+2,2)}
        v_pk_add_f32 v[4:5], {v(EM,2)}, {v(EM+2,2)}
        v_pk_add_f32 v[2:3], v[2:3], {v(EP+4,2)}
        v_pk_add_f32 v[4:5], v[4:5], {v(EM+4,2)}
        v_pk_add_f32 v[2:3], v[2:3], {v(EP+6,2)}
        v_pk_add_f32 v[4:5], v[4:5], {v(EM+6,2)}
        v_add_f32 v2, v2, {v(EP+8)}
        v_add_f32 v4, v4, {v(EM+8)}
        v_add_f32 v2, v2, v3
        v_add_f32 v4, v4, v5
        s_nop 1
        v_permlane32_swap_b32 v2, v4
        v_add_f32 v2, v2, v4''')
    def softmax_max(x, lab, back):
        a.label(lab)
        a(f'''v_max3_f32 v2, {v(x)}, {v(x+1)}, {v(x+2)}
        v_max3_f32 v4, -{v(x)}, -{v(x+1)}, -{v(x+2)}
        v_max3_f32 v2, v2, {v(x+3)}, {v(x+4)}
        v_max3_f32 v4, v4, -{v(x+3)}, -{v(x+4)}
        v_max3_f32 v2, v2, {v(x+5)}, {v(x+6)}
        v_max3_f32 v4, v4, -{v(x+5)}, -{v(x+6)}
        v_max3_f32 v2, v2, {v(x+7)}, {v(x+8)}
        v_max3_f32 v4, v4, -{v(x+7)}, -{v(x+8)}
        s_nop 1
        v_permlane32_swap_b32 v2, v4
        v_max_f32 v2, v2, v4
        v_mov_b32 v4, v2
        s_nop 1
        v_permlane32_swap_b32 v2, v4''')
        for i in range(9): a(f'v_sub_f32 {v(EP+i)}, {v(x+i)}, v2\nv_sub_f32 {v(EM+i)}, -{v(x+i)}, v4')
        for E in (EP, EM):
            for i in range(9): a(f'v_mul_f32 {v(E+i)}, {s(T2)}, {v(E+i)}')
        for E in (EP, EM):
            for i in range(9): a(f'v_exp_f32 {v(E+i)}, {v(E+i)}')
        sums()
        a(f's_branch {back}')
    def softmax2(x, P, lo=False):
        lab = a.new('smx'); back = a.new('smb')
        a.late.append(lambda: softmax_max(x, lab, back))
        for i in range(0, 8, 2): a(f'v_pk_mul_f32 {v(EM+i,2)}, {v(x+i,2)}, {s(T2,2)}')
        a(f'v_mul_f32 {v(EM+8)}, {s(T2)}, {v(x+8)}')
        bgdma()
        if lo == 2:
            hi = a.new('qh')
            a(f's_waitcnt vmcnt(4)\nv_cmp_ne_u32 vcc, {s(sTok)}, v7\ns_cbranch_vccz {hi}\ns_setprio 0')
            a.label(hi)
        elif lo: lprio(0)
        for i in range(9): a(f'v_exp_f32 {v(EP+i)}, {v(EM+i)}')
        bgdma()
        for i in range(9): a(f'v_exp_f32 {v(EM+i)}, -{v(EM+i)}')
        if lo: lprio(1)
        bgdma()
        if opt.get('qlo') == 5 and P == PH[('q', 0)]: a(f'buffer_load_dword v7, {v(vF2)}, {srd(sWS)}, 0 offen sc1')
        sums()
        a(f'''v_cmp_nle_f32 {s(sC2,2)}, {s(sLoB)}, v2
        v_cmp_nge_f32 vcc, {s(sHiB)}, v2
        s_or_b64 vcc, vcc, {s(sC2,2)}
        s_cbranch_scc1 {lab}''')
        a.label(back)
        a(f'''v_rcp_f32 v2, v2
        s_nop 0
        v_mov_b32 v4, v2
        s_nop 1
        v_permlane32_swap_b32 v2, v4''')
        for E, t in ((EP, 2), (EM, 4)):
            for i in range(0, 8, 2): a(f'v_pk_mul_f32 {v(E+i,2)}, {v(E+i,2)}, {v(t,2)} op_sel_hi:[1,0]')
            a(f'v_mul_f32 {v(E+8)}, {v(E+8)}, {v(t)}')
        bgdma()
        cvt8(a, EP, P); cvt8(a, EM, P+4)
        if lo is not None and P in (PH[('q', 0)], PH[('q', 1)]): bgdma()
        a(f'v_cvt_pk_bf16_f32 {v(P+8)}, {v(EP+8)}, {v(EM+8)}')
    for tt in range(2):
        P = PH[('k', tt)]
        softmax2(D[('k', tt)], P)
        o = 2560*tt
        a(f'''ds_write_b64 {v(vPh)}, {v(P,2)} offset:{o}
        ds_write_b64 {v(vPh)}, {v(P+2,2)} offset:{o+16}
        ds_write_b64 {v(vPh)}, {v(P+4,2)} offset:{o+32}
        ds_write_b64 {v(vPh)}, {v(P+6,2)} offset:{o+48}
        ds_write_b32 {v(vPh)}, {v(P+8)} offset:{o+64}''')
    a.c('kv partial of this wave: phi_k^T (transposed through LDS) x [v | 1]')
    KA = 144; KD = [80, 96]
    a('s_waitcnt lgkmcnt(0)')
    for k in range(4):
        for sg in range(2):
            for j in range(2):
                a(f'ds_read_b64_tr_b16 {v(KA+8*k+4*sg+2*j,2)}, {v(vPr+sg)} offset:{(16*k+8*j)*80 + 32*sg}')
    a(f'''s_mul_i32 {s(T0)}, {s(sW4)}, 5120
    v_add_u32 v6, {s(T0)}, {v(v16)}
    v_lshlrev_b32 v1, 3, v0
    v_add_u32 v7, {s(T0)}, v1
    s_waitcnt vmcnt(12) lgkmcnt(0)''')
    lprio(0)
    for k in range(4):
        for sg in range(2): mfma(a, KD[sg], KA+8*k+4*sg, Fv[0]+4*k, None if k == 0 else KD[sg])
    a.nop(11)
    lprio(1)
    a(f'''ds_write_b128 v6, {v(KD[0],4)} offset:{PHS}
    ds_write_b128 v6, {v(KD[0]+4,4)} offset:{PHS+1024}
    ds_write_b64 v7, {v(KD[0]+8,2)} offset:{PHS+2048}
    ds_write_b128 v6, {v(KD[1],4)} offset:{PHS+2560}
    ds_write_b128 v6, {v(KD[1]+4,4)} offset:{PHS+3584}
    s_waitcnt lgkmcnt(0)''')
    lds_arrive(a, C_KVX)
    a(f'''s_mul_i32 {s(T7)}, {s(sTH)}, 2560
    s_lshl_b32 {s(T1)}, {s(sMG)}, 10
    s_add_u32 {s(T7)}, {s(T7)}, {s(T1)}
    v_add_u32 v6, {s(T7)}, {v(v16)}
    s_lshl_b32 {s(T0)}, {s(sHA)}, 3
    s_add_u32 {s(T1)}, {s(T0)}, {s(sRB)}
    s_mul_i32 {s(T4)}, {s(T1)}, {KVPS}
    s_add_u32 {s(T4)}, {s(T4)}, {KVP:#x}
    s_add_u32 {s(T5)}, {s(T4)}, {s(T7)}
    s_lshl_b32 {s(T1)}, {s(T1)}, 7
    s_add_u32 {s(T1)}, {s(T1)}, {FL2:#x}''')
    lds_wait(a, 2, C_KVX, 4)
    R = 80
    for w in range(4): a(f'ds_read_b128 {v(R+4*w,4)}, v6 offset:{PHS + 5120*w}')
    a(f's_cmp_lg_u32 {s(sW4)}, 3\ns_cbranch_scc1 L_kvx')
    for w in range(4): a(f'ds_read_b64 {v(R+16+2*w,2)}, v1 offset:{PHS + 5120*w + 2048}')
    a('s_waitcnt lgkmcnt(0)')
    for w in range(1, 4): a(f'v_pk_add_f32 {v(R+16,2)}, {v(R+16,2)}, {v(R+16+2*w,2)}')
    a(f'buffer_store_dwordx2 {v(R+16,2)}, v1, {srd(sWS)}, {s(T4)} offen offset:2048 sc1')
    a.label('L_kvx')
    a('s_waitcnt lgkmcnt(0)')
    for w in range(1, 4):
        for k in range(2): a(f'v_pk_add_f32 {v(R+2*k,2)}, {v(R+2*k,2)}, {v(R+4*w+2*k,2)}')
    a(f'buffer_store_dwordx4 {v(R,4)}, {v(v16)}, {srd(sWS)}, {s(T5)} offen sc1')
    a('s_waitcnt vmcnt(0)')
    last_signals(a, 2, C_F2, 4, T1)
    a.stamp(7)
    a.c('================= waves 4-7: kv total, numerator / denominator =================')
    a(f'''s_lshl_b32 {s(T0)}, {s(sHA)}, 3
    s_mul_i32 {s(T4)}, {s(T0)}, {KVPS}
    s_add_u32 {s(T4)}, {s(T4)}, {KVP:#x}
    s_add_u32 {s(T5)}, {s(T4)}, {s(T7)}
    s_lshl_b32 {s(T7)}, {s(sTH)}, 10
    s_lshl_b32 {s(T0)}, {s(sMG)}, 3
    s_add_u32 {s(T7)}, {s(T7)}, {s(T0)}
    s_add_u32 {s(T7)}, {s(T7)}, {KVF}''')
    lds_wait(a, 2, C_F2, 4)
    bg += [(sAWO, 1, SLOT_A[1], P) for P in range(3)]
    for tt in range(2):
        softmax2(D[('q', tt)], PH[('q', tt)], 2 if tt and opt.get('qlo') == 5 else bool(opt.get('qlo', 0) >> tt & 1))
        a(f'v_mov_b32 {v(PH[("q", tt)]+9)}, 0')
    assert not bg
    poll_flags(a, vF2, 2, sl=4)
    for i in range(8):
        a(f'buffer_load_dwordx4 {v(R+4*i,4)}, {v(v16)}, {srd(sWS)}, {s(T5)} offen sc1')
        if i < 7: a(f's_add_u32 {s(T5)}, {s(T5)}, {KVPS}')
    a(f'v_add_u32 v3, {s(T7)}, {v(v16)}\nv_add_u32 v6, {KVF + 2048}, v1\ns_cmp_lg_u32 {s(sW4)}, 3\ns_cbranch_scc1 L_kvs')
    for i in range(8):
        a(f'buffer_load_dwordx2 {v(R+32+2*i,2)}, v1, {srd(sWS)}, {s(T4)} offen offset:2048 sc1')
        if i < 7: a(f's_add_u32 {s(T4)}, {s(T4)}, {KVPS}')
    a('s_waitcnt vmcnt(0)')
    for i in range(1, 8): a(f'v_pk_add_f32 {v(R+32,2)}, {v(R+32,2)}, {v(R+32+2*i,2)}')
    a(f'v_cvt_pk_bf16_f32 v4, {v(R+32)}, {v(R+33)}\nv_mov_b32 v5, 0\nds_write_b64 v6, v[4:5]')
    a.label('L_kvs')
    a('s_waitcnt vmcnt(0)')
    for i in range(1, 8):
        for k in range(2): a(f'v_pk_add_f32 {v(R+2*k,2)}, {v(R+2*k,2)}, {v(R+4*i+2*k,2)}')
    a(f'v_cvt_pk_bf16_f32 v10, {v(R)}, {v(R+1)}\nv_cvt_pk_bf16_f32 v11, {v(R+2)}, {v(R+3)}\nds_write_b64 v3, v[10:11]\ns_waitcnt lgkmcnt(0)')
    lds_arrive(a, C_KVF)
    lds_wait(a, 2, C_KVF, 4)
    KF = 144
    a(f'''v_add_u32 v3, {KVF}, {v(v16)}
    ds_read_b64 {v(KF+8,2)}, v6
    ds_read_b128 {v(KF,4)}, v3
    ds_read_b128 {v(KF+4,4)}, v3 offset:1024
    s_mov_b32 {s(T0)}, {s(sTl)}''')
    o_addr(a, sHA, OAM, OAL)
    a.c('the o_B rows of the same tiles get the marker; the flag for o_A below covers these stores too')
    for i in range(4): a(f'v_mov_b32 {v(160+i)}, -1')
    for t in range(2):
        a(f's_add_u32 {s(T0)}, {s(T2+t)}, {OBM - OAM:#x}\nbuffer_store_dwordx4 v[160:163], {v(v16)}, {srd(sWS)}, {s(T0)} offen sc1')
    a('s_mov_b32 exec_hi, 0')
    for t in range(2):
        a(f's_add_u32 {s(T0)}, {s(T4+t)}, {OBL - OAL:#x}\nbuffer_store_dword v160, {v(vQL)}, {srd(sWS)}, {s(T0)} offen sc1')
    a('s_mov_b32 exec_hi, -1')
    a('s_waitcnt lgkmcnt(0)')
    ND = [80, 96]
    lprio(0)
    for tt in range(2): mfma(a, ND[tt], KF+8, PH[('q', tt)]+8, None, '8')
    a.nop(9)
    for tt in range(2): mfma(a, ND[tt], KF, PH[('q', tt)], ND[tt])
    for tt in range(2): mfma(a, ND[tt], KF+4, PH[('q', tt)]+4, ND[tt])
    a.nop(11)
    lprio(1)
    o_publish(a, ND, [112, 120], True)
    a(f's_lshr_b32 {s(T6)}, {s(sTl)}, 1')
    flag_addr(a, T1, T6, sHA, 5, FL3)
    wave_signals(a, 2, T1)
    a.stamp(8)
    a.c('================= waves 4-7: out projection of A (operands first, MFMAs after the attention) =================')
    W, O1, O2 = 16, 124, 160
    X = (8, 9, 10, 11); Y = (12, 13, 14, 15)
    sM, sM2, sL = 59, 60, 61
    op_read_w(a, W, vXs, vXs+1, vXs+2, vXs+3)
    a(f'''    s_lshl_b32 {s(T1)}, {s(sOT)}, 1
    s_add_u32 {s(T5)}, {s(sTH)}, {s(T1)}
    s_lshl_b32 {s(T0)}, {s(T5)}, 5
    s_lshl_b32 {s(T1)}, {s(sMG)}, 4
    s_add_u32 {s(T7)}, {s(T0)}, {s(T1)}
    s_lshl_b32 {s(sM)}, {s(T7)}, 10
    s_add_u32 {s(sM)}, {s(sM)}, {OAM:#x}
    s_add_u32 {s(sM2)}, {s(sM)}, 4096
    s_lshl_b32 {s(sL)}, {s(T7)}, 7
    s_add_u32 {s(sL)}, {s(sL)}, {OAL:#x}
    s_waitcnt lgkmcnt(0)''')
    lds_arrive(a, C_W1)
    lds_wait(a, 4, C_W1, 4)
    bg += [(sBWO, kq, SLOT_B[kq], P) for kq in (2, 3) for P in range(3)]
    bgdma(); bgdma()
    if opt.get('f0', 1): lprio(0)
    for i in range(4): a(f'v_mov_b32 {v(X[i])}, {v(vXs+i)}\nv_subrev_u32 {v(Y[i])}, {4*WBLK}, {v(vXs+i)}')
    final_setup(a); final_state(a)
    lprio(1)
    bgdma(); bgdma()
    poll_flags(a, vF3, 4, sl=2)
    a.c('short batches keep the memory queue of the CU free for the attention waves')
    for O in (O1, O2):
        for h in range(2):
            for i in range(4): a(f'buffer_load_dwordx4 {v(O+16*h+4*i,4)}, {v(v16)}, {srd(sWS)}, {s(sM2 if h else sM)} offen offset:{1024*i} sc1')
            if h:
                for i in range(4): a(f'buffer_load_dword {v(O+32+i)}, {v(vOl)}, {srd(sWS)}, {s(sL)} offen offset:{128*i} sc1')
                bgdma()
            if h or not opt.get('ob2', 1): a(f's_waitcnt vmcnt({opt.get("othr", 2)})')
        if O == O1: a(f's_add_u32 {s(sM)}, {s(sM)}, 8192\ns_add_u32 {s(sM2)}, {s(sM2)}, 8192\ns_add_u32 {s(sL)}, {s(sL)}, 1024')
    assert not bg
    a('s_waitcnt vmcnt(0)')
    a.stamp(9)
    pre = opt.get('pre', 0)
    mid = opt.get('mid', 1)
    a('s_setprio 0')
    for ps, (O, nxt) in enumerate(((O1, Y), (O2, X))):
        if ps == 1:
            a('s_waitcnt lgkmcnt(0)')
            lds_arrive(a, C_W3)
        for st in range(9):
            if 9*ps + st == pre: a(f's_barrier\ns_setprio {opt.get("prio2", 0)}')
            for T in range(3):
                mfma(a, ACA[T], W + 12*st + 4*T, O + 4*st, None if (ps == 0 and st == 0) else ACA[T])
            if st: a(op_w_reads(W, *nxt, st - 1))
            k = 9*ps + st
            if mid and k == mid:
                a(f's_waitcnt vmcnt(0)\nv_cmp_ne_u32 vcc, {s(sTok)}, {v(vFlg)}')
                half_try(a)
                lb = a.new('ml')
                a(f's_min_u32 {s(T0)}, {s(sA)}, {s(sB_)}\ns_cmp_eq_u32 {s(T0)}, 0\ns_cbranch_scc1 {lb}\ns_mov_b32 {s(sC)}, 1')
                left_ld(a)
                a.label(lb)
            if k == (mid - opt.get('midd', 6) if mid else 14) or (mid and k == mid): flag_ld(a)
        a(op_w_reads(W, *nxt, 8))
    a('s_setprio 0')
    lds_wait(a, 2, C_W3, 4, sl=0)
    a(f'v_subrev_u32 v1, {4*WSTR + BRED - ARED}, {v(vWr)}')
    for q in range(8): a(f'ds_write_b128 v1, {v(ACA[0]+4*q,4)} offset:{QS*q}')
    a(f'ds_write_b128 v1, {v(ACA[2],4)} offset:{QS*8}')
    a.stamp(2)

HEADER = '''; Fused hedgehog linear attention (A) + softmax MHA (B), one persistent launch of 256 workgroups.
; kernarg: A_x A_wqkv A_w_phi A_wo B_x B_wqkv B_wo out debug ws (8-byte pointers, in that order)
; @launch grid=(256,1,1) block=(512,1,1) lds=%d
.amdgcn_target "amdgcn-amd-amdhsa--gfx950"
.text
.globl %s_kernel
.p2align 8
.type %s_kernel,@function
%s_kernel:
''' % (LDS_BYTES, NAME, NAME, NAME)
FOOTER = '''.section .rodata,"a"
.p2align 6
.amdhsa_kernel %s_kernel
  .amdhsa_next_free_vgpr 256
  .amdhsa_next_free_sgpr 102
  .amdhsa_accum_offset 256
  .amdhsa_group_segment_fixed_size 0
  .amdhsa_kernarg_size 80
  .amdhsa_user_sgpr_count 2
  .amdhsa_user_sgpr_kernarg_segment_ptr 1
  .amdhsa_system_sgpr_workgroup_id_x 1
.end_amdhsa_kernel
''' % NAME

OPT = {}
def generate(diag=False, **opt):
    opt = {**dict(rot=0, thr=3, sig=12, ldp=1, qlo=3, w1=2, prio2=1, mid=16, ob2=0), **opt}
    OPT.clear(); OPT.update(opt)
    a = Asm(diag)
    prologue(a, opt)
    a_chain(a, opt)
    final(a)
    body = a.text()
    bad = lint(body)
    for x in bad: print(f"HAZARD line {x[0]} -> {x[1]}: {x[2]} need {x[3]} have {x[4]}\n    {x[5]}\n    {x[6]}", file=sys.stderr)
    return HEADER + (f'    ; stamps={STAMPS + (opt.get("wsoff", 0) << 20):#x}\n' if diag else '') + body + FOOTER, len(bad)

if __name__ == '__main__':
    import argparse
    ap = argparse.ArgumentParser()
    ap.add_argument('-o', default=f'cdna_kernels/{NAME}.s')
    ap.add_argument('--diag', action='store_true')
    ap.add_argument('--opt', action='append', default=[])
    g = ap.parse_args()
    opt = {}
    for o in g.opt:
        k, val = o.split('='); opt[k] = int(val)
    text, nbad = generate(g.diag, **opt)
    open(g.o, 'w').write(text)
    print(f'wrote {g.o}: {len(text)} bytes, {nbad} hazards')
```

```python
import sys, struct
from lint import lint

NAME = 'concat_heads__linear_kernel_hedgehog__softmax_full_mha__prompt'
OOB = 0x40000000
QM, QL, KV = 0x0, 0x200000, 0x240000
REC = 2560; HREC = 64 * REC
VLOFF, ONEOFF, KLOFF = 2048, 2176, 2304
AOFF = 0x740000
OAM, OAL, OBM, OBL = 0xE80000, 0x1080000, 0x10C0000, 0x12C0000
KVP = 0x1300000; KVPS = 4608
FL1, FL1A, FL2, FL3, FL4 = 0x1420000, 0x1428000, 0x1430000, 0x1440000, 0x1460000
EPOCH = 0x1438000
STAMPS = 0x1500000
WS_BYTES = 0x1800000
XA = 0
WS0 = 28672
MB, EB = 18432, 9216
M_A, X_A, M_C, LATE = WS0, WS0 + 2*MB, WS0 + 2*MB + 2*EB, WS0 + 3*MB + 2*EB
PHS = LATE
EAX = 131072
CNT = LATE + 3*MB
KVF = CNT + 256
LDS_BYTES = 163840
C_F1, C_F1A, C_KVX, C_F2, C_KVF, C_F3, C_OPA, C_F4, C_BAD, C_W1, C_TOK, C_G, C_W3 = [4 * i for i in range(13)]
sBX, sBW, sAX, sAW, sPHI, sAWO, sBWO, sOUT, sDBG, sWS = 4, 8, 12, 16, 20, 24, 28, 32, 36, 40
sWave, sCT, sRT, sH = 44, 45, 46, 47
T0, T1, T2, T3, T4, T5, T6, T7 = range(48, 56)
sTab, sS0, sDoSc, sIdle = 64, 65, 66, 67
sQB, sRot, sFree, sOT, sOC, sTok, sLoc, sXcd = 68, 69, 70, 71, 72, 73, 74, 75
sHA, sRB = sH, sQB
sSpin, sTH, sMG, sTile = 76, 77, 78, 79
SSTAMP = 80
sW4, sImg, sXB, sWB, sLh2, sLt2 = 96, 97, 98, 99, 100, 101
v16, vQL, vCnt, vOne, vZero, vPoll, vTok = 244, 245, 246, 247, 248, 249, 250
vVf = 252
EA, ES = 72, 84
vWO = 224
vX, vW, XAc, WAc, XAr, WAr, vTab = 228, 232, 24, 28, 32, 36, 39
ACC = {('a', 0): 96, ('a', 1): 112, ('b', 0): 128, ('b', 1): 144}
FS = [176, 192, 40, 56]
def m_of(sl): return 9*(sl >> 2) + 2*(sl & 1) + 5*((sl >> 1) & 1)
def ct_table(ct):
    lo = 32*ct; s0 = next(x for x in range(200) if m_of(x) >= lo)
    used = {m_of(x) + d for x in range(s0, s0 + 12) for d in (0, 1)}
    misc = [m - lo for m in range(lo, lo + 32) if m not in used]
    assert misc[4:] == [28, 29, 30, 31]
    return sum(c << (5*i) for i, c in enumerate(misc[:4])) | (s0 << 20)

LOG2E = 1.4426950408889634
def f2u(x): return struct.unpack('<I', struct.pack('<f', x))[0]
QSCALE = f2u(18 ** -0.5 * LOG2E)

def v(a, n=1): return f'v{a}' if n == 1 else f'v[{a}:{a+n-1}]'
def s(a, n=1): return f's{a}' if n == 1 else f's[{a}:{a+n-1}]'
def srd(a): return s(a, 4)

import re
def unpack(x):
    m = re.match(r'v_pk_(add_f32|mul_f32|mov_b32) ([vs])\[(\d+):\d+\], ([vs])\[(\d+):\d+\], ([vs])\[(\d+):\d+\](.*)', x)
    op, _, d, k0, a0, k1, a1, mod = m.groups(); d, a0, a1 = int(d), int(a0), int(a1); mod = mod.strip()
    if op == 'mov_b32':
        assert mod == 'op_sel:[0,1]'
        return [f'v_mov_b32 v{d}, v{a0}', f'v_mov_b32 v{d+1}, v{a1+1}']
    assert mod in ('', 'op_sel_hi:[1,0]') and k0 == 'v'
    h = 0 if mod else 1
    return [f'v_{op} v{d}, {k1}{a1}, v{a0}', f'v_{op} v{d+1}, {k1}{a1+h}, v{a0+1}']

class Asm:
    def __init__(self, diag=False):
        self.L = []; self.uid = 0; self.diag = diag; self.lock = False; self.nopk = False; self.late = []; self.early = []
    def __call__(self, t):
        for x in t.split('\n'):
            x = x.strip()
            if not x: continue
            if self.nopk and x.startswith('v_pk_'): self.L += ['    ' + y for y in unpack(x)]
            else: self.L.append('    ' + x)
    def label(self, n): self.L.append(n + ':')
    def c(self, t): self.L.append('    ; ' + t)
    def new(self, p):
        self.uid += 1; return f'L_{p}{self.uid}'
    def nop(self, n):
        while n > 0:
            k = min(n, 16); self(f's_nop {k-1}'); n -= k
    def stamp(self, k):
        if self.diag and not self.lock:
            self(f's_memrealtime {s(94,2)}\ns_waitcnt lgkmcnt(0)\ns_mov_b32 {s(SSTAMP+k)}, s94')
    def lstamp(self, sreg, base=0):
        if self.diag:
            self(f's_memrealtime s[94:95]\ns_add_u32 s95, {sreg}, {base}\ns_mov_b32 s93, s95\ns_waitcnt lgkmcnt(0)\nv_writelane_b32 v243, s94, s93'.replace('s_add_u32 s95', 's_add_u32 s93').replace('s_mov_b32 s93, s95\n', '').replace('v_writelane_b32 v243, s94, s93', 's_mov_b32 m0, s93\nv_writelane_b32 v243, s94, m0'))
    def cyc0(self):
        if self.diag: self('s_memtime s[94:95]\ns_waitcnt lgkmcnt(0)\ns_mov_b32 s93, s94')
    def cyc1(self):
        if self.diag: self('s_memtime s[94:95]\ns_waitcnt lgkmcnt(0)\ns_sub_u32 s93, s94, s93')
    def text(self): return '\n'.join(self.L) + '\n'

class VM:
    def __init__(self): self.q = []
    def add(self, tag, n=1): self.q += [tag] * n
    def after(self, tag):
        i = max(k for k, t in enumerate(self.q) if t == tag)
        return len(self.q) - 1 - i

def mfma_s(d, x, y, c=None, kind='16'):
    op = {'16': 'v_mfma_f32_32x32x16_bf16', '8': 'v_mfma_f32_32x32x8_bf16', '2b': 'v_mfma_f32_32x32x4_2b_bf16'}[kind]
    nd = 32 if kind == '2b' else 16; na = 4 if kind == '16' else 2
    return f'{op} {v(d,nd)}, {v(x,na)}, {v(y,na)}, {"0" if c is None else v(c,nd)}'
def mfma(a, *k, **kw): a(mfma_s(*k, **kw))

def opol(k): return ['', ' sc1', ' nt', ' sc0 sc1', ' sc1 nt'][OPT.get(k, 0)]

def cvt8(a, src, dst):
    for i in range(4): a(f'v_cvt_pk_bf16_f32 {v(dst+i)}, {v(src+2*i)}, {v(src+2*i+1)}')

SRDS = {sAX: (0, 2048*1152), sAW: (8, 576*3456), sPHI: (16, 32*648), sAWO: (24, 576*1152), sBX: (32, 2048*1152),
        sBW: (40, 576*3456), sBWO: (48, 576*1152), sOUT: (56, 2048*2304), sDBG: (64, 256), sWS: (72, WS_BYTES)}
def ld_srd(a, rs):
    for r in rs: a(f's_load_dwordx2 {s(r,2)}, s[0:1], {SRDS[r][0]}')
def mk_srd(a, rs):
    for r in rs:
        if r == sWS and OPT.get('wsoff'): a(f's_waitcnt lgkmcnt(0)\ns_add_u32 {s(r)}, {s(r)}, {OPT["wsoff"] << 20:#x}\ns_addc_u32 {s(r+1)}, {s(r+1)}, 0')
    for r in rs: a(f's_mov_b32 {s(r+2)}, {SRDS[r][1]:#x}\ns_mov_b32 {s(r+3)}, 0x20000')

def spin_tail(a, top, sl=1):
    a((f's_sleep {sl}\n' if sl else '') + f's_sub_u32 {s(sSpin)}, {s(sSpin)}, 1\ns_cbranch_scc0 {top}\ns_endpgm')

def token_issue(a):
    a(f'buffer_load_dwordx2 {v(vTok,2)}, {v(vZero)}, {srd(sDBG)}, 0 offen sc1')
def token_check(a):
    top = a.new('tok'); done = a.new('tokd')
    a.label(top)
    a(f'v_readfirstlane_b32 {s(T0)}, {v(vTok+1)}\nv_readfirstlane_b32 {s(sTok)}, {v(vTok)}\ns_cmp_lg_u32 {s(T0)}, 0\ns_cbranch_scc1 {done}')
    token_issue(a)
    a('s_waitcnt vmcnt(0)')
    spin_tail(a, top)
    a.label(done)

def poll_flags(a, vaddr, vt, preloaded=False, sl=1):
    top = a.new('poll'); done = a.new('polld'); chk = a.new('pollc')
    if preloaded: a(f's_branch {chk}')
    a.label(top)
    a(f'buffer_load_dword {v(vt)}, {v(vaddr)}, {srd(sWS)}, 0 offen sc1\ns_waitcnt vmcnt(0)')
    a.label(chk)
    a(f'v_cmp_ne_u32 vcc, {s(sTok)}, {v(vt)}\ns_cbranch_vccz {done}')
    spin_tail(a, top, sl)
    a.label(done)

def last_signals(a, vt, ctr, n, sflag):
    skip = a.new('nsig')
    a(f's_mov_b64 exec, 1\nds_add_rtn_u32 {v(vt)}, {v(vCnt)}, {v(vOne)} offset:{ctr}\ns_waitcnt lgkmcnt(0)')
    a(f'v_readfirstlane_b32 {s(T0)}, {v(vt)}\nv_mov_b32 {v(vt)}, {s(sflag)}\nv_mov_b32 {v(vt+1)}, {s(sTok)}\ns_cmp_lg_u32 {s(T0)}, {n-1}\ns_cbranch_scc1 {skip}')
    a(f'buffer_store_dword {v(vt+1)}, {v(vt)}, {srd(sWS)}, 0 offen sc1')
    a.label(skip)
    a('s_mov_b64 exec, -1')

def wave_signals(a, vt, sflag):
    a(f'v_mov_b32 {v(vt)}, {s(sflag)}\nv_mov_b32 {v(vt+1)}, {s(sTok)}\ns_waitcnt vmcnt(0)\ns_mov_b64 exec, 1')
    a(f'buffer_store_dword {v(vt+1)}, {v(vt)}, {srd(sWS)}, 0 offen sc1\ns_mov_b64 exec, -1')

def lds_arrive(a, ctr):
    a(f's_mov_b64 exec, 1\nds_add_u32 {v(vCnt)}, {v(vOne)} offset:{ctr}\ns_mov_b64 exec, -1')

def lds_wait(a, vt, ctr, n, sl=2):
    top = a.new('lw'); done = a.new('lwd')
    a.label(top)
    a(f'ds_read_b32 {v(vt)}, {v(vCnt)} offset:{ctr}\ns_waitcnt lgkmcnt(0)\nv_readfirstlane_b32 {s(T0)}, {v(vt)}\ns_cmp_ge_u32 {s(T0)}, {n}\ns_cbranch_scc1 {done}')
    spin_tail(a, top, sl)
    a.label(done)

def flag_addr(a, dst, shi, slo, sh, base):
    a(f's_lshl_b32 {s(dst)}, {s(shi)}, {sh}\ns_add_u32 {s(dst)}, {s(dst)}, {s(slo)}\ns_lshl_b32 {s(dst)}, {s(dst)}, 7\ns_add_u32 {s(dst)}, {s(dst)}, {base:#x}')

def kl_const(a, dst, shead):
    a(f's_bitcmp1_b32 {s(shead)}, 0\ns_mov_b32 {s(dst)}, {HREC + KLOFF}\ns_cselect_b32 {s(dst)}, {KLOFF + 4}, {s(dst)}')

def producer_ct(a, d, ty, last, shead, t):
    a(f'''s_lshr_b32 {s(T0)}, {s(shead)}, 1
    s_mul_i32 {s(T0)}, {s(T0)}, 36
    s_and_b32 {s(T1)}, {s(shead)}, 1
    s_lshl_b32 {s(T1)}, {s(T1)}, 4
    s_add_u32 {s(T0)}, {s(T0)}, {s(T1)}
    v_mul_u32_u24 {v(d)}, 576, {v(ty)}
    v_mul_u32_u24 {v(t)}, 19, {v(last)}
    v_add3_u32 {v(d)}, {v(d)}, {v(t)}, {s(T0)}
    v_lshrrev_b32 {v(d)}, 7, {v(d)}''')

def issue_chunk(a, j):
    if OPT.get('nodma') and j > 1: return
    slot = (j % 4) * 32768; c = j % 9
    if OPT.get('samek'): c = 0
    X, W = (sBX, sBW) if j < 9 else (sAX, sAW)
    nx = ' nt' if OPT.get('nt', 0) & 1 else ''; nw = ' nt' if OPT.get('nt', 0) & 2 else ''
    if OPT.get('rot', 0):
        a(f'''s_add_u32 vcc_lo, {s(sRot)}, {c}
        s_cmp_ge_u32 vcc_lo, 9
        s_cselect_b32 vcc_hi, 9, 0
        s_sub_u32 vcc_lo, vcc_lo, vcc_hi
        s_mul_i32 vcc_hi, vcc_lo, {64*3456}
        s_add_u32 vcc_hi, vcc_hi, {s(sWB)}
        s_lshl_b32 vcc_lo, vcc_lo, 7
        s_add_u32 vcc_lo, vcc_lo, {s(sXB)}
        s_lshl_b32 s3, {s(sW4)}, 12
        s_add_u32 m0, s3, {slot}
        s_nop 0''')
    else:
        a(f's_lshl_b32 s3, {s(sW4)}, 12\ns_add_u32 m0, s3, {slot}\ns_add_u32 vcc_lo, {s(sXB)}, {128*c}\ns_add_u32 vcc_hi, {s(sWB)}, {64*3456*c}')
    for i in range(4): a(f'buffer_load_dwordx4 {v(vX+i)}, {srd(X)}, vcc_lo offen offset:{1024*i}{nx} lds')
    a(f's_add_u32 m0, s3, {slot + 16384}\ns_nop 0')
    for i in range(4): a(f'buffer_load_dwordx4 {v(vW+i)}, {srd(W)}, vcc_hi offen offset:{1024*i}{nw} lds')

def su_loader(a):
    a.c('loader lane offsets: x rows (xor-swizzled 16-byte pieces), w rows (16 pieces, rotated by four per row)')
    a(f'''v_lshrrev_b32 v1, 3, v0
    v_and_b32 v2, 7, v0
    v_lshrrev_b32 v3, 1, v1
    v_xor_b32 v2, v2, v3
    v_mul_u32_u24 v1, 1152, v1
    v_lshl_add_u32 {v(vX)}, v2, 4, v1
    v_xor_b32 v2, 4, v2
    v_lshl_add_u32 {v(vX+1)}, v2, 4, v1
    v_add_u32 {v(vX+1)}, {8*1152-1024}, {v(vX+1)}
    v_add_u32 {v(vX+2)}, {2*(8*1152-1024)}, {v(vX)}
    v_add_u32 {v(vX+3)}, {2*(8*1152-1024)}, {v(vX+1)}
    v_lshrrev_b32 v1, 4, v0
    v_lshlrev_b32 v2, 2, v1
    v_sub_u32 v2, v0, v2
    v_and_b32 v2, 15, v2
    v_mul_u32_u24 v1, 3456, v1
    v_lshl_add_u32 v5, v2, 4, v1
    s_cmp_eq_u32 {s(sCT)}, 13
    s_cselect_b32 s3, 8, 16
    v_cmp_gt_u32 vcc, s3, v2
    v_mov_b32 v7, {OOB:#x}
    s_nop 0
    v_cndmask_b32 {v(vW)}, v7, v5, vcc''')
    for i in range(1, 4): a(f'v_add_u32 {v(vW+i)}, {i*(4*3456-1024)}, {v(vW)}')
    su_loader_s(a)

def su_loader_s(a):
    a(f'''s_lshl_b32 {s(sXB)}, {s(sRT)}, 2
    s_add_u32 {s(sXB)}, {s(sXB)}, {s(sW4)}
    s_mul_i32 {s(sXB)}, {s(sXB)}, {32*1152}
    s_mul_i32 {s(sWB)}, {s(sW4)}, {16*3456}
    s_lshl_b32 s3, {s(sCT)}, 8
    s_add_u32 {s(sWB)}, {s(sWB)}, s3''')

def su_ids2(a):
    a(f'''s_lshl_b32 s3, {s(sXcd)}, 2
    s_and_b32 {s(sH)}, {s(sLoc)}, 3
    s_add_u32 {s(sH)}, {s(sH)}, s3
    s_lshr_b32 {s(sQB)}, {s(sLoc)}, 2
    s_lshr_b32 {s(sOT)}, {s(sLoc)}, 3
    s_add_u32 {s(sOT)}, {s(sOT)}, s3
    s_and_b32 {s(sOC)}, {s(sLoc)}, 7
    s_mov_b32 {s(sSpin)}, 0x40000
    s_and_b32 {s(sTH)}, {s(sWave)}, 1
    s_lshr_b32 {s(sMG)}, {s(sW4)}, 1
    s_cmp_lt_u32 {s(sWave)}, 4
    s_cselect_b32 {s(sImg)}, 0, {AOFF:#x}
    v_mov_b32 {v(vZero)}, 0
    v_mov_b32 {v(vCnt)}, {CNT}
    v_mov_b32 {v(vOne)}, 1''')

def su_token(a, part):
    lb = a.new('notok')
    a(f's_or_b32 s3, s2, {s(sWave)}\ns_cmp_lg_u32 s3, 0\ns_cbranch_scc1 {lb}\ns_mov_b32 {s(T0)}, {EPOCH:#x}')
    if part == 0:
        a(f'buffer_load_dword v10, {v(vZero)}, {srd(sWS)}, {s(T0)} offen sc1')
    else:
        a(f'''s_mov_b32 {s(T1)}, 1664525
        s_waitcnt vmcnt(0)
        v_mul_lo_u32 v6, v10, {s(T1)}
        v_add_u32 v6, 0x3c6ef35f, v6
        v_mov_b32 v7, 1
        s_mov_b64 exec, 1
        buffer_store_dwordx2 v[6:7], {v(vZero)}, {srd(sDBG)}, 0 offen sc1
        buffer_store_dword v6, {v(vZero)}, {srd(sWS)}, {s(T0)} offen sc1
        s_mov_b64 exec, -1''')
    a.label(lb)
    if part == 0:
        a(f's_cmp_lg_u32 {s(sWave)}, 1\ns_cbranch_scc1 L_nocnt\nv_lshlrev_b32 v1, 2, v0\nv_add_u32 v1, {CNT}, v1\nds_write_b32 v1, {v(vZero)}')
        a.label('L_nocnt')

def su_gaddr(a):
    lb = a.new('mg0')
    a.c('gemm fragment addresses')
    a(f'''v_and_b32 v1, 31, v0
    v_lshrrev_b32 v2, 5, v0
    v_bfe_u32 v3, v0, 1, 3
    v_xor_b32 v3, v3, v2
    s_lshl_b32 s3, {s(sTH)}, 13
    v_lshl_add_u32 v4, v1, 7, s3''')
    for k in range(4):
        a(f'v_xor_b32 v5, {2*k}, v3\nv_lshl_add_u32 {v(XAc+k)}, v5, 4, v4')
    a.c('which four-column chunk each lane group reads for the two 32-column tiles of this wave')
    a(f'''v_bfe_u32 v3, v0, 2, 2
    v_and_b32 v4, 3, v0
    v_bfe_u32 v5, v0, 4, 1
    v_lshl_add_u32 v4, v5, 2, v4
    v_lshl_add_u32 v5, v2, 3, v3
    v_lshlrev_b32 v5, 8, v5
    v_add_u32 v5, 16384, v5
    v_lshlrev_b32 v3, 2, v3
    s_lshl_b32 s3, {s(sMG)}, 4''')
    for u in range(2): a(f'v_add_u32 {v(WAc+u)}, s3, v4' + (f'\nv_add_u32 {v(WAc+u)}, 8, {v(WAc+u)}' if u else ''))
    a(f's_cmp_ge_u32 {s(sCT)}, 9\ns_cbranch_scc1 {lb}')
    a(f'''v_lshrrev_b32 v6, 2, v4
    v_and_b32 v7, 1, v4
    v_lshl_add_u32 v6, v6, 1, v7
    s_lshl_b32 s3, {s(sMG)}, 3
    s_add_u32 s3, s3, {s(sS0)}
    v_add_u32 v6, s3, v6
    v_lshrrev_b32 v7, 2, v6
    v_mul_u32_u24 v7, 9, v7
    v_and_b32 v1, 1, v6
    v_lshl_add_u32 v7, v1, 1, v7
    v_bfe_u32 v1, v6, 1, 1
    v_mul_u32_u24 v1, 5, v1
    v_bfe_u32 v6, v4, 1, 1
    v_add3_u32 v7, v7, v1, v6
    s_lshl_b32 s3, {s(sCT)}, 5
    v_subrev_u32 {v(WAc)}, s3, v7
    v_add_u32 {v(WAc+1)}, 9, {v(WAc)}
    s_cmp_eq_u32 {s(sMG)}, 0
    s_cbranch_scc1 {lb}''')
    misc_chunk(a, WAc+1, 4, 6)
    a.label(lb)
    for u in range(2):
        a(f'''v_lshrrev_b32 v6, 1, {v(WAc+u)}
        v_add_u32 v6, v6, v3
        v_and_b32 v6, 15, v6
        v_lshl_add_u32 v6, v6, 4, v5
        v_and_b32 {v(WAc+u)}, 1, {v(WAc+u)}
        v_lshl_add_u32 {v(WAc+u)}, {v(WAc+u)}, 3, v6''')

def misc_chunk(a, d, c8, t):
    a(f'''v_mul_u32_u24 {v(t)}, 5, {v(c8)}
    v_lshrrev_b32 {v(t)}, {v(t)}, {v(vTab)}
    v_and_b32 {v(t)}, 31, {v(t)}
    v_cmp_gt_u32 vcc, 4, {v(c8)}
    v_add_u32 {v(d)}, 24, {v(c8)}
    s_nop 0
    v_cndmask_b32 {v(d)}, {v(d)}, {v(t)}, vcc''')

def su_tab(a):
    a(f's_mov_b32 {s(sTab)}, {ct_table(0):#x}')
    for ct in range(1, 9): a(f's_cmp_eq_u32 {s(sCT)}, {ct}\ns_cselect_b32 {s(sTab)}, {ct_table(ct):#x}, {s(sTab)}')
    a(f'''s_lshr_b32 {s(sS0)}, {s(sTab)}, 20
    v_mov_b32 {v(vTab)}, {s(sTab)}
    s_lshl_b32 {s(sTile)}, {s(sRT)}, 2
    s_lshl_b32 s3, {s(sTH)}, 1
    s_add_u32 {s(sTile)}, {s(sTile)}, s3
    s_cmp_le_u32 {s(sCT)}, 4
    s_cselect_b32 {s(sDoSc)}, 1, 0
    s_cmp_eq_u32 {s(sImg)}, 0
    s_cselect_b32 {s(sDoSc)}, {s(sDoSc)}, 0
    s_cmp_ge_u32 {s(sLoc)}, 28
    s_cselect_b32 {s(sIdle)}, 1, 0
    v_lshlrev_b32 {v(v16)}, 4, v0
    v_lshlrev_b32 {v(vQL)}, 2, v0''')

def su_epi(a, o, stage=None):
    if stage == 1:
        for k in range(6):
            a(f'ds_bpermute_b32 {v(EA+2*k)}, v2, v6 offset:{8*k}\nds_bpermute_b32 {v(EA+2*k+1)}, v2, v7 offset:{8*k}\nds_bpermute_b32 {v(ES+k)}, v2, v9 offset:{8*k}')
        return
    if stage == 2:
        for k in range(6):
            a(f'''v_and_b32 v3, 31, {v(EA+2*k+1)}
            v_mad_u32_u24 {v(EA+2*k)}, v1, v3, {v(EA+2*k)}
            v_sub_u32 v3, {v(EA+2*k+1)}, v3
            v_add_u32 {v(EA+2*k+1)}, {v(EA+2*k)}, v3''')
        return
    a(f'v_and_b32 v1, 31, v0\nv_lshrrev_b32 v2, 5, v0\ns_mul_i32 {s(T1)}, {s(sTile)}, {REC}')
    if o == 'S':
        a(f's_add_u32 {s(T1)}, {s(T1)}, {KV:#x}\ns_sub_u32 {s(T2)}, {s(sCT)}, 9\ns_lshl_b32 {s(T2)}, {s(T2)}, 7')
        for u in range(2): su_epi_v(a, u)
        for r in range(EA + 5, EA + 12): a(f'v_mov_b32 {v(r)}, v7')
        return
    a.c('lane i < 12 works out where item i goes: a 16-byte slot (first chunk) or a single chunk of the mixed tile')
    a(f'''s_lshl_b32 s3, {s(sMG)}, 3
    s_add_u32 s3, s3, {s(sS0)}
    v_add_u32 v3, s3, v1
    v_lshrrev_b32 v4, 2, v3
    v_mul_u32_u24 v4, 9, v4
    v_and_b32 v5, 1, v3
    v_lshl_add_u32 v4, v5, 1, v4
    v_bfe_u32 v5, v3, 1, 1
    v_mad_u32_u24 v8, v5, 5, v4
    v_subrev_u32 v3, 4, v1''')
    misc_chunk(a, 4, 3, 5)
    a(f'''s_lshl_b32 {s(T4)}, {s(sCT)}, 5
    s_cmp_eq_u32 {s(sMG)}, 0
    s_cselect_b32 s3, 32, 4
    v_cmp_gt_u32 vcc, s3, v1
    v_add_u32 v4, {s(T4)}, v4
    s_add_u32 {s(T1)}, {s(T1)}, {(KV - 32*HREC) & 0xffffffff:#x}
    v_cndmask_b32 v4, v4, v8, vcc
    v_mul_u32_u24 v3, 7282, v4
    v_lshrrev_b32 v3, 16, v3
    v_mul_u32_u24 v5, 9, v3
    v_sub_u32 v8, v4, v5
    v_cmp_lt_u32 vcc, 4, v8
    v_lshlrev_b32 v3, 1, v3
    v_subrev_u32 v9, 5, v8
    v_addc_co_u32 v4, vcc, 0, v3, vcc
    v_min_u32 v9, v8, v9
    s_lshl_b32 {s(T0)}, {s(sTile)}, 10
    v_lshl_add_u32 v6, v4, 16, {s(T0)}
    v_mul_u32_u24 v5, {HREC}, v4
    v_cmp_gt_u32 vcc, 32, v4
    v_add_u32 v5, {s(T1)}, v5
    s_lshl_b32 {s(T2)}, {s(sTile)}, 8
    s_add_u32 {s(T2)}, {s(T2)}, {QL:#x}
    v_cndmask_b32 v6, v5, v6, vcc
    v_lshrrev_b32 v4, 1, v9
    v_lshl_add_u32 v6, v4, 9, v6
    v_and_b32 v4, 1, v9
    v_lshl_add_u32 v6, v4, 3, v6
    v_lshl_add_u32 v4, v3, 13, {s(T2)}
    v_mul_u32_u24 v5, {HREC}, v3
    s_add_u32 {s(T3)}, {s(T1)}, {HREC + KLOFF}
    v_add_u32 v5, {s(T3)}, v5
    v_mov_b32 v7, {REC + 16}
    v_mov_b32 v9, {1024 + 16}
    v_cndmask_b32 v4, v5, v4, vcc
    v_cndmask_b32 v7, v7, v9, vcc
    v_mov_b32 v5, {REC + 8}
    v_mov_b32 v9, {256 + 8}
    v_cndmask_b32 v5, v5, v9, vcc
    v_mov_b32 v9, {QSCALE:#x}
    v_cndmask_b32 v9, 1.0, v9, vcc
    v_cmp_eq_u32 vcc, 4, v8
    v_lshlrev_b32 v2, 2, v2
    s_nop 0
    v_cndmask_b32 v6, v6, v4, vcc
    v_cndmask_b32 v7, v7, v5, vcc''')

def su_epi_v(a, u):
    e = EA + 2*u
    a(f'''s_lshl_b32 s3, {s(sMG)}, 6
    s_add_u32 s3, s3, {s(T2)}
    s_add_u32 s3, s3, {32*u}
    v_add_u32 v3, s3, v1
    v_mul_u32_u24 v4, 3641, v3
    v_lshrrev_b32 v4, 16, v4
    v_mul_u32_u24 v5, 18, v4
    v_sub_u32 v3, v3, v5
    v_and_b32 v5, 1, v4
    v_lshlrev_b32 v5, 1, v5
    v_sub_u32 v3, v3, v5
    v_add_u32 v5, 18, v3
    v_min_u32 v3, v3, v5
    v_mul_u32_u24 v5, {HREC}, v4
    v_add_u32 v5, {s(T1)}, v5
    v_lshl_add_u32 v5, v3, 4, v5
    v_lshl_add_u32 v6, v2, 8, v5
    v_add_u32 v6, 1024, v6
    v_lshl_add_u32 v7, v2, 5, v5
    v_add_u32 v7, {VLOFF - 256}, v7
    v_cmp_gt_u32 vcc, 16, v3
    v_add_u32 v8, 512, v6
    v_add_u32 v9, 64, v7
    v_cndmask_b32 v6, v7, v6, vcc
    v_cndmask_b32 v8, v9, v8, vcc
    v_cmp_gt_u32 vcc, 32, v4
    v_mov_b32 v7, {OOB:#x}
    s_nop 0
    v_cndmask_b32 {v(e)}, v7, v6, vcc
    v_cndmask_b32 {v(e+1)}, v7, v8, vcc''')
    if u:
        a.c('the row of ones of every head whose first column is in this tile')
        a(f'''s_add_u32 s3, {s(T2)}, 17
        s_mul_i32 s3, s3, 3641
        s_lshr_b32 s3, s3, 16
        v_and_b32 v3, 7, v0
        v_add_u32 v3, s3, v3
        v_mul_u32_u24 v4, 18, v3
        s_add_u32 {s(T2)}, {s(T2)}, 128
        s_min_u32 {s(T2)}, {s(T2)}, 576
        v_cmp_gt_u32 vcc, {s(T2)}, v4
        v_cmp_gt_u32 {s(T4,2)}, 16, v0
        s_and_b64 vcc, vcc, {s(T4,2)}
        v_mul_u32_u24 v3, {HREC}, v3
        v_bfe_u32 v4, v0, 3, 1
        v_mul_u32_u24 v4, {REC}, v4
        v_add3_u32 v3, v3, v4, {s(T1)}
        v_add_u32 v3, {ONEOFF}, v3
        v_cndmask_b32 {v(EA+4)}, v7, v3, vcc''')

def su_vgat(a):
    a.c('V fragment gather offsets inside a key-tile record')
    a('v_and_b32 v1, 31, v0\nv_lshrrev_b32 v2, 5, v0')
    a(f'''v_lshlrev_b32 v3, 4, v1
    v_lshl_add_u32 v3, v2, 8, v3
    v_add_u32 v3, 1024, v3
    v_subrev_u32 v4, 16, v1
    v_lshlrev_b32 v5, 4, v4
    v_lshl_add_u32 v5, v2, 5, v5
    v_add_u32 v5, {VLOFF}, v5
    v_cmp_gt_u32 vcc, 2, v4
    v_add_u32 v6, 64, v5
    v_mov_b32 v7, {OOB:#x}
    v_cndmask_b32 v5, v7, v5, vcc
    v_cndmask_b32 v6, v7, v6, vcc
    v_and_b32 v4, 27, v1
    v_cmp_eq_u32 vcc, 18, v4
    v_mov_b32 v7, {ONEOFF}
    s_nop 0
    v_cndmask_b32 v5, v5, v7, vcc
    v_cndmask_b32 v6, v6, v7, vcc
    v_cmp_gt_u32 vcc, 16, v1
    v_add_u32 v4, 512, v3
    s_nop 0
    v_cndmask_b32 {v(vVf)}, v5, v3, vcc
    v_cndmask_b32 {v(vVf+1)}, v6, v4, vcc''')

def prefetch_a(a):
    if not OPT.get('pf', 1): return
    top = a.new('pf'); isw = a.new('pfw'); nxt = a.new('pfn')
    a(f'''s_sub_u32 {s(T0)}, {s(sLoc)}, 28
    s_lshl_b32 {s(T0)}, {s(T0)}, 3
    s_add_u32 {s(T0)}, {s(T0)}, {s(sWave)}
    v_mul_u32_u24 v1, 1152, v0
    v_mul_u32_u24 v2, 3456, v0
    s_lshr_b32 {s(T4)}, {s(sXcd)}, 1
    s_mul_i32 {s(T4)}, {s(T4)}, {512*1152}
    s_and_b32 {s(T5)}, {s(sXcd)}, 1
    s_mul_i32 {s(T5)}, {s(T5)}, {7*256}''')
    a.label(top)
    a(f'''s_mul_i32 {s(T1)}, {s(T0)}, 2979
    s_lshr_b32 {s(T1)}, {s(T1)}, 16
    s_mul_i32 {s(T2)}, {s(T1)}, 22
    s_sub_u32 {s(T2)}, {s(T0)}, {s(T2)}
    s_cmp_ge_u32 {s(T2)}, 8
    s_cbranch_scc1 {isw}
    s_mul_i32 {s(T2)}, {s(T2)}, {64*1152}
    s_lshl_b32 {s(T1)}, {s(T1)}, 7
    s_add_u32 {s(T2)}, {s(T2)}, {s(T1)}
    s_add_u32 {s(T2)}, {s(T2)}, {s(T4)}
    buffer_load_dword v3, v1, {srd(sAX)}, {s(T2)} offen
    s_branch {nxt}''')
    a.label(isw)
    a(f'''s_sub_u32 {s(T2)}, {s(T2)}, 8
    s_lshl_b32 {s(T2)}, {s(T2)}, 7
    s_mul_i32 {s(T1)}, {s(T1)}, {64*3456}
    s_add_u32 {s(T2)}, {s(T2)}, {s(T1)}
    s_add_u32 {s(T2)}, {s(T2)}, {s(T5)}
    buffer_load_dword v3, v2, {srd(sAW)}, {s(T2)} offen''')
    a.label(nxt)
    a(f's_add_u32 {s(T0)}, {s(T0)}, 32\ns_cmp_lt_u32 {s(T0)}, 198\ns_cbranch_scc1 {top}')

def prefetch_wo(a):
    if not OPT.get('pfo', 0): return
    top = a.new('pfo')
    a(f'''s_sub_u32 {s(T0)}, {s(sLoc)}, 28
    s_lshl_b32 {s(T0)}, {s(T0)}, 2
    s_add_u32 {s(T0)}, {s(T0)}, {s(sW4)}
    s_lshl_b32 {s(T0)}, {s(T0)}, 13
    v_lshlrev_b32 v1, 7, v0''')
    a.label(top)
    a(f'''buffer_load_dword v3, v1, {srd(sAWO)}, {s(T0)} offen
    buffer_load_dword v3, v1, {srd(sBWO)}, {s(T0)} offen
    s_add_u32 {s(T0)}, {s(T0)}, {16*8192}
    s_cmp_lt_u32 {s(T0)}, {576*1152}
    s_cbranch_scc1 {top}''')

def su_acc(a):
    for r in range(40, 72, 2): a(f'v_pk_mov_b32 {v(r,2)}, {v(vZero,2)}, {v(vZero,2)}')
    for d in ACC.values(): mfma(a, d, 40, 44, None)

def su_share(a, regs, put, first=0):
    a(f's_mul_i32 s3, {s(sW4)}, 6656\ns_add_u32 s3, s3, {EAX}\nv_add_u32 v1, s3, {v(v16)}')
    off = first
    for r, n in regs:
        if n == 4: a(f'ds_write_b128 v1, {v(r,4)} offset:{off}' if put else f'ds_read_b128 {v(r,4)}, v1 offset:{off}')
        off += 1024
SH_P = [(XAc, 4), (WAc, 4), (EA, 4), (EA+4, 4), (EA+8, 4)]
SH_L = [(EA, 4), (EA+4, 4), (EA+8, 4), (ES, 4), (ES+4, 4)]

def slot_addr(a):
    for k in range(4): a(f'v_add_u32 {v(XAr+k)}, {s(T6)}, {v(XAc+k)}')
    for w in range(2): a(f'v_add_u32 {v(WAr+w)}, {s(T6)}, {v(WAc+w)}')
    a(f's_add_u32 {s(T6)}, {s(T6)}, 0x8000\ns_and_b32 {s(T6)}, {s(T6)}, 0x1ffff')

def prologue(a, opt):
    a(f's_cmp_ge_u32 s2, 256\ns_cbranch_scc1 L_end')
    ld_srd(a, (sBX, sBW, sWS, sDBG, sAX, sAW))
    if a.diag:
        for k in range(2, 14): a(f's_mov_b32 {s(SSTAMP+k)}, 0')
    if a.diag or opt.get('padto') or opt.get('padA') or opt.get('padB'): a(f's_memrealtime {s(SSTAMP,2)}')
    if opt.get('ipf', 1):
        a.c('workgroups without a gemm tile pull this code towards L2 (one dword per 128-byte line)')
        a(f'''s_cmp_lt_u32 s2, 224
        s_cbranch_scc1 L_noipf
        s_getpc_b64 s[66:67]'''.replace('s[66:67]', 's[98:99]'))
        a.label('L_pc')
        a(f'''v_lshlrev_b32 v1, 7, v0
        v_cmp_gt_u32 vcc, L_end-L_pc, v1
        s_and_saveexec_b64 s[100:101], vcc
        s_cbranch_execz L_ipfx
        global_load_dword v254, v1, s[98:99]''')
        a.label('L_ipfx')
        a('s_mov_b64 exec, s[100:101]')
        a.label('L_noipf')
    a(f'v_lshrrev_b32 v1, 6, v0\nv_and_b32 v0, 63, v0\nv_readfirstlane_b32 {s(sWave)}, v1')
    a(f'''s_and_b32 {s(sXcd)}, s2, 7
    s_lshr_b32 {s(sLoc)}, s2, 3
    s_mul_i32 {s(sRT)}, {s(sLoc)}, 37
    s_lshr_b32 {s(sRT)}, {s(sRT)}, 8
    s_mul_i32 s3, {s(sRT)}, 7
    s_sub_u32 {s(sCT)}, {s(sLoc)}, s3
    s_add_u32 {s(sRot)}, {s(sCT)}, {s(sRT)}
    s_and_b32 s3, {s(sXcd)}, 1
    s_mul_i32 s3, s3, 7
    s_add_u32 {s(sCT)}, {s(sCT)}, s3
    s_lshr_b32 s3, {s(sXcd)}, 1
    s_lshl_b32 s3, s3, 2
    s_add_u32 {s(sRT)}, {s(sRT)}, s3
    s_and_b32 {s(sW4)}, {s(sWave)}, 3''')
    r = opt.get('rot', 0)
    if r == 2:
        a(f's_mul_i32 s3, {s(sRot)}, 86\ns_lshr_b32 s3, s3, 8\ns_mul_i32 s3, s3, 3\ns_sub_u32 {s(sRot)}, {s(sRot)}, s3\ns_mul_i32 {s(sRot)}, {s(sRot)}, 3')
    elif r == 4:
        a(f's_and_b32 {s(sRot)}, {s(sRot)}, 3')
    elif r == 3:
        a(f's_and_b32 {s(sRot)}, {s(sRot)}, 1\ns_lshl_b32 {s(sRot)}, {s(sRot)}, 2')
    su_ids2(a)
    su_loader(a)
    mk_srd(a, (sBX, sBW))
    a(f's_cmp_eq_u32 {s(sImg)}, 0\ns_cbranch_scc1 L_pset')
    vm = VM()
    a(f's_setprio 1\ns_waitcnt lgkmcnt(0)\ns_cmp_ge_u32 {s(sLoc)}, 28\ns_cbranch_scc1 L_lset')
    for j in range(3 if opt.get('sw', 9) < 0 else 2): issue_chunk(a, j); vm.add(j, 8)
    a('s_branch L_lset')
    p_setup(a, opt)
    a('s_branch L_gemm')
    for f in a.early: f()
    a.lock = bool(opt.get('p1'))
    gemm(a, opt)
    a.lock = False
    p_path(a, opt)
    a.label('L_pidle0')
    prefetch_a(a)
    a(f's_waitcnt vmcnt(0) lgkmcnt(0)\ns_barrier\ns_barrier\nds_read_b32 {v(vTok)}, {v(vCnt)} offset:{C_TOK}\ns_branch L_ppath')
    a.label('L_lset')
    a.c('================= waves 4-7: load the B tile =================')
    ld_srd(a, (sPHI, sAWO, sBWO, sOUT))
    mk_srd(a, (sAX, sAW, sPHI, sAWO, sBWO, sOUT, sDBG, sWS))
    su_tab(a)
    a('s_waitcnt lgkmcnt(0)')
    a.stamp(1)
    a(f's_cmp_lg_u32 {s(sIdle)}, 0\ns_cbranch_scc1 L_lidle')
    if opt.get('phij', 3) < 0: a_setup(a, 0); vm.add('phi', 10)
    for j in range(9):
        a(f's_waitcnt vmcnt({vm.after(j)})')
        if opt.get('p1') == 1: a.stamp(3 + j)
        a('s_barrier')
        if opt.get('p1') == 2: a.stamp(3 + j)
        if opt.get('p1') == 2 and j == 0: a.cyc0()
        if opt.get('p1') == 2 and j == 8: a.cyc1()
        sw = opt.get('sw', 9)
        for c in ([j + 2] if j < sw else [j + 2, j + 3] if j == sw else [j + 3]):
            issue_chunk(a, c); vm.add(c, 8)
            if c == 9: token_issue(a); vm.add('tok')
        if j == 0: su_vgat(a)
        if j == 1: su_share(a, SH_P, False)
        if j == 2:
            a('s_waitcnt lgkmcnt(0)')
            for r in range(EA, EA + 12): a(f'v_add_u32 {v(r)}, {AOFF:#x}, {v(r)}')
        if j == opt.get('phij', 3): a_setup(a, 0); vm.add('phi', 10)
        if j in (4, 5, 6): a_setup(a, j - 3)
        if j == 7: assert vm.after('phi') >= 24; a_setup(a, 4)
    a(f's_waitcnt vmcnt({vm.after("tok")})')
    token_check(a)
    a(f'ds_write_b32 {v(vCnt)}, {v(vTok)} offset:{C_TOK}\ns_mov_b32 {s(T6)}, {(9 % 4) * 32768}\ns_waitcnt lgkmcnt(0)')
    a(f's_setprio {opt.get("prio", 1)}')
    a.stamp(2)
    if opt.get('p1'): a.lock = True
    slot_addr(a)
    a(f's_mov_b32 {s(T7)}, 9\ns_mov_b32 {s(T5)}, {8 if opt.get("cs") else 0}\ns_barrier')
    if sw == 9: issue_chunk(a, 11)
    a(f's_cmp_ge_u32 {s(sCT)}, 9\ns_cbranch_scc1 L_gS0\ns_branch L_gN0')
    a.label('L_lidle')
    a.c('four workgroups per group of 32 have no gemm tile')
    prefetch_a(a)
    a('s_waitcnt vmcnt(0)')
    prefetch_wo(a)
    a('s_waitcnt vmcnt(0)')
    su_vgat(a)
    for p in range(4): a_setup(a, p)
    token_issue(a)
    a('s_waitcnt vmcnt(0)')
    a_setup(a, 4)
    token_check(a)
    a(f's_barrier\nds_write_b32 {v(vCnt)}, {v(vTok)} offset:{C_TOK}\ns_setprio {opt.get("prio", 1)}\ns_waitcnt lgkmcnt(0)\ns_barrier\ns_branch L_achain')

def p_setup(a, opt):
    a.label('L_pset')
    a.c('================= waves 0-3: set-up =================')
    su_tab(a); su_gaddr(a)
    a('s_waitcnt lgkmcnt(0)')
    ld_srd(a, (sOUT,))
    mk_srd(a, (sWS, sDBG, sAX, sAW, sOUT))
    su_token(a, 0)
    a(f's_cmp_lg_u32 {s(sIdle)}, 0\ns_cbranch_scc1 L_pidle0')
    a(f's_waitcnt lgkmcnt(0)\ns_cmp_ge_u32 {s(sCT)}, 9\ns_cbranch_scc1 L_epiS')
    su_epi(a, 'N'); su_epi(a, 'N', 1); a('s_waitcnt lgkmcnt(0)'); su_epi(a, 'N', 2)
    a.label('L_epiD')
    def epi_s():
        a.label('L_epiS'); su_epi(a, 'S'); a('s_branch L_epiD')
    a.early.append(epi_s)
    su_share(a, SH_P, True)
    su_token(a, 1)
    a(f's_waitcnt lgkmcnt(0)\ns_mov_b32 {s(T6)}, 0')
    a.stamp(1)
    if a.diag: a('s_mov_b32 s82, 0')

def gemm(a, opt):
    sSlot, sIt, sCnt = T6, T7, T5
    a.label('L_gemm')
    a.c('================= qkv gemm (waves 0-3: B, waves 4-7: A) =================')
    slot_addr(a)
    a(f's_mov_b32 {s(sIt)}, 9\ns_mov_b32 {s(sCnt)}, 0\ns_cmp_ge_u32 {s(sCT)}, 9\ns_barrier\ns_cbranch_scc1 L_gS0')
    def mid():
        lb = a.new('mid')
        a(f's_cmp_lg_u32 {s(sImg)}, 0\ns_cbranch_scc1 {lb}')
        if opt.get('cs'): lds_wait(a, 1, C_G, 4, sl=0)
        else: a('s_barrier')
        issue_chunk(a, 13)
        a.label(lb)
    def loop(o):
        def reads(k):
            F = FS[k]
            rd = lambda w, j: f'ds_read_b64_tr_b16 {v(F+8+4*w+2*j,2)}, {v(WAr+w)} offset:{4096*k+1024*j}'
            rx = lambda tt: f'ds_read_b128 {v(F+4*tt,4)}, {v(XAr+k)} offset:{4096*tt}'
            if opt.get('nord'): return ['s_nop 0'] * 6
            return [rd(0, 0), rd(0, 1), rx(0), rx(1), rd(1, 0), rd(1, 1)]
        def mms(k, first=False):
            m = []
            for w, nm in enumerate('ab'):
                for tt in range(2):
                    x, wf = FS[k]+4*tt, FS[k]+8+4*w
                    c = None if first else ACC[(nm, tt)]
                    m.append(mfma_s(ACC[(nm, tt)], wf, x, c) if o == 'N' else mfma_s(ACC[(nm, tt)], x, wf, c))
            if opt.get('nomm'): m = ['s_nop 0'] * 4
            if opt.get('m16'):
                def two(x, i0):
                    g = re.match(r'\S+ v\[(\d+):\d+\], (\S+), (\S+), ', x); d = int(g.group(1))
                    return '\n'.join(f'v_mfma_f32_16x16x32_bf16 {v(d+4*i,4)}, {g.group(2)}, {g.group(3)}, {v(d+4*i,4)}' for i in (i0, i0+1))
                m = [two(x, 2*(k & 1)) for x in m]
            return m
        def grp(km, kr, wait=None, x1=None, x2=None, first=False, fill=None):
            m = mms(km, first); r = reads(kr)
            if fill is not None:
                def take(n):
                    out = []
                    while fill and (len(out) < n or out[-1].startswith('s_cmp') or out[-1].startswith('s_cselect_b32 s3')): out.append(fill.pop(0))
                    return '\n'.join(out)
                m = [x + '\n' + take(k) for x, k in zip(m, (3, 3, 6, 6))]
            if wait is not None: a(f's_waitcnt lgkmcnt({wait})')
            a(m[0]); a(r[0]); a(r[1]); a(r[2]); a(m[1]); a(r[3]); a(r[4]); a(r[5])
            if x1: x1()
            a(m[2])
            if x2: x2()
            a(m[3])
        a.label(f'L_g{o}0')
        a.c('first chunk: nothing to finish from a previous one')
        for x in reads(0) + reads(1): a(x)
        grp(0, 2, 6, first=True)
        a(f's_branch L_g{o}m')
        a.label(f'L_g{o}')
        if opt.get('p3'): a.lstamp(s(sIt), 16)
        if opt.get('cs'): a(f's_cmp_lg_u32 {s(sCnt)}, 0\ns_cbranch_scc1 L_g{o}c')
        a('s_barrier')
        a.label(f'L_g{o}b')
        if opt.get('p3'): a.lstamp(s(sIt), 32)
        def book():
            w8 = a.new('w8')
            a(f's_cmp_eq_u32 {s(sIt)}, 9\ns_cbranch_scc1 {w8}\ns_waitcnt vmcnt(0)')
            a.label(w8)
            if opt.get('lp0', 1):
                lo = a.new('lo')
                a(f's_cmp_lg_u32 {s(sIt)}, 2\ns_cbranch_scc1 {lo}\ns_setprio 0')
                a.label(lo)
            a(f's_sub_u32 {s(sIt)}, {s(sIt)}, 1\ns_cmp_lg_u32 {s(sIt)}, 0')
        grp(2, 0); grp(3, 1); grp(0, 2, 6)
        a.label(f'L_g{o}m')
        a('s_waitcnt lgkmcnt(6)')
        a.label(f'L_g{o}n')
        grp(1, 3, None, lambda: slot_addr(a), book)
        a(f's_waitcnt vmcnt(8) lgkmcnt(0)\ns_cbranch_scc1 L_g{o}')
        if opt.get('cs'):
            def cs_block(o=o):
                a.label(f'L_g{o}c')
                lds_arrive(a, C_G)
                a(f's_sub_u32 {s(sCnt)}, {s(sCnt)}, 4\ns_sub_u32 {s(T1)}, 8, {s(sCnt)}')
                lds_wait(a, 1, C_G, s(T1), sl=0)
                a(f's_branch L_g{o}b')
            a.late.append(cs_block)
        m = mms(2) + mms(3)
        a(f's_cmp_lg_u32 {s(sImg)}, 0\ns_cbranch_scc1 L_gf{o}\ns_barrier\ns_setprio 2\nds_read_b32 {v(vTok)}, {v(vCnt)} offset:{C_TOK}')
        issue_chunk(a, 12)
        a.label(f'L_gf{o}')
        for i in (0, 1, 4, 5, 2, 3, 6, 7): a(m[i])
        if opt.get('lp0', 1):
            lo = a.new('lo')
            a(f's_cmp_eq_u32 {s(sImg)}, 0\ns_cbranch_scc1 {lo}\ns_setprio 1')
            a.label(lo)
        a.stamp(3)
    def scale(nm, sc, n):
        lb = a.new('nosc')
        a(f's_cmp_eq_u32 {s(sDoSc)}, 0\ns_cbranch_scc1 {lb}')
        for tt in range(2):
            for i in range(16): a(f'v_mul_f32 {v(ACC[(nm, tt)]+i)}, {v(sc + i//n)}, {v(ACC[(nm, tt)]+i)}')
        a.label(lb)
    def epi_main(u):
        nm = 'ab'[u]
        scale(nm, ES + 2*u, 8)
        for tt in range(2):
            for qp in range(2):
                r = ACC[(nm, tt)] + 8*qp
                cvt8(a, r, r)
                a(f'buffer_store_dwordx4 {v(r,4)}, {v(EA + 4*u + 2*qp + tt)}, {srd(sWS)}, 0 offen sc1')
    def epi_misc():
        scale('b', ES + 2, 4)
        for tt in range(2):
            for h in range(2):
                r = ACC[('b', tt)] + 8*h
                cvt8(a, r, r)
                for q in range(2): a(f'buffer_store_dwordx2 {v(r+2*q,2)}, {v(EA + 4 + 2*(2*h+q) + tt)}, {srd(sWS)}, 0 offen sc1')
    def epi_v(u):
        nm = 'ab'[u]
        for tt in range(2):
            for f in range(2):
                r = ACC[(nm, tt)] + 8*f
                cvt8(a, r, r)
                a(f'buffer_store_dwordx4 {v(r,4)}, {v(EA + 2*u + f)}, {srd(sWS)}, 0 offen offset:{REC*tt} sc1')
    loop('N')
    a.nop(6); epi_main(0); mid()
    a(f's_cmp_lg_u32 {s(sMG)}, 0\ns_cbranch_scc1 L_emisc')
    epi_main(1); a('s_branch L_epi_done')
    a.label('L_emisc')
    epi_misc(); a('s_branch L_epi_done')
    loop('S')
    for i in range(4): a(f'v_mov_b32 {v(4+i)}, 0x3f803f80')
    a.nop(4); epi_v(0); mid(); epi_v(1)
    a(f's_cmp_lg_u32 {s(sMG)}, 0\ns_cbranch_scc1 L_epi_done\nbuffer_store_dwordx4 v[4:7], {v(EA+4)}, {srd(sWS)}, 0 offen sc1')
    a.label('L_epi_done')
    a.stamp(4)
    a(f's_cmp_lg_u32 {s(sImg)}, 0\ns_cbranch_scc1 L_achain')
    a.label('L_ppath')

def op_addr(a, X, vt, smain, sextra):
    t0, t1, t2, t3 = vt, vt+1, vt+2, vt+3
    a(f'''v_bfe_u32 {v(t0)}, v0, 2, 2
    v_lshrrev_b32 {v(t1)}, 5, v0
    v_and_b32 {v(t2)}, 3, v0
    v_bfe_u32 {v(t3)}, v0, 4, 1
    v_lshl_add_u32 {v(t2)}, {v(t3)}, 2, {v(t2)}
    v_lshlrev_b32 {v(t2)}, 3, {v(t2)}
    v_lshl_add_u32 {v(t0)}, {v(t1)}, 2, {v(t0)}
    v_lshl_add_u32 {v(X+4)}, {v(t0)}, 6, {v(t2)}
    v_add_u32 {v(X+4)}, {s(sextra)}, {v(X+4)}
    v_bfe_u32 {v(t3)}, v0, 3, 1
    v_lshl_add_u32 {v(t2)}, {v(t3)}, 6, {v(t2)}
    v_lshl_add_u32 {v(X)}, {v(t0)}, 7, {v(t2)}
    v_add_u32 {v(X)}, {s(smain)}, {v(X)}
    v_xor_b32 {v(X+1)}, 64, {v(X)}
    v_mul_u32_u24 {v(t1)}, 68, {v(t1)}
    v_add_u32 {v(t1)}, 16, {v(t1)}
    v_lshl_add_u32 {v(X+2)}, {v(t1)}, 7, {v(X)}
    v_lshl_add_u32 {v(X+3)}, {v(t1)}, 7, {v(X+1)}
    v_lshl_add_u32 {v(X+5)}, {v(t1)}, 6, {v(X+4)}''')

def w_row(st, j): return 18*st + 8*j + (2 if st & 1 else 0) if st < 8 else 36*j
def op_w_reads(W, X, st, off=0):
    return [f'ds_read_b64_tr_b16 {v(W + 8*st + 4*T + 2*j, 2)}, {v(X + T + (2 if st == 8 else 0))} offset:{w_row(st, j)*128 + off}' for T in range(2) for j in range(2)]
def op_e_reads(W, X, st):
    return [f'ds_read_b64_tr_b16 {v(W + 72 + 4*st + 2*j, 2)}, {v(X + 4 + (st == 8))} offset:{w_row(st, j)*64}' for j in range(2)]
def op_read_w(a, W, X, sflag):
    for st in range(9): a('\n'.join(op_w_reads(W, X, st)))
    lb = a.new('ne')
    a(f's_cmp_eq_u32 {s(sflag)}, 0\ns_cbranch_scc1 {lb}')
    for st in range(9): a('\n'.join(op_e_reads(W, X, st)))
    a.label(lb)

def op_load_o(a, O, vo16, vol, sM, sM2, sL, thr=False):
    for i in range(8):
        a(f'buffer_load_dwordx4 {v(O+4*i,4)}, {v(vo16)}, {srd(sWS)}, {s(sM if i < 4 else sM2)} offen offset:{1024*(i&3)} sc1')
        if thr and i % 4 == 3: a('s_waitcnt vmcnt(0)')
    for i in range(4):
        a(f'buffer_load_dword {v(O+32+i)}, {v(vol)}, {srd(sWS)}, {s(sL)} offen offset:{128*i} sc1')

def op_mfma(a, AC, W, O, first):
    for st in range(9):
        a(f's_waitcnt vmcnt({11 - st if st < 8 else 0})')
        for T in range(3):
            mfma(a, AC + 16*T, W + 12*st + 4*T, O + 4*st, None if (first and st == 0) else AC + 16*T)

sEX, sWE = sBX, sXB
def issue_grp(a, kind, x, y, slot, who):
    skip = a.new('r8')
    if kind == 'm':
        sr, vo, rows = x[0], vWO, 8
        a(f's_add_u32 {s(sFree)}, {s(sWB)}, {(144*x[1] + 72*y)*1152}'); slot += EB*y
    else:
        sr, vo, rows = sEX, vWO + 1, 16
        a(f's_bitcmp1_b32 {s(sOC)}, 2\ns_mov_b32 {s(sFree)}, {144*x*1152}\ns_cselect_b32 {s(sFree)}, {144*y*1152}, {s(sFree)}\ns_add_u32 {s(sFree)}, {s(sFree)}, {s(sWE)}')
    a(f'''s_lshl_b32 s3, {s(sW4)}, 10
    s_add_u32 m0, s3, {slot}
    s_nop 0
    buffer_load_dwordx4 {v(vo)}, {srd(sr)}, {s(sFree)} offen lds
    s_add_u32 m0, s3, {slot + 4096}
    s_add_u32 {s(sFree)}, {s(sFree)}, {4*rows*1152}
    buffer_load_dwordx4 {v(vo)}, {srd(sr)}, {s(sFree)} offen lds
    s_cmp_lg_u32 {s(sW4)}, {who}
    s_cbranch_scc1 {skip}
    s_mov_b32 m0, {slot + 8192}
    s_add_u32 {s(sFree)}, {s(sFree)}, {(4 - who)*rows*1152}
    buffer_load_dwordx4 {v(vo)}, {srd(sr)}, {s(sFree)} offen lds''')
    a.label(skip)

def p_path(a, opt):
    vK, vKL, vV0, vV1 = 8, 10, 12, 14
    Qr, QLr, M = 16, 32, 36
    Kb, KLb, Vb, Sb, Ob = 40, 56, 64, 96, 160
    sCur, sNext, sLo, sHi, sN = T2, T3, T4, T5, T6
    sQm, sQl, sChk = 56, 57, 58
    sLo2, sHi2, sCur2 = 60, 61, 62
    a.c('================= waves 0-3: load the rest of the A tile, publish B =================')
    vm = VM()
    vm.add(12, 8); vm.add('sa', 4); vm.add(13, 8); vm.add('sb', 4)
    su_vgat(a)
    kl_const(a, T0, sH)
    a(f'''v_and_b32 v1, 31, v0
    v_mov_b32 {v(vK)}, {v(v16)}
    v_lshl_add_u32 {v(vKL)}, v1, 3, {s(T0)}
    v_mov_b32 {v(vV0)}, {v(vVf)}
    v_mov_b32 {v(vV1)}, {v(vVf+1)}''')
    for r in (vK, vKL, vV0, vV1): a(f'v_add_u32 {v(r+1)}, {2*REC}, {v(r)}')
    a.c('flags this wave waits for: lanes 0-15 k, 16-31 v (8 row tiles x first/last column tile), 32.. q')
    a(f'''v_lshrrev_b32 v2, 4, v0
    v_add_u32 v2, 1, v2
    v_cmp_gt_u32 vcc, 32, v0
    v_bfe_u32 v3, v0, 3, 1
    v_and_b32 v4, 1, v0
    v_cndmask_b32 v2, 0, v2, vcc
    v_cndmask_b32 v3, v4, v3, vcc
    s_lshl_b32 {s(T2)}, {s(sMG)}, 3
    v_and_b32 v4, 7, v0
    v_add_u32 v4, {s(T2)}, v4
    s_lshl_b32 {s(T3)}, {s(sQB)}, 1
    s_add_u32 {s(T3)}, {s(T3)}, {s(sTH)}
    v_mov_b32 v5, {s(T3)}
    v_cndmask_b32 v4, v5, v4, vcc''')
    producer_ct(a, 5, 2, 3, sH, 6)
    a(f'v_lshl_add_u32 v5, v5, 4, v4\nv_lshlrev_b32 v5, 7, v5\nv_add_u32 {v(vPoll)}, {FL1:#x}, v5\nv_lshlrev_b32 v7, 3, v0')
    for r in (QLr+1, QLr+3, KLb+1, KLb+3, KLb+5, KLb+7): a(f'v_mov_b32 {v(r)}, 0')
    def tail_setup():
        extra_flags(a); final_setup(a)
        a(f's_mul_i32 {s(T0)}, {s(sMG)}, {MB}\ns_add_u32 {s(T0)}, {s(T0)}, {M_C}\ns_mul_i32 {s(T1)}, {s(sMG)}, {EB}\ns_add_u32 {s(T1)}, {s(T1)}, {X_A}')
        op_addr(a, vWb, 1, T0, T1)
    a(f'''s_lshl_b32 {s(T0)}, {s(sH)}, 6
    s_lshl_b32 {s(T1)}, {s(sMG)}, 5
    s_add_u32 {s(T0)}, {s(T0)}, {s(T1)}
    s_mul_i32 {s(sLo)}, {s(T0)}, {REC}
    s_add_u32 {s(sLo)}, {s(sLo)}, {KV:#x}
    s_add_u32 {s(sHi)}, {s(sLo)}, {32*REC}
    s_lshl_b32 {s(T0)}, {s(sQB)}, 1
    s_add_u32 {s(T0)}, {s(T0)}, {s(sTH)}
    s_lshl_b32 {s(T1)}, {s(sH)}, 4
    s_add_u32 {s(T0)}, {s(T0)}, {s(T1)}
    s_lshl_b32 {s(sQm)}, {s(T0)}, 12
    s_lshr_b32 {s(T1)}, {s(sH)}, 1
    s_lshl_b32 {s(T1)}, {s(T1)}, 4
    s_add_u32 {s(T1)}, {s(T1)}, {s(T3)}
    s_lshl_b32 {s(sQl)}, {s(T1)}, 10
    s_and_b32 {s(T1)}, {s(sH)}, 1
    s_lshl_b32 {s(T1)}, {s(T1)}, 2
    s_add_u32 {s(sQl)}, {s(sQl)}, {s(T1)}
    s_add_u32 {s(sQl)}, {s(sQl)}, {QL:#x}''')
    flag_addr(a, T1, sCT, sRT, 4, FL1)
    a('s_waitcnt lgkmcnt(0)')
    a.c('================= waves 0-3: attention =================')
    def kv_loads(b, sreg):
        o = REC * (b & 1); u = b >> 1
        return [f'buffer_load_dwordx4 {v(Kb+4*b,4)}, {v(vK+u)}, {srd(sWS)}, {s(sreg)} offen offset:{o} sc1',
                f'buffer_load_dword {v(KLb+2*b)}, {v(vKL+u)}, {srd(sWS)}, {s(sreg)} offen offset:{o} sc1',
                f'buffer_load_dwordx4 {v(Vb+8*b,4)}, {v(vV0+u)}, {srd(sWS)}, {s(sreg)} offen offset:{o} sc1',
                f'buffer_load_dwordx4 {v(Vb+8*b+4,4)}, {v(vV1+u)}, {srd(sWS)}, {s(sreg)} offen offset:{o} sc1']
    def start_groups():
        a(f'''s_mul_i32 {s(sCur)}, {s(sQB)}, {4*REC}
        s_add_u32 {s(sCur)}, {s(sCur)}, {s(sLo)}
        s_add_u32 {s(sNext)}, {s(sCur)}, {4*REC}
        s_cmp_eq_u32 {s(sNext)}, {s(sHi)}
        s_cselect_b32 {s(sNext)}, {s(sLo)}, {s(sNext)}
        s_mov_b32 {s(sN)}, 8''')
    adv_groups = f'''s_mov_b32 {s(sCur)}, {s(sNext)}
        s_add_u32 {s(sNext)}, {s(sNext)}, {4*REC}
        s_cmp_eq_u32 {s(sNext)}, {s(sHi)}
        s_cselect_b32 {s(sNext)}, {s(sLo)}, {s(sNext)}
        s_cmp_eq_u32 {s(sN)}, 2
        s_cselect_b32 {s(sNext)}, {OOB:#x}, {s(sNext)}'''
    def qk(N, kb, qp):
        return (mfma_s(N, KLb+2*kb, QLr+2*qp, None, '2b'), mfma_s(N, Kb+4*kb, Qr+8*qp, N), mfma_s(N+16, Kb+4*kb, Qr+8*qp+4, N+16))
    def step(qp, kb, ins, sub):
        S = Sb + 32*qp; N = Sb + 32*(1-qp)
        nkb = kb if qp == 0 else (kb+1) % 4
        pkb = (kb-1) % 4 if qp == 0 else kb
        QLm, Q0m, Q1m = qk(N, nkb, 1-qp)
        def E(x, y):
            for i in range(x, y):
                if sub: a(f'v_sub_f32 {v(S+i)}, {v(S+i)}, {v(M + 2*qp + i//16)}')
                a(f'v_exp_f32 {v(S+i)}, {v(S+i)}')
        def C(x, y):
            for j in range(x, y):
                b = S + 16*(j//8); k = j % 8
                if opt.get('perm'): a(f'v_perm_b32 {v(b + (k % 4) + 8*(k//4))}, {v(b+2*k+1)}, {v(b+2*k)}, {s(59)}')
                else: a(f'v_cvt_pk_bf16_f32 {v(b + (k % 4) + 8*(k//4))}, {v(b+2*k)}, {v(b+2*k+1)}')
        def PV(t, f):
            o = Ob + 32*qp + 16*t
            mfma(a, o, Vb + 8*kb + 4*f, S + 16*t + 8*f, o)
        def I(k):
            if k in ins: a(ins[k])
        E(0, 2)
        o = Ob + 32*(1-qp) + 16
        mfma(a, o, Vb + 8*pkb + 4, N + 24, o); I('p')
        if opt.get('x8'):
            L0 = mfma_s(N, KLb+2*nkb, QLr+2*(1-qp), None, '8'); L1 = mfma_s(N+16, KLb+2*nkb, QLr+2*(1-qp), None, '8')
            E(2, 5); a(L0); I('q'); E(5, 9); a(L1); C(0, 4); E(9, 11); PV(0, 0); I('m0'); E(11, 17); C(4, 6); a(Q0m); I('m1')
        elif opt.get('noql'):
            Q0m = mfma_s(N, Kb+4*nkb, Qr+8*(1-qp), None); Q1m = mfma_s(N+16, Kb+4*nkb, Qr+8*(1-qp)+4, None)
            E(2, 5); I('q'); E(5, 9); C(0, 4); E(9, 11); PV(0, 0); I('m0'); E(11, 17); C(4, 6); a(Q0m); I('m1')
        else:
            E(2, 5); a(QLm); I('q'); E(5, 9); C(0, 4); E(9, 11); PV(0, 0); I('m0'); E(11, 17); C(4, 6); a(Q0m); I('m1')
        C(6, 8); E(17, 19); PV(0, 1); I('m2'); E(19, 25); C(8, 12); a(Q1m); I('m3'); E(25, 28); PV(1, 0); I('m4'); E(28, 32); C(12, 16)
    def attn_init_a():
        for r in range(Ob+16, Ob+64): a(f'v_mov_b32 {v(r)}, 0')
        for r in range(Vb+28, Vb+32): a(f'v_mov_b32 {v(r)}, 0')
    def attn_init_b():
        for r in range(Ob, Ob+16): a(f'v_mov_b32 {v(r)}, 0')
        for r in range(Sb+56, Sb+60): a(f'v_mov_b32 {v(r)}, 0')
    def attn_init(): attn_init_a(); attn_init_b()
    def attn_loop(name, sub):
        a(f's_waitcnt vmcnt({12 if opt.get("deep") else 8})')
        m = qk(Sb, 0, 0); a(m[0]); a.nop(18); a(m[1]); a(m[2]); a.nop(10); a('s_setprio 0')
        if opt.get('padA'):
            a.label('L_padA')
            a(f's_memrealtime s[94:95]\ns_waitcnt lgkmcnt(0)\ns_sub_u32 s94, s94, s80\ns_cmp_lt_u32 s94, {opt["padA"]}\ns_cbranch_scc1 L_padA')
        if not sub: a.stamp(7); a.cyc0()
        a('.p2align 6')
        a.label(name)
        for t in range(4):
            ld = kv_loads((t+3) % 4, sCur if t == 0 else sNext)
            lp = opt.get('ldp', 0)
            if opt.get('xl') == 1 and t & 1: ld = [ld[0], '', ld[2], ld[3]]
            if opt.get('xl') == 2: ld = ['', '', '', '']
            if opt.get('xl') == 3: ld = [x.replace(' sc1', '') for x in ld]
            J = '\n'.join
            ins0, ins = [({'q': ld[0], 'm0': ld[1], 'm1': ld[2], 'm2': ld[3]}, {}),
                         ({'q': J(ld)}, {}),
                         ({'q': J(ld[:2]), 'm1': J(ld[2:])}, {}),
                         ({'q': J(ld[:2])}, {'q': J(ld[2:])}),
                         ({'q': ld[0], 'm1': ld[1]}, {'q': ld[2], 'm3': ld[3]}),
                         ({'m0': ld[0], 'm2': ld[1], 'm4': ld[2]}, {'m2': ld[3]})][lp]
            if opt.get('deep'):
                ins0 = {'q': J(ld[2:]) + '\ns_waitcnt vmcnt(12)'}
                ins = {'q': J(kv_loads(t, sNext)[:2])}
            step(0, t, ins0, sub)
            ins['p'] = f's_waitcnt vmcnt({10 if opt.get("deep") else 8 - sum(len(x.split(chr(10))) for x in ins.values())})'
            if t == 3:
                ins['m3'] = ins.get('m3', '') + '\n' + adv_groups
                ins['m4'] = f's_sub_u32 {s(sN)}, {s(sN)}, 1\ns_cmp_lg_u32 {s(sN)}, 0'
            step(1, t, ins, sub)
        if opt.get('p5'):
            a(f's_memtime s[94:95]\ns_waitcnt lgkmcnt(0)\ns_mov_b32 m0, {s(sN)}\ns_sub_u32 s94, s94, s93\nv_writelane_b32 v243, s94, m0\ns_cmp_lg_u32 {s(sN)}, 0')
        a(f's_cbranch_scc1 {name}')
        a.nop(1)
        mfma(a, Ob + 48, Vb + 28, Sb + 56, Ob + 48)
    def first_loads():
        for t in range(4): a(f'buffer_load_dwordx4 {v(Qr+4*t,4)}, {v(v16)}, {srd(sWS)}, {s(sQm)} offen offset:{1024*t} sc1')
        for j in range(2): a(f'buffer_load_dword {v(QLr+2*j)}, v7, {srd(sWS)}, {s(sQl)} offen offset:{512*j} sc1')
        for b in range(3):
            for x in kv_loads(b, sCur): a(x)
        if opt.get('deep'):
            for x in kv_loads(3, sCur)[:2]: a(x)
    a(f'v_readfirstlane_b32 {s(sTok)}, {v(vTok)}\ns_cmp_lg_u32 {s(sIdle)}, 0\ns_cbranch_scc1 L_pidle')
    if opt.get('cs'): lds_wait(a, 2, C_G, 8, sl=0)
    else: a('s_barrier')
    issue_chunk(a, 14); vm.add(14, 8)
    start_groups(); attn_init_a()
    for j in range(12, 16):
        sig = opt.get('sig', 13)
        a(f's_waitcnt vmcnt({min(vm.after(j), vm.after("sb")) if j == sig else vm.after(j)})')
        if j == sig:
            last_signals(a, 2, C_F1, 4, T1)
            a.stamp(5)
        a('s_barrier')
        if j == 14: a(f'buffer_load_dword v2, {v(vPoll)}, {srd(sWS)}, 0 offen sc1'); vm.add('fl')
        if j + 3 <= 17: issue_chunk(a, j + 3); vm.add(j + 3, 8)
        if j == sig: attn_init_b()
        if j == 13: tail_setup()
    a(f's_waitcnt vmcnt(8)\nv_cmp_ne_u32 vcc, {s(sTok)}, v2\ns_cbranch_vccnz L_late')
    first_loads()
    a(f's_barrier\ns_waitcnt vmcnt({20 if opt.get("deep") else 18})\ns_barrier\ns_branch L_go')
    a.label('L_late')
    a('s_barrier\ns_waitcnt vmcnt(0)\ns_barrier')
    if a.diag: a('s_mov_b32 s82, -1')
    a('s_branch L_poll')
    a.label('L_pidle')
    start_groups(); attn_init(); tail_setup()
    a.label('L_poll')
    poll_flags(a, vPoll, 2)
    first_loads()
    a.label('L_go')
    a('s_mov_b32 s59, 0x07060302')
    a.stamp(6)
    attn_loop('L_attn', False)
    a.cyc1()
    if opt.get('padB'):
        a.label('L_padB')
        a(f's_memrealtime s[94:95]\ns_waitcnt lgkmcnt(0)\ns_sub_u32 s94, s94, s80\ns_cmp_lt_u32 s94, {opt["padB"]}\ns_cbranch_scc1 L_padB')
    a.stamp(8)
    a.nopk = bool(opt.get('nopk', 1))
    a(f'''s_setprio 2
    s_mul_i32 {s(T0)}, {s(sWave)}, 6144
    v_add_u32 v1, {s(T0)}, {v(v16)}
    s_xor_b32 {s(T0)}, {s(sWave)}, 2
    s_mul_i32 {s(T0)}, {s(T0)}, 6144
    v_add_u32 v6, {s(T0)}, {v(v16)}
    s_lshl_b32 {s(T0)}, {s(sQB)}, 3
    s_lshl_b32 {s(T1)}, {s(sTH)}, 2
    s_add_u32 {s(T0)}, {s(T0)}, {s(T1)}
    s_lshl_b32 {s(T1)}, {s(sMG)}, 1
    s_add_u32 {s(T0)}, {s(T0)}, {s(T1)}
    s_cmp_eq_u32 {s(sMG)}, 0
    s_cbranch_scc1 L_red0''')
    def red_write(o0):
        for t in range(2):
            o = o0 + 16*t
            a(f'ds_write_b128 v1, {v(o,4)} offset:{3072*t}\nds_write_b128 v1, {v(o+4,4)} offset:{3072*t+1024}\nds_write_b96 v1, {v(o+8,3)} offset:{3072*t+2048}')
    a.c('exchange partial sums with the wave that did the other half of the keys; keep query pair kh in Ob..Ob+31')
    red_write(Ob)
    for t in range(2):
        for i in range(0, 12, 2): a(f'v_pk_mov_b32 {v(Ob+16*t+i,2)}, {v(Ob+32+16*t+i,2)}, {v(Ob+32+16*t+i,2)} op_sel:[0,1]')
    a('s_branch L_red1')
    a.label('L_red0')
    red_write(Ob + 32)
    a.label('L_red1')
    a(f's_lshr_b32 {s(T6)}, {s(T0)}, 1')
    flag_addr(a, T1, T6, sH, 5, FL4)
    a.c('hint for the consumers that this wave\'s rows are about to be written; they check the data itself against the marker')
    a(f'v_mov_b32 v2, {s(T1)}\nv_mov_b32 v3, {s(sTok)}\ns_mov_b64 exec, 1\nbuffer_store_dword v3, v2, {srd(sWS)}, 0 offen sc1\ns_mov_b64 exec, -1')
    o_addr(a, sH, OBM, OBL)
    a(f's_mov_b32 {s(T0)}, {f2u(2.0**-64):#x}\ns_mov_b32 {s(T6)}, {f2u(2.0**64):#x}\ns_mov_b32 {s(T7)}, {f2u(2.0**120):#x}')
    if opt.get('p4'): a.stamp(3)
    a('s_waitcnt vmcnt(1) lgkmcnt(0)')
    if opt.get('p4'): a.stamp(4)
    a('s_barrier')
    if opt.get('p4'): a.stamp(5)
    for part in range(3):
        for t in range(2):
            o = Ob + 32 + 16*t
            a([f'ds_read_b96 {v(o+8,3)}, v6 offset:{3072*t+2048}', f'ds_read_b128 {v(o,4)}, v6 offset:{3072*t}', f'ds_read_b128 {v(o+4,4)}, v6 offset:{3072*t+1024}'][part])
    O2 = [Ob, Ob + 16]; P2 = [Ob + 32, Ob + 48]
    a.c('the softmax above used 0 in place of the row max: safe only while the sums stay finite and well away from 0')
    a('s_waitcnt lgkmcnt(4)')
    for t in range(2): a(f'v_add_f32 {v(O2[t]+10)}, {v(O2[t]+10)}, {v(P2[t]+10)}')
    for t in range(2): a(f'v_pk_add_f32 {v(O2[t]+8,2)}, {v(O2[t]+8,2)}, {v(P2[t]+8,2)}')
    a(f'''v_min_f32 v2, {v(O2[0]+10)}, {v(O2[1]+10)}
    v_add_f32 v3, {v(O2[0]+10)}, {v(O2[1]+10)}
    v_cmp_nle_f32 {s(sChk,2)}, {s(T0)}, v2
    v_cmp_nge_f32 vcc, {s(T6)}, v3
    s_waitcnt lgkmcnt(2)''')
    for i in (0, 2):
        for t in range(2): a(f'v_pk_add_f32 {v(O2[t]+i,2)}, {v(O2[t]+i,2)}, {v(P2[t]+i,2)}')
    a(f's_or_b64 {s(sChk,2)}, {s(sChk,2)}, vcc\ns_waitcnt lgkmcnt(0)')
    for i in (4, 6):
        for t in range(2): a(f'v_pk_add_f32 {v(O2[t]+i,2)}, {v(O2[t]+i,2)}, {v(P2[t]+i,2)}')
    a(f'''v_pk_add_f32 v[2:3], {v(O2[0],2)}, {v(O2[1],2)}
    v_pk_add_f32 v[4:5], {v(O2[0]+2,2)}, {v(O2[1]+2,2)}
    v_pk_add_f32 v[8:9], {v(O2[0]+4,2)}, {v(O2[1]+4,2)}
    v_pk_add_f32 v[10:11], {v(O2[0]+6,2)}, {v(O2[1]+6,2)}
    v_pk_add_f32 v[12:13], {v(O2[0]+8,2)}, {v(O2[1]+8,2)}
    v_pk_add_f32 v[2:3], v[2:3], v[4:5]
    v_pk_add_f32 v[8:9], v[8:9], v[10:11]
    v_pk_add_f32 v[2:3], v[2:3], v[12:13]
    v_pk_add_f32 v[2:3], v[2:3], v[8:9]
    v_add_f32 v2, v2, v3
    v_cmp_ngt_f32 vcc, {s(T7)}, abs(v2)
    s_or_b64 {s(sChk,2)}, {s(sChk,2)}, vcc
    s_cbranch_scc1 L_fallback''')
    a.label('L_norm')
    o_publish(a, O2, P2, False)
    a.stamp(9)
    if opt.get('p4'): a.stamp(2)
    flag_ld(a)
    final_state(a)
    op_read_w(a, FW, vWb, sXb)
    a('s_setprio 0')
    a('s_branch L_final')

    a.nopk = False
    a.label('L_fallback')
    a.c('the stand-in was unsafe for one of this wave\'s rows: redo its two query tiles over all keys with the true row max')
    vK2, vKL2 = 2, 3
    a(f'v_mov_b32 v8, {v(vWr)}\nv_mov_b32 v9, {v(vRd)}')
    su_vgat(a)
    a(f'v_mov_b32 v10, {v(vVf)}\nv_mov_b32 v11, {v(vVf+1)}\nv_mov_b32 {v(vWr)}, v8\nv_mov_b32 {v(vRd)}, v9')
    kl_const(a, sCur2, sH)
    a(f'''v_and_b32 v3, 31, v0
    v_lshl_add_u32 v3, v3, 3, {s(sCur2)}
    s_mul_i32 {s(sLo2)}, {s(sH)}, {HREC}
    s_add_u32 {s(sLo2)}, {s(sLo2)}, {KV:#x}
    s_add_u32 {s(sHi2)}, {s(sLo2)}, {HREC}
    s_cmp_eq_u32 {s(sMG)}, 0
    s_cbranch_scc1 L_fb0''')
    for i in range(8): a(f'v_mov_b32 {v(Qr+i)}, {v(Qr+8+i)}')
    a(f'v_mov_b32 {v(QLr)}, {v(QLr+2)}')
    a.label('L_fb0')
    for t in range(2): a(f'v_mov_b32 {v(M+t)}, 0xff800000')
    for r in range(Ob, Ob + 32): a(f'v_mov_b32 {v(r)}, 0')
    for ps in range(2):
        a(f's_mov_b32 {s(sCur2)}, {s(sLo2)}')
        a.label(f'L_fbloop{ps}')
        a(f'buffer_load_dwordx4 {v(Kb,4)}, {v(v16)}, {srd(sWS)}, {s(sCur2)} offen sc1\nbuffer_load_dword {v(KLb)}, v3, {srd(sWS)}, {s(sCur2)} offen sc1')
        if ps:
            for f in range(2): a(f'buffer_load_dwordx4 {v(Vb+4*f,4)}, {v(10+f)}, {srd(sWS)}, {s(sCur2)} offen sc1')
        a('s_waitcnt vmcnt(0)')
        m = qk(Sb, 0, 0); a(m[0]); a.nop(18); a(m[1]); a(m[2]); a.nop(12)
        if ps == 0:
            for t in range(2):
                for i in range(0, 16, 2): a(f'v_max3_f32 {v(M+t)}, {v(Sb+16*t+i)}, {v(Sb+16*t+i+1)}, {v(M+t)}')
        else:
            for i in range(32): a(f'v_sub_f32 {v(Sb+i)}, {v(Sb+i)}, {v(M + i//16)}')
            for i in range(32): a(f'v_exp_f32 {v(Sb+i)}, {v(Sb+i)}')
            for q in range(4): cvt8(a, Sb + 8*q, Sb + 8*q)
            a.nop(1)
            for t in range(2):
                for f in range(2): mfma(a, Ob + 16*t, Vb + 4*f, Sb + 16*t + 8*f, Ob + 16*t)
        a(f's_add_u32 {s(sCur2)}, {s(sCur2)}, {REC}\ns_cmp_lg_u32 {s(sCur2)}, {s(sHi2)}\ns_cbranch_scc1 L_fbloop{ps}')
        if ps == 0:
            for t in range(2): a(f'v_mov_b32 {v(Sb+t)}, {v(M+t)}')
            a.nop(2)
            for t in range(2): a(f'v_permlane32_swap_b32 {v(Sb+t)}, {v(M+t)}')
            a.nop(1)
            for t in range(2): a(f'v_max_f32 {v(M+t)}, {v(M+t)}, {v(Sb+t)}')
    a.nop(12)
    a('s_branch L_norm')

def o_addr(a, shead, M_, L_):
    a(f'''s_lshl_b32 {s(T0)}, {s(T0)}, 5
    s_add_u32 {s(T0)}, {s(T0)}, {s(shead)}
    s_lshl_b32 {s(T2)}, {s(T0)}, 10
    s_add_u32 {s(T2)}, {s(T2)}, {M_:#x}
    s_add_u32 {s(T3)}, {s(T2)}, 0x8000
    s_lshl_b32 {s(T4)}, {s(T0)}, 7
    s_add_u32 {s(T4)}, {s(T4)}, {L_:#x}
    s_add_u32 {s(T5)}, {s(T4)}, 0x1000''')

def o_publish(a, O, P, eps):
    for o in O:
        if eps: a(f'v_add_f32 {v(o+10)}, {f2u(1e-6):#x}, {v(o+10)}')
    for o in O: a(f'v_rcp_f32 {v(o+10)}, {v(o+10)}')
    for t in range(2):
        o, p = O[t], P[t]
        if t == 0: a('s_nop 0')
        for i in range(0, 10, 2): a(f'v_pk_mul_f32 {v(o+i,2)}, {v(o+i,2)}, {v(o+10,2)} op_sel_hi:[1,0]')
        cvt8(a, o, p)
        if not eps:
            for i in range(4): a(f'v_min_u32 {v(p+i)}, -2, {v(p+i)}')
        a(f'buffer_store_dwordx4 {v(p,4)}, {v(v16)}, {srd(sWS)}, {s(T2+t)} offen sc1')
        a(f'v_cvt_pk_bf16_f32 {v(p+4)}, {v(o+8)}, {v(o+9)}')
        if not eps: a(f'v_min_u32 {v(p+4)}, -2, {v(p+4)}')
    a('s_mov_b32 exec_hi, 0')
    for t in range(2): a(f'buffer_store_dword {v(P[t]+4)}, {v(vQL)}, {srd(sWS)}, {s(T4+t)} offen sc1')
    a('s_mov_b32 exec_hi, -1')

FW, FO, FA = 16, 124, 160
vFlg, vFol, vWr, vRd, vOut = 250, 251, 252, 253, 255
ACA = [212, 228, 196]
QS = 1088; WSTR = 8*QS; ARED = M_A; EXR = X_A; BRED = M_C
sM, sM2, sL, sA, sB_, sC, sO, sO2 = 64, 65, 66, 56, 57, 63, 100, 101
sTB, sXa, sXb = sLoc, sXcd, sRot
vP4, vWb = 254, 236
def extra_flags(a):
    a(f'''s_lshr_b32 {s(sTB)}, {s(sWave)}, 2
    s_xor_b32 {s(sTB)}, {s(sTB)}, {s(sTH)}
    s_and_b32 s3, {s(sOC)}, 5
    s_cmp_eq_u32 s3, {s(sTH)}
    s_cselect_b32 {s(sXa)}, 1, 0
    s_or_b32 {s(sXb)}, {s(sTB)}, 4
    s_cmp_eq_u32 s3, {s(sXb)}
    s_cselect_b32 {s(sXb)}, 1, 0''')
def final_setup(a):
    a(f'''v_and_b32 v1, 31, v0
    v_lshrrev_b32 v2, 5, v0
    v_lshlrev_b32 v3, 2, v1
    v_lshl_add_u32 {v(vFol)}, v2, 9, v3
    s_lshl_b32 {s(T1)}, {s(sOT)}, 1
    s_add_u32 {s(T0)}, {s(sTB)}, {s(T1)}
    s_lshl_b32 {s(T0)}, {s(T0)}, 5
    s_lshr_b32 {s(T1)}, {s(sWave)}, 1
    s_lshl_b32 {s(T1)}, {s(T1)}, 3
    s_add_u32 {s(T0)}, {s(T0)}, {s(T1)}
    s_lshl_b32 {s(sM)}, {s(T0)}, 10
    s_add_u32 {s(sM)}, {s(sM)}, {OBM:#x}
    s_add_u32 {s(sM2)}, {s(sM)}, 4096
    s_lshl_b32 {s(sL)}, {s(T0)}, 7
    s_add_u32 {s(sL)}, {s(sL)}, {OBL:#x}
    s_lshl_b32 {s(T0)}, {s(sOT)}, 5
    s_add_u32 {s(T0)}, {s(T0)}, {s(T1)}
    v_and_b32 v3, 7, v0
    v_add_u32 v1, {s(T0)}, v3
    v_lshlrev_b32 v1, 7, v1
    v_add_u32 {v(vP4)}, {FL4:#x}, v1
    s_and_b32 {s(T0)}, {s(sWave)}, 6
    s_add_u32 {s(T0)}, {s(T0)}, {s(sTB)}
    s_mul_i32 {s(T0)}, {s(T0)}, {WSTR}
    s_add_u32 {s(T0)}, {s(T0)}, {BRED}
    v_add_u32 {v(vWr)}, {s(T0)}, {v(v16)}
    s_mul_i32 {s(T0)}, {s(sOT)}, {64*2304}
    s_lshl_b32 {s(T1)}, {s(sOC)}, 7
    s_add_u32 {s(sO)}, {s(T0)}, {s(T1)}
    s_add_u32 {s(sO2)}, {s(sO)}, 1152
    v_lshrrev_b32 v1, 3, v0
    s_lshl_b32 {s(T0)}, {s(sWave)}, 3
    v_add_u32 v2, {s(T0)}, v1
    v_mul_u32_u24 v2, 2304, v2
    v_lshl_add_u32 {v(vOut)}, v3, 4, v2
    v_mul_u32_u24 v3, {QS}, v3
    v_lshl_add_u32 v3, v1, 4, v3
    s_lshr_b32 {s(T0)}, {s(sWave)}, 2
    s_mul_i32 {s(T0)}, {s(T0)}, {WSTR}
    s_lshl_b32 {s(T1)}, {s(sW4)}, 7
    s_add_u32 {s(T0)}, {s(T0)}, {s(T1)}
    v_add_u32 {v(vRd)}, {s(T0)}, v3''')
def flag_ld(a, r=vFlg): a(f'buffer_load_dword {v(r)}, {v(vP4)}, {srd(sWS)}, 0 offen sc1')
def final_state(a): a(f's_mov_b32 {s(sA)}, 0\ns_mov_b32 {s(sB_)}, 0\ns_mov_b32 {s(sC)}, 0')
def half_ld(a, h):
    for i in range(4): a(f'buffer_load_dwordx4 {v(FO+16*h+4*i,4)}, {v(v16)}, {srd(sWS)}, {s(sM2 if h else sM)} offen offset:{1024*i} sc1')
def left_ld(a):
    for i in range(4): a(f'buffer_load_dword {v(FO+32+i)}, {v(vFol)}, {srd(sWS)}, {s(sL)} offen offset:{128*i} sc1')
def half_try(a, again=False):
    for h, st in ((0, sA), (1, sB_)):
        lb = a.new('fl'); go = a.new('fg')
        if again: a(f's_cmp_eq_u32 {s(st)}, 1\ns_cbranch_scc1 {go}')
        a(f's_and_b32 {s(T0)}, vcc_lo, {0xf0 if h else 0x0f}\ns_or_b32 {s(T0)}, {s(T0)}, {s(st)}\ns_cbranch_scc1 {lb}\ns_mov_b32 {s(st)}, 1')
        a.label(go)
        half_ld(a, h)
        a.label(lb)
def final(a):
    a.label('L_final')
    a.c('================= all waves: out projection of B =================')
    a.c('this wave needs 8 heads, 4 from each of two producer groups: load each half as soon as its flags are up')
    def mm(steps):
        for st in steps:
            for T in range(2): mfma(a, FA + 16*T, FW + 8*st + 4*T, FO + 4*st, None if st == 0 else FA + 16*T)
        lb = a.new('nx')
        a(f's_cmp_eq_u32 {s(sXb)}, 0\ns_cbranch_scc1 {lb}')
        for st in steps: mfma(a, FA + 32, FW + 72 + 4*st, FO + 4*st, None if st == 0 else FA + 32)
        a.label(lb)
    def pending0():
        lb = a.new('fm')
        a(f's_cmp_lg_u32 {s(sA)}, 2\ns_cbranch_scc1 {lb}\ns_mov_b32 {s(sA)}, 3')
        mm(range(4))
        a.label(lb)
    def verify(st, r, n):
        lb = a.new('fv')
        a(f's_cmp_lg_u32 {s(st)}, 1\ns_cbranch_scc1 {lb}')
        a(f'v_max3_u32 v2, {v(r)}, {v(r+1)}, {v(r+2)}')
        if n == 4: a(f'v_max_u32 v2, v2, {v(r+3)}')
        else:
            a(f'v_max3_u32 v3, {v(r+3)}, {v(r+4)}, {v(r+5)}')
            for i in range(6, 16, 4): a(f'v_max3_u32 v2, v2, {v(r+i)}, {v(r+i+1)}' + (f'\nv_max3_u32 v3, v3, {v(r+i+2)}, {v(r+i+3)}' if i + 3 < 16 else ''))
            a('v_max_u32 v2, v2, v3')
        a(f'v_cmp_eq_u32 {s(60,2)}, -1, v2\ns_cmp_lg_u64 {s(60,2)}, 0\ns_cselect_b32 {s(st)}, 1, 2')
        a.label(lb)
    a.label('L_fpoll')
    a('s_waitcnt vmcnt(0) lgkmcnt(0)')
    verify(sA, FO, 16); verify(sB_, FO + 16, 16); verify(sC, FO + 32, 4)
    a(f's_min_u32 {s(T0)}, {s(sA)}, {s(sB_)}\ns_min_u32 {s(T0)}, {s(T0)}, {s(sC)}\ns_cmp_ge_u32 {s(T0)}, 2\ns_cbranch_scc1 L_fgo')
    a(f'v_cmp_ne_u32 vcc, {s(sTok)}, {v(vFlg)}')
    half_try(a, True)
    lb = a.new('fc'); l2 = a.new('fd')
    a(f's_min_u32 {s(T0)}, {s(sA)}, {s(sB_)}\ns_cmp_eq_u32 {s(T0)}, 0\ns_cbranch_scc1 {lb}\ns_cmp_eq_u32 {s(sC)}, 2\ns_cbranch_scc1 {l2}\ns_mov_b32 {s(sC)}, 1')
    for i in range(4): a(f'buffer_load_dword {v(FO+32+i)}, {v(vFol)}, {srd(sWS)}, {s(sL)} offen offset:{128*i} sc1')
    a(f's_branch {l2}')
    a.label(lb)
    flag_ld(a)
    a.label(l2)
    pending0()
    spin_tail(a, 'L_fpoll', OPT.get('fsl', 0))
    a.label('L_fgo')
    a.stamp(10)
    pending0()
    mm(range(4, 9))
    if OPT.get('p4'): a.stamp(6)
    a('s_barrier')
    if OPT.get('p4'): a.stamp(7)
    a(f'''v_add_u32 v7, {ARED}, {v(vRd)}
    v_add_u32 {v(vRd)}, {BRED}, {v(vRd)}
    v_lshrrev_b32 v2, 2, v0
    s_lshl_b32 {s(T0)}, {s(sWave)}, 4
    v_add_u32 v2, {s(T0)}, v2
    v_and_b32 v3, 3, v0
    v_mul_u32_u24 v5, 2304, v2
    v_lshl_add_u32 v5, v3, 4, v5
    v_mul_u32_u24 v3, {QS}, v3
    v_lshl_add_u32 v4, v2, 4, v3
    v_add_u32 v4, {EXR}, v4''')
    for q in range(8): a(f'ds_write_b128 {v(vWr)}, {v(FA+4*q,4)} offset:{QS*q}')
    a(f'''s_cmp_eq_u32 {s(sXb)}, 0
    s_cbranch_scc1 L_fnx
    s_lshr_b32 {s(T0)}, {s(sWave)}, 1
    s_mul_i32 {s(T0)}, {s(T0)}, {4*QS}
    s_add_u32 {s(T0)}, {s(T0)}, {EXR}
    v_add_u32 v1, {s(T0)}, {v(v16)}''')
    for q in range(4): a(f'ds_write_b128 v1, {v(FA+32+4*q,4)} offset:{QS*q}')
    a.label('L_fnx')
    a('s_waitcnt lgkmcnt(0)\ns_barrier')
    a.stamp(11)
    a.c('sum the partials in output order: one 16-byte piece of a row per lane')
    def rd(R, vr, n, stride):
        for k in range(n):
            for h in range(2): a(f'ds_read_b128 {v(R+8*k+4*h,4)}, {v(vr)} offset:{stride*k + 512*h}')
    def fin(R, n, vo, so, pol):
        for k in range(1, n):
            for i in range(4): a(f'v_pk_add_f32 {v(R+2*i,2)}, {v(R+2*i,2)}, {v(R+8*k+2*i,2)}')
        cvt8(a, R, R)
        a(f'buffer_store_dwordx4 {v(R,4)}, {v(vo)}, {srd(sOUT)}, {s(so)} offen{opol(pol)}')
    rd(16, vRd, 4, 2*WSTR); rd(48, 7, 2, 2*WSTR)
    a(f'''s_cmp_gt_u32 {s(sWave)}, 1
    s_cbranch_scc1 L_fin_a
    s_mul_i32 {s(T0)}, {s(sOT)}, {64*2304}
    s_and_b32 {s(T1)}, {s(sOC)}, 1
    s_mul_i32 {s(T1)}, {s(T1)}, {32*2304}
    s_add_u32 {s(T0)}, {s(T0)}, {s(T1)}
    s_and_b32 {s(T1)}, {s(sOC)}, 2
    s_lshl_b32 {s(T1)}, {s(T1)}, 5
    s_add_u32 {s(T0)}, {s(T0)}, {s(T1)}
    s_add_u32 {s(T0)}, {s(T0)}, 1024
    s_bitcmp1_b32 {s(sOC)}, 2
    s_cbranch_scc0 L_fin_x
    s_add_u32 {s(T0)}, {s(T0)}, 1152''')
    rd(64, 4, 4, 4*QS); a('s_waitcnt lgkmcnt(0)'); fin(64, 4, 5, T0, 'osb'); a('s_branch L_fin_a')
    a.label('L_fin_x')
    rd(64, 4, 2, 4*QS); a('s_waitcnt lgkmcnt(0)'); fin(64, 2, 5, T0, 'osa')
    a.label('L_fin_a')
    a('s_waitcnt lgkmcnt(4)'); fin(16, 4, vOut, sO2, 'osb')
    a('s_waitcnt lgkmcnt(0)'); fin(48, 2, vOut, sO, 'osa')
    if OPT.get('padto'):
        a.label('L_pad')
        a(f's_memrealtime s[94:95]\ns_waitcnt lgkmcnt(0)\ns_sub_u32 s94, s94, s80\ns_cmp_lt_u32 s94, {OPT["padto"]}\ns_cbranch_scc1 L_pad')
    if a.diag:
        a('s_waitcnt vmcnt(0)')
        a.stamp(12)
        a.label('L_dump')
        a(f's_lshl_b32 {s(T0)}, s2, 3\ns_add_u32 {s(T0)}, {s(T0)}, {s(sWave)}\ns_lshl_b32 {s(T0)}, {s(T0)}, 7\ns_add_u32 {s(T0)}, {s(T0)}, {STAMPS:#x}')
        for k in range(16): a(f'v_mov_b32 {v(16+k)}, {s(SSTAMP+k)}')
        a(f's_lshl_b32 {s(T1)}, {s(T0)}, 1\ns_sub_u32 {s(T1)}, {s(T1)}, {STAMPS - 0x80000:#x}\nbuffer_store_dword v243, {v(vQL)}, {srd(sWS)}, {s(T1)} offen')
        a('v_mov_b32 v1, 0\ns_mov_b64 exec, 1')
        for k in range(4): a(f'buffer_store_dwordx4 {v(16+4*k,4)}, v1, {srd(sWS)}, {s(T0)} offen offset:{16*k}')
    a('s_endpgm')
    for f in a.late: f()
    a.label('L_end')
    a('s_endpgm')

WPH, WLq, WLk, vG, vPh, vPr, RAW = 8, 12, 14, 16, 18, 19, 160
sQa, sRec, sTl, sF1A, sLoB, sHiB, sC2 = 56, 57, 58, 59, 60, 61, 62
vXs, vOl, vF3, vF2 = 234, 240, 241, 242
def a_setup(a, part):
    if part == 0:
        a.c('feature-map weights (rows follow the rotated dim order of odd heads)')
        a(f'''v_and_b32 v1, 31, v0
        v_lshrrev_b32 v2, 5, v0
        v_cmp_eq_u32 vcc, 20, v1
        v_mov_b32 v3, 17
        v_mov_b32 v4, {OOB:#x}
        v_cndmask_b32 v3, v1, v3, vcc
        v_cmp_ge_u32 {s(T0,2)}, 16, v1
        s_or_b64 vcc, vcc, {s(T0,2)}
        v_lshlrev_b32 v3, 1, v3
        s_mul_i32 {s(T2)}, {s(sHA)}, 648
        v_cndmask_b32 v3, v4, v3, vcc
        v_mul_u32_u24 v5, 288, v2
        v_add_u32 v4, v3, v5
        s_and_b32 {s(T0)}, {s(sHA)}, 1
        s_mul_i32 {s(T1)}, {s(T0)}, 72
        s_add_u32 {s(T3)}, {s(T2)}, {s(T1)}
        s_mul_i32 {s(T1)}, {s(T0)}, 576
        s_sub_u32 {s(T2)}, {s(T2)}, {s(T1)}
        s_add_u32 {s(T2)}, {s(T2)}, 576''')
        for e in range(8):
            a(f'buffer_load_ushort {v(RAW + e)}, v4, {srd(sPHI)}, {s(T3)} offen offset:{e*36}')
        a(f'buffer_load_ushort {v(RAW+8)}, v3, {srd(sPHI)}, {s(T2)} offen\nbuffer_load_ushort {v(RAW+9)}, v3, {srd(sPHI)}, {s(T2)} offen offset:36')
    if part == 1:
        a.c('wo image lane offsets; flags of the producers of this wave\'s rows')
        a(f'''v_lshrrev_b32 v3, 3, v0
        v_bfe_u32 v4, v0, 4, 1
        v_lshlrev_b32 v4, 2, v4
        v_and_b32 v5, 7, v0
        v_xor_b32 v4, v4, v5
        v_mul_u32_u24 v3, 1152, v3
        v_lshl_add_u32 {v(vWO)}, v4, 4, v3
        v_lshrrev_b32 v3, 2, v0
        v_mul_u32_u24 v3, 1152, v3
        v_and_b32 v4, 3, v0
        v_lshl_add_u32 {v(vWO+1)}, v4, 4, v3''')
        a('v_lshrrev_b32 v4, 1, v0\nv_min_u32 v4, 2, v4\nv_and_b32 v5, 1, v0')
        producer_ct(a, 3, 4, 5, sHA, 6)
        a(f'''s_lshl_b32 {s(T0)}, {s(sRB)}, 1
        s_add_u32 {s(T0)}, {s(T0)}, {s(sMG)}
        v_lshl_add_u32 v3, v3, 4, {s(T0)}
        v_lshlrev_b32 v3, 7, v3
        v_add_u32 {v(vPoll)}, {FL1A:#x}, v3''')
    if part == 2:
        a.c('image addresses: tile = 8rb + 2w; leftover gather (half 0: q, half 1: k)')
        a(f'''s_lshl_b32 {s(sTl)}, {s(sRB)}, 3
        s_lshl_b32 {s(T1)}, {s(sW4)}, 1
        s_add_u32 {s(sTl)}, {s(sTl)}, {s(T1)}
        s_lshl_b32 {s(T1)}, {s(sHA)}, 6
        s_add_u32 {s(T0)}, {s(sTl)}, {s(T1)}
        s_lshl_b32 {s(sQa)}, {s(T0)}, 10
        s_add_u32 {s(sQa)}, {s(sQa)}, {QM + AOFF:#x}
        s_mul_i32 {s(sRec)}, {s(T0)}, {REC}
        s_add_u32 {s(sRec)}, {s(sRec)}, {KV + AOFF:#x}
        s_lshr_b32 {s(T0)}, {s(sHA)}, 1
        s_lshl_b32 {s(T0)}, {s(T0)}, 6
        s_add_u32 {s(T0)}, {s(T0)}, {s(sTl)}
        s_lshl_b32 {s(T0)}, {s(T0)}, 8
        s_and_b32 {s(T1)}, {s(sHA)}, 1
        s_lshl_b32 {s(T1)}, {s(T1)}, 2
        s_add_u32 {s(T0)}, {s(T0)}, {s(T1)}
        s_add_u32 {s(T0)}, {s(T0)}, {QL + AOFF:#x}
        v_mov_b32 v3, {s(T0)}''')
        kl_const(a, T1, sHA)
        a(f'''s_add_u32 {s(T1)}, {s(T1)}, {s(sRec)}
        v_mov_b32 v4, {s(T1)}
        v_mov_b32 v5, 256
        v_mov_b32 v6, {REC}
        v_cmp_gt_u32 vcc, 32, v0
        v_and_b32 v1, 31, v0
        v_lshrrev_b32 v2, 5, v0
        v_cndmask_b32 v3, v4, v3, vcc
        v_cndmask_b32 v5, v6, v5, vcc
        v_lshl_add_u32 {v(vG)}, v1, 3, v3
        v_add_u32 {v(vG+1)}, {v(vG)}, v5''')
        flag_addr(a, sF1A, sCT, sRT, 4, FL1A)
        a(f's_cmp_lg_u32 {s(sIdle)}, 0\ns_cselect_b32 {s(sF1A)}, {OOB:#x}, {s(sF1A)}')
    if part == 3:
        a.c('phi scratch: row-per-token writes, transposed reads')
        a(f'''s_mul_i32 {s(T0)}, {s(sW4)}, 5120
        s_add_u32 {s(T0)}, {s(T0)}, {PHS}
        v_and_b32 v1, 31, v0
        v_lshrrev_b32 v2, 5, v0
        v_mul_u32_u24 v3, 80, v1
        v_lshl_add_u32 v3, v2, 3, v3
        v_add_u32 {v(vPh)}, {s(T0)}, v3
        v_bfe_u32 v3, v0, 2, 2
        v_lshl_add_u32 v5, v2, 2, v3
        v_mul_u32_u24 v5, 80, v5
        v_add_u32 v5, {s(T0)}, v5
        v_and_b32 v4, 3, v0
        v_lshlrev_b32 v6, 3, v4
        v_and_b32 v3, 1, v0
        v_lshlrev_b32 v3, 3, v3
        v_add_u32 v3, 64, v3
        v_bfe_u32 v4, v0, 4, 1
        v_cmp_eq_u32 vcc, 0, v4
        v_add_u32 {v(vPr+1)}, v5, v6
        v_mov_b32 {v(WLq+1)}, 0
        v_cndmask_b32 v6, v3, v6, vcc
        v_mov_b32 {v(WLk+1)}, 0
        v_add_u32 {v(vPr)}, v5, v6''')
    if part == 4:
        for i in range(4): a(f'v_lshl_or_b32 {v(WPH + i)}, {v(RAW+1 + 2*i)}, 16, {v(RAW + 2*i)}')
        a(f'v_lshl_or_b32 v3, {v(RAW+9)}, 16, {v(RAW+8)}\nv_cmp_gt_u32 vcc, 32, v0\ns_nop 1\nv_cndmask_b32 {v(WLq)}, {v(vZero)}, v3, vcc\nv_cndmask_b32 {v(WLk)}, v3, {v(vZero)}, vcc')

def a_chain(a, opt):
    Fq, Fk, Fl, Fv = [36, 40], [44, 48], [52, 54], [56, 64]
    def lprio(x):
        if opt.get('lp', 1): a(f's_setprio {x}')
    a.label('L_achain')
    a.c('================= waves 4-7: publish A qkv, feature maps =================')
    def mains(sr, kq, slot): return [('m', (sr, kq), h, slot, 2*(kq & 1) + h) for h in range(2)]
    bg = mains(sAWO, 1, M_A) + mains(sAWO, 3, M_A + MB) + mains(sBWO, 0, M_C) + [('e', 1, 0, X_A, 2), ('e', 3, 1, X_A + EB, 3)]
    hold = [bool(opt.get('late', 0))]
    def bgdma():
        if bg and not hold[0]: issue_grp(a, *bg.pop(0))
    extra_flags(a)
    a(f'''s_lshl_b32 {s(sWB)}, {s(sOC)}, 7
    s_mul_i32 s3, {s(sW4)}, {8*1152}
    s_add_u32 {s(sWB)}, {s(sWB)}, s3
    s_lshl_b32 s3, s3, 1
    s_and_b32 {s(sWE)}, {s(sOC)}, 2
    s_lshl_b32 {s(sWE)}, {s(sWE)}, 5
    s_add_u32 {s(sWE)}, {s(sWE)}, s3
    s_add_u32 {s(sWE)}, {s(sWE)}, 1024
    s_bitcmp1_b32 {s(sOC)}, 2
    s_cselect_b32 {s(sEX)}, {s(sBWO)}, {s(sAWO)}
    s_cselect_b32 {s(sEX+1)}, {s(sBWO+1)}, {s(sAWO+1)}
    s_mov_b32 {s(sEX+2)}, {576*1152}
    s_mov_b32 {s(sEX+3)}, 0x20000
    s_mov_b32 {s(T2)}, {f2u(LOG2E):#x}
    s_mov_b32 {s(T3)}, {f2u(LOG2E):#x}
    v_mov_b32 {v(Fl[0]+1)}, 0
    v_mov_b32 {v(Fl[1]+1)}, 0
    s_waitcnt vmcnt(0)''')
    last_signals(a, 2, C_F1A, 4, sF1A)
    a.stamp(5)
    a.c('addresses for later stages, in the slots the attention leaves free while the producers finish')
    if opt.get('w1', 0) < 2: lprio(0)
    a(f's_mul_i32 {s(T6)}, {s(sMG)}, {MB}\ns_add_u32 {s(T6)}, {s(T6)}, {LATE}\ns_mul_i32 {s(T7)}, {s(sMG)}, {EB}\ns_add_u32 {s(T7)}, {s(T7)}, {LATE + 2*MB}')
    op_addr(a, vXs, 2, T6, T7)
    if opt.get('w1', 0): lprio(1)
    a(f'''v_and_b32 v1, 31, v0
    v_lshrrev_b32 v2, 5, v0
    v_lshlrev_b32 v3, 2, v1
    v_lshl_add_u32 {v(vOl)}, v2, 9, v3
    s_lshl_b32 {s(T0)}, {s(sOT)}, 1
    s_add_u32 {s(T0)}, {s(T0)}, {s(sMG)}
    s_lshl_b32 {s(T0)}, {s(T0)}, 11
    s_add_u32 {s(T0)}, {s(T0)}, {FL3:#x}
    v_and_b32 v3, 15, v0
    v_lshl_add_u32 {v(vF3)}, v3, 7, {s(T0)}
    v_and_b32 v3, 7, v0
    s_lshl_b32 {s(T0)}, {s(sHA)}, 10
    s_add_u32 {s(T0)}, {s(T0)}, {FL2:#x}
    v_lshl_add_u32 {v(vF2)}, v3, 7, {s(T0)}
    s_mov_b32 {s(sLoB)}, {f2u(2.0**-64):#x}
    s_mov_b32 {s(sHiB)}, {f2u(2.0**64):#x}''')
    lprio(1)
    poll_flags(a, vPoll, 2, sl=4)
    a.stamp(6)
    for tt in range(2):
        a(f'buffer_load_dwordx4 {v(Fk[tt],4)}, {v(v16)}, {srd(sWS)}, {s(sRec)} offen offset:{REC*tt} sc1')
        a(f'buffer_load_dword {v(Fl[tt])}, {v(vG + tt)}, {srd(sWS)}, 0 offen sc1')
    for tt in range(2): a(f'buffer_load_dwordx4 {v(Fq[tt],4)}, {v(v16)}, {srd(sWS)}, {s(sQa)} offen offset:{1024*tt} sc1')
    for tt in range(2):
        for f in range(2): a(f'buffer_load_dwordx4 {v(Fv[tt]+4*f,4)}, {v(vVf+f)}, {srd(sWS)}, {s(sRec)} offen offset:{REC*tt} sc1')
    lds_wait(a, 2, C_F1A, 4)
    D = {('k', 0): 80, ('k', 1): 96, ('q', 0): 112, ('q', 1): 128}
    a('s_waitcnt vmcnt(6)')
    lprio(0)
    for tt in range(2): mfma(a, D[('k', tt)], WLk, Fl[tt], None, '8')
    for tt in range(2): mfma(a, D[('q', tt)], WLq, Fl[tt], None, '8')
    a.nop(7)
    for tt in range(2): mfma(a, D[('k', tt)], WPH, Fk[tt], D[('k', tt)])
    a('s_waitcnt vmcnt(4)')
    for tt in range(2): mfma(a, D[('q', tt)], WPH, Fq[tt], D[('q', tt)])
    a.nop(8)
    lprio(1)
    dense = False
    EP, EM = 144, 156
    PH = {('q', 0): 204, ('q', 1): 214, ('k', 0): 168, ('k', 1): 178}
    def sums():
        a(f'''v_pk_add_f32 v[2:3], {v(EP,2)}, {v(EP+2,2)}
        v_pk_add_f32 v[4:5], {v(EM,2)}, {v(EM+2,2)}
        v_pk_add_f32 v[2:3], v[2:3], {v(EP+4,2)}
        v_pk_add_f32 v[4:5], v[4:5], {v(EM+4,2)}
        v_pk_add_f32 v[2:3], v[2:3], {v(EP+6,2)}
        v_pk_add_f32 v[4:5], v[4:5], {v(EM+6,2)}
        v_add_f32 v2, v2, {v(EP+8)}
        v_add_f32 v4, v4, {v(EM+8)}
        v_add_f32 v2, v2, v3
        v_add_f32 v4, v4, v5
        s_nop 1
        v_permlane32_swap_b32 v2, v4
        v_add_f32 v2, v2, v4''')
    def softmax_max(x, lab, back):
        a.label(lab)
        a(f'''v_max3_f32 v2, {v(x)}, {v(x+1)}, {v(x+2)}
        v_max3_f32 v4, -{v(x)}, -{v(x+1)}, -{v(x+2)}
        v_max3_f32 v2, v2, {v(x+3)}, {v(x+4)}
        v_max3_f32 v4, v4, -{v(x+3)}, -{v(x+4)}
        v_max3_f32 v2, v2, {v(x+5)}, {v(x+6)}
        v_max3_f32 v4, v4, -{v(x+5)}, -{v(x+6)}
        v_max3_f32 v2, v2, {v(x+7)}, {v(x+8)}
        v_max3_f32 v4, v4, -{v(x+7)}, -{v(x+8)}
        s_nop 1
        v_permlane32_swap_b32 v2, v4
        v_max_f32 v2, v2, v4
        v_mov_b32 v4, v2
        s_nop 1
        v_permlane32_swap_b32 v2, v4''')
        for i in range(9): a(f'v_sub_f32 {v(EP+i)}, {v(x+i)}, v2\nv_sub_f32 {v(EM+i)}, -{v(x+i)}, v4')
        for E in (EP, EM):
            for i in range(9): a(f'v_mul_f32 {v(E+i)}, {s(T2)}, {v(E+i)}')
        for E in (EP, EM):
            for i in range(9): a(f'v_exp_f32 {v(E+i)}, {v(E+i)}')
        sums()
        a(f's_branch {back}')
    def softmax2(x, P, lo=False):
        lab = a.new('smx'); back = a.new('smb')
        a.late.append(lambda: softmax_max(x, lab, back))
        for i in range(0, 8, 2): a(f'v_pk_mul_f32 {v(EM+i,2)}, {v(x+i,2)}, {s(T2,2)}')
        a(f'v_mul_f32 {v(EM+8)}, {s(T2)}, {v(x+8)}')
        bgdma()
        if lo == 2:
            hi = a.new('qh')
            a(f's_waitcnt vmcnt(4)\nv_cmp_ne_u32 vcc, {s(sTok)}, v7\ns_cbranch_vccz {hi}\ns_setprio 0')
            a.label(hi)
        elif lo: lprio(0)
        isq = P in (PH[('q', 0)], PH[('q', 1)])
        for i in range(9):
            a(f'v_exp_f32 {v(EP+i)}, {v(EM+i)}')
            if isq and dense and i in (2, 5): bgdma()
        bgdma()
        for i in range(9):
            a(f'v_exp_f32 {v(EM+i)}, -{v(EM+i)}')
            if isq and dense and i in (2, 5): bgdma()
        if lo: lprio(1)
        bgdma()
        if opt.get('qlo') == 5 and P == PH[('q', 0)]: a(f'buffer_load_dword v7, {v(vF2)}, {srd(sWS)}, 0 offen sc1')
        sums()
        a(f'''v_cmp_nle_f32 {s(sC2,2)}, {s(sLoB)}, v2
        v_cmp_nge_f32 vcc, {s(sHiB)}, v2
        s_or_b64 vcc, vcc, {s(sC2,2)}
        s_cbranch_scc1 {lab}''')
        a.label(back)
        a(f'''v_rcp_f32 v2, v2
        s_nop 0
        v_mov_b32 v4, v2
        s_nop 1
        v_permlane32_swap_b32 v2, v4''')
        for E, t in ((EP, 2), (EM, 4)):
            for i in range(0, 8, 2): a(f'v_pk_mul_f32 {v(E+i,2)}, {v(E+i,2)}, {v(t,2)} op_sel_hi:[1,0]')
            a(f'v_mul_f32 {v(E+8)}, {v(E+8)}, {v(t)}')
        bgdma()
        cvt8(a, EP, P); cvt8(a, EM, P+4)
        a(f'v_cvt_pk_bf16_f32 {v(P+8)}, {v(EP+8)}, {v(EM+8)}')
    for tt in range(2):
        P = PH[('k', tt)]
        softmax2(D[('k', tt)], P)
        o = 2560*tt
        a(f'''ds_write_b64 {v(vPh)}, {v(P,2)} offset:{o}
        ds_write_b64 {v(vPh)}, {v(P+2,2)} offset:{o+16}
        ds_write_b64 {v(vPh)}, {v(P+4,2)} offset:{o+32}
        ds_write_b64 {v(vPh)}, {v(P+6,2)} offset:{o+48}
        ds_write_b32 {v(vPh)}, {v(P+8)} offset:{o+64}''')
    a.c('kv partial of this wave: phi_k^T (transposed through LDS) x [v | 1]')
    KA = 144; KD = [80, 96]
    a('s_waitcnt lgkmcnt(0)')
    for k in range(4):
        for sg in range(2):
            for j in range(2):
                a(f'ds_read_b64_tr_b16 {v(KA+8*k+4*sg+2*j,2)}, {v(vPr+sg)} offset:{(16*k+8*j)*80 + 32*sg}')
    a(f'''s_mul_i32 {s(T0)}, {s(sW4)}, 5120
    s_add_u32 {s(T0)}, {s(T0)}, {PHS}
    v_add_u32 v6, {s(T0)}, {v(v16)}
    v_lshlrev_b32 v1, 3, v0
    v_add_u32 v7, {s(T0)}, v1
    s_waitcnt vmcnt({0 if hold[0] else 16}) lgkmcnt(0)''')
    lprio(0)
    for k in range(4):
        for sg in range(2): mfma(a, KD[sg], KA+8*k+4*sg, Fv[0]+4*k, None if k == 0 else KD[sg])
    a.nop(11)
    lprio(1)
    a(f'''ds_write_b128 v6, {v(KD[0],4)} 
    ds_write_b128 v6, {v(KD[0]+4,4)} offset:1024
    ds_write_b64 v7, {v(KD[0]+8,2)} offset:2048
    ds_write_b128 v6, {v(KD[1],4)} offset:2560
    ds_write_b128 v6, {v(KD[1]+4,4)} offset:3584
    s_waitcnt lgkmcnt(0)''')
    lds_arrive(a, C_KVX)
    a(f'''s_mul_i32 {s(T7)}, {s(sTH)}, 2560
    s_lshl_b32 {s(T1)}, {s(sMG)}, 10
    s_add_u32 {s(T7)}, {s(T7)}, {s(T1)}
    s_add_u32 {s(T1)}, {s(T7)}, {PHS}
    v_add_u32 v6, {s(T1)}, {v(v16)}
    v_add_u32 v7, {PHS}, v1
    s_lshl_b32 {s(T0)}, {s(sHA)}, 3
    s_add_u32 {s(T1)}, {s(T0)}, {s(sRB)}
    s_mul_i32 {s(T4)}, {s(T1)}, {KVPS}
    s_add_u32 {s(T4)}, {s(T4)}, {KVP:#x}
    s_add_u32 {s(T5)}, {s(T4)}, {s(T7)}
    s_lshl_b32 {s(T1)}, {s(T1)}, 7
    s_add_u32 {s(T1)}, {s(T1)}, {FL2:#x}''')
    lds_wait(a, 2, C_KVX, 4)
    R = 80
    for w in range(4): a(f'ds_read_b128 {v(R+4*w,4)}, v6 offset:{5120*w}')
    a(f's_cmp_lg_u32 {s(sW4)}, 3\ns_cbranch_scc1 L_kvx')
    for w in range(4): a(f'ds_read_b64 {v(R+16+2*w,2)}, v7 offset:{5120*w + 2048}')
    a('s_waitcnt lgkmcnt(0)')
    for w in range(1, 4): a(f'v_pk_add_f32 {v(R+16,2)}, {v(R+16,2)}, {v(R+16+2*w,2)}')
    a(f'buffer_store_dwordx2 {v(R+16,2)}, v1, {srd(sWS)}, {s(T4)} offen offset:2048 sc1')
    a.label('L_kvx')
    a('s_waitcnt lgkmcnt(0)')
    for w in range(1, 4):
        for k in range(2): a(f'v_pk_add_f32 {v(R+2*k,2)}, {v(R+2*k,2)}, {v(R+4*w+2*k,2)}')
    a(f'buffer_store_dwordx4 {v(R,4)}, {v(v16)}, {srd(sWS)}, {s(T5)} offen sc1')
    a('s_waitcnt vmcnt(0)')
    last_signals(a, 2, C_F2, 4, T1)
    a.stamp(7)
    a.c('================= waves 4-7: kv total, numerator / denominator =================')
    a(f'''s_lshl_b32 {s(T0)}, {s(sHA)}, 3
    s_mul_i32 {s(T4)}, {s(T0)}, {KVPS}
    s_add_u32 {s(T4)}, {s(T4)}, {KVP:#x}
    s_add_u32 {s(T5)}, {s(T4)}, {s(T7)}
    s_lshl_b32 {s(T7)}, {s(sTH)}, 10
    s_lshl_b32 {s(T0)}, {s(sMG)}, 3
    s_add_u32 {s(T7)}, {s(T7)}, {s(T0)}
    s_add_u32 {s(T7)}, {s(T7)}, {KVF}''')
    lds_wait(a, 2, C_F2, 4)
    assert not bg
    bg += mains(sAWO, 0, LATE) + mains(sAWO, 2, LATE + MB) + [('e', 0, 2, LATE + 2*MB, 0), ('e', 2, 3, LATE + 2*MB + EB, 1)]
    dense = hold[0]; hold[0] = False
    for tt in range(2):
        softmax2(D[('q', tt)], PH[('q', tt)], 2 if tt and opt.get('qlo') == 5 else bool(opt.get('qlo', 0) >> tt & 1))
        a(f'v_mov_b32 {v(PH[("q", tt)]+9)}, 0')
    assert not bg
    poll_flags(a, vF2, 2, sl=4)
    for i in range(8):
        a(f'buffer_load_dwordx4 {v(R+4*i,4)}, {v(v16)}, {srd(sWS)}, {s(T5)} offen sc1')
        if i < 7: a(f's_add_u32 {s(T5)}, {s(T5)}, {KVPS}')
    a(f'v_add_u32 v3, {s(T7)}, {v(v16)}\nv_add_u32 v6, {KVF + 2048}, v1\ns_cmp_lg_u32 {s(sW4)}, 3\ns_cbranch_scc1 L_kvs')
    for i in range(8):
        a(f'buffer_load_dwordx2 {v(R+32+2*i,2)}, v1, {srd(sWS)}, {s(T4)} offen offset:2048 sc1')
        if i < 7: a(f's_add_u32 {s(T4)}, {s(T4)}, {KVPS}')
    a('s_waitcnt vmcnt(0)')
    for i in range(1, 8): a(f'v_pk_add_f32 {v(R+32,2)}, {v(R+32,2)}, {v(R+32+2*i,2)}')
    a(f'v_cvt_pk_bf16_f32 v4, {v(R+32)}, {v(R+33)}\nv_mov_b32 v5, 0\nds_write_b64 v6, v[4:5]')
    a.label('L_kvs')
    a('s_waitcnt vmcnt(0)')
    for i in range(1, 8):
        for k in range(2): a(f'v_pk_add_f32 {v(R+2*k,2)}, {v(R+2*k,2)}, {v(R+4*i+2*k,2)}')
    a(f'v_cvt_pk_bf16_f32 v10, {v(R)}, {v(R+1)}\nv_cvt_pk_bf16_f32 v11, {v(R+2)}, {v(R+3)}\nds_write_b64 v3, v[10:11]\ns_waitcnt lgkmcnt(0)')
    lds_arrive(a, C_KVF)
    lds_wait(a, 2, C_KVF, 4)
    KF = 144
    a(f'''v_add_u32 v3, {KVF}, {v(v16)}
    ds_read_b64 {v(KF+8,2)}, v6
    ds_read_b128 {v(KF,4)}, v3
    ds_read_b128 {v(KF+4,4)}, v3 offset:1024
    s_mov_b32 {s(T0)}, {s(sTl)}''')
    o_addr(a, sHA, OAM, OAL)
    a.c('the o_B rows of the same tiles get the marker; the flag for o_A below covers these stores too')
    for i in range(4): a(f'v_mov_b32 {v(160+i)}, -1')
    for t in range(2):
        a(f's_add_u32 {s(T0)}, {s(T2+t)}, {OBM - OAM:#x}\nbuffer_store_dwordx4 v[160:163], {v(v16)}, {srd(sWS)}, {s(T0)} offen sc1')
    a('s_mov_b32 exec_hi, 0')
    for t in range(2):
        a(f's_add_u32 {s(T0)}, {s(T4+t)}, {OBL - OAL:#x}\nbuffer_store_dword v160, {v(vQL)}, {srd(sWS)}, {s(T0)} offen sc1')
    a('s_mov_b32 exec_hi, -1')
    a('s_waitcnt lgkmcnt(0)')
    ND = [80, 96]
    lprio(0)
    for tt in range(2): mfma(a, ND[tt], KF+8, PH[('q', tt)]+8, None, '8')
    a.nop(9)
    for tt in range(2): mfma(a, ND[tt], KF, PH[('q', tt)], ND[tt])
    for tt in range(2): mfma(a, ND[tt], KF+4, PH[('q', tt)]+4, ND[tt])
    a.nop(11)
    lprio(1)
    o_publish(a, ND, [112, 120], True)
    a(f's_lshr_b32 {s(T6)}, {s(sTl)}, 1')
    flag_addr(a, T1, T6, sHA, 5, FL3)
    wave_signals(a, 2, T1)
    a.stamp(8)
    a.c('================= waves 4-7: out projection of A (operands first, MFMAs after the attention) =================')
    W, O1, O2 = 16, 124, 160
    X, Y = 4, 10
    sM, sM2, sL = 59, 60, 61
    a(f's_or_b32 {s(T6)}, {s(sXa)}, {s(sXb)}')
    op_read_w(a, W, vXs, T6)
    a(f'''    s_lshl_b32 {s(T1)}, {s(sOT)}, 1
    s_add_u32 {s(T5)}, {s(sTH)}, {s(T1)}
    s_lshl_b32 {s(T0)}, {s(T5)}, 5
    s_lshl_b32 {s(T1)}, {s(sMG)}, 4
    s_add_u32 {s(T7)}, {s(T0)}, {s(T1)}
    s_lshl_b32 {s(sM)}, {s(T7)}, 10
    s_add_u32 {s(sM)}, {s(sM)}, {OAM:#x}
    s_add_u32 {s(sM2)}, {s(sM)}, 4096
    s_lshl_b32 {s(sL)}, {s(T7)}, 7
    s_add_u32 {s(sL)}, {s(sL)}, {OAL:#x}
    s_waitcnt lgkmcnt(0)''')
    lds_arrive(a, C_W1)
    lds_wait(a, 2, C_W1, 4)
    bg += mains(sBWO, 1, LATE) + mains(sBWO, 2, LATE + MB) + mains(sBWO, 3, LATE + 2*MB)
    bgdma(); bgdma()
    if opt.get('f0', 1): lprio(0)
    for i in range(6): a((f'v_mov_b32 {v(X+i)}, {v(vXs+i)}\n' if i < 4 else '') + f'v_subrev_u32 {v(Y+i)}, {LATE - M_A}, {v(vXs+i)}')
    final_setup(a); final_state(a)
    lprio(1)
    bgdma(); bgdma()
    poll_flags(a, vF3, 2, sl=2)
    a.c('short batches keep the memory queue of the CU free for the attention waves')
    for O in (O1, O2):
        for h in range(2):
            for i in range(4): a(f'buffer_load_dwordx4 {v(O+16*h+4*i,4)}, {v(v16)}, {srd(sWS)}, {s(sM2 if h else sM)} offen offset:{1024*i} sc1')
            if h:
                for i in range(4): a(f'buffer_load_dword {v(O+32+i)}, {v(vOl)}, {srd(sWS)}, {s(sL)} offen offset:{128*i} sc1')
                bgdma()
            if h or not opt.get('ob2', 1): a(f's_waitcnt vmcnt({opt.get("othr", 2)})')
        if O == O1: a(f's_add_u32 {s(sM)}, {s(sM)}, 8192\ns_add_u32 {s(sM2)}, {s(sM2)}, 8192\ns_add_u32 {s(sL)}, {s(sL)}, 1024')
    assert not bg
    a('s_waitcnt vmcnt(0)')
    a.stamp(9)
    pre = opt.get('pre', 0)
    mid = opt.get('mid', 1)
    a('s_setprio 0')
    for ps, (O, nxt) in enumerate(((O1, Y), (O2, X))):
        if ps == 1:
            a('s_waitcnt lgkmcnt(0)')
            lds_arrive(a, C_W3)
        for st in range(9):
            if 9*ps + st == pre: a(f's_barrier\ns_setprio {opt.get("prio2", 0)}')
            if opt.get('p4') and 9*ps + st in (pre, 9): a.stamp(5 if ps == 0 else 4)
            rd = op_w_reads(W, nxt, st - 1, MB*ps) if st else [''] * 4
            for T in range(2):
                mfma(a, ACA[T], W + 8*st + 4*T, O + 4*st, None if (ps == 0 and st == 0) else ACA[T])
                a(rd[2*T]); a(rd[2*T+1])
            k = 9*ps + st
            if mid and k == mid:
                a(f's_waitcnt vmcnt(0)\nv_cmp_ne_u32 vcc, {s(sTok)}, {v(vFlg)}')
                half_try(a)
                lb = a.new('ml')
                a(f's_min_u32 {s(T0)}, {s(sA)}, {s(sB_)}\ns_cmp_eq_u32 {s(T0)}, 0\ns_cbranch_scc1 {lb}\ns_mov_b32 {s(sC)}, 1')
                left_ld(a)
                a.label(lb)
            if k == (mid - opt.get('midd', 6) if mid else 14) or (mid and k == mid): flag_ld(a)
        a('\n'.join(op_w_reads(W, nxt, 8, MB*ps)))
        lb = a.new('xa')
        a(f's_cmp_eq_u32 {s(sXa)}, 0\ns_cbranch_scc1 {lb}')
        for st in range(9):
            mfma(a, ACA[2], W + 72 + 4*st, O + 4*st, None if (ps == 0 and st == 0) else ACA[2])
            if ps == 0 and st: a('\n'.join(op_e_reads(W, Y, st - 1)))
        if ps == 0: a('\n'.join(op_e_reads(W, Y, 8)))
        a.label(lb)
    if opt.get('p4'): a.stamp(3)
    a('s_setprio 0')
    lds_wait(a, 2, C_W3, 4, sl=0)
    a(f's_mul_i32 {s(T0)}, {s(sW4)}, {WSTR}\ns_add_u32 {s(T0)}, {s(T0)}, {ARED}\nv_add_u32 v1, {s(T0)}, {v(v16)}')
    for q in range(8): a(f'ds_write_b128 v1, {v(ACA[0]+4*q,4)} offset:{QS*q}')
    a(f's_cmp_eq_u32 {s(sXa)}, 0\ns_cbranch_scc1 L_anx\ns_mul_i32 {s(T0)}, {s(sMG)}, {4*QS}\ns_add_u32 {s(T0)}, {s(T0)}, {EXR}\nv_add_u32 v1, {s(T0)}, {v(v16)}')
    for q in range(4): a(f'ds_write_b128 v1, {v(ACA[2]+4*q,4)} offset:{QS*q}')
    a.label('L_anx')
    a.stamp(2)

HEADER = '''; Fused hedgehog linear attention (A) + softmax MHA (B), one persistent launch of 256 workgroups.
; kernarg: A_x A_wqkv A_w_phi A_wo B_x B_wqkv B_wo out debug ws (8-byte pointers, in that order)
; @launch grid=(256,1,1) block=(512,1,1) lds=%d
.amdgcn_target "amdgcn-amd-amdhsa--gfx950"
.text
.globl %s_kernel
.p2align 8
.type %s_kernel,@function
%s_kernel:
''' % (LDS_BYTES, NAME, NAME, NAME)
FOOTER = '''.section .rodata,"a"
.p2align 6
.amdhsa_kernel %s_kernel
  .amdhsa_next_free_vgpr 256
  .amdhsa_next_free_sgpr 102
  .amdhsa_accum_offset 256
  .amdhsa_group_segment_fixed_size 0
  .amdhsa_kernarg_size 80
  .amdhsa_user_sgpr_count 2
  .amdhsa_user_sgpr_kernarg_segment_ptr 1
  .amdhsa_system_sgpr_workgroup_id_x 1
.end_amdhsa_kernel
''' % NAME

OPT = {}
def generate(diag=False, **opt):
    opt = {**dict(rot=0, thr=3, sig=12, ldp=1, qlo=3, w1=2, prio2=1, mid=0, ob2=0, phij=-1), **opt}
    OPT.clear(); OPT.update(opt)
    a = Asm(diag)
    prologue(a, opt)
    a_chain(a, opt)
    final(a)
    body = a.text()
    bad = lint(body)
    for x in bad: print(f"HAZARD line {x[0]} -> {x[1]}: {x[2]} need {x[3]} have {x[4]}\n    {x[5]}\n    {x[6]}", file=sys.stderr)
    return HEADER + (f'    ; stamps={STAMPS + (opt.get("wsoff", 0) << 20):#x}\n' if diag else '') + body + FOOTER, len(bad)

if __name__ == '__main__':
    import argparse
    ap = argparse.ArgumentParser()
    ap.add_argument('-o', default=f'cdna_kernels/{NAME}.s')
    ap.add_argument('--diag', action='store_true')
    ap.add_argument('--opt', action='append', default=[])
    g = ap.parse_args()
    opt = {}
    for o in g.opt:
        k, val = o.split('='); opt[k] = int(val)
    text, nbad = generate(g.diag, **opt)
    open(g.o, 'w').write(text)
    print(f'wrote {g.o}: {len(text)} bytes, {nbad} hazards')
```

```python
import sys, struct
from lint import lint

NAME = 'concat_heads__linear_kernel_hedgehog__softmax_full_mha__prompt'
OOB = 0x40000000
QM, QL, KV = 0x0, 0x200000, 0x240000
REC = 2560; HREC = 64 * REC
VLOFF, ONEOFF, KLOFF = 2048, 2176, 2304
AOFF = 0x740000
OAM, OAL, OBM, OBL = 0xE80000, 0x1080000, 0x10C0000, 0x12C0000
KVP = 0x1300000; KVPS = 4608
FL1, FL1A, FL2, FL3, FL4 = 0x1420000, 0x1428000, 0x1430000, 0x1440000, 0x1460000
EPOCH = 0x1438000
STAMPS = 0x1500000
WS_BYTES = 0x1800000
XA = 0
WS0 = 28672
MB, EB = 18432, 9216
M_A, X_A, M_C, LATE = WS0, WS0 + 2*MB, WS0 + 2*MB + 2*EB, WS0 + 3*MB + 2*EB
PHS = LATE
EAX = 131072
CNT = LATE + 3*MB
KVF = CNT + 256
LDS_BYTES = 163840
C_F1, C_F1A, C_KVX, C_F2, C_KVF, C_F3, C_OPA, C_F4, C_BAD, C_W1, C_TOK, C_G, C_W3, C_WB = [4 * i for i in range(14)]
sBX, sBW, sAX, sAW, sPHI, sAWO, sBWO, sOUT, sDBG, sWS = 4, 8, 12, 16, 20, 24, 28, 32, 36, 40
sWave, sCT, sRT, sH = 44, 45, 46, 47
T0, T1, T2, T3, T4, T5, T6, T7 = range(48, 56)
sTab, sS0, sDoSc, sIdle = 64, 65, 66, 67
sQB, sRot, sFree, sOT, sOC, sTok, sLoc, sXcd = 68, 69, 70, 71, 72, 73, 74, 75
sHA, sRB = sH, sQB
sSpin, sTH, sMG, sTile = 76, 77, 78, 79
SSTAMP = 80
sW4, sImg, sXB, sWB, sLh2, sLt2 = 96, 97, 98, 99, 100, 101
v16, vQL, vCnt, vOne, vZero, vPoll, vTok = 244, 245, 246, 247, 248, 249, 250
vVf = 252
EA, ES = 72, 84
vWO = 224
vX, vW, XAc, WAc, XAr, WAr, vTab = 228, 232, 24, 28, 32, 36, 39
ACC = {('a', 0): 96, ('a', 1): 112, ('b', 0): 128, ('b', 1): 144}
FS = [176, 192, 40, 56]
def m_of(sl): return 9*(sl >> 2) + 2*(sl & 1) + 5*((sl >> 1) & 1)
def ct_table(ct):
    lo = 32*ct; s0 = next(x for x in range(200) if m_of(x) >= lo)
    used = {m_of(x) + d for x in range(s0, s0 + 12) for d in (0, 1)}
    misc = [m - lo for m in range(lo, lo + 32) if m not in used]
    assert misc[4:] == [28, 29, 30, 31]
    return sum(c << (5*i) for i, c in enumerate(misc[:4])) | (s0 << 20)

LOG2E = 1.4426950408889634
def f2u(x): return struct.unpack('<I', struct.pack('<f', x))[0]
QSCALE = f2u(18 ** -0.5 * LOG2E)

def v(a, n=1): return f'v{a}' if n == 1 else f'v[{a}:{a+n-1}]'
def s(a, n=1): return f's{a}' if n == 1 else f's[{a}:{a+n-1}]'
def srd(a): return s(a, 4)

import re
def unpack(x):
    m = re.match(r'v_pk_(add_f32|mul_f32|mov_b32) ([vs])\[(\d+):\d+\], ([vs])\[(\d+):\d+\], ([vs])\[(\d+):\d+\](.*)', x)
    op, _, d, k0, a0, k1, a1, mod = m.groups(); d, a0, a1 = int(d), int(a0), int(a1); mod = mod.strip()
    if op == 'mov_b32':
        assert mod == 'op_sel:[0,1]'
        return [f'v_mov_b32 v{d}, v{a0}', f'v_mov_b32 v{d+1}, v{a1+1}']
    assert mod in ('', 'op_sel_hi:[1,0]') and k0 == 'v'
    h = 0 if mod else 1
    return [f'v_{op} v{d}, {k1}{a1}, v{a0}', f'v_{op} v{d+1}, {k1}{a1+h}, v{a0+1}']

class Asm:
    def __init__(self, diag=False):
        self.L = []; self.uid = 0; self.diag = diag; self.lock = False; self.nopk = False; self.late = []; self.early = []
    def __call__(self, t):
        for x in t.split('\n'):
            x = x.strip()
            if not x: continue
            if self.nopk and x.startswith('v_pk_'): self.L += ['    ' + y for y in unpack(x)]
            else: self.L.append('    ' + x)
    def label(self, n): self.L.append(n + ':')
    def c(self, t): self.L.append('    ; ' + t)
    def new(self, p):
        self.uid += 1; return f'L_{p}{self.uid}'
    def nop(self, n):
        while n > 0:
            k = min(n, 16); self(f's_nop {k-1}'); n -= k
    def stamp(self, k):
        if self.diag and not self.lock:
            self(f's_memrealtime {s(94,2)}\ns_waitcnt lgkmcnt(0)\ns_mov_b32 {s(SSTAMP+k)}, s94')
    def lstamp(self, sreg, base=0):
        if self.diag:
            self(f's_memrealtime s[94:95]\ns_add_u32 s95, {sreg}, {base}\ns_mov_b32 s93, s95\ns_waitcnt lgkmcnt(0)\nv_writelane_b32 v243, s94, s93'.replace('s_add_u32 s95', 's_add_u32 s93').replace('s_mov_b32 s93, s95\n', '').replace('v_writelane_b32 v243, s94, s93', 's_mov_b32 m0, s93\nv_writelane_b32 v243, s94, m0'))
    def cyc0(self):
        if self.diag: self('s_memtime s[94:95]\ns_waitcnt lgkmcnt(0)\ns_mov_b32 s93, s94')
    def cyc1(self):
        if self.diag: self('s_memtime s[94:95]\ns_waitcnt lgkmcnt(0)\ns_sub_u32 s93, s94, s93')
    def text(self): return '\n'.join(self.L) + '\n'

class VM:
    def __init__(self): self.q = []
    def add(self, tag, n=1): self.q += [tag] * n
    def after(self, tag):
        i = max(k for k, t in enumerate(self.q) if t == tag)
        return len(self.q) - 1 - i

def mfma_s(d, x, y, c=None, kind='16'):
    op = {'16': 'v_mfma_f32_32x32x16_bf16', '8': 'v_mfma_f32_32x32x8_bf16', '2b': 'v_mfma_f32_32x32x4_2b_bf16'}[kind]
    nd = 32 if kind == '2b' else 16; na = 4 if kind == '16' else 2
    return f'{op} {v(d,nd)}, {v(x,na)}, {v(y,na)}, {"0" if c is None else v(c,nd)}'
def mfma(a, *k, **kw): a(mfma_s(*k, **kw))

def opol(k): return ['', ' sc1', ' nt', ' sc0 sc1', ' sc1 nt'][OPT.get(k, 0)]

def cvt8(a, src, dst):
    for i in range(4): a(f'v_cvt_pk_bf16_f32 {v(dst+i)}, {v(src+2*i)}, {v(src+2*i+1)}')

SRDS = {sAX: (0, 2048*1152), sAW: (8, 576*3456), sPHI: (16, 32*648), sAWO: (24, 576*1152), sBX: (32, 2048*1152),
        sBW: (40, 576*3456), sBWO: (48, 576*1152), sOUT: (56, 2048*2304), sDBG: (64, 256), sWS: (72, WS_BYTES)}
def ld_srd(a, rs):
    for r in rs: a(f's_load_dwordx2 {s(r,2)}, s[0:1], {SRDS[r][0]}')
def mk_srd(a, rs):
    for r in rs:
        if r == sWS and OPT.get('wsoff'): a(f's_waitcnt lgkmcnt(0)\ns_add_u32 {s(r)}, {s(r)}, {OPT["wsoff"] << 20:#x}\ns_addc_u32 {s(r+1)}, {s(r+1)}, 0')
    for r in rs: a(f's_mov_b32 {s(r+2)}, {SRDS[r][1]:#x}\ns_mov_b32 {s(r+3)}, 0x20000')

def spin_tail(a, top, sl=1):
    a((f's_sleep {sl}\n' if sl else '') + f's_sub_u32 {s(sSpin)}, {s(sSpin)}, 1\ns_cbranch_scc0 {top}\ns_endpgm')

def token_issue(a):
    a(f'buffer_load_dwordx2 {v(vTok,2)}, {v(vZero)}, {srd(sDBG)}, 0 offen sc1')
def token_check(a):
    top = a.new('tok'); done = a.new('tokd')
    a.label(top)
    a(f'v_readfirstlane_b32 {s(T0)}, {v(vTok+1)}\nv_readfirstlane_b32 {s(sTok)}, {v(vTok)}\ns_cmp_lg_u32 {s(T0)}, 0\ns_cbranch_scc1 {done}')
    token_issue(a)
    a('s_waitcnt vmcnt(0)')
    spin_tail(a, top)
    a.label(done)

def poll_flags(a, vaddr, vt, preloaded=False, sl=1):
    top = a.new('poll'); done = a.new('polld'); chk = a.new('pollc')
    if preloaded: a(f's_branch {chk}')
    a.label(top)
    a(f'buffer_load_dword {v(vt)}, {v(vaddr)}, {srd(sWS)}, 0 offen sc1\ns_waitcnt vmcnt(0)')
    a.label(chk)
    a(f'v_cmp_ne_u32 vcc, {s(sTok)}, {v(vt)}\ns_cbranch_vccz {done}')
    spin_tail(a, top, sl)
    a.label(done)

def last_signals(a, vt, ctr, n, sflag):
    skip = a.new('nsig')
    a(f's_mov_b64 exec, 1\nds_add_rtn_u32 {v(vt)}, {v(vCnt)}, {v(vOne)} offset:{ctr}\ns_waitcnt lgkmcnt(0)')
    a(f'v_readfirstlane_b32 {s(T0)}, {v(vt)}\nv_mov_b32 {v(vt)}, {s(sflag)}\nv_mov_b32 {v(vt+1)}, {s(sTok)}\ns_cmp_lg_u32 {s(T0)}, {n-1}\ns_cbranch_scc1 {skip}')
    a(f'buffer_store_dword {v(vt+1)}, {v(vt)}, {srd(sWS)}, 0 offen sc1')
    a.label(skip)
    a('s_mov_b64 exec, -1')

def wave_signals(a, vt, sflag):
    a(f'v_mov_b32 {v(vt)}, {s(sflag)}\nv_mov_b32 {v(vt+1)}, {s(sTok)}\ns_waitcnt vmcnt(0)\ns_mov_b64 exec, 1')
    a(f'buffer_store_dword {v(vt+1)}, {v(vt)}, {srd(sWS)}, 0 offen sc1\ns_mov_b64 exec, -1')

def lds_arrive(a, ctr):
    a(f's_mov_b64 exec, 1\nds_add_u32 {v(vCnt)}, {v(vOne)} offset:{ctr}\ns_mov_b64 exec, -1')

def lds_wait(a, vt, ctr, n, sl=2):
    top = a.new('lw'); done = a.new('lwd')
    a.label(top)
    a(f'ds_read_b32 {v(vt)}, {v(vCnt)} offset:{ctr}\ns_waitcnt lgkmcnt(0)\nv_readfirstlane_b32 {s(T0)}, {v(vt)}\ns_cmp_ge_u32 {s(T0)}, {n}\ns_cbranch_scc1 {done}')
    spin_tail(a, top, sl)
    a.label(done)

def flag_addr(a, dst, shi, slo, sh, base):
    a(f's_lshl_b32 {s(dst)}, {s(shi)}, {sh}\ns_add_u32 {s(dst)}, {s(dst)}, {s(slo)}\ns_lshl_b32 {s(dst)}, {s(dst)}, 7\ns_add_u32 {s(dst)}, {s(dst)}, {base:#x}')

def kl_const(a, dst, shead):
    a(f's_bitcmp1_b32 {s(shead)}, 0\ns_mov_b32 {s(dst)}, {HREC + KLOFF}\ns_cselect_b32 {s(dst)}, {KLOFF + 4}, {s(dst)}')

def producer_ct(a, d, ty, last, shead, t):
    a(f'''s_lshr_b32 {s(T0)}, {s(shead)}, 1
    s_mul_i32 {s(T0)}, {s(T0)}, 36
    s_and_b32 {s(T1)}, {s(shead)}, 1
    s_lshl_b32 {s(T1)}, {s(T1)}, 4
    s_add_u32 {s(T0)}, {s(T0)}, {s(T1)}
    v_mul_u32_u24 {v(d)}, 576, {v(ty)}
    v_mul_u32_u24 {v(t)}, 19, {v(last)}
    v_add3_u32 {v(d)}, {v(d)}, {v(t)}, {s(T0)}
    v_lshrrev_b32 {v(d)}, 7, {v(d)}''')

def issue_chunk(a, j):
    if OPT.get('nodma') and j > 1: return
    slot = (j % 4) * 32768; c = j % 9
    if OPT.get('samek'): c = 0
    X, W = (sBX, sBW) if j < 9 else (sAX, sAW)
    nx = ' nt' if OPT.get('nt', 0) & 1 else ''; nw = ' nt' if OPT.get('nt', 0) & 2 else ''
    if OPT.get('rot', 0):
        a(f'''s_add_u32 vcc_lo, {s(sRot)}, {c}
        s_cmp_ge_u32 vcc_lo, 9
        s_cselect_b32 vcc_hi, 9, 0
        s_sub_u32 vcc_lo, vcc_lo, vcc_hi
        s_mul_i32 vcc_hi, vcc_lo, {64*3456}
        s_add_u32 vcc_hi, vcc_hi, {s(sWB)}
        s_lshl_b32 vcc_lo, vcc_lo, 7
        s_add_u32 vcc_lo, vcc_lo, {s(sXB)}
        s_lshl_b32 s3, {s(sW4)}, 12
        s_add_u32 m0, s3, {slot}
        s_nop 0''')
    else:
        a(f's_lshl_b32 s3, {s(sW4)}, 12\ns_add_u32 m0, s3, {slot}\ns_add_u32 vcc_lo, {s(sXB)}, {128*c}\ns_add_u32 vcc_hi, {s(sWB)}, {64*3456*c}')
    for i in range(4): a(f'buffer_load_dwordx4 {v(vX+i)}, {srd(X)}, vcc_lo offen offset:{1024*i}{nx} lds')
    a(f's_add_u32 m0, s3, {slot + 16384}\ns_nop 0')
    for i in range(4): a(f'buffer_load_dwordx4 {v(vW+i)}, {srd(W)}, vcc_hi offen offset:{1024*i}{nw} lds')

def su_loader(a):
    a.c('loader lane offsets: x rows (xor-swizzled 16-byte pieces), w rows (16 pieces, rotated by four per row)')
    a(f'''v_lshrrev_b32 v1, 3, v0
    v_and_b32 v2, 7, v0
    v_lshrrev_b32 v3, 1, v1
    v_xor_b32 v2, v2, v3
    v_mul_u32_u24 v1, 1152, v1
    v_lshl_add_u32 {v(vX)}, v2, 4, v1
    v_xor_b32 v2, 4, v2
    v_lshl_add_u32 {v(vX+1)}, v2, 4, v1
    v_add_u32 {v(vX+1)}, {8*1152-1024}, {v(vX+1)}
    v_add_u32 {v(vX+2)}, {2*(8*1152-1024)}, {v(vX)}
    v_add_u32 {v(vX+3)}, {2*(8*1152-1024)}, {v(vX+1)}
    v_lshrrev_b32 v1, 4, v0
    v_lshlrev_b32 v2, 2, v1
    v_sub_u32 v2, v0, v2
    v_and_b32 v2, 15, v2
    v_mul_u32_u24 v1, 3456, v1
    v_lshl_add_u32 v5, v2, 4, v1
    s_cmp_eq_u32 {s(sCT)}, 13
    s_cselect_b32 s3, 8, 16
    v_cmp_gt_u32 vcc, s3, v2
    v_mov_b32 v7, {OOB:#x}
    s_nop 0
    v_cndmask_b32 {v(vW)}, v7, v5, vcc''')
    for i in range(1, 4): a(f'v_add_u32 {v(vW+i)}, {i*(4*3456-1024)}, {v(vW)}')
    su_loader_s(a)

def su_loader_s(a):
    a(f'''s_lshl_b32 {s(sXB)}, {s(sRT)}, 2
    s_add_u32 {s(sXB)}, {s(sXB)}, {s(sW4)}
    s_mul_i32 {s(sXB)}, {s(sXB)}, {32*1152}
    s_mul_i32 {s(sWB)}, {s(sW4)}, {16*3456}
    s_lshl_b32 s3, {s(sCT)}, 8
    s_add_u32 {s(sWB)}, {s(sWB)}, s3''')

def su_ids2(a):
    a(f'''s_lshl_b32 s3, {s(sXcd)}, 2
    s_and_b32 {s(sH)}, {s(sLoc)}, 3
    s_add_u32 {s(sH)}, {s(sH)}, s3
    s_lshr_b32 {s(sQB)}, {s(sLoc)}, 2
    s_lshr_b32 {s(sOT)}, {s(sLoc)}, 3
    s_add_u32 {s(sOT)}, {s(sOT)}, s3
    s_and_b32 {s(sOC)}, {s(sLoc)}, 7
    s_mov_b32 {s(sSpin)}, 0x40000
    s_and_b32 {s(sTH)}, {s(sWave)}, 1
    s_lshr_b32 {s(sMG)}, {s(sW4)}, 1
    s_cmp_lt_u32 {s(sWave)}, 4
    s_cselect_b32 {s(sImg)}, 0, {AOFF:#x}
    v_mov_b32 {v(vZero)}, 0
    v_mov_b32 {v(vCnt)}, {CNT}
    v_mov_b32 {v(vOne)}, 1''')

def su_token(a, part):
    lb = a.new('notok')
    a(f's_or_b32 s3, s2, {s(sWave)}\ns_cmp_lg_u32 s3, 0\ns_cbranch_scc1 {lb}\ns_mov_b32 {s(T0)}, {EPOCH:#x}')
    if part == 0:
        a(f'buffer_load_dword v10, {v(vZero)}, {srd(sWS)}, {s(T0)} offen sc1')
    else:
        a(f'''s_mov_b32 {s(T1)}, 1664525
        s_waitcnt vmcnt(0)
        v_mul_lo_u32 v6, v10, {s(T1)}
        v_add_u32 v6, 0x3c6ef35f, v6
        v_mov_b32 v7, 1
        s_mov_b64 exec, 1
        buffer_store_dwordx2 v[6:7], {v(vZero)}, {srd(sDBG)}, 0 offen sc1
        buffer_store_dword v6, {v(vZero)}, {srd(sWS)}, {s(T0)} offen sc1
        s_mov_b64 exec, -1''')
    a.label(lb)
    if part == 0:
        a(f's_cmp_lg_u32 {s(sWave)}, 1\ns_cbranch_scc1 L_nocnt\nv_lshlrev_b32 v1, 2, v0\nv_add_u32 v1, {CNT}, v1\nds_write_b32 v1, {v(vZero)}')
        a.label('L_nocnt')

def su_gaddr(a):
    lb = a.new('mg0')
    a.c('gemm fragment addresses')
    a(f'''v_and_b32 v1, 31, v0
    v_lshrrev_b32 v2, 5, v0
    v_bfe_u32 v3, v0, 1, 3
    v_xor_b32 v3, v3, v2
    s_lshl_b32 s3, {s(sTH)}, 13
    v_lshl_add_u32 v4, v1, 7, s3''')
    for k in range(4):
        a(f'v_xor_b32 v5, {2*k}, v3\nv_lshl_add_u32 {v(XAc+k)}, v5, 4, v4')
    a.c('which four-column chunk each lane group reads for the two 32-column tiles of this wave')
    a(f'''v_bfe_u32 v3, v0, 2, 2
    v_and_b32 v4, 3, v0
    v_bfe_u32 v5, v0, 4, 1
    v_lshl_add_u32 v4, v5, 2, v4
    v_lshl_add_u32 v5, v2, 3, v3
    v_lshlrev_b32 v5, 8, v5
    v_add_u32 v5, 16384, v5
    v_lshlrev_b32 v3, 2, v3
    s_lshl_b32 s3, {s(sMG)}, 4''')
    for u in range(2): a(f'v_add_u32 {v(WAc+u)}, s3, v4' + (f'\nv_add_u32 {v(WAc+u)}, 8, {v(WAc+u)}' if u else ''))
    a(f's_cmp_ge_u32 {s(sCT)}, 9\ns_cbranch_scc1 {lb}')
    a(f'''v_lshrrev_b32 v6, 2, v4
    v_and_b32 v7, 1, v4
    v_lshl_add_u32 v6, v6, 1, v7
    s_lshl_b32 s3, {s(sMG)}, 3
    s_add_u32 s3, s3, {s(sS0)}
    v_add_u32 v6, s3, v6
    v_lshrrev_b32 v7, 2, v6
    v_mul_u32_u24 v7, 9, v7
    v_and_b32 v1, 1, v6
    v_lshl_add_u32 v7, v1, 1, v7
    v_bfe_u32 v1, v6, 1, 1
    v_mul_u32_u24 v1, 5, v1
    v_bfe_u32 v6, v4, 1, 1
    v_add3_u32 v7, v7, v1, v6
    s_lshl_b32 s3, {s(sCT)}, 5
    v_subrev_u32 {v(WAc)}, s3, v7
    v_add_u32 {v(WAc+1)}, 9, {v(WAc)}
    s_cmp_eq_u32 {s(sMG)}, 0
    s_cbranch_scc1 {lb}''')
    misc_chunk(a, WAc+1, 4, 6)
    a.label(lb)
    for u in range(2):
        a(f'''v_lshrrev_b32 v6, 1, {v(WAc+u)}
        v_add_u32 v6, v6, v3
        v_and_b32 v6, 15, v6
        v_lshl_add_u32 v6, v6, 4, v5
        v_and_b32 {v(WAc+u)}, 1, {v(WAc+u)}
        v_lshl_add_u32 {v(WAc+u)}, {v(WAc+u)}, 3, v6''')

def misc_chunk(a, d, c8, t):
    a(f'''v_mul_u32_u24 {v(t)}, 5, {v(c8)}
    v_lshrrev_b32 {v(t)}, {v(t)}, {v(vTab)}
    v_and_b32 {v(t)}, 31, {v(t)}
    v_cmp_gt_u32 vcc, 4, {v(c8)}
    v_add_u32 {v(d)}, 24, {v(c8)}
    s_nop 0
    v_cndmask_b32 {v(d)}, {v(d)}, {v(t)}, vcc''')

def su_tab(a):
    a(f's_mov_b32 {s(sTab)}, {ct_table(0):#x}')
    for ct in range(1, 9): a(f's_cmp_eq_u32 {s(sCT)}, {ct}\ns_cselect_b32 {s(sTab)}, {ct_table(ct):#x}, {s(sTab)}')
    a(f'''s_lshr_b32 {s(sS0)}, {s(sTab)}, 20
    v_mov_b32 {v(vTab)}, {s(sTab)}
    s_lshl_b32 {s(sTile)}, {s(sRT)}, 2
    s_lshl_b32 s3, {s(sTH)}, 1
    s_add_u32 {s(sTile)}, {s(sTile)}, s3
    s_cmp_le_u32 {s(sCT)}, 4
    s_cselect_b32 {s(sDoSc)}, 1, 0
    s_cmp_eq_u32 {s(sImg)}, 0
    s_cselect_b32 {s(sDoSc)}, {s(sDoSc)}, 0
    s_cmp_ge_u32 {s(sLoc)}, 28
    s_cselect_b32 {s(sIdle)}, 1, 0
    v_lshlrev_b32 {v(v16)}, 4, v0
    v_lshlrev_b32 {v(vQL)}, 2, v0''')

def su_epi(a, o, stage=None):
    if stage == 1:
        for k in range(6):
            a(f'ds_bpermute_b32 {v(EA+2*k)}, v2, v6 offset:{8*k}\nds_bpermute_b32 {v(EA+2*k+1)}, v2, v7 offset:{8*k}\nds_bpermute_b32 {v(ES+k)}, v2, v9 offset:{8*k}')
        return
    if stage == 2:
        for k in range(6):
            a(f'''v_and_b32 v3, 31, {v(EA+2*k+1)}
            v_mad_u32_u24 {v(EA+2*k)}, v1, v3, {v(EA+2*k)}
            v_sub_u32 v3, {v(EA+2*k+1)}, v3
            v_add_u32 {v(EA+2*k+1)}, {v(EA+2*k)}, v3''')
        return
    a(f'v_and_b32 v1, 31, v0\nv_lshrrev_b32 v2, 5, v0\ns_mul_i32 {s(T1)}, {s(sTile)}, {REC}')
    if o == 'S':
        a(f's_add_u32 {s(T1)}, {s(T1)}, {KV:#x}\ns_sub_u32 {s(T2)}, {s(sCT)}, 9\ns_lshl_b32 {s(T2)}, {s(T2)}, 7')
        for u in range(2): su_epi_v(a, u)
        for r in range(EA + 5, EA + 12): a(f'v_mov_b32 {v(r)}, v7')
        return
    a.c('lane i < 12 works out where item i goes: a 16-byte slot (first chunk) or a single chunk of the mixed tile')
    a(f'''s_lshl_b32 s3, {s(sMG)}, 3
    s_add_u32 s3, s3, {s(sS0)}
    v_add_u32 v3, s3, v1
    v_lshrrev_b32 v4, 2, v3
    v_mul_u32_u24 v4, 9, v4
    v_and_b32 v5, 1, v3
    v_lshl_add_u32 v4, v5, 1, v4
    v_bfe_u32 v5, v3, 1, 1
    v_mad_u32_u24 v8, v5, 5, v4
    v_subrev_u32 v3, 4, v1''')
    misc_chunk(a, 4, 3, 5)
    a(f'''s_lshl_b32 {s(T4)}, {s(sCT)}, 5
    s_cmp_eq_u32 {s(sMG)}, 0
    s_cselect_b32 s3, 32, 4
    v_cmp_gt_u32 vcc, s3, v1
    v_add_u32 v4, {s(T4)}, v4
    s_add_u32 {s(T1)}, {s(T1)}, {(KV - 32*HREC) & 0xffffffff:#x}
    v_cndmask_b32 v4, v4, v8, vcc
    v_mul_u32_u24 v3, 7282, v4
    v_lshrrev_b32 v3, 16, v3
    v_mul_u32_u24 v5, 9, v3
    v_sub_u32 v8, v4, v5
    v_cmp_lt_u32 vcc, 4, v8
    v_lshlrev_b32 v3, 1, v3
    v_subrev_u32 v9, 5, v8
    v_addc_co_u32 v4, vcc, 0, v3, vcc
    v_min_u32 v9, v8, v9
    s_lshl_b32 {s(T0)}, {s(sTile)}, 10
    v_lshl_add_u32 v6, v4, 16, {s(T0)}
    v_mul_u32_u24 v5, {HREC}, v4
    v_cmp_gt_u32 vcc, 32, v4
    v_add_u32 v5, {s(T1)}, v5
    s_lshl_b32 {s(T2)}, {s(sTile)}, 8
    s_add_u32 {s(T2)}, {s(T2)}, {QL:#x}
    v_cndmask_b32 v6, v5, v6, vcc
    v_lshrrev_b32 v4, 1, v9
    v_lshl_add_u32 v6, v4, 9, v6
    v_and_b32 v4, 1, v9
    v_lshl_add_u32 v6, v4, 3, v6
    v_lshl_add_u32 v4, v3, 13, {s(T2)}
    v_mul_u32_u24 v5, {HREC}, v3
    s_add_u32 {s(T3)}, {s(T1)}, {HREC + KLOFF}
    v_add_u32 v5, {s(T3)}, v5
    v_mov_b32 v7, {REC + 16}
    v_mov_b32 v9, {1024 + 16}
    v_cndmask_b32 v4, v5, v4, vcc
    v_cndmask_b32 v7, v7, v9, vcc
    v_mov_b32 v5, {REC + 8}
    v_mov_b32 v9, {256 + 8}
    v_cndmask_b32 v5, v5, v9, vcc
    v_mov_b32 v9, {QSCALE:#x}
    v_cndmask_b32 v9, 1.0, v9, vcc
    v_cmp_eq_u32 vcc, 4, v8
    v_lshlrev_b32 v2, 2, v2
    s_nop 0
    v_cndmask_b32 v6, v6, v4, vcc
    v_cndmask_b32 v7, v7, v5, vcc''')

def su_epi_v(a, u):
    e = EA + 2*u
    a(f'''s_lshl_b32 s3, {s(sMG)}, 6
    s_add_u32 s3, s3, {s(T2)}
    s_add_u32 s3, s3, {32*u}
    v_add_u32 v3, s3, v1
    v_mul_u32_u24 v4, 3641, v3
    v_lshrrev_b32 v4, 16, v4
    v_mul_u32_u24 v5, 18, v4
    v_sub_u32 v3, v3, v5
    v_and_b32 v5, 1, v4
    v_lshlrev_b32 v5, 1, v5
    v_sub_u32 v3, v3, v5
    v_add_u32 v5, 18, v3
    v_min_u32 v3, v3, v5
    v_mul_u32_u24 v5, {HREC}, v4
    v_add_u32 v5, {s(T1)}, v5
    v_lshl_add_u32 v5, v3, 4, v5
    v_lshl_add_u32 v6, v2, 8, v5
    v_add_u32 v6, 1024, v6
    v_lshl_add_u32 v7, v2, 5, v5
    v_add_u32 v7, {VLOFF - 256}, v7
    v_cmp_gt_u32 vcc, 16, v3
    v_add_u32 v8, 512, v6
    v_add_u32 v9, 64, v7
    v_cndmask_b32 v6, v7, v6, vcc
    v_cndmask_b32 v8, v9, v8, vcc
    v_cmp_gt_u32 vcc, 32, v4
    v_mov_b32 v7, {OOB:#x}
    s_nop 0
    v_cndmask_b32 {v(e)}, v7, v6, vcc
    v_cndmask_b32 {v(e+1)}, v7, v8, vcc''')
    if u:
        a.c('the row of ones of every head whose first column is in this tile')
        a(f'''s_add_u32 s3, {s(T2)}, 17
        s_mul_i32 s3, s3, 3641
        s_lshr_b32 s3, s3, 16
        v_and_b32 v3, 7, v0
        v_add_u32 v3, s3, v3
        v_mul_u32_u24 v4, 18, v3
        s_add_u32 {s(T2)}, {s(T2)}, 128
        s_min_u32 {s(T2)}, {s(T2)}, 576
        v_cmp_gt_u32 vcc, {s(T2)}, v4
        v_cmp_gt_u32 {s(T4,2)}, 16, v0
        s_and_b64 vcc, vcc, {s(T4,2)}
        v_mul_u32_u24 v3, {HREC}, v3
        v_bfe_u32 v4, v0, 3, 1
        v_mul_u32_u24 v4, {REC}, v4
        v_add3_u32 v3, v3, v4, {s(T1)}
        v_add_u32 v3, {ONEOFF}, v3
        v_cndmask_b32 {v(EA+4)}, v7, v3, vcc''')

def su_vgat(a):
    a.c('V fragment gather offsets inside a key-tile record')
    a('v_and_b32 v1, 31, v0\nv_lshrrev_b32 v2, 5, v0')
    a(f'''v_lshlrev_b32 v3, 4, v1
    v_lshl_add_u32 v3, v2, 8, v3
    v_add_u32 v3, 1024, v3
    v_subrev_u32 v4, 16, v1
    v_lshlrev_b32 v5, 4, v4
    v_lshl_add_u32 v5, v2, 5, v5
    v_add_u32 v5, {VLOFF}, v5
    v_cmp_gt_u32 vcc, 2, v4
    v_add_u32 v6, 64, v5
    v_mov_b32 v7, {OOB:#x}
    v_cndmask_b32 v5, v7, v5, vcc
    v_cndmask_b32 v6, v7, v6, vcc
    v_and_b32 v4, 27, v1
    v_cmp_eq_u32 vcc, 18, v4
    v_mov_b32 v7, {ONEOFF}
    s_nop 0
    v_cndmask_b32 v5, v5, v7, vcc
    v_cndmask_b32 v6, v6, v7, vcc
    v_cmp_gt_u32 vcc, 16, v1
    v_add_u32 v4, 512, v3
    s_nop 0
    v_cndmask_b32 {v(vVf)}, v5, v3, vcc
    v_cndmask_b32 {v(vVf+1)}, v6, v4, vcc''')

def prefetch_a(a):
    if not OPT.get('pf', 1): return
    top = a.new('pf'); isw = a.new('pfw'); nxt = a.new('pfn')
    a(f'''s_sub_u32 {s(T0)}, {s(sLoc)}, 28
    s_lshl_b32 {s(T0)}, {s(T0)}, 3
    s_add_u32 {s(T0)}, {s(T0)}, {s(sWave)}
    v_mul_u32_u24 v1, 1152, v0
    v_mul_u32_u24 v2, 3456, v0
    s_lshr_b32 {s(T4)}, {s(sXcd)}, 1
    s_mul_i32 {s(T4)}, {s(T4)}, {512*1152}
    s_and_b32 {s(T5)}, {s(sXcd)}, 1
    s_mul_i32 {s(T5)}, {s(T5)}, {7*256}''')
    a.label(top)
    a(f'''s_mul_i32 {s(T1)}, {s(T0)}, 2979
    s_lshr_b32 {s(T1)}, {s(T1)}, 16
    s_mul_i32 {s(T2)}, {s(T1)}, 22
    s_sub_u32 {s(T2)}, {s(T0)}, {s(T2)}
    s_cmp_ge_u32 {s(T2)}, 8
    s_cbranch_scc1 {isw}
    s_mul_i32 {s(T2)}, {s(T2)}, {64*1152}
    s_lshl_b32 {s(T1)}, {s(T1)}, 7
    s_add_u32 {s(T2)}, {s(T2)}, {s(T1)}
    s_add_u32 {s(T2)}, {s(T2)}, {s(T4)}
    buffer_load_dword v3, v1, {srd(sAX)}, {s(T2)} offen
    s_branch {nxt}''')
    a.label(isw)
    a(f'''s_sub_u32 {s(T2)}, {s(T2)}, 8
    s_lshl_b32 {s(T2)}, {s(T2)}, 7
    s_mul_i32 {s(T1)}, {s(T1)}, {64*3456}
    s_add_u32 {s(T2)}, {s(T2)}, {s(T1)}
    s_add_u32 {s(T2)}, {s(T2)}, {s(T5)}
    buffer_load_dword v3, v2, {srd(sAW)}, {s(T2)} offen''')
    a.label(nxt)
    a(f's_add_u32 {s(T0)}, {s(T0)}, 32\ns_cmp_lt_u32 {s(T0)}, 198\ns_cbranch_scc1 {top}')

def prefetch_wo(a):
    if not OPT.get('pfo', 0): return
    top = a.new('pfo')
    a(f'''s_sub_u32 {s(T0)}, {s(sLoc)}, 28
    s_lshl_b32 {s(T0)}, {s(T0)}, 2
    s_add_u32 {s(T0)}, {s(T0)}, {s(sW4)}
    s_lshl_b32 {s(T0)}, {s(T0)}, 13
    v_lshlrev_b32 v1, 7, v0''')
    a.label(top)
    a(f'''buffer_load_dword v3, v1, {srd(sAWO)}, {s(T0)} offen
    buffer_load_dword v3, v1, {srd(sBWO)}, {s(T0)} offen
    s_add_u32 {s(T0)}, {s(T0)}, {16*8192}
    s_cmp_lt_u32 {s(T0)}, {576*1152}
    s_cbranch_scc1 {top}''')

def su_acc(a):
    for r in range(40, 72, 2): a(f'v_pk_mov_b32 {v(r,2)}, {v(vZero,2)}, {v(vZero,2)}')
    for d in ACC.values(): mfma(a, d, 40, 44, None)

def su_share(a, regs, put, first=0):
    a(f's_mul_i32 s3, {s(sW4)}, 6656\ns_add_u32 s3, s3, {EAX}\nv_add_u32 v1, s3, {v(v16)}')
    off = first
    for r, n in regs:
        if n == 4: a(f'ds_write_b128 v1, {v(r,4)} offset:{off}' if put else f'ds_read_b128 {v(r,4)}, v1 offset:{off}')
        off += 1024
SH_P = [(XAc, 4), (WAc, 4), (EA, 4), (EA+4, 4), (EA+8, 4)]
SH_L = [(EA, 4), (EA+4, 4), (EA+8, 4), (ES, 4), (ES+4, 4)]

def slot_addr(a):
    for k in range(4): a(f'v_add_u32 {v(XAr+k)}, {s(T6)}, {v(XAc+k)}')
    for w in range(2): a(f'v_add_u32 {v(WAr+w)}, {s(T6)}, {v(WAc+w)}')
    a(f's_add_u32 {s(T6)}, {s(T6)}, 0x8000\ns_and_b32 {s(T6)}, {s(T6)}, 0x1ffff')

def prologue(a, opt):
    a(f's_cmp_ge_u32 s2, 256\ns_cbranch_scc1 L_end')
    ld_srd(a, (sBX, sBW, sWS, sDBG, sAX, sAW))
    if a.diag:
        for k in range(2, 14): a(f's_mov_b32 {s(SSTAMP+k)}, 0')
    if a.diag or opt.get('padto') or opt.get('padA') or opt.get('padB'): a(f's_memrealtime {s(SSTAMP,2)}')
    if opt.get('ipf', 1):
        a.c('workgroups without a gemm tile pull this code towards L2 (one dword per 128-byte line)')
        a(f'''s_cmp_lt_u32 s2, 224
        s_cbranch_scc1 L_noipf
        s_getpc_b64 s[66:67]'''.replace('s[66:67]', 's[98:99]'))
        a.label('L_pc')
        a(f'''v_lshlrev_b32 v1, 7, v0
        v_cmp_gt_u32 vcc, L_end-L_pc, v1
        s_and_saveexec_b64 s[100:101], vcc
        s_cbranch_execz L_ipfx
        global_load_dword v254, v1, s[98:99]''')
        a.label('L_ipfx')
        a('s_mov_b64 exec, s[100:101]')
        a.label('L_noipf')
    a(f'v_lshrrev_b32 v1, 6, v0\nv_and_b32 v0, 63, v0\nv_readfirstlane_b32 {s(sWave)}, v1')
    a(f'''s_and_b32 {s(sXcd)}, s2, 7
    s_lshr_b32 {s(sLoc)}, s2, 3
    s_mul_i32 {s(sRT)}, {s(sLoc)}, 37
    s_lshr_b32 {s(sRT)}, {s(sRT)}, 8
    s_mul_i32 s3, {s(sRT)}, 7
    s_sub_u32 {s(sCT)}, {s(sLoc)}, s3
    s_add_u32 {s(sRot)}, {s(sCT)}, {s(sRT)}
    s_and_b32 s3, {s(sXcd)}, 1
    s_mul_i32 s3, s3, 7
    s_add_u32 {s(sCT)}, {s(sCT)}, s3
    s_lshr_b32 s3, {s(sXcd)}, 1
    s_lshl_b32 s3, s3, 2
    s_add_u32 {s(sRT)}, {s(sRT)}, s3
    s_and_b32 {s(sW4)}, {s(sWave)}, 3''')
    r = opt.get('rot', 0)
    if r == 2:
        a(f's_mul_i32 s3, {s(sRot)}, 86\ns_lshr_b32 s3, s3, 8\ns_mul_i32 s3, s3, 3\ns_sub_u32 {s(sRot)}, {s(sRot)}, s3\ns_mul_i32 {s(sRot)}, {s(sRot)}, 3')
    elif r == 4:
        a(f's_and_b32 {s(sRot)}, {s(sRot)}, 3')
    elif r == 3:
        a(f's_and_b32 {s(sRot)}, {s(sRot)}, 1\ns_lshl_b32 {s(sRot)}, {s(sRot)}, 2')
    su_ids2(a)
    su_loader(a)
    mk_srd(a, (sBX, sBW))
    a(f's_cmp_eq_u32 {s(sImg)}, 0\ns_cbranch_scc1 L_pset')
    vm = VM()
    a(f's_setprio 1\ns_waitcnt lgkmcnt(0)\ns_cmp_ge_u32 {s(sLoc)}, 28\ns_cbranch_scc1 L_lset')
    for j in range(3 if opt.get('sw', 9) < 0 else 2): issue_chunk(a, j); vm.add(j, 8)
    a('s_branch L_lset')
    p_setup(a, opt)
    a('s_branch L_gemm')
    for f in a.early: f()
    a.lock = bool(opt.get('p1'))
    gemm(a, opt)
    a.lock = False
    p_path(a, opt)
    a.label('L_pidle0')
    prefetch_a(a)
    a(f's_waitcnt vmcnt(0) lgkmcnt(0)\ns_barrier\ns_barrier\nds_read_b32 {v(vTok)}, {v(vCnt)} offset:{C_TOK}\ns_branch L_ppath')
    a.label('L_lset')
    a.c('================= waves 4-7: load the B tile =================')
    ld_srd(a, (sPHI, sAWO, sBWO, sOUT))
    mk_srd(a, (sAX, sAW, sPHI, sAWO, sBWO, sOUT, sDBG, sWS))
    su_tab(a)
    a('s_waitcnt lgkmcnt(0)')
    a.stamp(1)
    a(f's_cmp_lg_u32 {s(sIdle)}, 0\ns_cbranch_scc1 L_lidle')
    if opt.get('phij', 3) < 0: a_setup(a, 0); vm.add('phi', 10)
    for j in range(9):
        a(f's_waitcnt vmcnt({vm.after(j)})')
        if opt.get('p1') == 1: a.stamp(3 + j)
        a('s_barrier')
        if opt.get('p1') == 2: a.stamp(3 + j)
        if opt.get('p1') == 2 and j == 0: a.cyc0()
        if opt.get('p1') == 2 and j == 8: a.cyc1()
        sw = opt.get('sw', 9)
        for c in ([j + 2] if j < sw else [j + 2, j + 3] if j == sw else [j + 3]):
            issue_chunk(a, c); vm.add(c, 8)
            if c == 9: token_issue(a); vm.add('tok')
        if j == 0: su_vgat(a)
        if j == 1: su_share(a, SH_P, False)
        if j == 2:
            a('s_waitcnt lgkmcnt(0)')
            for r in range(EA, EA + 12): a(f'v_add_u32 {v(r)}, {AOFF:#x}, {v(r)}')
        if j == opt.get('phij', 3): a_setup(a, 0); vm.add('phi', 10)
        if j in (4, 5, 6): a_setup(a, j - 3)
        if j == 7: assert vm.after('phi') >= 24; a_setup(a, 4)
    a(f's_waitcnt vmcnt({vm.after("tok")})')
    token_check(a)
    a(f'ds_write_b32 {v(vCnt)}, {v(vTok)} offset:{C_TOK}\ns_mov_b32 {s(T6)}, {(9 % 4) * 32768}\ns_waitcnt lgkmcnt(0)')
    a(f's_setprio {opt.get("prio", 1)}')
    a.stamp(2)
    if opt.get('p1'): a.lock = True
    slot_addr(a)
    a(f's_mov_b32 {s(T7)}, 9\ns_mov_b32 {s(T5)}, {8 if opt.get("cs") else 0}\ns_barrier')
    if sw == 9: issue_chunk(a, 11)
    a(f's_cmp_ge_u32 {s(sCT)}, 9\ns_cbranch_scc1 L_gS0\ns_branch L_gN0')
    a.label('L_lidle')
    a.c('four workgroups per group of 32 have no gemm tile')
    prefetch_a(a)
    a('s_waitcnt vmcnt(0)')
    prefetch_wo(a)
    a('s_waitcnt vmcnt(0)')
    su_vgat(a)
    for p in range(4): a_setup(a, p)
    token_issue(a)
    a('s_waitcnt vmcnt(0)')
    a_setup(a, 4)
    token_check(a)
    a(f's_barrier\nds_write_b32 {v(vCnt)}, {v(vTok)} offset:{C_TOK}\ns_setprio {opt.get("prio", 1)}\ns_waitcnt lgkmcnt(0)\ns_barrier\ns_branch L_achain')

def p_setup(a, opt):
    a.label('L_pset')
    a.c('================= waves 0-3: set-up =================')
    su_tab(a); su_gaddr(a)
    a('s_waitcnt lgkmcnt(0)')
    ld_srd(a, (sOUT,))
    mk_srd(a, (sWS, sDBG, sAX, sAW, sOUT))
    su_token(a, 0)
    a(f's_cmp_lg_u32 {s(sIdle)}, 0\ns_cbranch_scc1 L_pidle0')
    a(f's_waitcnt lgkmcnt(0)\ns_cmp_ge_u32 {s(sCT)}, 9\ns_cbranch_scc1 L_epiS')
    su_epi(a, 'N'); su_epi(a, 'N', 1); a('s_waitcnt lgkmcnt(0)'); su_epi(a, 'N', 2)
    a.label('L_epiD')
    def epi_s():
        a.label('L_epiS'); su_epi(a, 'S'); a('s_branch L_epiD')
    a.early.append(epi_s)
    su_share(a, SH_P, True)
    su_token(a, 1)
    a(f's_waitcnt lgkmcnt(0)\ns_mov_b32 {s(T6)}, 0')
    a.stamp(1)
    if a.diag: a('s_mov_b32 s82, 0')

def gemm(a, opt):
    sSlot, sIt, sCnt = T6, T7, T5
    a.label('L_gemm')
    a.c('================= qkv gemm (waves 0-3: B, waves 4-7: A) =================')
    slot_addr(a)
    a(f's_mov_b32 {s(sIt)}, 9\ns_mov_b32 {s(sCnt)}, 0\ns_cmp_ge_u32 {s(sCT)}, 9\ns_barrier\ns_cbranch_scc1 L_gS0')
    def mid():
        lb = a.new('mid')
        a(f's_cmp_lg_u32 {s(sImg)}, 0\ns_cbranch_scc1 {lb}')
        if opt.get('cs'): lds_wait(a, 1, C_G, 4, sl=0)
        else: a('s_barrier')
        issue_chunk(a, 13)
        a.label(lb)
    def loop(o):
        def reads(k):
            F = FS[k]
            rd = lambda w, j: f'ds_read_b64_tr_b16 {v(F+8+4*w+2*j,2)}, {v(WAr+w)} offset:{4096*k+1024*j}'
            rx = lambda tt: f'ds_read_b128 {v(F+4*tt,4)}, {v(XAr+k)} offset:{4096*tt}'
            if opt.get('nord'): return ['s_nop 0'] * 6
            return [rd(0, 0), rd(0, 1), rx(0), rx(1), rd(1, 0), rd(1, 1)]
        def mms(k, first=False):
            m = []
            for w, nm in enumerate('ab'):
                for tt in range(2):
                    x, wf = FS[k]+4*tt, FS[k]+8+4*w
                    c = None if first else ACC[(nm, tt)]
                    m.append(mfma_s(ACC[(nm, tt)], wf, x, c) if o == 'N' else mfma_s(ACC[(nm, tt)], x, wf, c))
            if opt.get('nomm'): m = ['s_nop 0'] * 4
            if opt.get('m16'):
                def two(x, i0):
                    g = re.match(r'\S+ v\[(\d+):\d+\], (\S+), (\S+), ', x); d = int(g.group(1))
                    return '\n'.join(f'v_mfma_f32_16x16x32_bf16 {v(d+4*i,4)}, {g.group(2)}, {g.group(3)}, {v(d+4*i,4)}' for i in (i0, i0+1))
                m = [two(x, 2*(k & 1)) for x in m]
            return m
        def grp(km, kr, wait=None, x1=None, x2=None, first=False, fill=None):
            m = mms(km, first); r = reads(kr)
            if fill is not None:
                def take(n):
                    out = []
                    while fill and (len(out) < n or out[-1].startswith('s_cmp') or out[-1].startswith('s_cselect_b32 s3')): out.append(fill.pop(0))
                    return '\n'.join(out)
                m = [x + '\n' + take(k) for x, k in zip(m, (3, 3, 6, 6))]
            if wait is not None: a(f's_waitcnt lgkmcnt({wait})')
            a(m[0]); a(r[0]); a(r[1]); a(r[2]); a(m[1]); a(r[3]); a(r[4]); a(r[5])
            if x1: x1()
            a(m[2])
            if x2: x2()
            a(m[3])
        a.label(f'L_g{o}0')
        a.c('first chunk: nothing to finish from a previous one')
        for x in reads(0) + reads(1): a(x)
        grp(0, 2, 6, first=True)
        a(f's_branch L_g{o}m')
        a.label(f'L_g{o}')
        if opt.get('p3'): a.lstamp(s(sIt), 16)
        if opt.get('cs'): a(f's_cmp_lg_u32 {s(sCnt)}, 0\ns_cbranch_scc1 L_g{o}c')
        a('s_barrier')
        a.label(f'L_g{o}b')
        if opt.get('p3'): a.lstamp(s(sIt), 32)
        def book():
            w8 = a.new('w8')
            a(f's_cmp_eq_u32 {s(sIt)}, 9\ns_cbranch_scc1 {w8}\ns_waitcnt vmcnt(0)')
            a.label(w8)
            if opt.get('lp0', 1):
                lo = a.new('lo')
                a(f's_cmp_lg_u32 {s(sIt)}, 2\ns_cbranch_scc1 {lo}\ns_setprio 0')
                a.label(lo)
            a(f's_sub_u32 {s(sIt)}, {s(sIt)}, 1\ns_cmp_lg_u32 {s(sIt)}, 0')
        grp(2, 0); grp(3, 1); grp(0, 2, 6)
        a.label(f'L_g{o}m')
        a('s_waitcnt lgkmcnt(6)')
        a.label(f'L_g{o}n')
        grp(1, 3, None, lambda: slot_addr(a), book)
        a(f's_waitcnt vmcnt(8) lgkmcnt(0)\ns_cbranch_scc1 L_g{o}')
        if opt.get('cs'):
            def cs_block(o=o):
                a.label(f'L_g{o}c')
                lds_arrive(a, C_G)
                a(f's_sub_u32 {s(sCnt)}, {s(sCnt)}, 4\ns_sub_u32 {s(T1)}, 8, {s(sCnt)}')
                lds_wait(a, 1, C_G, s(T1), sl=0)
                a(f's_branch L_g{o}b')
            a.late.append(cs_block)
        m = mms(2) + mms(3)
        a(f's_cmp_lg_u32 {s(sImg)}, 0\ns_cbranch_scc1 L_gf{o}\ns_barrier\ns_setprio 2\nds_read_b32 {v(vTok)}, {v(vCnt)} offset:{C_TOK}')
        issue_chunk(a, 12)
        a.label(f'L_gf{o}')
        for i in (0, 1, 4, 5, 2, 3, 6, 7): a(m[i])
        if opt.get('lp0', 1):
            lo = a.new('lo')
            a(f's_cmp_eq_u32 {s(sImg)}, 0\ns_cbranch_scc1 {lo}\ns_setprio 1')
            a.label(lo)
        a.stamp(3)
    def scale(nm, sc, n):
        lb = a.new('nosc')
        a(f's_cmp_eq_u32 {s(sDoSc)}, 0\ns_cbranch_scc1 {lb}')
        for tt in range(2):
            for i in range(16): a(f'v_mul_f32 {v(ACC[(nm, tt)]+i)}, {v(sc + i//n)}, {v(ACC[(nm, tt)]+i)}')
        a.label(lb)
    def epi_main(u):
        nm = 'ab'[u]
        scale(nm, ES + 2*u, 8)
        for tt in range(2):
            for qp in range(2):
                r = ACC[(nm, tt)] + 8*qp
                cvt8(a, r, r)
                a(f'buffer_store_dwordx4 {v(r,4)}, {v(EA + 4*u + 2*qp + tt)}, {srd(sWS)}, 0 offen sc1')
    def epi_misc():
        scale('b', ES + 2, 4)
        for tt in range(2):
            for h in range(2):
                r = ACC[('b', tt)] + 8*h
                cvt8(a, r, r)
                for q in range(2): a(f'buffer_store_dwordx2 {v(r+2*q,2)}, {v(EA + 4 + 2*(2*h+q) + tt)}, {srd(sWS)}, 0 offen sc1')
    def epi_v(u):
        nm = 'ab'[u]
        for tt in range(2):
            for f in range(2):
                r = ACC[(nm, tt)] + 8*f
                cvt8(a, r, r)
                a(f'buffer_store_dwordx4 {v(r,4)}, {v(EA + 2*u + f)}, {srd(sWS)}, 0 offen offset:{REC*tt} sc1')
    loop('N')
    a.nop(6); epi_main(0); mid()
    a(f's_cmp_lg_u32 {s(sMG)}, 0\ns_cbranch_scc1 L_emisc')
    epi_main(1); a('s_branch L_epi_done')
    a.label('L_emisc')
    epi_misc(); a('s_branch L_epi_done')
    loop('S')
    for i in range(4): a(f'v_mov_b32 {v(4+i)}, 0x3f803f80')
    a.nop(4); epi_v(0); mid(); epi_v(1)
    a(f's_cmp_lg_u32 {s(sMG)}, 0\ns_cbranch_scc1 L_epi_done\nbuffer_store_dwordx4 v[4:7], {v(EA+4)}, {srd(sWS)}, 0 offen sc1')
    a.label('L_epi_done')
    a.stamp(4)
    a(f's_cmp_lg_u32 {s(sImg)}, 0\ns_cbranch_scc1 L_achain')
    a.label('L_ppath')

def op_addr(a, X, vt, smain, sextra):
    t0, t1, t2, t3 = vt, vt+1, vt+2, vt+3
    a(f'''v_bfe_u32 {v(t0)}, v0, 2, 2
    v_lshrrev_b32 {v(t1)}, 5, v0
    v_and_b32 {v(t2)}, 3, v0
    v_bfe_u32 {v(t3)}, v0, 4, 1
    v_lshl_add_u32 {v(t2)}, {v(t3)}, 2, {v(t2)}
    v_lshlrev_b32 {v(t2)}, 3, {v(t2)}
    v_lshl_add_u32 {v(t0)}, {v(t1)}, 2, {v(t0)}
    v_lshl_add_u32 {v(X+4)}, {v(t0)}, 6, {v(t2)}
    v_add_u32 {v(X+4)}, {s(sextra)}, {v(X+4)}
    v_bfe_u32 {v(t3)}, v0, 3, 1
    v_lshl_add_u32 {v(t2)}, {v(t3)}, 6, {v(t2)}
    v_lshl_add_u32 {v(X)}, {v(t0)}, 7, {v(t2)}
    v_add_u32 {v(X)}, {s(smain)}, {v(X)}
    v_xor_b32 {v(X+1)}, 64, {v(X)}
    v_mul_u32_u24 {v(t1)}, 68, {v(t1)}
    v_add_u32 {v(t1)}, 16, {v(t1)}
    v_lshl_add_u32 {v(X+2)}, {v(t1)}, 7, {v(X)}
    v_lshl_add_u32 {v(X+3)}, {v(t1)}, 7, {v(X+1)}
    v_lshl_add_u32 {v(X+5)}, {v(t1)}, 6, {v(X+4)}''')

def w_row(st, j): return 18*st + 8*j + (2 if st & 1 else 0) if st < 8 else 36*j
def op_w_reads(W, X, st, off=0):
    return [f'ds_read_b64_tr_b16 {v(W + 8*st + 4*T + 2*j, 2)}, {v(X + T + (2 if st == 8 else 0))} offset:{w_row(st, j)*128 + off}' for T in range(2) for j in range(2)]
def op_e_reads(W, X, st):
    return [f'ds_read_b64_tr_b16 {v(W + 72 + 4*st + 2*j, 2)}, {v(X + 4 + (st == 8))} offset:{w_row(st, j)*64}' for j in range(2)]
def op_read_w(a, W, X, sflag):
    for st in range(9): a('\n'.join(op_w_reads(W, X, st)))
    lb = a.new('ne')
    a(f's_cmp_eq_u32 {s(sflag)}, 0\ns_cbranch_scc1 {lb}')
    for st in range(9): a('\n'.join(op_e_reads(W, X, st)))
    a.label(lb)

def op_load_o(a, O, vo16, vol, sM, sM2, sL, thr=False):
    for i in range(8):
        a(f'buffer_load_dwordx4 {v(O+4*i,4)}, {v(vo16)}, {srd(sWS)}, {s(sM if i < 4 else sM2)} offen offset:{1024*(i&3)} sc1')
        if thr and i % 4 == 3: a('s_waitcnt vmcnt(0)')
    for i in range(4):
        a(f'buffer_load_dword {v(O+32+i)}, {v(vol)}, {srd(sWS)}, {s(sL)} offen offset:{128*i} sc1')

def op_mfma(a, AC, W, O, first):
    for st in range(9):
        a(f's_waitcnt vmcnt({11 - st if st < 8 else 0})')
        for T in range(3):
            mfma(a, AC + 16*T, W + 12*st + 4*T, O + 4*st, None if (first and st == 0) else AC + 16*T)

sEX, sWE = sBX, sXB
def issue_grp(a, kind, x, y, slot, who):
    skip = a.new('r8')
    if kind == 'm':
        sr, vo, rows = x[0], vWO, 8
        a(f's_add_u32 {s(sFree)}, {s(sWB)}, {(144*x[1] + 72*y)*1152}'); slot += EB*y
    else:
        sr, vo, rows = sEX, vWO + 1, 16
        a(f's_bitcmp1_b32 {s(sOC)}, 2\ns_mov_b32 {s(sFree)}, {144*x*1152}\ns_cselect_b32 {s(sFree)}, {144*y*1152}, {s(sFree)}\ns_add_u32 {s(sFree)}, {s(sFree)}, {s(sWE)}')
    a(f'''s_lshl_b32 s3, {s(sW4)}, 10
    s_add_u32 m0, s3, {slot}
    s_nop 0
    buffer_load_dwordx4 {v(vo)}, {srd(sr)}, {s(sFree)} offen lds
    s_add_u32 m0, s3, {slot + 4096}
    s_add_u32 {s(sFree)}, {s(sFree)}, {4*rows*1152}
    buffer_load_dwordx4 {v(vo)}, {srd(sr)}, {s(sFree)} offen lds
    s_cmp_lg_u32 {s(sW4)}, {who}
    s_cbranch_scc1 {skip}
    s_mov_b32 m0, {slot + 8192}
    s_add_u32 {s(sFree)}, {s(sFree)}, {(4 - who)*rows*1152}
    buffer_load_dwordx4 {v(vo)}, {srd(sr)}, {s(sFree)} offen lds''')
    a.label(skip)

def p_path(a, opt):
    vK, vKL, vV0, vV1 = 8, 10, 12, 14
    Qr, QLr, M = 16, 32, 36
    Kb, KLb, Vb, Sb, Ob = 40, 56, 64, 96, 160
    sCur, sNext, sLo, sHi, sN = T2, T3, T4, T5, T6
    sQm, sQl, sChk = 56, 57, 58
    sLo2, sHi2, sCur2 = 60, 61, 62
    a.c('================= waves 0-3: load the rest of the A tile, publish B =================')
    vm = VM()
    vm.add(12, 8); vm.add('sa', 4); vm.add(13, 8); vm.add('sb', 4)
    su_vgat(a)
    kl_const(a, T0, sH)
    a(f'''v_and_b32 v1, 31, v0
    v_mov_b32 {v(vK)}, {v(v16)}
    v_lshl_add_u32 {v(vKL)}, v1, 3, {s(T0)}
    v_mov_b32 {v(vV0)}, {v(vVf)}
    v_mov_b32 {v(vV1)}, {v(vVf+1)}''')
    for r in (vK, vKL, vV0, vV1): a(f'v_add_u32 {v(r+1)}, {2*REC}, {v(r)}')
    a.c('flags this wave waits for: lanes 0-15 k, 16-31 v (8 row tiles x first/last column tile), 32.. q')
    a(f'''v_lshrrev_b32 v2, 4, v0
    v_add_u32 v2, 1, v2
    v_cmp_gt_u32 vcc, 32, v0
    v_bfe_u32 v3, v0, 3, 1
    v_and_b32 v4, 1, v0
    v_cndmask_b32 v2, 0, v2, vcc
    v_cndmask_b32 v3, v4, v3, vcc
    s_lshl_b32 {s(T2)}, {s(sMG)}, 3
    v_and_b32 v4, 7, v0
    v_add_u32 v4, {s(T2)}, v4
    s_lshl_b32 {s(T3)}, {s(sQB)}, 1
    s_add_u32 {s(T3)}, {s(T3)}, {s(sTH)}
    v_mov_b32 v5, {s(T3)}
    v_cndmask_b32 v4, v5, v4, vcc''')
    producer_ct(a, 5, 2, 3, sH, 6)
    a(f'v_lshl_add_u32 v5, v5, 4, v4\nv_lshlrev_b32 v5, 7, v5\nv_add_u32 {v(vPoll)}, {FL1:#x}, v5\nv_lshlrev_b32 v7, 3, v0')
    for r in (QLr+1, QLr+3, KLb+1, KLb+3, KLb+5, KLb+7): a(f'v_mov_b32 {v(r)}, 0')
    def tail_setup():
        extra_flags(a); final_setup(a)
        a(f's_mul_i32 {s(T0)}, {s(sMG)}, {MB}\ns_add_u32 {s(T0)}, {s(T0)}, {M_C}\ns_mul_i32 {s(T1)}, {s(sMG)}, {EB}\ns_add_u32 {s(T1)}, {s(T1)}, {X_A}')
        op_addr(a, vWb, 1, T0, T1)
    a(f'''s_lshl_b32 {s(T0)}, {s(sH)}, 6
    s_lshl_b32 {s(T1)}, {s(sMG)}, 5
    s_add_u32 {s(T0)}, {s(T0)}, {s(T1)}
    s_mul_i32 {s(sLo)}, {s(T0)}, {REC}
    s_add_u32 {s(sLo)}, {s(sLo)}, {KV:#x}
    s_add_u32 {s(sHi)}, {s(sLo)}, {32*REC}
    s_lshl_b32 {s(T0)}, {s(sQB)}, 1
    s_add_u32 {s(T0)}, {s(T0)}, {s(sTH)}
    s_lshl_b32 {s(T1)}, {s(sH)}, 4
    s_add_u32 {s(T0)}, {s(T0)}, {s(T1)}
    s_lshl_b32 {s(sQm)}, {s(T0)}, 12
    s_lshr_b32 {s(T1)}, {s(sH)}, 1
    s_lshl_b32 {s(T1)}, {s(T1)}, 4
    s_add_u32 {s(T1)}, {s(T1)}, {s(T3)}
    s_lshl_b32 {s(sQl)}, {s(T1)}, 10
    s_and_b32 {s(T1)}, {s(sH)}, 1
    s_lshl_b32 {s(T1)}, {s(T1)}, 2
    s_add_u32 {s(sQl)}, {s(sQl)}, {s(T1)}
    s_add_u32 {s(sQl)}, {s(sQl)}, {QL:#x}''')
    flag_addr(a, T1, sCT, sRT, 4, FL1)
    a('s_waitcnt lgkmcnt(0)')
    a.c('================= waves 0-3: attention =================')
    def kv_loads(b, sreg):
        o = REC * (b & 1); u = b >> 1
        return [f'buffer_load_dwordx4 {v(Kb+4*b,4)}, {v(vK+u)}, {srd(sWS)}, {s(sreg)} offen offset:{o} sc1',
                f'buffer_load_dword {v(KLb+2*b)}, {v(vKL+u)}, {srd(sWS)}, {s(sreg)} offen offset:{o} sc1',
                f'buffer_load_dwordx4 {v(Vb+8*b,4)}, {v(vV0+u)}, {srd(sWS)}, {s(sreg)} offen offset:{o} sc1',
                f'buffer_load_dwordx4 {v(Vb+8*b+4,4)}, {v(vV1+u)}, {srd(sWS)}, {s(sreg)} offen offset:{o} sc1']
    def start_groups():
        a(f'''s_mul_i32 {s(sCur)}, {s(sQB)}, {4*REC}
        s_add_u32 {s(sCur)}, {s(sCur)}, {s(sLo)}
        s_add_u32 {s(sNext)}, {s(sCur)}, {4*REC}
        s_cmp_eq_u32 {s(sNext)}, {s(sHi)}
        s_cselect_b32 {s(sNext)}, {s(sLo)}, {s(sNext)}
        s_mov_b32 {s(sN)}, 8''')
    adv_groups = f'''s_mov_b32 {s(sCur)}, {s(sNext)}
        s_add_u32 {s(sNext)}, {s(sNext)}, {4*REC}
        s_cmp_eq_u32 {s(sNext)}, {s(sHi)}
        s_cselect_b32 {s(sNext)}, {s(sLo)}, {s(sNext)}
        s_cmp_eq_u32 {s(sN)}, 2
        s_cselect_b32 {s(sNext)}, {OOB:#x}, {s(sNext)}'''
    def qk(N, kb, qp):
        return (mfma_s(N, KLb+2*kb, QLr+2*qp, None, '2b'), mfma_s(N, Kb+4*kb, Qr+8*qp, N), mfma_s(N+16, Kb+4*kb, Qr+8*qp+4, N+16))
    def step(qp, kb, ins, sub):
        S = Sb + 32*qp; N = Sb + 32*(1-qp)
        nkb = kb if qp == 0 else (kb+1) % 4
        pkb = (kb-1) % 4 if qp == 0 else kb
        QLm, Q0m, Q1m = qk(N, nkb, 1-qp)
        def E(x, y):
            for i in range(x, y):
                if sub: a(f'v_sub_f32 {v(S+i)}, {v(S+i)}, {v(M + 2*qp + i//16)}')
                a(f'v_exp_f32{"_e64" if opt.get("e64") else ""} {v(S+i)}, {v(S+i)}')
        def C(x, y):
            for j in range(x, y):
                b = S + 16*(j//8); k = j % 8
                if opt.get('perm'): a(f'v_perm_b32 {v(b + (k % 4) + 8*(k//4))}, {v(b+2*k+1)}, {v(b+2*k)}, {s(59)}')
                else: a(f'v_cvt_pk_bf16_f32 {v(b + (k % 4) + 8*(k//4))}, {v(b+2*k)}, {v(b+2*k+1)}')
        def PV(t, f):
            o = Ob + 32*qp + 16*t
            mfma(a, o, Vb + 8*kb + 4*f, S + 16*t + 8*f, o)
        def I(k):
            if k in ins: a(ins[k])
        E(0, 2)
        o = Ob + 32*(1-qp) + 16
        mfma(a, o, Vb + 8*pkb + 4, N + 24, o); I('p')
        sched = {
            0: 'E2-5 QL E5-9 C0-4 E9-11 P00 E11-17 C4-6 Q0 C6-8 E17-19 P01 E19-25 C8-12 Q1 E25-28 P10 E28-32 C12-16',
            1: 'E2-6 QL E6-8 C0-4 E8-12 P00 E12-16 C4-7 Q0 C7-8 E16-19 P01 E19-24 C8-10 Q1 C10-12 E24-27 P10 E27-32 C12-16',
            2: 'E2-6 QL E6-9 C0-4 E9-12 P00 E12-17 C4-6 Q0 C6-8 E17-20 P01 E20-25 C8-10 Q1 C10-12 E25-28 P10 E28-32 C12-16',
            3: 'E2-6 QL E6-7 C0-1 E7-8 C1-2 E8-9 C2-3 E9-10 C3-4 E10-12 P00 E12-13 C4-5 E13-14 C5-6 E14-17 Q0 C6-7 E17-18 C7-8 E18-20 P01 E20-21 C8-9 E21-22 C9-10 E22-25 Q1 C10-11 E25-26 C11-12 E26-28 P10 E28-29 C12-13 E29-30 C13-14 E30-32 C14-16',
        }[opt.get('sched', 0)]
        hook = {'QL': 'q', 'P00': 'm0', 'Q0': 'm1', 'P01': 'm2', 'Q1': 'm3', 'P10': 'm4'}
        if opt.get('noql'):
            QLm = ''; Q0m = mfma_s(N, Kb+4*nkb, Qr+8*(1-qp), None); Q1m = mfma_s(N+16, Kb+4*nkb, Qr+8*(1-qp)+4, None)
        for w in sched.split():
            if w[0] in 'EC': (E if w[0] == 'E' else C)(*map(int, w[1:].split('-')))
            elif w[0] == 'P': PV(int(w[1]), int(w[2])); I(hook[w])
            else: a({'QL': QLm, 'Q0': Q0m, 'Q1': Q1m}[w]); I(hook[w])
    def attn_init_a():
        for r in range(Ob+16, Ob+64): a(f'v_mov_b32 {v(r)}, 0')
        for r in range(Vb+28, Vb+32): a(f'v_mov_b32 {v(r)}, 0')
    def attn_init_b():
        for r in range(Ob, Ob+16): a(f'v_mov_b32 {v(r)}, 0')
        for r in range(Sb+56, Sb+60): a(f'v_mov_b32 {v(r)}, 0')
    def attn_init(): attn_init_a(); attn_init_b()
    def attn_loop(name, sub):
        a(f's_waitcnt vmcnt({12 if opt.get("deep") else 8})')
        m = qk(Sb, 0, 0); a(m[0]); a.nop(18); a(m[1]); a(m[2]); a.nop(10); a('s_setprio 0')
        if opt.get('padA'):
            a.label('L_padA')
            a(f's_memrealtime s[94:95]\ns_waitcnt lgkmcnt(0)\ns_sub_u32 s94, s94, s80\ns_cmp_lt_u32 s94, {opt["padA"]}\ns_cbranch_scc1 L_padA')
        if not sub: a.stamp(7); a.cyc0()
        a(f'.p2align {opt.get("al", 6)}')
        for _ in range(opt.get('sh', 0)): a('s_nop 0')
        a.label(name)
        for t in range(4):
            ld = kv_loads((t+3) % 4, sCur if t == 0 else sNext)
            lp = opt.get('ldp', 0)
            if opt.get('xl') == 1 and t & 1: ld = [ld[0], '', ld[2], ld[3]]
            if opt.get('xl') == 2: ld = ['', '', '', '']
            if opt.get('xl') == 3: ld = [x.replace(' sc1', '') for x in ld]
            J = '\n'.join
            ins0, ins = [({'q': ld[0], 'm0': ld[1], 'm1': ld[2], 'm2': ld[3]}, {}),
                         ({'q': J(ld)}, {}),
                         ({'q': J(ld[:2]), 'm1': J(ld[2:])}, {}),
                         ({'q': J(ld[:2])}, {'q': J(ld[2:])}),
                         ({'q': ld[0], 'm1': ld[1]}, {'q': ld[2], 'm3': ld[3]}),
                         ({'m0': ld[0], 'm2': ld[1], 'm4': ld[2]}, {'m2': ld[3]})][lp]
            if opt.get('deep'):
                ins0 = {'q': J(ld[2:]) + '\ns_waitcnt vmcnt(12)'}
                ins = {'q': J(kv_loads(t, sNext)[:2])}
            step(0, t, ins0, sub)
            ins['p'] = f's_waitcnt vmcnt({10 if opt.get("deep") else 8 - sum(len(x.split(chr(10))) for x in ins.values())})'
            if t == 3:
                ins['m3'] = ins.get('m3', '') + '\n' + adv_groups
                ins['m4'] = f's_sub_u32 {s(sN)}, {s(sN)}, 1\ns_cmp_lg_u32 {s(sN)}, 0'
            step(1, t, ins, sub)
        if opt.get('p5'):
            a(f's_memtime s[94:95]\ns_waitcnt lgkmcnt(0)\ns_mov_b32 m0, {s(sN)}\ns_sub_u32 s94, s94, s93\nv_writelane_b32 v243, s94, m0\ns_cmp_lg_u32 {s(sN)}, 0')
        a(f's_cbranch_scc1 {name}')
        a.nop(1)
        mfma(a, Ob + 48, Vb + 28, Sb + 56, Ob + 48)
    def first_loads():
        for t in range(4): a(f'buffer_load_dwordx4 {v(Qr+4*t,4)}, {v(v16)}, {srd(sWS)}, {s(sQm)} offen offset:{1024*t} sc1')
        for j in range(2): a(f'buffer_load_dword {v(QLr+2*j)}, v7, {srd(sWS)}, {s(sQl)} offen offset:{512*j} sc1')
        for b in range(3):
            for x in kv_loads(b, sCur): a(x)
        if opt.get('deep'):
            for x in kv_loads(3, sCur)[:2]: a(x)
    a(f'v_readfirstlane_b32 {s(sTok)}, {v(vTok)}\ns_cmp_lg_u32 {s(sIdle)}, 0\ns_cbranch_scc1 L_pidle')
    if opt.get('cs'): lds_wait(a, 2, C_G, 8, sl=0)
    else: a('s_barrier')
    issue_chunk(a, 14); vm.add(14, 8)
    start_groups(); attn_init_a()
    for j in range(12, 16):
        sig = opt.get('sig', 13)
        a(f's_waitcnt vmcnt({min(vm.after(j), vm.after("sb")) if j == sig else vm.after(j)})')
        if j == sig:
            last_signals(a, 2, C_F1, 4, T1)
            a.stamp(5)
        a('s_barrier')
        if j == 14: a(f'buffer_load_dword v2, {v(vPoll)}, {srd(sWS)}, 0 offen sc1'); vm.add('fl')
        if j + 3 <= 17: issue_chunk(a, j + 3); vm.add(j + 3, 8)
        if j == sig: attn_init_b()
        if j == 13: tail_setup()
    a(f's_waitcnt vmcnt(8)\nv_cmp_ne_u32 vcc, {s(sTok)}, v2\ns_cbranch_vccnz L_late')
    first_loads()
    a(f's_barrier\ns_waitcnt vmcnt({20 if opt.get("deep") else 18})\ns_barrier\ns_branch L_go')
    a.label('L_late')
    a('s_barrier\ns_waitcnt vmcnt(0)\ns_barrier')
    if a.diag: a('s_mov_b32 s82, -1')
    a('s_branch L_poll')
    a.label('L_pidle')
    start_groups(); attn_init(); tail_setup()
    a.label('L_poll')
    poll_flags(a, vPoll, 2)
    first_loads()
    a.label('L_go')
    a('s_mov_b32 s59, 0x07060302')
    a.stamp(6)
    attn_loop('L_attn', False)
    a.cyc1()
    if opt.get('padB'):
        a.label('L_padB')
        a(f's_memrealtime s[94:95]\ns_waitcnt lgkmcnt(0)\ns_sub_u32 s94, s94, s80\ns_cmp_lt_u32 s94, {opt["padB"]}\ns_cbranch_scc1 L_padB')
    a.stamp(8)
    a.nopk = bool(opt.get('nopk', 1))
    a(f'''s_setprio 2
    s_mul_i32 {s(T0)}, {s(sWave)}, 6144
    v_add_u32 v1, {s(T0)}, {v(v16)}
    s_xor_b32 {s(T0)}, {s(sWave)}, 2
    s_mul_i32 {s(T0)}, {s(T0)}, 6144
    v_add_u32 v6, {s(T0)}, {v(v16)}
    s_lshl_b32 {s(T0)}, {s(sQB)}, 3
    s_lshl_b32 {s(T1)}, {s(sTH)}, 2
    s_add_u32 {s(T0)}, {s(T0)}, {s(T1)}
    s_lshl_b32 {s(T1)}, {s(sMG)}, 1
    s_add_u32 {s(T0)}, {s(T0)}, {s(T1)}
    s_cmp_eq_u32 {s(sMG)}, 0
    s_cbranch_scc1 L_red0''')
    def red_write(o0):
        for t in range(2):
            o = o0 + 16*t
            a(f'ds_write_b128 v1, {v(o,4)} offset:{3072*t}\nds_write_b128 v1, {v(o+4,4)} offset:{3072*t+1024}\nds_write_b96 v1, {v(o+8,3)} offset:{3072*t+2048}')
    a.c('exchange partial sums with the wave that did the other half of the keys; keep query pair kh in Ob..Ob+31')
    red_write(Ob)
    for t in range(2):
        for i in range(0, 12, 2): a(f'v_pk_mov_b32 {v(Ob+16*t+i,2)}, {v(Ob+32+16*t+i,2)}, {v(Ob+32+16*t+i,2)} op_sel:[0,1]')
    a('s_branch L_red1')
    a.label('L_red0')
    red_write(Ob + 32)
    a.label('L_red1')
    a(f's_lshr_b32 {s(T6)}, {s(T0)}, 1')
    flag_addr(a, T1, T6, sH, 5, FL4)
    a.c('hint for the consumers that this wave\'s rows are about to be written; they check the data itself against the marker')
    a(f'v_mov_b32 v2, {s(T1)}\nv_mov_b32 v3, {s(sTok)}\ns_mov_b64 exec, 1\nbuffer_store_dword v3, v2, {srd(sWS)}, 0 offen sc1\ns_mov_b64 exec, -1')
    o_addr(a, sH, OBM, OBL)
    a(f's_mov_b32 {s(T0)}, {f2u(2.0**-64):#x}\ns_mov_b32 {s(T6)}, {f2u(2.0**64):#x}\ns_mov_b32 {s(T7)}, {f2u(2.0**120):#x}')
    if opt.get('p4'): a.stamp(3)
    a('s_waitcnt vmcnt(1) lgkmcnt(0)')
    if opt.get('p4'): a.stamp(4)
    a('s_barrier')
    if opt.get('p4'): a.stamp(5)
    for part in range(3):
        for t in range(2):
            o = Ob + 32 + 16*t
            a([f'ds_read_b96 {v(o+8,3)}, v6 offset:{3072*t+2048}', f'ds_read_b128 {v(o,4)}, v6 offset:{3072*t}', f'ds_read_b128 {v(o+4,4)}, v6 offset:{3072*t+1024}'][part])
    O2 = [Ob, Ob + 16]; P2 = [Ob + 32, Ob + 48]
    a.c('the softmax above used 0 in place of the row max: safe only while the sums stay finite and well away from 0')
    a('s_waitcnt lgkmcnt(4)')
    for t in range(2): a(f'v_add_f32 {v(O2[t]+10)}, {v(O2[t]+10)}, {v(P2[t]+10)}')
    for t in range(2): a(f'v_pk_add_f32 {v(O2[t]+8,2)}, {v(O2[t]+8,2)}, {v(P2[t]+8,2)}')
    a(f'''v_min_f32 v2, {v(O2[0]+10)}, {v(O2[1]+10)}
    v_add_f32 v3, {v(O2[0]+10)}, {v(O2[1]+10)}
    v_cmp_nle_f32 {s(sChk,2)}, {s(T0)}, v2
    v_cmp_nge_f32 vcc, {s(T6)}, v3
    s_waitcnt lgkmcnt(2)''')
    for i in (0, 2):
        for t in range(2): a(f'v_pk_add_f32 {v(O2[t]+i,2)}, {v(O2[t]+i,2)}, {v(P2[t]+i,2)}')
    a(f's_or_b64 {s(sChk,2)}, {s(sChk,2)}, vcc\ns_waitcnt lgkmcnt(0)')
    for i in (4, 6):
        for t in range(2): a(f'v_pk_add_f32 {v(O2[t]+i,2)}, {v(O2[t]+i,2)}, {v(P2[t]+i,2)}')
    a(f'''v_pk_add_f32 v[2:3], {v(O2[0],2)}, {v(O2[1],2)}
    v_pk_add_f32 v[4:5], {v(O2[0]+2,2)}, {v(O2[1]+2,2)}
    v_pk_add_f32 v[8:9], {v(O2[0]+4,2)}, {v(O2[1]+4,2)}
    v_pk_add_f32 v[10:11], {v(O2[0]+6,2)}, {v(O2[1]+6,2)}
    v_pk_add_f32 v[12:13], {v(O2[0]+8,2)}, {v(O2[1]+8,2)}
    v_pk_add_f32 v[2:3], v[2:3], v[4:5]
    v_pk_add_f32 v[8:9], v[8:9], v[10:11]
    v_pk_add_f32 v[2:3], v[2:3], v[12:13]
    v_pk_add_f32 v[2:3], v[2:3], v[8:9]
    v_add_f32 v2, v2, v3
    v_cmp_ngt_f32 vcc, {s(T7)}, abs(v2)
    s_or_b64 {s(sChk,2)}, {s(sChk,2)}, vcc
    s_cbranch_scc1 L_fallback''')
    a.label('L_norm')
    o_publish(a, O2, P2, False)
    a.stamp(9)
    if opt.get('p4'): a.stamp(2)
    flag_ld(a)
    final_state(a)
    op_read_w(a, FW, vWb, sXb)
    if opt.get('nojq'): a('s_waitcnt lgkmcnt(0)'); lds_arrive(a, C_WB)
    a('s_setprio 0')
    a('s_branch L_final')

    a.nopk = False
    a.label('L_fallback')
    a.c('the stand-in was unsafe for one of this wave\'s rows: redo its two query tiles over all keys with the true row max')
    vK2, vKL2 = 2, 3
    a(f'v_mov_b32 v8, {v(vWr)}\nv_mov_b32 v9, {v(vRd)}')
    su_vgat(a)
    a(f'v_mov_b32 v10, {v(vVf)}\nv_mov_b32 v11, {v(vVf+1)}\nv_mov_b32 {v(vWr)}, v8\nv_mov_b32 {v(vRd)}, v9')
    kl_const(a, sCur2, sH)
    a(f'''v_and_b32 v3, 31, v0
    v_lshl_add_u32 v3, v3, 3, {s(sCur2)}
    s_mul_i32 {s(sLo2)}, {s(sH)}, {HREC}
    s_add_u32 {s(sLo2)}, {s(sLo2)}, {KV:#x}
    s_add_u32 {s(sHi2)}, {s(sLo2)}, {HREC}
    s_cmp_eq_u32 {s(sMG)}, 0
    s_cbranch_scc1 L_fb0''')
    for i in range(8): a(f'v_mov_b32 {v(Qr+i)}, {v(Qr+8+i)}')
    a(f'v_mov_b32 {v(QLr)}, {v(QLr+2)}')
    a.label('L_fb0')
    for t in range(2): a(f'v_mov_b32 {v(M+t)}, 0xff800000')
    for r in range(Ob, Ob + 32): a(f'v_mov_b32 {v(r)}, 0')
    for ps in range(2):
        a(f's_mov_b32 {s(sCur2)}, {s(sLo2)}')
        a.label(f'L_fbloop{ps}')
        a(f'buffer_load_dwordx4 {v(Kb,4)}, {v(v16)}, {srd(sWS)}, {s(sCur2)} offen sc1\nbuffer_load_dword {v(KLb)}, v3, {srd(sWS)}, {s(sCur2)} offen sc1')
        if ps:
            for f in range(2): a(f'buffer_load_dwordx4 {v(Vb+4*f,4)}, {v(10+f)}, {srd(sWS)}, {s(sCur2)} offen sc1')
        a('s_waitcnt vmcnt(0)')
        m = qk(Sb, 0, 0); a(m[0]); a.nop(18); a(m[1]); a(m[2]); a.nop(12)
        if ps == 0:
            for t in range(2):
                for i in range(0, 16, 2): a(f'v_max3_f32 {v(M+t)}, {v(Sb+16*t+i)}, {v(Sb+16*t+i+1)}, {v(M+t)}')
        else:
            for i in range(32): a(f'v_sub_f32 {v(Sb+i)}, {v(Sb+i)}, {v(M + i//16)}')
            for i in range(32): a(f'v_exp_f32 {v(Sb+i)}, {v(Sb+i)}')
            for q in range(4): cvt8(a, Sb + 8*q, Sb + 8*q)
            a.nop(1)
            for t in range(2):
                for f in range(2): mfma(a, Ob + 16*t, Vb + 4*f, Sb + 16*t + 8*f, Ob + 16*t)
        a(f's_add_u32 {s(sCur2)}, {s(sCur2)}, {REC}\ns_cmp_lg_u32 {s(sCur2)}, {s(sHi2)}\ns_cbranch_scc1 L_fbloop{ps}')
        if ps == 0:
            for t in range(2): a(f'v_mov_b32 {v(Sb+t)}, {v(M+t)}')
            a.nop(2)
            for t in range(2): a(f'v_permlane32_swap_b32 {v(Sb+t)}, {v(M+t)}')
            a.nop(1)
            for t in range(2): a(f'v_max_f32 {v(M+t)}, {v(M+t)}, {v(Sb+t)}')
    a.nop(12)
    a('s_branch L_norm')

def o_addr(a, shead, M_, L_):
    a(f'''s_lshl_b32 {s(T0)}, {s(T0)}, 5
    s_add_u32 {s(T0)}, {s(T0)}, {s(shead)}
    s_lshl_b32 {s(T2)}, {s(T0)}, 10
    s_add_u32 {s(T2)}, {s(T2)}, {M_:#x}
    s_add_u32 {s(T3)}, {s(T2)}, 0x8000
    s_lshl_b32 {s(T4)}, {s(T0)}, 7
    s_add_u32 {s(T4)}, {s(T4)}, {L_:#x}
    s_add_u32 {s(T5)}, {s(T4)}, 0x1000''')

def o_publish(a, O, P, eps):
    for o in O:
        if eps: a(f'v_add_f32 {v(o+10)}, {f2u(1e-6):#x}, {v(o+10)}')
    for o in O: a(f'v_rcp_f32 {v(o+10)}, {v(o+10)}')
    for t in range(2):
        o, p = O[t], P[t]
        if t == 0: a('s_nop 0')
        for i in range(0, 10, 2): a(f'v_pk_mul_f32 {v(o+i,2)}, {v(o+i,2)}, {v(o+10,2)} op_sel_hi:[1,0]')
        cvt8(a, o, p)
        if not eps:
            for i in range(4): a(f'v_min_u32 {v(p+i)}, -2, {v(p+i)}')
        a(f'buffer_store_dwordx4 {v(p,4)}, {v(v16)}, {srd(sWS)}, {s(T2+t)} offen sc1')
        a(f'v_cvt_pk_bf16_f32 {v(p+4)}, {v(o+8)}, {v(o+9)}')
        if not eps: a(f'v_min_u32 {v(p+4)}, -2, {v(p+4)}')
    a('s_mov_b32 exec_hi, 0')
    for t in range(2): a(f'buffer_store_dword {v(P[t]+4)}, {v(vQL)}, {srd(sWS)}, {s(T4+t)} offen sc1')
    a('s_mov_b32 exec_hi, -1')

FW, FO, FA = 16, 124, 160
vFlg, vFol, vWr, vRd, vOut = 250, 251, 252, 253, 255
ACA = [212, 228, 196]
QS = 1088; WSTR = 8*QS; ARED = M_A; EXR = X_A; BRED = M_C
sM, sM2, sL, sA, sB_, sC, sO, sO2 = 64, 65, 66, 56, 57, 63, 100, 101
sTB, sXa, sXb = sLoc, sXcd, sRot
vP4, vWb = 254, 236
def extra_flags(a):
    a(f'''s_lshr_b32 {s(sTB)}, {s(sWave)}, 2
    s_xor_b32 {s(sTB)}, {s(sTB)}, {s(sTH)}
    s_and_b32 s3, {s(sOC)}, 5
    s_cmp_eq_u32 s3, {s(sTH)}
    s_cselect_b32 {s(sXa)}, 1, 0
    s_or_b32 {s(sXb)}, {s(sTB)}, 4
    s_cmp_eq_u32 s3, {s(sXb)}
    s_cselect_b32 {s(sXb)}, 1, 0''')
def final_setup(a):
    a(f'''v_and_b32 v1, 31, v0
    v_lshrrev_b32 v2, 5, v0
    v_lshlrev_b32 v3, 2, v1
    v_lshl_add_u32 {v(vFol)}, v2, 9, v3
    s_lshl_b32 {s(T1)}, {s(sOT)}, 1
    s_add_u32 {s(T0)}, {s(sTB)}, {s(T1)}
    s_lshl_b32 {s(T0)}, {s(T0)}, 5
    s_lshr_b32 {s(T1)}, {s(sWave)}, 1
    s_lshl_b32 {s(T1)}, {s(T1)}, 3
    s_add_u32 {s(T0)}, {s(T0)}, {s(T1)}
    s_lshl_b32 {s(sM)}, {s(T0)}, 10
    s_add_u32 {s(sM)}, {s(sM)}, {OBM:#x}
    s_add_u32 {s(sM2)}, {s(sM)}, 4096
    s_lshl_b32 {s(sL)}, {s(T0)}, 7
    s_add_u32 {s(sL)}, {s(sL)}, {OBL:#x}
    s_lshl_b32 {s(T0)}, {s(sOT)}, 5
    s_add_u32 {s(T0)}, {s(T0)}, {s(T1)}
    v_and_b32 v3, 7, v0
    v_add_u32 v1, {s(T0)}, v3
    v_lshlrev_b32 v1, 7, v1
    v_add_u32 {v(vP4)}, {FL4:#x}, v1
    s_and_b32 {s(T0)}, {s(sWave)}, 6
    s_add_u32 {s(T0)}, {s(T0)}, {s(sTB)}
    s_mul_i32 {s(T0)}, {s(T0)}, {WSTR}
    s_add_u32 {s(T0)}, {s(T0)}, {BRED}
    v_add_u32 {v(vWr)}, {s(T0)}, {v(v16)}
    s_mul_i32 {s(T0)}, {s(sOT)}, {64*2304}
    s_lshl_b32 {s(T1)}, {s(sOC)}, 7
    s_add_u32 {s(sO)}, {s(T0)}, {s(T1)}
    s_add_u32 {s(sO2)}, {s(sO)}, 1152
    v_lshrrev_b32 v1, 3, v0
    s_lshl_b32 {s(T0)}, {s(sWave)}, 3
    v_add_u32 v2, {s(T0)}, v1
    v_mul_u32_u24 v2, 2304, v2
    v_lshl_add_u32 {v(vOut)}, v3, 4, v2
    v_mul_u32_u24 v3, {QS}, v3
    v_lshl_add_u32 v3, v1, 4, v3
    s_lshr_b32 {s(T0)}, {s(sWave)}, 2
    s_mul_i32 {s(T0)}, {s(T0)}, {WSTR}
    s_lshl_b32 {s(T1)}, {s(sW4)}, 7
    s_add_u32 {s(T0)}, {s(T0)}, {s(T1)}
    v_add_u32 {v(vRd)}, {s(T0)}, v3''')
def flag_ld(a, r=vFlg): a(f'buffer_load_dword {v(r)}, {v(vP4)}, {srd(sWS)}, 0 offen sc1')
def final_state(a): a(f's_mov_b32 {s(sA)}, 0\ns_mov_b32 {s(sB_)}, 0\ns_mov_b32 {s(sC)}, 0')
def half_ld(a, h):
    for i in range(4): a(f'buffer_load_dwordx4 {v(FO+16*h+4*i,4)}, {v(v16)}, {srd(sWS)}, {s(sM2 if h else sM)} offen offset:{1024*i} sc1')
def left_ld(a):
    for i in range(4): a(f'buffer_load_dword {v(FO+32+i)}, {v(vFol)}, {srd(sWS)}, {s(sL)} offen offset:{128*i} sc1')
def half_try(a, again=False):
    for h, st in ((0, sA), (1, sB_)):
        lb = a.new('fl'); go = a.new('fg')
        if again: a(f's_cmp_eq_u32 {s(st)}, 1\ns_cbranch_scc1 {go}')
        a(f's_and_b32 {s(T0)}, vcc_lo, {0xf0 if h else 0x0f}\ns_or_b32 {s(T0)}, {s(T0)}, {s(st)}\ns_cbranch_scc1 {lb}\ns_mov_b32 {s(st)}, 1')
        a.label(go)
        half_ld(a, h)
        a.label(lb)
def final(a):
    a.label('L_final')
    a.c('================= all waves: out projection of B =================')
    a.c('this wave needs 8 heads, 4 from each of two producer groups: load each half as soon as its flags are up')
    def mm(steps):
        for st in steps:
            for T in range(2): mfma(a, FA + 16*T, FW + 8*st + 4*T, FO + 4*st, None if st == 0 else FA + 16*T)
        lb = a.new('nx')
        a(f's_cmp_eq_u32 {s(sXb)}, 0\ns_cbranch_scc1 {lb}')
        for st in steps: mfma(a, FA + 32, FW + 72 + 4*st, FO + 4*st, None if st == 0 else FA + 32)
        a.label(lb)
    def pending0():
        lb = a.new('fm')
        a(f's_cmp_lg_u32 {s(sA)}, 2\ns_cbranch_scc1 {lb}\ns_mov_b32 {s(sA)}, 3')
        mm(range(4))
        a.label(lb)
    def verify(st, r, n):
        lb = a.new('fv')
        a(f's_cmp_lg_u32 {s(st)}, 1\ns_cbranch_scc1 {lb}')
        a(f'v_max3_u32 v2, {v(r)}, {v(r+1)}, {v(r+2)}')
        if n == 4: a(f'v_max_u32 v2, v2, {v(r+3)}')
        else:
            a(f'v_max3_u32 v3, {v(r+3)}, {v(r+4)}, {v(r+5)}')
            for i in range(6, 16, 4): a(f'v_max3_u32 v2, v2, {v(r+i)}, {v(r+i+1)}' + (f'\nv_max3_u32 v3, v3, {v(r+i+2)}, {v(r+i+3)}' if i + 3 < 16 else ''))
            a('v_max_u32 v2, v2, v3')
        a(f'v_cmp_eq_u32 {s(60,2)}, -1, v2\ns_cmp_lg_u64 {s(60,2)}, 0\ns_cselect_b32 {s(st)}, 1, 2')
        a.label(lb)
    a.label('L_fpoll')
    a('s_waitcnt vmcnt(0) lgkmcnt(0)')
    verify(sA, FO, 16); verify(sB_, FO + 16, 16); verify(sC, FO + 32, 4)
    a(f's_min_u32 {s(T0)}, {s(sA)}, {s(sB_)}\ns_min_u32 {s(T0)}, {s(T0)}, {s(sC)}\ns_cmp_ge_u32 {s(T0)}, 2\ns_cbranch_scc1 L_fgo')
    a(f'v_cmp_ne_u32 vcc, {s(sTok)}, {v(vFlg)}')
    half_try(a, True)
    lb = a.new('fc'); l2 = a.new('fd')
    a(f's_min_u32 {s(T0)}, {s(sA)}, {s(sB_)}\ns_cmp_eq_u32 {s(T0)}, 0\ns_cbranch_scc1 {lb}\ns_cmp_eq_u32 {s(sC)}, 2\ns_cbranch_scc1 {l2}\ns_mov_b32 {s(sC)}, 1')
    for i in range(4): a(f'buffer_load_dword {v(FO+32+i)}, {v(vFol)}, {srd(sWS)}, {s(sL)} offen offset:{128*i} sc1')
    a(f's_branch {l2}')
    a.label(lb)
    flag_ld(a)
    a.label(l2)
    pending0()
    spin_tail(a, 'L_fpoll', OPT.get('fsl', 0))
    a.label('L_fgo')
    a.stamp(10)
    pending0()
    if OPT.get('nojq'): a(f'ds_read_b32 v6, {v(vCnt)} offset:{C_WB}')
    mm(range(4, 9))
    if OPT.get('p4'): a.stamp(6)
    if OPT.get('nojq'):
        a(f's_waitcnt lgkmcnt(0)\nv_readfirstlane_b32 {s(T0)}, v6\ns_cmp_ge_u32 {s(T0)}, 8\ns_cbranch_scc1 L_wbok')
        lds_wait(a, 6, C_WB, 8, sl=0)
        a.label('L_wbok')
    else: a('s_barrier')
    if OPT.get('p4'): a.stamp(7)
    a(f'''v_add_u32 v7, {ARED}, {v(vRd)}
    v_add_u32 {v(vRd)}, {BRED}, {v(vRd)}
    v_lshrrev_b32 v2, 2, v0
    s_lshl_b32 {s(T0)}, {s(sWave)}, 4
    v_add_u32 v2, {s(T0)}, v2
    v_and_b32 v3, 3, v0
    v_mul_u32_u24 v5, 2304, v2
    v_lshl_add_u32 v5, v3, 4, v5
    v_mul_u32_u24 v3, {QS}, v3
    v_lshl_add_u32 v4, v2, 4, v3
    v_add_u32 v4, {EXR}, v4''')
    for q in range(8): a(f'ds_write_b128 {v(vWr)}, {v(FA+4*q,4)} offset:{QS*q}')
    a(f'''s_cmp_eq_u32 {s(sXb)}, 0
    s_cbranch_scc1 L_fnx
    s_lshr_b32 {s(T0)}, {s(sWave)}, 1
    s_mul_i32 {s(T0)}, {s(T0)}, {4*QS}
    s_add_u32 {s(T0)}, {s(T0)}, {EXR}
    v_add_u32 v1, {s(T0)}, {v(v16)}''')
    for q in range(4): a(f'ds_write_b128 v1, {v(FA+32+4*q,4)} offset:{QS*q}')
    a.label('L_fnx')
    a('s_waitcnt lgkmcnt(0)\ns_barrier')
    a.stamp(11)
    a.c('sum the partials in output order: one 16-byte piece of a row per lane')
    def rd(R, vr, n, stride):
        for k in range(n):
            for h in range(2): a(f'ds_read_b128 {v(R+8*k+4*h,4)}, {v(vr)} offset:{stride*k + 512*h}')
    def fin(R, n, vo, so, pol):
        for k in range(1, n):
            for i in range(4): a(f'v_pk_add_f32 {v(R+2*i,2)}, {v(R+2*i,2)}, {v(R+8*k+2*i,2)}')
        cvt8(a, R, R)
        a(f'buffer_store_dwordx4 {v(R,4)}, {v(vo)}, {srd(sOUT)}, {s(so)} offen{opol(pol)}')
    rd(16, vRd, 4, 2*WSTR); rd(48, 7, 2, 2*WSTR)
    a(f'''s_cmp_gt_u32 {s(sWave)}, 1
    s_cbranch_scc1 L_fin_a
    s_mul_i32 {s(T0)}, {s(sOT)}, {64*2304}
    s_and_b32 {s(T1)}, {s(sOC)}, 1
    s_mul_i32 {s(T1)}, {s(T1)}, {32*2304}
    s_add_u32 {s(T0)}, {s(T0)}, {s(T1)}
    s_and_b32 {s(T1)}, {s(sOC)}, 2
    s_lshl_b32 {s(T1)}, {s(T1)}, 5
    s_add_u32 {s(T0)}, {s(T0)}, {s(T1)}
    s_add_u32 {s(T0)}, {s(T0)}, 1024
    s_bitcmp1_b32 {s(sOC)}, 2
    s_cbranch_scc0 L_fin_x
    s_add_u32 {s(T0)}, {s(T0)}, 1152''')
    rd(64, 4, 4, 4*QS); a('s_waitcnt lgkmcnt(0)'); fin(64, 4, 5, T0, 'osb'); a('s_branch L_fin_a')
    a.label('L_fin_x')
    rd(64, 4, 2, 4*QS); a('s_waitcnt lgkmcnt(0)'); fin(64, 2, 5, T0, 'osa')
    a.label('L_fin_a')
    a('s_waitcnt lgkmcnt(4)'); fin(16, 4, vOut, sO2, 'osb')
    a('s_waitcnt lgkmcnt(0)'); fin(48, 2, vOut, sO, 'osa')
    if OPT.get('padto'):
        a.label('L_pad')
        a(f's_memrealtime s[94:95]\ns_waitcnt lgkmcnt(0)\ns_sub_u32 s94, s94, s80\ns_cmp_lt_u32 s94, {OPT["padto"]}\ns_cbranch_scc1 L_pad')
    if a.diag:
        a('s_waitcnt vmcnt(0)')
        a.stamp(12)
        a.label('L_dump')
        a(f's_lshl_b32 {s(T0)}, s2, 3\ns_add_u32 {s(T0)}, {s(T0)}, {s(sWave)}\ns_lshl_b32 {s(T0)}, {s(T0)}, 7\ns_add_u32 {s(T0)}, {s(T0)}, {STAMPS:#x}')
        for k in range(16): a(f'v_mov_b32 {v(16+k)}, {s(SSTAMP+k)}')
        a(f's_lshl_b32 {s(T1)}, {s(T0)}, 1\ns_sub_u32 {s(T1)}, {s(T1)}, {STAMPS - 0x80000:#x}\nbuffer_store_dword v243, {v(vQL)}, {srd(sWS)}, {s(T1)} offen')
        a('v_mov_b32 v1, 0\ns_mov_b64 exec, 1')
        for k in range(4): a(f'buffer_store_dwordx4 {v(16+4*k,4)}, v1, {srd(sWS)}, {s(T0)} offen offset:{16*k}')
    a('s_endpgm')
    for f in a.late: f()
    a.label('L_end')
    a('s_endpgm')

WPH, WLq, WLk, vG, vPh, vPr, RAW = 8, 12, 14, 16, 18, 19, 160
sQa, sRec, sTl, sF1A, sLoB, sHiB, sC2 = 56, 57, 58, 59, 60, 61, 62
vXs, vOl, vF3, vF2 = 234, 240, 241, 242
def a_setup(a, part):
    if part == 0:
        a.c('feature-map weights (rows follow the rotated dim order of odd heads)')
        a(f'''v_and_b32 v1, 31, v0
        v_lshrrev_b32 v2, 5, v0
        v_cmp_eq_u32 vcc, 20, v1
        v_mov_b32 v3, 17
        v_mov_b32 v4, {OOB:#x}
        v_cndmask_b32 v3, v1, v3, vcc
        v_cmp_ge_u32 {s(T0,2)}, 16, v1
        s_or_b64 vcc, vcc, {s(T0,2)}
        v_lshlrev_b32 v3, 1, v3
        s_mul_i32 {s(T2)}, {s(sHA)}, 648
        v_cndmask_b32 v3, v4, v3, vcc
        v_mul_u32_u24 v5, 288, v2
        v_add_u32 v4, v3, v5
        s_and_b32 {s(T0)}, {s(sHA)}, 1
        s_mul_i32 {s(T1)}, {s(T0)}, 72
        s_add_u32 {s(T3)}, {s(T2)}, {s(T1)}
        s_mul_i32 {s(T1)}, {s(T0)}, 576
        s_sub_u32 {s(T2)}, {s(T2)}, {s(T1)}
        s_add_u32 {s(T2)}, {s(T2)}, 576''')
        for e in range(8):
            a(f'buffer_load_ushort {v(RAW + e)}, v4, {srd(sPHI)}, {s(T3)} offen offset:{e*36}')
        a(f'buffer_load_ushort {v(RAW+8)}, v3, {srd(sPHI)}, {s(T2)} offen\nbuffer_load_ushort {v(RAW+9)}, v3, {srd(sPHI)}, {s(T2)} offen offset:36')
    if part == 1:
        a.c('wo image lane offsets; flags of the producers of this wave\'s rows')
        a(f'''v_lshrrev_b32 v3, 3, v0
        v_bfe_u32 v4, v0, 4, 1
        v_lshlrev_b32 v4, 2, v4
        v_and_b32 v5, 7, v0
        v_xor_b32 v4, v4, v5
        v_mul_u32_u24 v3, 1152, v3
        v_lshl_add_u32 {v(vWO)}, v4, 4, v3
        v_lshrrev_b32 v3, 2, v0
        v_mul_u32_u24 v3, 1152, v3
        v_and_b32 v4, 3, v0
        v_lshl_add_u32 {v(vWO+1)}, v4, 4, v3''')
        a('v_lshrrev_b32 v4, 1, v0\nv_min_u32 v4, 2, v4\nv_and_b32 v5, 1, v0')
        producer_ct(a, 3, 4, 5, sHA, 6)
        a(f'''s_lshl_b32 {s(T0)}, {s(sRB)}, 1
        s_add_u32 {s(T0)}, {s(T0)}, {s(sMG)}
        v_lshl_add_u32 v3, v3, 4, {s(T0)}
        v_lshlrev_b32 v3, 7, v3
        v_add_u32 {v(vPoll)}, {FL1A:#x}, v3''')
    if part == 2:
        a.c('image addresses: tile = 8rb + 2w; leftover gather (half 0: q, half 1: k)')
        a(f'''s_lshl_b32 {s(sTl)}, {s(sRB)}, 3
        s_lshl_b32 {s(T1)}, {s(sW4)}, 1
        s_add_u32 {s(sTl)}, {s(sTl)}, {s(T1)}
        s_lshl_b32 {s(T1)}, {s(sHA)}, 6
        s_add_u32 {s(T0)}, {s(sTl)}, {s(T1)}
        s_lshl_b32 {s(sQa)}, {s(T0)}, 10
        s_add_u32 {s(sQa)}, {s(sQa)}, {QM + AOFF:#x}
        s_mul_i32 {s(sRec)}, {s(T0)}, {REC}
        s_add_u32 {s(sRec)}, {s(sRec)}, {KV + AOFF:#x}
        s_lshr_b32 {s(T0)}, {s(sHA)}, 1
        s_lshl_b32 {s(T0)}, {s(T0)}, 6
        s_add_u32 {s(T0)}, {s(T0)}, {s(sTl)}
        s_lshl_b32 {s(T0)}, {s(T0)}, 8
        s_and_b32 {s(T1)}, {s(sHA)}, 1
        s_lshl_b32 {s(T1)}, {s(T1)}, 2
        s_add_u32 {s(T0)}, {s(T0)}, {s(T1)}
        s_add_u32 {s(T0)}, {s(T0)}, {QL + AOFF:#x}
        v_mov_b32 v3, {s(T0)}''')
        kl_const(a, T1, sHA)
        a(f'''s_add_u32 {s(T1)}, {s(T1)}, {s(sRec)}
        v_mov_b32 v4, {s(T1)}
        v_mov_b32 v5, 256
        v_mov_b32 v6, {REC}
        v_cmp_gt_u32 vcc, 32, v0
        v_and_b32 v1, 31, v0
        v_lshrrev_b32 v2, 5, v0
        v_cndmask_b32 v3, v4, v3, vcc
        v_cndmask_b32 v5, v6, v5, vcc
        v_lshl_add_u32 {v(vG)}, v1, 3, v3
        v_add_u32 {v(vG+1)}, {v(vG)}, v5''')
        flag_addr(a, sF1A, sCT, sRT, 4, FL1A)
        a(f's_cmp_lg_u32 {s(sIdle)}, 0\ns_cselect_b32 {s(sF1A)}, {OOB:#x}, {s(sF1A)}')
    if part == 3:
        a.c('phi scratch: row-per-token writes, transposed reads')
        a(f'''s_mul_i32 {s(T0)}, {s(sW4)}, 5120
        s_add_u32 {s(T0)}, {s(T0)}, {PHS}
        v_and_b32 v1, 31, v0
        v_lshrrev_b32 v2, 5, v0
        v_mul_u32_u24 v3, 80, v1
        v_lshl_add_u32 v3, v2, 3, v3
        v_add_u32 {v(vPh)}, {s(T0)}, v3
        v_bfe_u32 v3, v0, 2, 2
        v_lshl_add_u32 v5, v2, 2, v3
        v_mul_u32_u24 v5, 80, v5
        v_add_u32 v5, {s(T0)}, v5
        v_and_b32 v4, 3, v0
        v_lshlrev_b32 v6, 3, v4
        v_and_b32 v3, 1, v0
        v_lshlrev_b32 v3, 3, v3
        v_add_u32 v3, 64, v3
        v_bfe_u32 v4, v0, 4, 1
        v_cmp_eq_u32 vcc, 0, v4
        v_add_u32 {v(vPr+1)}, v5, v6
        v_mov_b32 {v(WLq+1)}, 0
        v_cndmask_b32 v6, v3, v6, vcc
        v_mov_b32 {v(WLk+1)}, 0
        v_add_u32 {v(vPr)}, v5, v6''')
    if part == 4:
        for i in range(4): a(f'v_lshl_or_b32 {v(WPH + i)}, {v(RAW+1 + 2*i)}, 16, {v(RAW + 2*i)}')
        a(f'v_lshl_or_b32 v3, {v(RAW+9)}, 16, {v(RAW+8)}\nv_cmp_gt_u32 vcc, 32, v0\ns_nop 1\nv_cndmask_b32 {v(WLq)}, {v(vZero)}, v3, vcc\nv_cndmask_b32 {v(WLk)}, v3, {v(vZero)}, vcc')

def a_chain(a, opt):
    Fq, Fk, Fl, Fv = [36, 40], [44, 48], [52, 54], [56, 64]
    def lprio(x):
        if opt.get('lp', 1): a(f's_setprio {x}')
    a.label('L_achain')
    a.c('================= waves 4-7: publish A qkv, feature maps =================')
    def mains(sr, kq, slot): return [('m', (sr, kq), h, slot, 2*(kq & 1) + h) for h in range(2)]
    bg = mains(sAWO, 1, M_A) + mains(sAWO, 3, M_A + MB) + mains(sBWO, 0, M_C) + [('e', 1, 0, X_A, 2), ('e', 3, 1, X_A + EB, 3)]
    hold = [bool(opt.get('late', 0))]
    def bgdma():
        if bg and not hold[0]: issue_grp(a, *bg.pop(0))
    extra_flags(a)
    a(f'''s_lshl_b32 {s(sWB)}, {s(sOC)}, 7
    s_mul_i32 s3, {s(sW4)}, {8*1152}
    s_add_u32 {s(sWB)}, {s(sWB)}, s3
    s_lshl_b32 s3, s3, 1
    s_and_b32 {s(sWE)}, {s(sOC)}, 2
    s_lshl_b32 {s(sWE)}, {s(sWE)}, 5
    s_add_u32 {s(sWE)}, {s(sWE)}, s3
    s_add_u32 {s(sWE)}, {s(sWE)}, 1024
    s_bitcmp1_b32 {s(sOC)}, 2
    s_cselect_b32 {s(sEX)}, {s(sBWO)}, {s(sAWO)}
    s_cselect_b32 {s(sEX+1)}, {s(sBWO+1)}, {s(sAWO+1)}
    s_mov_b32 {s(sEX+2)}, {576*1152}
    s_mov_b32 {s(sEX+3)}, 0x20000
    s_mov_b32 {s(T2)}, {f2u(LOG2E):#x}
    s_mov_b32 {s(T3)}, {f2u(LOG2E):#x}
    v_mov_b32 {v(Fl[0]+1)}, 0
    v_mov_b32 {v(Fl[1]+1)}, 0
    s_waitcnt vmcnt(0)''')
    last_signals(a, 2, C_F1A, 4, sF1A)
    a.stamp(5)
    a.c('addresses for later stages, in the slots the attention leaves free while the producers finish')
    if opt.get('w1', 0) < 2: lprio(0)
    a(f's_mul_i32 {s(T6)}, {s(sMG)}, {MB}\ns_add_u32 {s(T6)}, {s(T6)}, {LATE}\ns_mul_i32 {s(T7)}, {s(sMG)}, {EB}\ns_add_u32 {s(T7)}, {s(T7)}, {LATE + 2*MB}')
    op_addr(a, vXs, 2, T6, T7)
    if opt.get('w1', 0): lprio(1)
    a(f'''v_and_b32 v1, 31, v0
    v_lshrrev_b32 v2, 5, v0
    v_lshlrev_b32 v3, 2, v1
    v_lshl_add_u32 {v(vOl)}, v2, 9, v3
    s_lshl_b32 {s(T0)}, {s(sOT)}, 1
    s_add_u32 {s(T0)}, {s(T0)}, {s(sMG)}
    s_lshl_b32 {s(T0)}, {s(T0)}, 11
    s_add_u32 {s(T0)}, {s(T0)}, {FL3:#x}
    v_and_b32 v3, 15, v0
    v_lshl_add_u32 {v(vF3)}, v3, 7, {s(T0)}
    v_and_b32 v3, 7, v0
    s_lshl_b32 {s(T0)}, {s(sHA)}, 10
    s_add_u32 {s(T0)}, {s(T0)}, {FL2:#x}
    v_lshl_add_u32 {v(vF2)}, v3, 7, {s(T0)}
    s_mov_b32 {s(sLoB)}, {f2u(2.0**-64):#x}
    s_mov_b32 {s(sHiB)}, {f2u(2.0**64):#x}''')
    lprio(1)
    poll_flags(a, vPoll, 2, sl=4)
    a.stamp(6)
    for tt in range(2):
        a(f'buffer_load_dwordx4 {v(Fk[tt],4)}, {v(v16)}, {srd(sWS)}, {s(sRec)} offen offset:{REC*tt} sc1')
        a(f'buffer_load_dword {v(Fl[tt])}, {v(vG + tt)}, {srd(sWS)}, 0 offen sc1')
    for tt in range(2): a(f'buffer_load_dwordx4 {v(Fq[tt],4)}, {v(v16)}, {srd(sWS)}, {s(sQa)} offen offset:{1024*tt} sc1')
    for tt in range(2):
        for f in range(2): a(f'buffer_load_dwordx4 {v(Fv[tt]+4*f,4)}, {v(vVf+f)}, {srd(sWS)}, {s(sRec)} offen offset:{REC*tt} sc1')
    lds_wait(a, 2, C_F1A, 4)
    D = {('k', 0): 80, ('k', 1): 96, ('q', 0): 112, ('q', 1): 128}
    a('s_waitcnt vmcnt(6)')
    lprio(0)
    for tt in range(2): mfma(a, D[('k', tt)], WLk, Fl[tt], None, '8')
    for tt in range(2): mfma(a, D[('q', tt)], WLq, Fl[tt], None, '8')
    a.nop(7)
    for tt in range(2): mfma(a, D[('k', tt)], WPH, Fk[tt], D[('k', tt)])
    a('s_waitcnt vmcnt(4)')
    for tt in range(2): mfma(a, D[('q', tt)], WPH, Fq[tt], D[('q', tt)])
    a.nop(8)
    lprio(1)
    dense = False
    EP, EM = 144, 156
    PH = {('q', 0): 204, ('q', 1): 214, ('k', 0): 168, ('k', 1): 178}
    def sums():
        a(f'''v_pk_add_f32 v[2:3], {v(EP,2)}, {v(EP+2,2)}
        v_pk_add_f32 v[4:5], {v(EM,2)}, {v(EM+2,2)}
        v_pk_add_f32 v[2:3], v[2:3], {v(EP+4,2)}
        v_pk_add_f32 v[4:5], v[4:5], {v(EM+4,2)}
        v_pk_add_f32 v[2:3], v[2:3], {v(EP+6,2)}
        v_pk_add_f32 v[4:5], v[4:5], {v(EM+6,2)}
        v_add_f32 v2, v2, {v(EP+8)}
        v_add_f32 v4, v4, {v(EM+8)}
        v_add_f32 v2, v2, v3
        v_add_f32 v4, v4, v5
        s_nop 1
        v_permlane32_swap_b32 v2, v4
        v_add_f32 v2, v2, v4''')
    def softmax_max(x, lab, back):
        a.label(lab)
        a(f'''v_max3_f32 v2, {v(x)}, {v(x+1)}, {v(x+2)}
        v_max3_f32 v4, -{v(x)}, -{v(x+1)}, -{v(x+2)}
        v_max3_f32 v2, v2, {v(x+3)}, {v(x+4)}
        v_max3_f32 v4, v4, -{v(x+3)}, -{v(x+4)}
        v_max3_f32 v2, v2, {v(x+5)}, {v(x+6)}
        v_max3_f32 v4, v4, -{v(x+5)}, -{v(x+6)}
        v_max3_f32 v2, v2, {v(x+7)}, {v(x+8)}
        v_max3_f32 v4, v4, -{v(x+7)}, -{v(x+8)}
        s_nop 1
        v_permlane32_swap_b32 v2, v4
        v_max_f32 v2, v2, v4
        v_mov_b32 v4, v2
        s_nop 1
        v_permlane32_swap_b32 v2, v4''')
        for i in range(9): a(f'v_sub_f32 {v(EP+i)}, {v(x+i)}, v2\nv_sub_f32 {v(EM+i)}, -{v(x+i)}, v4')
        for E in (EP, EM):
            for i in range(9): a(f'v_mul_f32 {v(E+i)}, {s(T2)}, {v(E+i)}')
        for E in (EP, EM):
            for i in range(9): a(f'v_exp_f32 {v(E+i)}, {v(E+i)}')
        sums()
        a(f's_branch {back}')
    def softmax2(x, P, lo=False):
        lab = a.new('smx'); back = a.new('smb')
        a.late.append(lambda: softmax_max(x, lab, back))
        for i in range(0, 8, 2): a(f'v_pk_mul_f32 {v(EM+i,2)}, {v(x+i,2)}, {s(T2,2)}')
        a(f'v_mul_f32 {v(EM+8)}, {s(T2)}, {v(x+8)}')
        bgdma()
        if lo == 2:
            hi = a.new('qh')
            a(f's_waitcnt vmcnt(4)\nv_cmp_ne_u32 vcc, {s(sTok)}, v7\ns_cbranch_vccz {hi}\ns_setprio 0')
            a.label(hi)
        elif lo: lprio(0)
        isq = P in (PH[('q', 0)], PH[('q', 1)])
        for i in range(9):
            a(f'v_exp_f32 {v(EP+i)}, {v(EM+i)}')
            if isq and dense and i in (2, 5): bgdma()
        bgdma()
        for i in range(9):
            a(f'v_exp_f32 {v(EM+i)}, -{v(EM+i)}')
            if isq and dense and i in (2, 5): bgdma()
        if lo: lprio(1)
        bgdma()
        if opt.get('qlo') == 5 and P == PH[('q', 0)]: a(f'buffer_load_dword v7, {v(vF2)}, {srd(sWS)}, 0 offen sc1')
        sums()
        a(f'''v_cmp_nle_f32 {s(sC2,2)}, {s(sLoB)}, v2
        v_cmp_nge_f32 vcc, {s(sHiB)}, v2
        s_or_b64 vcc, vcc, {s(sC2,2)}
        s_cbranch_scc1 {lab}''')
        a.label(back)
        a(f'''v_rcp_f32 v2, v2
        s_nop 0
        v_mov_b32 v4, v2
        s_nop 1
        v_permlane32_swap_b32 v2, v4''')
        for E, t in ((EP, 2), (EM, 4)):
            for i in range(0, 8, 2): a(f'v_pk_mul_f32 {v(E+i,2)}, {v(E+i,2)}, {v(t,2)} op_sel_hi:[1,0]')
            a(f'v_mul_f32 {v(E+8)}, {v(E+8)}, {v(t)}')
        bgdma()
        cvt8(a, EP, P); cvt8(a, EM, P+4)
        a(f'v_cvt_pk_bf16_f32 {v(P+8)}, {v(EP+8)}, {v(EM+8)}')
    for tt in range(2):
        P = PH[('k', tt)]
        softmax2(D[('k', tt)], P)
        o = 2560*tt
        a(f'''ds_write_b64 {v(vPh)}, {v(P,2)} offset:{o}
        ds_write_b64 {v(vPh)}, {v(P+2,2)} offset:{o+16}
        ds_write_b64 {v(vPh)}, {v(P+4,2)} offset:{o+32}
        ds_write_b64 {v(vPh)}, {v(P+6,2)} offset:{o+48}
        ds_write_b32 {v(vPh)}, {v(P+8)} offset:{o+64}''')
    a.c('kv partial of this wave: phi_k^T (transposed through LDS) x [v | 1]')
    KA = 144; KD = [80, 96]
    a('s_waitcnt lgkmcnt(0)')
    for k in range(4):
        for sg in range(2):
            for j in range(2):
                a(f'ds_read_b64_tr_b16 {v(KA+8*k+4*sg+2*j,2)}, {v(vPr+sg)} offset:{(16*k+8*j)*80 + 32*sg}')
    a(f'''s_mul_i32 {s(T0)}, {s(sW4)}, 5120
    s_add_u32 {s(T0)}, {s(T0)}, {PHS}
    v_add_u32 v6, {s(T0)}, {v(v16)}
    v_lshlrev_b32 v1, 3, v0
    v_add_u32 v7, {s(T0)}, v1
    s_waitcnt vmcnt({0 if hold[0] else 16}) lgkmcnt(0)''')
    lprio(0)
    for k in range(4):
        for sg in range(2): mfma(a, KD[sg], KA+8*k+4*sg, Fv[0]+4*k, None if k == 0 else KD[sg])
    a.nop(11)
    lprio(1)
    a(f'''ds_write_b128 v6, {v(KD[0],4)} 
    ds_write_b128 v6, {v(KD[0]+4,4)} offset:1024
    ds_write_b64 v7, {v(KD[0]+8,2)} offset:2048
    ds_write_b128 v6, {v(KD[1],4)} offset:2560
    ds_write_b128 v6, {v(KD[1]+4,4)} offset:3584
    s_waitcnt lgkmcnt(0)''')
    lds_arrive(a, C_KVX)
    a(f'''s_mul_i32 {s(T7)}, {s(sTH)}, 2560
    s_lshl_b32 {s(T1)}, {s(sMG)}, 10
    s_add_u32 {s(T7)}, {s(T7)}, {s(T1)}
    s_add_u32 {s(T1)}, {s(T7)}, {PHS}
    v_add_u32 v6, {s(T1)}, {v(v16)}
    v_add_u32 v7, {PHS}, v1
    s_lshl_b32 {s(T0)}, {s(sHA)}, 3
    s_add_u32 {s(T1)}, {s(T0)}, {s(sRB)}
    s_mul_i32 {s(T4)}, {s(T1)}, {KVPS}
    s_add_u32 {s(T4)}, {s(T4)}, {KVP:#x}
    s_add_u32 {s(T5)}, {s(T4)}, {s(T7)}
    s_lshl_b32 {s(T1)}, {s(T1)}, 7
    s_add_u32 {s(T1)}, {s(T1)}, {FL2:#x}''')
    lds_wait(a, 2, C_KVX, 4)
    R = 80
    for w in range(4): a(f'ds_read_b128 {v(R+4*w,4)}, v6 offset:{5120*w}')
    a(f's_cmp_lg_u32 {s(sW4)}, 3\ns_cbranch_scc1 L_kvx')
    for w in range(4): a(f'ds_read_b64 {v(R+16+2*w,2)}, v7 offset:{5120*w + 2048}')
    a('s_waitcnt lgkmcnt(0)')
    for w in range(1, 4): a(f'v_pk_add_f32 {v(R+16,2)}, {v(R+16,2)}, {v(R+16+2*w,2)}')
    a(f'buffer_store_dwordx2 {v(R+16,2)}, v1, {srd(sWS)}, {s(T4)} offen offset:2048 sc1')
    a.label('L_kvx')
    a('s_waitcnt lgkmcnt(0)')
    for w in range(1, 4):
        for k in range(2): a(f'v_pk_add_f32 {v(R+2*k,2)}, {v(R+2*k,2)}, {v(R+4*w+2*k,2)}')
    a(f'buffer_store_dwordx4 {v(R,4)}, {v(v16)}, {srd(sWS)}, {s(T5)} offen sc1')
    a('s_waitcnt vmcnt(0)')
    last_signals(a, 2, C_F2, 4, T1)
    a.stamp(7)
    a.c('================= waves 4-7: kv total, numerator / denominator =================')
    a(f'''s_lshl_b32 {s(T0)}, {s(sHA)}, 3
    s_mul_i32 {s(T4)}, {s(T0)}, {KVPS}
    s_add_u32 {s(T4)}, {s(T4)}, {KVP:#x}
    s_add_u32 {s(T5)}, {s(T4)}, {s(T7)}
    s_lshl_b32 {s(T7)}, {s(sTH)}, 10
    s_lshl_b32 {s(T0)}, {s(sMG)}, 3
    s_add_u32 {s(T7)}, {s(T7)}, {s(T0)}
    s_add_u32 {s(T7)}, {s(T7)}, {KVF}''')
    lds_wait(a, 2, C_F2, 4)
    assert not bg
    bg += mains(sAWO, 0, LATE) + mains(sAWO, 2, LATE + MB) + [('e', 0, 2, LATE + 2*MB, 0), ('e', 2, 3, LATE + 2*MB + EB, 1)]
    dense = hold[0]; hold[0] = False
    for tt in range(2):
        softmax2(D[('q', tt)], PH[('q', tt)], 2 if tt and opt.get('qlo') == 5 else bool(opt.get('qlo', 0) >> tt & 1))
        a(f'v_mov_b32 {v(PH[("q", tt)]+9)}, 0')
    assert not bg
    poll_flags(a, vF2, 2, sl=4)
    for i in range(8):
        a(f'buffer_load_dwordx4 {v(R+4*i,4)}, {v(v16)}, {srd(sWS)}, {s(T5)} offen sc1')
        if i < 7: a(f's_add_u32 {s(T5)}, {s(T5)}, {KVPS}')
    a(f'v_add_u32 v3, {s(T7)}, {v(v16)}\nv_add_u32 v6, {KVF + 2048}, v1\ns_cmp_lg_u32 {s(sW4)}, 3\ns_cbranch_scc1 L_kvs')
    for i in range(8):
        a(f'buffer_load_dwordx2 {v(R+32+2*i,2)}, v1, {srd(sWS)}, {s(T4)} offen offset:2048 sc1')
        if i < 7: a(f's_add_u32 {s(T4)}, {s(T4)}, {KVPS}')
    a('s_waitcnt vmcnt(0)')
    for i in range(1, 8): a(f'v_pk_add_f32 {v(R+32,2)}, {v(R+32,2)}, {v(R+32+2*i,2)}')
    a(f'v_cvt_pk_bf16_f32 v4, {v(R+32)}, {v(R+33)}\nv_mov_b32 v5, 0\nds_write_b64 v6, v[4:5]')
    a.label('L_kvs')
    a('s_waitcnt vmcnt(0)')
    for i in range(1, 8):
        for k in range(2): a(f'v_pk_add_f32 {v(R+2*k,2)}, {v(R+2*k,2)}, {v(R+4*i+2*k,2)}')
    a(f'v_cvt_pk_bf16_f32 v10, {v(R)}, {v(R+1)}\nv_cvt_pk_bf16_f32 v11, {v(R+2)}, {v(R+3)}\nds_write_b64 v3, v[10:11]\ns_waitcnt lgkmcnt(0)')
    lds_arrive(a, C_KVF)
    lds_wait(a, 2, C_KVF, 4)
    KF = 144
    a(f'''v_add_u32 v3, {KVF}, {v(v16)}
    ds_read_b64 {v(KF+8,2)}, v6
    ds_read_b128 {v(KF,4)}, v3
    ds_read_b128 {v(KF+4,4)}, v3 offset:1024
    s_mov_b32 {s(T0)}, {s(sTl)}''')
    o_addr(a, sHA, OAM, OAL)
    a.c('the o_B rows of the same tiles get the marker; the flag for o_A below covers these stores too')
    for i in range(4): a(f'v_mov_b32 {v(160+i)}, -1')
    for t in range(2):
        a(f's_add_u32 {s(T0)}, {s(T2+t)}, {OBM - OAM:#x}\nbuffer_store_dwordx4 v[160:163], {v(v16)}, {srd(sWS)}, {s(T0)} offen sc1')
    a('s_mov_b32 exec_hi, 0')
    for t in range(2):
        a(f's_add_u32 {s(T0)}, {s(T4+t)}, {OBL - OAL:#x}\nbuffer_store_dword v160, {v(vQL)}, {srd(sWS)}, {s(T0)} offen sc1')
    a('s_mov_b32 exec_hi, -1')
    a('s_waitcnt lgkmcnt(0)')
    ND = [80, 96]
    lprio(0)
    for tt in range(2): mfma(a, ND[tt], KF+8, PH[('q', tt)]+8, None, '8')
    a.nop(9)
    for tt in range(2): mfma(a, ND[tt], KF, PH[('q', tt)], ND[tt])
    for tt in range(2): mfma(a, ND[tt], KF+4, PH[('q', tt)]+4, ND[tt])
    a.nop(11)
    lprio(1)
    o_publish(a, ND, [112, 120], True)
    a(f's_lshr_b32 {s(T6)}, {s(sTl)}, 1')
    flag_addr(a, T1, T6, sHA, 5, FL3)
    wave_signals(a, 2, T1)
    a.stamp(8)
    a.c('================= waves 4-7: out projection of A (operands first, MFMAs after the attention) =================')
    W, O1, O2 = 16, 124, 160
    X, Y = 4, 10
    sM, sM2, sL = 59, 60, 61
    a(f's_or_b32 {s(T6)}, {s(sXa)}, {s(sXb)}')
    op_read_w(a, W, vXs, T6)
    a(f'''    s_lshl_b32 {s(T1)}, {s(sOT)}, 1
    s_add_u32 {s(T5)}, {s(sTH)}, {s(T1)}
    s_lshl_b32 {s(T0)}, {s(T5)}, 5
    s_lshl_b32 {s(T1)}, {s(sMG)}, 4
    s_add_u32 {s(T7)}, {s(T0)}, {s(T1)}
    s_lshl_b32 {s(sM)}, {s(T7)}, 10
    s_add_u32 {s(sM)}, {s(sM)}, {OAM:#x}
    s_add_u32 {s(sM2)}, {s(sM)}, 4096
    s_lshl_b32 {s(sL)}, {s(T7)}, 7
    s_add_u32 {s(sL)}, {s(sL)}, {OAL:#x}
    s_waitcnt lgkmcnt(0)''')
    lds_arrive(a, C_W1)
    lds_wait(a, 2, C_W1, 4)
    bg += mains(sBWO, 1, LATE) + mains(sBWO, 2, LATE + MB) + mains(sBWO, 3, LATE + 2*MB)
    bgdma(); bgdma()
    if opt.get('f0', 1): lprio(0)
    for i in range(6): a((f'v_mov_b32 {v(X+i)}, {v(vXs+i)}\n' if i < 4 else '') + f'v_subrev_u32 {v(Y+i)}, {LATE - M_A}, {v(vXs+i)}')
    final_setup(a); final_state(a)
    lprio(1)
    bgdma(); bgdma()
    poll_flags(a, vF3, 2, sl=2)
    a.c('short batches keep the memory queue of the CU free for the attention waves')
    for O in (O1, O2):
        for h in range(2):
            for i in range(4): a(f'buffer_load_dwordx4 {v(O+16*h+4*i,4)}, {v(v16)}, {srd(sWS)}, {s(sM2 if h else sM)} offen offset:{1024*i} sc1')
            if h:
                for i in range(4): a(f'buffer_load_dword {v(O+32+i)}, {v(vOl)}, {srd(sWS)}, {s(sL)} offen offset:{128*i} sc1')
                bgdma()
            if h or not opt.get('ob2', 1): a(f's_waitcnt vmcnt({opt.get("othr", 2)})')
        if O == O1: a(f's_add_u32 {s(sM)}, {s(sM)}, 8192\ns_add_u32 {s(sM2)}, {s(sM2)}, 8192\ns_add_u32 {s(sL)}, {s(sL)}, 1024')
    assert not bg
    a('s_waitcnt vmcnt(0)')
    a.stamp(9)
    pre = opt.get('pre', 0)
    mid = opt.get('mid', 1)
    a('s_setprio 0')
    for ps, (O, nxt) in enumerate(((O1, Y), (O2, X))):
        if ps == 1:
            a('s_waitcnt lgkmcnt(0)')
            lds_arrive(a, C_W3)
        for st in range(9):
            if 9*ps + st == pre: a(f's_barrier\ns_setprio {opt.get("prio2", 0)}')
            if opt.get('p4') and 9*ps + st in (pre, 9): a.stamp(5 if ps == 0 else 4)
            rd = op_w_reads(W, nxt, st - 1, MB*ps) if st else [''] * 4
            for T in range(2):
                mfma(a, ACA[T], W + 8*st + 4*T, O + 4*st, None if (ps == 0 and st == 0) else ACA[T])
                a(rd[2*T]); a(rd[2*T+1])
            k = 9*ps + st
            if mid and k == mid:
                a(f's_waitcnt vmcnt(0)\nv_cmp_ne_u32 vcc, {s(sTok)}, {v(vFlg)}')
                half_try(a)
                lb = a.new('ml')
                a(f's_min_u32 {s(T0)}, {s(sA)}, {s(sB_)}\ns_cmp_eq_u32 {s(T0)}, 0\ns_cbranch_scc1 {lb}\ns_mov_b32 {s(sC)}, 1')
                left_ld(a)
                a.label(lb)
            if k == (mid - opt.get('midd', 6) if mid else 14) or (mid and k == mid): flag_ld(a)
        a('\n'.join(op_w_reads(W, nxt, 8, MB*ps)))
        lb = a.new('xa')
        a(f's_cmp_eq_u32 {s(sXa)}, 0\ns_cbranch_scc1 {lb}')
        for st in range(9):
            mfma(a, ACA[2], W + 72 + 4*st, O + 4*st, None if (ps == 0 and st == 0) else ACA[2])
            if ps == 0 and st: a('\n'.join(op_e_reads(W, Y, st - 1)))
        if ps == 0: a('\n'.join(op_e_reads(W, Y, 8)))
        a.label(lb)
    if opt.get('p4'): a.stamp(3)
    a('s_setprio 0')
    lds_wait(a, 2, C_W3, 4, sl=0)
    if opt.get('nojq'): lds_arrive(a, C_WB)
    a(f's_mul_i32 {s(T0)}, {s(sW4)}, {WSTR}\ns_add_u32 {s(T0)}, {s(T0)}, {ARED}\nv_add_u32 v1, {s(T0)}, {v(v16)}')
    for q in range(8): a(f'ds_write_b128 v1, {v(ACA[0]+4*q,4)} offset:{QS*q}')
    a(f's_cmp_eq_u32 {s(sXa)}, 0\ns_cbranch_scc1 L_anx\ns_mul_i32 {s(T0)}, {s(sMG)}, {4*QS}\ns_add_u32 {s(T0)}, {s(T0)}, {EXR}\nv_add_u32 v1, {s(T0)}, {v(v16)}')
    for q in range(4): a(f'ds_write_b128 v1, {v(ACA[2]+4*q,4)} offset:{QS*q}')
    a.label('L_anx')
    a.stamp(2)

HEADER = '''; Fused hedgehog linear attention (A) + softmax MHA (B), one persistent launch of 256 workgroups.
; kernarg: A_x A_wqkv A_w_phi A_wo B_x B_wqkv B_wo out debug ws (8-byte pointers, in that order)
; @launch grid=(256,1,1) block=(512,1,1) lds=%d
.amdgcn_target "amdgcn-amd-amdhsa--gfx950"
.text
.globl %s_kernel
.p2align 8
.type %s_kernel,@function
%s_kernel:
''' % (LDS_BYTES, NAME, NAME, NAME)
FOOTER = '''.section .rodata,"a"
.p2align 6
.amdhsa_kernel %s_kernel
  .amdhsa_next_free_vgpr 256
  .amdhsa_next_free_sgpr 102
  .amdhsa_accum_offset 256
  .amdhsa_group_segment_fixed_size 0
  .amdhsa_kernarg_size 80
  .amdhsa_user_sgpr_count 2
  .amdhsa_user_sgpr_kernarg_segment_ptr 1
  .amdhsa_system_sgpr_workgroup_id_x 1
.end_amdhsa_kernel
''' % NAME

OPT = {}
def generate(diag=False, **opt):
    opt = {**dict(rot=0, thr=3, sig=12, ldp=1, qlo=3, w1=2, prio2=1, mid=0, ob2=0, phij=-1, sched=2, nojq=1), **opt}
    OPT.clear(); OPT.update(opt)
    a = Asm(diag)
    prologue(a, opt)
    a_chain(a, opt)
    final(a)
    body = a.text()
    bad = lint(body)
    for x in bad: print(f"HAZARD line {x[0]} -> {x[1]}: {x[2]} need {x[3]} have {x[4]}\n    {x[5]}\n    {x[6]}", file=sys.stderr)
    return HEADER + (f'    ; stamps={STAMPS + (opt.get("wsoff", 0) << 20):#x}\n' if diag else '') + body + FOOTER, len(bad)

if __name__ == '__main__':
    import argparse
    ap = argparse.ArgumentParser()
    ap.add_argument('-o', default=f'cdna_kernels/{NAME}.s')
    ap.add_argument('--diag', action='store_true')
    ap.add_argument('--opt', action='append', default=[])
    g = ap.parse_args()
    opt = {}
    for o in g.opt:
        k, val = o.split('='); opt[k] = int(val)
    text, nbad = generate(g.diag, **opt)
    open(g.o, 'w').write(text)
    print(f'wrote {g.o}: {len(text)} bytes, {nbad} hazards')
```

```python
import sys, struct
from lint import lint

NAME = 'concat_heads__linear_kernel_hedgehog__softmax_full_mha__prompt'
OOB = 0x40000000
QM, QL, KV = 0x0, 0x200000, 0x240000
REC = 2560; HREC = 64 * REC
VLOFF, ONEOFF, KLOFF = 2048, 2176, 2304
AOFF = 0x740000
OAM, OAL, OBM, OBL = 0xE80000, 0x1080000, 0x10C0000, 0x12C0000
KVP = 0x1300000; KVPS = 4608
FL1, FL1A, FL2, FL3, FL4 = 0x1420000, 0x1428000, 0x1430000, 0x1440000, 0x1460000
EPOCH = 0x1438000
STAMPS = 0x1500000
WS_BYTES = 0x1800000
XA = 0
WS0 = 28672
MB, EB = 18432, 9216
M_A, X_A, M_C, LATE = WS0, WS0 + 2*MB, WS0 + 2*MB + 2*EB, WS0 + 3*MB + 2*EB
PHS = LATE
EAX = 131072
CNT = LATE + 3*MB
KVF = CNT + 256
LDS_BYTES = 163840
C_F1, C_F1A, C_KVX, C_F2, C_KVF, C_F3, C_OPA, C_F4, C_BAD, C_W1, C_TOK, C_G, C_W3, C_WB = [4 * i for i in range(14)]
sBX, sBW, sAX, sAW, sPHI, sAWO, sBWO, sOUT, sDBG, sWS = 4, 8, 12, 16, 20, 24, 28, 32, 36, 40
sWave, sCT, sRT, sH = 44, 45, 46, 47
T0, T1, T2, T3, T4, T5, T6, T7 = range(48, 56)
sTab, sS0, sDoSc, sIdle = 64, 65, 66, 67
sQB, sRot, sFree, sOT, sOC, sTok, sLoc, sXcd = 68, 69, 70, 71, 72, 73, 74, 75
sHA, sRB = sH, sQB
sSpin, sTH, sMG, sTile = 76, 77, 78, 79
SSTAMP = 80
sW4, sImg, sXB, sWB, sLh2, sLt2 = 96, 97, 98, 99, 100, 101
v16, vQL, vCnt, vOne, vZero, vPoll, vTok = 244, 245, 246, 247, 248, 249, 250
vVf = 252
EA, ES = 72, 84
vWO = 224
vX, vW, XAc, WAc, XAr, WAr, vTab = 228, 232, 24, 28, 32, 36, 39
ACC = {('a', 0): 96, ('a', 1): 112, ('b', 0): 128, ('b', 1): 144}
FS = [176, 192, 40, 56]
def m_of(sl): return 9*(sl >> 2) + 2*(sl & 1) + 5*((sl >> 1) & 1)
def ct_table(ct):
    lo = 32*ct; s0 = next(x for x in range(200) if m_of(x) >= lo)
    used = {m_of(x) + d for x in range(s0, s0 + 12) for d in (0, 1)}
    misc = [m - lo for m in range(lo, lo + 32) if m not in used]
    assert misc[4:] == [28, 29, 30, 31]
    return sum(c << (5*i) for i, c in enumerate(misc[:4])) | (s0 << 20)

LOG2E = 1.4426950408889634
def f2u(x): return struct.unpack('<I', struct.pack('<f', x))[0]
QSCALE = f2u(18 ** -0.5 * LOG2E)

def v(a, n=1): return f'v{a}' if n == 1 else f'v[{a}:{a+n-1}]'
def s(a, n=1): return f's{a}' if n == 1 else f's[{a}:{a+n-1}]'
def srd(a): return s(a, 4)

import re
def unpack(x):
    m = re.match(r'v_pk_(add_f32|mul_f32|mov_b32) ([vs])\[(\d+):\d+\], ([vs])\[(\d+):\d+\], ([vs])\[(\d+):\d+\](.*)', x)
    op, _, d, k0, a0, k1, a1, mod = m.groups(); d, a0, a1 = int(d), int(a0), int(a1); mod = mod.strip()
    if op == 'mov_b32':
        assert mod == 'op_sel:[0,1]'
        return [f'v_mov_b32 v{d}, v{a0}', f'v_mov_b32 v{d+1}, v{a1+1}']
    assert mod in ('', 'op_sel_hi:[1,0]') and k0 == 'v'
    h = 0 if mod else 1
    return [f'v_{op} v{d}, {k1}{a1}, v{a0}', f'v_{op} v{d+1}, {k1}{a1+h}, v{a0+1}']

class Asm:
    def __init__(self, diag=False):
        self.L = []; self.uid = 0; self.diag = diag; self.lock = False; self.nopk = False; self.late = []; self.early = []
    def __call__(self, t):
        for x in t.split('\n'):
            x = x.strip()
            if not x: continue
            if self.nopk and x.startswith('v_pk_'): self.L += ['    ' + y for y in unpack(x)]
            else: self.L.append('    ' + x)
    def label(self, n): self.L.append(n + ':')
    def c(self, t): self.L.append('    ; ' + t)
    def new(self, p):
        self.uid += 1; return f'L_{p}{self.uid}'
    def nop(self, n):
        while n > 0:
            k = min(n, 16); self(f's_nop {k-1}'); n -= k
    def stamp(self, k):
        if self.diag and not self.lock:
            self(f's_memrealtime {s(94,2)}\ns_waitcnt lgkmcnt(0)\ns_mov_b32 {s(SSTAMP+k)}, s94')
    def lstamp(self, sreg, base=0):
        if self.diag:
            self(f's_memrealtime s[94:95]\ns_add_u32 s95, {sreg}, {base}\ns_mov_b32 s93, s95\ns_waitcnt lgkmcnt(0)\nv_writelane_b32 v243, s94, s93'.replace('s_add_u32 s95', 's_add_u32 s93').replace('s_mov_b32 s93, s95\n', '').replace('v_writelane_b32 v243, s94, s93', 's_mov_b32 m0, s93\nv_writelane_b32 v243, s94, m0'))
    def cyc0(self):
        if self.diag: self('s_memtime s[94:95]\ns_waitcnt lgkmcnt(0)\ns_mov_b32 s93, s94')
    def cyc1(self):
        if self.diag: self('s_memtime s[94:95]\ns_waitcnt lgkmcnt(0)\ns_sub_u32 s93, s94, s93')
    def text(self): return '\n'.join(self.L) + '\n'

class VM:
    def __init__(self): self.q = []
    def add(self, tag, n=1): self.q += [tag] * n
    def after(self, tag):
        i = max(k for k, t in enumerate(self.q) if t == tag)
        return len(self.q) - 1 - i

def mfma_s(d, x, y, c=None, kind='16'):
    op = {'16': 'v_mfma_f32_32x32x16_bf16', '8': 'v_mfma_f32_32x32x8_bf16', '2b': 'v_mfma_f32_32x32x4_2b_bf16'}[kind]
    nd = 32 if kind == '2b' else 16; na = 4 if kind == '16' else 2
    return f'{op} {v(d,nd)}, {v(x,na)}, {v(y,na)}, {"0" if c is None else v(c,nd)}'
def mfma(a, *k, **kw): a(mfma_s(*k, **kw))

def opol(k): return ['', ' sc1', ' nt', ' sc0 sc1', ' sc1 nt'][OPT.get(k, 0)]

def cvt8(a, src, dst):
    for i in range(4): a(f'v_cvt_pk_bf16_f32 {v(dst+i)}, {v(src+2*i)}, {v(src+2*i+1)}')

SRDS = {sAX: (0, 2048*1152), sAW: (8, 576*3456), sPHI: (16, 32*648), sAWO: (24, 576*1152), sBX: (32, 2048*1152),
        sBW: (40, 576*3456), sBWO: (48, 576*1152), sOUT: (56, 2048*2304), sDBG: (64, 256), sWS: (72, WS_BYTES)}
def ld_srd(a, rs):
    for r in rs: a(f's_load_dwordx2 {s(r,2)}, s[0:1], {SRDS[r][0]}')
def mk_srd(a, rs):
    for r in rs:
        if r == sWS and OPT.get('wsoff'): a(f's_waitcnt lgkmcnt(0)\ns_add_u32 {s(r)}, {s(r)}, {OPT["wsoff"] << 20:#x}\ns_addc_u32 {s(r+1)}, {s(r+1)}, 0')
    for r in rs: a(f's_mov_b32 {s(r+2)}, {SRDS[r][1]:#x}\ns_mov_b32 {s(r+3)}, 0x20000')

def spin_tail(a, top, sl=1):
    a((f's_sleep {sl}\n' if sl else '') + f's_sub_u32 {s(sSpin)}, {s(sSpin)}, 1\ns_cbranch_scc0 {top}\ns_endpgm')

def token_issue(a):
    a(f'buffer_load_dwordx2 {v(vTok,2)}, {v(vZero)}, {srd(sDBG)}, 0 offen sc1')
def token_check(a):
    top = a.new('tok'); done = a.new('tokd')
    a.label(top)
    a(f'v_readfirstlane_b32 {s(T0)}, {v(vTok+1)}\nv_readfirstlane_b32 {s(sTok)}, {v(vTok)}\ns_cmp_lg_u32 {s(T0)}, 0\ns_cbranch_scc1 {done}')
    token_issue(a)
    a('s_waitcnt vmcnt(0)')
    spin_tail(a, top)
    a.label(done)

def poll_flags(a, vaddr, vt, preloaded=False, sl=1):
    top = a.new('poll'); done = a.new('polld'); chk = a.new('pollc')
    if preloaded: a(f's_branch {chk}')
    a.label(top)
    a(f'buffer_load_dword {v(vt)}, {v(vaddr)}, {srd(sWS)}, 0 offen sc1\ns_waitcnt vmcnt(0)')
    a.label(chk)
    a(f'v_cmp_ne_u32 vcc, {s(sTok)}, {v(vt)}\ns_cbranch_vccz {done}')
    spin_tail(a, top, sl)
    a.label(done)

def last_signals(a, vt, ctr, n, sflag):
    skip = a.new('nsig')
    a(f's_mov_b64 exec, 1\nds_add_rtn_u32 {v(vt)}, {v(vCnt)}, {v(vOne)} offset:{ctr}\ns_waitcnt lgkmcnt(0)')
    a(f'v_readfirstlane_b32 {s(T0)}, {v(vt)}\nv_mov_b32 {v(vt)}, {s(sflag)}\nv_mov_b32 {v(vt+1)}, {s(sTok)}\ns_cmp_lg_u32 {s(T0)}, {n-1}\ns_cbranch_scc1 {skip}')
    a(f'buffer_store_dword {v(vt+1)}, {v(vt)}, {srd(sWS)}, 0 offen sc1')
    a.label(skip)
    a('s_mov_b64 exec, -1')

def wave_signals(a, vt, sflag):
    a(f'v_mov_b32 {v(vt)}, {s(sflag)}\nv_mov_b32 {v(vt+1)}, {s(sTok)}\ns_waitcnt vmcnt(0)\ns_mov_b64 exec, 1')
    a(f'buffer_store_dword {v(vt+1)}, {v(vt)}, {srd(sWS)}, 0 offen sc1\ns_mov_b64 exec, -1')

def lds_arrive(a, ctr):
    a(f's_mov_b64 exec, 1\nds_add_u32 {v(vCnt)}, {v(vOne)} offset:{ctr}\ns_mov_b64 exec, -1')

def lds_wait(a, vt, ctr, n, sl=2):
    top = a.new('lw'); done = a.new('lwd')
    a.label(top)
    a(f'ds_read_b32 {v(vt)}, {v(vCnt)} offset:{ctr}\ns_waitcnt lgkmcnt(0)\nv_readfirstlane_b32 {s(T0)}, {v(vt)}\ns_cmp_ge_u32 {s(T0)}, {n}\ns_cbranch_scc1 {done}')
    spin_tail(a, top, sl)
    a.label(done)

def flag_addr(a, dst, shi, slo, sh, base):
    a(f's_lshl_b32 {s(dst)}, {s(shi)}, {sh}\ns_add_u32 {s(dst)}, {s(dst)}, {s(slo)}\ns_lshl_b32 {s(dst)}, {s(dst)}, 7\ns_add_u32 {s(dst)}, {s(dst)}, {base:#x}')

def kl_const(a, dst, shead):
    a(f's_bitcmp1_b32 {s(shead)}, 0\ns_mov_b32 {s(dst)}, {HREC + KLOFF}\ns_cselect_b32 {s(dst)}, {KLOFF + 4}, {s(dst)}')

def producer_ct(a, d, ty, last, shead, t):
    a(f'''s_lshr_b32 {s(T0)}, {s(shead)}, 1
    s_mul_i32 {s(T0)}, {s(T0)}, 36
    s_and_b32 {s(T1)}, {s(shead)}, 1
    s_lshl_b32 {s(T1)}, {s(T1)}, 4
    s_add_u32 {s(T0)}, {s(T0)}, {s(T1)}
    v_mul_u32_u24 {v(d)}, 576, {v(ty)}
    v_mul_u32_u24 {v(t)}, 19, {v(last)}
    v_add3_u32 {v(d)}, {v(d)}, {v(t)}, {s(T0)}
    v_lshrrev_b32 {v(d)}, 7, {v(d)}''')

def issue_chunk(a, j):
    if OPT.get('nodma') and j > 1: return
    slot = (j % 4) * 32768; c = j % 9
    if OPT.get('samek'): c = 0
    X, W = (sBX, sBW) if j < 9 else (sAX, sAW)
    nx = ' nt' if OPT.get('nt', 0) & 1 else ''; nw = ' nt' if OPT.get('nt', 0) & 2 else ''
    if OPT.get('rot', 0):
        a(f'''s_add_u32 vcc_lo, {s(sRot)}, {c}
        s_cmp_ge_u32 vcc_lo, 9
        s_cselect_b32 vcc_hi, 9, 0
        s_sub_u32 vcc_lo, vcc_lo, vcc_hi
        s_mul_i32 vcc_hi, vcc_lo, {64*3456}
        s_add_u32 vcc_hi, vcc_hi, {s(sWB)}
        s_lshl_b32 vcc_lo, vcc_lo, 7
        s_add_u32 vcc_lo, vcc_lo, {s(sXB)}
        s_lshl_b32 s3, {s(sW4)}, 12
        s_add_u32 m0, s3, {slot}
        s_nop 0''')
    else:
        a(f's_lshl_b32 s3, {s(sW4)}, 12\ns_add_u32 m0, s3, {slot}\ns_add_u32 vcc_lo, {s(sXB)}, {128*c}\ns_add_u32 vcc_hi, {s(sWB)}, {64*3456*c}')
    for i in range(4): a(f'buffer_load_dwordx4 {v(vX+i)}, {srd(X)}, vcc_lo offen offset:{1024*i}{nx} lds')
    a(f's_add_u32 m0, s3, {slot + 16384}\ns_nop 0')
    for i in range(4): a(f'buffer_load_dwordx4 {v(vW+i)}, {srd(W)}, vcc_hi offen offset:{1024*i}{nw} lds')

def su_loader(a):
    a.c('loader lane offsets: x rows (xor-swizzled 16-byte pieces), w rows (16 pieces, rotated by four per row)')
    a(f'''v_lshrrev_b32 v1, 3, v0
    v_and_b32 v2, 7, v0
    v_lshrrev_b32 v3, 1, v1
    v_xor_b32 v2, v2, v3
    v_mul_u32_u24 v1, 1152, v1
    v_lshl_add_u32 {v(vX)}, v2, 4, v1
    v_xor_b32 v2, 4, v2
    v_lshl_add_u32 {v(vX+1)}, v2, 4, v1
    v_add_u32 {v(vX+1)}, {8*1152-1024}, {v(vX+1)}
    v_add_u32 {v(vX+2)}, {2*(8*1152-1024)}, {v(vX)}
    v_add_u32 {v(vX+3)}, {2*(8*1152-1024)}, {v(vX+1)}
    v_lshrrev_b32 v1, 4, v0
    v_lshlrev_b32 v2, 2, v1
    v_sub_u32 v2, v0, v2
    v_and_b32 v2, 15, v2
    v_mul_u32_u24 v1, 3456, v1
    v_lshl_add_u32 v5, v2, 4, v1
    s_cmp_eq_u32 {s(sCT)}, 13
    s_cselect_b32 s3, 8, 16
    v_cmp_gt_u32 vcc, s3, v2
    v_mov_b32 v7, {OOB:#x}
    s_nop 0
    v_cndmask_b32 {v(vW)}, v7, v5, vcc''')
    for i in range(1, 4): a(f'v_add_u32 {v(vW+i)}, {i*(4*3456-1024)}, {v(vW)}')
    su_loader_s(a)

def su_loader_s(a):
    a(f'''s_lshl_b32 {s(sXB)}, {s(sRT)}, 2
    s_add_u32 {s(sXB)}, {s(sXB)}, {s(sW4)}
    s_mul_i32 {s(sXB)}, {s(sXB)}, {32*1152}
    s_mul_i32 {s(sWB)}, {s(sW4)}, {16*3456}
    s_lshl_b32 s3, {s(sCT)}, 8
    s_add_u32 {s(sWB)}, {s(sWB)}, s3''')

def su_ids2(a):
    a(f'''s_lshl_b32 s3, {s(sXcd)}, 2
    s_and_b32 {s(sH)}, {s(sLoc)}, 3
    s_add_u32 {s(sH)}, {s(sH)}, s3
    s_lshr_b32 {s(sQB)}, {s(sLoc)}, 2
    s_lshr_b32 {s(sOT)}, {s(sLoc)}, 3
    s_add_u32 {s(sOT)}, {s(sOT)}, s3
    s_and_b32 {s(sOC)}, {s(sLoc)}, 7
    s_mov_b32 {s(sSpin)}, 0x40000
    s_and_b32 {s(sTH)}, {s(sWave)}, 1
    s_lshr_b32 {s(sMG)}, {s(sW4)}, 1
    s_cmp_lt_u32 {s(sWave)}, 4
    s_cselect_b32 {s(sImg)}, 0, {AOFF:#x}
    v_mov_b32 {v(vZero)}, 0
    v_mov_b32 {v(vCnt)}, {CNT}
    v_mov_b32 {v(vOne)}, 1''')

def su_token(a, part):
    lb = a.new('notok')
    a(f's_or_b32 s3, s2, {s(sWave)}\ns_cmp_lg_u32 s3, 0\ns_cbranch_scc1 {lb}\ns_mov_b32 {s(T0)}, {EPOCH:#x}')
    if part == 0:
        a(f'buffer_load_dword v10, {v(vZero)}, {srd(sWS)}, {s(T0)} offen sc1')
    else:
        a(f'''s_mov_b32 {s(T1)}, 1664525
        s_waitcnt vmcnt(0)
        v_mul_lo_u32 v6, v10, {s(T1)}
        v_add_u32 v6, 0x3c6ef35f, v6
        v_mov_b32 v7, 1
        s_mov_b64 exec, 1
        buffer_store_dwordx2 v[6:7], {v(vZero)}, {srd(sDBG)}, 0 offen sc1
        buffer_store_dword v6, {v(vZero)}, {srd(sWS)}, {s(T0)} offen sc1
        s_mov_b64 exec, -1''')
    a.label(lb)
    if part == 0:
        a(f's_cmp_lg_u32 {s(sWave)}, 1\ns_cbranch_scc1 L_nocnt\nv_lshlrev_b32 v1, 2, v0\nv_add_u32 v1, {CNT}, v1\nds_write_b32 v1, {v(vZero)}')
        a.label('L_nocnt')

def su_gaddr(a):
    lb = a.new('mg0')
    a.c('gemm fragment addresses')
    a(f'''v_and_b32 v1, 31, v0
    v_lshrrev_b32 v2, 5, v0
    v_bfe_u32 v3, v0, 1, 3
    v_xor_b32 v3, v3, v2
    s_lshl_b32 s3, {s(sTH)}, 13
    v_lshl_add_u32 v4, v1, 7, s3''')
    for k in range(4):
        a(f'v_xor_b32 v5, {2*k}, v3\nv_lshl_add_u32 {v(XAc+k)}, v5, 4, v4')
    a.c('which four-column chunk each lane group reads for the two 32-column tiles of this wave')
    a(f'''v_bfe_u32 v3, v0, 2, 2
    v_and_b32 v4, 3, v0
    v_bfe_u32 v5, v0, 4, 1
    v_lshl_add_u32 v4, v5, 2, v4
    v_lshl_add_u32 v5, v2, 3, v3
    v_lshlrev_b32 v5, 8, v5
    v_add_u32 v5, 16384, v5
    v_lshlrev_b32 v3, 2, v3
    s_lshl_b32 s3, {s(sMG)}, 4''')
    for u in range(2): a(f'v_add_u32 {v(WAc+u)}, s3, v4' + (f'\nv_add_u32 {v(WAc+u)}, 8, {v(WAc+u)}' if u else ''))
    a(f's_cmp_ge_u32 {s(sCT)}, 9\ns_cbranch_scc1 {lb}')
    a(f'''v_lshrrev_b32 v6, 2, v4
    v_and_b32 v7, 1, v4
    v_lshl_add_u32 v6, v6, 1, v7
    s_lshl_b32 s3, {s(sMG)}, 3
    s_add_u32 s3, s3, {s(sS0)}
    v_add_u32 v6, s3, v6
    v_lshrrev_b32 v7, 2, v6
    v_mul_u32_u24 v7, 9, v7
    v_and_b32 v1, 1, v6
    v_lshl_add_u32 v7, v1, 1, v7
    v_bfe_u32 v1, v6, 1, 1
    v_mul_u32_u24 v1, 5, v1
    v_bfe_u32 v6, v4, 1, 1
    v_add3_u32 v7, v7, v1, v6
    s_lshl_b32 s3, {s(sCT)}, 5
    v_subrev_u32 {v(WAc)}, s3, v7
    v_add_u32 {v(WAc+1)}, 9, {v(WAc)}
    s_cmp_eq_u32 {s(sMG)}, 0
    s_cbranch_scc1 {lb}''')
    misc_chunk(a, WAc+1, 4, 6)
    a.label(lb)
    for u in range(2):
        a(f'''v_lshrrev_b32 v6, 1, {v(WAc+u)}
        v_add_u32 v6, v6, v3
        v_and_b32 v6, 15, v6
        v_lshl_add_u32 v6, v6, 4, v5
        v_and_b32 {v(WAc+u)}, 1, {v(WAc+u)}
        v_lshl_add_u32 {v(WAc+u)}, {v(WAc+u)}, 3, v6''')

def misc_chunk(a, d, c8, t):
    a(f'''v_mul_u32_u24 {v(t)}, 5, {v(c8)}
    v_lshrrev_b32 {v(t)}, {v(t)}, {v(vTab)}
    v_and_b32 {v(t)}, 31, {v(t)}
    v_cmp_gt_u32 vcc, 4, {v(c8)}
    v_add_u32 {v(d)}, 24, {v(c8)}
    s_nop 0
    v_cndmask_b32 {v(d)}, {v(d)}, {v(t)}, vcc''')

def su_tab(a):
    a(f's_mov_b32 {s(sTab)}, {ct_table(0):#x}')
    for ct in range(1, 9): a(f's_cmp_eq_u32 {s(sCT)}, {ct}\ns_cselect_b32 {s(sTab)}, {ct_table(ct):#x}, {s(sTab)}')
    a(f'''s_lshr_b32 {s(sS0)}, {s(sTab)}, 20
    v_mov_b32 {v(vTab)}, {s(sTab)}
    s_lshl_b32 {s(sTile)}, {s(sRT)}, 2
    s_lshl_b32 s3, {s(sTH)}, 1
    s_add_u32 {s(sTile)}, {s(sTile)}, s3
    s_cmp_le_u32 {s(sCT)}, 4
    s_cselect_b32 {s(sDoSc)}, 1, 0
    s_cmp_eq_u32 {s(sImg)}, 0
    s_cselect_b32 {s(sDoSc)}, {s(sDoSc)}, 0
    s_cmp_ge_u32 {s(sLoc)}, 28
    s_cselect_b32 {s(sIdle)}, 1, 0
    v_lshlrev_b32 {v(v16)}, 4, v0
    v_lshlrev_b32 {v(vQL)}, 2, v0''')

def su_epi(a, o, stage=None):
    if stage == 1:
        for k in range(6):
            a(f'ds_bpermute_b32 {v(EA+2*k)}, v2, v6 offset:{8*k}\nds_bpermute_b32 {v(EA+2*k+1)}, v2, v7 offset:{8*k}\nds_bpermute_b32 {v(ES+k)}, v2, v9 offset:{8*k}')
        return
    if stage == 2:
        for k in range(6):
            a(f'''v_and_b32 v3, 31, {v(EA+2*k+1)}
            v_mad_u32_u24 {v(EA+2*k)}, v1, v3, {v(EA+2*k)}
            v_sub_u32 v3, {v(EA+2*k+1)}, v3
            v_add_u32 {v(EA+2*k+1)}, {v(EA+2*k)}, v3''')
        return
    a(f'v_and_b32 v1, 31, v0\nv_lshrrev_b32 v2, 5, v0\ns_mul_i32 {s(T1)}, {s(sTile)}, {REC}')
    if o == 'S':
        a(f's_add_u32 {s(T1)}, {s(T1)}, {KV:#x}\ns_sub_u32 {s(T2)}, {s(sCT)}, 9\ns_lshl_b32 {s(T2)}, {s(T2)}, 7')
        for u in range(2): su_epi_v(a, u)
        for r in range(EA + 5, EA + 12): a(f'v_mov_b32 {v(r)}, v7')
        return
    a.c('lane i < 12 works out where item i goes: a 16-byte slot (first chunk) or a single chunk of the mixed tile')
    a(f'''s_lshl_b32 s3, {s(sMG)}, 3
    s_add_u32 s3, s3, {s(sS0)}
    v_add_u32 v3, s3, v1
    v_lshrrev_b32 v4, 2, v3
    v_mul_u32_u24 v4, 9, v4
    v_and_b32 v5, 1, v3
    v_lshl_add_u32 v4, v5, 1, v4
    v_bfe_u32 v5, v3, 1, 1
    v_mad_u32_u24 v8, v5, 5, v4
    v_subrev_u32 v3, 4, v1''')
    misc_chunk(a, 4, 3, 5)
    a(f'''s_lshl_b32 {s(T4)}, {s(sCT)}, 5
    s_cmp_eq_u32 {s(sMG)}, 0
    s_cselect_b32 s3, 32, 4
    v_cmp_gt_u32 vcc, s3, v1
    v_add_u32 v4, {s(T4)}, v4
    s_add_u32 {s(T1)}, {s(T1)}, {(KV - 32*HREC) & 0xffffffff:#x}
    v_cndmask_b32 v4, v4, v8, vcc
    v_mul_u32_u24 v3, 7282, v4
    v_lshrrev_b32 v3, 16, v3
    v_mul_u32_u24 v5, 9, v3
    v_sub_u32 v8, v4, v5
    v_cmp_lt_u32 vcc, 4, v8
    v_lshlrev_b32 v3, 1, v3
    v_subrev_u32 v9, 5, v8
    v_addc_co_u32 v4, vcc, 0, v3, vcc
    v_min_u32 v9, v8, v9
    s_lshl_b32 {s(T0)}, {s(sTile)}, 10
    v_lshl_add_u32 v6, v4, 16, {s(T0)}
    v_mul_u32_u24 v5, {HREC}, v4
    v_cmp_gt_u32 vcc, 32, v4
    v_add_u32 v5, {s(T1)}, v5
    s_lshl_b32 {s(T2)}, {s(sTile)}, 8
    s_add_u32 {s(T2)}, {s(T2)}, {QL:#x}
    v_cndmask_b32 v6, v5, v6, vcc
    v_lshrrev_b32 v4, 1, v9
    v_lshl_add_u32 v6, v4, 9, v6
    v_and_b32 v4, 1, v9
    v_lshl_add_u32 v6, v4, 3, v6
    v_lshl_add_u32 v4, v3, 13, {s(T2)}
    v_mul_u32_u24 v5, {HREC}, v3
    s_add_u32 {s(T3)}, {s(T1)}, {HREC + KLOFF}
    v_add_u32 v5, {s(T3)}, v5
    v_mov_b32 v7, {REC + 16}
    v_mov_b32 v9, {1024 + 16}
    v_cndmask_b32 v4, v5, v4, vcc
    v_cndmask_b32 v7, v7, v9, vcc
    v_mov_b32 v5, {REC + 8}
    v_mov_b32 v9, {256 + 8}
    v_cndmask_b32 v5, v5, v9, vcc
    v_mov_b32 v9, {QSCALE:#x}
    v_cndmask_b32 v9, 1.0, v9, vcc
    v_cmp_eq_u32 vcc, 4, v8
    v_lshlrev_b32 v2, 2, v2
    s_nop 0
    v_cndmask_b32 v6, v6, v4, vcc
    v_cndmask_b32 v7, v7, v5, vcc''')

def su_epi_v(a, u):
    e = EA + 2*u
    a(f'''s_lshl_b32 s3, {s(sMG)}, 6
    s_add_u32 s3, s3, {s(T2)}
    s_add_u32 s3, s3, {32*u}
    v_add_u32 v3, s3, v1
    v_mul_u32_u24 v4, 3641, v3
    v_lshrrev_b32 v4, 16, v4
    v_mul_u32_u24 v5, 18, v4
    v_sub_u32 v3, v3, v5
    v_and_b32 v5, 1, v4
    v_lshlrev_b32 v5, 1, v5
    v_sub_u32 v3, v3, v5
    v_add_u32 v5, 18, v3
    v_min_u32 v3, v3, v5
    v_mul_u32_u24 v5, {HREC}, v4
    v_add_u32 v5, {s(T1)}, v5
    v_lshl_add_u32 v5, v3, 4, v5
    v_lshl_add_u32 v6, v2, 8, v5
    v_add_u32 v6, 1024, v6
    v_lshl_add_u32 v7, v2, 5, v5
    v_add_u32 v7, {VLOFF - 256}, v7
    v_cmp_gt_u32 vcc, 16, v3
    v_add_u32 v8, 512, v6
    v_add_u32 v9, 64, v7
    v_cndmask_b32 v6, v7, v6, vcc
    v_cndmask_b32 v8, v9, v8, vcc
    v_cmp_gt_u32 vcc, 32, v4
    v_mov_b32 v7, {OOB:#x}
    s_nop 0
    v_cndmask_b32 {v(e)}, v7, v6, vcc
    v_cndmask_b32 {v(e+1)}, v7, v8, vcc''')
    if u:
        a.c('the row of ones of every head whose first column is in this tile')
        a(f'''s_add_u32 s3, {s(T2)}, 17
        s_mul_i32 s3, s3, 3641
        s_lshr_b32 s3, s3, 16
        v_and_b32 v3, 7, v0
        v_add_u32 v3, s3, v3
        v_mul_u32_u24 v4, 18, v3
        s_add_u32 {s(T2)}, {s(T2)}, 128
        s_min_u32 {s(T2)}, {s(T2)}, 576
        v_cmp_gt_u32 vcc, {s(T2)}, v4
        v_cmp_gt_u32 {s(T4,2)}, 16, v0
        s_and_b64 vcc, vcc, {s(T4,2)}
        v_mul_u32_u24 v3, {HREC}, v3
        v_bfe_u32 v4, v0, 3, 1
        v_mul_u32_u24 v4, {REC}, v4
        v_add3_u32 v3, v3, v4, {s(T1)}
        v_add_u32 v3, {ONEOFF}, v3
        v_cndmask_b32 {v(EA+4)}, v7, v3, vcc''')

def su_vgat(a):
    a.c('V fragment gather offsets inside a key-tile record')
    a('v_and_b32 v1, 31, v0\nv_lshrrev_b32 v2, 5, v0')
    a(f'''v_lshlrev_b32 v3, 4, v1
    v_lshl_add_u32 v3, v2, 8, v3
    v_add_u32 v3, 1024, v3
    v_subrev_u32 v4, 16, v1
    v_lshlrev_b32 v5, 4, v4
    v_lshl_add_u32 v5, v2, 5, v5
    v_add_u32 v5, {VLOFF}, v5
    v_cmp_gt_u32 vcc, 2, v4
    v_add_u32 v6, 64, v5
    v_mov_b32 v7, {OOB:#x}
    v_cndmask_b32 v5, v7, v5, vcc
    v_cndmask_b32 v6, v7, v6, vcc
    v_and_b32 v4, 27, v1
    v_cmp_eq_u32 vcc, 18, v4
    v_mov_b32 v7, {ONEOFF}
    s_nop 0
    v_cndmask_b32 v5, v5, v7, vcc
    v_cndmask_b32 v6, v6, v7, vcc
    v_cmp_gt_u32 vcc, 16, v1
    v_add_u32 v4, 512, v3
    s_nop 0
    v_cndmask_b32 {v(vVf)}, v5, v3, vcc
    v_cndmask_b32 {v(vVf+1)}, v6, v4, vcc''')

def prefetch_a(a):
    if not OPT.get('pf', 1): return
    top = a.new('pf'); isw = a.new('pfw'); nxt = a.new('pfn')
    a(f'''s_sub_u32 {s(T0)}, {s(sLoc)}, 28
    s_lshl_b32 {s(T0)}, {s(T0)}, 3
    s_add_u32 {s(T0)}, {s(T0)}, {s(sWave)}
    v_mul_u32_u24 v1, 1152, v0
    v_mul_u32_u24 v2, 3456, v0
    s_lshr_b32 {s(T4)}, {s(sXcd)}, 1
    s_mul_i32 {s(T4)}, {s(T4)}, {512*1152}
    s_and_b32 {s(T5)}, {s(sXcd)}, 1
    s_mul_i32 {s(T5)}, {s(T5)}, {7*256}''')
    a.label(top)
    a(f'''s_mul_i32 {s(T1)}, {s(T0)}, 2979
    s_lshr_b32 {s(T1)}, {s(T1)}, 16
    s_mul_i32 {s(T2)}, {s(T1)}, 22
    s_sub_u32 {s(T2)}, {s(T0)}, {s(T2)}
    s_cmp_ge_u32 {s(T2)}, 8
    s_cbranch_scc1 {isw}
    s_mul_i32 {s(T2)}, {s(T2)}, {64*1152}
    s_lshl_b32 {s(T1)}, {s(T1)}, 7
    s_add_u32 {s(T2)}, {s(T2)}, {s(T1)}
    s_add_u32 {s(T2)}, {s(T2)}, {s(T4)}
    buffer_load_dword v3, v1, {srd(sAX)}, {s(T2)} offen
    s_branch {nxt}''')
    a.label(isw)
    a(f'''s_sub_u32 {s(T2)}, {s(T2)}, 8
    s_lshl_b32 {s(T2)}, {s(T2)}, 7
    s_mul_i32 {s(T1)}, {s(T1)}, {64*3456}
    s_add_u32 {s(T2)}, {s(T2)}, {s(T1)}
    s_add_u32 {s(T2)}, {s(T2)}, {s(T5)}
    buffer_load_dword v3, v2, {srd(sAW)}, {s(T2)} offen''')
    a.label(nxt)
    a(f's_add_u32 {s(T0)}, {s(T0)}, 32\ns_cmp_lt_u32 {s(T0)}, 198\ns_cbranch_scc1 {top}')

def prefetch_wo(a):
    if not OPT.get('pfo', 0): return
    top = a.new('pfo')
    a(f'''s_sub_u32 {s(T0)}, {s(sLoc)}, 28
    s_lshl_b32 {s(T0)}, {s(T0)}, 2
    s_add_u32 {s(T0)}, {s(T0)}, {s(sW4)}
    s_lshl_b32 {s(T0)}, {s(T0)}, 13
    v_lshlrev_b32 v1, 7, v0''')
    a.label(top)
    a(f'''buffer_load_dword v3, v1, {srd(sAWO)}, {s(T0)} offen
    buffer_load_dword v3, v1, {srd(sBWO)}, {s(T0)} offen
    s_add_u32 {s(T0)}, {s(T0)}, {16*8192}
    s_cmp_lt_u32 {s(T0)}, {576*1152}
    s_cbranch_scc1 {top}''')

def su_acc(a):
    for r in range(40, 72, 2): a(f'v_pk_mov_b32 {v(r,2)}, {v(vZero,2)}, {v(vZero,2)}')
    for d in ACC.values(): mfma(a, d, 40, 44, None)

def su_share(a, regs, put, first=0):
    a(f's_mul_i32 s3, {s(sW4)}, 6656\ns_add_u32 s3, s3, {EAX}\nv_add_u32 v1, s3, {v(v16)}')
    off = first
    for r, n in regs:
        if n == 4: a(f'ds_write_b128 v1, {v(r,4)} offset:{off}' if put else f'ds_read_b128 {v(r,4)}, v1 offset:{off}')
        off += 1024
SH_P = [(XAc, 4), (WAc, 4), (EA, 4), (EA+4, 4), (EA+8, 4)]
SH_L = [(EA, 4), (EA+4, 4), (EA+8, 4), (ES, 4), (ES+4, 4)]

def slot_addr(a):
    for k in range(4): a(f'v_add_u32 {v(XAr+k)}, {s(T6)}, {v(XAc+k)}')
    for w in range(2): a(f'v_add_u32 {v(WAr+w)}, {s(T6)}, {v(WAc+w)}')
    a(f's_add_u32 {s(T6)}, {s(T6)}, 0x8000\ns_and_b32 {s(T6)}, {s(T6)}, 0x1ffff')

def prologue(a, opt):
    a(f's_cmp_ge_u32 s2, 256\ns_cbranch_scc1 L_end')
    ld_srd(a, (sBX, sBW, sWS, sDBG, sAX, sAW))
    if a.diag:
        for k in range(2, 14): a(f's_mov_b32 {s(SSTAMP+k)}, 0')
    if a.diag or opt.get('padto') or opt.get('padA') or opt.get('padB'): a(f's_memrealtime {s(SSTAMP,2)}')
    if opt.get('ipf', 1):
        a.c('workgroups without a gemm tile pull this code towards L2 (one dword per 128-byte line)')
        a(f'''s_cmp_lt_u32 s2, 224
        s_cbranch_scc1 L_noipf
        s_getpc_b64 s[66:67]'''.replace('s[66:67]', 's[98:99]'))
        a.label('L_pc')
        a(f'''v_lshlrev_b32 v1, 7, v0
        v_cmp_gt_u32 vcc, L_end-L_pc, v1
        s_and_saveexec_b64 s[100:101], vcc
        s_cbranch_execz L_ipfx
        global_load_dword v254, v1, s[98:99]''')
        a.label('L_ipfx')
        a('s_mov_b64 exec, s[100:101]')
        a.label('L_noipf')
    a(f'v_lshrrev_b32 v1, 6, v0\nv_and_b32 v0, 63, v0\nv_readfirstlane_b32 {s(sWave)}, v1')
    a(f'''s_and_b32 {s(sXcd)}, s2, 7
    s_lshr_b32 {s(sLoc)}, s2, 3
    s_mul_i32 {s(sRT)}, {s(sLoc)}, 37
    s_lshr_b32 {s(sRT)}, {s(sRT)}, 8
    s_mul_i32 s3, {s(sRT)}, 7
    s_sub_u32 {s(sCT)}, {s(sLoc)}, s3
    s_add_u32 {s(sRot)}, {s(sCT)}, {s(sRT)}
    s_and_b32 s3, {s(sXcd)}, 1
    s_mul_i32 s3, s3, 7
    s_add_u32 {s(sCT)}, {s(sCT)}, s3
    s_lshr_b32 s3, {s(sXcd)}, 1
    s_lshl_b32 s3, s3, 2
    s_add_u32 {s(sRT)}, {s(sRT)}, s3
    s_and_b32 {s(sW4)}, {s(sWave)}, 3''')
    r = opt.get('rot', 0)
    if r == 2:
        a(f's_mul_i32 s3, {s(sRot)}, 86\ns_lshr_b32 s3, s3, 8\ns_mul_i32 s3, s3, 3\ns_sub_u32 {s(sRot)}, {s(sRot)}, s3\ns_mul_i32 {s(sRot)}, {s(sRot)}, 3')
    elif r == 4:
        a(f's_and_b32 {s(sRot)}, {s(sRot)}, 3')
    elif r == 3:
        a(f's_and_b32 {s(sRot)}, {s(sRot)}, 1\ns_lshl_b32 {s(sRot)}, {s(sRot)}, 2')
    su_ids2(a)
    su_loader(a)
    mk_srd(a, (sBX, sBW))
    a(f's_cmp_eq_u32 {s(sImg)}, 0\ns_cbranch_scc1 L_pset')
    vm = VM()
    a(f's_setprio 1\ns_waitcnt lgkmcnt(0)\ns_cmp_ge_u32 {s(sLoc)}, 28\ns_cbranch_scc1 L_lset')
    for j in range(3 if opt.get('sw', 9) < 0 else 2): issue_chunk(a, j); vm.add(j, 8)
    a('s_branch L_lset')
    p_setup(a, opt)
    a('s_branch L_gemm')
    for f in a.early: f()
    a.lock = bool(opt.get('p1'))
    gemm(a, opt)
    a.lock = False
    p_path(a, opt)
    a.label('L_pidle0')
    prefetch_a(a)
    a(f's_waitcnt vmcnt(0) lgkmcnt(0)\ns_barrier\ns_barrier\nds_read_b32 {v(vTok)}, {v(vCnt)} offset:{C_TOK}\ns_branch L_ppath')
    a.label('L_lset')
    a.c('================= waves 4-7: load the B tile =================')
    ld_srd(a, (sPHI, sAWO, sBWO, sOUT))
    mk_srd(a, (sAX, sAW, sPHI, sAWO, sBWO, sOUT, sDBG, sWS))
    su_tab(a)
    a('s_waitcnt lgkmcnt(0)')
    a.stamp(1)
    a(f's_cmp_lg_u32 {s(sIdle)}, 0\ns_cbranch_scc1 L_lidle')
    if opt.get('phij', 3) < 0: a_setup(a, 0); vm.add('phi', 10)
    for j in range(9):
        a(f's_waitcnt vmcnt({vm.after(j)})')
        if opt.get('p1') == 1: a.stamp(3 + j)
        a('s_barrier')
        if opt.get('p1') == 2: a.stamp(3 + j)
        if opt.get('p1') == 2 and j == 0: a.cyc0()
        if opt.get('p1') == 2 and j == 8: a.cyc1()
        sw = opt.get('sw', 9)
        for c in ([j + 2] if j < sw else [j + 2, j + 3] if j == sw else [j + 3]):
            issue_chunk(a, c); vm.add(c, 8)
            if c == 9: token_issue(a); vm.add('tok')
        if j == 0: su_vgat(a)
        if j == 1: su_share(a, SH_P, False)
        if j == 2:
            a('s_waitcnt lgkmcnt(0)')
            for r in range(EA, EA + 12): a(f'v_add_u32 {v(r)}, {AOFF:#x}, {v(r)}')
        if j == opt.get('phij', 3): a_setup(a, 0); vm.add('phi', 10)
        if j in (4, 5, 6): a_setup(a, j - 3)
        if j == 7: assert vm.after('phi') >= 24; a_setup(a, 4)
    a(f's_waitcnt vmcnt({vm.after("tok")})')
    token_check(a)
    a(f'ds_write_b32 {v(vCnt)}, {v(vTok)} offset:{C_TOK}\ns_mov_b32 {s(T6)}, {(9 % 4) * 32768}\ns_waitcnt lgkmcnt(0)')
    a(f's_setprio {opt.get("prio", 1)}')
    a.stamp(2)
    if opt.get('p1'): a.lock = True
    slot_addr(a)
    a(f's_mov_b32 {s(T7)}, 9\ns_mov_b32 {s(T5)}, {8 if opt.get("cs") else 2 if opt.get("sl2") else 0}\ns_barrier')
    if sw == 9: issue_chunk(a, 11)
    a(f's_cmp_ge_u32 {s(sCT)}, 9\ns_cbranch_scc1 L_gS0\ns_branch L_gN0')
    a.label('L_lidle')
    a.c('four workgroups per group of 32 have no gemm tile')
    prefetch_a(a)
    a('s_waitcnt vmcnt(0)')
    prefetch_wo(a)
    a('s_waitcnt vmcnt(0)')
    su_vgat(a)
    for p in range(4): a_setup(a, p)
    token_issue(a)
    a('s_waitcnt vmcnt(0)')
    a_setup(a, 4)
    token_check(a)
    a(f's_barrier\nds_write_b32 {v(vCnt)}, {v(vTok)} offset:{C_TOK}\ns_setprio {opt.get("prio", 1)}\ns_waitcnt lgkmcnt(0)\ns_barrier\ns_branch L_achain')

def p_setup(a, opt):
    a.label('L_pset')
    a.c('================= waves 0-3: set-up =================')
    su_tab(a); su_gaddr(a)
    a('s_waitcnt lgkmcnt(0)')
    ld_srd(a, (sOUT,))
    mk_srd(a, (sWS, sDBG, sAX, sAW, sOUT))
    su_token(a, 0)
    a(f's_cmp_lg_u32 {s(sIdle)}, 0\ns_cbranch_scc1 L_pidle0')
    a(f's_waitcnt lgkmcnt(0)\ns_cmp_ge_u32 {s(sCT)}, 9\ns_cbranch_scc1 L_epiS')
    su_epi(a, 'N'); su_epi(a, 'N', 1); a('s_waitcnt lgkmcnt(0)'); su_epi(a, 'N', 2)
    a.label('L_epiD')
    def epi_s():
        a.label('L_epiS'); su_epi(a, 'S'); a('s_branch L_epiD')
    a.early.append(epi_s)
    su_share(a, SH_P, True)
    su_token(a, 1)
    a(f's_waitcnt lgkmcnt(0)\ns_mov_b32 {s(T6)}, 0')
    a.stamp(1)
    if a.diag: a('s_mov_b32 s82, 0')

def gemm(a, opt):
    sSlot, sIt, sCnt = T6, T7, T5
    a.label('L_gemm')
    a.c('================= qkv gemm (waves 0-3: B, waves 4-7: A) =================')
    slot_addr(a)
    a(f's_mov_b32 {s(sIt)}, 9\ns_mov_b32 {s(sCnt)}, 0\ns_cmp_ge_u32 {s(sCT)}, 9\ns_barrier\ns_cbranch_scc1 L_gS0')
    def mid():
        lb = a.new('mid')
        a(f's_cmp_lg_u32 {s(sImg)}, 0\ns_cbranch_scc1 {lb}')
        if opt.get('cs'): lds_wait(a, 1, C_G, 4, sl=0)
        else: a('s_barrier')
        if not opt.get('sl2'): issue_chunk(a, 13)
        a.label(lb)
    def loop(o):
        def reads(k):
            F = FS[k]
            rd = lambda w, j: f'ds_read_b64_tr_b16 {v(F+8+4*w+2*j,2)}, {v(WAr+w)} offset:{4096*k+1024*j}'
            rx = lambda tt: f'ds_read_b128 {v(F+4*tt,4)}, {v(XAr+k)} offset:{4096*tt}'
            if opt.get('nord'): return ['s_nop 0'] * 6
            return [rd(0, 0), rd(0, 1), rx(0), rx(1), rd(1, 0), rd(1, 1)]
        def mms(k, first=False):
            m = []
            for w, nm in enumerate('ab'):
                for tt in range(2):
                    x, wf = FS[k]+4*tt, FS[k]+8+4*w
                    c = None if first else ACC[(nm, tt)]
                    m.append(mfma_s(ACC[(nm, tt)], wf, x, c) if o == 'N' else mfma_s(ACC[(nm, tt)], x, wf, c))
            if opt.get('nomm'): m = ['s_nop 0'] * 4
            if opt.get('m16'):
                def two(x, i0):
                    g = re.match(r'\S+ v\[(\d+):\d+\], (\S+), (\S+), ', x); d = int(g.group(1))
                    return '\n'.join(f'v_mfma_f32_16x16x32_bf16 {v(d+4*i,4)}, {g.group(2)}, {g.group(3)}, {v(d+4*i,4)}' for i in (i0, i0+1))
                m = [two(x, 2*(k & 1)) for x in m]
            return m
        def grp(km, kr, wait=None, x1=None, x2=None, first=False, fill=None):
            m = mms(km, first); r = reads(kr)
            if fill is not None:
                def take(n):
                    out = []
                    while fill and (len(out) < n or out[-1].startswith('s_cmp') or out[-1].startswith('s_cselect_b32 s3')): out.append(fill.pop(0))
                    return '\n'.join(out)
                m = [x + '\n' + take(k) for x, k in zip(m, (3, 3, 6, 6))]
            if wait is not None: a(f's_waitcnt lgkmcnt({wait})')
            a(m[0]); a(r[0]); a(r[1]); a(r[2]); a(m[1]); a(r[3]); a(r[4]); a(r[5])
            if x1: x1()
            a(m[2])
            if x2: x2()
            a(m[3])
        a.label(f'L_g{o}0')
        a.c('first chunk: nothing to finish from a previous one')
        if opt.get('p3'): a.lstamp(s(sIt), 32)
        for x in reads(0) + reads(1): a(x)
        grp(0, 2, 6, first=True)
        a(f's_branch L_g{o}m')
        a.label(f'L_g{o}')
        if opt.get('p3'): a.lstamp(s(sIt), 16)
        if opt.get('cs'): a(f's_cmp_lg_u32 {s(sCnt)}, 0\ns_cbranch_scc1 L_g{o}c')
        a('s_barrier')
        if opt.get('sl2'):
            a(f's_cmp_lg_u32 {s(sCnt)}, 0\ns_cbranch_scc1 L_g{o}s')
            def self_issue(o=o):
                a.label(f'L_g{o}s')
                a(f's_cmp_eq_u32 {s(sCnt)}, 1\ns_cbranch_scc1 L_g{o}t')
                issue_chunk(a, 12)
                a(f's_mov_b32 {s(sCnt)}, 1\ns_branch L_g{o}b')
                a.label(f'L_g{o}t')
                issue_chunk(a, 13)
                a(f's_mov_b32 {s(sCnt)}, 0\ns_branch L_g{o}b')
            a.late.append(self_issue)
        a.label(f'L_g{o}b')
        if opt.get('p3'): a.lstamp(s(sIt), 32)
        def book():
            w8 = a.new('w8')
            a(f's_cmp_ge_u32 {s(sIt)}, {7 if opt.get("sl2") else 9}\ns_cbranch_scc1 {w8}\ns_waitcnt vmcnt(0)')
            a.label(w8)
            if opt.get('lp0', 1):
                lo = a.new('lo')
                a(f's_cmp_lg_u32 {s(sIt)}, 2\ns_cbranch_scc1 {lo}\ns_setprio 0')
                a.label(lo)
            a(f's_sub_u32 {s(sIt)}, {s(sIt)}, 1\ns_cmp_lg_u32 {s(sIt)}, 0')
        grp(2, 0); grp(3, 1); grp(0, 2, 6)
        a.label(f'L_g{o}m')
        a('s_waitcnt lgkmcnt(6)')
        a.label(f'L_g{o}n')
        grp(1, 3, None, lambda: slot_addr(a), book)
        a(f's_waitcnt vmcnt(8) lgkmcnt(0)\ns_cbranch_scc1 L_g{o}')
        if opt.get('cs'):
            def cs_block(o=o):
                a.label(f'L_g{o}c')
                lds_arrive(a, C_G)
                a(f's_sub_u32 {s(sCnt)}, {s(sCnt)}, 4\ns_sub_u32 {s(T1)}, 8, {s(sCnt)}')
                lds_wait(a, 1, C_G, s(T1), sl=0)
                a(f's_branch L_g{o}b')
            a.late.append(cs_block)
        m = mms(2) + mms(3)
        a(f's_cmp_lg_u32 {s(sImg)}, 0\ns_cbranch_scc1 L_gf{o}\ns_barrier\ns_setprio 2\nds_read_b32 {v(vTok)}, {v(vCnt)} offset:{C_TOK}')
        if not opt.get('sl2'): issue_chunk(a, 12)
        a.label(f'L_gf{o}')
        for i in (0, 1, 4, 5, 2, 3, 6, 7): a(m[i])
        if opt.get('lp0', 1):
            lo = a.new('lo')
            a(f's_cmp_eq_u32 {s(sImg)}, 0\ns_cbranch_scc1 {lo}\ns_setprio 1')
            a.label(lo)
        a.stamp(3)
    def scale(nm, sc, n):
        lb = a.new('nosc')
        a(f's_cmp_eq_u32 {s(sDoSc)}, 0\ns_cbranch_scc1 {lb}')
        for tt in range(2):
            for i in range(16): a(f'v_mul_f32 {v(ACC[(nm, tt)]+i)}, {v(sc + i//n)}, {v(ACC[(nm, tt)]+i)}')
        a.label(lb)
    def epi_main(u):
        nm = 'ab'[u]
        scale(nm, ES + 2*u, 8)
        for tt in range(2):
            for qp in range(2):
                r = ACC[(nm, tt)] + 8*qp
                cvt8(a, r, r)
                a(f'buffer_store_dwordx4 {v(r,4)}, {v(EA + 4*u + 2*qp + tt)}, {srd(sWS)}, 0 offen sc1')
    def epi_misc():
        scale('b', ES + 2, 4)
        for tt in range(2):
            for h in range(2):
                r = ACC[('b', tt)] + 8*h
                cvt8(a, r, r)
                for q in range(2): a(f'buffer_store_dwordx2 {v(r+2*q,2)}, {v(EA + 4 + 2*(2*h+q) + tt)}, {srd(sWS)}, 0 offen sc1')
    def epi_v(u):
        nm = 'ab'[u]
        for tt in range(2):
            for f in range(2):
                r = ACC[(nm, tt)] + 8*f
                cvt8(a, r, r)
                a(f'buffer_store_dwordx4 {v(r,4)}, {v(EA + 2*u + f)}, {srd(sWS)}, 0 offen offset:{REC*tt} sc1')
    loop('N')
    a.nop(6); epi_main(0); mid()
    a(f's_cmp_lg_u32 {s(sMG)}, 0\ns_cbranch_scc1 L_emisc')
    epi_main(1); a('s_branch L_epi_done')
    a.label('L_emisc')
    epi_misc(); a('s_branch L_epi_done')
    loop('S')
    for i in range(4): a(f'v_mov_b32 {v(4+i)}, 0x3f803f80')
    a.nop(4); epi_v(0); mid(); epi_v(1)
    a(f's_cmp_lg_u32 {s(sMG)}, 0\ns_cbranch_scc1 L_epi_done\nbuffer_store_dwordx4 v[4:7], {v(EA+4)}, {srd(sWS)}, 0 offen sc1')
    a.label('L_epi_done')
    a.stamp(4)
    a(f's_cmp_lg_u32 {s(sImg)}, 0\ns_cbranch_scc1 L_achain')
    a.label('L_ppath')

def op_addr(a, X, vt, smain, sextra):
    t0, t1, t2, t3 = vt, vt+1, vt+2, vt+3
    a(f'''v_bfe_u32 {v(t0)}, v0, 2, 2
    v_lshrrev_b32 {v(t1)}, 5, v0
    v_and_b32 {v(t2)}, 3, v0
    v_bfe_u32 {v(t3)}, v0, 4, 1
    v_lshl_add_u32 {v(t2)}, {v(t3)}, 2, {v(t2)}
    v_lshlrev_b32 {v(t2)}, 3, {v(t2)}
    v_lshl_add_u32 {v(t0)}, {v(t1)}, 2, {v(t0)}
    v_lshl_add_u32 {v(X+4)}, {v(t0)}, 6, {v(t2)}
    v_add_u32 {v(X+4)}, {s(sextra)}, {v(X+4)}
    v_bfe_u32 {v(t3)}, v0, 3, 1
    v_lshl_add_u32 {v(t2)}, {v(t3)}, 6, {v(t2)}
    v_lshl_add_u32 {v(X)}, {v(t0)}, 7, {v(t2)}
    v_add_u32 {v(X)}, {s(smain)}, {v(X)}
    v_xor_b32 {v(X+1)}, 64, {v(X)}
    v_mul_u32_u24 {v(t1)}, 68, {v(t1)}
    v_add_u32 {v(t1)}, 16, {v(t1)}
    v_lshl_add_u32 {v(X+2)}, {v(t1)}, 7, {v(X)}
    v_lshl_add_u32 {v(X+3)}, {v(t1)}, 7, {v(X+1)}
    v_lshl_add_u32 {v(X+5)}, {v(t1)}, 6, {v(X+4)}''')

def w_row(st, j): return 18*st + 8*j + (2 if st & 1 else 0) if st < 8 else 36*j
def op_w_reads(W, X, st, off=0):
    return [f'ds_read_b64_tr_b16 {v(W + 8*st + 4*T + 2*j, 2)}, {v(X + T + (2 if st == 8 else 0))} offset:{w_row(st, j)*128 + off}' for T in range(2) for j in range(2)]
def op_e_reads(W, X, st):
    return [f'ds_read_b64_tr_b16 {v(W + 72 + 4*st + 2*j, 2)}, {v(X + 4 + (st == 8))} offset:{w_row(st, j)*64}' for j in range(2)]
def op_read_w(a, W, X, sflag):
    for st in range(9): a('\n'.join(op_w_reads(W, X, st)))
    lb = a.new('ne')
    a(f's_cmp_eq_u32 {s(sflag)}, 0\ns_cbranch_scc1 {lb}')
    for st in range(9): a('\n'.join(op_e_reads(W, X, st)))
    a.label(lb)

def op_load_o(a, O, vo16, vol, sM, sM2, sL, thr=False):
    for i in range(8):
        a(f'buffer_load_dwordx4 {v(O+4*i,4)}, {v(vo16)}, {srd(sWS)}, {s(sM if i < 4 else sM2)} offen offset:{1024*(i&3)} sc1')
        if thr and i % 4 == 3: a('s_waitcnt vmcnt(0)')
    for i in range(4):
        a(f'buffer_load_dword {v(O+32+i)}, {v(vol)}, {srd(sWS)}, {s(sL)} offen offset:{128*i} sc1')

def op_mfma(a, AC, W, O, first):
    for st in range(9):
        a(f's_waitcnt vmcnt({11 - st if st < 8 else 0})')
        for T in range(3):
            mfma(a, AC + 16*T, W + 12*st + 4*T, O + 4*st, None if (first and st == 0) else AC + 16*T)

sEX, sWE = sBX, sXB
def issue_grp(a, kind, x, y, slot, who):
    skip = a.new('r8')
    if kind == 'm':
        sr, vo, rows = x[0], vWO, 8
        a(f's_add_u32 {s(sFree)}, {s(sWB)}, {(144*x[1] + 72*y)*1152}'); slot += EB*y
    else:
        sr, vo, rows = sEX, vWO + 1, 16
        a(f's_bitcmp1_b32 {s(sOC)}, 2\ns_mov_b32 {s(sFree)}, {144*x*1152}\ns_cselect_b32 {s(sFree)}, {144*y*1152}, {s(sFree)}\ns_add_u32 {s(sFree)}, {s(sFree)}, {s(sWE)}')
    a(f'''s_lshl_b32 s3, {s(sW4)}, 10
    s_add_u32 m0, s3, {slot}
    s_nop 0
    buffer_load_dwordx4 {v(vo)}, {srd(sr)}, {s(sFree)} offen lds
    s_add_u32 m0, s3, {slot + 4096}
    s_add_u32 {s(sFree)}, {s(sFree)}, {4*rows*1152}
    buffer_load_dwordx4 {v(vo)}, {srd(sr)}, {s(sFree)} offen lds
    s_cmp_lg_u32 {s(sW4)}, {who}
    s_cbranch_scc1 {skip}
    s_mov_b32 m0, {slot + 8192}
    s_add_u32 {s(sFree)}, {s(sFree)}, {(4 - who)*rows*1152}
    buffer_load_dwordx4 {v(vo)}, {srd(sr)}, {s(sFree)} offen lds''')
    a.label(skip)

def p_path(a, opt):
    vK, vKL, vV0, vV1 = 8, 10, 12, 14
    Qr, QLr, M = 16, 32, 36
    Kb, KLb, Vb, Sb, Ob = 40, 56, 64, 96, 160
    sCur, sNext, sLo, sHi, sN = T2, T3, T4, T5, T6
    sQm, sQl, sChk = 56, 57, 58
    sLo2, sHi2, sCur2 = 60, 61, 62
    a.c('================= waves 0-3: load the rest of the A tile, publish B =================')
    vm = VM()
    vm.add(12, 8); vm.add('sa', 4); vm.add(13, 8); vm.add('sb', 4)
    su_vgat(a)
    kl_const(a, T0, sH)
    a(f'''v_and_b32 v1, 31, v0
    v_mov_b32 {v(vK)}, {v(v16)}
    v_lshl_add_u32 {v(vKL)}, v1, 3, {s(T0)}
    v_mov_b32 {v(vV0)}, {v(vVf)}
    v_mov_b32 {v(vV1)}, {v(vVf+1)}''')
    for r in (vK, vKL, vV0, vV1): a(f'v_add_u32 {v(r+1)}, {2*REC}, {v(r)}')
    a.c('flags this wave waits for: lanes 0-15 k, 16-31 v (8 row tiles x first/last column tile), 32.. q')
    a(f'''v_lshrrev_b32 v2, 4, v0
    v_add_u32 v2, 1, v2
    v_cmp_gt_u32 vcc, 32, v0
    v_bfe_u32 v3, v0, 3, 1
    v_and_b32 v4, 1, v0
    v_cndmask_b32 v2, 0, v2, vcc
    v_cndmask_b32 v3, v4, v3, vcc
    s_lshl_b32 {s(T2)}, {s(sMG)}, 3
    v_and_b32 v4, 7, v0
    v_add_u32 v4, {s(T2)}, v4
    s_lshl_b32 {s(T3)}, {s(sQB)}, 1
    s_add_u32 {s(T3)}, {s(T3)}, {s(sTH)}
    v_mov_b32 v5, {s(T3)}
    v_cndmask_b32 v4, v5, v4, vcc''')
    producer_ct(a, 5, 2, 3, sH, 6)
    a(f'v_lshl_add_u32 v5, v5, 4, v4\nv_lshlrev_b32 v5, 7, v5\nv_add_u32 {v(vPoll)}, {FL1:#x}, v5\nv_lshlrev_b32 v7, 3, v0')
    for r in (QLr+1, QLr+3, KLb+1, KLb+3, KLb+5, KLb+7): a(f'v_mov_b32 {v(r)}, 0')
    def tail_setup():
        extra_flags(a); final_setup(a)
        a(f's_mul_i32 {s(T0)}, {s(sMG)}, {MB}\ns_add_u32 {s(T0)}, {s(T0)}, {M_C}\ns_mul_i32 {s(T1)}, {s(sMG)}, {EB}\ns_add_u32 {s(T1)}, {s(T1)}, {X_A}')
        op_addr(a, vWb, 1, T0, T1)
    a(f'''s_lshl_b32 {s(T0)}, {s(sH)}, 6
    s_lshl_b32 {s(T1)}, {s(sMG)}, 5
    s_add_u32 {s(T0)}, {s(T0)}, {s(T1)}
    s_mul_i32 {s(sLo)}, {s(T0)}, {REC}
    s_add_u32 {s(sLo)}, {s(sLo)}, {KV:#x}
    s_add_u32 {s(sHi)}, {s(sLo)}, {32*REC}
    s_lshl_b32 {s(T0)}, {s(sQB)}, 1
    s_add_u32 {s(T0)}, {s(T0)}, {s(sTH)}
    s_lshl_b32 {s(T1)}, {s(sH)}, 4
    s_add_u32 {s(T0)}, {s(T0)}, {s(T1)}
    s_lshl_b32 {s(sQm)}, {s(T0)}, 12
    s_lshr_b32 {s(T1)}, {s(sH)}, 1
    s_lshl_b32 {s(T1)}, {s(T1)}, 4
    s_add_u32 {s(T1)}, {s(T1)}, {s(T3)}
    s_lshl_b32 {s(sQl)}, {s(T1)}, 10
    s_and_b32 {s(T1)}, {s(sH)}, 1
    s_lshl_b32 {s(T1)}, {s(T1)}, 2
    s_add_u32 {s(sQl)}, {s(sQl)}, {s(T1)}
    s_add_u32 {s(sQl)}, {s(sQl)}, {QL:#x}''')
    flag_addr(a, T1, sCT, sRT, 4, FL1)
    a('s_waitcnt lgkmcnt(0)')
    a.c('================= waves 0-3: attention =================')
    def kv_loads(b, sreg):
        o = REC * (b & 1); u = b >> 1
        return [f'buffer_load_dwordx4 {v(Kb+4*b,4)}, {v(vK+u)}, {srd(sWS)}, {s(sreg)} offen offset:{o} sc1',
                f'buffer_load_dword {v(KLb+2*b)}, {v(vKL+u)}, {srd(sWS)}, {s(sreg)} offen offset:{o} sc1',
                f'buffer_load_dwordx4 {v(Vb+8*b,4)}, {v(vV0+u)}, {srd(sWS)}, {s(sreg)} offen offset:{o} sc1',
                f'buffer_load_dwordx4 {v(Vb+8*b+4,4)}, {v(vV1+u)}, {srd(sWS)}, {s(sreg)} offen offset:{o} sc1']
    def start_groups():
        a(f'''s_mul_i32 {s(sCur)}, {s(sQB)}, {4*REC}
        s_add_u32 {s(sCur)}, {s(sCur)}, {s(sLo)}
        s_add_u32 {s(sNext)}, {s(sCur)}, {4*REC}
        s_cmp_eq_u32 {s(sNext)}, {s(sHi)}
        s_cselect_b32 {s(sNext)}, {s(sLo)}, {s(sNext)}
        s_mov_b32 {s(sN)}, 8''')
    adv_groups = f'''s_mov_b32 {s(sCur)}, {s(sNext)}
        s_add_u32 {s(sNext)}, {s(sNext)}, {4*REC}
        s_cmp_eq_u32 {s(sNext)}, {s(sHi)}
        s_cselect_b32 {s(sNext)}, {s(sLo)}, {s(sNext)}
        s_cmp_eq_u32 {s(sN)}, 2
        s_cselect_b32 {s(sNext)}, {OOB:#x}, {s(sNext)}'''
    def qk(N, kb, qp):
        return (mfma_s(N, KLb+2*kb, QLr+2*qp, None, '2b'), mfma_s(N, Kb+4*kb, Qr+8*qp, N), mfma_s(N+16, Kb+4*kb, Qr+8*qp+4, N+16))
    def step(qp, kb, ins, sub):
        S = Sb + 32*qp; N = Sb + 32*(1-qp)
        nkb = kb if qp == 0 else (kb+1) % 4
        pkb = (kb-1) % 4 if qp == 0 else kb
        QLm, Q0m, Q1m = qk(N, nkb, 1-qp)
        def E(x, y):
            for i in range(x, y):
                if sub: a(f'v_sub_f32 {v(S+i)}, {v(S+i)}, {v(M + 2*qp + i//16)}')
                a(f'v_exp_f32{"_e64" if opt.get("e64") else ""} {v(S+i)}, {v(S+i)}')
        def C(x, y):
            for j in range(x, y):
                b = S + 16*(j//8); k = j % 8
                if opt.get('perm'): a(f'v_perm_b32 {v(b + (k % 4) + 8*(k//4))}, {v(b+2*k+1)}, {v(b+2*k)}, {s(59)}')
                else: a(f'v_cvt_pk_bf16_f32 {v(b + (k % 4) + 8*(k//4))}, {v(b+2*k)}, {v(b+2*k+1)}')
        def PV(t, f):
            o = Ob + 32*qp + 16*t
            mfma(a, o, Vb + 8*kb + 4*f, S + 16*t + 8*f, o)
        def I(k):
            if k in ins: a(ins[k])
        E(0, 2)
        o = Ob + 32*(1-qp) + 16
        mfma(a, o, Vb + 8*pkb + 4, N + 24, o); I('p')
        sched = {
            0: 'E2-5 QL E5-9 C0-4 E9-11 P00 E11-17 C4-6 Q0 C6-8 E17-19 P01 E19-25 C8-12 Q1 E25-28 P10 E28-32 C12-16',
            1: 'E2-6 QL E6-8 C0-4 E8-12 P00 E12-16 C4-7 Q0 C7-8 E16-19 P01 E19-24 C8-10 Q1 C10-12 E24-27 P10 E27-32 C12-16',
            2: 'E2-6 QL E6-9 C0-4 E9-12 P00 E12-17 C4-6 Q0 C6-8 E17-20 P01 E20-25 C8-10 Q1 C10-12 E25-28 P10 E28-32 C12-16',
            3: 'E2-6 QL E6-7 C0-1 E7-8 C1-2 E8-9 C2-3 E9-10 C3-4 E10-12 P00 E12-13 C4-5 E13-14 C5-6 E14-17 Q0 C6-7 E17-18 C7-8 E18-20 P01 E20-21 C8-9 E21-22 C9-10 E22-25 Q1 C10-11 E25-26 C11-12 E26-28 P10 E28-29 C12-13 E29-30 C13-14 E30-32 C14-16',
        }[opt.get('sched', 0)]
        hook = {'QL': 'q', 'P00': 'm0', 'Q0': 'm1', 'P01': 'm2', 'Q1': 'm3', 'P10': 'm4'}
        if opt.get('noql'):
            QLm = ''; Q0m = mfma_s(N, Kb+4*nkb, Qr+8*(1-qp), None); Q1m = mfma_s(N+16, Kb+4*nkb, Qr+8*(1-qp)+4, None)
        for w in sched.split():
            if w[0] in 'EC': (E if w[0] == 'E' else C)(*map(int, w[1:].split('-')))
            elif w[0] == 'P': PV(int(w[1]), int(w[2])); I(hook[w])
            else: a({'QL': QLm, 'Q0': Q0m, 'Q1': Q1m}[w]); I(hook[w])
    def attn_init_a():
        for r in range(Ob+16, Ob+64): a(f'v_mov_b32 {v(r)}, 0')
        for r in range(Vb+28, Vb+32): a(f'v_mov_b32 {v(r)}, 0')
    def attn_init_b():
        for r in range(Ob, Ob+16): a(f'v_mov_b32 {v(r)}, 0')
        for r in range(Sb+56, Sb+60): a(f'v_mov_b32 {v(r)}, 0')
    def attn_init(): attn_init_a(); attn_init_b()
    def attn_loop(name, sub):
        a(f's_waitcnt vmcnt({12 if opt.get("deep") else 8})')
        m = qk(Sb, 0, 0); a(m[0]); a.nop(18); a(m[1]); a(m[2]); a.nop(10); a('s_setprio 0')
        if opt.get('padA'):
            a.label('L_padA')
            a(f's_memrealtime s[94:95]\ns_waitcnt lgkmcnt(0)\ns_sub_u32 s94, s94, s80\ns_cmp_lt_u32 s94, {opt["padA"]}\ns_cbranch_scc1 L_padA')
        if not sub: a.stamp(7); a.cyc0()
        a(f'.p2align {opt.get("al", 6)}')
        for _ in range(opt.get('sh', 0)): a('s_nop 0')
        a.label(name)
        for t in range(4):
            ld = kv_loads((t+3) % 4, sCur if t == 0 else sNext)
            lp = opt.get('ldp', 0)
            if opt.get('xl') == 1 and t & 1: ld = [ld[0], '', ld[2], ld[3]]
            if opt.get('xl') == 2: ld = ['', '', '', '']
            if opt.get('xl') == 3: ld = [x.replace(' sc1', '') for x in ld]
            J = '\n'.join
            ins0, ins = [({'q': ld[0], 'm0': ld[1], 'm1': ld[2], 'm2': ld[3]}, {}),
                         ({'q': J(ld)}, {}),
                         ({'q': J(ld[:2]), 'm1': J(ld[2:])}, {}),
                         ({'q': J(ld[:2])}, {'q': J(ld[2:])}),
                         ({'q': ld[0], 'm1': ld[1]}, {'q': ld[2], 'm3': ld[3]}),
                         ({'m0': ld[0], 'm2': ld[1], 'm4': ld[2]}, {'m2': ld[3]})][lp]
            if opt.get('deep'):
                ins0 = {'q': J(ld[2:]) + '\ns_waitcnt vmcnt(12)'}
                ins = {'q': J(kv_loads(t, sNext)[:2])}
            step(0, t, ins0, sub)
            ins['p'] = f's_waitcnt vmcnt({10 if opt.get("deep") else 8 - sum(len(x.split(chr(10))) for x in ins.values())})'
            if t == 3:
                ins['m3'] = ins.get('m3', '') + '\n' + adv_groups
                ins['m4'] = f's_sub_u32 {s(sN)}, {s(sN)}, 1\ns_cmp_lg_u32 {s(sN)}, 0'
            step(1, t, ins, sub)
        if opt.get('p5'):
            a(f's_memtime s[94:95]\ns_waitcnt lgkmcnt(0)\ns_mov_b32 m0, {s(sN)}\ns_sub_u32 s94, s94, s93\nv_writelane_b32 v243, s94, m0\ns_cmp_lg_u32 {s(sN)}, 0')
        a(f's_cbranch_scc1 {name}')
        a.nop(1)
        mfma(a, Ob + 48, Vb + 28, Sb + 56, Ob + 48)
    def first_loads():
        for t in range(4): a(f'buffer_load_dwordx4 {v(Qr+4*t,4)}, {v(v16)}, {srd(sWS)}, {s(sQm)} offen offset:{1024*t} sc1')
        for j in range(2): a(f'buffer_load_dword {v(QLr+2*j)}, v7, {srd(sWS)}, {s(sQl)} offen offset:{512*j} sc1')
        for b in range(3):
            for x in kv_loads(b, sCur): a(x)
        if opt.get('deep'):
            for x in kv_loads(3, sCur)[:2]: a(x)
    a(f'v_readfirstlane_b32 {s(sTok)}, {v(vTok)}\ns_cmp_lg_u32 {s(sIdle)}, 0\ns_cbranch_scc1 L_pidle')
    if opt.get('cs'): lds_wait(a, 2, C_G, 8, sl=0)
    else: a('s_barrier')
    if opt.get('sl2'):
        vm = VM(); vm.add('sb')
        start_groups(); attn_init_a()
        sig = opt.get('sig2', 13)
        for j in range(12, 16):
            w = [vm.after(j)] if j >= 14 else []
            if j == sig: w.append(vm.after('sb'))
            if w: a(f's_waitcnt vmcnt({min(w)})')
            if j == sig:
                last_signals(a, 2, C_F1, 4, T1)
                a.stamp(5)
            a('s_barrier')
            if j == 15: a(f'buffer_load_dword v2, {v(vPoll)}, {srd(sWS)}, 0 offen sc1'); vm.add('fl')
            issue_chunk(a, j + 2); vm.add(j + 2, 8)
            if j == sig: attn_init_b()
            if j == 14: tail_setup()
    else:
        issue_chunk(a, 14); vm.add(14, 8)
        start_groups(); attn_init_a()
    for j in range(12, 16 if not opt.get('sl2') else 0):
        sig = opt.get('sig', 13)
        a(f's_waitcnt vmcnt({min(vm.after(j), vm.after("sb")) if j == sig else vm.after(j)})')
        if j == sig:
            last_signals(a, 2, C_F1, 4, T1)
            a.stamp(5)
        a('s_barrier')
        if j == 14: a(f'buffer_load_dword v2, {v(vPoll)}, {srd(sWS)}, 0 offen sc1'); vm.add('fl')
        if j + 3 <= 17: issue_chunk(a, j + 3); vm.add(j + 3, 8)
        if j == sig: attn_init_b()
        if j == 13: tail_setup()
    a(f's_waitcnt vmcnt(8)\nv_cmp_ne_u32 vcc, {s(sTok)}, v2\ns_cbranch_vccnz L_late')
    if opt.get('fl16', 1): a('s_barrier')
    first_loads()
    if not opt.get('fl16', 1): a('s_barrier')
    a(f's_waitcnt vmcnt({20 if opt.get("deep") else 18})\ns_barrier\ns_branch L_go')
    a.label('L_late')
    a('s_barrier\ns_waitcnt vmcnt(0)\ns_barrier')
    if a.diag: a('s_mov_b32 s82, -1')
    a('s_branch L_poll')
    a.label('L_pidle')
    start_groups(); attn_init(); tail_setup()
    a.label('L_poll')
    poll_flags(a, vPoll, 2)
    first_loads()
    a.label('L_go')
    a('s_mov_b32 s59, 0x07060302')
    a.stamp(6)
    attn_loop('L_attn', False)
    a.cyc1()
    if opt.get('padB'):
        a.label('L_padB')
        a(f's_memrealtime s[94:95]\ns_waitcnt lgkmcnt(0)\ns_sub_u32 s94, s94, s80\ns_cmp_lt_u32 s94, {opt["padB"]}\ns_cbranch_scc1 L_padB')
    a.stamp(8)
    a.nopk = bool(opt.get('nopk', 1))
    a(f'''s_setprio 2
    s_mul_i32 {s(T0)}, {s(sWave)}, 6144
    v_add_u32 v1, {s(T0)}, {v(v16)}
    s_xor_b32 {s(T0)}, {s(sWave)}, 2
    s_mul_i32 {s(T0)}, {s(T0)}, 6144
    v_add_u32 v6, {s(T0)}, {v(v16)}
    s_lshl_b32 {s(T0)}, {s(sQB)}, 3
    s_lshl_b32 {s(T1)}, {s(sTH)}, 2
    s_add_u32 {s(T0)}, {s(T0)}, {s(T1)}
    s_lshl_b32 {s(T1)}, {s(sMG)}, 1
    s_add_u32 {s(T0)}, {s(T0)}, {s(T1)}
    s_cmp_eq_u32 {s(sMG)}, 0
    s_cbranch_scc1 L_red0''')
    def red_write(o0):
        for t in range(2):
            o = o0 + 16*t
            a(f'ds_write_b128 v1, {v(o,4)} offset:{3072*t}\nds_write_b128 v1, {v(o+4,4)} offset:{3072*t+1024}\nds_write_b96 v1, {v(o+8,3)} offset:{3072*t+2048}')
    a.c('exchange partial sums with the wave that did the other half of the keys; keep query pair kh in Ob..Ob+31')
    red_write(Ob)
    for t in range(2):
        for i in range(0, 12, 2): a(f'v_pk_mov_b32 {v(Ob+16*t+i,2)}, {v(Ob+32+16*t+i,2)}, {v(Ob+32+16*t+i,2)} op_sel:[0,1]')
    a('s_branch L_red1')
    a.label('L_red0')
    red_write(Ob + 32)
    a.label('L_red1')
    a(f's_lshr_b32 {s(T6)}, {s(T0)}, 1')
    flag_addr(a, T1, T6, sH, 5, FL4)
    a.c('hint for the consumers that this wave\'s rows are about to be written; they check the data itself against the marker')
    a(f'v_mov_b32 v2, {s(T1)}\nv_mov_b32 v3, {s(sTok)}\ns_mov_b64 exec, 1\nbuffer_store_dword v3, v2, {srd(sWS)}, 0 offen sc1\ns_mov_b64 exec, -1')
    o_addr(a, sH, OBM, OBL)
    a(f's_mov_b32 {s(T0)}, {f2u(2.0**-64):#x}\ns_mov_b32 {s(T6)}, {f2u(2.0**64):#x}\ns_mov_b32 {s(T7)}, {f2u(2.0**120):#x}')
    if opt.get('p4'): a.stamp(3)
    a('s_waitcnt vmcnt(1) lgkmcnt(0)')
    if opt.get('p4'): a.stamp(4)
    a('s_barrier')
    if opt.get('p4'): a.stamp(5)
    for part in range(3):
        for t in range(2):
            o = Ob + 32 + 16*t
            a([f'ds_read_b96 {v(o+8,3)}, v6 offset:{3072*t+2048}', f'ds_read_b128 {v(o,4)}, v6 offset:{3072*t}', f'ds_read_b128 {v(o+4,4)}, v6 offset:{3072*t+1024}'][part])
    O2 = [Ob, Ob + 16]; P2 = [Ob + 32, Ob + 48]
    a.c('the softmax above used 0 in place of the row max: safe only while the sums stay finite and well away from 0')
    a('s_waitcnt lgkmcnt(4)')
    for t in range(2): a(f'v_add_f32 {v(O2[t]+10)}, {v(O2[t]+10)}, {v(P2[t]+10)}')
    for t in range(2): a(f'v_pk_add_f32 {v(O2[t]+8,2)}, {v(O2[t]+8,2)}, {v(P2[t]+8,2)}')
    a(f'''v_min_f32 v2, {v(O2[0]+10)}, {v(O2[1]+10)}
    v_add_f32 v3, {v(O2[0]+10)}, {v(O2[1]+10)}
    v_cmp_nle_f32 {s(sChk,2)}, {s(T0)}, v2
    v_cmp_nge_f32 vcc, {s(T6)}, v3
    s_waitcnt lgkmcnt(2)''')
    for i in (0, 2):
        for t in range(2): a(f'v_pk_add_f32 {v(O2[t]+i,2)}, {v(O2[t]+i,2)}, {v(P2[t]+i,2)}')
    a(f's_or_b64 {s(sChk,2)}, {s(sChk,2)}, vcc\ns_waitcnt lgkmcnt(0)')
    for i in (4, 6):
        for t in range(2): a(f'v_pk_add_f32 {v(O2[t]+i,2)}, {v(O2[t]+i,2)}, {v(P2[t]+i,2)}')
    a(f'''v_pk_add_f32 v[2:3], {v(O2[0],2)}, {v(O2[1],2)}
    v_pk_add_f32 v[4:5], {v(O2[0]+2,2)}, {v(O2[1]+2,2)}
    v_pk_add_f32 v[8:9], {v(O2[0]+4,2)}, {v(O2[1]+4,2)}
    v_pk_add_f32 v[10:11], {v(O2[0]+6,2)}, {v(O2[1]+6,2)}
    v_pk_add_f32 v[12:13], {v(O2[0]+8,2)}, {v(O2[1]+8,2)}
    v_pk_add_f32 v[2:3], v[2:3], v[4:5]
    v_pk_add_f32 v[8:9], v[8:9], v[10:11]
    v_pk_add_f32 v[2:3], v[2:3], v[12:13]
    v_pk_add_f32 v[2:3], v[2:3], v[8:9]
    v_add_f32 v2, v2, v3
    v_cmp_ngt_f32 vcc, {s(T7)}, abs(v2)
    s_or_b64 {s(sChk,2)}, {s(sChk,2)}, vcc
    s_cbranch_scc1 L_fallback''')
    a.label('L_norm')
    o_publish(a, O2, P2, False)
    a.stamp(9)
    if opt.get('p4'): a.stamp(2)
    flag_ld(a)
    final_state(a)
    op_read_w(a, FW, vWb, sXb)
    if opt.get('nojq'): a('s_waitcnt lgkmcnt(0)'); lds_arrive(a, C_WB)
    a('s_setprio 0')
    a('s_branch L_final')

    a.nopk = False
    a.label('L_fallback')
    a.c('the stand-in was unsafe for one of this wave\'s rows: redo its two query tiles over all keys with the true row max')
    vK2, vKL2 = 2, 3
    a(f'v_mov_b32 v8, {v(vWr)}\nv_mov_b32 v9, {v(vRd)}')
    su_vgat(a)
    a(f'v_mov_b32 v10, {v(vVf)}\nv_mov_b32 v11, {v(vVf+1)}\nv_mov_b32 {v(vWr)}, v8\nv_mov_b32 {v(vRd)}, v9')
    kl_const(a, sCur2, sH)
    a(f'''v_and_b32 v3, 31, v0
    v_lshl_add_u32 v3, v3, 3, {s(sCur2)}
    s_mul_i32 {s(sLo2)}, {s(sH)}, {HREC}
    s_add_u32 {s(sLo2)}, {s(sLo2)}, {KV:#x}
    s_add_u32 {s(sHi2)}, {s(sLo2)}, {HREC}
    s_cmp_eq_u32 {s(sMG)}, 0
    s_cbranch_scc1 L_fb0''')
    for i in range(8): a(f'v_mov_b32 {v(Qr+i)}, {v(Qr+8+i)}')
    a(f'v_mov_b32 {v(QLr)}, {v(QLr+2)}')
    a.label('L_fb0')
    for t in range(2): a(f'v_mov_b32 {v(M+t)}, 0xff800000')
    for r in range(Ob, Ob + 32): a(f'v_mov_b32 {v(r)}, 0')
    for ps in range(2):
        a(f's_mov_b32 {s(sCur2)}, {s(sLo2)}')
        a.label(f'L_fbloop{ps}')
        a(f'buffer_load_dwordx4 {v(Kb,4)}, {v(v16)}, {srd(sWS)}, {s(sCur2)} offen sc1\nbuffer_load_dword {v(KLb)}, v3, {srd(sWS)}, {s(sCur2)} offen sc1')
        if ps:
            for f in range(2): a(f'buffer_load_dwordx4 {v(Vb+4*f,4)}, {v(10+f)}, {srd(sWS)}, {s(sCur2)} offen sc1')
        a('s_waitcnt vmcnt(0)')
        m = qk(Sb, 0, 0); a(m[0]); a.nop(18); a(m[1]); a(m[2]); a.nop(12)
        if ps == 0:
            for t in range(2):
                for i in range(0, 16, 2): a(f'v_max3_f32 {v(M+t)}, {v(Sb+16*t+i)}, {v(Sb+16*t+i+1)}, {v(M+t)}')
        else:
            for i in range(32): a(f'v_sub_f32 {v(Sb+i)}, {v(Sb+i)}, {v(M + i//16)}')
            for i in range(32): a(f'v_exp_f32 {v(Sb+i)}, {v(Sb+i)}')
            for q in range(4): cvt8(a, Sb + 8*q, Sb + 8*q)
            a.nop(1)
            for t in range(2):
                for f in range(2): mfma(a, Ob + 16*t, Vb + 4*f, Sb + 16*t + 8*f, Ob + 16*t)
        a(f's_add_u32 {s(sCur2)}, {s(sCur2)}, {REC}\ns_cmp_lg_u32 {s(sCur2)}, {s(sHi2)}\ns_cbranch_scc1 L_fbloop{ps}')
        if ps == 0:
            for t in range(2): a(f'v_mov_b32 {v(Sb+t)}, {v(M+t)}')
            a.nop(2)
            for t in range(2): a(f'v_permlane32_swap_b32 {v(Sb+t)}, {v(M+t)}')
            a.nop(1)
            for t in range(2): a(f'v_max_f32 {v(M+t)}, {v(M+t)}, {v(Sb+t)}')
    a.nop(12)
    a('s_branch L_norm')

def o_addr(a, shead, M_, L_):
    a(f'''s_lshl_b32 {s(T0)}, {s(T0)}, 5
    s_add_u32 {s(T0)}, {s(T0)}, {s(shead)}
    s_lshl_b32 {s(T2)}, {s(T0)}, 10
    s_add_u32 {s(T2)}, {s(T2)}, {M_:#x}
    s_add_u32 {s(T3)}, {s(T2)}, 0x8000
    s_lshl_b32 {s(T4)}, {s(T0)}, 7
    s_add_u32 {s(T4)}, {s(T4)}, {L_:#x}
    s_add_u32 {s(T5)}, {s(T4)}, 0x1000''')

def o_publish(a, O, P, eps):
    for o in O:
        if eps: a(f'v_add_f32 {v(o+10)}, {f2u(1e-6):#x}, {v(o+10)}')
    for o in O: a(f'v_rcp_f32 {v(o+10)}, {v(o+10)}')
    for t in range(2):
        o, p = O[t], P[t]
        if t == 0: a('s_nop 0')
        for i in range(0, 10, 2): a(f'v_pk_mul_f32 {v(o+i,2)}, {v(o+i,2)}, {v(o+10,2)} op_sel_hi:[1,0]')
        cvt8(a, o, p)
        if not eps:
            for i in range(4): a(f'v_min_u32 {v(p+i)}, -2, {v(p+i)}')
        a(f'buffer_store_dwordx4 {v(p,4)}, {v(v16)}, {srd(sWS)}, {s(T2+t)} offen sc1')
        a(f'v_cvt_pk_bf16_f32 {v(p+4)}, {v(o+8)}, {v(o+9)}')
        if not eps: a(f'v_min_u32 {v(p+4)}, -2, {v(p+4)}')
    a('s_mov_b32 exec_hi, 0')
    for t in range(2): a(f'buffer_store_dword {v(P[t]+4)}, {v(vQL)}, {srd(sWS)}, {s(T4+t)} offen sc1')
    a('s_mov_b32 exec_hi, -1')

FW, FO, FA = 16, 124, 160
vFlg, vFol, vWr, vRd, vOut = 250, 251, 252, 253, 255
ACA = [212, 228, 196]
QS = 1088; WSTR = 8*QS; ARED = M_A; EXR = X_A; BRED = M_C
sM, sM2, sL, sA, sB_, sC, sO, sO2 = 64, 65, 66, 56, 57, 63, 100, 101
sTB, sXa, sXb = sLoc, sXcd, sRot
vP4, vWb = 254, 236
def extra_flags(a):
    a(f'''s_lshr_b32 {s(sTB)}, {s(sWave)}, 2
    s_xor_b32 {s(sTB)}, {s(sTB)}, {s(sTH)}
    s_and_b32 s3, {s(sOC)}, 5
    s_cmp_eq_u32 s3, {s(sTH)}
    s_cselect_b32 {s(sXa)}, 1, 0
    s_or_b32 {s(sXb)}, {s(sTB)}, 4
    s_cmp_eq_u32 s3, {s(sXb)}
    s_cselect_b32 {s(sXb)}, 1, 0''')
def final_setup(a):
    a(f'''v_and_b32 v1, 31, v0
    v_lshrrev_b32 v2, 5, v0
    v_lshlrev_b32 v3, 2, v1
    v_lshl_add_u32 {v(vFol)}, v2, 9, v3
    s_lshl_b32 {s(T1)}, {s(sOT)}, 1
    s_add_u32 {s(T0)}, {s(sTB)}, {s(T1)}
    s_lshl_b32 {s(T0)}, {s(T0)}, 5
    s_lshr_b32 {s(T1)}, {s(sWave)}, 1
    s_lshl_b32 {s(T1)}, {s(T1)}, 3
    s_add_u32 {s(T0)}, {s(T0)}, {s(T1)}
    s_lshl_b32 {s(sM)}, {s(T0)}, 10
    s_add_u32 {s(sM)}, {s(sM)}, {OBM:#x}
    s_add_u32 {s(sM2)}, {s(sM)}, 4096
    s_lshl_b32 {s(sL)}, {s(T0)}, 7
    s_add_u32 {s(sL)}, {s(sL)}, {OBL:#x}
    s_lshl_b32 {s(T0)}, {s(sOT)}, 5
    s_add_u32 {s(T0)}, {s(T0)}, {s(T1)}
    v_and_b32 v3, 7, v0
    v_add_u32 v1, {s(T0)}, v3
    v_lshlrev_b32 v1, 7, v1
    v_add_u32 {v(vP4)}, {FL4:#x}, v1
    s_and_b32 {s(T0)}, {s(sWave)}, 6
    s_add_u32 {s(T0)}, {s(T0)}, {s(sTB)}
    s_mul_i32 {s(T0)}, {s(T0)}, {WSTR}
    s_add_u32 {s(T0)}, {s(T0)}, {BRED}
    v_add_u32 {v(vWr)}, {s(T0)}, {v(v16)}
    s_mul_i32 {s(T0)}, {s(sOT)}, {64*2304}
    s_lshl_b32 {s(T1)}, {s(sOC)}, 7
    s_add_u32 {s(sO)}, {s(T0)}, {s(T1)}
    s_add_u32 {s(sO2)}, {s(sO)}, 1152
    v_lshrrev_b32 v1, 3, v0
    s_lshl_b32 {s(T0)}, {s(sWave)}, 3
    v_add_u32 v2, {s(T0)}, v1
    v_mul_u32_u24 v2, 2304, v2
    v_lshl_add_u32 {v(vOut)}, v3, 4, v2
    v_mul_u32_u24 v3, {QS}, v3
    v_lshl_add_u32 v3, v1, 4, v3
    s_lshr_b32 {s(T0)}, {s(sWave)}, 2
    s_mul_i32 {s(T0)}, {s(T0)}, {WSTR}
    s_lshl_b32 {s(T1)}, {s(sW4)}, 7
    s_add_u32 {s(T0)}, {s(T0)}, {s(T1)}
    v_add_u32 {v(vRd)}, {s(T0)}, v3''')
def flag_ld(a, r=vFlg): a(f'buffer_load_dword {v(r)}, {v(vP4)}, {srd(sWS)}, 0 offen sc1')
def final_state(a): a(f's_mov_b32 {s(sA)}, 0\ns_mov_b32 {s(sB_)}, 0\ns_mov_b32 {s(sC)}, 0')
def half_ld(a, h):
    for i in range(4): a(f'buffer_load_dwordx4 {v(FO+16*h+4*i,4)}, {v(v16)}, {srd(sWS)}, {s(sM2 if h else sM)} offen offset:{1024*i} sc1')
def left_ld(a):
    for i in range(4): a(f'buffer_load_dword {v(FO+32+i)}, {v(vFol)}, {srd(sWS)}, {s(sL)} offen offset:{128*i} sc1')
def half_try(a, again=False):
    for h, st in ((0, sA), (1, sB_)):
        lb = a.new('fl'); go = a.new('fg')
        if again: a(f's_cmp_eq_u32 {s(st)}, 1\ns_cbranch_scc1 {go}')
        a(f's_and_b32 {s(T0)}, vcc_lo, {0xf0 if h else 0x0f}\ns_or_b32 {s(T0)}, {s(T0)}, {s(st)}\ns_cbranch_scc1 {lb}\ns_mov_b32 {s(st)}, 1')
        a.label(go)
        half_ld(a, h)
        a.label(lb)
def final(a):
    a.label('L_final')
    a.c('================= all waves: out projection of B =================')
    a.c('this wave needs 8 heads, 4 from each of two producer groups: load each half as soon as its flags are up')
    def mm(steps):
        for st in steps:
            for T in range(2): mfma(a, FA + 16*T, FW + 8*st + 4*T, FO + 4*st, None if st == 0 else FA + 16*T)
        lb = a.new('nx')
        a(f's_cmp_eq_u32 {s(sXb)}, 0\ns_cbranch_scc1 {lb}')
        for st in steps: mfma(a, FA + 32, FW + 72 + 4*st, FO + 4*st, None if st == 0 else FA + 32)
        a.label(lb)
    def pending0():
        lb = a.new('fm')
        a(f's_cmp_lg_u32 {s(sA)}, 2\ns_cbranch_scc1 {lb}\ns_mov_b32 {s(sA)}, 3')
        mm(range(4))
        a.label(lb)
    def verify(st, r, n):
        lb = a.new('fv')
        a(f's_cmp_lg_u32 {s(st)}, 1\ns_cbranch_scc1 {lb}')
        a(f'v_max3_u32 v2, {v(r)}, {v(r+1)}, {v(r+2)}')
        if n == 4: a(f'v_max_u32 v2, v2, {v(r+3)}')
        else:
            a(f'v_max3_u32 v3, {v(r+3)}, {v(r+4)}, {v(r+5)}')
            for i in range(6, 16, 4): a(f'v_max3_u32 v2, v2, {v(r+i)}, {v(r+i+1)}' + (f'\nv_max3_u32 v3, v3, {v(r+i+2)}, {v(r+i+3)}' if i + 3 < 16 else ''))
            a('v_max_u32 v2, v2, v3')
        a(f'v_cmp_eq_u32 {s(60,2)}, -1, v2\ns_cmp_lg_u64 {s(60,2)}, 0\ns_cselect_b32 {s(st)}, 1, 2')
        a.label(lb)
    a.label('L_fpoll')
    a('s_waitcnt vmcnt(0) lgkmcnt(0)')
    verify(sA, FO, 16); verify(sB_, FO + 16, 16); verify(sC, FO + 32, 4)
    a(f's_min_u32 {s(T0)}, {s(sA)}, {s(sB_)}\ns_min_u32 {s(T0)}, {s(T0)}, {s(sC)}\ns_cmp_ge_u32 {s(T0)}, 2\ns_cbranch_scc1 L_fgo')
    a(f'v_cmp_ne_u32 vcc, {s(sTok)}, {v(vFlg)}')
    half_try(a, True)
    lb = a.new('fc'); l2 = a.new('fd')
    a(f's_min_u32 {s(T0)}, {s(sA)}, {s(sB_)}\ns_cmp_eq_u32 {s(T0)}, 0\ns_cbranch_scc1 {lb}\ns_cmp_eq_u32 {s(sC)}, 2\ns_cbranch_scc1 {l2}\ns_mov_b32 {s(sC)}, 1')
    for i in range(4): a(f'buffer_load_dword {v(FO+32+i)}, {v(vFol)}, {srd(sWS)}, {s(sL)} offen offset:{128*i} sc1')
    a(f's_branch {l2}')
    a.label(lb)
    flag_ld(a)
    a.label(l2)
    pending0()
    spin_tail(a, 'L_fpoll', OPT.get('fsl', 0))
    a.label('L_fgo')
    a.stamp(10)
    pending0()
    if OPT.get('nojq'): a(f'ds_read_b32 v6, {v(vCnt)} offset:{C_WB}')
    mm(range(4, 9))
    if OPT.get('p4'): a.stamp(6)
    if OPT.get('nojq'):
        a(f's_waitcnt lgkmcnt(0)\nv_readfirstlane_b32 {s(T0)}, v6\ns_cmp_ge_u32 {s(T0)}, 8\ns_cbranch_scc1 L_wbok')
        lds_wait(a, 6, C_WB, 8, sl=0)
        a.label('L_wbok')
    else: a('s_barrier')
    if OPT.get('p4'): a.stamp(7)
    a(f'''v_add_u32 v7, {ARED}, {v(vRd)}
    v_add_u32 {v(vRd)}, {BRED}, {v(vRd)}
    v_lshrrev_b32 v2, 2, v0
    s_lshl_b32 {s(T0)}, {s(sWave)}, 4
    v_add_u32 v2, {s(T0)}, v2
    v_and_b32 v3, 3, v0
    v_mul_u32_u24 v5, 2304, v2
    v_lshl_add_u32 v5, v3, 4, v5
    v_mul_u32_u24 v3, {QS}, v3
    v_lshl_add_u32 v4, v2, 4, v3
    v_add_u32 v4, {EXR}, v4''')
    for q in range(8): a(f'ds_write_b128 {v(vWr)}, {v(FA+4*q,4)} offset:{QS*q}')
    a(f'''s_cmp_eq_u32 {s(sXb)}, 0
    s_cbranch_scc1 L_fnx
    s_lshr_b32 {s(T0)}, {s(sWave)}, 1
    s_mul_i32 {s(T0)}, {s(T0)}, {4*QS}
    s_add_u32 {s(T0)}, {s(T0)}, {EXR}
    v_add_u32 v1, {s(T0)}, {v(v16)}''')
    for q in range(4): a(f'ds_write_b128 v1, {v(FA+32+4*q,4)} offset:{QS*q}')
    a.label('L_fnx')
    a('s_waitcnt lgkmcnt(0)\ns_barrier')
    a.stamp(11)
    a.c('sum the partials in output order: one 16-byte piece of a row per lane')
    def rd(R, vr, n, stride):
        for k in range(n):
            for h in range(2): a(f'ds_read_b128 {v(R+8*k+4*h,4)}, {v(vr)} offset:{stride*k + 512*h}')
    def fin(R, n, vo, so, pol):
        for k in range(1, n):
            for i in range(4): a(f'v_pk_add_f32 {v(R+2*i,2)}, {v(R+2*i,2)}, {v(R+8*k+2*i,2)}')
        cvt8(a, R, R)
        a(f'buffer_store_dwordx4 {v(R,4)}, {v(vo)}, {srd(sOUT)}, {s(so)} offen{opol(pol)}')
    rd(16, vRd, 4, 2*WSTR); rd(48, 7, 2, 2*WSTR)
    a(f'''s_cmp_gt_u32 {s(sWave)}, 1
    s_cbranch_scc1 L_fin_a
    s_mul_i32 {s(T0)}, {s(sOT)}, {64*2304}
    s_and_b32 {s(T1)}, {s(sOC)}, 1
    s_mul_i32 {s(T1)}, {s(T1)}, {32*2304}
    s_add_u32 {s(T0)}, {s(T0)}, {s(T1)}
    s_and_b32 {s(T1)}, {s(sOC)}, 2
    s_lshl_b32 {s(T1)}, {s(T1)}, 5
    s_add_u32 {s(T0)}, {s(T0)}, {s(T1)}
    s_add_u32 {s(T0)}, {s(T0)}, 1024
    s_bitcmp1_b32 {s(sOC)}, 2
    s_cbranch_scc0 L_fin_x
    s_add_u32 {s(T0)}, {s(T0)}, 1152''')
    rd(64, 4, 4, 4*QS); a('s_waitcnt lgkmcnt(0)'); fin(64, 4, 5, T0, 'osb'); a('s_branch L_fin_a')
    a.label('L_fin_x')
    rd(64, 4, 2, 4*QS); a('s_waitcnt lgkmcnt(0)'); fin(64, 2, 5, T0, 'osa')
    a.label('L_fin_a')
    a('s_waitcnt lgkmcnt(4)'); fin(16, 4, vOut, sO2, 'osb')
    a('s_waitcnt lgkmcnt(0)'); fin(48, 2, vOut, sO, 'osa')
    if OPT.get('padto'):
        a.label('L_pad')
        a(f's_memrealtime s[94:95]\ns_waitcnt lgkmcnt(0)\ns_sub_u32 s94, s94, s80\ns_cmp_lt_u32 s94, {OPT["padto"]}\ns_cbranch_scc1 L_pad')
    if a.diag:
        a('s_waitcnt vmcnt(0)')
        a.stamp(12)
        a.label('L_dump')
        a(f's_lshl_b32 {s(T0)}, s2, 3\ns_add_u32 {s(T0)}, {s(T0)}, {s(sWave)}\ns_lshl_b32 {s(T0)}, {s(T0)}, 7\ns_add_u32 {s(T0)}, {s(T0)}, {STAMPS:#x}')
        for k in range(16): a(f'v_mov_b32 {v(16+k)}, {s(SSTAMP+k)}')
        a(f's_lshl_b32 {s(T1)}, {s(T0)}, 1\ns_sub_u32 {s(T1)}, {s(T1)}, {STAMPS - 0x80000:#x}\nbuffer_store_dword v243, {v(vQL)}, {srd(sWS)}, {s(T1)} offen')
        a('v_mov_b32 v1, 0\ns_mov_b64 exec, 1')
        for k in range(4): a(f'buffer_store_dwordx4 {v(16+4*k,4)}, v1, {srd(sWS)}, {s(T0)} offen offset:{16*k}')
    a('s_endpgm')
    for f in a.late: f()
    a.label('L_end')
    a('s_endpgm')

WPH, WLq, WLk, vG, vPh, vPr, RAW = 8, 12, 14, 16, 18, 19, 160
sQa, sRec, sTl, sF1A, sLoB, sHiB, sC2 = 56, 57, 58, 59, 60, 61, 62
vXs, vOl, vF3, vF2 = 234, 240, 241, 242
def a_setup(a, part):
    if part == 0:
        a.c('feature-map weights (rows follow the rotated dim order of odd heads)')
        a(f'''v_and_b32 v1, 31, v0
        v_lshrrev_b32 v2, 5, v0
        v_cmp_eq_u32 vcc, 20, v1
        v_mov_b32 v3, 17
        v_mov_b32 v4, {OOB:#x}
        v_cndmask_b32 v3, v1, v3, vcc
        v_cmp_ge_u32 {s(T0,2)}, 16, v1
        s_or_b64 vcc, vcc, {s(T0,2)}
        v_lshlrev_b32 v3, 1, v3
        s_mul_i32 {s(T2)}, {s(sHA)}, 648
        v_cndmask_b32 v3, v4, v3, vcc
        v_mul_u32_u24 v5, 288, v2
        v_add_u32 v4, v3, v5
        s_and_b32 {s(T0)}, {s(sHA)}, 1
        s_mul_i32 {s(T1)}, {s(T0)}, 72
        s_add_u32 {s(T3)}, {s(T2)}, {s(T1)}
        s_mul_i32 {s(T1)}, {s(T0)}, 576
        s_sub_u32 {s(T2)}, {s(T2)}, {s(T1)}
        s_add_u32 {s(T2)}, {s(T2)}, 576''')
        for e in range(8):
            a(f'buffer_load_ushort {v(RAW + e)}, v4, {srd(sPHI)}, {s(T3)} offen offset:{e*36}')
        a(f'buffer_load_ushort {v(RAW+8)}, v3, {srd(sPHI)}, {s(T2)} offen\nbuffer_load_ushort {v(RAW+9)}, v3, {srd(sPHI)}, {s(T2)} offen offset:36')
    if part == 1:
        a.c('wo image lane offsets; flags of the producers of this wave\'s rows')
        a(f'''v_lshrrev_b32 v3, 3, v0
        v_bfe_u32 v4, v0, 4, 1
        v_lshlrev_b32 v4, 2, v4
        v_and_b32 v5, 7, v0
        v_xor_b32 v4, v4, v5
        v_mul_u32_u24 v3, 1152, v3
        v_lshl_add_u32 {v(vWO)}, v4, 4, v3
        v_lshrrev_b32 v3, 2, v0
        v_mul_u32_u24 v3, 1152, v3
        v_and_b32 v4, 3, v0
        v_lshl_add_u32 {v(vWO+1)}, v4, 4, v3''')
        a('v_lshrrev_b32 v4, 1, v0\nv_min_u32 v4, 2, v4\nv_and_b32 v5, 1, v0')
        producer_ct(a, 3, 4, 5, sHA, 6)
        a(f'''s_lshl_b32 {s(T0)}, {s(sRB)}, 1
        s_add_u32 {s(T0)}, {s(T0)}, {s(sMG)}
        v_lshl_add_u32 v3, v3, 4, {s(T0)}
        v_lshlrev_b32 v3, 7, v3
        v_add_u32 {v(vPoll)}, {FL1A:#x}, v3''')
    if part == 2:
        a.c('image addresses: tile = 8rb + 2w; leftover gather (half 0: q, half 1: k)')
        a(f'''s_lshl_b32 {s(sTl)}, {s(sRB)}, 3
        s_lshl_b32 {s(T1)}, {s(sW4)}, 1
        s_add_u32 {s(sTl)}, {s(sTl)}, {s(T1)}
        s_lshl_b32 {s(T1)}, {s(sHA)}, 6
        s_add_u32 {s(T0)}, {s(sTl)}, {s(T1)}
        s_lshl_b32 {s(sQa)}, {s(T0)}, 10
        s_add_u32 {s(sQa)}, {s(sQa)}, {QM + AOFF:#x}
        s_mul_i32 {s(sRec)}, {s(T0)}, {REC}
        s_add_u32 {s(sRec)}, {s(sRec)}, {KV + AOFF:#x}
        s_lshr_b32 {s(T0)}, {s(sHA)}, 1
        s_lshl_b32 {s(T0)}, {s(T0)}, 6
        s_add_u32 {s(T0)}, {s(T0)}, {s(sTl)}
        s_lshl_b32 {s(T0)}, {s(T0)}, 8
        s_and_b32 {s(T1)}, {s(sHA)}, 1
        s_lshl_b32 {s(T1)}, {s(T1)}, 2
        s_add_u32 {s(T0)}, {s(T0)}, {s(T1)}
        s_add_u32 {s(T0)}, {s(T0)}, {QL + AOFF:#x}
        v_mov_b32 v3, {s(T0)}''')
        kl_const(a, T1, sHA)
        a(f'''s_add_u32 {s(T1)}, {s(T1)}, {s(sRec)}
        v_mov_b32 v4, {s(T1)}
        v_mov_b32 v5, 256
        v_mov_b32 v6, {REC}
        v_cmp_gt_u32 vcc, 32, v0
        v_and_b32 v1, 31, v0
        v_lshrrev_b32 v2, 5, v0
        v_cndmask_b32 v3, v4, v3, vcc
        v_cndmask_b32 v5, v6, v5, vcc
        v_lshl_add_u32 {v(vG)}, v1, 3, v3
        v_add_u32 {v(vG+1)}, {v(vG)}, v5''')
        flag_addr(a, sF1A, sCT, sRT, 4, FL1A)
        a(f's_cmp_lg_u32 {s(sIdle)}, 0\ns_cselect_b32 {s(sF1A)}, {OOB:#x}, {s(sF1A)}')
    if part == 3:
        a.c('phi scratch: row-per-token writes, transposed reads')
        a(f'''s_mul_i32 {s(T0)}, {s(sW4)}, 5120
        s_add_u32 {s(T0)}, {s(T0)}, {PHS}
        v_and_b32 v1, 31, v0
        v_lshrrev_b32 v2, 5, v0
        v_mul_u32_u24 v3, 80, v1
        v_lshl_add_u32 v3, v2, 3, v3
        v_add_u32 {v(vPh)}, {s(T0)}, v3
        v_bfe_u32 v3, v0, 2, 2
        v_lshl_add_u32 v5, v2, 2, v3
        v_mul_u32_u24 v5, 80, v5
        v_add_u32 v5, {s(T0)}, v5
        v_and_b32 v4, 3, v0
        v_lshlrev_b32 v6, 3, v4
        v_and_b32 v3, 1, v0
        v_lshlrev_b32 v3, 3, v3
        v_add_u32 v3, 64, v3
        v_bfe_u32 v4, v0, 4, 1
        v_cmp_eq_u32 vcc, 0, v4
        v_add_u32 {v(vPr+1)}, v5, v6
        v_mov_b32 {v(WLq+1)}, 0
        v_cndmask_b32 v6, v3, v6, vcc
        v_mov_b32 {v(WLk+1)}, 0
        v_add_u32 {v(vPr)}, v5, v6''')
    if part == 4:
        for i in range(4): a(f'v_lshl_or_b32 {v(WPH + i)}, {v(RAW+1 + 2*i)}, 16, {v(RAW + 2*i)}')
        a(f'v_lshl_or_b32 v3, {v(RAW+9)}, 16, {v(RAW+8)}\nv_cmp_gt_u32 vcc, 32, v0\ns_nop 1\nv_cndmask_b32 {v(WLq)}, {v(vZero)}, v3, vcc\nv_cndmask_b32 {v(WLk)}, v3, {v(vZero)}, vcc')

def a_chain(a, opt):
    Fq, Fk, Fl, Fv = [36, 40], [44, 48], [52, 54], [56, 64]
    def lprio(x):
        if opt.get('lp', 1): a(f's_setprio {x}')
    a.label('L_achain')
    if a.diag and opt.get('p3'):
        a(f's_lshl_b32 {s(T0)}, s2, 3\ns_add_u32 {s(T0)}, {s(T0)}, {s(sWave)}\ns_lshl_b32 {s(T0)}, {s(T0)}, 8\ns_add_u32 {s(T0)}, {s(T0)}, {STAMPS + 0x100000:#x}\nbuffer_store_dword v243, {v(vQL)}, {srd(sWS)}, {s(T0)} offen')
    a.c('================= waves 4-7: publish A qkv, feature maps =================')
    def mains(sr, kq, slot): return [('m', (sr, kq), h, slot, 2*(kq & 1) + h) for h in range(2)]
    bg = mains(sAWO, 1, M_A) + mains(sAWO, 3, M_A + MB) + mains(sBWO, 0, M_C) + [('e', 1, 0, X_A, 2), ('e', 3, 1, X_A + EB, 3)]
    hold = [bool(opt.get('late', 0))]
    def bgdma():
        if bg and not hold[0]: issue_grp(a, *bg.pop(0))
    extra_flags(a)
    a(f'''s_lshl_b32 {s(sWB)}, {s(sOC)}, 7
    s_mul_i32 s3, {s(sW4)}, {8*1152}
    s_add_u32 {s(sWB)}, {s(sWB)}, s3
    s_lshl_b32 s3, s3, 1
    s_and_b32 {s(sWE)}, {s(sOC)}, 2
    s_lshl_b32 {s(sWE)}, {s(sWE)}, 5
    s_add_u32 {s(sWE)}, {s(sWE)}, s3
    s_add_u32 {s(sWE)}, {s(sWE)}, 1024
    s_bitcmp1_b32 {s(sOC)}, 2
    s_cselect_b32 {s(sEX)}, {s(sBWO)}, {s(sAWO)}
    s_cselect_b32 {s(sEX+1)}, {s(sBWO+1)}, {s(sAWO+1)}
    s_mov_b32 {s(sEX+2)}, {576*1152}
    s_mov_b32 {s(sEX+3)}, 0x20000
    s_mov_b32 {s(T2)}, {f2u(LOG2E):#x}
    s_mov_b32 {s(T3)}, {f2u(LOG2E):#x}
    v_mov_b32 {v(Fl[0]+1)}, 0
    v_mov_b32 {v(Fl[1]+1)}, 0
    s_waitcnt vmcnt(0)''')
    last_signals(a, 2, C_F1A, 4, sF1A)
    a.stamp(5)
    a.c('addresses for later stages, in the slots the attention leaves free while the producers finish')
    if opt.get('w1', 0) < 2: lprio(0)
    a(f's_mul_i32 {s(T6)}, {s(sMG)}, {MB}\ns_add_u32 {s(T6)}, {s(T6)}, {LATE}\ns_mul_i32 {s(T7)}, {s(sMG)}, {EB}\ns_add_u32 {s(T7)}, {s(T7)}, {LATE + 2*MB}')
    op_addr(a, vXs, 2, T6, T7)
    if opt.get('w1', 0): lprio(1)
    a(f'''v_and_b32 v1, 31, v0
    v_lshrrev_b32 v2, 5, v0
    v_lshlrev_b32 v3, 2, v1
    v_lshl_add_u32 {v(vOl)}, v2, 9, v3
    s_lshl_b32 {s(T0)}, {s(sOT)}, 1
    s_add_u32 {s(T0)}, {s(T0)}, {s(sMG)}
    s_lshl_b32 {s(T0)}, {s(T0)}, 11
    s_add_u32 {s(T0)}, {s(T0)}, {FL3:#x}
    v_and_b32 v3, 15, v0
    v_lshl_add_u32 {v(vF3)}, v3, 7, {s(T0)}
    v_and_b32 v3, 7, v0
    s_lshl_b32 {s(T0)}, {s(sHA)}, 10
    s_add_u32 {s(T0)}, {s(T0)}, {FL2:#x}
    v_lshl_add_u32 {v(vF2)}, v3, 7, {s(T0)}
    s_mov_b32 {s(sLoB)}, {f2u(2.0**-64):#x}
    s_mov_b32 {s(sHiB)}, {f2u(2.0**64):#x}''')
    lprio(1)
    poll_flags(a, vPoll, 2, sl=4)
    a.stamp(6)
    for tt in range(2):
        a(f'buffer_load_dwordx4 {v(Fk[tt],4)}, {v(v16)}, {srd(sWS)}, {s(sRec)} offen offset:{REC*tt} sc1')
        a(f'buffer_load_dword {v(Fl[tt])}, {v(vG + tt)}, {srd(sWS)}, 0 offen sc1')
    for tt in range(2): a(f'buffer_load_dwordx4 {v(Fq[tt],4)}, {v(v16)}, {srd(sWS)}, {s(sQa)} offen offset:{1024*tt} sc1')
    for tt in range(2):
        for f in range(2): a(f'buffer_load_dwordx4 {v(Fv[tt]+4*f,4)}, {v(vVf+f)}, {srd(sWS)}, {s(sRec)} offen offset:{REC*tt} sc1')
    lds_wait(a, 2, C_F1A, 4)
    D = {('k', 0): 80, ('k', 1): 96, ('q', 0): 112, ('q', 1): 128}
    a('s_waitcnt vmcnt(6)')
    lprio(0)
    for tt in range(2): mfma(a, D[('k', tt)], WLk, Fl[tt], None, '8')
    for tt in range(2): mfma(a, D[('q', tt)], WLq, Fl[tt], None, '8')
    a.nop(7)
    for tt in range(2): mfma(a, D[('k', tt)], WPH, Fk[tt], D[('k', tt)])
    a('s_waitcnt vmcnt(4)')
    for tt in range(2): mfma(a, D[('q', tt)], WPH, Fq[tt], D[('q', tt)])
    a.nop(8)
    lprio(1)
    dense = False
    EP, EM = 144, 156
    PH = {('q', 0): 204, ('q', 1): 214, ('k', 0): 168, ('k', 1): 178}
    def sums():
        a(f'''v_pk_add_f32 v[2:3], {v(EP,2)}, {v(EP+2,2)}
        v_pk_add_f32 v[4:5], {v(EM,2)}, {v(EM+2,2)}
        v_pk_add_f32 v[2:3], v[2:3], {v(EP+4,2)}
        v_pk_add_f32 v[4:5], v[4:5], {v(EM+4,2)}
        v_pk_add_f32 v[2:3], v[2:3], {v(EP+6,2)}
        v_pk_add_f32 v[4:5], v[4:5], {v(EM+6,2)}
        v_add_f32 v2, v2, {v(EP+8)}
        v_add_f32 v4, v4, {v(EM+8)}
        v_add_f32 v2, v2, v3
        v_add_f32 v4, v4, v5
        s_nop 1
        v_permlane32_swap_b32 v2, v4
        v_add_f32 v2, v2, v4''')
    def softmax_max(x, lab, back):
        a.label(lab)
        a(f'''v_max3_f32 v2, {v(x)}, {v(x+1)}, {v(x+2)}
        v_max3_f32 v4, -{v(x)}, -{v(x+1)}, -{v(x+2)}
        v_max3_f32 v2, v2, {v(x+3)}, {v(x+4)}
        v_max3_f32 v4, v4, -{v(x+3)}, -{v(x+4)}
        v_max3_f32 v2, v2, {v(x+5)}, {v(x+6)}
        v_max3_f32 v4, v4, -{v(x+5)}, -{v(x+6)}
        v_max3_f32 v2, v2, {v(x+7)}, {v(x+8)}
        v_max3_f32 v4, v4, -{v(x+7)}, -{v(x+8)}
        s_nop 1
        v_permlane32_swap_b32 v2, v4
        v_max_f32 v2, v2, v4
        v_mov_b32 v4, v2
        s_nop 1
        v_permlane32_swap_b32 v2, v4''')
        for i in range(9): a(f'v_sub_f32 {v(EP+i)}, {v(x+i)}, v2\nv_sub_f32 {v(EM+i)}, -{v(x+i)}, v4')
        for E in (EP, EM):
            for i in range(9): a(f'v_mul_f32 {v(E+i)}, {s(T2)}, {v(E+i)}')
        for E in (EP, EM):
            for i in range(9): a(f'v_exp_f32 {v(E+i)}, {v(E+i)}')
        sums()
        a(f's_branch {back}')
    def softmax2(x, P, lo=False):
        lab = a.new('smx'); back = a.new('smb')
        a.late.append(lambda: softmax_max(x, lab, back))
        for i in range(0, 8, 2): a(f'v_pk_mul_f32 {v(EM+i,2)}, {v(x+i,2)}, {s(T2,2)}')
        a(f'v_mul_f32 {v(EM+8)}, {s(T2)}, {v(x+8)}')
        bgdma()
        if lo == 2:
            hi = a.new('qh')
            a(f's_waitcnt vmcnt(4)\nv_cmp_ne_u32 vcc, {s(sTok)}, v7\ns_cbranch_vccz {hi}\ns_setprio 0')
            a.label(hi)
        elif lo: lprio(0)
        isq = P in (PH[('q', 0)], PH[('q', 1)])
        for i in range(9):
            a(f'v_exp_f32 {v(EP+i)}, {v(EM+i)}')
            if isq and dense and i in (2, 5): bgdma()
        bgdma()
        for i in range(9):
            a(f'v_exp_f32 {v(EM+i)}, -{v(EM+i)}')
            if isq and dense and i in (2, 5): bgdma()
        if lo: lprio(1)
        bgdma()
        if opt.get('qlo') == 5 and P == PH[('q', 0)]: a(f'buffer_load_dword v7, {v(vF2)}, {srd(sWS)}, 0 offen sc1')
        sums()
        a(f'''v_cmp_nle_f32 {s(sC2,2)}, {s(sLoB)}, v2
        v_cmp_nge_f32 vcc, {s(sHiB)}, v2
        s_or_b64 vcc, vcc, {s(sC2,2)}
        s_cbranch_scc1 {lab}''')
        a.label(back)
        a(f'''v_rcp_f32 v2, v2
        s_nop 0
        v_mov_b32 v4, v2
        s_nop 1
        v_permlane32_swap_b32 v2, v4''')
        for E, t in ((EP, 2), (EM, 4)):
            for i in range(0, 8, 2): a(f'v_pk_mul_f32 {v(E+i,2)}, {v(E+i,2)}, {v(t,2)} op_sel_hi:[1,0]')
            a(f'v_mul_f32 {v(E+8)}, {v(E+8)}, {v(t)}')
        bgdma()
        cvt8(a, EP, P); cvt8(a, EM, P+4)
        a(f'v_cvt_pk_bf16_f32 {v(P+8)}, {v(EP+8)}, {v(EM+8)}')
    for tt in range(2):
        P = PH[('k', tt)]
        softmax2(D[('k', tt)], P)
        o = 2560*tt
        a(f'''ds_write_b64 {v(vPh)}, {v(P,2)} offset:{o}
        ds_write_b64 {v(vPh)}, {v(P+2,2)} offset:{o+16}
        ds_write_b64 {v(vPh)}, {v(P+4,2)} offset:{o+32}
        ds_write_b64 {v(vPh)}, {v(P+6,2)} offset:{o+48}
        ds_write_b32 {v(vPh)}, {v(P+8)} offset:{o+64}''')
    a.c('kv partial of this wave: phi_k^T (transposed through LDS) x [v | 1]')
    KA = 144; KD = [80, 96]
    a('s_waitcnt lgkmcnt(0)')
    for k in range(4):
        for sg in range(2):
            for j in range(2):
                a(f'ds_read_b64_tr_b16 {v(KA+8*k+4*sg+2*j,2)}, {v(vPr+sg)} offset:{(16*k+8*j)*80 + 32*sg}')
    a(f'''s_mul_i32 {s(T0)}, {s(sW4)}, 5120
    s_add_u32 {s(T0)}, {s(T0)}, {PHS}
    v_add_u32 v6, {s(T0)}, {v(v16)}
    v_lshlrev_b32 v1, 3, v0
    v_add_u32 v7, {s(T0)}, v1
    s_waitcnt vmcnt({0 if hold[0] else 16}) lgkmcnt(0)''')
    lprio(0)
    for k in range(4):
        for sg in range(2): mfma(a, KD[sg], KA+8*k+4*sg, Fv[0]+4*k, None if k == 0 else KD[sg])
    a.nop(11)
    lprio(1)
    a(f'''ds_write_b128 v6, {v(KD[0],4)} 
    ds_write_b128 v6, {v(KD[0]+4,4)} offset:1024
    ds_write_b64 v7, {v(KD[0]+8,2)} offset:2048
    ds_write_b128 v6, {v(KD[1],4)} offset:2560
    ds_write_b128 v6, {v(KD[1]+4,4)} offset:3584
    s_waitcnt lgkmcnt(0)''')
    lds_arrive(a, C_KVX)
    a(f'''s_mul_i32 {s(T7)}, {s(sTH)}, 2560
    s_lshl_b32 {s(T1)}, {s(sMG)}, 10
    s_add_u32 {s(T7)}, {s(T7)}, {s(T1)}
    s_add_u32 {s(T1)}, {s(T7)}, {PHS}
    v_add_u32 v6, {s(T1)}, {v(v16)}
    v_add_u32 v7, {PHS}, v1
    s_lshl_b32 {s(T0)}, {s(sHA)}, 3
    s_add_u32 {s(T1)}, {s(T0)}, {s(sRB)}
    s_mul_i32 {s(T4)}, {s(T1)}, {KVPS}
    s_add_u32 {s(T4)}, {s(T4)}, {KVP:#x}
    s_add_u32 {s(T5)}, {s(T4)}, {s(T7)}
    s_lshl_b32 {s(T1)}, {s(T1)}, 7
    s_add_u32 {s(T1)}, {s(T1)}, {FL2:#x}''')
    lds_wait(a, 2, C_KVX, 4)
    R = 80
    for w in range(4): a(f'ds_read_b128 {v(R+4*w,4)}, v6 offset:{5120*w}')
    a(f's_cmp_lg_u32 {s(sW4)}, 3\ns_cbranch_scc1 L_kvx')
    for w in range(4): a(f'ds_read_b64 {v(R+16+2*w,2)}, v7 offset:{5120*w + 2048}')
    a('s_waitcnt lgkmcnt(0)')
    for w in range(1, 4): a(f'v_pk_add_f32 {v(R+16,2)}, {v(R+16,2)}, {v(R+16+2*w,2)}')
    a(f'buffer_store_dwordx2 {v(R+16,2)}, v1, {srd(sWS)}, {s(T4)} offen offset:2048 sc1')
    a.label('L_kvx')
    a('s_waitcnt lgkmcnt(0)')
    for w in range(1, 4):
        for k in range(2): a(f'v_pk_add_f32 {v(R+2*k,2)}, {v(R+2*k,2)}, {v(R+4*w+2*k,2)}')
    a(f'buffer_store_dwordx4 {v(R,4)}, {v(v16)}, {srd(sWS)}, {s(T5)} offen sc1')
    a('s_waitcnt vmcnt(0)')
    last_signals(a, 2, C_F2, 4, T1)
    a.stamp(7)
    a.c('================= waves 4-7: kv total, numerator / denominator =================')
    a(f'''s_lshl_b32 {s(T0)}, {s(sHA)}, 3
    s_mul_i32 {s(T4)}, {s(T0)}, {KVPS}
    s_add_u32 {s(T4)}, {s(T4)}, {KVP:#x}
    s_add_u32 {s(T5)}, {s(T4)}, {s(T7)}
    s_lshl_b32 {s(T7)}, {s(sTH)}, 10
    s_lshl_b32 {s(T0)}, {s(sMG)}, 3
    s_add_u32 {s(T7)}, {s(T7)}, {s(T0)}
    s_add_u32 {s(T7)}, {s(T7)}, {KVF}''')
    lds_wait(a, 2, C_F2, 4)
    assert not bg
    bg += mains(sAWO, 0, LATE) + mains(sAWO, 2, LATE + MB) + [('e', 0, 2, LATE + 2*MB, 0), ('e', 2, 3, LATE + 2*MB + EB, 1)]
    dense = hold[0]; hold[0] = False
    for tt in range(2):
        softmax2(D[('q', tt)], PH[('q', tt)], 2 if tt and opt.get('qlo') == 5 else bool(opt.get('qlo', 0) >> tt & 1))
        a(f'v_mov_b32 {v(PH[("q", tt)]+9)}, 0')
    assert not bg
    poll_flags(a, vF2, 2, sl=4)
    for i in range(8):
        a(f'buffer_load_dwordx4 {v(R+4*i,4)}, {v(v16)}, {srd(sWS)}, {s(T5)} offen sc1')
        if i < 7: a(f's_add_u32 {s(T5)}, {s(T5)}, {KVPS}')
    a(f'v_add_u32 v3, {s(T7)}, {v(v16)}\nv_add_u32 v6, {KVF + 2048}, v1\ns_cmp_lg_u32 {s(sW4)}, 3\ns_cbranch_scc1 L_kvs')
    for i in range(8):
        a(f'buffer_load_dwordx2 {v(R+32+2*i,2)}, v1, {srd(sWS)}, {s(T4)} offen offset:2048 sc1')
        if i < 7: a(f's_add_u32 {s(T4)}, {s(T4)}, {KVPS}')
    a('s_waitcnt vmcnt(0)')
    for i in range(1, 8): a(f'v_pk_add_f32 {v(R+32,2)}, {v(R+32,2)}, {v(R+32+2*i,2)}')
    a(f'v_cvt_pk_bf16_f32 v4, {v(R+32)}, {v(R+33)}\nv_mov_b32 v5, 0\nds_write_b64 v6, v[4:5]')
    a.label('L_kvs')
    a('s_waitcnt vmcnt(0)')
    for i in range(1, 8):
        for k in range(2): a(f'v_pk_add_f32 {v(R+2*k,2)}, {v(R+2*k,2)}, {v(R+4*i+2*k,2)}')
    a(f'v_cvt_pk_bf16_f32 v10, {v(R)}, {v(R+1)}\nv_cvt_pk_bf16_f32 v11, {v(R+2)}, {v(R+3)}\nds_write_b64 v3, v[10:11]\ns_waitcnt lgkmcnt(0)')
    lds_arrive(a, C_KVF)
    lds_wait(a, 2, C_KVF, 4)
    KF = 144
    a(f'''v_add_u32 v3, {KVF}, {v(v16)}
    ds_read_b64 {v(KF+8,2)}, v6
    ds_read_b128 {v(KF,4)}, v3
    ds_read_b128 {v(KF+4,4)}, v3 offset:1024
    s_mov_b32 {s(T0)}, {s(sTl)}''')
    o_addr(a, sHA, OAM, OAL)
    a.c('the o_B rows of the same tiles get the marker; the flag for o_A below covers these stores too')
    for i in range(4): a(f'v_mov_b32 {v(160+i)}, -1')
    for t in range(2):
        a(f's_add_u32 {s(T0)}, {s(T2+t)}, {OBM - OAM:#x}\nbuffer_store_dwordx4 v[160:163], {v(v16)}, {srd(sWS)}, {s(T0)} offen sc1')
    a('s_mov_b32 exec_hi, 0')
    for t in range(2):
        a(f's_add_u32 {s(T0)}, {s(T4+t)}, {OBL - OAL:#x}\nbuffer_store_dword v160, {v(vQL)}, {srd(sWS)}, {s(T0)} offen sc1')
    a('s_mov_b32 exec_hi, -1')
    a('s_waitcnt lgkmcnt(0)')
    ND = [80, 96]
    lprio(0)
    for tt in range(2): mfma(a, ND[tt], KF+8, PH[('q', tt)]+8, None, '8')
    a.nop(9)
    for tt in range(2): mfma(a, ND[tt], KF, PH[('q', tt)], ND[tt])
    for tt in range(2): mfma(a, ND[tt], KF+4, PH[('q', tt)]+4, ND[tt])
    a.nop(11)
    lprio(1)
    o_publish(a, ND, [112, 120], True)
    a(f's_lshr_b32 {s(T6)}, {s(sTl)}, 1')
    flag_addr(a, T1, T6, sHA, 5, FL3)
    wave_signals(a, 2, T1)
    a.stamp(8)
    a.c('================= waves 4-7: out projection of A (operands first, MFMAs after the attention) =================')
    W, O1, O2 = 16, 124, 160
    X, Y = 4, 10
    sM, sM2, sL = 59, 60, 61
    a(f's_or_b32 {s(T6)}, {s(sXa)}, {s(sXb)}')
    op_read_w(a, W, vXs, T6)
    a(f'''    s_lshl_b32 {s(T1)}, {s(sOT)}, 1
    s_add_u32 {s(T5)}, {s(sTH)}, {s(T1)}
    s_lshl_b32 {s(T0)}, {s(T5)}, 5
    s_lshl_b32 {s(T1)}, {s(sMG)}, 4
    s_add_u32 {s(T7)}, {s(T0)}, {s(T1)}
    s_lshl_b32 {s(sM)}, {s(T7)}, 10
    s_add_u32 {s(sM)}, {s(sM)}, {OAM:#x}
    s_add_u32 {s(sM2)}, {s(sM)}, 4096
    s_lshl_b32 {s(sL)}, {s(T7)}, 7
    s_add_u32 {s(sL)}, {s(sL)}, {OAL:#x}
    s_waitcnt lgkmcnt(0)''')
    lds_arrive(a, C_W1)
    lds_wait(a, 2, C_W1, 4)
    bg += mains(sBWO, 1, LATE) + mains(sBWO, 2, LATE + MB) + mains(sBWO, 3, LATE + 2*MB)
    bgdma(); bgdma()
    if opt.get('f0', 1): lprio(0)
    for i in range(6): a((f'v_mov_b32 {v(X+i)}, {v(vXs+i)}\n' if i < 4 else '') + f'v_subrev_u32 {v(Y+i)}, {LATE - M_A}, {v(vXs+i)}')
    final_setup(a); final_state(a)
    lprio(1)
    bgdma(); bgdma()
    poll_flags(a, vF3, 2, sl=2)
    a.c('short batches keep the memory queue of the CU free for the attention waves')
    for O in (O1, O2):
        for h in range(2):
            for i in range(4): a(f'buffer_load_dwordx4 {v(O+16*h+4*i,4)}, {v(v16)}, {srd(sWS)}, {s(sM2 if h else sM)} offen offset:{1024*i} sc1')
            if h:
                for i in range(4): a(f'buffer_load_dword {v(O+32+i)}, {v(vOl)}, {srd(sWS)}, {s(sL)} offen offset:{128*i} sc1')
                bgdma()
            if h or not opt.get('ob2', 1): a(f's_waitcnt vmcnt({opt.get("othr", 2)})')
        if O == O1: a(f's_add_u32 {s(sM)}, {s(sM)}, 8192\ns_add_u32 {s(sM2)}, {s(sM2)}, 8192\ns_add_u32 {s(sL)}, {s(sL)}, 1024')
    assert not bg
    a('s_waitcnt vmcnt(0)')
    a.stamp(9)
    pre = opt.get('pre', 0)
    mid = opt.get('mid', 1)
    a('s_setprio 0')
    for ps, (O, nxt) in enumerate(((O1, Y), (O2, X))):
        if ps == 1:
            a('s_waitcnt lgkmcnt(0)')
            lds_arrive(a, C_W3)
        for st in range(9):
            if 9*ps + st == pre: a(f's_barrier\ns_setprio {opt.get("prio2", 0)}')
            if opt.get('p4') and 9*ps + st in (pre, 9): a.stamp(5 if ps == 0 else 4)
            rd = op_w_reads(W, nxt, st - 1, MB*ps) if st else [''] * 4
            for T in range(2):
                mfma(a, ACA[T], W + 8*st + 4*T, O + 4*st, None if (ps == 0 and st == 0) else ACA[T])
                a(rd[2*T]); a(rd[2*T+1])
            k = 9*ps + st
            if mid and k == mid:
                a(f's_waitcnt vmcnt(0)\nv_cmp_ne_u32 vcc, {s(sTok)}, {v(vFlg)}')
                half_try(a)
                lb = a.new('ml')
                a(f's_min_u32 {s(T0)}, {s(sA)}, {s(sB_)}\ns_cmp_eq_u32 {s(T0)}, 0\ns_cbranch_scc1 {lb}\ns_mov_b32 {s(sC)}, 1')
                left_ld(a)
                a.label(lb)
            if k == (mid - opt.get('midd', 6) if mid else 14) or (mid and k == mid): flag_ld(a)
        a('\n'.join(op_w_reads(W, nxt, 8, MB*ps)))
        lb = a.new('xa')
        a(f's_cmp_eq_u32 {s(sXa)}, 0\ns_cbranch_scc1 {lb}')
        for st in range(9):
            mfma(a, ACA[2], W + 72 + 4*st, O + 4*st, None if (ps == 0 and st == 0) else ACA[2])
            if ps == 0 and st: a('\n'.join(op_e_reads(W, Y, st - 1)))
        if ps == 0: a('\n'.join(op_e_reads(W, Y, 8)))
        a.label(lb)
    if opt.get('p4'): a.stamp(3)
    a('s_setprio 0')
    lds_wait(a, 2, C_W3, 4, sl=0)
    if opt.get('nojq'): lds_arrive(a, C_WB)
    a(f's_mul_i32 {s(T0)}, {s(sW4)}, {WSTR}\ns_add_u32 {s(T0)}, {s(T0)}, {ARED}\nv_add_u32 v1, {s(T0)}, {v(v16)}')
    for q in range(8): a(f'ds_write_b128 v1, {v(ACA[0]+4*q,4)} offset:{QS*q}')
    a(f's_cmp_eq_u32 {s(sXa)}, 0\ns_cbranch_scc1 L_anx\ns_mul_i32 {s(T0)}, {s(sMG)}, {4*QS}\ns_add_u32 {s(T0)}, {s(T0)}, {EXR}\nv_add_u32 v1, {s(T0)}, {v(v16)}')
    for q in range(4): a(f'ds_write_b128 v1, {v(ACA[2]+4*q,4)} offset:{QS*q}')
    a.label('L_anx')
    a.stamp(2)

HEADER = '''; Fused hedgehog linear attention (A) + softmax MHA (B), one persistent launch of 256 workgroups.
; kernarg: A_x A_wqkv A_w_phi A_wo B_x B_wqkv B_wo out debug ws (8-byte pointers, in that order)
; @launch grid=(256,1,1) block=(512,1,1) lds=%d
.amdgcn_target "amdgcn-amd-amdhsa--gfx950"
.text
.globl %s_kernel
.p2align 8
.type %s_kernel,@function
%s_kernel:
''' % (LDS_BYTES, NAME, NAME, NAME)
FOOTER = '''.section .rodata,"a"
.p2align 6
.amdhsa_kernel %s_kernel
  .amdhsa_next_free_vgpr 256
  .amdhsa_next_free_sgpr 102
  .amdhsa_accum_offset 256
  .amdhsa_group_segment_fixed_size 0
  .amdhsa_kernarg_size 80
  .amdhsa_user_sgpr_count 2
  .amdhsa_user_sgpr_kernarg_segment_ptr 1
  .amdhsa_system_sgpr_workgroup_id_x 1
.end_amdhsa_kernel
''' % NAME

OPT = {}
def generate(diag=False, **opt):
    opt = {**dict(rot=0, thr=3, sig=12, ldp=1, qlo=3, w1=2, prio2=1, mid=0, ob2=0, phij=-1, sched=2, nojq=1, sl2=1, sig2=12), **opt}
    OPT.clear(); OPT.update(opt)
    a = Asm(diag)
    prologue(a, opt)
    a_chain(a, opt)
    final(a)
    body = a.text()
    bad = lint(body)
    for x in bad: print(f"HAZARD line {x[0]} -> {x[1]}: {x[2]} need {x[3]} have {x[4]}\n    {x[5]}\n    {x[6]}", file=sys.stderr)
    return HEADER + (f'    ; stamps={STAMPS + (opt.get("wsoff", 0) << 20):#x}\n' if diag else '') + body + FOOTER, len(bad)

if __name__ == '__main__':
    import argparse
    ap = argparse.ArgumentParser()
    ap.add_argument('-o', default=f'cdna_kernels/{NAME}.s')
    ap.add_argument('--diag', action='store_true')
    ap.add_argument('--opt', action='append', default=[])
    g = ap.parse_args()
    opt = {}
    for o in g.opt:
        k, val = o.split('='); opt[k] = int(val)
    text, nbad = generate(g.diag, **opt)
    open(g.o, 'w').write(text)
    print(f'wrote {g.o}: {len(text)} bytes, {nbad} hazards')
```

```python
import sys, struct
from lint import lint

NAME = 'concat_heads__linear_kernel_hedgehog__softmax_full_mha__prompt'
OOB = 0x40000000
QM, QL, KV = 0x0, 0x200000, 0x240000
REC = 2560; HREC = 64 * REC
VLOFF, ONEOFF, KLOFF = 2048, 2176, 2304
AOFF = 0x740000
OAM, OAL, OBM, OBL = 0xE80000, 0x1080000, 0x10C0000, 0x12C0000
KVP = 0x1300000; KVPS = 4608
FL1, FL1A, FL2, FL3, FL4 = 0x1420000, 0x1428000, 0x1430000, 0x1440000, 0x1460000
EPOCH = 0x1438000
STAMPS = 0x1500000
WS_BYTES = 0x1800000
XA = 0
WS0 = 28672
MB, EB = 18432, 9216
M_A, X_A, M_C, LATE = WS0, WS0 + 2*MB, WS0 + 2*MB + 2*EB, WS0 + 3*MB + 2*EB
PHS = LATE
EAX = 131072
CNT = LATE + 3*MB
KVF = CNT + 256
LDS_BYTES = 163840
C_F1, C_F1A, C_KVX, C_F2, C_KVF, C_F3, C_OPA, C_F4, C_BAD, C_W1, C_TOK, C_G, C_W3, C_WB = [4 * i for i in range(14)]
sBX, sBW, sAX, sAW, sPHI, sAWO, sBWO, sOUT, sDBG, sWS = 4, 8, 12, 16, 20, 24, 28, 32, 36, 40
sWave, sCT, sRT, sH = 44, 45, 46, 47
T0, T1, T2, T3, T4, T5, T6, T7 = range(48, 56)
sTab, sS0, sDoSc, sIdle = 64, 65, 66, 67
sQB, sRot, sFree, sOT, sOC, sTok, sLoc, sXcd = 68, 69, 70, 71, 72, 73, 74, 75
sHA, sRB = sH, sQB
sSpin, sTH, sMG, sTile = 76, 77, 78, 79
SSTAMP = 80
sW4, sImg, sXB, sWB, sLh2, sLt2 = 96, 97, 98, 99, 100, 101
v16, vQL, vCnt, vOne, vZero, vPoll, vTok = 244, 245, 246, 247, 248, 249, 250
vVf = 252
EA, ES = 72, 84
vWO = 224
vX, vW, XAc, WAc, XAr, WAr, vTab = 228, 232, 24, 28, 32, 36, 39
ACC = {('a', 0): 96, ('a', 1): 112, ('b', 0): 128, ('b', 1): 144}
FS = [176, 192, 40, 56]
def m_of(sl): return 9*(sl >> 2) + 2*(sl & 1) + 5*((sl >> 1) & 1)
def ct_table(ct):
    lo = 32*ct; s0 = next(x for x in range(200) if m_of(x) >= lo)
    used = {m_of(x) + d for x in range(s0, s0 + 12) for d in (0, 1)}
    misc = [m - lo for m in range(lo, lo + 32) if m not in used]
    assert misc[4:] == [28, 29, 30, 31]
    return sum(c << (5*i) for i, c in enumerate(misc[:4])) | (s0 << 20)

LOG2E = 1.4426950408889634
def f2u(x): return struct.unpack('<I', struct.pack('<f', x))[0]
QSCALE = f2u(18 ** -0.5 * LOG2E)

def v(a, n=1): return f'v{a}' if n == 1 else f'v[{a}:{a+n-1}]'
def s(a, n=1): return f's{a}' if n == 1 else f's[{a}:{a+n-1}]'
def srd(a): return s(a, 4)

import re
def unpack(x):
    m = re.match(r'v_pk_(add_f32|mul_f32|mov_b32) ([vs])\[(\d+):\d+\], ([vs])\[(\d+):\d+\], ([vs])\[(\d+):\d+\](.*)', x)
    op, _, d, k0, a0, k1, a1, mod = m.groups(); d, a0, a1 = int(d), int(a0), int(a1); mod = mod.strip()
    if op == 'mov_b32':
        assert mod == 'op_sel:[0,1]'
        return [f'v_mov_b32 v{d}, v{a0}', f'v_mov_b32 v{d+1}, v{a1+1}']
    assert mod in ('', 'op_sel_hi:[1,0]') and k0 == 'v'
    h = 0 if mod else 1
    return [f'v_{op} v{d}, {k1}{a1}, v{a0}', f'v_{op} v{d+1}, {k1}{a1+h}, v{a0+1}']

class Asm:
    def __init__(self, diag=False):
        self.L = []; self.uid = 0; self.diag = diag; self.lock = False; self.nopk = False; self.late = []; self.early = []
    def __call__(self, t):
        for x in t.split('\n'):
            x = x.strip()
            if not x: continue
            if self.nopk and x.startswith('v_pk_'): self.L += ['    ' + y for y in unpack(x)]
            else: self.L.append('    ' + x)
    def label(self, n): self.L.append(n + ':')
    def c(self, t): self.L.append('    ; ' + t)
    def new(self, p):
        self.uid += 1; return f'L_{p}{self.uid}'
    def nop(self, n):
        while n > 0:
            k = min(n, 16); self(f's_nop {k-1}'); n -= k
    def stamp(self, k):
        if self.diag and not self.lock:
            self(f's_memrealtime {s(94,2)}\ns_waitcnt lgkmcnt(0)\ns_mov_b32 {s(SSTAMP+k)}, s94')
    def lstamp(self, sreg, base=0):
        if self.diag:
            self(f's_memrealtime s[94:95]\ns_add_u32 s95, {sreg}, {base}\ns_mov_b32 s93, s95\ns_waitcnt lgkmcnt(0)\nv_writelane_b32 v243, s94, s93'.replace('s_add_u32 s95', 's_add_u32 s93').replace('s_mov_b32 s93, s95\n', '').replace('v_writelane_b32 v243, s94, s93', 's_mov_b32 m0, s93\nv_writelane_b32 v243, s94, m0'))
    def cyc0(self):
        if self.diag: self('s_memtime s[94:95]\ns_waitcnt lgkmcnt(0)\ns_mov_b32 s93, s94')
    def cyc1(self):
        if self.diag: self('s_memtime s[94:95]\ns_waitcnt lgkmcnt(0)\ns_sub_u32 s93, s94, s93')
    def text(self): return '\n'.join(self.L) + '\n'

class VM:
    def __init__(self): self.q = []
    def add(self, tag, n=1): self.q += [tag] * n
    def after(self, tag):
        i = max(k for k, t in enumerate(self.q) if t == tag)
        return len(self.q) - 1 - i

def mfma_s(d, x, y, c=None, kind='16'):
    op = {'16': 'v_mfma_f32_32x32x16_bf16', '8': 'v_mfma_f32_32x32x8_bf16', '2b': 'v_mfma_f32_32x32x4_2b_bf16'}[kind]
    nd = 32 if kind == '2b' else 16; na = 4 if kind == '16' else 2
    return f'{op} {v(d,nd)}, {v(x,na)}, {v(y,na)}, {"0" if c is None else v(c,nd)}'
def mfma(a, *k, **kw): a(mfma_s(*k, **kw))

def opol(k): return ['', ' sc1', ' nt', ' sc0 sc1', ' sc1 nt'][OPT.get(k, 0)]

def cvt8(a, src, dst):
    for i in range(4): a(f'v_cvt_pk_bf16_f32 {v(dst+i)}, {v(src+2*i)}, {v(src+2*i+1)}')

SRDS = {sAX: (0, 2048*1152), sAW: (8, 576*3456), sPHI: (16, 32*648), sAWO: (24, 576*1152), sBX: (32, 2048*1152),
        sBW: (40, 576*3456), sBWO: (48, 576*1152), sOUT: (56, 2048*2304), sDBG: (64, 256), sWS: (72, WS_BYTES)}
def ld_srd(a, rs):
    for r in rs: a(f's_load_dwordx2 {s(r,2)}, s[0:1], {SRDS[r][0]}')
def mk_srd(a, rs):
    for r in rs:
        if r == sWS and OPT.get('wsoff'): a(f's_waitcnt lgkmcnt(0)\ns_add_u32 {s(r)}, {s(r)}, {OPT["wsoff"] << 20:#x}\ns_addc_u32 {s(r+1)}, {s(r+1)}, 0')
    for r in rs: a(f's_mov_b32 {s(r+2)}, {SRDS[r][1]:#x}\ns_mov_b32 {s(r+3)}, 0x20000')

def spin_tail(a, top, sl=1):
    a((f's_sleep {sl}\n' if sl else '') + f's_sub_u32 {s(sSpin)}, {s(sSpin)}, 1\ns_cbranch_scc0 {top}\ns_endpgm')

def token_issue(a):
    a(f'buffer_load_dwordx2 {v(vTokL,2)}, {v(vZero)}, {srd(sDBG)}, 0 offen sc1')
def token_check(a):
    top = a.new('tok'); done = a.new('tokd')
    a.label(top)
    a(f'v_readfirstlane_b32 {s(T0)}, {v(vTokL+1)}\nv_readfirstlane_b32 {s(sTok)}, {v(vTokL)}\ns_cmp_lg_u32 {s(T0)}, 0\ns_cbranch_scc1 {done}')
    token_issue(a)
    a('s_waitcnt vmcnt(0)')
    spin_tail(a, top)
    a.label(done)

def poll_flags(a, vaddr, vt, preloaded=False, sl=1):
    top = a.new('poll'); done = a.new('polld'); chk = a.new('pollc')
    if preloaded: a(f's_branch {chk}')
    a.label(top)
    a(f'buffer_load_dword {v(vt)}, {v(vaddr)}, {srd(sWS)}, 0 offen sc1\ns_waitcnt vmcnt(0)')
    a.label(chk)
    a(f'v_cmp_ne_u32 vcc, {s(sTok)}, {v(vt)}\ns_cbranch_vccz {done}')
    spin_tail(a, top, sl)
    a.label(done)

def last_signals(a, vt, ctr, n, sflag):
    skip = a.new('nsig')
    a(f's_mov_b64 exec, 1\nds_add_rtn_u32 {v(vt)}, {v(vCnt)}, {v(vOne)} offset:{ctr}\ns_waitcnt lgkmcnt(0)')
    a(f'v_readfirstlane_b32 {s(T0)}, {v(vt)}\nv_mov_b32 {v(vt)}, {s(sflag)}\nv_mov_b32 {v(vt+1)}, {s(sTok)}\ns_cmp_lg_u32 {s(T0)}, {n-1}\ns_cbranch_scc1 {skip}')
    a(f'buffer_store_dword {v(vt+1)}, {v(vt)}, {srd(sWS)}, 0 offen sc1')
    a.label(skip)
    a('s_mov_b64 exec, -1')

def wave_signals(a, vt, sflag):
    a(f'v_mov_b32 {v(vt)}, {s(sflag)}\nv_mov_b32 {v(vt+1)}, {s(sTok)}\ns_waitcnt vmcnt(0)\ns_mov_b64 exec, 1')
    a(f'buffer_store_dword {v(vt+1)}, {v(vt)}, {srd(sWS)}, 0 offen sc1\ns_mov_b64 exec, -1')

def lds_arrive(a, ctr):
    a(f's_mov_b64 exec, 1\nds_add_u32 {v(vCnt)}, {v(vOne)} offset:{ctr}\ns_mov_b64 exec, -1')

def lds_wait(a, vt, ctr, n, sl=2):
    top = a.new('lw'); done = a.new('lwd')
    a.label(top)
    a(f'ds_read_b32 {v(vt)}, {v(vCnt)} offset:{ctr}\ns_waitcnt lgkmcnt(0)\nv_readfirstlane_b32 {s(T0)}, {v(vt)}\ns_cmp_ge_u32 {s(T0)}, {n}\ns_cbranch_scc1 {done}')
    spin_tail(a, top, sl)
    a.label(done)

def flag_addr(a, dst, shi, slo, sh, base):
    a(f's_lshl_b32 {s(dst)}, {s(shi)}, {sh}\ns_add_u32 {s(dst)}, {s(dst)}, {s(slo)}\ns_lshl_b32 {s(dst)}, {s(dst)}, 7\ns_add_u32 {s(dst)}, {s(dst)}, {base:#x}')

def kl_const(a, dst, shead):
    a(f's_bitcmp1_b32 {s(shead)}, 0\ns_mov_b32 {s(dst)}, {HREC + KLOFF}\ns_cselect_b32 {s(dst)}, {KLOFF + 4}, {s(dst)}')

def producer_ct(a, d, ty, last, shead, t):
    a(f'''s_lshr_b32 {s(T0)}, {s(shead)}, 1
    s_mul_i32 {s(T0)}, {s(T0)}, 36
    s_and_b32 {s(T1)}, {s(shead)}, 1
    s_lshl_b32 {s(T1)}, {s(T1)}, 4
    s_add_u32 {s(T0)}, {s(T0)}, {s(T1)}
    v_mul_u32_u24 {v(d)}, 576, {v(ty)}
    v_mul_u32_u24 {v(t)}, 19, {v(last)}
    v_add3_u32 {v(d)}, {v(d)}, {v(t)}, {s(T0)}
    v_lshrrev_b32 {v(d)}, 7, {v(d)}''')

def issue_chunk(a, j):
    if OPT.get('nodma') and j > 1: return
    slot = (j % 4) * 32768; c = j % 9
    if OPT.get('samek'): c = 0
    X, W = (sBX, sBW) if j < 9 else (sAX, sAW)
    nx = ' nt' if OPT.get('nt', 0) & 1 else ''; nw = ' nt' if OPT.get('nt', 0) & 2 else ''
    if OPT.get('rot', 0):
        a(f'''s_add_u32 vcc_lo, {s(sRot)}, {c}
        s_cmp_ge_u32 vcc_lo, 9
        s_cselect_b32 vcc_hi, 9, 0
        s_sub_u32 vcc_lo, vcc_lo, vcc_hi
        s_mul_i32 vcc_hi, vcc_lo, {64*3456}
        s_add_u32 vcc_hi, vcc_hi, {s(sWB)}
        s_lshl_b32 vcc_lo, vcc_lo, 7
        s_add_u32 vcc_lo, vcc_lo, {s(sXB)}
        s_lshl_b32 s3, {s(sW4)}, 12
        s_add_u32 m0, s3, {slot}
        s_nop 0''')
    else:
        a(f's_lshl_b32 s3, {s(sW4)}, 12\ns_add_u32 m0, s3, {slot}\ns_add_u32 vcc_lo, {s(sXB)}, {128*c}\ns_add_u32 vcc_hi, {s(sWB)}, {64*3456*c}')
    for i in range(4): a(f'buffer_load_dwordx4 {v(vX+i)}, {srd(X)}, vcc_lo offen offset:{1024*i}{nx} lds')
    a(f's_add_u32 m0, s3, {slot + 16384}\ns_nop 0')
    for i in range(4): a(f'buffer_load_dwordx4 {v(vW+i)}, {srd(W)}, vcc_hi offen offset:{1024*i}{nw} lds')

def su_loader(a):
    a.c('loader lane offsets: x rows (xor-swizzled 16-byte pieces), w rows (16 pieces, rotated by four per row)')
    a(f'''v_lshrrev_b32 v1, 3, v0
    v_and_b32 v2, 7, v0
    v_lshrrev_b32 v3, 1, v1
    v_xor_b32 v2, v2, v3
    v_mul_u32_u24 v1, 1152, v1
    v_lshl_add_u32 {v(vX)}, v2, 4, v1
    v_xor_b32 v2, 4, v2
    v_lshl_add_u32 {v(vX+1)}, v2, 4, v1
    v_add_u32 {v(vX+1)}, {8*1152-1024}, {v(vX+1)}
    v_add_u32 {v(vX+2)}, {2*(8*1152-1024)}, {v(vX)}
    v_add_u32 {v(vX+3)}, {2*(8*1152-1024)}, {v(vX+1)}
    v_lshrrev_b32 v1, 4, v0
    v_lshlrev_b32 v2, 2, v1
    v_sub_u32 v2, v0, v2
    v_and_b32 v2, 15, v2
    v_mul_u32_u24 v1, 3456, v1
    v_lshl_add_u32 v5, v2, 4, v1
    s_cmp_eq_u32 {s(sCT)}, 13
    s_cselect_b32 s3, 8, 16
    v_cmp_gt_u32 vcc, s3, v2
    v_mov_b32 v7, {OOB:#x}
    s_nop 0
    v_cndmask_b32 {v(vW)}, v7, v5, vcc''')
    for i in range(1, 4): a(f'v_add_u32 {v(vW+i)}, {i*(4*3456-1024)}, {v(vW)}')
    su_loader_s(a)

def su_loader_s(a):
    a(f'''s_lshl_b32 {s(sXB)}, {s(sRT)}, 2
    s_add_u32 {s(sXB)}, {s(sXB)}, {s(sW4)}
    s_mul_i32 {s(sXB)}, {s(sXB)}, {32*1152}
    s_mul_i32 {s(sWB)}, {s(sW4)}, {16*3456}
    s_lshl_b32 s3, {s(sCT)}, 8
    s_add_u32 {s(sWB)}, {s(sWB)}, s3''')

def su_ids2(a):
    a(f'''s_lshl_b32 s3, {s(sXcd)}, 2
    s_and_b32 {s(sH)}, {s(sLoc)}, 3
    s_add_u32 {s(sH)}, {s(sH)}, s3
    s_lshr_b32 {s(sQB)}, {s(sLoc)}, 2
    s_lshr_b32 {s(sOT)}, {s(sLoc)}, 3
    s_add_u32 {s(sOT)}, {s(sOT)}, s3
    s_and_b32 {s(sOC)}, {s(sLoc)}, 7
    s_mov_b32 {s(sSpin)}, 0x40000
    s_and_b32 {s(sTH)}, {s(sWave)}, 1
    s_lshr_b32 {s(sMG)}, {s(sW4)}, 1
    s_cmp_lt_u32 {s(sWave)}, 4
    s_cselect_b32 {s(sImg)}, 0, {AOFF:#x}
    v_mov_b32 {v(vZero)}, 0
    v_mov_b32 {v(vCnt)}, {CNT}
    v_mov_b32 {v(vOne)}, 1''')

def su_token(a, part):
    lb = a.new('notok')
    a(f's_or_b32 s3, s2, {s(sWave)}\ns_cmp_lg_u32 s3, 0\ns_cbranch_scc1 {lb}\ns_mov_b32 {s(T0)}, {EPOCH:#x}')
    if part == 0:
        a(f'buffer_load_dword v10, {v(vZero)}, {srd(sWS)}, {s(T0)} offen sc1')
    else:
        a(f'''s_mov_b32 {s(T1)}, 1664525
        s_waitcnt vmcnt(0)
        v_mul_lo_u32 v6, v10, {s(T1)}
        v_add_u32 v6, 0x3c6ef35f, v6
        v_mov_b32 v7, 1
        s_mov_b64 exec, 1
        buffer_store_dwordx2 v[6:7], {v(vZero)}, {srd(sDBG)}, 0 offen sc1
        buffer_store_dword v6, {v(vZero)}, {srd(sWS)}, {s(T0)} offen sc1
        s_mov_b64 exec, -1''')
    a.label(lb)
    if part == 0:
        a(f's_cmp_lg_u32 {s(sWave)}, 1\ns_cbranch_scc1 L_nocnt\nv_lshlrev_b32 v1, 2, v0\nv_add_u32 v1, {CNT}, v1\nds_write_b32 v1, {v(vZero)}')
        a.label('L_nocnt')

def su_gaddr(a):
    lb = a.new('mg0')
    a.c('gemm fragment addresses')
    a(f'''v_and_b32 v1, 31, v0
    v_lshrrev_b32 v2, 5, v0
    v_bfe_u32 v3, v0, 1, 3
    v_xor_b32 v3, v3, v2
    s_lshl_b32 s3, {s(sTH)}, 13
    v_lshl_add_u32 v4, v1, 7, s3''')
    for k in range(4):
        a(f'v_xor_b32 v5, {2*k}, v3\nv_lshl_add_u32 {v(XAc+k)}, v5, 4, v4')
    a.c('which four-column chunk each lane group reads for the two 32-column tiles of this wave')
    a(f'''v_bfe_u32 v3, v0, 2, 2
    v_and_b32 v4, 3, v0
    v_bfe_u32 v5, v0, 4, 1
    v_lshl_add_u32 v4, v5, 2, v4
    v_lshl_add_u32 v5, v2, 3, v3
    v_lshlrev_b32 v5, 8, v5
    v_add_u32 v5, 16384, v5
    v_lshlrev_b32 v3, 2, v3
    s_lshl_b32 s3, {s(sMG)}, 4''')
    for u in range(2): a(f'v_add_u32 {v(WAc+u)}, s3, v4' + (f'\nv_add_u32 {v(WAc+u)}, 8, {v(WAc+u)}' if u else ''))
    a(f's_cmp_ge_u32 {s(sCT)}, 9\ns_cbranch_scc1 {lb}')
    a(f'''v_lshrrev_b32 v6, 2, v4
    v_and_b32 v7, 1, v4
    v_lshl_add_u32 v6, v6, 1, v7
    s_lshl_b32 s3, {s(sMG)}, 3
    s_add_u32 s3, s3, {s(sS0)}
    v_add_u32 v6, s3, v6
    v_lshrrev_b32 v7, 2, v6
    v_mul_u32_u24 v7, 9, v7
    v_and_b32 v1, 1, v6
    v_lshl_add_u32 v7, v1, 1, v7
    v_bfe_u32 v1, v6, 1, 1
    v_mul_u32_u24 v1, 5, v1
    v_bfe_u32 v6, v4, 1, 1
    v_add3_u32 v7, v7, v1, v6
    s_lshl_b32 s3, {s(sCT)}, 5
    v_subrev_u32 {v(WAc)}, s3, v7
    v_add_u32 {v(WAc+1)}, 9, {v(WAc)}
    s_cmp_eq_u32 {s(sMG)}, 0
    s_cbranch_scc1 {lb}''')
    misc_chunk(a, WAc+1, 4, 6)
    a.label(lb)
    for u in range(2):
        a(f'''v_lshrrev_b32 v6, 1, {v(WAc+u)}
        v_add_u32 v6, v6, v3
        v_and_b32 v6, 15, v6
        v_lshl_add_u32 v6, v6, 4, v5
        v_and_b32 {v(WAc+u)}, 1, {v(WAc+u)}
        v_lshl_add_u32 {v(WAc+u)}, {v(WAc+u)}, 3, v6''')

def misc_chunk(a, d, c8, t):
    a(f'''v_mul_u32_u24 {v(t)}, 5, {v(c8)}
    v_lshrrev_b32 {v(t)}, {v(t)}, {v(vTab)}
    v_and_b32 {v(t)}, 31, {v(t)}
    v_cmp_gt_u32 vcc, 4, {v(c8)}
    v_add_u32 {v(d)}, 24, {v(c8)}
    s_nop 0
    v_cndmask_b32 {v(d)}, {v(d)}, {v(t)}, vcc''')

def su_tab(a):
    a(f's_mov_b32 {s(sTab)}, {ct_table(0):#x}')
    for ct in range(1, 9): a(f's_cmp_eq_u32 {s(sCT)}, {ct}\ns_cselect_b32 {s(sTab)}, {ct_table(ct):#x}, {s(sTab)}')
    a(f'''s_lshr_b32 {s(sS0)}, {s(sTab)}, 20
    v_mov_b32 {v(vTab)}, {s(sTab)}
    s_lshl_b32 {s(sTile)}, {s(sRT)}, 2
    s_lshl_b32 s3, {s(sTH)}, 1
    s_add_u32 {s(sTile)}, {s(sTile)}, s3
    s_cmp_le_u32 {s(sCT)}, 4
    s_cselect_b32 {s(sDoSc)}, 1, 0
    s_cmp_eq_u32 {s(sImg)}, 0
    s_cselect_b32 {s(sDoSc)}, {s(sDoSc)}, 0
    s_cmp_ge_u32 {s(sLoc)}, 28
    s_cselect_b32 {s(sIdle)}, 1, 0
    v_lshlrev_b32 {v(v16)}, 4, v0
    v_lshlrev_b32 {v(vQL)}, 2, v0''')

def su_epi(a, o, stage=None):
    if stage == 1:
        for k in range(6):
            a(f'ds_bpermute_b32 {v(EA+2*k)}, v2, v6 offset:{8*k}\nds_bpermute_b32 {v(EA+2*k+1)}, v2, v7 offset:{8*k}\nds_bpermute_b32 {v(ES+k)}, v2, v9 offset:{8*k}')
        return
    if stage == 2:
        for k in range(6):
            a(f'''v_and_b32 v3, 31, {v(EA+2*k+1)}
            v_mad_u32_u24 {v(EA+2*k)}, v1, v3, {v(EA+2*k)}
            v_sub_u32 v3, {v(EA+2*k+1)}, v3
            v_add_u32 {v(EA+2*k+1)}, {v(EA+2*k)}, v3''')
        return
    a(f'v_and_b32 v1, 31, v0\nv_lshrrev_b32 v2, 5, v0\ns_mul_i32 {s(T1)}, {s(sTile)}, {REC}')
    if o == 'S':
        a(f's_add_u32 {s(T1)}, {s(T1)}, {KV:#x}\ns_sub_u32 {s(T2)}, {s(sCT)}, 9\ns_lshl_b32 {s(T2)}, {s(T2)}, 7')
        for u in range(2): su_epi_v(a, u)
        for r in range(EA + 5, EA + 12): a(f'v_mov_b32 {v(r)}, v7')
        return
    a.c('lane i < 12 works out where item i goes: a 16-byte slot (first chunk) or a single chunk of the mixed tile')
    a(f'''s_lshl_b32 s3, {s(sMG)}, 3
    s_add_u32 s3, s3, {s(sS0)}
    v_add_u32 v3, s3, v1
    v_lshrrev_b32 v4, 2, v3
    v_mul_u32_u24 v4, 9, v4
    v_and_b32 v5, 1, v3
    v_lshl_add_u32 v4, v5, 1, v4
    v_bfe_u32 v5, v3, 1, 1
    v_mad_u32_u24 v8, v5, 5, v4
    v_subrev_u32 v3, 4, v1''')
    misc_chunk(a, 4, 3, 5)
    a(f'''s_lshl_b32 {s(T4)}, {s(sCT)}, 5
    s_cmp_eq_u32 {s(sMG)}, 0
    s_cselect_b32 s3, 32, 4
    v_cmp_gt_u32 vcc, s3, v1
    v_add_u32 v4, {s(T4)}, v4
    s_add_u32 {s(T1)}, {s(T1)}, {(KV - 32*HREC) & 0xffffffff:#x}
    v_cndmask_b32 v4, v4, v8, vcc
    v_mul_u32_u24 v3, 7282, v4
    v_lshrrev_b32 v3, 16, v3
    v_mul_u32_u24 v5, 9, v3
    v_sub_u32 v8, v4, v5
    v_cmp_lt_u32 vcc, 4, v8
    v_lshlrev_b32 v3, 1, v3
    v_subrev_u32 v9, 5, v8
    v_addc_co_u32 v4, vcc, 0, v3, vcc
    v_min_u32 v9, v8, v9
    s_lshl_b32 {s(T0)}, {s(sTile)}, 10
    v_lshl_add_u32 v6, v4, 16, {s(T0)}
    v_mul_u32_u24 v5, {HREC}, v4
    v_cmp_gt_u32 vcc, 32, v4
    v_add_u32 v5, {s(T1)}, v5
    s_lshl_b32 {s(T2)}, {s(sTile)}, 8
    s_add_u32 {s(T2)}, {s(T2)}, {QL:#x}
    v_cndmask_b32 v6, v5, v6, vcc
    v_lshrrev_b32 v4, 1, v9
    v_lshl_add_u32 v6, v4, 9, v6
    v_and_b32 v4, 1, v9
    v_lshl_add_u32 v6, v4, 3, v6
    v_lshl_add_u32 v4, v3, 13, {s(T2)}
    v_mul_u32_u24 v5, {HREC}, v3
    s_add_u32 {s(T3)}, {s(T1)}, {HREC + KLOFF}
    v_add_u32 v5, {s(T3)}, v5
    v_mov_b32 v7, {REC + 16}
    v_mov_b32 v9, {1024 + 16}
    v_cndmask_b32 v4, v5, v4, vcc
    v_cndmask_b32 v7, v7, v9, vcc
    v_mov_b32 v5, {REC + 8}
    v_mov_b32 v9, {256 + 8}
    v_cndmask_b32 v5, v5, v9, vcc
    v_mov_b32 v9, {QSCALE:#x}
    v_cndmask_b32 v9, 1.0, v9, vcc
    v_cmp_eq_u32 vcc, 4, v8
    v_lshlrev_b32 v2, 2, v2
    s_nop 0
    v_cndmask_b32 v6, v6, v4, vcc
    v_cndmask_b32 v7, v7, v5, vcc''')

def su_epi_v(a, u):
    e = EA + 2*u
    a(f'''s_lshl_b32 s3, {s(sMG)}, 6
    s_add_u32 s3, s3, {s(T2)}
    s_add_u32 s3, s3, {32*u}
    v_add_u32 v3, s3, v1
    v_mul_u32_u24 v4, 3641, v3
    v_lshrrev_b32 v4, 16, v4
    v_mul_u32_u24 v5, 18, v4
    v_sub_u32 v3, v3, v5
    v_and_b32 v5, 1, v4
    v_lshlrev_b32 v5, 1, v5
    v_sub_u32 v3, v3, v5
    v_add_u32 v5, 18, v3
    v_min_u32 v3, v3, v5
    v_mul_u32_u24 v5, {HREC}, v4
    v_add_u32 v5, {s(T1)}, v5
    v_lshl_add_u32 v5, v3, 4, v5
    v_lshl_add_u32 v6, v2, 8, v5
    v_add_u32 v6, 1024, v6
    v_lshl_add_u32 v7, v2, 5, v5
    v_add_u32 v7, {VLOFF - 256}, v7
    v_cmp_gt_u32 vcc, 16, v3
    v_add_u32 v8, 512, v6
    v_add_u32 v9, 64, v7
    v_cndmask_b32 v6, v7, v6, vcc
    v_cndmask_b32 v8, v9, v8, vcc
    v_cmp_gt_u32 vcc, 32, v4
    v_mov_b32 v7, {OOB:#x}
    s_nop 0
    v_cndmask_b32 {v(e)}, v7, v6, vcc
    v_cndmask_b32 {v(e+1)}, v7, v8, vcc''')
    if u:
        a.c('the row of ones of every head whose first column is in this tile')
        a(f'''s_add_u32 s3, {s(T2)}, 17
        s_mul_i32 s3, s3, 3641
        s_lshr_b32 s3, s3, 16
        v_and_b32 v3, 7, v0
        v_add_u32 v3, s3, v3
        v_mul_u32_u24 v4, 18, v3
        s_add_u32 {s(T2)}, {s(T2)}, 128
        s_min_u32 {s(T2)}, {s(T2)}, 576
        v_cmp_gt_u32 vcc, {s(T2)}, v4
        v_cmp_gt_u32 {s(T4,2)}, 16, v0
        s_and_b64 vcc, vcc, {s(T4,2)}
        v_mul_u32_u24 v3, {HREC}, v3
        v_bfe_u32 v4, v0, 3, 1
        v_mul_u32_u24 v4, {REC}, v4
        v_add3_u32 v3, v3, v4, {s(T1)}
        v_add_u32 v3, {ONEOFF}, v3
        v_cndmask_b32 {v(EA+4)}, v7, v3, vcc''')

def su_vgat(a, vVf=vVf):
    a.c('V fragment gather offsets inside a key-tile record')
    a('v_and_b32 v1, 31, v0\nv_lshrrev_b32 v2, 5, v0')
    a(f'''v_lshlrev_b32 v3, 4, v1
    v_lshl_add_u32 v3, v2, 8, v3
    v_add_u32 v3, 1024, v3
    v_subrev_u32 v4, 16, v1
    v_lshlrev_b32 v5, 4, v4
    v_lshl_add_u32 v5, v2, 5, v5
    v_add_u32 v5, {VLOFF}, v5
    v_cmp_gt_u32 vcc, 2, v4
    v_add_u32 v6, 64, v5
    v_mov_b32 v7, {OOB:#x}
    v_cndmask_b32 v5, v7, v5, vcc
    v_cndmask_b32 v6, v7, v6, vcc
    v_and_b32 v4, 27, v1
    v_cmp_eq_u32 vcc, 18, v4
    v_mov_b32 v7, {ONEOFF}
    s_nop 0
    v_cndmask_b32 v5, v5, v7, vcc
    v_cndmask_b32 v6, v6, v7, vcc
    v_cmp_gt_u32 vcc, 16, v1
    v_add_u32 v4, 512, v3
    s_nop 0
    v_cndmask_b32 {v(vVf)}, v5, v3, vcc
    v_cndmask_b32 {v(vVf+1)}, v6, v4, vcc''')

def prefetch_a(a):
    if not OPT.get('pf', 1): return
    top = a.new('pf'); isw = a.new('pfw'); nxt = a.new('pfn')
    a(f'''s_sub_u32 {s(T0)}, {s(sLoc)}, 28
    s_lshl_b32 {s(T0)}, {s(T0)}, 3
    s_add_u32 {s(T0)}, {s(T0)}, {s(sWave)}
    v_mul_u32_u24 v1, 1152, v0
    v_mul_u32_u24 v2, 3456, v0
    s_lshr_b32 {s(T4)}, {s(sXcd)}, 1
    s_mul_i32 {s(T4)}, {s(T4)}, {512*1152}
    s_and_b32 {s(T5)}, {s(sXcd)}, 1
    s_mul_i32 {s(T5)}, {s(T5)}, {7*256}''')
    a.label(top)
    a(f'''s_mul_i32 {s(T1)}, {s(T0)}, 2979
    s_lshr_b32 {s(T1)}, {s(T1)}, 16
    s_mul_i32 {s(T2)}, {s(T1)}, 22
    s_sub_u32 {s(T2)}, {s(T0)}, {s(T2)}
    s_cmp_ge_u32 {s(T2)}, 8
    s_cbranch_scc1 {isw}
    s_mul_i32 {s(T2)}, {s(T2)}, {64*1152}
    s_lshl_b32 {s(T1)}, {s(T1)}, 7
    s_add_u32 {s(T2)}, {s(T2)}, {s(T1)}
    s_add_u32 {s(T2)}, {s(T2)}, {s(T4)}
    buffer_load_dword v3, v1, {srd(sAX)}, {s(T2)} offen
    s_branch {nxt}''')
    a.label(isw)
    a(f'''s_sub_u32 {s(T2)}, {s(T2)}, 8
    s_lshl_b32 {s(T2)}, {s(T2)}, 7
    s_mul_i32 {s(T1)}, {s(T1)}, {64*3456}
    s_add_u32 {s(T2)}, {s(T2)}, {s(T1)}
    s_add_u32 {s(T2)}, {s(T2)}, {s(T5)}
    buffer_load_dword v3, v2, {srd(sAW)}, {s(T2)} offen''')
    a.label(nxt)
    a(f's_add_u32 {s(T0)}, {s(T0)}, 32\ns_cmp_lt_u32 {s(T0)}, 198\ns_cbranch_scc1 {top}')

def prefetch_wo(a):
    if not OPT.get('pfo', 0): return
    top = a.new('pfo')
    a(f'''s_sub_u32 {s(T0)}, {s(sLoc)}, 28
    s_lshl_b32 {s(T0)}, {s(T0)}, 2
    s_add_u32 {s(T0)}, {s(T0)}, {s(sW4)}
    s_lshl_b32 {s(T0)}, {s(T0)}, 13
    v_lshlrev_b32 v1, 7, v0''')
    a.label(top)
    a(f'''buffer_load_dword v3, v1, {srd(sAWO)}, {s(T0)} offen
    buffer_load_dword v3, v1, {srd(sBWO)}, {s(T0)} offen
    s_add_u32 {s(T0)}, {s(T0)}, {16*8192}
    s_cmp_lt_u32 {s(T0)}, {576*1152}
    s_cbranch_scc1 {top}''')

def su_acc(a):
    for r in range(40, 72, 2): a(f'v_pk_mov_b32 {v(r,2)}, {v(vZero,2)}, {v(vZero,2)}')
    for d in ACC.values(): mfma(a, d, 40, 44, None)

def su_share(a, regs, put, first=0):
    a(f's_mul_i32 s3, {s(sW4)}, 6656\ns_add_u32 s3, s3, {EAX}\nv_add_u32 v1, s3, {v(v16)}')
    off = first
    for r, n in regs:
        if n == 4: a(f'ds_write_b128 v1, {v(r,4)} offset:{off}' if put else f'ds_read_b128 {v(r,4)}, v1 offset:{off}')
        off += 1024
SH_P = [(XAc, 4), (WAc, 4), (EA, 4), (EA+4, 4), (EA+8, 4)]
SH_L = [(EA, 4), (EA+4, 4), (EA+8, 4), (ES, 4), (ES+4, 4)]

def slot_addr(a):
    for k in range(4): a(f'v_add_u32 {v(XAr+k)}, {s(T6)}, {v(XAc+k)}')
    for w in range(2): a(f'v_add_u32 {v(WAr+w)}, {s(T6)}, {v(WAc+w)}')
    a(f's_add_u32 {s(T6)}, {s(T6)}, 0x8000\ns_and_b32 {s(T6)}, {s(T6)}, 0x1ffff')

def prologue(a, opt):
    a(f's_cmp_ge_u32 s2, 256\ns_cbranch_scc1 L_end')
    ld_srd(a, (sBX, sBW, sWS, sDBG, sAX, sAW))
    if a.diag:
        for k in range(2, 14): a(f's_mov_b32 {s(SSTAMP+k)}, 0')
    if a.diag or opt.get('padto') or opt.get('padA') or opt.get('padB'): a(f's_memrealtime {s(SSTAMP,2)}')
    if opt.get('ipf', 1):
        a.c('workgroups without a gemm tile pull this code towards L2 (one dword per 128-byte line)')
        a(f'''s_cmp_lt_u32 s2, 224
        s_cbranch_scc1 L_noipf
        s_getpc_b64 s[66:67]'''.replace('s[66:67]', 's[98:99]'))
        a.label('L_pc')
        a(f'''v_lshlrev_b32 v1, 7, v0
        v_cmp_gt_u32 vcc, L_end-L_pc, v1
        s_and_saveexec_b64 s[100:101], vcc
        s_cbranch_execz L_ipfx
        global_load_dword v254, v1, s[98:99]''')
        a.label('L_ipfx')
        a('s_mov_b64 exec, s[100:101]')
        a.label('L_noipf')
    a(f'v_lshrrev_b32 v1, 6, v0\nv_and_b32 v0, 63, v0\nv_readfirstlane_b32 {s(sWave)}, v1')
    a(f'''s_and_b32 {s(sXcd)}, s2, 7
    s_lshr_b32 {s(sLoc)}, s2, 3
    s_mul_i32 {s(sRT)}, {s(sLoc)}, 37
    s_lshr_b32 {s(sRT)}, {s(sRT)}, 8
    s_mul_i32 s3, {s(sRT)}, 7
    s_sub_u32 {s(sCT)}, {s(sLoc)}, s3
    s_add_u32 {s(sRot)}, {s(sCT)}, {s(sRT)}
    s_and_b32 s3, {s(sXcd)}, 1
    s_mul_i32 s3, s3, 7
    s_add_u32 {s(sCT)}, {s(sCT)}, s3
    s_lshr_b32 s3, {s(sXcd)}, 1
    s_lshl_b32 s3, s3, 2
    s_add_u32 {s(sRT)}, {s(sRT)}, s3
    s_and_b32 {s(sW4)}, {s(sWave)}, 3''')
    r = opt.get('rot', 0)
    if r == 2:
        a(f's_mul_i32 s3, {s(sRot)}, 86\ns_lshr_b32 s3, s3, 8\ns_mul_i32 s3, s3, 3\ns_sub_u32 {s(sRot)}, {s(sRot)}, s3\ns_mul_i32 {s(sRot)}, {s(sRot)}, 3')
    elif r == 4:
        a(f's_and_b32 {s(sRot)}, {s(sRot)}, 3')
    elif r == 3:
        a(f's_and_b32 {s(sRot)}, {s(sRot)}, 1\ns_lshl_b32 {s(sRot)}, {s(sRot)}, 2')
    su_ids2(a)
    su_loader(a)
    mk_srd(a, (sBX, sBW))
    a(f's_cmp_eq_u32 {s(sImg)}, 0\ns_cbranch_scc1 L_pset')
    vm = VM()
    a(f's_setprio 1\ns_waitcnt lgkmcnt(0)\ns_cmp_ge_u32 {s(sLoc)}, 28\ns_cbranch_scc1 L_lset')
    for j in range(3 if opt.get('sw', 9) < 0 else 2): issue_chunk(a, j); vm.add(j, 8)
    a('s_branch L_lset')
    p_setup(a, opt)
    a('s_branch L_gemm')
    for f in a.early: f()
    a.lock = bool(opt.get('p1'))
    gemm(a, opt)
    a.lock = False
    p_path(a, opt)
    a.label('L_pidle0')
    prefetch_a(a)
    a(f's_waitcnt vmcnt(0) lgkmcnt(0)\ns_barrier\ns_barrier\nds_read_b32 {v(vTok)}, {v(vCnt)} offset:{C_TOK}\ns_branch L_ppath')
    a.label('L_lset')
    a.c('================= waves 4-7: load the B tile =================')
    ld_srd(a, (sPHI, sAWO, sBWO, sOUT))
    mk_srd(a, (sAX, sAW, sPHI, sAWO, sBWO, sOUT, sDBG, sWS))
    su_tab(a)
    a('s_waitcnt lgkmcnt(0)')
    a.stamp(1)
    a(f's_cmp_lg_u32 {s(sIdle)}, 0\ns_cbranch_scc1 L_lidle')
    if opt.get('phij', 3) < 0: a_setup(a, 0); vm.add('phi', 10)
    for j in range(9):
        a(f's_waitcnt vmcnt({vm.after(j)})')
        if opt.get('p1') == 1: a.stamp(3 + j)
        a('s_barrier')
        if opt.get('p1') == 2: a.stamp(3 + j)
        if opt.get('p1') == 2 and j == 0: a.cyc0()
        if opt.get('p1') == 2 and j == 8: a.cyc1()
        sw = opt.get('sw', 9)
        for c in ([j + 2] if j < sw else [j + 2, j + 3] if j == sw else [j + 3]):
            issue_chunk(a, c); vm.add(c, 8)
            if c == 9: token_issue(a); vm.add('tok')
        if j == 0: su_vgat(a, vVfL); a_setup(a, 2)
        if j == 1: su_share(a, SH_P, False)
        if j == 2:
            a('s_waitcnt lgkmcnt(0)')
            for r in range(EA, EA + 12): a(f'v_add_u32 {v(r)}, {AOFF:#x}, {v(r)}')
        if j == opt.get('phij', 3): a_setup(a, 0); vm.add('phi', 10)
        if j in (3, 4, 5, 6): a_setup(a, {3: 5, 4: 1, 5: 6, 6: 3}[j])
        if j == 7: assert vm.after('phi') >= 24; a_setup(a, 4)
    a(f's_waitcnt vmcnt({vm.after("tok")})')
    token_check(a)
    a(f'ds_write_b32 {v(vCnt)}, {v(vTokL)} offset:{C_TOK}\ns_mov_b32 {s(T6)}, {(9 % 4) * 32768}\ns_waitcnt lgkmcnt(0)')
    a(f's_setprio {opt.get("prio", 1)}')
    a.stamp(2)
    if opt.get('p1'): a.lock = True
    slot_addr(a)
    a(f's_mov_b32 {s(T7)}, 9\ns_mov_b32 {s(T5)}, {8 if opt.get("cs") else 2 if opt.get("sl2") else 0}\ns_barrier')
    if sw == 9: issue_chunk(a, 11)
    a(f's_cmp_ge_u32 {s(sCT)}, 9\ns_cbranch_scc1 L_gS0\ns_branch L_gN0')
    a.label('L_lidle')
    a.c('four workgroups per group of 32 have no gemm tile')
    prefetch_a(a)
    a('s_waitcnt vmcnt(0)')
    prefetch_wo(a)
    a('s_waitcnt vmcnt(0)')
    su_vgat(a, vVfL)
    for p in (0, 1, 2, 3, 5, 6): a_setup(a, p)
    token_issue(a)
    a('s_waitcnt vmcnt(0)')
    a_setup(a, 4)
    token_check(a)
    a(f's_barrier\nds_write_b32 {v(vCnt)}, {v(vTokL)} offset:{C_TOK}\ns_setprio {opt.get("prio", 1)}\ns_waitcnt lgkmcnt(0)\ns_barrier\ns_branch L_achain')

def p_setup(a, opt):
    a.label('L_pset')
    a.c('================= waves 0-3: set-up =================')
    su_tab(a); su_gaddr(a)
    a('s_waitcnt lgkmcnt(0)')
    ld_srd(a, (sOUT,))
    mk_srd(a, (sWS, sDBG, sAX, sAW, sOUT))
    su_token(a, 0)
    a(f's_cmp_lg_u32 {s(sIdle)}, 0\ns_cbranch_scc1 L_pidle0')
    a(f's_waitcnt lgkmcnt(0)\ns_cmp_ge_u32 {s(sCT)}, 9\ns_cbranch_scc1 L_epiS')
    su_epi(a, 'N'); su_epi(a, 'N', 1); a('s_waitcnt lgkmcnt(0)'); su_epi(a, 'N', 2)
    a.label('L_epiD')
    def epi_s():
        a.label('L_epiS'); su_epi(a, 'S'); a('s_branch L_epiD')
    a.early.append(epi_s)
    su_share(a, SH_P, True)
    su_token(a, 1)
    a(f's_waitcnt lgkmcnt(0)\ns_mov_b32 {s(T6)}, 0')
    a.stamp(1)
    if a.diag: a('s_mov_b32 s82, 0')

def gemm(a, opt):
    sSlot, sIt, sCnt = T6, T7, T5
    a.label('L_gemm')
    a.c('================= qkv gemm (waves 0-3: B, waves 4-7: A) =================')
    slot_addr(a)
    a(f's_mov_b32 {s(sIt)}, 9\ns_mov_b32 {s(sCnt)}, 0\ns_cmp_ge_u32 {s(sCT)}, 9\ns_barrier\ns_cbranch_scc1 L_gS0')
    def mid():
        lb = a.new('mid')
        a(f's_cmp_lg_u32 {s(sImg)}, 0\ns_cbranch_scc1 {lb}')
        if opt.get('cs'): lds_wait(a, 1, C_G, 4, sl=0)
        else: a('s_barrier')
        if not opt.get('sl2'): issue_chunk(a, 13)
        a.label(lb)
    def loop(o):
        def reads(k):
            F = FS[k]
            rd = lambda w, j: f'ds_read_b64_tr_b16 {v(F+8+4*w+2*j,2)}, {v(WAr+w)} offset:{4096*k+1024*j}'
            rx = lambda tt: f'ds_read_b128 {v(F+4*tt,4)}, {v(XAr+k)} offset:{4096*tt}'
            if opt.get('nord'): return ['s_nop 0'] * 6
            return [rd(0, 0), rd(0, 1), rx(0), rx(1), rd(1, 0), rd(1, 1)]
        def mms(k, first=False):
            m = []
            for w, nm in enumerate('ab'):
                for tt in range(2):
                    x, wf = FS[k]+4*tt, FS[k]+8+4*w
                    c = None if first else ACC[(nm, tt)]
                    m.append(mfma_s(ACC[(nm, tt)], wf, x, c) if o == 'N' else mfma_s(ACC[(nm, tt)], x, wf, c))
            if opt.get('nomm'): m = ['s_nop 0'] * 4
            if opt.get('m16'):
                def two(x, i0):
                    g = re.match(r'\S+ v\[(\d+):\d+\], (\S+), (\S+), ', x); d = int(g.group(1))
                    return '\n'.join(f'v_mfma_f32_16x16x32_bf16 {v(d+4*i,4)}, {g.group(2)}, {g.group(3)}, {v(d+4*i,4)}' for i in (i0, i0+1))
                m = [two(x, 2*(k & 1)) for x in m]
            return m
        def grp(km, kr, wait=None, x1=None, x2=None, first=False, fill=None):
            m = mms(km, first); r = reads(kr)
            if fill is not None:
                def take(n):
                    out = []
                    while fill and (len(out) < n or out[-1].startswith('s_cmp') or out[-1].startswith('s_cselect_b32 s3')): out.append(fill.pop(0))
                    return '\n'.join(out)
                m = [x + '\n' + take(k) for x, k in zip(m, (3, 3, 6, 6))]
            if wait is not None: a(f's_waitcnt lgkmcnt({wait})')
            a(m[0]); a(r[0]); a(r[1]); a(r[2]); a(m[1]); a(r[3]); a(r[4]); a(r[5])
            if x1: x1()
            a(m[2])
            if x2: x2()
            a(m[3])
        a.label(f'L_g{o}0')
        a.c('first chunk: nothing to finish from a previous one')
        if opt.get('p3'): a.lstamp(s(sIt), 32)
        for x in reads(0) + reads(1): a(x)
        grp(0, 2, 6, first=True)
        a(f's_branch L_g{o}m')
        a.label(f'L_g{o}')
        if opt.get('p3'): a.lstamp(s(sIt), 16)
        if opt.get('cs'): a(f's_cmp_lg_u32 {s(sCnt)}, 0\ns_cbranch_scc1 L_g{o}c')
        a('s_barrier')
        if opt.get('sl2'):
            a(f's_cmp_lg_u32 {s(sCnt)}, 0\ns_cbranch_scc1 L_g{o}s')
            def self_issue(o=o):
                a.label(f'L_g{o}s')
                a(f's_cmp_eq_u32 {s(sCnt)}, 1\ns_cbranch_scc1 L_g{o}t')
                issue_chunk(a, 12)
                a(f's_mov_b32 {s(sCnt)}, 1\ns_branch L_g{o}b')
                a.label(f'L_g{o}t')
                issue_chunk(a, 13)
                a(f's_mov_b32 {s(sCnt)}, 0\ns_branch L_g{o}b')
            a.late.append(self_issue)
        a.label(f'L_g{o}b')
        if opt.get('p3'): a.lstamp(s(sIt), 32)
        def book():
            w8 = a.new('w8')
            a(f's_cmp_ge_u32 {s(sIt)}, {7 if opt.get("sl2") else 9}\ns_cbranch_scc1 {w8}\ns_waitcnt vmcnt(0)')
            a.label(w8)
            if opt.get('lp0', 1):
                lo = a.new('lo')
                a(f's_cmp_lg_u32 {s(sIt)}, 2\ns_cbranch_scc1 {lo}\ns_setprio 0')
                a.label(lo)
            a(f's_sub_u32 {s(sIt)}, {s(sIt)}, 1\ns_cmp_lg_u32 {s(sIt)}, 0')
        grp(2, 0); grp(3, 1); grp(0, 2, 6)
        a.label(f'L_g{o}m')
        a('s_waitcnt lgkmcnt(6)')
        a.label(f'L_g{o}n')
        grp(1, 3, None, lambda: slot_addr(a), book)
        a(f's_waitcnt vmcnt(8) lgkmcnt(0)\ns_cbranch_scc1 L_g{o}')
        if opt.get('cs'):
            def cs_block(o=o):
                a.label(f'L_g{o}c')
                lds_arrive(a, C_G)
                a(f's_sub_u32 {s(sCnt)}, {s(sCnt)}, 4\ns_sub_u32 {s(T1)}, 8, {s(sCnt)}')
                lds_wait(a, 1, C_G, s(T1), sl=0)
                a(f's_branch L_g{o}b')
            a.late.append(cs_block)
        m = mms(2) + mms(3)
        a(f's_cmp_lg_u32 {s(sImg)}, 0\ns_cbranch_scc1 L_gf{o}\ns_barrier\ns_setprio 2\nds_read_b32 {v(vTok)}, {v(vCnt)} offset:{C_TOK}')
        if not opt.get('sl2'): issue_chunk(a, 12)
        a.label(f'L_gf{o}')
        for i in (0, 1, 4, 5, 2, 3, 6, 7): a(m[i])
        if opt.get('lp0', 1):
            lo = a.new('lo')
            a(f's_cmp_eq_u32 {s(sImg)}, 0\ns_cbranch_scc1 {lo}\ns_setprio 1')
            a.label(lo)
        a.stamp(3)
    def scale(nm, sc, n):
        lb = a.new('nosc')
        a(f's_cmp_eq_u32 {s(sDoSc)}, 0\ns_cbranch_scc1 {lb}')
        for tt in range(2):
            for i in range(16): a(f'v_mul_f32 {v(ACC[(nm, tt)]+i)}, {v(sc + i//n)}, {v(ACC[(nm, tt)]+i)}')
        a.label(lb)
    def epi_main(u):
        nm = 'ab'[u]
        scale(nm, ES + 2*u, 8)
        for tt in range(2):
            for qp in range(2):
                r = ACC[(nm, tt)] + 8*qp
                cvt8(a, r, r)
                a(f'buffer_store_dwordx4 {v(r,4)}, {v(EA + 4*u + 2*qp + tt)}, {srd(sWS)}, 0 offen sc1')
    def epi_misc():
        scale('b', ES + 2, 4)
        for tt in range(2):
            for h in range(2):
                r = ACC[('b', tt)] + 8*h
                cvt8(a, r, r)
                for q in range(2): a(f'buffer_store_dwordx2 {v(r+2*q,2)}, {v(EA + 4 + 2*(2*h+q) + tt)}, {srd(sWS)}, 0 offen sc1')
    def epi_v(u):
        nm = 'ab'[u]
        for tt in range(2):
            for f in range(2):
                r = ACC[(nm, tt)] + 8*f
                cvt8(a, r, r)
                a(f'buffer_store_dwordx4 {v(r,4)}, {v(EA + 2*u + f)}, {srd(sWS)}, 0 offen offset:{REC*tt} sc1')
    loop('N')
    a.nop(6); epi_main(0); mid()
    a(f's_cmp_lg_u32 {s(sMG)}, 0\ns_cbranch_scc1 L_emisc')
    epi_main(1); a('s_branch L_epi_done')
    a.label('L_emisc')
    epi_misc(); a('s_branch L_epi_done')
    loop('S')
    for i in range(4): a(f'v_mov_b32 {v(4+i)}, 0x3f803f80')
    a.nop(4); epi_v(0); mid(); epi_v(1)
    a(f's_cmp_lg_u32 {s(sMG)}, 0\ns_cbranch_scc1 L_epi_done\nbuffer_store_dwordx4 v[4:7], {v(EA+4)}, {srd(sWS)}, 0 offen sc1')
    a.label('L_epi_done')
    a.stamp(4)
    a(f's_cmp_lg_u32 {s(sImg)}, 0\ns_cbranch_scc1 L_achain')
    a.label('L_ppath')

def op_addr(a, X, vt, smain, sextra):
    t0, t1, t2, t3 = vt, vt+1, vt+2, vt+3
    a(f'''v_bfe_u32 {v(t0)}, v0, 2, 2
    v_lshrrev_b32 {v(t1)}, 5, v0
    v_and_b32 {v(t2)}, 3, v0
    v_bfe_u32 {v(t3)}, v0, 4, 1
    v_lshl_add_u32 {v(t2)}, {v(t3)}, 2, {v(t2)}
    v_lshlrev_b32 {v(t2)}, 3, {v(t2)}
    v_lshl_add_u32 {v(t0)}, {v(t1)}, 2, {v(t0)}
    v_lshl_add_u32 {v(X+4)}, {v(t0)}, 6, {v(t2)}
    v_add_u32 {v(X+4)}, {s(sextra)}, {v(X+4)}
    v_bfe_u32 {v(t3)}, v0, 3, 1
    v_lshl_add_u32 {v(t2)}, {v(t3)}, 6, {v(t2)}
    v_lshl_add_u32 {v(X)}, {v(t0)}, 7, {v(t2)}
    v_add_u32 {v(X)}, {s(smain)}, {v(X)}
    v_xor_b32 {v(X+1)}, 64, {v(X)}
    v_mul_u32_u24 {v(t1)}, 68, {v(t1)}
    v_add_u32 {v(t1)}, 16, {v(t1)}
    v_lshl_add_u32 {v(X+2)}, {v(t1)}, 7, {v(X)}
    v_lshl_add_u32 {v(X+3)}, {v(t1)}, 7, {v(X+1)}
    v_lshl_add_u32 {v(X+5)}, {v(t1)}, 6, {v(X+4)}''')

def w_row(st, j): return 18*st + 8*j + (2 if st & 1 else 0) if st < 8 else 36*j
def op_w_reads(W, X, st, off=0):
    return [f'ds_read_b64_tr_b16 {v(W + 8*st + 4*T + 2*j, 2)}, {v(X + T + (2 if st == 8 else 0))} offset:{w_row(st, j)*128 + off}' for T in range(2) for j in range(2)]
def op_e_reads(W, X, st):
    return [f'ds_read_b64_tr_b16 {v(W + 72 + 4*st + 2*j, 2)}, {v(X + 4 + (st == 8))} offset:{w_row(st, j)*64}' for j in range(2)]
def op_read_w(a, W, X, sflag):
    for st in range(9): a('\n'.join(op_w_reads(W, X, st)))
    lb = a.new('ne')
    a(f's_cmp_eq_u32 {s(sflag)}, 0\ns_cbranch_scc1 {lb}')
    for st in range(9): a('\n'.join(op_e_reads(W, X, st)))
    a.label(lb)

def op_load_o(a, O, vo16, vol, sM, sM2, sL, thr=False):
    for i in range(8):
        a(f'buffer_load_dwordx4 {v(O+4*i,4)}, {v(vo16)}, {srd(sWS)}, {s(sM if i < 4 else sM2)} offen offset:{1024*(i&3)} sc1')
        if thr and i % 4 == 3: a('s_waitcnt vmcnt(0)')
    for i in range(4):
        a(f'buffer_load_dword {v(O+32+i)}, {v(vol)}, {srd(sWS)}, {s(sL)} offen offset:{128*i} sc1')

def op_mfma(a, AC, W, O, first):
    for st in range(9):
        a(f's_waitcnt vmcnt({11 - st if st < 8 else 0})')
        for T in range(3):
            mfma(a, AC + 16*T, W + 12*st + 4*T, O + 4*st, None if (first and st == 0) else AC + 16*T)

sEX, sWE = sBX, sXB
def issue_grp(a, kind, x, y, slot, who):
    skip = a.new('r8')
    if kind == 'm':
        sr, vo, rows = x[0], vWO, 8
        a(f's_add_u32 {s(sFree)}, {s(sWB)}, {(144*x[1] + 72*y)*1152}'); slot += EB*y
    else:
        sr, vo, rows = sEX, vWO + 1, 16
        a(f's_bitcmp1_b32 {s(sOC)}, 2\ns_mov_b32 {s(sFree)}, {144*x*1152}\ns_cselect_b32 {s(sFree)}, {144*y*1152}, {s(sFree)}\ns_add_u32 {s(sFree)}, {s(sFree)}, {s(sWE)}')
    a(f'''s_lshl_b32 s3, {s(sW4)}, 10
    s_add_u32 m0, s3, {slot}
    s_nop 0
    buffer_load_dwordx4 {v(vo)}, {srd(sr)}, {s(sFree)} offen lds
    s_add_u32 m0, s3, {slot + 4096}
    s_add_u32 {s(sFree)}, {s(sFree)}, {4*rows*1152}
    buffer_load_dwordx4 {v(vo)}, {srd(sr)}, {s(sFree)} offen lds
    s_cmp_lg_u32 {s(sW4)}, {who}
    s_cbranch_scc1 {skip}
    s_mov_b32 m0, {slot + 8192}
    s_add_u32 {s(sFree)}, {s(sFree)}, {(4 - who)*rows*1152}
    buffer_load_dwordx4 {v(vo)}, {srd(sr)}, {s(sFree)} offen lds''')
    a.label(skip)

def p_path(a, opt):
    vK, vKL, vV0, vV1 = 8, 10, 12, 14
    Qr, QLr, M = 16, 32, 36
    Kb, KLb, Vb, Sb, Ob = 40, 56, 64, 96, 160
    sCur, sNext, sLo, sHi, sN = T2, T3, T4, T5, T6
    sQm, sQl, sChk = 56, 57, 58
    sLo2, sHi2, sCur2 = T2, T3, T4
    sOB = 60
    vHint, vRw, vRr = 224, 226, 227
    a.c('================= waves 0-3: load the rest of the A tile, publish B =================')
    vm = VM()
    vm.add(12, 8); vm.add('sa', 4); vm.add(13, 8); vm.add('sb', 4)
    su_vgat(a)
    kl_const(a, T0, sH)
    a(f'''v_and_b32 v1, 31, v0
    v_mov_b32 {v(vK)}, {v(v16)}
    v_lshl_add_u32 {v(vKL)}, v1, 3, {s(T0)}
    v_lshrrev_b32 v2, 5, v0
    v_mul_u32_u24 v2, {REC if opt.get('klp', 1) else 0}, v2
    v_add_u32 {v(vKL)}, {v(vKL)}, v2
    v_mov_b32 {v(vV0)}, {v(vVf)}
    v_mov_b32 {v(vV1)}, {v(vVf+1)}''')
    for r in (vK, vKL, vV0, vV1): a(f'v_add_u32 {v(r+1)}, {2*REC}, {v(r)}')
    a.c('flags this wave waits for: lanes 0-15 k, 16-31 v (8 row tiles x first/last column tile), 32.. q')
    a(f'''v_lshrrev_b32 v2, 4, v0
    v_add_u32 v2, 1, v2
    v_cmp_gt_u32 vcc, 32, v0
    v_bfe_u32 v3, v0, 3, 1
    v_and_b32 v4, 1, v0
    v_cndmask_b32 v2, 0, v2, vcc
    v_cndmask_b32 v3, v4, v3, vcc
    s_lshl_b32 {s(T2)}, {s(sMG)}, 3
    v_and_b32 v4, 7, v0
    v_add_u32 v4, {s(T2)}, v4
    s_lshl_b32 {s(T3)}, {s(sQB)}, 1
    s_add_u32 {s(T3)}, {s(T3)}, {s(sTH)}
    v_mov_b32 v5, {s(T3)}
    v_cndmask_b32 v4, v5, v4, vcc''')
    producer_ct(a, 5, 2, 3, sH, 6)
    a(f'v_lshl_add_u32 v5, v5, 4, v4\nv_lshlrev_b32 v5, 7, v5\nv_add_u32 {v(vPoll)}, {FL1:#x}, v5\nv_lshlrev_b32 v7, 3, v0')
    for r in (QLr+1, QLr+3, KLb+1, KLb+3, KLb+5, KLb+7): a(f'v_mov_b32 {v(r)}, 0')
    def tail_setup():
        extra_flags(a); final_setup(a)
        a(f's_mul_i32 {s(T0)}, {s(sMG)}, {MB}\ns_add_u32 {s(T0)}, {s(T0)}, {M_C}\ns_mul_i32 {s(T1)}, {s(sMG)}, {EB}\ns_add_u32 {s(T1)}, {s(T1)}, {X_A}')
        op_addr(a, vWb, 1, T0, T1)
        a(f'''s_mul_i32 {s(T0)}, {s(sWave)}, 6144
        v_add_u32 {v(vRw)}, {s(T0)}, {v(v16)}
        s_xor_b32 {s(T0)}, {s(sWave)}, 2
        s_mul_i32 {s(T0)}, {s(T0)}, 6144
        v_add_u32 {v(vRr)}, {s(T0)}, {v(v16)}
        s_lshl_b32 {s(T0)}, {s(sQB)}, 2
        s_lshl_b32 {s(T1)}, {s(sTH)}, 1
        s_add_u32 {s(T0)}, {s(T0)}, {s(T1)}
        s_add_u32 {s(T0)}, {s(T0)}, {s(sMG)}''')
        flag_addr(a, T1, T0, sH, 5, FL4)
        a(f'v_mov_b32 {v(vHint)}, {s(T1)}\nv_mov_b32 {v(vHint+1)}, {s(sTok)}\ns_lshl_b32 {s(T0)}, {s(T0)}, 1')
        o_addr(a, sH, OBM, OBL, sOB)
    a(f'''s_lshl_b32 {s(T0)}, {s(sH)}, 6
    s_lshl_b32 {s(T1)}, {s(sMG)}, 5
    s_add_u32 {s(T0)}, {s(T0)}, {s(T1)}
    s_mul_i32 {s(sLo)}, {s(T0)}, {REC}
    s_add_u32 {s(sLo)}, {s(sLo)}, {KV:#x}
    s_add_u32 {s(sHi)}, {s(sLo)}, {32*REC}
    s_lshl_b32 {s(T0)}, {s(sQB)}, 1
    s_add_u32 {s(T0)}, {s(T0)}, {s(sTH)}
    s_lshl_b32 {s(T1)}, {s(sH)}, 4
    s_add_u32 {s(T0)}, {s(T0)}, {s(T1)}
    s_lshl_b32 {s(sQm)}, {s(T0)}, 12
    s_lshr_b32 {s(T1)}, {s(sH)}, 1
    s_lshl_b32 {s(T1)}, {s(T1)}, 4
    s_add_u32 {s(T1)}, {s(T1)}, {s(T3)}
    s_lshl_b32 {s(sQl)}, {s(T1)}, 10
    s_and_b32 {s(T1)}, {s(sH)}, 1
    s_lshl_b32 {s(T1)}, {s(T1)}, 2
    s_add_u32 {s(sQl)}, {s(sQl)}, {s(T1)}
    s_add_u32 {s(sQl)}, {s(sQl)}, {QL:#x}''')
    flag_addr(a, T1, sCT, sRT, 4, FL1)
    a('s_waitcnt lgkmcnt(0)')
    a.c('================= waves 0-3: attention =================')
    def kv_loads(b, sreg):
        o = REC * (b & 1); u = b >> 1
        return [f'buffer_load_dwordx4 {v(Kb+4*b,4)}, {v(vK+u)}, {srd(sWS)}, {s(sreg)} offen offset:{o} sc1',
                ('' if b & 1 else f'buffer_load_dword {v(KLb+b)}, {v(vKL+u)}, {srd(sWS)}, {s(sreg)} offen sc1') if opt.get('klp', 1) else
                f'buffer_load_dword {v(KLb+2*b)}, {v(vKL+u)}, {srd(sWS)}, {s(sreg)} offen offset:{o} sc1',
                f'buffer_load_dwordx4 {v(Vb+8*b,4)}, {v(vV0+u)}, {srd(sWS)}, {s(sreg)} offen offset:{o} sc1',
                f'buffer_load_dwordx4 {v(Vb+8*b+4,4)}, {v(vV1+u)}, {srd(sWS)}, {s(sreg)} offen offset:{o} sc1']
    def start_groups():
        a(f'''s_mul_i32 {s(sCur)}, {s(sQB)}, {4*REC}
        s_add_u32 {s(sCur)}, {s(sCur)}, {s(sLo)}
        s_add_u32 {s(sNext)}, {s(sCur)}, {4*REC}
        s_cmp_eq_u32 {s(sNext)}, {s(sHi)}
        s_cselect_b32 {s(sNext)}, {s(sLo)}, {s(sNext)}
        s_mov_b32 {s(sN)}, 8''')
    adv_groups = f'''s_mov_b32 {s(sCur)}, {s(sNext)}
        s_add_u32 {s(sNext)}, {s(sNext)}, {4*REC}
        s_cmp_eq_u32 {s(sNext)}, {s(sHi)}
        s_cselect_b32 {s(sNext)}, {s(sLo)}, {s(sNext)}
        s_cmp_eq_u32 {s(sN)}, 2
        s_cselect_b32 {s(sNext)}, {OOB:#x}, {s(sNext)}'''
    KP = opt.get('klp', 1)
    def qk(N, kb, qp):
        return (mfma_s(N, KLb+2*(kb >> 1), QLr+2*qp, None, '2b') + f' cbsz:1 abid:{kb & 1}' if KP else mfma_s(N, KLb+2*kb, QLr+2*qp, None, '2b'), mfma_s(N, Kb+4*kb, Qr+8*qp, N), mfma_s(N+16, Kb+4*kb, Qr+8*qp+4, N+16))
    def step(qp, kb, ins, sub):
        S = Sb + 32*qp; N = Sb + 32*(1-qp)
        nkb = kb if qp == 0 else (kb+1) % 4
        pkb = (kb-1) % 4 if qp == 0 else kb
        QLm, Q0m, Q1m = qk(N, nkb, 1-qp)
        def E(x, y):
            for i in range(x, y):
                if sub: a(f'v_sub_f32 {v(S+i)}, {v(S+i)}, {v(M + 2*qp + i//16)}')
                a(f'v_exp_f32{"_e64" if opt.get("e64") else ""} {v(S+i)}, {v(S+i)}')
        def C(x, y):
            for j in range(x, y):
                b = S + 16*(j//8); k = j % 8
                if opt.get('perm'): a(f'v_perm_b32 {v(b + (k % 4) + 8*(k//4))}, {v(b+2*k+1)}, {v(b+2*k)}, {s(59)}')
                else: a(f'v_cvt_pk_bf16_f32 {v(b + (k % 4) + 8*(k//4))}, {v(b+2*k)}, {v(b+2*k+1)}')
        def PV(t, f):
            o = Ob + 32*qp + 16*t
            mfma(a, o, Vb + 8*kb + 4*f, S + 16*t + 8*f, o)
        def I(k):
            if k in ins: a(ins[k])
        E(0, 2)
        o = Ob + 32*(1-qp) + 16
        mfma(a, o, Vb + 8*pkb + 4, N + 24, o); I('p')
        sched = {
            0: 'E2-5 QL E5-9 C0-4 E9-11 P00 E11-17 C4-6 Q0 C6-8 E17-19 P01 E19-25 C8-12 Q1 E25-28 P10 E28-32 C12-16',
            1: 'E2-6 QL E6-8 C0-4 E8-12 P00 E12-16 C4-7 Q0 C7-8 E16-19 P01 E19-24 C8-10 Q1 C10-12 E24-27 P10 E27-32 C12-16',
            2: 'E2-6 QL E6-9 C0-4 E9-12 P00 E12-17 C4-6 Q0 C6-8 E17-20 P01 E20-25 C8-10 Q1 C10-12 E25-28 P10 E28-32 C12-16',
            3: 'E2-6 QL E6-7 C0-1 E7-8 C1-2 E8-9 C2-3 E9-10 C3-4 E10-12 P00 E12-13 C4-5 E13-14 C5-6 E14-17 Q0 C6-7 E17-18 C7-8 E18-20 P01 E20-21 C8-9 E21-22 C9-10 E22-25 Q1 C10-11 E25-26 C11-12 E26-28 P10 E28-29 C12-13 E29-30 C13-14 E30-32 C14-16',
        }[opt.get('sched', 0)]
        hook = {'QL': 'q', 'P00': 'm0', 'Q0': 'm1', 'P01': 'm2', 'Q1': 'm3', 'P10': 'm4'}
        if opt.get('noql'):
            QLm = ''; Q0m = mfma_s(N, Kb+4*nkb, Qr+8*(1-qp), None); Q1m = mfma_s(N+16, Kb+4*nkb, Qr+8*(1-qp)+4, None)
        for w in sched.split():
            if w[0] in 'EC': (E if w[0] == 'E' else C)(*map(int, w[1:].split('-')))
            elif w[0] == 'P': PV(int(w[1]), int(w[2])); I(hook[w])
            else: a({'QL': QLm, 'Q0': Q0m, 'Q1': Q1m}[w]); I(hook[w])
    def attn_init_a():
        for r in range(Ob+16, Ob+64): a(f'v_mov_b32 {v(r)}, 0')
        for r in range(Vb+28, Vb+32): a(f'v_mov_b32 {v(r)}, 0')
    def attn_init_b():
        for r in range(Ob, Ob+16): a(f'v_mov_b32 {v(r)}, 0')
        for r in range(Sb+56, Sb+60): a(f'v_mov_b32 {v(r)}, 0')
    def attn_init(): attn_init_a(); attn_init_b()
    def attn_loop(name, sub):
        a(f's_waitcnt vmcnt({7 if KP else 12 if opt.get("deep") else 8})')
        m = qk(Sb, 0, 0); a(m[0]); a.nop(18); a(m[1]); a(m[2]); a.nop(10); a('s_setprio 0')
        if opt.get('padA'):
            a.label('L_padA')
            a(f's_memrealtime s[94:95]\ns_waitcnt lgkmcnt(0)\ns_sub_u32 s94, s94, s80\ns_cmp_lt_u32 s94, {opt["padA"]}\ns_cbranch_scc1 L_padA')
        if not sub: a.stamp(7); a.cyc0()
        a(f'.p2align {opt.get("al", 6)}')
        for _ in range(opt.get('sh', 0)): a('s_nop 0')
        a.label(name)
        for t in range(4):
            ld = kv_loads((t+3) % 4, sCur if t == 0 else sNext)
            lp = opt.get('ldp', 0)
            if opt.get('xl') == 1 and t & 1: ld = [ld[0], '', ld[2], ld[3]]
            if opt.get('xl') == 2: ld = ['', '', '', '']
            if opt.get('xl') == 3: ld = [x.replace(' sc1', '') for x in ld]
            J = '\n'.join
            ins0, ins = [({'q': ld[0], 'm0': ld[1], 'm1': ld[2], 'm2': ld[3]}, {}),
                         ({'q': J(ld)}, {}),
                         ({'q': J(ld[:2]), 'm1': J(ld[2:])}, {}),
                         ({'q': J(ld[:2])}, {'q': J(ld[2:])}),
                         ({'q': ld[0], 'm1': ld[1]}, {'q': ld[2], 'm3': ld[3]}),
                         ({'m0': ld[0], 'm2': ld[1], 'm4': ld[2]}, {'m2': ld[3]})][lp]
            if opt.get('deep'):
                ins0 = {'q': J(ld[2:]) + '\ns_waitcnt vmcnt(12)'}
                ins = {'q': J(kv_loads(t, sNext)[:2])}
            step(0, t, ins0, sub)
            ins['p'] = f's_waitcnt vmcnt({7 if KP else 10 if opt.get("deep") else 8 - sum(len(x.split(chr(10))) for x in ins.values())})'
            if t == 3:
                ins['m3'] = ins.get('m3', '') + '\n' + adv_groups
                ins['m4'] = f's_sub_u32 {s(sN)}, {s(sN)}, 1\ns_cmp_lg_u32 {s(sN)}, 0'
            step(1, t, ins, sub)
        if opt.get('p5'):
            a(f's_memtime s[94:95]\ns_waitcnt lgkmcnt(0)\ns_mov_b32 m0, {s(sN)}\ns_sub_u32 s94, s94, s93\nv_writelane_b32 v243, s94, m0\ns_cmp_lg_u32 {s(sN)}, 0')
        a(f's_cbranch_scc1 {name}')
        a.nop(1)
        mfma(a, Ob + 48, Vb + 28, Sb + 56, Ob + 48)
    def first_loads():
        for t in range(4): a(f'buffer_load_dwordx4 {v(Qr+4*t,4)}, {v(v16)}, {srd(sWS)}, {s(sQm)} offen offset:{1024*t} sc1')
        for j in range(2): a(f'buffer_load_dword {v(QLr+2*j)}, v7, {srd(sWS)}, {s(sQl)} offen offset:{512*j} sc1')
        for b in range(3):
            for x in kv_loads(b, sCur): a(x)
        if opt.get('deep'):
            for x in kv_loads(3, sCur)[:2]: a(x)
    a(f'v_readfirstlane_b32 {s(sTok)}, {v(vTok)}\ns_cmp_lg_u32 {s(sIdle)}, 0\ns_cbranch_scc1 L_pidle')
    if opt.get('cs'): lds_wait(a, 2, C_G, 8, sl=0)
    else: a('s_barrier')
    if opt.get('sl2'):
        vm = VM(); vm.add('sb')
        start_groups(); attn_init_a()
        sig = opt.get('sig2', 13)
        for j in range(12, 16):
            w = [vm.after(j)] if j >= 14 else []
            if j == sig: w.append(vm.after('sb'))
            if w: a(f's_waitcnt vmcnt({min(w)})')
            if j == sig:
                last_signals(a, 2, C_F1, 4, T1)
                a.stamp(5)
            a('s_barrier')
            if j == 15: a(f'buffer_load_dword v2, {v(vPoll)}, {srd(sWS)}, 0 offen sc1'); vm.add('fl')
            issue_chunk(a, j + 2); vm.add(j + 2, 8)
            if j == sig: attn_init_b()
            if j == 14: tail_setup()
    else:
        issue_chunk(a, 14); vm.add(14, 8)
        start_groups(); attn_init_a()
    for j in range(12, 16 if not opt.get('sl2') else 0):
        sig = opt.get('sig', 13)
        a(f's_waitcnt vmcnt({min(vm.after(j), vm.after("sb")) if j == sig else vm.after(j)})')
        if j == sig:
            last_signals(a, 2, C_F1, 4, T1)
            a.stamp(5)
        a('s_barrier')
        if j == 14: a(f'buffer_load_dword v2, {v(vPoll)}, {srd(sWS)}, 0 offen sc1'); vm.add('fl')
        if j + 3 <= 17: issue_chunk(a, j + 3); vm.add(j + 3, 8)
        if j == sig: attn_init_b()
        if j == 13: tail_setup()
    a(f's_waitcnt vmcnt(8)\nv_cmp_ne_u32 vcc, {s(sTok)}, v2\ns_cbranch_vccnz L_late')
    if opt.get('fl16', 1): a('s_barrier')
    first_loads()
    if not opt.get('fl16', 1): a('s_barrier')
    a(f's_waitcnt vmcnt({17 if KP else 20 if opt.get("deep") else 18})\ns_barrier\ns_branch L_go')
    a.label('L_late')
    a('s_barrier\ns_waitcnt vmcnt(0)\ns_barrier')
    if a.diag: a('s_mov_b32 s82, -1')
    a('s_branch L_poll')
    a.label('L_pidle')
    start_groups(); attn_init(); tail_setup()
    a.label('L_poll')
    poll_flags(a, vPoll, 2)
    first_loads()
    a.label('L_go')
    a('s_mov_b32 s59, 0x07060302')
    a.stamp(6)
    attn_loop('L_attn', False)
    a.cyc1()
    if opt.get('padB'):
        a.label('L_padB')
        a(f's_memrealtime s[94:95]\ns_waitcnt lgkmcnt(0)\ns_sub_u32 s94, s94, s80\ns_cmp_lt_u32 s94, {opt["padB"]}\ns_cbranch_scc1 L_padB')
    a.stamp(8)
    a.nopk = True
    a(f'''s_setprio 2
    s_mov_b32 {s(T0)}, {f2u(2.0**-64):#x}
    s_mov_b32 {s(T6)}, {f2u(2.0**64):#x}
    s_mov_b32 {s(T7)}, {f2u(2.0**120):#x}
    s_cmp_eq_u32 {s(sMG)}, 0
    s_cbranch_scc1 L_red0''')
    def hint(k):
        if opt.get('hint', 1) == k: a(f's_mov_b64 exec, 1\nbuffer_store_dword {v(vHint+1)}, {v(vHint)}, {srd(sWS)}, 0 offen sc1\ns_mov_b64 exec, -1')
    for kh in (1, 0):
        O2 = [Ob + 32*kh, Ob + 32*kh + 16]; P2 = [Ob + 32*(1-kh), Ob + 32*(1-kh) + 16]
        a.label(f'L_red{kh}')
        a.c('exchange partial sums with the wave that did the other half of the keys; this wave keeps query pair kh')
        if kh == 0: a.nop(6)
        for t in range(2):
            o = P2[t]
            a(f'ds_write_b128 {v(vRw)}, {v(o,4)} offset:{3072*t}\nds_write_b128 {v(vRw)}, {v(o+4,4)} offset:{3072*t+1024}\nds_write_b96 {v(vRw)}, {v(o+8,3)} offset:{3072*t+2048}')
        hint(0)
        if opt.get('p4'): a.stamp(3)
        a(f's_waitcnt vmcnt({1 if opt.get("hint", 1) == 0 else 0}) lgkmcnt(0)')
        a('s_barrier')
        if opt.get('p4'): a.stamp(5)
        for part in range(3):
            for t in range(2):
                o = P2[t]
                a([f'ds_read_b96 {v(o+8,3)}, {v(vRr)} offset:{3072*t+2048}', f'ds_read_b128 {v(o,4)}, {v(vRr)} offset:{3072*t}', f'ds_read_b128 {v(o+4,4)}, {v(vRr)} offset:{3072*t+1024}'][part])
        a.c('hint for the consumers that these rows are about to be written; they check the data itself against the marker')
        hint(1)
        a.c('the softmax above used 0 in place of the row max: safe only while the sums stay finite and well away from 0')
        a('s_waitcnt lgkmcnt(4)')
        for t in range(2): a(f'v_add_f32 {v(O2[t]+10)}, {v(O2[t]+10)}, {v(P2[t]+10)}')
        for t in range(2): a(f'v_pk_add_f32 {v(O2[t]+8,2)}, {v(O2[t]+8,2)}, {v(P2[t]+8,2)}')
        a(f'''v_min_f32 v2, {v(O2[0]+10)}, {v(O2[1]+10)}
        v_add_f32 v3, {v(O2[0]+10)}, {v(O2[1]+10)}
        v_cmp_nle_f32 {s(sChk,2)}, {s(T0)}, v2
        v_cmp_nge_f32 vcc, {s(T6)}, v3
        v_maximum3_f32 v2, abs({v(O2[0]+8)}), abs({v(O2[0]+9)}), abs({v(O2[1]+8)})
        s_waitcnt lgkmcnt(2)''')
        for i in (0, 2):
            for t in range(2): a(f'v_pk_add_f32 {v(O2[t]+i,2)}, {v(O2[t]+i,2)}, {v(P2[t]+i,2)}')
        a(f'''s_or_b64 {s(sChk,2)}, {s(sChk,2)}, vcc
        v_maximum3_f32 v3, abs({v(O2[1]+9)}), abs({v(O2[0])}), abs({v(O2[0]+1)})
        v_maximum3_f32 v2, v2, abs({v(O2[1])}), abs({v(O2[1]+1)})
        v_maximum3_f32 v3, v3, abs({v(O2[0]+2)}), abs({v(O2[0]+3)})
        v_maximum3_f32 v2, v2, abs({v(O2[1]+2)}), abs({v(O2[1]+3)})
        s_waitcnt lgkmcnt(0)''')
        for i in (4, 6):
            for t in range(2): a(f'v_pk_add_f32 {v(O2[t]+i,2)}, {v(O2[t]+i,2)}, {v(P2[t]+i,2)}')
        a(f'''v_maximum3_f32 v3, v3, abs({v(O2[0]+4)}), abs({v(O2[0]+5)})
        v_maximum3_f32 v2, v2, abs({v(O2[1]+4)}), abs({v(O2[1]+5)})
        v_maximum3_f32 v3, v3, abs({v(O2[0]+6)}), abs({v(O2[0]+7)})
        v_maximum3_f32 v2, v2, abs({v(O2[1]+6)}), abs({v(O2[1]+7)})
        v_maximum3_f32 v2, v2, v3, v3
        v_cmp_ngt_f32 vcc, {s(T7)}, v2
        s_or_b64 {s(sChk,2)}, {s(sChk,2)}, vcc
        s_cbranch_scc1 L_fallback''')
        if kh == 0: a.label('L_norm')
        o_publish(a, O2, P2, False, sOB)
        if kh == 1: a('s_branch L_pub')
    a.label('L_pub')
    a.stamp(9)
    if opt.get('p4'): a.stamp(2)
    flag_ld(a)
    final_state(a)
    op_read_w(a, FW, vWb, sXb)
    if opt.get('nojq'): a('s_waitcnt lgkmcnt(0)'); lds_arrive(a, C_WB)
    a('s_setprio 0')
    a('s_branch L_final')

    a.nopk = False
    a.label('L_fallback')
    a.c('the stand-in was unsafe for one of this wave\'s rows: redo its two query tiles over all keys with the true row max')
    vK2, vKL2 = 2, 3
    a(f'v_mov_b32 v8, {v(vWr)}\nv_mov_b32 v9, {v(vRd)}')
    su_vgat(a)
    a(f'v_mov_b32 v10, {v(vVf)}\nv_mov_b32 v11, {v(vVf+1)}\nv_mov_b32 {v(vWr)}, v8\nv_mov_b32 {v(vRd)}, v9')
    kl_const(a, sCur2, sH)
    a(f'''v_and_b32 v3, 31, v0
    v_lshl_add_u32 v3, v3, 3, {s(sCur2)}
    s_mul_i32 {s(sLo2)}, {s(sH)}, {HREC}
    s_add_u32 {s(sLo2)}, {s(sLo2)}, {KV:#x}
    s_add_u32 {s(sHi2)}, {s(sLo2)}, {HREC}
    s_cmp_eq_u32 {s(sMG)}, 0
    s_cbranch_scc1 L_fb0''')
    for i in range(8): a(f'v_mov_b32 {v(Qr+i)}, {v(Qr+8+i)}')
    a(f'v_mov_b32 {v(QLr)}, {v(QLr+2)}')
    a.label('L_fb0')
    for t in range(2): a(f'v_mov_b32 {v(M+t)}, 0xff800000')
    for r in range(Ob, Ob + 32): a(f'v_mov_b32 {v(r)}, 0')
    for ps in range(2):
        a(f's_mov_b32 {s(sCur2)}, {s(sLo2)}')
        a.label(f'L_fbloop{ps}')
        a(f'buffer_load_dwordx4 {v(Kb,4)}, {v(v16)}, {srd(sWS)}, {s(sCur2)} offen sc1\nbuffer_load_dword {v(KLb)}, v3, {srd(sWS)}, {s(sCur2)} offen sc1')
        if ps:
            for f in range(2): a(f'buffer_load_dwordx4 {v(Vb+4*f,4)}, {v(10+f)}, {srd(sWS)}, {s(sCur2)} offen sc1')
        a('s_waitcnt vmcnt(0)')
        m = qk(Sb, 0, 0); a(m[0]); a.nop(18); a(m[1]); a(m[2]); a.nop(12)
        if ps == 0:
            for t in range(2):
                for i in range(0, 16, 2): a(f'v_max3_f32 {v(M+t)}, {v(Sb+16*t+i)}, {v(Sb+16*t+i+1)}, {v(M+t)}')
        else:
            for i in range(32): a(f'v_sub_f32 {v(Sb+i)}, {v(Sb+i)}, {v(M + i//16)}')
            for i in range(32): a(f'v_exp_f32 {v(Sb+i)}, {v(Sb+i)}')
            for q in range(4): cvt8(a, Sb + 8*q, Sb + 8*q)
            a.nop(1)
            for t in range(2):
                for f in range(2): mfma(a, Ob + 16*t, Vb + 4*f, Sb + 16*t + 8*f, Ob + 16*t)
        a(f's_add_u32 {s(sCur2)}, {s(sCur2)}, {REC}\ns_cmp_lg_u32 {s(sCur2)}, {s(sHi2)}\ns_cbranch_scc1 L_fbloop{ps}')
        if ps == 0:
            for t in range(2): a(f'v_mov_b32 {v(Sb+t)}, {v(M+t)}')
            a.nop(2)
            for t in range(2): a(f'v_permlane32_swap_b32 {v(Sb+t)}, {v(M+t)}')
            a.nop(1)
            for t in range(2): a(f'v_max_f32 {v(M+t)}, {v(M+t)}, {v(Sb+t)}')
    a.nop(12)
    a('s_branch L_norm')

def o_addr(a, shead, M_, L_, T2=T2):
    T3, T4, T5 = T2 + 1, T2 + 2, T2 + 3
    a(f'''s_lshl_b32 {s(T0)}, {s(T0)}, 5
    s_add_u32 {s(T0)}, {s(T0)}, {s(shead)}
    s_lshl_b32 {s(T2)}, {s(T0)}, 10
    s_add_u32 {s(T2)}, {s(T2)}, {M_:#x}
    s_add_u32 {s(T3)}, {s(T2)}, 0x8000
    s_lshl_b32 {s(T4)}, {s(T0)}, 7
    s_add_u32 {s(T4)}, {s(T4)}, {L_:#x}
    s_add_u32 {s(T5)}, {s(T4)}, 0x1000''')

def o_publish(a, O, P, eps, T2=T2):
    T4 = T2 + 2
    for o in O:
        if eps: a(f'v_add_f32 {v(o+10)}, {f2u(1e-6):#x}, {v(o+10)}')
    for o in O: a(f'v_rcp_f32 {v(o+10)}, {v(o+10)}')
    for t in range(2):
        o, p = O[t], P[t]
        if t == 0: a('s_nop 0')
        for i in range(0, 10, 2): a(f'v_pk_mul_f32 {v(o+i,2)}, {v(o+i,2)}, {v(o+10,2)} op_sel_hi:[1,0]')
        cvt8(a, o, p)
        if not eps:
            for i in range(4): a(f'v_min_u32 {v(p+i)}, -2, {v(p+i)}')
        a(f'buffer_store_dwordx4 {v(p,4)}, {v(v16)}, {srd(sWS)}, {s(T2+t)} offen sc1')
        a(f'v_cvt_pk_bf16_f32 {v(p+4)}, {v(o+8)}, {v(o+9)}')
        if not eps: a(f'v_min_u32 {v(p+4)}, -2, {v(p+4)}')
    a('s_mov_b32 exec_hi, 0')
    for t in range(2): a(f'buffer_store_dword {v(P[t]+4)}, {v(vQL)}, {srd(sWS)}, {s(T4+t)} offen sc1')
    a('s_mov_b32 exec_hi, -1')

FW, FO, FA = 16, 124, 160
vFlg, vFol, vWr, vRd, vOut = 250, 251, 252, 253, 255
ACA = [212, 228, 196]
QS = 1088; WSTR = 8*QS; ARED = M_A; EXR = X_A; BRED = M_C
sM, sM2, sL, sA, sB_, sC, sO, sO2 = 64, 65, sIdle, 56, 57, 63, 100, 101
sTB, sXa, sXb = sLoc, sXcd, sRot
vP4, vWb = 254, 236
def extra_flags(a):
    a(f'''s_lshr_b32 {s(sTB)}, {s(sWave)}, 2
    s_xor_b32 {s(sTB)}, {s(sTB)}, {s(sTH)}
    s_and_b32 s3, {s(sOC)}, 5
    s_cmp_eq_u32 s3, {s(sTH)}
    s_cselect_b32 {s(sXa)}, 1, 0
    s_or_b32 {s(sXb)}, {s(sTB)}, 4
    s_cmp_eq_u32 s3, {s(sXb)}
    s_cselect_b32 {s(sXb)}, 1, 0''')
def final_setup(a):
    a(f'''v_and_b32 v1, 31, v0
    v_lshrrev_b32 v2, 5, v0
    v_lshlrev_b32 v3, 2, v1
    v_lshl_add_u32 {v(vFol)}, v2, 9, v3
    s_lshl_b32 {s(T1)}, {s(sOT)}, 1
    s_add_u32 {s(T0)}, {s(sTB)}, {s(T1)}
    s_lshl_b32 {s(T0)}, {s(T0)}, 5
    s_lshr_b32 {s(T1)}, {s(sWave)}, 1
    s_lshl_b32 {s(T1)}, {s(T1)}, 3
    s_add_u32 {s(T0)}, {s(T0)}, {s(T1)}
    s_lshl_b32 {s(sM)}, {s(T0)}, 10
    s_add_u32 {s(sM)}, {s(sM)}, {OBM:#x}
    s_add_u32 {s(sM2)}, {s(sM)}, 4096
    s_lshl_b32 {s(sL)}, {s(T0)}, 7
    s_add_u32 {s(sL)}, {s(sL)}, {OBL:#x}
    s_lshl_b32 {s(T0)}, {s(sOT)}, 5
    s_add_u32 {s(T0)}, {s(T0)}, {s(T1)}
    v_and_b32 v3, 7, v0
    v_add_u32 v1, {s(T0)}, v3
    v_lshlrev_b32 v1, 7, v1
    v_add_u32 {v(vP4)}, {FL4:#x}, v1
    s_and_b32 {s(T0)}, {s(sWave)}, 6
    s_add_u32 {s(T0)}, {s(T0)}, {s(sTB)}
    s_mul_i32 {s(T0)}, {s(T0)}, {WSTR}
    s_add_u32 {s(T0)}, {s(T0)}, {BRED}
    v_add_u32 {v(vWr)}, {s(T0)}, {v(v16)}
    s_mul_i32 {s(T0)}, {s(sOT)}, {64*2304}
    s_lshl_b32 {s(T1)}, {s(sOC)}, 7
    s_add_u32 {s(sO)}, {s(T0)}, {s(T1)}
    s_add_u32 {s(sO2)}, {s(sO)}, 1152
    v_lshrrev_b32 v1, 3, v0
    s_lshl_b32 {s(T0)}, {s(sWave)}, 3
    v_add_u32 v2, {s(T0)}, v1
    v_mul_u32_u24 v2, 2304, v2
    v_lshl_add_u32 {v(vOut)}, v3, 4, v2
    v_mul_u32_u24 v3, {QS}, v3
    v_lshl_add_u32 v3, v1, 4, v3
    s_lshr_b32 {s(T0)}, {s(sWave)}, 2
    s_mul_i32 {s(T0)}, {s(T0)}, {WSTR}
    s_lshl_b32 {s(T1)}, {s(sW4)}, 7
    s_add_u32 {s(T0)}, {s(T0)}, {s(T1)}
    v_add_u32 {v(vRd)}, {s(T0)}, v3''')
def flag_ld(a, r=vFlg): a(f'buffer_load_dword {v(r)}, {v(vP4)}, {srd(sWS)}, 0 offen sc1')
def final_state(a): a(f's_mov_b32 {s(sA)}, 0\ns_mov_b32 {s(sB_)}, 0\ns_mov_b32 {s(sC)}, 0')
def half_ld(a, h):
    for i in range(4): a(f'buffer_load_dwordx4 {v(FO+16*h+4*i,4)}, {v(v16)}, {srd(sWS)}, {s(sM2 if h else sM)} offen offset:{1024*i} sc1')
def left_ld(a):
    for i in range(4): a(f'buffer_load_dword {v(FO+32+i)}, {v(vFol)}, {srd(sWS)}, {s(sL)} offen offset:{128*i} sc1')
def half_try(a, again=False):
    for h, st in ((0, sA), (1, sB_)):
        lb = a.new('fl'); go = a.new('fg')
        if again: a(f's_cmp_eq_u32 {s(st)}, 1\ns_cbranch_scc1 {go}')
        a(f's_and_b32 {s(T0)}, vcc_lo, {0xf0 if h else 0x0f}\ns_or_b32 {s(T0)}, {s(T0)}, {s(st)}\ns_cbranch_scc1 {lb}\ns_mov_b32 {s(st)}, 1')
        a.label(go)
        half_ld(a, h)
        a.label(lb)
def final(a):
    a.label('L_final')
    a.c('================= all waves: out projection of B =================')
    a.c('this wave needs 8 heads, 4 from each of two producer groups: load each half as soon as its flags are up')
    def mm(steps):
        for st in steps:
            for T in range(2): mfma(a, FA + 16*T, FW + 8*st + 4*T, FO + 4*st, None if st == 0 else FA + 16*T)
        lb = a.new('nx')
        a(f's_cmp_eq_u32 {s(sXb)}, 0\ns_cbranch_scc1 {lb}')
        for st in steps: mfma(a, FA + 32, FW + 72 + 4*st, FO + 4*st, None if st == 0 else FA + 32)
        a.label(lb)
    def pending0():
        lb = a.new('fm')
        a(f's_cmp_lg_u32 {s(sA)}, 2\ns_cbranch_scc1 {lb}\ns_mov_b32 {s(sA)}, 3')
        mm(range(4))
        a.label(lb)
    def verify(st, r, n):
        lb = a.new('fv')
        a(f's_cmp_lg_u32 {s(st)}, 1\ns_cbranch_scc1 {lb}')
        a(f'v_max3_u32 v2, {v(r)}, {v(r+1)}, {v(r+2)}')
        if n == 4: a(f'v_max_u32 v2, v2, {v(r+3)}')
        else:
            a(f'v_max3_u32 v3, {v(r+3)}, {v(r+4)}, {v(r+5)}')
            for i in range(6, 16, 4): a(f'v_max3_u32 v2, v2, {v(r+i)}, {v(r+i+1)}' + (f'\nv_max3_u32 v3, v3, {v(r+i+2)}, {v(r+i+3)}' if i + 3 < 16 else ''))
            a('v_max_u32 v2, v2, v3')
        a(f'v_cmp_eq_u32 {s(60,2)}, -1, v2\ns_cmp_lg_u64 {s(60,2)}, 0\ns_cselect_b32 {s(st)}, 0, 2')
        a.label(lb)
    a.label('L_fpoll')
    a('s_waitcnt vmcnt(0) lgkmcnt(0)')
    verify(sA, FO, 16); verify(sB_, FO + 16, 16); verify(sC, FO + 32, 4)
    a(f's_min_u32 {s(T0)}, {s(sA)}, {s(sB_)}\ns_min_u32 {s(T0)}, {s(T0)}, {s(sC)}\ns_cmp_ge_u32 {s(T0)}, 2\ns_cbranch_scc1 L_fgo')
    a(f'v_cmp_ne_u32 vcc, {s(sTok)}, {v(vFlg)}')
    half_try(a)
    lb = a.new('fc'); l2 = a.new('fd')
    a(f's_min_u32 {s(T0)}, {s(sA)}, {s(sB_)}\ns_cmp_eq_u32 {s(T0)}, 0\ns_cbranch_scc1 {lb}\ns_cmp_eq_u32 {s(sC)}, 2\ns_cbranch_scc1 {l2}\ns_mov_b32 {s(sC)}, 1')
    for i in range(4): a(f'buffer_load_dword {v(FO+32+i)}, {v(vFol)}, {srd(sWS)}, {s(sL)} offen offset:{128*i} sc1')
    a(f's_branch {l2}')
    a.label(lb)
    flag_ld(a)
    a.label(l2)
    pending0()
    spin_tail(a, 'L_fpoll', OPT.get('fsl', 0))
    a.label('L_fgo')
    a.stamp(10)
    pending0()
    if OPT.get('nojq'): a(f'ds_read_b32 v6, {v(vCnt)} offset:{C_WB}')
    mm(range(4, 9))
    if OPT.get('p4'): a.stamp(6)
    if OPT.get('nojq'):
        a(f's_waitcnt lgkmcnt(0)\nv_readfirstlane_b32 {s(T0)}, v6\ns_cmp_ge_u32 {s(T0)}, 8\ns_cbranch_scc1 L_wbok')
        lds_wait(a, 6, C_WB, 8, sl=0)
        a.label('L_wbok')
    else: a('s_barrier')
    if OPT.get('p4'): a.stamp(7)
    a(f'''v_add_u32 v7, {ARED}, {v(vRd)}
    v_add_u32 {v(vRd)}, {BRED}, {v(vRd)}
    v_lshrrev_b32 v2, 2, v0
    s_lshl_b32 {s(T0)}, {s(sWave)}, 4
    v_add_u32 v2, {s(T0)}, v2
    v_and_b32 v3, 3, v0
    v_mul_u32_u24 v5, 2304, v2
    v_lshl_add_u32 v5, v3, 4, v5
    v_mul_u32_u24 v3, {QS}, v3
    v_lshl_add_u32 v4, v2, 4, v3
    v_add_u32 v4, {EXR}, v4''')
    for q in range(8): a(f'ds_write_b128 {v(vWr)}, {v(FA+4*q,4)} offset:{QS*q}')
    a(f'''s_cmp_eq_u32 {s(sXb)}, 0
    s_cbranch_scc1 L_fnx
    s_lshr_b32 {s(T0)}, {s(sWave)}, 1
    s_mul_i32 {s(T0)}, {s(T0)}, {4*QS}
    s_add_u32 {s(T0)}, {s(T0)}, {EXR}
    v_add_u32 v1, {s(T0)}, {v(v16)}''')
    for q in range(4): a(f'ds_write_b128 v1, {v(FA+32+4*q,4)} offset:{QS*q}')
    a.label('L_fnx')
    a('s_waitcnt lgkmcnt(0)\ns_barrier')
    a.stamp(11)
    a.c('sum the partials in output order: one 16-byte piece of a row per lane')
    def rd(R, vr, n, stride):
        for k in range(n):
            for h in range(2): a(f'ds_read_b128 {v(R+8*k+4*h,4)}, {v(vr)} offset:{stride*k + 512*h}')
    def fin(R, n, vo, so, pol):
        for k in range(1, n):
            for i in range(4): a(f'v_pk_add_f32 {v(R+2*i,2)}, {v(R+2*i,2)}, {v(R+8*k+2*i,2)}')
        cvt8(a, R, R)
        a(f'buffer_store_dwordx4 {v(R,4)}, {v(vo)}, {srd(sOUT)}, {s(so)} offen{opol(pol)}')
    rd(16, vRd, 4, 2*WSTR); rd(48, 7, 2, 2*WSTR)
    a(f'''s_cmp_gt_u32 {s(sWave)}, 1
    s_cbranch_scc1 L_fin_a
    s_mul_i32 {s(T0)}, {s(sOT)}, {64*2304}
    s_and_b32 {s(T1)}, {s(sOC)}, 1
    s_mul_i32 {s(T1)}, {s(T1)}, {32*2304}
    s_add_u32 {s(T0)}, {s(T0)}, {s(T1)}
    s_and_b32 {s(T1)}, {s(sOC)}, 2
    s_lshl_b32 {s(T1)}, {s(T1)}, 5
    s_add_u32 {s(T0)}, {s(T0)}, {s(T1)}
    s_add_u32 {s(T0)}, {s(T0)}, 1024
    s_bitcmp1_b32 {s(sOC)}, 2
    s_cbranch_scc0 L_fin_x
    s_add_u32 {s(T0)}, {s(T0)}, 1152''')
    rd(64, 4, 4, 4*QS); a('s_waitcnt lgkmcnt(0)'); fin(64, 4, 5, T0, 'osb'); a('s_branch L_fin_a')
    a.label('L_fin_x')
    rd(64, 4, 2, 4*QS); a('s_waitcnt lgkmcnt(0)'); fin(64, 2, 5, T0, 'osa')
    a.label('L_fin_a')
    a('s_waitcnt lgkmcnt(4)'); fin(16, 4, vOut, sO2, 'osb')
    a('s_waitcnt lgkmcnt(0)'); fin(48, 2, vOut, sO, 'osa')
    if OPT.get('padto'):
        a.label('L_pad')
        a(f's_memrealtime s[94:95]\ns_waitcnt lgkmcnt(0)\ns_sub_u32 s94, s94, s80\ns_cmp_lt_u32 s94, {OPT["padto"]}\ns_cbranch_scc1 L_pad')
    if a.diag:
        a('s_waitcnt vmcnt(0)')
        a.stamp(12)
        a.label('L_dump')
        a(f's_lshl_b32 {s(T0)}, s2, 3\ns_add_u32 {s(T0)}, {s(T0)}, {s(sWave)}\ns_lshl_b32 {s(T0)}, {s(T0)}, 7\ns_add_u32 {s(T0)}, {s(T0)}, {STAMPS:#x}')
        for k in range(16): a(f'v_mov_b32 {v(16+k)}, {s(SSTAMP+k)}')
        a(f's_lshl_b32 {s(T1)}, {s(T0)}, 1\ns_sub_u32 {s(T1)}, {s(T1)}, {STAMPS - 0x80000:#x}\nbuffer_store_dword v243, {v(vQL)}, {srd(sWS)}, {s(T1)} offen')
        a('v_mov_b32 v1, 0\ns_mov_b64 exec, 1')
        for k in range(4): a(f'buffer_store_dwordx4 {v(16+4*k,4)}, v1, {srd(sWS)}, {s(T0)} offen offset:{16*k}')
    a('s_endpgm')
    for f in a.late: f()
    a.label('L_end')
    a('s_endpgm')

WPH, WLq, WLk, vG, vPh, vPr, RAW = 8, 12, 14, 16, 18, 19, 160
sQa, sRec, sTl, sF1A, sLoB, sHiB, sC2 = 56, 57, 58, 59, 60, 61, 62
vXs, vF3, vF2, vVfL, vTokL = 236, 242, 243, 21, 170
def a_setup(a, part):
    if part == 0:
        a.c('feature-map weights (rows follow the rotated dim order of odd heads)')
        a(f'''v_and_b32 v1, 31, v0
        v_lshrrev_b32 v2, 5, v0
        v_cmp_eq_u32 vcc, 20, v1
        v_mov_b32 v3, 17
        v_mov_b32 v4, {OOB:#x}
        v_cndmask_b32 v3, v1, v3, vcc
        v_cmp_ge_u32 {s(T0,2)}, 16, v1
        s_or_b64 vcc, vcc, {s(T0,2)}
        v_lshlrev_b32 v3, 1, v3
        s_mul_i32 {s(T2)}, {s(sHA)}, 648
        v_cndmask_b32 v3, v4, v3, vcc
        v_mul_u32_u24 v5, 288, v2
        v_add_u32 v4, v3, v5
        s_and_b32 {s(T0)}, {s(sHA)}, 1
        s_mul_i32 {s(T1)}, {s(T0)}, 72
        s_add_u32 {s(T3)}, {s(T2)}, {s(T1)}
        s_mul_i32 {s(T1)}, {s(T0)}, 576
        s_sub_u32 {s(T2)}, {s(T2)}, {s(T1)}
        s_add_u32 {s(T2)}, {s(T2)}, 576''')
        for e in range(8):
            a(f'buffer_load_ushort {v(RAW + e)}, v4, {srd(sPHI)}, {s(T3)} offen offset:{e*36}')
        a(f'buffer_load_ushort {v(RAW+8)}, v3, {srd(sPHI)}, {s(T2)} offen\nbuffer_load_ushort {v(RAW+9)}, v3, {srd(sPHI)}, {s(T2)} offen offset:36')
    if part == 1:
        a.c('wo image lane offsets; flags of the producers of this wave\'s rows')
        a(f'''v_lshrrev_b32 v3, 3, v0
        v_bfe_u32 v4, v0, 4, 1
        v_lshlrev_b32 v4, 2, v4
        v_and_b32 v5, 7, v0
        v_xor_b32 v4, v4, v5
        v_mul_u32_u24 v3, 1152, v3
        v_lshl_add_u32 {v(vWO)}, v4, 4, v3
        v_lshrrev_b32 v3, 2, v0
        v_mul_u32_u24 v3, 1152, v3
        v_and_b32 v4, 3, v0
        v_lshl_add_u32 {v(vWO+1)}, v4, 4, v3''')
        a('v_lshrrev_b32 v4, 1, v0\nv_min_u32 v4, 2, v4\nv_and_b32 v5, 1, v0')
        producer_ct(a, 3, 4, 5, sHA, 6)
        a(f'''s_lshl_b32 {s(T0)}, {s(sRB)}, 1
        s_add_u32 {s(T0)}, {s(T0)}, {s(sMG)}
        v_lshl_add_u32 v3, v3, 4, {s(T0)}
        v_lshlrev_b32 v3, 7, v3
        v_add_u32 {v(vPoll)}, {FL1A:#x}, v3''')
    if part == 2:
        a.c('image addresses: tile = 8rb + 2w; leftover gather (half 0: q, half 1: k)')
        a(f'''s_lshl_b32 {s(sTl)}, {s(sRB)}, 3
        s_lshl_b32 {s(T1)}, {s(sW4)}, 1
        s_add_u32 {s(sTl)}, {s(sTl)}, {s(T1)}
        s_lshl_b32 {s(T1)}, {s(sHA)}, 6
        s_add_u32 {s(T0)}, {s(sTl)}, {s(T1)}
        s_lshl_b32 {s(sQa)}, {s(T0)}, 10
        s_add_u32 {s(sQa)}, {s(sQa)}, {QM + AOFF:#x}
        s_mul_i32 {s(sRec)}, {s(T0)}, {REC}
        s_add_u32 {s(sRec)}, {s(sRec)}, {KV + AOFF:#x}
        s_lshr_b32 {s(T0)}, {s(sHA)}, 1
        s_lshl_b32 {s(T0)}, {s(T0)}, 6
        s_add_u32 {s(T0)}, {s(T0)}, {s(sTl)}
        s_lshl_b32 {s(T0)}, {s(T0)}, 8
        s_and_b32 {s(T1)}, {s(sHA)}, 1
        s_lshl_b32 {s(T1)}, {s(T1)}, 2
        s_add_u32 {s(T0)}, {s(T0)}, {s(T1)}
        s_add_u32 {s(T0)}, {s(T0)}, {QL + AOFF:#x}
        v_mov_b32 v3, {s(T0)}''')
        kl_const(a, T1, sHA)
        a(f'''s_add_u32 {s(T1)}, {s(T1)}, {s(sRec)}
        v_mov_b32 v4, {s(T1)}
        v_mov_b32 v5, 256
        v_mov_b32 v6, {REC}
        v_cmp_gt_u32 vcc, 32, v0
        v_and_b32 v1, 31, v0
        v_lshrrev_b32 v2, 5, v0
        v_cndmask_b32 v3, v4, v3, vcc
        v_cndmask_b32 v5, v6, v5, vcc
        v_lshl_add_u32 {v(vG)}, v1, 3, v3
        v_add_u32 {v(vG+1)}, {v(vG)}, v5''')
        flag_addr(a, sF1A, sCT, sRT, 4, FL1A)
        a(f's_cmp_lg_u32 {s(sIdle)}, 0\ns_cselect_b32 {s(sF1A)}, {OOB:#x}, {s(sF1A)}')
    if part == 3:
        a.c('phi scratch: row-per-token writes, transposed reads')
        a(f'''s_mul_i32 {s(T0)}, {s(sW4)}, 5120
        s_add_u32 {s(T0)}, {s(T0)}, {PHS}
        v_and_b32 v1, 31, v0
        v_lshrrev_b32 v2, 5, v0
        v_mul_u32_u24 v3, 80, v1
        v_lshl_add_u32 v3, v2, 3, v3
        v_add_u32 {v(vPh)}, {s(T0)}, v3
        v_bfe_u32 v3, v0, 2, 2
        v_lshl_add_u32 v5, v2, 2, v3
        v_mul_u32_u24 v5, 80, v5
        v_add_u32 v5, {s(T0)}, v5
        v_and_b32 v4, 3, v0
        v_lshlrev_b32 v6, 3, v4
        v_and_b32 v3, 1, v0
        v_lshlrev_b32 v3, 3, v3
        v_add_u32 v3, 64, v3
        v_bfe_u32 v4, v0, 4, 1
        v_cmp_eq_u32 vcc, 0, v4
        v_add_u32 {v(vPr+1)}, v5, v6
        v_mov_b32 {v(WLq+1)}, 0
        v_cndmask_b32 v6, v3, v6, vcc
        v_mov_b32 {v(WLk+1)}, 0
        v_add_u32 {v(vPr)}, v5, v6''')
    if part == 5:
        a.c('wo fragment addresses; flags of the kv partials and of the o_A rows')
        extra_flags(a)
        a(f's_mul_i32 {s(T2)}, {s(sMG)}, {MB}\ns_add_u32 {s(T2)}, {s(T2)}, {LATE}\ns_mul_i32 {s(T3)}, {s(sMG)}, {EB}\ns_add_u32 {s(T3)}, {s(T3)}, {LATE + 2*MB}')
        op_addr(a, vXs, 2, T2, T3)
        a(f'''s_lshl_b32 {s(T0)}, {s(sOT)}, 1
        s_add_u32 {s(T0)}, {s(T0)}, {s(sMG)}
        s_lshl_b32 {s(T0)}, {s(T0)}, 11
        s_add_u32 {s(T0)}, {s(T0)}, {FL3:#x}
        v_and_b32 v3, 15, v0
        v_lshl_add_u32 {v(vF3)}, v3, 7, {s(T0)}
        v_and_b32 v3, 7, v0
        s_lshl_b32 {s(T0)}, {s(sHA)}, 10
        s_add_u32 {s(T0)}, {s(T0)}, {FL2:#x}
        v_lshl_add_u32 {v(vF2)}, v3, 7, {s(T0)}
        s_mov_b32 {s(sLoB)}, {f2u(2.0**-64):#x}
        s_mov_b32 {s(sHiB)}, {f2u(2.0**64):#x}''')
    if part == 6: final_setup(a)
    if part == 4:
        for i in range(4): a(f'v_lshl_or_b32 {v(WPH + i)}, {v(RAW+1 + 2*i)}, 16, {v(RAW + 2*i)}')
        a(f'v_lshl_or_b32 v3, {v(RAW+9)}, 16, {v(RAW+8)}\nv_cmp_gt_u32 vcc, 32, v0\ns_nop 1\nv_cndmask_b32 {v(WLq)}, {v(vZero)}, v3, vcc\nv_cndmask_b32 {v(WLk)}, v3, {v(vZero)}, vcc')

def a_chain(a, opt):
    Fq, Fk, Fl, Fv = [36, 40], [44, 48], [52, 54], [56, 64]
    def lprio(x):
        if opt.get('lp', 1): a(f's_setprio {x}')
    a.label('L_achain')
    if a.diag and opt.get('p3'):
        a(f's_lshl_b32 {s(T0)}, s2, 3\ns_add_u32 {s(T0)}, {s(T0)}, {s(sWave)}\ns_lshl_b32 {s(T0)}, {s(T0)}, 8\ns_add_u32 {s(T0)}, {s(T0)}, {STAMPS + 0x100000:#x}\nbuffer_store_dword v243, {v(vQL)}, {srd(sWS)}, {s(T0)} offen')
    a.c('================= waves 4-7: publish A qkv, feature maps =================')
    def mains(sr, kq, slot): return [('m', (sr, kq), h, slot, 2*(kq & 1) + h) for h in range(2)]
    bg = mains(sAWO, 1, M_A) + mains(sAWO, 3, M_A + MB) + mains(sBWO, 0, M_C) + [('e', 1, 0, X_A, 2), ('e', 3, 1, X_A + EB, 3)]
    kg = opt.get('kg', 8); skip = [0, {8: (), 6: (2,), 4: (1, 3)}[kg]]
    hold = [bool(opt.get('late', 0))]
    def bgdma():
        skip[0] += 1
        if skip[1] and skip[0] % 4 in skip[1]: return
        if bg and not hold[0]: issue_grp(a, *bg.pop(0))
    a(f'''s_lshl_b32 {s(sWB)}, {s(sOC)}, 7
    s_mul_i32 s3, {s(sW4)}, {8*1152}
    s_add_u32 {s(sWB)}, {s(sWB)}, s3
    s_lshl_b32 s3, s3, 1
    s_and_b32 {s(sWE)}, {s(sOC)}, 2
    s_lshl_b32 {s(sWE)}, {s(sWE)}, 5
    s_add_u32 {s(sWE)}, {s(sWE)}, s3
    s_add_u32 {s(sWE)}, {s(sWE)}, 1024
    s_bitcmp1_b32 {s(sOC)}, 2
    s_cselect_b32 {s(sEX)}, {s(sBWO)}, {s(sAWO)}
    s_cselect_b32 {s(sEX+1)}, {s(sBWO+1)}, {s(sAWO+1)}
    s_mov_b32 {s(sEX+2)}, {576*1152}
    s_mov_b32 {s(sEX+3)}, 0x20000
    s_mov_b32 {s(T2)}, {f2u(LOG2E):#x}
    s_mov_b32 {s(T3)}, {f2u(LOG2E):#x}
    v_mov_b32 {v(Fl[0]+1)}, 0
    v_mov_b32 {v(Fl[1]+1)}, 0
    s_waitcnt vmcnt(0)''')
    last_signals(a, 2, C_F1A, 4, sF1A)
    a.stamp(5)
    poll_flags(a, vPoll, 2, sl=4)
    a.stamp(6)
    for tt in range(2):
        a(f'buffer_load_dwordx4 {v(Fk[tt],4)}, {v(v16)}, {srd(sWS)}, {s(sRec)} offen offset:{REC*tt} sc1')
        a(f'buffer_load_dword {v(Fl[tt])}, {v(vG + tt)}, {srd(sWS)}, 0 offen sc1')
    for tt in range(2): a(f'buffer_load_dwordx4 {v(Fq[tt],4)}, {v(v16)}, {srd(sWS)}, {s(sQa)} offen offset:{1024*tt} sc1')
    for tt in range(2):
        for f in range(2): a(f'buffer_load_dwordx4 {v(Fv[tt]+4*f,4)}, {v(vVfL+f)}, {srd(sWS)}, {s(sRec)} offen offset:{REC*tt} sc1')
    lds_wait(a, 2, C_F1A, 4)
    D = {('k', 0): 80, ('k', 1): 96, ('q', 0): 112, ('q', 1): 128}
    a('s_waitcnt vmcnt(6)')
    lprio(0)
    for tt in range(2): mfma(a, D[('k', tt)], WLk, Fl[tt], None, '8')
    for tt in range(2): mfma(a, D[('q', tt)], WLq, Fl[tt], None, '8')
    a.nop(7)
    for tt in range(2): mfma(a, D[('k', tt)], WPH, Fk[tt], D[('k', tt)])
    a('s_waitcnt vmcnt(4)')
    for tt in range(2): mfma(a, D[('q', tt)], WPH, Fq[tt], D[('q', tt)])
    a.nop(8)
    lprio(1)
    dense = False
    EP, EM = 144, 156
    PH = {('q', 0): 204, ('q', 1): 214, ('k', 0): 168, ('k', 1): 178}
    def sums():
        a(f'''v_pk_add_f32 v[2:3], {v(EP,2)}, {v(EP+2,2)}
        v_pk_add_f32 v[4:5], {v(EM,2)}, {v(EM+2,2)}
        v_pk_add_f32 v[2:3], v[2:3], {v(EP+4,2)}
        v_pk_add_f32 v[4:5], v[4:5], {v(EM+4,2)}
        v_pk_add_f32 v[2:3], v[2:3], {v(EP+6,2)}
        v_pk_add_f32 v[4:5], v[4:5], {v(EM+6,2)}
        v_add_f32 v2, v2, {v(EP+8)}
        v_add_f32 v4, v4, {v(EM+8)}
        v_add_f32 v2, v2, v3
        v_add_f32 v4, v4, v5
        s_nop 1
        v_permlane32_swap_b32 v2, v4
        v_add_f32 v2, v2, v4''')
    def softmax_max(x, lab, back):
        a.label(lab)
        a(f'''v_max3_f32 v2, {v(x)}, {v(x+1)}, {v(x+2)}
        v_max3_f32 v4, -{v(x)}, -{v(x+1)}, -{v(x+2)}
        v_max3_f32 v2, v2, {v(x+3)}, {v(x+4)}
        v_max3_f32 v4, v4, -{v(x+3)}, -{v(x+4)}
        v_max3_f32 v2, v2, {v(x+5)}, {v(x+6)}
        v_max3_f32 v4, v4, -{v(x+5)}, -{v(x+6)}
        v_max3_f32 v2, v2, {v(x+7)}, {v(x+8)}
        v_max3_f32 v4, v4, -{v(x+7)}, -{v(x+8)}
        s_nop 1
        v_permlane32_swap_b32 v2, v4
        v_max_f32 v2, v2, v4
        v_mov_b32 v4, v2
        s_nop 1
        v_permlane32_swap_b32 v2, v4''')
        for i in range(9): a(f'v_sub_f32 {v(EP+i)}, {v(x+i)}, v2\nv_sub_f32 {v(EM+i)}, -{v(x+i)}, v4')
        for E in (EP, EM):
            for i in range(9): a(f'v_mul_f32 {v(E+i)}, {s(T2)}, {v(E+i)}')
        for E in (EP, EM):
            for i in range(9): a(f'v_exp_f32 {v(E+i)}, {v(E+i)}')
        sums()
        a(f's_branch {back}')
    def softmax2(x, P, lo=False):
        lab = a.new('smx'); back = a.new('smb')
        a.late.append(lambda: softmax_max(x, lab, back))
        for i in range(0, 8, 2): a(f'v_pk_mul_f32 {v(EM+i,2)}, {v(x+i,2)}, {s(T2,2)}')
        a(f'v_mul_f32 {v(EM+8)}, {s(T2)}, {v(x+8)}')
        bgdma()
        if lo == 2:
            hi = a.new('qh')
            a(f's_waitcnt vmcnt(4)\nv_cmp_ne_u32 vcc, {s(sTok)}, v7\ns_cbranch_vccz {hi}\ns_setprio 0')
            a.label(hi)
        elif lo: lprio(0)
        isq = P in (PH[('q', 0)], PH[('q', 1)])
        for i in range(9):
            a(f'v_exp_f32 {v(EP+i)}, {v(EM+i)}')
            if isq and dense and i == 4: bgdma()
        bgdma()
        for i in range(9):
            a(f'v_exp_f32 {v(EM+i)}, -{v(EM+i)}')
            if isq and dense and i == 4: bgdma()
        if lo: lprio(1)
        bgdma()
        if opt.get('qlo') == 5 and P == PH[('q', 0)]: a(f'buffer_load_dword v7, {v(vF2)}, {srd(sWS)}, 0 offen sc1')
        sums()
        a(f'''v_cmp_nle_f32 {s(sC2,2)}, {s(sLoB)}, v2
        v_cmp_nge_f32 vcc, {s(sHiB)}, v2
        s_or_b64 vcc, vcc, {s(sC2,2)}
        s_cbranch_scc1 {lab}''')
        a.label(back)
        a(f'''v_rcp_f32 v2, v2
        s_nop 0
        v_mov_b32 v4, v2
        s_nop 1
        v_permlane32_swap_b32 v2, v4''')
        for E, t in ((EP, 2), (EM, 4)):
            for i in range(0, 8, 2): a(f'v_pk_mul_f32 {v(E+i,2)}, {v(E+i,2)}, {v(t,2)} op_sel_hi:[1,0]')
            a(f'v_mul_f32 {v(E+8)}, {v(E+8)}, {v(t)}')
        bgdma()
        cvt8(a, EP, P); cvt8(a, EM, P+4)
        a(f'v_cvt_pk_bf16_f32 {v(P+8)}, {v(EP+8)}, {v(EM+8)}')
    for tt in range(2):
        P = PH[('k', tt)]
        softmax2(D[('k', tt)], P, bool(opt.get('klo', 0) >> tt & 1))
        o = 2560*tt
        a(f'''ds_write_b64 {v(vPh)}, {v(P,2)} offset:{o}
        ds_write_b64 {v(vPh)}, {v(P+2,2)} offset:{o+16}
        ds_write_b64 {v(vPh)}, {v(P+4,2)} offset:{o+32}
        ds_write_b64 {v(vPh)}, {v(P+6,2)} offset:{o+48}
        ds_write_b32 {v(vPh)}, {v(P+8)} offset:{o+64}''')
    a.c('kv partial of this wave: phi_k^T (transposed through LDS) x [v | 1]')
    KA = 144; KD = [80, 96]
    a('s_waitcnt lgkmcnt(0)')
    for k in range(4):
        for sg in range(2):
            for j in range(2):
                a(f'ds_read_b64_tr_b16 {v(KA+8*k+4*sg+2*j,2)}, {v(vPr+sg)} offset:{(16*k+8*j)*80 + 32*sg}')
    a(f'''s_mul_i32 {s(T0)}, {s(sW4)}, 5120
    s_add_u32 {s(T0)}, {s(T0)}, {PHS}
    v_add_u32 v6, {s(T0)}, {v(v16)}
    v_lshlrev_b32 v1, 3, v0
    v_add_u32 v7, {s(T0)}, v1
    s_waitcnt vmcnt({0 if hold[0] else 2*kg}) lgkmcnt(0)''')
    lprio(0)
    for k in range(4):
        for sg in range(2): mfma(a, KD[sg], KA+8*k+4*sg, Fv[0]+4*k, None if k == 0 else KD[sg])
    a.nop(11)
    lprio(1)
    a(f'''ds_write_b128 v6, {v(KD[0],4)} 
    ds_write_b128 v6, {v(KD[0]+4,4)} offset:1024
    ds_write_b64 v7, {v(KD[0]+8,2)} offset:2048
    ds_write_b128 v6, {v(KD[1],4)} offset:2560
    ds_write_b128 v6, {v(KD[1]+4,4)} offset:3584
    s_waitcnt lgkmcnt(0)''')
    lds_arrive(a, C_KVX)
    a(f'''s_mul_i32 {s(T7)}, {s(sTH)}, 2560
    s_lshl_b32 {s(T1)}, {s(sMG)}, 10
    s_add_u32 {s(T7)}, {s(T7)}, {s(T1)}
    s_add_u32 {s(T1)}, {s(T7)}, {PHS}
    v_add_u32 v6, {s(T1)}, {v(v16)}
    v_add_u32 v7, {PHS}, v1
    s_lshl_b32 {s(T0)}, {s(sHA)}, 3
    s_add_u32 {s(T1)}, {s(T0)}, {s(sRB)}
    s_mul_i32 {s(T4)}, {s(T1)}, {KVPS}
    s_add_u32 {s(T4)}, {s(T4)}, {KVP:#x}
    s_add_u32 {s(T5)}, {s(T4)}, {s(T7)}
    s_lshl_b32 {s(T1)}, {s(T1)}, 7
    s_add_u32 {s(T1)}, {s(T1)}, {FL2:#x}''')
    lds_wait(a, 2, C_KVX, 4)
    R = 80
    for w in range(4): a(f'ds_read_b128 {v(R+4*w,4)}, v6 offset:{5120*w}')
    a(f's_cmp_lg_u32 {s(sW4)}, 3\ns_cbranch_scc1 L_kvx')
    for w in range(4): a(f'ds_read_b64 {v(R+16+2*w,2)}, v7 offset:{5120*w + 2048}')
    a('s_waitcnt lgkmcnt(0)')
    for w in range(1, 4): a(f'v_pk_add_f32 {v(R+16,2)}, {v(R+16,2)}, {v(R+16+2*w,2)}')
    a(f'buffer_store_dwordx2 {v(R+16,2)}, v1, {srd(sWS)}, {s(T4)} offen offset:2048 sc1')
    a.label('L_kvx')
    a('s_waitcnt lgkmcnt(0)')
    for w in range(1, 4):
        for k in range(2): a(f'v_pk_add_f32 {v(R+2*k,2)}, {v(R+2*k,2)}, {v(R+4*w+2*k,2)}')
    a(f'buffer_store_dwordx4 {v(R,4)}, {v(v16)}, {srd(sWS)}, {s(T5)} offen sc1')
    a('s_waitcnt vmcnt(0)')
    last_signals(a, 2, C_F2, 4, T1)
    a.stamp(7)
    a.c('================= waves 4-7: kv total, numerator / denominator =================')
    a(f'''s_lshl_b32 {s(T0)}, {s(sHA)}, 3
    s_mul_i32 {s(T4)}, {s(T0)}, {KVPS}
    s_add_u32 {s(T4)}, {s(T4)}, {KVP:#x}
    s_add_u32 {s(T5)}, {s(T4)}, {s(T7)}
    s_lshl_b32 {s(T7)}, {s(sTH)}, 10
    s_lshl_b32 {s(T0)}, {s(sMG)}, 3
    s_add_u32 {s(T7)}, {s(T7)}, {s(T0)}
    s_add_u32 {s(T7)}, {s(T7)}, {KVF}''')
    lds_wait(a, 2, C_F2, 4)
    skip[1] = ()
    bg += mains(sAWO, 0, LATE) + mains(sAWO, 2, LATE + MB) + [('e', 0, 2, LATE + 2*MB, 0), ('e', 2, 3, LATE + 2*MB + EB, 1)]
    dense = hold[0] or kg < 6; hold[0] = False
    for tt in range(2):
        softmax2(D[('q', tt)], PH[('q', tt)], 2 if tt and opt.get('qlo') == 5 else bool(opt.get('qlo', 0) >> tt & 1))
        a(f'v_mov_b32 {v(PH[("q", tt)]+9)}, 0')
    assert not bg
    poll_flags(a, vF2, 2, sl=4)
    for i in range(8):
        a(f'buffer_load_dwordx4 {v(R+4*i,4)}, {v(v16)}, {srd(sWS)}, {s(T5)} offen sc1')
        if i < 7: a(f's_add_u32 {s(T5)}, {s(T5)}, {KVPS}')
    a(f'v_add_u32 v3, {s(T7)}, {v(v16)}\nv_add_u32 v6, {KVF + 2048}, v1\ns_cmp_lg_u32 {s(sW4)}, 3\ns_cbranch_scc1 L_kvs')
    for i in range(8):
        a(f'buffer_load_dwordx2 {v(R+32+2*i,2)}, v1, {srd(sWS)}, {s(T4)} offen offset:2048 sc1')
        if i < 7: a(f's_add_u32 {s(T4)}, {s(T4)}, {KVPS}')
    a('s_waitcnt vmcnt(0)')
    for i in range(1, 8): a(f'v_pk_add_f32 {v(R+32,2)}, {v(R+32,2)}, {v(R+32+2*i,2)}')
    a(f'v_cvt_pk_bf16_f32 v4, {v(R+32)}, {v(R+33)}\nv_mov_b32 v5, 0\nds_write_b64 v6, v[4:5]')
    a.label('L_kvs')
    a('s_waitcnt vmcnt(0)')
    for i in range(1, 8):
        for k in range(2): a(f'v_pk_add_f32 {v(R+2*k,2)}, {v(R+2*k,2)}, {v(R+4*i+2*k,2)}')
    a(f'v_cvt_pk_bf16_f32 v10, {v(R)}, {v(R+1)}\nv_cvt_pk_bf16_f32 v11, {v(R+2)}, {v(R+3)}\nds_write_b64 v3, v[10:11]\ns_waitcnt lgkmcnt(0)')
    lds_arrive(a, C_KVF)
    lds_wait(a, 2, C_KVF, 4)
    KF = 144
    a(f'''v_add_u32 v3, {KVF}, {v(v16)}
    ds_read_b64 {v(KF+8,2)}, v6
    ds_read_b128 {v(KF,4)}, v3
    ds_read_b128 {v(KF+4,4)}, v3 offset:1024
    s_mov_b32 {s(T0)}, {s(sTl)}''')
    o_addr(a, sHA, OAM, OAL)
    a.c('the o_B rows of the same tiles get the marker; the flag for o_A below covers these stores too')
    for i in range(4): a(f'v_mov_b32 {v(160+i)}, -1')
    for t in range(2):
        a(f's_add_u32 {s(T0)}, {s(T2+t)}, {OBM - OAM:#x}\nbuffer_store_dwordx4 v[160:163], {v(v16)}, {srd(sWS)}, {s(T0)} offen sc1')
    a('s_mov_b32 exec_hi, 0')
    for t in range(2):
        a(f's_add_u32 {s(T0)}, {s(T4+t)}, {OBL - OAL:#x}\nbuffer_store_dword v160, {v(vQL)}, {srd(sWS)}, {s(T0)} offen sc1')
    a('s_mov_b32 exec_hi, -1')
    a('s_waitcnt lgkmcnt(0)')
    ND = [80, 96]
    lprio(0)
    for tt in range(2): mfma(a, ND[tt], KF+8, PH[('q', tt)]+8, None, '8')
    a.nop(9)
    for tt in range(2): mfma(a, ND[tt], KF, PH[('q', tt)], ND[tt])
    for tt in range(2): mfma(a, ND[tt], KF+4, PH[('q', tt)]+4, ND[tt])
    a.nop(11)
    lprio(1)
    o_publish(a, ND, [112, 120], True)
    a(f's_lshr_b32 {s(T6)}, {s(sTl)}, 1')
    flag_addr(a, T1, T6, sHA, 5, FL3)
    wave_signals(a, 2, T1)
    a.stamp(8)
    a.c('================= waves 4-7: out projection of A (operands first, MFMAs after the attention) =================')
    W, O1, O2 = 16, 124, 160
    X, Y = 4, 10
    sM, sM2, sL = 59, 60, 61
    a(f's_or_b32 {s(T6)}, {s(sXa)}, {s(sXb)}')
    op_read_w(a, W, vXs, T6)
    a(f'''    s_lshl_b32 {s(T1)}, {s(sOT)}, 1
    s_add_u32 {s(T5)}, {s(sTH)}, {s(T1)}
    s_lshl_b32 {s(T0)}, {s(T5)}, 5
    s_lshl_b32 {s(T1)}, {s(sMG)}, 4
    s_add_u32 {s(T7)}, {s(T0)}, {s(T1)}
    s_lshl_b32 {s(sM)}, {s(T7)}, 10
    s_add_u32 {s(sM)}, {s(sM)}, {OAM:#x}
    s_add_u32 {s(sM2)}, {s(sM)}, 4096
    s_lshl_b32 {s(sL)}, {s(T7)}, 7
    s_add_u32 {s(sL)}, {s(sL)}, {OAL:#x}
    s_waitcnt lgkmcnt(0)''')
    lds_arrive(a, C_W1)
    lds_wait(a, 2, C_W1, 4)
    bg += mains(sBWO, 1, LATE) + mains(sBWO, 2, LATE + MB) + mains(sBWO, 3, LATE + 2*MB)
    bgdma(); bgdma()
    for i in range(6): a((f'v_mov_b32 {v(X+i)}, {v(vXs+i)}\n' if i < 4 else '') + f'v_subrev_u32 {v(Y+i)}, {LATE - M_A}, {v(vXs+i)}')
    final_state(a)
    bgdma(); bgdma()
    poll_flags(a, vF3, 2, sl=2)
    a.c('short batches keep the memory queue of the CU free for the attention waves')
    for O in (O1, O2):
        for h in range(2):
            for i in range(4): a(f'buffer_load_dwordx4 {v(O+16*h+4*i,4)}, {v(v16)}, {srd(sWS)}, {s(sM2 if h else sM)} offen offset:{1024*i} sc1')
            if h:
                for i in range(4): a(f'buffer_load_dword {v(O+32+i)}, {v(vFol)}, {srd(sWS)}, {s(sL)} offen offset:{128*i} sc1')
                bgdma()
            if h or not opt.get('ob2', 1): a(f's_waitcnt vmcnt({opt.get("othr", 2)})')
        if O == O1: a(f's_add_u32 {s(sM)}, {s(sM)}, 8192\ns_add_u32 {s(sM2)}, {s(sM2)}, 8192\ns_add_u32 {s(sL)}, {s(sL)}, 1024')
    assert not bg
    a('s_waitcnt vmcnt(0)')
    a.stamp(9)
    pre = opt.get('pre', 0)
    mid = opt.get('mid', 1)
    a('s_setprio 0')
    for ps, (O, nxt) in enumerate(((O1, Y), (O2, X))):
        if ps == 1:
            a('s_waitcnt lgkmcnt(0)')
            lds_arrive(a, C_W3)
        for st in range(9):
            if 9*ps + st == pre: a(f's_barrier\ns_setprio {opt.get("prio2", 0)}')
            if opt.get('p4') and 9*ps + st in (pre, 9): a.stamp(5 if ps == 0 else 4)
            rd = op_w_reads(W, nxt, st - 1, MB*ps) if st else [''] * 4
            for T in range(2):
                mfma(a, ACA[T], W + 8*st + 4*T, O + 4*st, None if (ps == 0 and st == 0) else ACA[T])
                a(rd[2*T]); a(rd[2*T+1])
            k = 9*ps + st
            if k == opt.get('spec', 99):
                flag_ld(a); half_ld(a, 0); half_ld(a, 1); left_ld(a)
                a(f's_mov_b32 {s(sA)}, 1\ns_mov_b32 {s(sB_)}, 1\ns_mov_b32 {s(sC)}, 1')
            if k == 14 and opt.get('spec', 99) > 17: flag_ld(a)
        a('\n'.join(op_w_reads(W, nxt, 8, MB*ps)))
        lb = a.new('xa')
        a(f's_cmp_eq_u32 {s(sXa)}, 0\ns_cbranch_scc1 {lb}')
        for st in range(9):
            mfma(a, ACA[2], W + 72 + 4*st, O + 4*st, None if (ps == 0 and st == 0) else ACA[2])
            if ps == 0 and st: a('\n'.join(op_e_reads(W, Y, st - 1)))
        if ps == 0: a('\n'.join(op_e_reads(W, Y, 8)))
        a.label(lb)
    if opt.get('p4'): a.stamp(3)
    a('s_setprio 0')
    lds_wait(a, 2, C_W3, 4, sl=0)
    if opt.get('nojq'): lds_arrive(a, C_WB)
    a(f's_mul_i32 {s(T0)}, {s(sW4)}, {WSTR}\ns_add_u32 {s(T0)}, {s(T0)}, {ARED}\nv_add_u32 v1, {s(T0)}, {v(v16)}')
    for q in range(8): a(f'ds_write_b128 v1, {v(ACA[0]+4*q,4)} offset:{QS*q}')
    a(f's_cmp_eq_u32 {s(sXa)}, 0\ns_cbranch_scc1 L_anx\ns_mul_i32 {s(T0)}, {s(sMG)}, {4*QS}\ns_add_u32 {s(T0)}, {s(T0)}, {EXR}\nv_add_u32 v1, {s(T0)}, {v(v16)}')
    for q in range(4): a(f'ds_write_b128 v1, {v(ACA[2]+4*q,4)} offset:{QS*q}')
    a.label('L_anx')
    a.stamp(2)

HEADER = '''; Fused hedgehog linear attention (A) + softmax MHA (B), one persistent launch of 256 workgroups.
; kernarg: A_x A_wqkv A_w_phi A_wo B_x B_wqkv B_wo out debug ws (8-byte pointers, in that order)
; @launch grid=(256,1,1) block=(512,1,1) lds=%d
.amdgcn_target "amdgcn-amd-amdhsa--gfx950"
.text
.globl %s_kernel
.p2align 8
.type %s_kernel,@function
%s_kernel:
''' % (LDS_BYTES, NAME, NAME, NAME)
FOOTER = '''.section .rodata,"a"
.p2align 6
.amdhsa_kernel %s_kernel
  .amdhsa_next_free_vgpr 256
  .amdhsa_next_free_sgpr 102
  .amdhsa_accum_offset 256
  .amdhsa_group_segment_fixed_size 0
  .amdhsa_kernarg_size 80
  .amdhsa_user_sgpr_count 2
  .amdhsa_user_sgpr_kernarg_segment_ptr 1
  .amdhsa_system_sgpr_workgroup_id_x 1
.end_amdhsa_kernel
''' % NAME

OPT = {}
def generate(diag=False, **opt):
    opt = {**dict(rot=0, thr=3, sig=12, ldp=1, qlo=3, w1=2, prio2=1, mid=0, ob2=0, phij=-1, sched=2, nojq=1, sl2=1, sig2=12, klo=1), **opt}
    OPT.clear(); OPT.update(opt)
    a = Asm(diag)
    prologue(a, opt)
    a_chain(a, opt)
    final(a)
    body = a.text()
    bad = lint(body)
    for x in bad: print(f"HAZARD line {x[0]} -> {x[1]}: {x[2]} need {x[3]} have {x[4]}\n    {x[5]}\n    {x[6]}", file=sys.stderr)
    return HEADER + (f'    ; stamps={STAMPS + (opt.get("wsoff", 0) << 20):#x}\n' if diag else '') + body + FOOTER, len(bad)

if __name__ == '__main__':
    import argparse
    ap = argparse.ArgumentParser()
    ap.add_argument('-o', default=f'cdna_kernels/{NAME}.s')
    ap.add_argument('--diag', action='store_true')
    ap.add_argument('--opt', action='append', default=[])
    g = ap.parse_args()
    opt = {}
    for o in g.opt:
        k, val = o.split('='); opt[k] = int(val)
    text, nbad = generate(g.diag, **opt)
    open(g.o, 'w').write(text)
    print(f'wrote {g.o}: {len(text)} bytes, {nbad} hazards')
```

```python
import sys, struct
from lint import lint

NAME = 'concat_heads__linear_kernel_hedgehog__softmax_full_mha__prompt'
OOB = 0x40000000
QM, QL, KV = 0x0, 0x200000, 0x240000
REC = 2560; HREC = 64 * REC
VLOFF, ONEOFF, KLOFF = 2048, 2176, 2304
AOFF = 0x740000
OAM, OAL, OBM, OBL = 0xE80000, 0x1080000, 0x10C0000, 0x12C0000
KVP = 0x1300000; KVPS = 4608
FL1, FL1A, FL2, FL3, FL4 = 0x1420000, 0x1428000, 0x1430000, 0x1440000, 0x1460000
EPOCH = 0x1438000
STAMPS = 0x1500000
WS_BYTES = 0x1800000
XA = 0
WS0 = 28672
MB, EB = 18432, 9216
M_A, X_A, M_C, LATE = WS0, WS0 + 2*MB, WS0 + 2*MB + 2*EB, WS0 + 3*MB + 2*EB
PHS = LATE
EAX = 131072
CNT = LATE + 3*MB
KVF = CNT + 256
LDS_BYTES = 163840
C_F1, C_F1A, C_KVX, C_F2, C_KVF, C_F3, C_OPA, C_F4, C_BAD, C_W1, C_TOK, C_G, C_W3, C_WB = [4 * i for i in range(14)]
sBX, sBW, sAX, sAW, sPHI, sAWO, sBWO, sOUT, sDBG, sWS = 4, 8, 12, 16, 20, 24, 28, 32, 36, 40
sWave, sCT, sRT, sH = 44, 45, 46, 47
T0, T1, T2, T3, T4, T5, T6, T7 = range(48, 56)
sTab, sDoSc, sIdle = 64, 66, 67
sS0, sOdd = 63, 62
sQB, sRot, sFree, sOT, sOC, sTok, sLoc, sXcd = 68, 69, 70, 71, 72, 73, 74, 75
sHA, sRB = sH, sQB
sSpin, sTH, sMG, sTile = 76, 77, 78, 79
SSTAMP = 80
sW4, sImg, sXB, sWB, sLh2, sLt2 = 96, 97, 98, 99, 100, 101
v16, vQL, vCnt, vOne, vZero, vPoll, vTok = 244, 245, 246, 247, 248, 249, 250
vVf = 252
EA, ES = 72, 84
vWO = 224
vX, vW, XAc, WAc, XAr, WAr, vTab = 228, 232, 24, 28, 32, 36, 39
ACC = {('a', 0): 96, ('a', 1): 112, ('b', 0): 128, ('b', 1): 144}
FS = [176, 192, 40, 56]
def m_of(sl): return 9*(sl >> 2) + 2*(sl & 1) + 5*((sl >> 1) & 1)
def ct_table(ct):
    lo = 32*ct; s0 = next(x for x in range(200) if m_of(x) >= lo)
    used = {m_of(x) + d for x in range(s0, s0 + 12) for d in (0, 1)}
    misc = [m for m in range(lo, lo + 32) if m not in used]
    slots = [m_of(x) for x in range(s0 + 12, s0 + 14) if m_of(x) + 1 < lo + 32]
    rest = [m for m in misc if m not in slots and m - 1 not in slots]
    odd = len(slots) == 1
    order = [slots[0], rest[0], slots[0] + 1, rest[1]] + rest[2:] if odd else [slots[0], slots[1], slots[0] + 1, slots[1] + 1] + rest
    assert sorted(order) == misc
    c = [m - lo for m in order]
    return sum(x << (5*i) for i, x in enumerate(c[:6])), c[6] | c[7] << 5 | s0 << 10 | odd << 17

LOG2E = 1.4426950408889634
def f2u(x): return struct.unpack('<I', struct.pack('<f', x))[0]
QSCALE = f2u(18 ** -0.5 * LOG2E)

def v(a, n=1): return f'v{a}' if n == 1 else f'v[{a}:{a+n-1}]'
def s(a, n=1): return f's{a}' if n == 1 else f's[{a}:{a+n-1}]'
def srd(a): return s(a, 4)

import re
def unpack(x):
    m = re.match(r'v_pk_(add_f32|mul_f32|mov_b32) ([vs])\[(\d+):\d+\], ([vs])\[(\d+):\d+\], ([vs])\[(\d+):\d+\](.*)', x)
    op, _, d, k0, a0, k1, a1, mod = m.groups(); d, a0, a1 = int(d), int(a0), int(a1); mod = mod.strip()
    if op == 'mov_b32':
        assert mod == 'op_sel:[0,1]'
        return [f'v_mov_b32 v{d}, v{a0}', f'v_mov_b32 v{d+1}, v{a1+1}']
    assert mod in ('', 'op_sel_hi:[1,0]') and k0 == 'v'
    h = 0 if mod else 1
    return [f'v_{op} v{d}, {k1}{a1}, v{a0}', f'v_{op} v{d+1}, {k1}{a1+h}, v{a0+1}']

class Asm:
    def __init__(self, diag=False):
        self.L = []; self.uid = 0; self.diag = diag; self.lock = False; self.nopk = False; self.late = []; self.early = []
    def __call__(self, t):
        for x in t.split('\n'):
            x = x.strip()
            if not x: continue
            if self.nopk and x.startswith('v_pk_'): self.L += ['    ' + y for y in unpack(x)]
            else: self.L.append('    ' + x)
    def label(self, n): self.L.append(n + ':')
    def c(self, t): self.L.append('    ; ' + t)
    def new(self, p):
        self.uid += 1; return f'L_{p}{self.uid}'
    def nop(self, n):
        while n > 0:
            k = min(n, 16); self(f's_nop {k-1}'); n -= k
    def stamp(self, k):
        if self.diag and not self.lock:
            self(f's_memrealtime {s(94,2)}\ns_waitcnt lgkmcnt(0)\ns_mov_b32 {s(SSTAMP+k)}, s94')
    def lstamp(self, sreg, base=0):
        if self.diag:
            self(f's_memrealtime s[94:95]\ns_add_u32 s93, {sreg}, {base}\ns_waitcnt lgkmcnt(0)\ns_mov_b32 m0, s93\nv_writelane_b32 v175, s94, m0')
    def cyc0(self):
        if self.diag: self('s_memtime s[94:95]\ns_waitcnt lgkmcnt(0)\ns_mov_b32 s93, s94')
    def cyc1(self):
        if self.diag: self('s_memtime s[94:95]\ns_waitcnt lgkmcnt(0)\ns_sub_u32 s93, s94, s93')
    def text(self): return '\n'.join(self.L) + '\n'

class VM:
    def __init__(self): self.q = []
    def add(self, tag, n=1): self.q += [tag] * n
    def after(self, tag):
        i = max(k for k, t in enumerate(self.q) if t == tag)
        return len(self.q) - 1 - i

def mfma_s(d, x, y, c=None, kind='16'):
    op = {'16': 'v_mfma_f32_32x32x16_bf16', '8': 'v_mfma_f32_32x32x8_bf16', '2b': 'v_mfma_f32_32x32x4_2b_bf16'}[kind]
    nd = 32 if kind == '2b' else 16; na = 4 if kind == '16' else 2
    return f'{op} {v(d,nd)}, {v(x,na)}, {v(y,na)}, {"0" if c is None else v(c,nd)}'
def mfma(a, *k, **kw): a(mfma_s(*k, **kw))

def opol(k): return ['', ' sc1', ' nt', ' sc0 sc1', ' sc1 nt'][OPT.get(k, 0)]

def cvt8(a, src, dst):
    for i in range(4): a(f'v_cvt_pk_bf16_f32 {v(dst+i)}, {v(src+2*i)}, {v(src+2*i+1)}')

SRDS = {sAX: (0, 2048*1152), sAW: (8, 576*3456), sPHI: (16, 32*648), sAWO: (24, 576*1152), sBX: (32, 2048*1152),
        sBW: (40, 576*3456), sBWO: (48, 576*1152), sOUT: (56, 2048*2304), sDBG: (64, 256), sWS: (72, WS_BYTES)}
def ld_srd(a, rs):
    for r in rs: a(f's_load_dwordx2 {s(r,2)}, s[0:1], {SRDS[r][0]}')
def mk_srd(a, rs):
    for r in rs:
        if r == sWS and OPT.get('wsoff'): a(f's_waitcnt lgkmcnt(0)\ns_add_u32 {s(r)}, {s(r)}, {OPT["wsoff"] << 20:#x}\ns_addc_u32 {s(r+1)}, {s(r+1)}, 0')
    for r in rs: a(f's_mov_b32 {s(r+2)}, {SRDS[r][1]:#x}\ns_mov_b32 {s(r+3)}, 0x20000')

def spin_tail(a, top, sl=1):
    a((f's_sleep {sl}\n' if sl else '') + f's_sub_u32 {s(sSpin)}, {s(sSpin)}, 1\ns_cbranch_scc0 {top}\ns_endpgm')

def token_issue(a):
    a(f'buffer_load_dwordx2 {v(vTokL,2)}, {v(vZero)}, {srd(sDBG)}, 0 offen sc1')
def token_check(a):
    top = a.new('tok'); done = a.new('tokd')
    a.label(top)
    a(f'v_readfirstlane_b32 {s(T0)}, {v(vTokL+1)}\nv_readfirstlane_b32 {s(sTok)}, {v(vTokL)}\ns_cmp_lg_u32 {s(T0)}, 0\ns_cbranch_scc1 {done}')
    token_issue(a)
    a('s_waitcnt vmcnt(0)')
    spin_tail(a, top)
    a.label(done)

def poll_flags(a, vaddr, vt, preloaded=False, sl=1):
    top = a.new('poll'); done = a.new('polld'); chk = a.new('pollc')
    if preloaded: a(f's_branch {chk}')
    a.label(top)
    a(f'buffer_load_dword {v(vt)}, {v(vaddr)}, {srd(sWS)}, 0 offen sc1\ns_waitcnt vmcnt(0)')
    a.label(chk)
    a(f'v_cmp_ne_u32 vcc, {s(sTok)}, {v(vt)}\ns_cbranch_vccz {done}')
    spin_tail(a, top, sl)
    a.label(done)

def last_signals(a, vt, ctr, n, sflag):
    skip = a.new('nsig')
    a(f's_mov_b64 exec, 1\nds_add_rtn_u32 {v(vt)}, {v(vCnt)}, {v(vOne)} offset:{ctr}\ns_waitcnt lgkmcnt(0)')
    a(f'v_readfirstlane_b32 {s(T0)}, {v(vt)}\nv_mov_b32 {v(vt)}, {s(sflag)}\nv_mov_b32 {v(vt+1)}, {s(sTok)}\ns_cmp_lg_u32 {s(T0)}, {n-1}\ns_cbranch_scc1 {skip}')
    a(f'buffer_store_dword {v(vt+1)}, {v(vt)}, {srd(sWS)}, 0 offen sc1')
    a.label(skip)
    a('s_mov_b64 exec, -1')

def wave_signals(a, vt, sflag):
    a(f'v_mov_b32 {v(vt)}, {s(sflag)}\nv_mov_b32 {v(vt+1)}, {s(sTok)}\ns_waitcnt vmcnt(0)\ns_mov_b64 exec, 1')
    a(f'buffer_store_dword {v(vt+1)}, {v(vt)}, {srd(sWS)}, 0 offen sc1\ns_mov_b64 exec, -1')

def lds_arrive(a, ctr):
    a(f's_mov_b64 exec, 1\nds_add_u32 {v(vCnt)}, {v(vOne)} offset:{ctr}\ns_mov_b64 exec, -1')

def lds_wait(a, vt, ctr, n, sl=2):
    top = a.new('lw'); done = a.new('lwd')
    a.label(top)
    a(f'ds_read_b32 {v(vt)}, {v(vCnt)} offset:{ctr}\ns_waitcnt lgkmcnt(0)\nv_readfirstlane_b32 {s(T0)}, {v(vt)}\ns_cmp_ge_u32 {s(T0)}, {n}\ns_cbranch_scc1 {done}')
    spin_tail(a, top, sl)
    a.label(done)

def flag_addr(a, dst, shi, slo, sh, base):
    a(f's_lshl_b32 {s(dst)}, {s(shi)}, {sh}\ns_add_u32 {s(dst)}, {s(dst)}, {s(slo)}\ns_lshl_b32 {s(dst)}, {s(dst)}, 7\ns_add_u32 {s(dst)}, {s(dst)}, {base:#x}')

def kl_const(a, dst, shead):
    a(f's_bitcmp1_b32 {s(shead)}, 0\ns_mov_b32 {s(dst)}, {HREC + KLOFF}\ns_cselect_b32 {s(dst)}, {KLOFF + 4}, {s(dst)}')

def producer_ct(a, d, ty, last, shead, t):
    a(f'''s_lshr_b32 {s(T0)}, {s(shead)}, 1
    s_mul_i32 {s(T0)}, {s(T0)}, 36
    s_and_b32 {s(T1)}, {s(shead)}, 1
    s_lshl_b32 {s(T1)}, {s(T1)}, 4
    s_add_u32 {s(T0)}, {s(T0)}, {s(T1)}
    v_mul_u32_u24 {v(d)}, 576, {v(ty)}
    v_mul_u32_u24 {v(t)}, 19, {v(last)}
    v_add3_u32 {v(d)}, {v(d)}, {v(t)}, {s(T0)}
    v_lshrrev_b32 {v(d)}, 7, {v(d)}''')

def issue_chunk(a, j):
    if OPT.get('nodma') and j > 1: return
    slot = (j % 4) * 32768; c = j % 9
    if OPT.get('samek'): c = 0
    X, W = (sBX, sBW) if j < 9 else (sAX, sAW)
    nx = ' nt' if OPT.get('nt', 0) & 1 else ''; nw = ' nt' if OPT.get('nt', 0) & 2 else ''
    if OPT.get('rot', 0) and j < 9:
        a(f'''s_add_u32 vcc_lo, {s(sRot)}, {c}
        s_cmp_ge_u32 vcc_lo, 9
        s_cselect_b32 vcc_hi, 9, 0
        s_sub_u32 vcc_lo, vcc_lo, vcc_hi
        s_mul_i32 vcc_hi, vcc_lo, {64*3456}
        s_add_u32 vcc_hi, vcc_hi, {s(sWB)}
        s_lshl_b32 vcc_lo, vcc_lo, 7
        s_add_u32 vcc_lo, vcc_lo, {s(sXB)}
        s_lshl_b32 s3, {s(sW4)}, 12
        s_add_u32 m0, s3, {slot}
        s_nop 0''')
    else:
        a(f's_lshl_b32 s3, {s(sW4)}, 12\ns_add_u32 m0, s3, {slot}\ns_add_u32 vcc_lo, {s(sXB)}, {128*c}\ns_add_u32 vcc_hi, {s(sWB)}, {64*3456*c}')
    for i in range(4): a(f'buffer_load_dwordx4 {v(vX+i)}, {srd(X)}, vcc_lo offen offset:{1024*i}{nx} lds')
    a(f's_add_u32 m0, s3, {slot + 16384}\ns_nop 0')
    for i in range(4): a(f'buffer_load_dwordx4 {v(vW+i)}, {srd(W)}, vcc_hi offen offset:{1024*i}{nw} lds')

def su_loader(a):
    a.c('loader lane offsets: x rows (xor-swizzled 16-byte pieces), w rows (16 pieces, rotated by four per row)')
    a(f'''v_lshrrev_b32 v1, 3, v0
    v_and_b32 v2, 7, v0
    v_lshrrev_b32 v3, 1, v1
    v_xor_b32 v2, v2, v3
    v_mul_u32_u24 v1, 1152, v1
    v_lshl_add_u32 {v(vX)}, v2, 4, v1
    v_xor_b32 v2, 4, v2
    v_lshl_add_u32 {v(vX+1)}, v2, 4, v1
    v_add_u32 {v(vX+1)}, {8*1152-1024}, {v(vX+1)}
    v_add_u32 {v(vX+2)}, {2*(8*1152-1024)}, {v(vX)}
    v_add_u32 {v(vX+3)}, {2*(8*1152-1024)}, {v(vX+1)}
    v_lshrrev_b32 v1, 4, v0
    v_lshlrev_b32 v2, 2, v1
    v_sub_u32 v2, v0, v2
    v_and_b32 v2, 15, v2
    v_mul_u32_u24 v1, 3456, v1
    v_lshl_add_u32 v5, v2, 4, v1
    s_cmp_eq_u32 {s(sCT)}, 13
    s_cselect_b32 s3, 8, 16
    v_cmp_gt_u32 vcc, s3, v2
    v_mov_b32 v7, {OOB:#x}
    s_nop 0
    v_cndmask_b32 {v(vW)}, v7, v5, vcc''')
    for i in range(1, 4): a(f'v_add_u32 {v(vW+i)}, {i*(4*3456-1024)}, {v(vW)}')
    su_loader_s(a)

def su_loader_s(a):
    a(f'''s_lshl_b32 {s(sXB)}, {s(sRT)}, 2
    s_add_u32 {s(sXB)}, {s(sXB)}, {s(sW4)}
    s_mul_i32 {s(sXB)}, {s(sXB)}, {32*1152}
    s_mul_i32 {s(sWB)}, {s(sW4)}, {16*3456}
    s_lshl_b32 s3, {s(sCT)}, 8
    s_add_u32 {s(sWB)}, {s(sWB)}, s3''')

def su_ids2(a):
    a(f'''s_lshl_b32 s3, {s(sXcd)}, 2
    s_and_b32 {s(sH)}, {s(sLoc)}, 3
    s_add_u32 {s(sH)}, {s(sH)}, s3
    s_lshr_b32 {s(sQB)}, {s(sLoc)}, 2
    s_lshr_b32 {s(sOT)}, {s(sLoc)}, 3
    s_add_u32 {s(sOT)}, {s(sOT)}, s3
    s_and_b32 {s(sOC)}, {s(sLoc)}, 7
    s_mov_b32 {s(sSpin)}, 0x40000
    s_and_b32 {s(sTH)}, {s(sWave)}, 1
    s_lshr_b32 {s(sMG)}, {s(sW4)}, 1
    s_cmp_lt_u32 {s(sWave)}, 4
    s_cselect_b32 {s(sImg)}, 0, {AOFF:#x}
    v_mov_b32 {v(vZero)}, 0
    v_mov_b32 {v(vCnt)}, {CNT}
    v_mov_b32 {v(vOne)}, 1''')

def su_token(a, part):
    lb = a.new('notok')
    a(f's_or_b32 s3, s2, {s(sWave)}\ns_cmp_lg_u32 s3, 0\ns_cbranch_scc1 {lb}\ns_mov_b32 {s(T0)}, {EPOCH:#x}')
    if part == 0:
        a(f'buffer_load_dword v10, {v(vZero)}, {srd(sWS)}, {s(T0)} offen sc1')
    else:
        newer = max(0, -(-(198 - 22*OPT.get('pfb', 9)) // 112))
        a(f'''s_mov_b32 {s(T1)}, 1664525
        s_waitcnt vmcnt({newer})
        v_mul_lo_u32 v6, v10, {s(T1)}
        v_add_u32 v6, 0x3c6ef35f, v6
        v_mov_b32 v7, 1
        s_mov_b64 exec, 1
        buffer_store_dwordx2 v[6:7], {v(vZero)}, {srd(sDBG)}, 0 offen sc1
        buffer_store_dword v6, {v(vZero)}, {srd(sWS)}, {s(T0)} offen sc1
        s_mov_b64 exec, -1''')
    a.label(lb)
    if part == 0:
        a(f's_cmp_lg_u32 {s(sWave)}, 1\ns_cbranch_scc1 L_nocnt\nv_lshlrev_b32 v1, 2, v0\nv_add_u32 v1, {CNT}, v1\nds_write_b32 v1, {v(vZero)}')
        a.label('L_nocnt')

def su_gaddr(a):
    lb = a.new('mg0')
    a.c('gemm fragment addresses')
    a(f'''v_and_b32 v1, 31, v0
    v_lshrrev_b32 v2, 5, v0
    v_bfe_u32 v3, v0, 1, 3
    v_xor_b32 v3, v3, v2
    s_lshl_b32 s3, {s(sTH)}, 13
    v_lshl_add_u32 v4, v1, 7, s3''')
    for k in range(4):
        a(f'v_xor_b32 v5, {2*k}, v3\nv_lshl_add_u32 {v(XAc+k)}, v5, 4, v4')
    a.c('which four-column chunk each lane group reads for the two 32-column tiles of this wave')
    a(f'''v_bfe_u32 v3, v0, 2, 2
    v_and_b32 v4, 3, v0
    v_bfe_u32 v5, v0, 4, 1
    v_lshl_add_u32 v4, v5, 2, v4
    v_lshl_add_u32 v5, v2, 3, v3
    v_lshlrev_b32 v5, 8, v5
    v_add_u32 v5, 16384, v5
    v_lshlrev_b32 v3, 2, v3
    s_lshl_b32 s3, {s(sMG)}, 4''')
    for u in range(2): a(f'v_add_u32 {v(WAc+u)}, s3, v4' + (f'\nv_add_u32 {v(WAc+u)}, 8, {v(WAc+u)}' if u else ''))
    a(f's_cmp_ge_u32 {s(sCT)}, 9\ns_cbranch_scc1 {lb}')
    a(f'''v_lshrrev_b32 v6, 2, v4
    v_and_b32 v7, 1, v4
    v_lshl_add_u32 v6, v6, 1, v7
    s_lshl_b32 s3, {s(sMG)}, 3
    s_add_u32 s3, s3, {s(sS0)}
    v_add_u32 v6, s3, v6
    v_lshrrev_b32 v7, 2, v6
    v_mul_u32_u24 v7, 9, v7
    v_and_b32 v1, 1, v6
    v_lshl_add_u32 v7, v1, 1, v7
    v_bfe_u32 v1, v6, 1, 1
    v_mul_u32_u24 v1, 5, v1
    v_bfe_u32 v6, v4, 1, 1
    v_add3_u32 v7, v7, v1, v6
    s_lshl_b32 s3, {s(sCT)}, 5
    v_subrev_u32 {v(WAc)}, s3, v7
    v_add_u32 {v(WAc+1)}, 9, {v(WAc)}
    s_cmp_eq_u32 {s(sMG)}, 0
    s_cbranch_scc1 {lb}''')
    misc_chunk(a, WAc+1, 4, 6)
    a.label(lb)
    for u in range(2):
        a(f'''v_lshrrev_b32 v6, 1, {v(WAc+u)}
        v_add_u32 v6, v6, v3
        v_and_b32 v6, 15, v6
        v_lshl_add_u32 v6, v6, 4, v5
        v_and_b32 {v(WAc+u)}, 1, {v(WAc+u)}
        v_lshl_add_u32 {v(WAc+u)}, {v(WAc+u)}, 3, v6''')

def misc_chunk(a, d, c8, t):
    a(f'''v_mul_u32_u24 {v(d)}, 5, {v(c8)}
    v_lshrrev_b64 {v(t,2)}, {v(d)}, {s(sTab,2)}
    v_and_b32 {v(d)}, 31, {v(t)}''')

def su_tab(a):
    t = [ct_table(ct) for ct in range(9)]
    w = [(x | y << 30) for x, y in t]
    a(f's_mov_b32 {s(sTab)}, {w[0] & 0xffffffff:#x}\ns_mov_b32 {s(sTab+1)}, {w[0] >> 32:#x}')
    for ct in range(1, 9): a(f's_cmp_eq_u32 {s(sCT)}, {ct}\ns_cselect_b32 {s(sTab)}, {w[ct] & 0xffffffff:#x}, {s(sTab)}\ns_cselect_b32 {s(sTab+1)}, {w[ct] >> 32:#x}, {s(sTab+1)}')
    a(f'''s_bfe_u32 {s(sS0)}, {s(sTab+1)}, {8 | 7 << 16:#x}
    s_lshl_b32 {s(sTile)}, {s(sRT)}, 2
    s_lshl_b32 s3, {s(sTH)}, 1
    s_add_u32 {s(sTile)}, {s(sTile)}, s3
    s_bfe_u32 {s(sOdd)}, {s(sTab+1)}, {15 | 1 << 16:#x}
    s_cmp_le_u32 {s(sCT)}, 4
    s_cselect_b32 {s(sDoSc)}, 1, 0
    s_cmp_eq_u32 {s(sImg)}, 0
    s_cselect_b32 {s(sDoSc)}, {s(sDoSc)}, 0
    s_cmp_ge_u32 {s(sLoc)}, 28
    s_cselect_b32 {s(sIdle)}, 1, 0
    v_lshlrev_b32 {v(v16)}, 4, v0
    v_lshlrev_b32 {v(vQL)}, 2, v0''')

def su_epi(a, o, stage=None):
    if stage == 1:
        for k in range(6):
            a(f'ds_bpermute_b32 {v(EA+2*k)}, v2, v6 offset:{8*k}\nds_bpermute_b32 {v(EA+2*k+1)}, v2, v7 offset:{8*k}\nds_bpermute_b32 {v(ES+k)}, v2, v9 offset:{8*k}')
        return
    if stage == 2:
        for k in range(6):
            a(f'''v_and_b32 v3, 31, {v(EA+2*k+1)}
            v_mad_u32_u24 {v(EA+2*k)}, v1, v3, {v(EA+2*k)}
            v_sub_u32 v3, {v(EA+2*k+1)}, v3
            v_add_u32 {v(EA+2*k+1)}, {v(EA+2*k)}, v3''')
        return
    a(f'v_and_b32 v1, 31, v0\nv_lshrrev_b32 v2, 5, v0\ns_mul_i32 {s(T1)}, {s(sTile)}, {REC}')
    if o == 'S':
        a(f's_add_u32 {s(T1)}, {s(T1)}, {KV:#x}\ns_sub_u32 {s(T2)}, {s(sCT)}, 9\ns_lshl_b32 {s(T2)}, {s(T2)}, 7')
        for u in range(2): su_epi_v(a, u)
        for r in range(EA + 5, EA + 12): a(f'v_mov_b32 {v(r)}, v7')
        return
    a.c('lane i < 12 works out where item i goes: a 16-byte slot (first chunk) or a single chunk of the mixed tile')
    a(f'''s_lshl_b32 s3, {s(sMG)}, 3
    s_add_u32 s3, s3, {s(sS0)}
    v_add_u32 v3, s3, v1
    v_lshrrev_b32 v4, 2, v3
    v_mul_u32_u24 v4, 9, v4
    v_and_b32 v5, 1, v3
    v_lshl_add_u32 v4, v5, 1, v4
    v_bfe_u32 v5, v3, 1, 1
    v_mad_u32_u24 v8, v5, 5, v4
    v_subrev_u32 v3, 4, v1''')
    misc_chunk(a, 4, 3, 6)
    a(f'''s_lshl_b32 {s(T4)}, {s(sCT)}, 5
    s_cmp_eq_u32 {s(sMG)}, 0
    s_cselect_b32 s3, 32, 4
    v_cmp_gt_u32 vcc, s3, v1
    v_add_u32 v4, {s(T4)}, v4
    s_add_u32 {s(T1)}, {s(T1)}, {(KV - 32*HREC) & 0xffffffff:#x}
    v_cndmask_b32 v4, v4, v8, vcc
    v_mul_u32_u24 v3, 7282, v4
    v_lshrrev_b32 v3, 16, v3
    v_mul_u32_u24 v5, 9, v3
    v_sub_u32 v8, v4, v5
    v_cmp_lt_u32 vcc, 4, v8
    v_lshlrev_b32 v3, 1, v3
    v_subrev_u32 v9, 5, v8
    v_addc_co_u32 v4, vcc, 0, v3, vcc
    v_min_u32 v9, v8, v9
    s_lshl_b32 {s(T0)}, {s(sTile)}, 10
    v_lshl_add_u32 v6, v4, 16, {s(T0)}
    v_mul_u32_u24 v5, {HREC}, v4
    v_cmp_gt_u32 vcc, 32, v4
    v_add_u32 v5, {s(T1)}, v5
    s_lshl_b32 {s(T2)}, {s(sTile)}, 8
    s_add_u32 {s(T2)}, {s(T2)}, {QL:#x}
    v_cndmask_b32 v6, v5, v6, vcc
    v_lshrrev_b32 v4, 1, v9
    v_lshl_add_u32 v6, v4, 9, v6
    v_and_b32 v4, 1, v9
    v_lshl_add_u32 v6, v4, 3, v6
    v_lshl_add_u32 v4, v3, 13, {s(T2)}
    v_mul_u32_u24 v5, {HREC}, v3
    s_add_u32 {s(T3)}, {s(T1)}, {HREC + KLOFF}
    v_add_u32 v5, {s(T3)}, v5
    v_mov_b32 v7, {REC + 16}
    v_mov_b32 v9, {1024 + 16}
    v_cndmask_b32 v4, v5, v4, vcc
    v_cndmask_b32 v7, v7, v9, vcc
    v_mov_b32 v5, {REC + 8}
    v_mov_b32 v9, {256 + 8}
    v_cndmask_b32 v5, v5, v9, vcc
    v_mov_b32 v9, {QSCALE:#x}
    v_cndmask_b32 v9, 1.0, v9, vcc
    v_cmp_eq_u32 vcc, 4, v8
    v_lshlrev_b32 v2, 2, v2
    s_nop 0
    v_cndmask_b32 v6, v6, v4, vcc
    v_cndmask_b32 v7, v7, v5, vcc''')

def su_epi_v(a, u):
    e = EA + 2*u
    a(f'''s_lshl_b32 s3, {s(sMG)}, 6
    s_add_u32 s3, s3, {s(T2)}
    s_add_u32 s3, s3, {32*u}
    v_add_u32 v3, s3, v1
    v_mul_u32_u24 v4, 3641, v3
    v_lshrrev_b32 v4, 16, v4
    v_mul_u32_u24 v5, 18, v4
    v_sub_u32 v3, v3, v5
    v_and_b32 v5, 1, v4
    v_lshlrev_b32 v5, 1, v5
    v_sub_u32 v3, v3, v5
    v_add_u32 v5, 18, v3
    v_min_u32 v3, v3, v5
    v_mul_u32_u24 v5, {HREC}, v4
    v_add_u32 v5, {s(T1)}, v5
    v_lshl_add_u32 v5, v3, 4, v5
    v_lshl_add_u32 v6, v2, 8, v5
    v_add_u32 v6, 1024, v6
    v_lshl_add_u32 v7, v2, 5, v5
    v_add_u32 v7, {VLOFF - 256}, v7
    v_cmp_gt_u32 vcc, 16, v3
    v_add_u32 v8, 512, v6
    v_add_u32 v9, 64, v7
    v_cndmask_b32 v6, v7, v6, vcc
    v_cndmask_b32 v8, v9, v8, vcc
    v_cmp_gt_u32 vcc, 32, v4
    v_mov_b32 v7, {OOB:#x}
    s_nop 0
    v_cndmask_b32 {v(e)}, v7, v6, vcc
    v_cndmask_b32 {v(e+1)}, v7, v8, vcc''')
    if u:
        a.c('the row of ones of every head whose first column is in this tile')
        a(f'''s_add_u32 s3, {s(T2)}, 17
        s_mul_i32 s3, s3, 3641
        s_lshr_b32 s3, s3, 16
        v_and_b32 v3, 7, v0
        v_add_u32 v3, s3, v3
        v_mul_u32_u24 v4, 18, v3
        s_add_u32 {s(T2)}, {s(T2)}, 128
        s_min_u32 {s(T2)}, {s(T2)}, 576
        v_cmp_gt_u32 vcc, {s(T2)}, v4
        v_cmp_gt_u32 {s(T4,2)}, 16, v0
        s_and_b64 vcc, vcc, {s(T4,2)}
        v_mul_u32_u24 v3, {HREC}, v3
        v_bfe_u32 v4, v0, 3, 1
        v_mul_u32_u24 v4, {REC}, v4
        v_add3_u32 v3, v3, v4, {s(T1)}
        v_add_u32 v3, {ONEOFF}, v3
        v_cndmask_b32 {v(EA+4)}, v7, v3, vcc''')

def su_vgat(a, vVf=vVf):
    a.c('V fragment gather offsets inside a key-tile record')
    a('v_and_b32 v1, 31, v0\nv_lshrrev_b32 v2, 5, v0')
    a(f'''v_lshlrev_b32 v3, 4, v1
    v_lshl_add_u32 v3, v2, 8, v3
    v_add_u32 v3, 1024, v3
    v_subrev_u32 v4, 16, v1
    v_lshlrev_b32 v5, 4, v4
    v_lshl_add_u32 v5, v2, 5, v5
    v_add_u32 v5, {VLOFF}, v5
    v_cmp_gt_u32 vcc, 2, v4
    v_add_u32 v6, 64, v5
    v_mov_b32 v7, {OOB:#x}
    v_cndmask_b32 v5, v7, v5, vcc
    v_cndmask_b32 v6, v7, v6, vcc
    v_and_b32 v4, 27, v1
    v_cmp_eq_u32 vcc, 18, v4
    v_mov_b32 v7, {ONEOFF}
    s_nop 0
    v_cndmask_b32 v5, v5, v7, vcc
    v_cndmask_b32 v6, v6, v7, vcc
    v_cmp_gt_u32 vcc, 16, v1
    v_add_u32 v4, 512, v3
    s_nop 0
    v_cndmask_b32 {v(vVf)}, v5, v3, vcc
    v_cndmask_b32 {v(vVf+1)}, v6, v4, vcc''')

def prefetch_a(a):
    if not OPT.get('pf', 1): return
    a(f's_sub_u32 {s(T0)}, {s(sLoc)}, 28\ns_lshl_b32 {s(T0)}, {s(T0)}, 3\ns_add_u32 {s(T0)}, {s(T0)}, {s(sWave)}')
    touch(a, sAX, sAW, 32, 3)
def prefetch_b(a):
    c0 = OPT.get('pfb', 9)
    if c0 > 8: return
    a(f's_lshl_b32 {s(T0)}, {s(sLoc)}, 2\ns_add_u32 {s(T0)}, {s(T0)}, {s(sWave)}\ns_add_u32 {s(T0)}, {s(T0)}, {22*c0}')
    touch(a, sBX, sBW, 112, 22)
def touch(a, sAX, sAW, step, vd):
    top = a.new('pf'); isw = a.new('pfw'); nxt = a.new('pfn')
    a(f'''v_mul_u32_u24 v1, 1152, v0
    v_mul_u32_u24 v2, 3456, v0
    s_lshr_b32 {s(T4)}, {s(sXcd)}, 1
    s_mul_i32 {s(T4)}, {s(T4)}, {512*1152}
    s_and_b32 {s(T5)}, {s(sXcd)}, 1
    s_mul_i32 {s(T5)}, {s(T5)}, {7*256}''')
    a.label(top)
    a(f'''s_mul_i32 {s(T1)}, {s(T0)}, 2979
    s_lshr_b32 {s(T1)}, {s(T1)}, 16
    s_mul_i32 {s(T2)}, {s(T1)}, 22
    s_sub_u32 {s(T2)}, {s(T0)}, {s(T2)}
    s_cmp_ge_u32 {s(T2)}, 8
    s_cbranch_scc1 {isw}
    s_mul_i32 {s(T2)}, {s(T2)}, {64*1152}
    s_lshl_b32 {s(T1)}, {s(T1)}, 7
    s_add_u32 {s(T2)}, {s(T2)}, {s(T1)}
    s_add_u32 {s(T2)}, {s(T2)}, {s(T4)}
    buffer_load_dword {v(vd)}, v1, {srd(sAX)}, {s(T2)} offen
    s_branch {nxt}''')
    a.label(isw)
    a(f'''s_sub_u32 {s(T2)}, {s(T2)}, 8
    s_lshl_b32 {s(T2)}, {s(T2)}, 7
    s_mul_i32 {s(T1)}, {s(T1)}, {64*3456}
    s_add_u32 {s(T2)}, {s(T2)}, {s(T1)}
    s_add_u32 {s(T2)}, {s(T2)}, {s(T5)}
    buffer_load_dword {v(vd)}, v2, {srd(sAW)}, {s(T2)} offen''')
    a.label(nxt)
    a(f's_add_u32 {s(T0)}, {s(T0)}, {step}\ns_cmp_lt_u32 {s(T0)}, 198\ns_cbranch_scc1 {top}')

def prefetch_wo(a):
    if not OPT.get('pfo', 0): return
    top = a.new('pfo')
    a(f'''s_sub_u32 {s(T0)}, {s(sLoc)}, 28
    s_lshl_b32 {s(T0)}, {s(T0)}, 2
    s_add_u32 {s(T0)}, {s(T0)}, {s(sW4)}
    s_lshl_b32 {s(T0)}, {s(T0)}, 13
    v_lshlrev_b32 v1, 7, v0''')
    a.label(top)
    a(f'''buffer_load_dword v3, v1, {srd(sAWO)}, {s(T0)} offen
    buffer_load_dword v3, v1, {srd(sBWO)}, {s(T0)} offen
    s_add_u32 {s(T0)}, {s(T0)}, {16*8192}
    s_cmp_lt_u32 {s(T0)}, {576*1152}
    s_cbranch_scc1 {top}''')

def su_acc(a):
    for r in range(40, 72, 2): a(f'v_pk_mov_b32 {v(r,2)}, {v(vZero,2)}, {v(vZero,2)}')
    for d in ACC.values(): mfma(a, d, 40, 44, None)

def su_share(a, regs, put, first=0):
    a(f's_mul_i32 s3, {s(sW4)}, 6656\ns_add_u32 s3, s3, {EAX}\nv_add_u32 v1, s3, {v(v16)}')
    off = first
    for r, n in regs:
        if n == 4: a(f'ds_write_b128 v1, {v(r,4)} offset:{off}' if put else f'ds_read_b128 {v(r,4)}, v1 offset:{off}')
        off += 1024
SH_P = [(XAc, 4), (WAc, 4), (EA, 4), (EA+4, 4), (EA+8, 4)]
SH_L = [(EA, 4), (EA+4, 4), (EA+8, 4), (ES, 4), (ES+4, 4)]

def slot_addr(a):
    for k in range(4): a(f'v_add_u32 {v(XAr+k)}, {s(T6)}, {v(XAc+k)}')
    for w in range(2): a(f'v_add_u32 {v(WAr+w)}, {s(T6)}, {v(WAc+w)}')
    a(f's_add_u32 {s(T6)}, {s(T6)}, 0x8000\ns_and_b32 {s(T6)}, {s(T6)}, 0x1ffff')

def prologue(a, opt):
    a(f's_cmp_ge_u32 s2, 256\ns_cbranch_scc1 L_end')
    ld_srd(a, (sBX, sBW, sWS, sDBG, sAX, sAW))
    if a.diag:
        for k in range(2, 14): a(f's_mov_b32 {s(SSTAMP+k)}, 0')
    if a.diag or opt.get('padto') or opt.get('padA') or opt.get('padB'): a(f's_memrealtime {s(SSTAMP,2)}')
    if opt.get('ipf', 1):
        a.c('workgroups without a gemm tile pull this code towards L2 (one dword per 128-byte line)')
        a(f'''s_cmp_lt_u32 s2, 224
        s_cbranch_scc1 L_noipf
        s_getpc_b64 s[66:67]'''.replace('s[66:67]', 's[98:99]'))
        a.label('L_pc')
        a(f'''v_lshlrev_b32 v1, 7, v0
        v_cmp_gt_u32 vcc, L_end-L_pc, v1
        s_and_saveexec_b64 s[100:101], vcc
        s_cbranch_execz L_ipfx
        global_load_dword v254, v1, s[98:99]''')
        a.label('L_ipfx')
        a('s_mov_b64 exec, s[100:101]')
        a.label('L_noipf')
    a(f'v_lshrrev_b32 v1, 6, v0\nv_and_b32 v0, 63, v0\nv_readfirstlane_b32 {s(sWave)}, v1')
    a(f'''s_and_b32 {s(sXcd)}, s2, 7
    s_lshr_b32 {s(sLoc)}, s2, 3
    s_mul_i32 {s(sRT)}, {s(sLoc)}, 37
    s_lshr_b32 {s(sRT)}, {s(sRT)}, 8
    s_mul_i32 s3, {s(sRT)}, 7
    s_sub_u32 {s(sCT)}, {s(sLoc)}, s3
    s_add_u32 {s(sRot)}, {s(sCT)}, {s(sRT)}
    s_and_b32 s3, {s(sXcd)}, 1
    s_mul_i32 s3, s3, 7
    s_add_u32 {s(sCT)}, {s(sCT)}, s3
    s_lshr_b32 s3, {s(sXcd)}, 1
    s_lshl_b32 s3, s3, 2
    s_add_u32 {s(sRT)}, {s(sRT)}, s3
    s_and_b32 {s(sW4)}, {s(sWave)}, 3''')
    r = opt.get('rot', 0)
    if r == 2:
        a(f's_mul_i32 s3, {s(sRot)}, 86\ns_lshr_b32 s3, s3, 8\ns_mul_i32 s3, s3, 3\ns_sub_u32 {s(sRot)}, {s(sRot)}, s3\ns_mul_i32 {s(sRot)}, {s(sRot)}, 3')
    elif r == 4:
        a(f's_and_b32 {s(sRot)}, {s(sRot)}, 3')
    elif r == 5:
        a(f's_and_b32 {s(sRot)}, {s(sRot)}, 1\ns_mul_i32 {s(sRot)}, {s(sRot)}, 5')
    elif r == 6:
        a(f's_and_b32 {s(sRot)}, {s(sRot)}, 1\ns_mul_i32 {s(sRot)}, {s(sRot)}, 2')
    elif r == 7:
        a(f's_and_b32 {s(sRot)}, {s(sRot)}, 3\ns_mul_i32 {s(sRot)}, {s(sRot)}, 2')
    elif r == 3:
        a(f's_and_b32 {s(sRot)}, {s(sRot)}, 1\ns_lshl_b32 {s(sRot)}, {s(sRot)}, 2')
    su_ids2(a)
    su_loader(a)
    mk_srd(a, (sBX, sBW))
    a(f's_cmp_eq_u32 {s(sImg)}, 0\ns_cbranch_scc1 L_pset')
    vm = VM()
    a(f's_setprio 1\ns_waitcnt lgkmcnt(0)\ns_cmp_ge_u32 {s(sLoc)}, 28\ns_cbranch_scc1 L_lset')
    for j in range(3 if opt.get('sw', 9) < 0 else 2): issue_chunk(a, j); vm.add(j, 8)
    a('s_branch L_lset')
    p_setup(a, opt)
    a('s_branch L_gemm')
    for f in a.early: f()
    a.lock = bool(opt.get('p1'))
    gemm(a, opt)
    a.lock = False
    p_path(a, opt)
    a.label('L_pidle0')
    prefetch_a(a)
    a(f's_waitcnt vmcnt(0) lgkmcnt(0)\ns_barrier\ns_barrier\nds_read_b32 {v(vTok)}, {v(vCnt)} offset:{C_TOK}\ns_branch L_ppath')
    a.label('L_lset')
    a.c('================= waves 4-7: load the B tile =================')
    ld_srd(a, (sPHI, sAWO, sBWO, sOUT))
    mk_srd(a, (sAX, sAW, sPHI, sAWO, sBWO, sOUT, sDBG, sWS))
    su_tab(a)
    a('s_waitcnt lgkmcnt(0)')
    a.stamp(1)
    a(f's_cmp_lg_u32 {s(sIdle)}, 0\ns_cbranch_scc1 L_lidle')
    if opt.get('phij', 3) < 0: a_setup(a, 0); vm.add('phi', 10)
    for j in range(9):
        a(f's_waitcnt vmcnt({vm.after(j)})')
        if opt.get('p1') == 1: a.stamp(3 + j)
        a('s_barrier')
        if opt.get('p1') == 2: a.stamp(3 + j)
        if opt.get('p1') == 2 and j == 0: a.cyc0()
        if opt.get('p1') == 2 and j == 8: a.cyc1()
        sw = opt.get('sw', 9)
        for c in ([j + 2] if j < sw else [j + 2, j + 3] if j == sw else [j + 3]):
            issue_chunk(a, c); vm.add(c, 8)
            if c == 9: token_issue(a); vm.add('tok')
        if j == 0: su_vgat(a, vVfL); a_setup(a, 2)
        if j == 1: su_share(a, SH_P, False)
        if j == 2:
            a('s_waitcnt lgkmcnt(0)')
            for r in range(EA, EA + 12): a(f'v_add_u32 {v(r)}, {AOFF:#x}, {v(r)}')
        if j == opt.get('phij', 3): a_setup(a, 0); vm.add('phi', 10)
        if j in (3, 4, 5, 6): a_setup(a, {3: 5, 4: 1, 5: 6, 6: 3}[j])
        if j == 7: assert vm.after('phi') >= 24; a_setup(a, 4)
    a(f's_waitcnt vmcnt({vm.after("tok")})')
    token_check(a)
    a(f'ds_write_b32 {v(vCnt)}, {v(vTokL)} offset:{C_TOK}\ns_mov_b32 {s(T6)}, {(9 % 4) * 32768}\ns_waitcnt lgkmcnt(0)')
    a(f's_setprio {opt.get("prio", 1)}')
    a.stamp(2)
    if opt.get('p1'): a.lock = True
    slot_addr(a)
    a(f's_mov_b32 {s(T7)}, 9\ns_mov_b32 {s(T5)}, {8 if opt.get("cs") else 16 if opt.get("sl2") == 2 else 2 if opt.get("sl2") else 0}\ns_barrier')
    if sw == 9: issue_chunk(a, 11)
    a(f's_cmp_ge_u32 {s(sCT)}, 9\ns_cbranch_scc1 L_gS0\ns_branch L_gN0')
    a.label('L_lidle')
    a.c('four workgroups per group of 32 have no gemm tile')
    prefetch_a(a)
    a('s_waitcnt vmcnt(0)')
    prefetch_wo(a)
    a('s_waitcnt vmcnt(0)')
    su_vgat(a, vVfL)
    for p in (0, 1, 2, 3, 5, 6): a_setup(a, p)
    token_issue(a)
    a('s_waitcnt vmcnt(0)')
    a_setup(a, 4)
    token_check(a)
    a(f's_barrier\nds_write_b32 {v(vCnt)}, {v(vTokL)} offset:{C_TOK}\ns_setprio {opt.get("prio", 1)}\ns_waitcnt lgkmcnt(0)\ns_barrier\ns_branch L_achain')

def p_setup(a, opt):
    a.label('L_pset')
    a.c('================= waves 0-3: set-up =================')
    su_tab(a); su_gaddr(a)
    a('s_waitcnt lgkmcnt(0)')
    ld_srd(a, (sOUT,))
    mk_srd(a, (sWS, sDBG, sAX, sAW, sOUT))
    su_token(a, 0)
    a(f's_cmp_lg_u32 {s(sIdle)}, 0\ns_cbranch_scc1 L_pidle0')
    if opt.get('pfbp', 0) == 0: prefetch_b(a)
    a(f's_waitcnt lgkmcnt(0)\ns_cmp_ge_u32 {s(sCT)}, 9\ns_cbranch_scc1 L_epiS')
    su_epi(a, 'N'); su_epi(a, 'N', 1); a('s_waitcnt lgkmcnt(0)'); su_epi(a, 'N', 2)
    a.label('L_epiD')
    def epi_s():
        a.label('L_epiS'); su_epi(a, 'S'); a('s_branch L_epiD')
    a.early.append(epi_s)
    su_share(a, SH_P, True)
    if opt.get('pfbp', 0) == 1: prefetch_b(a)
    su_token(a, 1)
    a(f's_waitcnt lgkmcnt(0)\ns_mov_b32 {s(T6)}, 0')
    a.stamp(1)
    if a.diag: a('s_mov_b32 s82, 0')

def gemm(a, opt):
    sSlot, sIt, sCnt = T6, T7, T5
    a.label('L_gemm')
    a.c('================= qkv gemm (waves 0-3: B, waves 4-7: A) =================')
    slot_addr(a)
    a(f's_mov_b32 {s(sIt)}, 9\ns_mov_b32 {s(sCnt)}, 0\ns_cmp_ge_u32 {s(sCT)}, 9\ns_barrier\ns_cbranch_scc1 L_gS0')
    def mid():
        if opt.get('sl2') == 2: return
        lb = a.new('mid')
        a(f's_cmp_lg_u32 {s(sImg)}, 0\ns_cbranch_scc1 {lb}')
        if opt.get('cs'): lds_wait(a, 1, C_G, 4, sl=0)
        else: a('s_barrier')
        if not opt.get('sl2'): issue_chunk(a, 13)
        a.label(lb)
    def loop(o):
        def reads(k):
            F = FS[k]
            rd = lambda w, j: f'ds_read_b64_tr_b16 {v(F+8+4*w+2*j,2)}, {v(WAr+w)} offset:{4096*k+1024*j}'
            rx = lambda tt: f'ds_read_b128 {v(F+4*tt,4)}, {v(XAr+k)} offset:{4096*tt}'
            if opt.get('nord'): return ['s_nop 0'] * 6
            return [rd(0, 0), rd(0, 1), rx(0), rx(1), rd(1, 0), rd(1, 1)]
        def mms(k, first=False):
            m = []
            for w, nm in enumerate('ab'):
                for tt in range(2):
                    x, wf = FS[k]+4*tt, FS[k]+8+4*w
                    c = None if first else ACC[(nm, tt)]
                    m.append(mfma_s(ACC[(nm, tt)], wf, x, c) if o == 'N' else mfma_s(ACC[(nm, tt)], x, wf, c))
            if opt.get('nomm'): m = ['s_nop 0'] * 4
            if opt.get('m16'):
                def two(x, i0):
                    g = re.match(r'\S+ v\[(\d+):\d+\], (\S+), (\S+), ', x); d = int(g.group(1))
                    return '\n'.join(f'v_mfma_f32_16x16x32_bf16 {v(d+4*i,4)}, {g.group(2)}, {g.group(3)}, {v(d+4*i,4)}' for i in (i0, i0+1))
                m = [two(x, 2*(k & 1)) for x in m]
            return m
        def grp(km, kr, wait=None, x1=None, x2=None, first=False, fill=None):
            m = mms(km, first); r = reads(kr)
            if fill is not None:
                def take(n):
                    out = []
                    while fill and (len(out) < n or out[-1].startswith('s_cmp') or out[-1].startswith('s_cselect_b32 s3')): out.append(fill.pop(0))
                    return '\n'.join(out)
                m = [x + '\n' + take(k) for x, k in zip(m, (3, 3, 6, 6))]
            if wait is not None: a(f's_waitcnt lgkmcnt({wait})')
            a(m[0]); a(r[0]); a(r[1]); a(r[2]); a(m[1]); a(r[3]); a(r[4]); a(r[5])
            if x1: x1()
            a(m[2])
            if x2: x2()
            a(m[3])
        a.label(f'L_g{o}0')
        a.c('first chunk: nothing to finish from a previous one')
        if opt.get('p3'): a.lstamp(s(sIt), 32)
        for x in reads(0) + reads(1): a(x)
        grp(0, 2, 6, first=True)
        a(f's_branch L_g{o}m')
        a.label(f'L_g{o}')
        if opt.get('p3'): a.lstamp(s(sIt), 16)
        if opt.get('cs') or opt.get('sl2') == 2: a(f's_cmp_lg_u32 {s(sCnt)}, 0\ns_cbranch_scc1 L_g{o}c')
        a('s_barrier')
        if opt.get('sl2') == 2:
            def own_sync(o=o):
                a.label(f'L_g{o}c')
                a.c('chunks 10-13 were loaded by waves 4-7 themselves: they meet on a counter while waves 0-3 publish B')
                lds_arrive(a, C_G)
                a(f's_sub_u32 {s(sCnt)}, {s(sCnt)}, 4\ns_sub_u32 {s(T1)}, 16, {s(sCnt)}')
                lds_wait(a, 1, C_G, s(T1), sl=0)
                a(f's_cmp_lt_u32 {s(sCnt)}, 8\ns_cbranch_scc1 L_g{o}b\ns_cmp_eq_u32 {s(sCnt)}, 8\ns_cbranch_scc1 L_g{o}t')
                issue_chunk(a, 12)
                a(f's_branch L_g{o}b')
                a.label(f'L_g{o}t')
                issue_chunk(a, 13)
                a(f's_branch L_g{o}b')
            a.late.append(own_sync)
        elif opt.get('sl2'):
            a(f's_cmp_lg_u32 {s(sCnt)}, 0\ns_cbranch_scc1 L_g{o}s')
            def self_issue(o=o):
                a.label(f'L_g{o}s')
                a(f's_cmp_eq_u32 {s(sCnt)}, 1\ns_cbranch_scc1 L_g{o}t')
                issue_chunk(a, 12)
                a(f's_mov_b32 {s(sCnt)}, 1\ns_branch L_g{o}b')
                a.label(f'L_g{o}t')
                issue_chunk(a, 13)
                a(f's_mov_b32 {s(sCnt)}, 0\ns_branch L_g{o}b')
            a.late.append(self_issue)
        a.label(f'L_g{o}b')
        if opt.get('p3'): a.lstamp(s(sIt), 32)
        def book():
            w8 = a.new('w8')
            a(f's_cmp_ge_u32 {s(sIt)}, {7 if opt.get("sl2") else 9}\ns_cbranch_scc1 {w8}\ns_waitcnt vmcnt(0)')
            a.label(w8)
            if opt.get('lp0', 1):
                lo = a.new('lo')
                a(f's_cmp_lg_u32 {s(sIt)}, 2\ns_cbranch_scc1 {lo}\ns_setprio 0')
                a.label(lo)
            a(f's_sub_u32 {s(sIt)}, {s(sIt)}, 1\ns_cmp_lg_u32 {s(sIt)}, 0')
        grp(2, 0); grp(3, 1); grp(0, 2, 6)
        a.label(f'L_g{o}m')
        a('s_waitcnt lgkmcnt(6)')
        a.label(f'L_g{o}n')
        grp(1, 3, None, lambda: slot_addr(a), book)
        a(f's_waitcnt vmcnt(8) lgkmcnt(0)\ns_cbranch_scc1 L_g{o}')
        if opt.get('cs'):
            def cs_block(o=o):
                a.label(f'L_g{o}c')
                lds_arrive(a, C_G)
                a(f's_sub_u32 {s(sCnt)}, {s(sCnt)}, 4\ns_sub_u32 {s(T1)}, 8, {s(sCnt)}')
                lds_wait(a, 1, C_G, s(T1), sl=0)
                a(f's_branch L_g{o}b')
            a.late.append(cs_block)
        m = mms(2) + mms(3)
        a(f's_cmp_lg_u32 {s(sImg)}, 0\ns_cbranch_scc1 L_gf{o}\ns_barrier\ns_setprio 2\nds_read_b32 {v(vTok)}, {v(vCnt)} offset:{C_TOK}')
        if not opt.get('sl2'): issue_chunk(a, 12)
        a.label(f'L_gf{o}')
        for i in (0, 1, 4, 5, 2, 3, 6, 7): a(m[i])
        if opt.get('lp0', 1):
            lo = a.new('lo')
            a(f's_cmp_eq_u32 {s(sImg)}, 0\ns_cbranch_scc1 {lo}\ns_setprio 1')
            a.label(lo)
        a.stamp(3)
    def scale(nm, sc, n):
        lb = a.new('nosc')
        a(f's_cmp_eq_u32 {s(sDoSc)}, 0\ns_cbranch_scc1 {lb}')
        for tt in range(2):
            for i in range(16): a(f'v_mul_f32 {v(ACC[(nm, tt)]+i)}, {v(sc + i//n)}, {v(ACC[(nm, tt)]+i)}')
        a.label(lb)
    def epi_main(u):
        nm = 'ab'[u]
        scale(nm, ES + 2*u, 8)
        for tt in range(2):
            for qp in range(2):
                r = ACC[(nm, tt)] + 8*qp
                cvt8(a, r, r)
                a(f'buffer_store_dwordx4 {v(r,4)}, {v(EA + 4*u + 2*qp + tt)}, {srd(sWS)}, 0 offen sc1')
    def epi_misc():
        scale('b', ES + 2, 4)
        for tt in range(2):
            for h in range(2): cvt8(a, ACC[('b', tt)] + 8*h, ACC[('b', tt)] + 8*h)
        x4 = lambda tt: f'buffer_store_dwordx4 {v(ACC[("b", tt)],4)}, {v(EA + 4 + tt)}, {srd(sWS)}, 0 offen sc1'
        x2 = lambda tt, q: f'buffer_store_dwordx2 {v(ACC[("b", tt)] + 8*(q >> 1) + 2*(q & 1),2)}, {v(EA + 4 + 2*q + tt)}, {srd(sWS)}, 0 offen sc1'
        a(f's_cmp_lg_u32 {s(sOdd)}, 0\ns_cselect_b32 exec_hi, 0, -1')
        a(x4(0)); a(x4(1))
        a('s_mov_b32 exec_hi, -1\ns_cbranch_scc0 L_even\ns_mov_b32 exec_lo, 0')
        for tt in range(2): a(x2(tt, 0)); a(x2(tt, 1))
        a('s_mov_b32 exec_lo, -1')
        a.label('L_even')
        for tt in range(2): a(x2(tt, 2)); a(x2(tt, 3))
    def epi_v(u):
        nm = 'ab'[u]
        for tt in range(2):
            for f in range(2):
                r = ACC[(nm, tt)] + 8*f
                cvt8(a, r, r)
                a(f'buffer_store_dwordx4 {v(r,4)}, {v(EA + 2*u + f)}, {srd(sWS)}, 0 offen offset:{REC*tt} sc1')
    loop('N')
    a.nop(6); epi_main(0); mid()
    a(f's_cmp_lg_u32 {s(sMG)}, 0\ns_cbranch_scc1 L_emisc')
    epi_main(1); a('s_branch L_epi_done')
    a.label('L_emisc')
    epi_misc(); a('s_branch L_epi_done')
    loop('S')
    for i in range(4): a(f'v_mov_b32 {v(4+i)}, 0x3f803f80')
    a.nop(4); epi_v(0); mid(); epi_v(1)
    a(f's_cmp_lg_u32 {s(sMG)}, 0\ns_cbranch_scc1 L_epi_done\nbuffer_store_dwordx4 v[4:7], {v(EA+4)}, {srd(sWS)}, 0 offen sc1')
    a.label('L_epi_done')
    a.stamp(4)
    a(f's_cmp_lg_u32 {s(sImg)}, 0\ns_cbranch_scc1 L_achain')
    a.label('L_ppath')

def op_addr(a, X, vt, smain, sextra):
    t0, t1, t2, t3 = vt, vt+1, vt+2, vt+3
    a(f'''v_bfe_u32 {v(t0)}, v0, 2, 2
    v_lshrrev_b32 {v(t1)}, 5, v0
    v_and_b32 {v(t2)}, 3, v0
    v_bfe_u32 {v(t3)}, v0, 4, 1
    v_lshl_add_u32 {v(t2)}, {v(t3)}, 2, {v(t2)}
    v_lshlrev_b32 {v(t2)}, 3, {v(t2)}
    v_lshl_add_u32 {v(t0)}, {v(t1)}, 2, {v(t0)}
    v_lshl_add_u32 {v(X+4)}, {v(t0)}, 6, {v(t2)}
    v_add_u32 {v(X+4)}, {s(sextra)}, {v(X+4)}
    v_bfe_u32 {v(t3)}, v0, 3, 1
    v_lshl_add_u32 {v(t2)}, {v(t3)}, 6, {v(t2)}
    v_lshl_add_u32 {v(X)}, {v(t0)}, 7, {v(t2)}
    v_add_u32 {v(X)}, {s(smain)}, {v(X)}
    v_xor_b32 {v(X+1)}, 64, {v(X)}
    v_mul_u32_u24 {v(t1)}, 68, {v(t1)}
    v_add_u32 {v(t1)}, 16, {v(t1)}
    v_lshl_add_u32 {v(X+2)}, {v(t1)}, 7, {v(X)}
    v_lshl_add_u32 {v(X+3)}, {v(t1)}, 7, {v(X+1)}
    v_lshl_add_u32 {v(X+5)}, {v(t1)}, 6, {v(X+4)}''')

def w_row(st, j): return 18*st + 8*j + (2 if st & 1 else 0) if st < 8 else 36*j
def op_w_reads(W, X, st, off=0):
    return [f'ds_read_b64_tr_b16 {v(W + 8*st + 4*T + 2*j, 2)}, {v(X + T + (2 if st == 8 else 0))} offset:{w_row(st, j)*128 + off}' for T in range(2) for j in range(2)]
def op_e_reads(W, X, st):
    return [f'ds_read_b64_tr_b16 {v(W + 72 + 4*st + 2*j, 2)}, {v(X + 4 + (st == 8))} offset:{w_row(st, j)*64}' for j in range(2)]
def op_read_w(a, W, X, sflag):
    for st in range(9): a('\n'.join(op_w_reads(W, X, st)))
    lb = a.new('ne')
    a(f's_cmp_eq_u32 {s(sflag)}, 0\ns_cbranch_scc1 {lb}')
    for st in range(9): a('\n'.join(op_e_reads(W, X, st)))
    a.label(lb)

def op_load_o(a, O, vo16, vol, sM, sM2, sL, thr=False):
    for i in range(8):
        a(f'buffer_load_dwordx4 {v(O+4*i,4)}, {v(vo16)}, {srd(sWS)}, {s(sM if i < 4 else sM2)} offen offset:{1024*(i&3)} sc1')
        if thr and i % 4 == 3: a('s_waitcnt vmcnt(0)')
    for i in range(4):
        a(f'buffer_load_dword {v(O+32+i)}, {v(vol)}, {srd(sWS)}, {s(sL)} offen offset:{128*i} sc1')

def op_mfma(a, AC, W, O, first):
    for st in range(9):
        a(f's_waitcnt vmcnt({11 - st if st < 8 else 0})')
        for T in range(3):
            mfma(a, AC + 16*T, W + 12*st + 4*T, O + 4*st, None if (first and st == 0) else AC + 16*T)

sEX, sWE = sBX, sXB
def issue_grp(a, kind, x, y, slot, who):
    skip = a.new('r8')
    if kind == 'm':
        sr, vo, rows = x[0], vWO, 8
        a(f's_add_u32 {s(sFree)}, {s(sWB)}, {(144*x[1] + 72*y)*1152}'); slot += EB*y
    else:
        sr, vo, rows = sEX, vWO + 1, 16
        a(f's_bitcmp1_b32 {s(sOC)}, 2\ns_mov_b32 {s(sFree)}, {144*x*1152}\ns_cselect_b32 {s(sFree)}, {144*y*1152}, {s(sFree)}\ns_add_u32 {s(sFree)}, {s(sFree)}, {s(sWE)}')
    a(f'''s_lshl_b32 s3, {s(sW4)}, 10
    s_add_u32 m0, s3, {slot}
    s_nop 0
    buffer_load_dwordx4 {v(vo)}, {srd(sr)}, {s(sFree)} offen lds
    s_add_u32 m0, s3, {slot + 4096}
    s_add_u32 {s(sFree)}, {s(sFree)}, {4*rows*1152}
    buffer_load_dwordx4 {v(vo)}, {srd(sr)}, {s(sFree)} offen lds
    s_cmp_lg_u32 {s(sW4)}, {who}
    s_cbranch_scc1 {skip}
    s_mov_b32 m0, {slot + 8192}
    s_add_u32 {s(sFree)}, {s(sFree)}, {(4 - who)*rows*1152}
    buffer_load_dwordx4 {v(vo)}, {srd(sr)}, {s(sFree)} offen lds''')
    a.label(skip)

def p_path(a, opt):
    vK, vKL, vV0, vV1 = 8, 10, 12, 14
    Qr, QLr, M = 16, 32, 36
    Kb, KLb, Vb, Sb, Ob = 40, 56, 64, 96, 160
    sCur, sNext, sLo, sHi, sN = T2, T3, T4, T5, T6
    sQm, sQl, sChk = 56, 57, 58
    sLo2, sHi2, sCur2 = T2, T3, T4
    sOB = 60
    vHint, vRw, vRr = 224, 226, 227
    a.c('================= waves 0-3: load the rest of the A tile, publish B =================')
    vm = VM()
    vm.add(12, 8); vm.add('sa', 4); vm.add(13, 8); vm.add('sb', 4)
    su_vgat(a)
    kl_const(a, T0, sH)
    a(f'''v_and_b32 v1, 31, v0
    v_mov_b32 {v(vK)}, {v(v16)}
    v_lshl_add_u32 {v(vKL)}, v1, 3, {s(T0)}
    v_lshrrev_b32 v2, 5, v0
    v_mul_u32_u24 v2, {REC if opt.get('klp', 1) else 0}, v2
    v_add_u32 {v(vKL)}, {v(vKL)}, v2
    v_mov_b32 {v(vV0)}, {v(vVf)}
    v_mov_b32 {v(vV1)}, {v(vVf+1)}''')
    for r in (vK, vKL, vV0, vV1): a(f'v_add_u32 {v(r+1)}, {2*REC}, {v(r)}')
    a.c('flags this wave waits for: lanes 0-15 k, 16-31 v (8 row tiles x first/last column tile), 32.. q')
    a(f'''v_lshrrev_b32 v2, 4, v0
    v_add_u32 v2, 1, v2
    v_cmp_gt_u32 vcc, 32, v0
    v_bfe_u32 v3, v0, 3, 1
    v_and_b32 v4, 1, v0
    v_cndmask_b32 v2, 0, v2, vcc
    v_cndmask_b32 v3, v4, v3, vcc
    s_lshl_b32 {s(T2)}, {s(sMG)}, 3
    v_and_b32 v4, 7, v0
    v_add_u32 v4, {s(T2)}, v4
    s_lshl_b32 {s(T3)}, {s(sQB)}, 1
    s_add_u32 {s(T3)}, {s(T3)}, {s(sTH)}
    v_mov_b32 v5, {s(T3)}
    v_cndmask_b32 v4, v5, v4, vcc''')
    producer_ct(a, 5, 2, 3, sH, 6)
    a(f'v_lshl_add_u32 v5, v5, 4, v4\nv_lshlrev_b32 v5, 7, v5\nv_add_u32 {v(vPoll)}, {FL1:#x}, v5\nv_lshlrev_b32 v7, 3, v0')
    for r in (QLr+1, QLr+3, KLb+1, KLb+3, KLb+5, KLb+7): a(f'v_mov_b32 {v(r)}, 0')
    def tail_setup():
        extra_flags(a); final_setup(a)
        a(f's_mul_i32 {s(T0)}, {s(sMG)}, {MB}\ns_add_u32 {s(T0)}, {s(T0)}, {M_C}\ns_mul_i32 {s(T1)}, {s(sMG)}, {EB}\ns_add_u32 {s(T1)}, {s(T1)}, {X_A}')
        op_addr(a, vWb, 1, T0, T1)
        a(f'''s_mul_i32 {s(T0)}, {s(sWave)}, 6144
        v_add_u32 {v(vRw)}, {s(T0)}, {v(v16)}
        s_xor_b32 {s(T0)}, {s(sWave)}, 2
        s_mul_i32 {s(T0)}, {s(T0)}, 6144
        v_add_u32 {v(vRr)}, {s(T0)}, {v(v16)}
        s_lshl_b32 {s(T0)}, {s(sQB)}, 2
        s_lshl_b32 {s(T1)}, {s(sTH)}, 1
        s_add_u32 {s(T0)}, {s(T0)}, {s(T1)}
        s_add_u32 {s(T0)}, {s(T0)}, {s(sMG)}''')
        flag_addr(a, T1, T0, sH, 5, FL4)
        a(f'v_mov_b32 {v(vHint)}, {s(T1)}\nv_mov_b32 {v(vHint+1)}, {s(sTok)}\ns_lshl_b32 {s(T0)}, {s(T0)}, 1')
        o_addr(a, sH, OBM, OBL, sOB)
    a(f'''s_lshl_b32 {s(T0)}, {s(sH)}, 6
    s_lshl_b32 {s(T1)}, {s(sMG)}, 5
    s_add_u32 {s(T0)}, {s(T0)}, {s(T1)}
    s_mul_i32 {s(sLo)}, {s(T0)}, {REC}
    s_add_u32 {s(sLo)}, {s(sLo)}, {KV:#x}
    s_add_u32 {s(sHi)}, {s(sLo)}, {32*REC}
    s_lshl_b32 {s(T0)}, {s(sQB)}, 1
    s_add_u32 {s(T0)}, {s(T0)}, {s(sTH)}
    s_lshl_b32 {s(T1)}, {s(sH)}, 4
    s_add_u32 {s(T0)}, {s(T0)}, {s(T1)}
    s_lshl_b32 {s(sQm)}, {s(T0)}, 12
    s_lshr_b32 {s(T1)}, {s(sH)}, 1
    s_lshl_b32 {s(T1)}, {s(T1)}, 4
    s_add_u32 {s(T1)}, {s(T1)}, {s(T3)}
    s_lshl_b32 {s(sQl)}, {s(T1)}, 10
    s_and_b32 {s(T1)}, {s(sH)}, 1
    s_lshl_b32 {s(T1)}, {s(T1)}, 2
    s_add_u32 {s(sQl)}, {s(sQl)}, {s(T1)}
    s_add_u32 {s(sQl)}, {s(sQl)}, {QL:#x}''')
    flag_addr(a, T1, sCT, sRT, 4, FL1)
    a('s_waitcnt lgkmcnt(0)')
    a.c('================= waves 0-3: attention =================')
    def kv_loads(b, sreg):
        o = REC * (b & 1); u = b >> 1
        return [f'buffer_load_dwordx4 {v(Kb+4*b,4)}, {v(vK+u)}, {srd(sWS)}, {s(sreg)} offen offset:{o} sc1',
                ('' if b & 1 else f'buffer_load_dword {v(KLb+b)}, {v(vKL+u)}, {srd(sWS)}, {s(sreg)} offen sc1') if opt.get('klp', 1) else
                f'buffer_load_dword {v(KLb+2*b)}, {v(vKL+u)}, {srd(sWS)}, {s(sreg)} offen offset:{o} sc1',
                f'buffer_load_dwordx4 {v(Vb+8*b,4)}, {v(vV0+u)}, {srd(sWS)}, {s(sreg)} offen offset:{o} sc1',
                f'buffer_load_dwordx4 {v(Vb+8*b+4,4)}, {v(vV1+u)}, {srd(sWS)}, {s(sreg)} offen offset:{o} sc1']
    def start_groups():
        a(f'''s_mul_i32 {s(sCur)}, {s(sQB)}, {4*REC}
        s_add_u32 {s(sCur)}, {s(sCur)}, {s(sLo)}
        s_add_u32 {s(sNext)}, {s(sCur)}, {4*REC}
        s_cmp_eq_u32 {s(sNext)}, {s(sHi)}
        s_cselect_b32 {s(sNext)}, {s(sLo)}, {s(sNext)}
        s_mov_b32 {s(sN)}, 8''')
    adv_groups = f'''s_mov_b32 {s(sCur)}, {s(sNext)}
        s_add_u32 {s(sNext)}, {s(sNext)}, {4*REC}
        s_cmp_eq_u32 {s(sNext)}, {s(sHi)}
        s_cselect_b32 {s(sNext)}, {s(sLo)}, {s(sNext)}
        s_cmp_eq_u32 {s(sN)}, 2
        s_cselect_b32 {s(sNext)}, {OOB:#x}, {s(sNext)}'''
    KP = opt.get('klp', 1)
    def qk(N, kb, qp):
        return (mfma_s(N, KLb+2*(kb >> 1), QLr+2*qp, None, '2b') + f' cbsz:1 abid:{kb & 1}' if KP else mfma_s(N, KLb+2*kb, QLr+2*qp, None, '2b'), mfma_s(N, Kb+4*kb, Qr+8*qp, N), mfma_s(N+16, Kb+4*kb, Qr+8*qp+4, N+16))
    def step(qp, kb, ins, sub):
        S = Sb + 32*qp; N = Sb + 32*(1-qp)
        nkb = kb if qp == 0 else (kb+1) % 4
        pkb = (kb-1) % 4 if qp == 0 else kb
        QLm, Q0m, Q1m = qk(N, nkb, 1-qp)
        def E(x, y):
            for i in range(x, y):
                if sub: a(f'v_sub_f32 {v(S+i)}, {v(S+i)}, {v(M + 2*qp + i//16)}')
                a(f'v_exp_f32{"_e64" if opt.get("e64") else ""} {v(S+i)}, {v(S+i)}')
        def C(x, y):
            for j in range(x, y):
                b = S + 16*(j//8); k = j % 8
                if opt.get('perm'): a(f'v_perm_b32 {v(b + (k % 4) + 8*(k//4))}, {v(b+2*k+1)}, {v(b+2*k)}, {s(59)}')
                else: a(f'v_cvt_pk_bf16_f32 {v(b + (k % 4) + 8*(k//4))}, {v(b+2*k)}, {v(b+2*k+1)}')
        def PV(t, f):
            o = Ob + 32*qp + 16*t
            mfma(a, o, Vb + 8*kb + 4*f, S + 16*t + 8*f, o)
        def I(k):
            if k in ins: a(ins[k])
        E(0, 2)
        o = Ob + 32*(1-qp) + 16
        mfma(a, o, Vb + 8*pkb + 4, N + 24, o); I('p')
        sched = {
            0: 'E2-5 QL E5-9 C0-4 E9-11 P00 E11-17 C4-6 Q0 C6-8 E17-19 P01 E19-25 C8-12 Q1 E25-28 P10 E28-32 C12-16',
            1: 'E2-6 QL E6-8 C0-4 E8-12 P00 E12-16 C4-7 Q0 C7-8 E16-19 P01 E19-24 C8-10 Q1 C10-12 E24-27 P10 E27-32 C12-16',
            2: 'E2-6 QL E6-9 C0-4 E9-12 P00 E12-17 C4-6 Q0 C6-8 E17-20 P01 E20-25 C8-10 Q1 C10-12 E25-28 P10 E28-32 C12-16',
            3: 'E2-6 QL E6-7 C0-1 E7-8 C1-2 E8-9 C2-3 E9-10 C3-4 E10-12 P00 E12-13 C4-5 E13-14 C5-6 E14-17 Q0 C6-7 E17-18 C7-8 E18-20 P01 E20-21 C8-9 E21-22 C9-10 E22-25 Q1 C10-11 E25-26 C11-12 E26-28 P10 E28-29 C12-13 E29-30 C13-14 E30-32 C14-16',
        }[opt.get('sched', 0)]
        hook = {'QL': 'q', 'P00': 'm0', 'Q0': 'm1', 'P01': 'm2', 'Q1': 'm3', 'P10': 'm4'}
        if opt.get('noql'):
            QLm = ''; Q0m = mfma_s(N, Kb+4*nkb, Qr+8*(1-qp), None); Q1m = mfma_s(N+16, Kb+4*nkb, Qr+8*(1-qp)+4, None)
        for w in sched.split():
            if w[0] in 'EC': (E if w[0] == 'E' else C)(*map(int, w[1:].split('-')))
            elif w[0] == 'P': PV(int(w[1]), int(w[2])); I(hook[w])
            else: a({'QL': QLm, 'Q0': Q0m, 'Q1': Q1m}[w]); I(hook[w])
    def attn_init_a():
        for r in range(Ob+16, Ob+64): a(f'v_mov_b32 {v(r)}, 0')
        for r in range(Vb+28, Vb+32): a(f'v_mov_b32 {v(r)}, 0')
    def attn_init_b():
        for r in range(Ob, Ob+16): a(f'v_mov_b32 {v(r)}, 0')
        for r in range(Sb+56, Sb+60): a(f'v_mov_b32 {v(r)}, 0')
    def attn_init(): attn_init_a(); attn_init_b()
    def attn_loop(name, sub):
        a(f's_waitcnt vmcnt({7 if KP else 12 if opt.get("deep") else 8})')
        m = qk(Sb, 0, 0); a(m[0]); a.nop(18); a(m[1]); a(m[2]); a.nop(10); a('s_setprio 0')
        if opt.get('padA'):
            a.label('L_padA')
            a(f's_memrealtime s[94:95]\ns_waitcnt lgkmcnt(0)\ns_sub_u32 s94, s94, s80\ns_cmp_lt_u32 s94, {opt["padA"]}\ns_cbranch_scc1 L_padA')
        if not sub: a.stamp(7); a.cyc0()
        a(f'.p2align {opt.get("al", 6)}')
        for _ in range(opt.get('sh', 0)): a('s_nop 0')
        a.label(name)
        for t in range(4):
            ld = kv_loads((t+3) % 4, sCur if t == 0 else sNext)
            lp = opt.get('ldp', 0)
            if opt.get('xl') == 1 and t & 1: ld = [ld[0], '', ld[2], ld[3]]
            if opt.get('xl') == 2: ld = ['', '', '', '']
            if opt.get('xl') == 3: ld = [x.replace(' sc1', '') for x in ld]
            J = '\n'.join
            ins0, ins = [({'q': ld[0], 'm0': ld[1], 'm1': ld[2], 'm2': ld[3]}, {}),
                         ({'q': J(ld)}, {}),
                         ({'q': J(ld[:2]), 'm1': J(ld[2:])}, {}),
                         ({'q': J(ld[:2])}, {'q': J(ld[2:])}),
                         ({'q': ld[0], 'm1': ld[1]}, {'q': ld[2], 'm3': ld[3]}),
                         ({'m0': ld[0], 'm2': ld[1], 'm4': ld[2]}, {'m2': ld[3]})][lp]
            if opt.get('deep'):
                ins0 = {'q': J(ld[2:]) + '\ns_waitcnt vmcnt(12)'}
                ins = {'q': J(kv_loads(t, sNext)[:2])}
            step(0, t, ins0, sub)
            ins['p'] = f's_waitcnt vmcnt({7 if KP else 10 if opt.get("deep") else 8 - sum(len(x.split(chr(10))) for x in ins.values())})'
            if t == 3:
                ins['m3'] = ins.get('m3', '') + '\n' + adv_groups
                ins['m4'] = f's_sub_u32 {s(sN)}, {s(sN)}, 1\ns_cmp_lg_u32 {s(sN)}, 0'
            step(1, t, ins, sub)
        if opt.get('p5'):
            a(f's_memtime s[94:95]\ns_waitcnt lgkmcnt(0)\ns_mov_b32 m0, {s(sN)}\ns_sub_u32 s94, s94, s93\nv_writelane_b32 v243, s94, m0\ns_cmp_lg_u32 {s(sN)}, 0')
        a(f's_cbranch_scc1 {name}')
        a.nop(1)
        mfma(a, Ob + 48, Vb + 28, Sb + 56, Ob + 48)
    def first_loads():
        for t in range(4): a(f'buffer_load_dwordx4 {v(Qr+4*t,4)}, {v(v16)}, {srd(sWS)}, {s(sQm)} offen offset:{1024*t} sc1')
        for j in range(2): a(f'buffer_load_dword {v(QLr+2*j)}, v7, {srd(sWS)}, {s(sQl)} offen offset:{512*j} sc1')
        for b in range(3):
            for x in kv_loads(b, sCur): a(x)
        if opt.get('deep'):
            for x in kv_loads(3, sCur)[:2]: a(x)
    a(f'v_readfirstlane_b32 {s(sTok)}, {v(vTok)}\ns_cmp_lg_u32 {s(sIdle)}, 0\ns_cbranch_scc1 L_pidle')
    if opt.get('cs') or opt.get('sl2') == 2: lds_wait(a, 2, C_G, 8, sl=0)
    else: a('s_barrier')
    ef = opt.get('ef', 15)
    if opt.get('sl2') == 2:
        vm = VM(); vm.add('sb')
        issue_chunk(a, 14); vm.add(14, 8)
        start_groups(); attn_init_a()
        a(f's_waitcnt vmcnt({vm.after("sb")})')
        last_signals(a, 2, C_F1, 4, T1)
        a.stamp(5)
        lds_wait(a, 2, C_G, 12, sl=0)
        issue_chunk(a, 15); vm.add(15, 8)
        attn_init_b(); tail_setup()
        for j in range(14, ef + 1):
            a(f's_waitcnt vmcnt({vm.after(j)})\ns_barrier')
            if j == ef: a(f'buffer_load_dword v2, {v(vPoll)}, {srd(sWS)}, 0 offen sc1'); vm.add('fl')
            issue_chunk(a, j + 2); vm.add(j + 2, 8)
    elif opt.get('sl2'):
        vm = VM(); vm.add('sb')
        start_groups(); attn_init_a()
        sig = opt.get('sig2', 13)
        for j in range(12, 16):
            w = [vm.after(j)] if j >= 14 else []
            if j == sig: w.append(vm.after('sb'))
            if w: a(f's_waitcnt vmcnt({min(w)})')
            if j == sig:
                last_signals(a, 2, C_F1, 4, T1)
                a.stamp(5)
            a('s_barrier')
            if j == 15: a(f'buffer_load_dword v2, {v(vPoll)}, {srd(sWS)}, 0 offen sc1'); vm.add('fl')
            issue_chunk(a, j + 2); vm.add(j + 2, 8)
            if j == sig: attn_init_b()
            if j == 14: tail_setup()
    else:
        issue_chunk(a, 14); vm.add(14, 8)
        start_groups(); attn_init_a()
    for j in range(12, 16 if not opt.get('sl2') else 0):
        sig = opt.get('sig', 13)
        a(f's_waitcnt vmcnt({min(vm.after(j), vm.after("sb")) if j == sig else vm.after(j)})')
        if j == sig:
            last_signals(a, 2, C_F1, 4, T1)
            a.stamp(5)
        a('s_barrier')
        if j == 14: a(f'buffer_load_dword v2, {v(vPoll)}, {srd(sWS)}, 0 offen sc1'); vm.add('fl')
        if j + 3 <= 17: issue_chunk(a, j + 3); vm.add(j + 3, 8)
        if j == sig: attn_init_b()
        if j == 13: tail_setup()
    a(f's_waitcnt vmcnt(8)\nv_cmp_ne_u32 vcc, {s(sTok)}, v2\ns_cbranch_vccnz L_late')
    nfl = 17 if KP else 18
    if ef == 14:
        a('s_barrier')
        issue_chunk(a, 17)
        first_loads()
        a(f's_waitcnt vmcnt({8 + nfl})\ns_barrier\ns_waitcnt vmcnt({nfl})\ns_barrier\ns_branch L_go')
        a.label('L_late')
        a('s_barrier')
        issue_chunk(a, 17)
        a('s_waitcnt vmcnt(8)\ns_barrier\ns_waitcnt vmcnt(0)\ns_barrier')
    else:
        a('s_barrier')
        first_loads()
        a(f's_waitcnt vmcnt({nfl})\ns_barrier\ns_branch L_go')
        a.label('L_late')
        a('s_barrier\ns_waitcnt vmcnt(0)\ns_barrier')
    if a.diag: a('s_mov_b32 s82, -1')
    a('s_branch L_poll')
    a.label('L_pidle')
    start_groups(); attn_init(); tail_setup()
    a.label('L_poll')
    poll_flags(a, vPoll, 2)
    first_loads()
    a.label('L_go')
    a('s_mov_b32 s59, 0x07060302')
    a.stamp(6)
    attn_loop('L_attn', False)
    a.cyc1()
    if opt.get('padB'):
        a.label('L_padB')
        a(f's_memrealtime s[94:95]\ns_waitcnt lgkmcnt(0)\ns_sub_u32 s94, s94, s80\ns_cmp_lt_u32 s94, {opt["padB"]}\ns_cbranch_scc1 L_padB')
    a.stamp(8)
    a.nopk = True
    a(f'''s_setprio 2
    s_mov_b32 {s(T0)}, {f2u(2.0**-64):#x}
    s_mov_b32 {s(T6)}, {f2u(2.0**64):#x}
    s_mov_b32 {s(T7)}, {f2u(2.0**120):#x}
    s_cmp_eq_u32 {s(sMG)}, 0
    s_cbranch_scc1 L_red0''')
    def hint(k):
        if opt.get('hint', 1) == k: a(f's_mov_b64 exec, 1\nbuffer_store_dword {v(vHint+1)}, {v(vHint)}, {srd(sWS)}, 0 offen sc1\ns_mov_b64 exec, -1')
    for kh in (1, 0):
        O2 = [Ob + 32*kh, Ob + 32*kh + 16]; P2 = [Ob + 32*(1-kh), Ob + 32*(1-kh) + 16]
        a.label(f'L_red{kh}')
        a.c('exchange partial sums with the wave that did the other half of the keys; this wave keeps query pair kh')
        if kh == 0: a.nop(6)
        for t in range(2):
            o = P2[t]
            a(f'ds_write_b128 {v(vRw)}, {v(o,4)} offset:{3072*t}\nds_write_b128 {v(vRw)}, {v(o+4,4)} offset:{3072*t+1024}\nds_write_b96 {v(vRw)}, {v(o+8,3)} offset:{3072*t+2048}')
        hint(0)
        if opt.get('p4'): a.stamp(3)
        a(f's_waitcnt vmcnt({1 if opt.get("hint", 1) == 0 else 0}) lgkmcnt(0)')
        a('s_barrier')
        if opt.get('p4'): a.stamp(5)
        for part in range(3):
            for t in range(2):
                o = P2[t]
                a([f'ds_read_b96 {v(o+8,3)}, {v(vRr)} offset:{3072*t+2048}', f'ds_read_b128 {v(o,4)}, {v(vRr)} offset:{3072*t}', f'ds_read_b128 {v(o+4,4)}, {v(vRr)} offset:{3072*t+1024}'][part])
        a.c('hint for the consumers that these rows are about to be written; they check the data itself against the marker')
        hint(1)
        a.c('the softmax above used 0 in place of the row max: safe only while the sums stay finite and well away from 0')
        a('s_waitcnt lgkmcnt(4)')
        for t in range(2): a(f'v_add_f32 {v(O2[t]+10)}, {v(O2[t]+10)}, {v(P2[t]+10)}')
        for t in range(2): a(f'v_pk_add_f32 {v(O2[t]+8,2)}, {v(O2[t]+8,2)}, {v(P2[t]+8,2)}')
        a(f'''v_min_f32 v2, {v(O2[0]+10)}, {v(O2[1]+10)}
        v_add_f32 v3, {v(O2[0]+10)}, {v(O2[1]+10)}
        v_cmp_nle_f32 {s(sChk,2)}, {s(T0)}, v2
        v_cmp_nge_f32 vcc, {s(T6)}, v3
        v_maximum3_f32 v2, abs({v(O2[0]+8)}), abs({v(O2[0]+9)}), abs({v(O2[1]+8)})
        s_waitcnt lgkmcnt(2)''')
        for i in (0, 2):
            for t in range(2): a(f'v_pk_add_f32 {v(O2[t]+i,2)}, {v(O2[t]+i,2)}, {v(P2[t]+i,2)}')
        a(f'''s_or_b64 {s(sChk,2)}, {s(sChk,2)}, vcc
        v_maximum3_f32 v3, abs({v(O2[1]+9)}), abs({v(O2[0])}), abs({v(O2[0]+1)})
        v_maximum3_f32 v2, v2, abs({v(O2[1])}), abs({v(O2[1]+1)})
        v_maximum3_f32 v3, v3, abs({v(O2[0]+2)}), abs({v(O2[0]+3)})
        v_maximum3_f32 v2, v2, abs({v(O2[1]+2)}), abs({v(O2[1]+3)})
        s_waitcnt lgkmcnt(0)''')
        for i in (4, 6):
            for t in range(2): a(f'v_pk_add_f32 {v(O2[t]+i,2)}, {v(O2[t]+i,2)}, {v(P2[t]+i,2)}')
        a(f'''v_maximum3_f32 v3, v3, abs({v(O2[0]+4)}), abs({v(O2[0]+5)})
        v_maximum3_f32 v2, v2, abs({v(O2[1]+4)}), abs({v(O2[1]+5)})
        v_maximum3_f32 v3, v3, abs({v(O2[0]+6)}), abs({v(O2[0]+7)})
        v_maximum3_f32 v2, v2, abs({v(O2[1]+6)}), abs({v(O2[1]+7)})
        v_maximum3_f32 v2, v2, v3, v3
        v_cmp_ngt_f32 vcc, {s(T7)}, v2
        s_or_b64 {s(sChk,2)}, {s(sChk,2)}, vcc
        s_cbranch_scc1 L_fallback''')
        if kh == 0: a.label('L_norm')
        o_publish(a, O2, P2, False, sOB)
        if kh == 1: a('s_branch L_pub')
    a.label('L_pub')
    a.stamp(9)
    if opt.get('p4'): a.stamp(2)
    flag_ld(a)
    final_state(a)
    op_read_w(a, FW, vWb, sXb)
    if opt.get('nojq'): a('s_waitcnt lgkmcnt(0)'); lds_arrive(a, C_WB)
    a('s_setprio 0')
    a('s_branch L_final')

    a.nopk = False
    a.label('L_fallback')
    a.c('the stand-in was unsafe for one of this wave\'s rows: redo its two query tiles over all keys with the true row max')
    vK2, vKL2 = 2, 3
    a(f'v_mov_b32 v8, {v(vWr)}\nv_mov_b32 v9, {v(vRd)}')
    su_vgat(a)
    a(f'v_mov_b32 v10, {v(vVf)}\nv_mov_b32 v11, {v(vVf+1)}\nv_mov_b32 {v(vWr)}, v8\nv_mov_b32 {v(vRd)}, v9')
    kl_const(a, sCur2, sH)
    a(f'''v_and_b32 v3, 31, v0
    v_lshl_add_u32 v3, v3, 3, {s(sCur2)}
    s_mul_i32 {s(sLo2)}, {s(sH)}, {HREC}
    s_add_u32 {s(sLo2)}, {s(sLo2)}, {KV:#x}
    s_add_u32 {s(sHi2)}, {s(sLo2)}, {HREC}
    s_cmp_eq_u32 {s(sMG)}, 0
    s_cbranch_scc1 L_fb0''')
    for i in range(8): a(f'v_mov_b32 {v(Qr+i)}, {v(Qr+8+i)}')
    a(f'v_mov_b32 {v(QLr)}, {v(QLr+2)}')
    a.label('L_fb0')
    for t in range(2): a(f'v_mov_b32 {v(M+t)}, 0xff800000')
    for r in range(Ob, Ob + 32): a(f'v_mov_b32 {v(r)}, 0')
    for ps in range(2):
        a(f's_mov_b32 {s(sCur2)}, {s(sLo2)}')
        a.label(f'L_fbloop{ps}')
        a(f'buffer_load_dwordx4 {v(Kb,4)}, {v(v16)}, {srd(sWS)}, {s(sCur2)} offen sc1\nbuffer_load_dword {v(KLb)}, v3, {srd(sWS)}, {s(sCur2)} offen sc1')
        if ps:
            for f in range(2): a(f'buffer_load_dwordx4 {v(Vb+4*f,4)}, {v(10+f)}, {srd(sWS)}, {s(sCur2)} offen sc1')
        a('s_waitcnt vmcnt(0)')
        m = qk(Sb, 0, 0); a(m[0]); a.nop(18); a(m[1]); a(m[2]); a.nop(12)
        if ps == 0:
            for t in range(2):
                for i in range(0, 16, 2): a(f'v_max3_f32 {v(M+t)}, {v(Sb+16*t+i)}, {v(Sb+16*t+i+1)}, {v(M+t)}')
        else:
            for i in range(32): a(f'v_sub_f32 {v(Sb+i)}, {v(Sb+i)}, {v(M + i//16)}')
            for i in range(32): a(f'v_exp_f32 {v(Sb+i)}, {v(Sb+i)}')
            for q in range(4): cvt8(a, Sb + 8*q, Sb + 8*q)
            a.nop(1)
            for t in range(2):
                for f in range(2): mfma(a, Ob + 16*t, Vb + 4*f, Sb + 16*t + 8*f, Ob + 16*t)
        a(f's_add_u32 {s(sCur2)}, {s(sCur2)}, {REC}\ns_cmp_lg_u32 {s(sCur2)}, {s(sHi2)}\ns_cbranch_scc1 L_fbloop{ps}')
        if ps == 0:
            for t in range(2): a(f'v_mov_b32 {v(Sb+t)}, {v(M+t)}')
            a.nop(2)
            for t in range(2): a(f'v_permlane32_swap_b32 {v(Sb+t)}, {v(M+t)}')
            a.nop(1)
            for t in range(2): a(f'v_max_f32 {v(M+t)}, {v(M+t)}, {v(Sb+t)}')
    a.nop(12)
    a('s_branch L_norm')

def o_addr(a, shead, M_, L_, T2=T2):
    T3, T4, T5 = T2 + 1, T2 + 2, T2 + 3
    a(f'''s_lshl_b32 {s(T0)}, {s(T0)}, 5
    s_add_u32 {s(T0)}, {s(T0)}, {s(shead)}
    s_lshl_b32 {s(T2)}, {s(T0)}, 10
    s_add_u32 {s(T2)}, {s(T2)}, {M_:#x}
    s_add_u32 {s(T3)}, {s(T2)}, 0x8000
    s_lshl_b32 {s(T4)}, {s(T0)}, 7
    s_add_u32 {s(T4)}, {s(T4)}, {L_:#x}
    s_add_u32 {s(T5)}, {s(T4)}, 0x1000''')

def o_publish(a, O, P, eps, T2=T2):
    T4 = T2 + 2
    for o in O:
        if eps: a(f'v_add_f32 {v(o+10)}, {f2u(1e-6):#x}, {v(o+10)}')
    for o in O: a(f'v_rcp_f32 {v(o+10)}, {v(o+10)}')
    for t in range(2):
        o, p = O[t], P[t]
        if t == 0: a('s_nop 0')
        for i in range(0, 10, 2): a(f'v_pk_mul_f32 {v(o+i,2)}, {v(o+i,2)}, {v(o+10,2)} op_sel_hi:[1,0]')
        cvt8(a, o, p)
        if not eps:
            for i in range(4): a(f'v_min_u32 {v(p+i)}, -2, {v(p+i)}')
        a(f'buffer_store_dwordx4 {v(p,4)}, {v(v16)}, {srd(sWS)}, {s(T2+t)} offen sc1')
        a(f'v_cvt_pk_bf16_f32 {v(p+4)}, {v(o+8)}, {v(o+9)}')
        if not eps: a(f'v_min_u32 {v(p+4)}, -2, {v(p+4)}')
    a('s_mov_b32 exec_hi, 0')
    for t in range(2): a(f'buffer_store_dword {v(P[t]+4)}, {v(vQL)}, {srd(sWS)}, {s(T4+t)} offen sc1')
    a('s_mov_b32 exec_hi, -1')

FW, FO, FA = 16, 124, 160
vFlg, vFol, vWr, vRd, vOut = 250, 251, 252, 253, 255
ACA = [212, 228, 196]
QS = 1088; WSTR = 8*QS; ARED = M_A; EXR = X_A; BRED = M_C
sM, sM2, sL, sA, sB_, sC, sO, sO2 = 64, 65, sIdle, 56, 57, 63, 100, 101
sTB, sXa, sXb = sLoc, sXcd, sTile
vP4, vWb = 254, 236
def extra_flags(a):
    a(f'''s_lshr_b32 {s(sTB)}, {s(sWave)}, 2
    s_xor_b32 {s(sTB)}, {s(sTB)}, {s(sTH)}
    s_and_b32 s3, {s(sOC)}, 5
    s_cmp_eq_u32 s3, {s(sTH)}
    s_cselect_b32 {s(sXa)}, 1, 0
    s_or_b32 {s(sXb)}, {s(sTB)}, 4
    s_cmp_eq_u32 s3, {s(sXb)}
    s_cselect_b32 {s(sXb)}, 1, 0''')
def final_setup(a):
    a(f'''v_and_b32 v1, 31, v0
    v_lshrrev_b32 v2, 5, v0
    v_lshlrev_b32 v3, 2, v1
    v_lshl_add_u32 {v(vFol)}, v2, 9, v3
    s_lshl_b32 {s(T1)}, {s(sOT)}, 1
    s_add_u32 {s(T0)}, {s(sTB)}, {s(T1)}
    s_lshl_b32 {s(T0)}, {s(T0)}, 5
    s_lshr_b32 {s(T1)}, {s(sWave)}, 1
    s_lshl_b32 {s(T1)}, {s(T1)}, 3
    s_add_u32 {s(T0)}, {s(T0)}, {s(T1)}
    s_lshl_b32 {s(sM)}, {s(T0)}, 10
    s_add_u32 {s(sM)}, {s(sM)}, {OBM:#x}
    s_add_u32 {s(sM2)}, {s(sM)}, 4096
    s_lshl_b32 {s(sL)}, {s(T0)}, 7
    s_add_u32 {s(sL)}, {s(sL)}, {OBL:#x}
    s_lshl_b32 {s(T0)}, {s(sOT)}, 5
    s_add_u32 {s(T0)}, {s(T0)}, {s(T1)}
    v_and_b32 v3, 7, v0
    v_add_u32 v1, {s(T0)}, v3
    v_lshlrev_b32 v1, 7, v1
    v_add_u32 {v(vP4)}, {FL4:#x}, v1
    s_and_b32 {s(T0)}, {s(sWave)}, 6
    s_add_u32 {s(T0)}, {s(T0)}, {s(sTB)}
    s_mul_i32 {s(T0)}, {s(T0)}, {WSTR}
    s_add_u32 {s(T0)}, {s(T0)}, {BRED}
    v_add_u32 {v(vWr)}, {s(T0)}, {v(v16)}
    s_mul_i32 {s(T0)}, {s(sOT)}, {64*2304}
    s_lshl_b32 {s(T1)}, {s(sOC)}, 7
    s_add_u32 {s(sO)}, {s(T0)}, {s(T1)}
    s_add_u32 {s(sO2)}, {s(sO)}, 1152
    v_lshrrev_b32 v1, 3, v0
    s_lshl_b32 {s(T0)}, {s(sWave)}, 3
    v_add_u32 v2, {s(T0)}, v1
    v_mul_u32_u24 v2, 2304, v2
    v_lshl_add_u32 {v(vOut)}, v3, 4, v2
    v_mul_u32_u24 v3, {QS}, v3
    v_lshl_add_u32 v3, v1, 4, v3
    s_lshr_b32 {s(T0)}, {s(sWave)}, 2
    s_mul_i32 {s(T0)}, {s(T0)}, {WSTR}
    s_lshl_b32 {s(T1)}, {s(sW4)}, 7
    s_add_u32 {s(T0)}, {s(T0)}, {s(T1)}
    v_add_u32 {v(vRd)}, {s(T0)}, v3''')
def flag_ld(a, r=vFlg): a(f'buffer_load_dword {v(r)}, {v(vP4)}, {srd(sWS)}, 0 offen sc1')
def final_state(a): a(f's_mov_b32 {s(sA)}, 0\ns_mov_b32 {s(sB_)}, 0\ns_mov_b32 {s(sC)}, 0')
def half_ld(a, h):
    for i in range(4): a(f'buffer_load_dwordx4 {v(FO+16*h+4*i,4)}, {v(v16)}, {srd(sWS)}, {s(sM2 if h else sM)} offen offset:{1024*i} sc1')
def left_ld(a):
    for i in range(4): a(f'buffer_load_dword {v(FO+32+i)}, {v(vFol)}, {srd(sWS)}, {s(sL)} offen offset:{128*i} sc1')
def half_try(a, again=False):
    for h, st in ((0, sA), (1, sB_)):
        lb = a.new('fl'); go = a.new('fg')
        if again: a(f's_cmp_eq_u32 {s(st)}, 1\ns_cbranch_scc1 {go}')
        a(f's_and_b32 {s(T0)}, vcc_lo, {0xf0 if h else 0x0f}\ns_or_b32 {s(T0)}, {s(T0)}, {s(st)}\ns_cbranch_scc1 {lb}\ns_mov_b32 {s(st)}, 1')
        a.label(go)
        half_ld(a, h)
        a.label(lb)
def final(a):
    a.label('L_final')
    a.c('================= all waves: out projection of B =================')
    a.c('this wave needs 8 heads, 4 from each of two producer groups: load each half as soon as its flags are up')
    def mm(steps):
        for st in steps:
            for T in range(2): mfma(a, FA + 16*T, FW + 8*st + 4*T, FO + 4*st, None if st == 0 else FA + 16*T)
        lb = a.new('nx')
        a(f's_cmp_eq_u32 {s(sXb)}, 0\ns_cbranch_scc1 {lb}')
        for st in steps: mfma(a, FA + 32, FW + 72 + 4*st, FO + 4*st, None if st == 0 else FA + 32)
        a.label(lb)
    def pending0():
        lb = a.new('fm')
        a(f's_cmp_lg_u32 {s(sA)}, 2\ns_cbranch_scc1 {lb}\ns_mov_b32 {s(sA)}, 3')
        mm(range(4))
        a.label(lb)
    def verify(st, r, n):
        lb = a.new('fv')
        a(f's_cmp_lg_u32 {s(st)}, 1\ns_cbranch_scc1 {lb}')
        a(f'v_max3_u32 v2, {v(r)}, {v(r+1)}, {v(r+2)}')
        if n == 4: a(f'v_max_u32 v2, v2, {v(r+3)}')
        else:
            a(f'v_max3_u32 v3, {v(r+3)}, {v(r+4)}, {v(r+5)}')
            for i in range(6, 16, 4): a(f'v_max3_u32 v2, v2, {v(r+i)}, {v(r+i+1)}' + (f'\nv_max3_u32 v3, v3, {v(r+i+2)}, {v(r+i+3)}' if i + 3 < 16 else ''))
            a('v_max_u32 v2, v2, v3')
        a(f'v_cmp_eq_u32 {s(60,2)}, -1, v2\ns_cmp_lg_u64 {s(60,2)}, 0\ns_cselect_b32 {s(st)}, 0, 2')
        a.label(lb)
    a.label('L_fpoll')
    a('s_waitcnt vmcnt(0) lgkmcnt(0)')
    verify(sA, FO, 16); verify(sB_, FO + 16, 16); verify(sC, FO + 32, 4)
    a(f's_min_u32 {s(T0)}, {s(sA)}, {s(sB_)}\ns_min_u32 {s(T0)}, {s(T0)}, {s(sC)}\ns_cmp_ge_u32 {s(T0)}, 2\ns_cbranch_scc1 L_fgo')
    a(f'v_cmp_ne_u32 vcc, {s(sTok)}, {v(vFlg)}')
    half_try(a)
    lb = a.new('fc'); l2 = a.new('fd')
    a(f's_min_u32 {s(T0)}, {s(sA)}, {s(sB_)}\ns_cmp_eq_u32 {s(T0)}, 0\ns_cbranch_scc1 {lb}\ns_cmp_eq_u32 {s(sC)}, 2\ns_cbranch_scc1 {l2}\ns_mov_b32 {s(sC)}, 1')
    for i in range(4): a(f'buffer_load_dword {v(FO+32+i)}, {v(vFol)}, {srd(sWS)}, {s(sL)} offen offset:{128*i} sc1')
    a(f's_branch {l2}')
    a.label(lb)
    flag_ld(a)
    a.label(l2)
    pending0()
    spin_tail(a, 'L_fpoll', OPT.get('fsl', 0))
    a.label('L_fgo')
    a.stamp(10)
    pending0()
    if OPT.get('nojq'): a(f'ds_read_b32 v6, {v(vCnt)} offset:{C_WB}')
    mm(range(4, 9))
    if OPT.get('p4'): a.stamp(6)
    if OPT.get('nojq'):
        a(f's_waitcnt lgkmcnt(0)\nv_readfirstlane_b32 {s(T0)}, v6\ns_cmp_ge_u32 {s(T0)}, 8\ns_cbranch_scc1 L_wbok')
        lds_wait(a, 6, C_WB, 8, sl=0)
        a.label('L_wbok')
    else: a('s_barrier')
    if OPT.get('p4'): a.stamp(7)
    a(f'''v_add_u32 v7, {ARED}, {v(vRd)}
    v_add_u32 {v(vRd)}, {BRED}, {v(vRd)}
    v_lshrrev_b32 v2, 2, v0
    s_lshl_b32 {s(T0)}, {s(sWave)}, 4
    v_add_u32 v2, {s(T0)}, v2
    v_and_b32 v3, 3, v0
    v_mul_u32_u24 v5, 2304, v2
    v_lshl_add_u32 v5, v3, 4, v5
    v_mul_u32_u24 v3, {QS}, v3
    v_lshl_add_u32 v4, v2, 4, v3
    v_add_u32 v4, {EXR}, v4''')
    for q in range(8): a(f'ds_write_b128 {v(vWr)}, {v(FA+4*q,4)} offset:{QS*q}')
    a(f'''s_cmp_eq_u32 {s(sXb)}, 0
    s_cbranch_scc1 L_fnx
    s_lshr_b32 {s(T0)}, {s(sWave)}, 1
    s_mul_i32 {s(T0)}, {s(T0)}, {4*QS}
    s_add_u32 {s(T0)}, {s(T0)}, {EXR}
    v_add_u32 v1, {s(T0)}, {v(v16)}''')
    for q in range(4): a(f'ds_write_b128 v1, {v(FA+32+4*q,4)} offset:{QS*q}')
    a.label('L_fnx')
    a('s_waitcnt lgkmcnt(0)\ns_barrier')
    a.stamp(11)
    a.c('sum the partials in output order: one 16-byte piece of a row per lane')
    def rd(R, vr, n, stride):
        for k in range(n):
            for h in range(2): a(f'ds_read_b128 {v(R+8*k+4*h,4)}, {v(vr)} offset:{stride*k + 512*h}')
    def fin(R, n, vo, so, pol):
        for k in range(1, n):
            for i in range(4): a(f'v_pk_add_f32 {v(R+2*i,2)}, {v(R+2*i,2)}, {v(R+8*k+2*i,2)}')
        cvt8(a, R, R)
        a(f'buffer_store_dwordx4 {v(R,4)}, {v(vo)}, {srd(sOUT)}, {s(so)} offen{opol(pol)}')
    rd(16, vRd, 4, 2*WSTR); rd(48, 7, 2, 2*WSTR)
    a(f'''s_cmp_gt_u32 {s(sWave)}, 1
    s_cbranch_scc1 L_fin_a
    s_mul_i32 {s(T0)}, {s(sOT)}, {64*2304}
    s_and_b32 {s(T1)}, {s(sOC)}, 1
    s_mul_i32 {s(T1)}, {s(T1)}, {32*2304}
    s_add_u32 {s(T0)}, {s(T0)}, {s(T1)}
    s_and_b32 {s(T1)}, {s(sOC)}, 2
    s_lshl_b32 {s(T1)}, {s(T1)}, 5
    s_add_u32 {s(T0)}, {s(T0)}, {s(T1)}
    s_add_u32 {s(T0)}, {s(T0)}, 1024
    s_bitcmp1_b32 {s(sOC)}, 2
    s_cbranch_scc0 L_fin_x
    s_add_u32 {s(T0)}, {s(T0)}, 1152''')
    rd(64, 4, 4, 4*QS); a('s_waitcnt lgkmcnt(0)'); fin(64, 4, 5, T0, 'osb'); a('s_branch L_fin_a')
    a.label('L_fin_x')
    rd(64, 4, 2, 4*QS); a('s_waitcnt lgkmcnt(0)'); fin(64, 2, 5, T0, 'osa')
    a.label('L_fin_a')
    a('s_waitcnt lgkmcnt(4)'); fin(16, 4, vOut, sO2, 'osb')
    a('s_waitcnt lgkmcnt(0)'); fin(48, 2, vOut, sO, 'osa')
    if OPT.get('padto'):
        a.label('L_pad')
        a(f's_memrealtime s[94:95]\ns_waitcnt lgkmcnt(0)\ns_sub_u32 s94, s94, s80\ns_cmp_lt_u32 s94, {OPT["padto"]}\ns_cbranch_scc1 L_pad')
    if a.diag:
        a('s_waitcnt vmcnt(0)')
        a.stamp(12)
        a.label('L_dump')
        a(f's_lshl_b32 {s(T0)}, s2, 3\ns_add_u32 {s(T0)}, {s(T0)}, {s(sWave)}\ns_lshl_b32 {s(T0)}, {s(T0)}, 7\ns_add_u32 {s(T0)}, {s(T0)}, {STAMPS:#x}')
        for k in range(16): a(f'v_mov_b32 {v(16+k)}, {s(SSTAMP+k)}')
        a(f's_lshl_b32 {s(T1)}, {s(T0)}, 1\ns_sub_u32 {s(T1)}, {s(T1)}, {STAMPS - 0x80000:#x}\nbuffer_store_dword v243, {v(vQL)}, {srd(sWS)}, {s(T1)} offen')
        a('v_mov_b32 v1, 0\ns_mov_b64 exec, 1')
        for k in range(4): a(f'buffer_store_dwordx4 {v(16+4*k,4)}, v1, {srd(sWS)}, {s(T0)} offen offset:{16*k}')
    a('s_endpgm')
    for f in a.late: f()
    a.label('L_end')
    a('s_endpgm')

WPH, WLq, WLk, vG, vPh, vPr, RAW = 8, 12, 14, 16, 18, 19, 160
sQa, sRec, sTl, sF1A, sLoB, sHiB, sC2 = 56, 57, 58, 59, 60, 61, 62
vXs, vF3, vF2, vVfL, vTokL = 236, 242, 243, 21, 170
def a_setup(a, part):
    if part == 0:
        a.c('feature-map weights (rows follow the rotated dim order of odd heads)')
        a(f'''v_and_b32 v1, 31, v0
        v_lshrrev_b32 v2, 5, v0
        v_cmp_eq_u32 vcc, 20, v1
        v_mov_b32 v3, 17
        v_mov_b32 v4, {OOB:#x}
        v_cndmask_b32 v3, v1, v3, vcc
        v_cmp_ge_u32 {s(T0,2)}, 16, v1
        s_or_b64 vcc, vcc, {s(T0,2)}
        v_lshlrev_b32 v3, 1, v3
        s_mul_i32 {s(T2)}, {s(sHA)}, 648
        v_cndmask_b32 v3, v4, v3, vcc
        v_mul_u32_u24 v5, 288, v2
        v_add_u32 v4, v3, v5
        s_and_b32 {s(T0)}, {s(sHA)}, 1
        s_mul_i32 {s(T1)}, {s(T0)}, 72
        s_add_u32 {s(T3)}, {s(T2)}, {s(T1)}
        s_mul_i32 {s(T1)}, {s(T0)}, 576
        s_sub_u32 {s(T2)}, {s(T2)}, {s(T1)}
        s_add_u32 {s(T2)}, {s(T2)}, 576''')
        for e in range(8):
            a(f'buffer_load_ushort {v(RAW + e)}, v4, {srd(sPHI)}, {s(T3)} offen offset:{e*36}')
        a(f'buffer_load_ushort {v(RAW+8)}, v3, {srd(sPHI)}, {s(T2)} offen\nbuffer_load_ushort {v(RAW+9)}, v3, {srd(sPHI)}, {s(T2)} offen offset:36')
    if part == 1:
        a.c('wo image lane offsets; flags of the producers of this wave\'s rows')
        a(f'''v_lshrrev_b32 v3, 3, v0
        v_bfe_u32 v4, v0, 4, 1
        v_lshlrev_b32 v4, 2, v4
        v_and_b32 v5, 7, v0
        v_xor_b32 v4, v4, v5
        v_mul_u32_u24 v3, 1152, v3
        v_lshl_add_u32 {v(vWO)}, v4, 4, v3
        v_lshrrev_b32 v3, 2, v0
        v_mul_u32_u24 v3, 1152, v3
        v_and_b32 v4, 3, v0
        v_lshl_add_u32 {v(vWO+1)}, v4, 4, v3''')
        a('v_lshrrev_b32 v4, 1, v0\nv_min_u32 v4, 2, v4\nv_and_b32 v5, 1, v0')
        producer_ct(a, 3, 4, 5, sHA, 6)
        a(f'''s_lshl_b32 {s(T0)}, {s(sRB)}, 1
        s_add_u32 {s(T0)}, {s(T0)}, {s(sMG)}
        v_lshl_add_u32 v3, v3, 4, {s(T0)}
        v_lshlrev_b32 v3, 7, v3
        v_add_u32 {v(vPoll)}, {FL1A:#x}, v3''')
    if part == 2:
        a.c('image addresses: tile = 8rb + 2w; leftover gather (half 0: q, half 1: k)')
        a(f'''s_lshl_b32 {s(sTl)}, {s(sRB)}, 3
        s_lshl_b32 {s(T1)}, {s(sW4)}, 1
        s_add_u32 {s(sTl)}, {s(sTl)}, {s(T1)}
        s_lshl_b32 {s(T1)}, {s(sHA)}, 6
        s_add_u32 {s(T0)}, {s(sTl)}, {s(T1)}
        s_lshl_b32 {s(sQa)}, {s(T0)}, 10
        s_add_u32 {s(sQa)}, {s(sQa)}, {QM + AOFF:#x}
        s_mul_i32 {s(sRec)}, {s(T0)}, {REC}
        s_add_u32 {s(sRec)}, {s(sRec)}, {KV + AOFF:#x}
        s_lshr_b32 {s(T0)}, {s(sHA)}, 1
        s_lshl_b32 {s(T0)}, {s(T0)}, 6
        s_add_u32 {s(T0)}, {s(T0)}, {s(sTl)}
        s_lshl_b32 {s(T0)}, {s(T0)}, 8
        s_and_b32 {s(T1)}, {s(sHA)}, 1
        s_lshl_b32 {s(T1)}, {s(T1)}, 2
        s_add_u32 {s(T0)}, {s(T0)}, {s(T1)}
        s_add_u32 {s(T0)}, {s(T0)}, {QL + AOFF:#x}
        v_mov_b32 v3, {s(T0)}''')
        kl_const(a, T1, sHA)
        a(f'''s_add_u32 {s(T1)}, {s(T1)}, {s(sRec)}
        v_mov_b32 v4, {s(T1)}
        v_mov_b32 v5, 256
        v_mov_b32 v6, {REC}
        v_cmp_gt_u32 vcc, 32, v0
        v_and_b32 v1, 31, v0
        v_lshrrev_b32 v2, 5, v0
        v_cndmask_b32 v3, v4, v3, vcc
        v_cndmask_b32 v5, v6, v5, vcc
        v_lshl_add_u32 {v(vG)}, v1, 3, v3
        v_add_u32 {v(vG+1)}, {v(vG)}, v5''')
        flag_addr(a, sF1A, sCT, sRT, 4, FL1A)
        a(f's_cmp_lg_u32 {s(sIdle)}, 0\ns_cselect_b32 {s(sF1A)}, {OOB:#x}, {s(sF1A)}')
    if part == 3:
        a.c('phi scratch: row-per-token writes, transposed reads')
        a(f'''s_mul_i32 {s(T0)}, {s(sW4)}, 5120
        s_add_u32 {s(T0)}, {s(T0)}, {PHS}
        v_and_b32 v1, 31, v0
        v_lshrrev_b32 v2, 5, v0
        v_mul_u32_u24 v3, 80, v1
        v_lshl_add_u32 v3, v2, 3, v3
        v_add_u32 {v(vPh)}, {s(T0)}, v3
        v_bfe_u32 v3, v0, 2, 2
        v_lshl_add_u32 v5, v2, 2, v3
        v_mul_u32_u24 v5, 80, v5
        v_add_u32 v5, {s(T0)}, v5
        v_and_b32 v4, 3, v0
        v_lshlrev_b32 v6, 3, v4
        v_and_b32 v3, 1, v0
        v_lshlrev_b32 v3, 3, v3
        v_add_u32 v3, 64, v3
        v_bfe_u32 v4, v0, 4, 1
        v_cmp_eq_u32 vcc, 0, v4
        v_add_u32 {v(vPr+1)}, v5, v6
        v_mov_b32 {v(WLq+1)}, 0
        v_cndmask_b32 v6, v3, v6, vcc
        v_mov_b32 {v(WLk+1)}, 0
        v_add_u32 {v(vPr)}, v5, v6''')
    if part == 5:
        a.c('wo fragment addresses; flags of the kv partials and of the o_A rows')
        extra_flags(a)
        a(f's_mul_i32 {s(T2)}, {s(sMG)}, {MB}\ns_add_u32 {s(T2)}, {s(T2)}, {LATE}\ns_mul_i32 {s(T3)}, {s(sMG)}, {EB}\ns_add_u32 {s(T3)}, {s(T3)}, {LATE + 2*MB}')
        op_addr(a, vXs, 2, T2, T3)
        a(f'''s_lshl_b32 {s(T0)}, {s(sOT)}, 1
        s_add_u32 {s(T0)}, {s(T0)}, {s(sMG)}
        s_lshl_b32 {s(T0)}, {s(T0)}, 11
        s_add_u32 {s(T0)}, {s(T0)}, {FL3:#x}
        v_and_b32 v3, 15, v0
        v_lshl_add_u32 {v(vF3)}, v3, 7, {s(T0)}
        v_and_b32 v3, 7, v0
        s_lshl_b32 {s(T0)}, {s(sHA)}, 10
        s_add_u32 {s(T0)}, {s(T0)}, {FL2:#x}
        v_lshl_add_u32 {v(vF2)}, v3, 7, {s(T0)}
        s_mov_b32 {s(sLoB)}, {f2u(2.0**-64):#x}
        s_mov_b32 {s(sHiB)}, {f2u(2.0**64):#x}''')
    if part == 6: final_setup(a)
    if part == 4:
        for i in range(4): a(f'v_lshl_or_b32 {v(WPH + i)}, {v(RAW+1 + 2*i)}, 16, {v(RAW + 2*i)}')
        a(f'v_lshl_or_b32 v3, {v(RAW+9)}, 16, {v(RAW+8)}\nv_cmp_gt_u32 vcc, 32, v0\ns_nop 1\nv_cndmask_b32 {v(WLq)}, {v(vZero)}, v3, vcc\nv_cndmask_b32 {v(WLk)}, v3, {v(vZero)}, vcc')

def a_chain(a, opt):
    Fq, Fk, Fl, Fv = [36, 40], [44, 48], [52, 54], [56, 64]
    def lprio(x):
        if opt.get('lp', 1): a(f's_setprio {x}')
    a.label('L_achain')
    if a.diag and opt.get('p3'):
        a(f's_lshl_b32 {s(T0)}, s2, 3\ns_add_u32 {s(T0)}, {s(T0)}, {s(sWave)}\ns_lshl_b32 {s(T0)}, {s(T0)}, 8\ns_add_u32 {s(T0)}, {s(T0)}, {STAMPS + 0x100000:#x}\nbuffer_store_dword v175, {v(vQL)}, {srd(sWS)}, {s(T0)} offen')
    a.c('================= waves 4-7: publish A qkv, feature maps =================')
    def mains(sr, kq, slot): return [('m', (sr, kq), h, slot, 2*(kq & 1) + h) for h in range(2)]
    bg = mains(sAWO, 1, M_A) + mains(sAWO, 3, M_A + MB) + mains(sBWO, 0, M_C) + [('e', 1, 0, X_A, 2), ('e', 3, 1, X_A + EB, 3)]
    kg = opt.get('kg', 8); skip = [0, {8: (), 6: (2,), 4: (1, 3)}[kg]]
    hold = [bool(opt.get('late', 0))]
    def bgdma():
        skip[0] += 1
        if skip[1] and skip[0] % 4 in skip[1]: return
        if bg and not hold[0]: issue_grp(a, *bg.pop(0))
    a(f'''s_lshl_b32 {s(sWB)}, {s(sOC)}, 7
    s_mul_i32 s3, {s(sW4)}, {8*1152}
    s_add_u32 {s(sWB)}, {s(sWB)}, s3
    s_lshl_b32 s3, s3, 1
    s_and_b32 {s(sWE)}, {s(sOC)}, 2
    s_lshl_b32 {s(sWE)}, {s(sWE)}, 5
    s_add_u32 {s(sWE)}, {s(sWE)}, s3
    s_add_u32 {s(sWE)}, {s(sWE)}, 1024
    s_bitcmp1_b32 {s(sOC)}, 2
    s_cselect_b32 {s(sEX)}, {s(sBWO)}, {s(sAWO)}
    s_cselect_b32 {s(sEX+1)}, {s(sBWO+1)}, {s(sAWO+1)}
    s_mov_b32 {s(sEX+2)}, {576*1152}
    s_mov_b32 {s(sEX+3)}, 0x20000
    s_mov_b32 {s(T2)}, {f2u(LOG2E):#x}
    s_mov_b32 {s(T3)}, {f2u(LOG2E):#x}
    v_mov_b32 {v(Fl[0]+1)}, 0
    v_mov_b32 {v(Fl[1]+1)}, 0
    s_waitcnt vmcnt(0)''')
    last_signals(a, 2, C_F1A, 4, sF1A)
    a.stamp(5)
    poll_flags(a, vPoll, 2, sl=4)
    a.stamp(6)
    for tt in range(2):
        a(f'buffer_load_dwordx4 {v(Fk[tt],4)}, {v(v16)}, {srd(sWS)}, {s(sRec)} offen offset:{REC*tt} sc1')
        a(f'buffer_load_dword {v(Fl[tt])}, {v(vG + tt)}, {srd(sWS)}, 0 offen sc1')
    for tt in range(2): a(f'buffer_load_dwordx4 {v(Fq[tt],4)}, {v(v16)}, {srd(sWS)}, {s(sQa)} offen offset:{1024*tt} sc1')
    for tt in range(2):
        for f in range(2): a(f'buffer_load_dwordx4 {v(Fv[tt]+4*f,4)}, {v(vVfL+f)}, {srd(sWS)}, {s(sRec)} offen offset:{REC*tt} sc1')
    lds_wait(a, 2, C_F1A, 4)
    D = {('k', 0): 80, ('k', 1): 96, ('q', 0): 112, ('q', 1): 128}
    a('s_waitcnt vmcnt(6)')
    lprio(0)
    for tt in range(2): mfma(a, D[('k', tt)], WLk, Fl[tt], None, '8')
    for tt in range(2): mfma(a, D[('q', tt)], WLq, Fl[tt], None, '8')
    a.nop(7)
    for tt in range(2): mfma(a, D[('k', tt)], WPH, Fk[tt], D[('k', tt)])
    a('s_waitcnt vmcnt(4)')
    for tt in range(2): mfma(a, D[('q', tt)], WPH, Fq[tt], D[('q', tt)])
    a.nop(8)
    lprio(1)
    dense = False
    EP, EM = 144, 156
    PH = {('q', 0): 204, ('q', 1): 214, ('k', 0): 168, ('k', 1): 178}
    def sums():
        a(f'''v_pk_add_f32 v[2:3], {v(EP,2)}, {v(EP+2,2)}
        v_pk_add_f32 v[4:5], {v(EM,2)}, {v(EM+2,2)}
        v_pk_add_f32 v[2:3], v[2:3], {v(EP+4,2)}
        v_pk_add_f32 v[4:5], v[4:5], {v(EM+4,2)}
        v_pk_add_f32 v[2:3], v[2:3], {v(EP+6,2)}
        v_pk_add_f32 v[4:5], v[4:5], {v(EM+6,2)}
        v_add_f32 v2, v2, {v(EP+8)}
        v_add_f32 v4, v4, {v(EM+8)}
        v_add_f32 v2, v2, v3
        v_add_f32 v4, v4, v5
        s_nop 1
        v_permlane32_swap_b32 v2, v4
        v_add_f32 v2, v2, v4''')
    def softmax_max(x, lab, back):
        a.label(lab)
        a(f'''v_max3_f32 v2, {v(x)}, {v(x+1)}, {v(x+2)}
        v_max3_f32 v4, -{v(x)}, -{v(x+1)}, -{v(x+2)}
        v_max3_f32 v2, v2, {v(x+3)}, {v(x+4)}
        v_max3_f32 v4, v4, -{v(x+3)}, -{v(x+4)}
        v_max3_f32 v2, v2, {v(x+5)}, {v(x+6)}
        v_max3_f32 v4, v4, -{v(x+5)}, -{v(x+6)}
        v_max3_f32 v2, v2, {v(x+7)}, {v(x+8)}
        v_max3_f32 v4, v4, -{v(x+7)}, -{v(x+8)}
        s_nop 1
        v_permlane32_swap_b32 v2, v4
        v_max_f32 v2, v2, v4
        v_mov_b32 v4, v2
        s_nop 1
        v_permlane32_swap_b32 v2, v4''')
        for i in range(9): a(f'v_sub_f32 {v(EP+i)}, {v(x+i)}, v2\nv_sub_f32 {v(EM+i)}, -{v(x+i)}, v4')
        for E in (EP, EM):
            for i in range(9): a(f'v_mul_f32 {v(E+i)}, {s(T2)}, {v(E+i)}')
        for E in (EP, EM):
            for i in range(9): a(f'v_exp_f32 {v(E+i)}, {v(E+i)}')
        sums()
        a(f's_branch {back}')
    def softmax2(x, P, lo=False):
        lab = a.new('smx'); back = a.new('smb')
        a.late.append(lambda: softmax_max(x, lab, back))
        for i in range(0, 8, 2): a(f'v_pk_mul_f32 {v(EM+i,2)}, {v(x+i,2)}, {s(T2,2)}')
        a(f'v_mul_f32 {v(EM+8)}, {s(T2)}, {v(x+8)}')
        bgdma()
        if lo == 2:
            hi = a.new('qh')
            a(f's_waitcnt vmcnt(4)\nv_cmp_ne_u32 vcc, {s(sTok)}, v7\ns_cbranch_vccz {hi}\ns_setprio 0')
            a.label(hi)
        elif lo: lprio(0)
        isq = P in (PH[('q', 0)], PH[('q', 1)])
        for i in range(9):
            a(f'v_exp_f32 {v(EP+i)}, {v(EM+i)}')
            if isq and dense and i == 4: bgdma()
        bgdma()
        for i in range(9):
            a(f'v_exp_f32 {v(EM+i)}, -{v(EM+i)}')
            if isq and dense and i == 4: bgdma()
        if lo: lprio(1)
        bgdma()
        if opt.get('qlo') == 5 and P == PH[('q', 0)]: a(f'buffer_load_dword v7, {v(vF2)}, {srd(sWS)}, 0 offen sc1')
        sums()
        a(f'''v_cmp_nle_f32 {s(sC2,2)}, {s(sLoB)}, v2
        v_cmp_nge_f32 vcc, {s(sHiB)}, v2
        s_or_b64 vcc, vcc, {s(sC2,2)}
        s_cbranch_scc1 {lab}''')
        a.label(back)
        a(f'''v_rcp_f32 v2, v2
        s_nop 0
        v_mov_b32 v4, v2
        s_nop 1
        v_permlane32_swap_b32 v2, v4''')
        for E, t in ((EP, 2), (EM, 4)):
            for i in range(0, 8, 2): a(f'v_pk_mul_f32 {v(E+i,2)}, {v(E+i,2)}, {v(t,2)} op_sel_hi:[1,0]')
            a(f'v_mul_f32 {v(E+8)}, {v(E+8)}, {v(t)}')
        bgdma()
        cvt8(a, EP, P); cvt8(a, EM, P+4)
        a(f'v_cvt_pk_bf16_f32 {v(P+8)}, {v(EP+8)}, {v(EM+8)}')
    for tt in range(2):
        P = PH[('k', tt)]
        softmax2(D[('k', tt)], P, bool(opt.get('klo', 0) >> tt & 1))
        o = 2560*tt
        a(f'''ds_write_b64 {v(vPh)}, {v(P,2)} offset:{o}
        ds_write_b64 {v(vPh)}, {v(P+2,2)} offset:{o+16}
        ds_write_b64 {v(vPh)}, {v(P+4,2)} offset:{o+32}
        ds_write_b64 {v(vPh)}, {v(P+6,2)} offset:{o+48}
        ds_write_b32 {v(vPh)}, {v(P+8)} offset:{o+64}''')
    a.c('kv partial of this wave: phi_k^T (transposed through LDS) x [v | 1]')
    KA = 144; KD = [80, 96]
    a('s_waitcnt lgkmcnt(0)')
    for k in range(4):
        for sg in range(2):
            for j in range(2):
                a(f'ds_read_b64_tr_b16 {v(KA+8*k+4*sg+2*j,2)}, {v(vPr+sg)} offset:{(16*k+8*j)*80 + 32*sg}')
    a(f'''s_mul_i32 {s(T0)}, {s(sW4)}, 5120
    s_add_u32 {s(T0)}, {s(T0)}, {PHS}
    v_add_u32 v6, {s(T0)}, {v(v16)}
    v_lshlrev_b32 v1, 3, v0
    v_add_u32 v7, {s(T0)}, v1
    s_waitcnt vmcnt({0 if hold[0] else 2*kg}) lgkmcnt(0)''')
    lprio(0)
    for k in range(4):
        for sg in range(2): mfma(a, KD[sg], KA+8*k+4*sg, Fv[0]+4*k, None if k == 0 else KD[sg])
    a.nop(11)
    lprio(1)
    a(f'''ds_write_b128 v6, {v(KD[0],4)} 
    ds_write_b128 v6, {v(KD[0]+4,4)} offset:1024
    ds_write_b64 v7, {v(KD[0]+8,2)} offset:2048
    ds_write_b128 v6, {v(KD[1],4)} offset:2560
    ds_write_b128 v6, {v(KD[1]+4,4)} offset:3584
    s_waitcnt lgkmcnt(0)''')
    lds_arrive(a, C_KVX)
    a(f'''s_mul_i32 {s(T7)}, {s(sTH)}, 2560
    s_lshl_b32 {s(T1)}, {s(sMG)}, 10
    s_add_u32 {s(T7)}, {s(T7)}, {s(T1)}
    s_add_u32 {s(T1)}, {s(T7)}, {PHS}
    v_add_u32 v6, {s(T1)}, {v(v16)}
    v_add_u32 v7, {PHS}, v1
    s_lshl_b32 {s(T0)}, {s(sHA)}, 3
    s_add_u32 {s(T1)}, {s(T0)}, {s(sRB)}
    s_mul_i32 {s(T4)}, {s(T1)}, {KVPS}
    s_add_u32 {s(T4)}, {s(T4)}, {KVP:#x}
    s_add_u32 {s(T5)}, {s(T4)}, {s(T7)}
    s_lshl_b32 {s(T1)}, {s(T1)}, 7
    s_add_u32 {s(T1)}, {s(T1)}, {FL2:#x}''')
    lds_wait(a, 2, C_KVX, 4)
    R = 80
    for w in range(4): a(f'ds_read_b128 {v(R+4*w,4)}, v6 offset:{5120*w}')
    a(f's_cmp_lg_u32 {s(sW4)}, 3\ns_cbranch_scc1 L_kvx')
    for w in range(4): a(f'ds_read_b64 {v(R+16+2*w,2)}, v7 offset:{5120*w + 2048}')
    a('s_waitcnt lgkmcnt(0)')
    for w in range(1, 4): a(f'v_pk_add_f32 {v(R+16,2)}, {v(R+16,2)}, {v(R+16+2*w,2)}')
    a(f'buffer_store_dwordx2 {v(R+16,2)}, v1, {srd(sWS)}, {s(T4)} offen offset:2048 sc1')
    a.label('L_kvx')
    a('s_waitcnt lgkmcnt(0)')
    for w in range(1, 4):
        for k in range(2): a(f'v_pk_add_f32 {v(R+2*k,2)}, {v(R+2*k,2)}, {v(R+4*w+2*k,2)}')
    a(f'buffer_store_dwordx4 {v(R,4)}, {v(v16)}, {srd(sWS)}, {s(T5)} offen sc1')
    a('s_waitcnt vmcnt(0)')
    last_signals(a, 2, C_F2, 4, T1)
    a.stamp(7)
    a.c('================= waves 4-7: kv total, numerator / denominator =================')
    a(f'''s_lshl_b32 {s(T0)}, {s(sHA)}, 3
    s_mul_i32 {s(T4)}, {s(T0)}, {KVPS}
    s_add_u32 {s(T4)}, {s(T4)}, {KVP:#x}
    s_add_u32 {s(T5)}, {s(T4)}, {s(T7)}
    s_lshl_b32 {s(T7)}, {s(sTH)}, 10
    s_lshl_b32 {s(T0)}, {s(sMG)}, 3
    s_add_u32 {s(T7)}, {s(T7)}, {s(T0)}
    s_add_u32 {s(T7)}, {s(T7)}, {KVF}''')
    lds_wait(a, 2, C_F2, 4)
    skip[1] = ()
    bg += mains(sAWO, 0, LATE) + mains(sAWO, 2, LATE + MB) + [('e', 0, 2, LATE + 2*MB, 0), ('e', 2, 3, LATE + 2*MB + EB, 1)]
    dense = hold[0] or kg < 6; hold[0] = False
    for tt in range(2):
        softmax2(D[('q', tt)], PH[('q', tt)], 2 if tt and opt.get('qlo') == 5 else bool(opt.get('qlo', 0) >> tt & 1))
        a(f'v_mov_b32 {v(PH[("q", tt)]+9)}, 0')
    assert not bg
    poll_flags(a, vF2, 2, sl=4)
    for i in range(8):
        a(f'buffer_load_dwordx4 {v(R+4*i,4)}, {v(v16)}, {srd(sWS)}, {s(T5)} offen sc1')
        if i < 7: a(f's_add_u32 {s(T5)}, {s(T5)}, {KVPS}')
    a(f'v_add_u32 v3, {s(T7)}, {v(v16)}\nv_add_u32 v6, {KVF + 2048}, v1\ns_cmp_lg_u32 {s(sW4)}, 3\ns_cbranch_scc1 L_kvs')
    for i in range(8):
        a(f'buffer_load_dwordx2 {v(R+32+2*i,2)}, v1, {srd(sWS)}, {s(T4)} offen offset:2048 sc1')
        if i < 7: a(f's_add_u32 {s(T4)}, {s(T4)}, {KVPS}')
    a('s_waitcnt vmcnt(0)')
    for i in range(1, 8): a(f'v_pk_add_f32 {v(R+32,2)}, {v(R+32,2)}, {v(R+32+2*i,2)}')
    a(f'v_cvt_pk_bf16_f32 v4, {v(R+32)}, {v(R+33)}\nv_mov_b32 v5, 0\nds_write_b64 v6, v[4:5]')
    a.label('L_kvs')
    a('s_waitcnt vmcnt(0)')
    for i in range(1, 8):
        for k in range(2): a(f'v_pk_add_f32 {v(R+2*k,2)}, {v(R+2*k,2)}, {v(R+4*i+2*k,2)}')
    a(f'v_cvt_pk_bf16_f32 v10, {v(R)}, {v(R+1)}\nv_cvt_pk_bf16_f32 v11, {v(R+2)}, {v(R+3)}\nds_write_b64 v3, v[10:11]\ns_waitcnt lgkmcnt(0)')
    lds_arrive(a, C_KVF)
    lds_wait(a, 2, C_KVF, 4)
    KF = 144
    a(f'''v_add_u32 v3, {KVF}, {v(v16)}
    ds_read_b64 {v(KF+8,2)}, v6
    ds_read_b128 {v(KF,4)}, v3
    ds_read_b128 {v(KF+4,4)}, v3 offset:1024
    s_mov_b32 {s(T0)}, {s(sTl)}''')
    o_addr(a, sHA, OAM, OAL)
    a.c('the o_B rows of the same tiles get the marker; the flag for o_A below covers these stores too')
    for i in range(4): a(f'v_mov_b32 {v(160+i)}, -1')
    for t in range(2):
        a(f's_add_u32 {s(T0)}, {s(T2+t)}, {OBM - OAM:#x}\nbuffer_store_dwordx4 v[160:163], {v(v16)}, {srd(sWS)}, {s(T0)} offen sc1')
    a('s_mov_b32 exec_hi, 0')
    for t in range(2):
        a(f's_add_u32 {s(T0)}, {s(T4+t)}, {OBL - OAL:#x}\nbuffer_store_dword v160, {v(vQL)}, {srd(sWS)}, {s(T0)} offen sc1')
    a('s_mov_b32 exec_hi, -1')
    a('s_waitcnt lgkmcnt(0)')
    ND = [80, 96]
    lprio(0)
    for tt in range(2): mfma(a, ND[tt], KF+8, PH[('q', tt)]+8, None, '8')
    a.nop(9)
    for tt in range(2): mfma(a, ND[tt], KF, PH[('q', tt)], ND[tt])
    for tt in range(2): mfma(a, ND[tt], KF+4, PH[('q', tt)]+4, ND[tt])
    a.nop(11)
    lprio(1)
    o_publish(a, ND, [112, 120], True)
    a(f's_lshr_b32 {s(T6)}, {s(sTl)}, 1')
    flag_addr(a, T1, T6, sHA, 5, FL3)
    wave_signals(a, 2, T1)
    a.stamp(8)
    a.c('================= waves 4-7: out projection of A (operands first, MFMAs after the attention) =================')
    W, O1, O2 = 16, 124, 160
    X, Y = 4, 10
    sM, sM2, sL = 59, 60, 61
    a(f's_or_b32 {s(T6)}, {s(sXa)}, {s(sXb)}')
    op_read_w(a, W, vXs, T6)
    a(f'''    s_lshl_b32 {s(T1)}, {s(sOT)}, 1
    s_add_u32 {s(T5)}, {s(sTH)}, {s(T1)}
    s_lshl_b32 {s(T0)}, {s(T5)}, 5
    s_lshl_b32 {s(T1)}, {s(sMG)}, 4
    s_add_u32 {s(T7)}, {s(T0)}, {s(T1)}
    s_lshl_b32 {s(sM)}, {s(T7)}, 10
    s_add_u32 {s(sM)}, {s(sM)}, {OAM:#x}
    s_add_u32 {s(sM2)}, {s(sM)}, 4096
    s_lshl_b32 {s(sL)}, {s(T7)}, 7
    s_add_u32 {s(sL)}, {s(sL)}, {OAL:#x}
    s_waitcnt lgkmcnt(0)''')
    lds_arrive(a, C_W1)
    lds_wait(a, 2, C_W1, 4)
    bg += mains(sBWO, 1, LATE) + mains(sBWO, 2, LATE + MB) + mains(sBWO, 3, LATE + 2*MB)
    bgdma(); bgdma()
    for i in range(6): a((f'v_mov_b32 {v(X+i)}, {v(vXs+i)}\n' if i < 4 else '') + f'v_subrev_u32 {v(Y+i)}, {LATE - M_A}, {v(vXs+i)}')
    final_state(a)
    bgdma(); bgdma()
    poll_flags(a, vF3, 2, sl=2)
    a.c('short batches keep the memory queue of the CU free for the attention waves')
    for O in (O1, O2):
        for h in range(2):
            for i in range(4): a(f'buffer_load_dwordx4 {v(O+16*h+4*i,4)}, {v(v16)}, {srd(sWS)}, {s(sM2 if h else sM)} offen offset:{1024*i} sc1')
            if h:
                for i in range(4): a(f'buffer_load_dword {v(O+32+i)}, {v(vFol)}, {srd(sWS)}, {s(sL)} offen offset:{128*i} sc1')
                bgdma()
            if h or not opt.get('ob2', 1): a(f's_waitcnt vmcnt({opt.get("othr", 2)})')
        if O == O1: a(f's_add_u32 {s(sM)}, {s(sM)}, 8192\ns_add_u32 {s(sM2)}, {s(sM2)}, 8192\ns_add_u32 {s(sL)}, {s(sL)}, 1024')
    assert not bg
    a('s_waitcnt vmcnt(0)')
    a.stamp(9)
    pre = opt.get('pre', 0)
    mid = opt.get('mid', 1)
    a('s_setprio 0')
    for ps, (O, nxt) in enumerate(((O1, Y), (O2, X))):
        if ps == 1:
            a('s_waitcnt lgkmcnt(0)')
            lds_arrive(a, C_W3)
        for st in range(9):
            if 9*ps + st == pre: a(f's_barrier\ns_setprio {opt.get("prio2", 0)}')
            if opt.get('p4') and 9*ps + st in (pre, 9): a.stamp(5 if ps == 0 else 4)
            rd = op_w_reads(W, nxt, st - 1, MB*ps) if st else [''] * 4
            for T in range(2):
                mfma(a, ACA[T], W + 8*st + 4*T, O + 4*st, None if (ps == 0 and st == 0) else ACA[T])
                a(rd[2*T]); a(rd[2*T+1])
            k = 9*ps + st
            if k == opt.get('spec', 99):
                flag_ld(a); half_ld(a, 0); half_ld(a, 1); left_ld(a)
                a(f's_mov_b32 {s(sA)}, 1\ns_mov_b32 {s(sB_)}, 1\ns_mov_b32 {s(sC)}, 1')
            if k == 14 and opt.get('spec', 99) > 17: flag_ld(a)
        a('\n'.join(op_w_reads(W, nxt, 8, MB*ps)))
        lb = a.new('xa')
        a(f's_cmp_eq_u32 {s(sXa)}, 0\ns_cbranch_scc1 {lb}')
        for st in range(9):
            mfma(a, ACA[2], W + 72 + 4*st, O + 4*st, None if (ps == 0 and st == 0) else ACA[2])
            if ps == 0 and st: a('\n'.join(op_e_reads(W, Y, st - 1)))
        if ps == 0: a('\n'.join(op_e_reads(W, Y, 8)))
        a.label(lb)
    if opt.get('p4'): a.stamp(3)
    a('s_setprio 0')
    lds_wait(a, 2, C_W3, 4, sl=0)
    if opt.get('nojq'): lds_arrive(a, C_WB)
    a(f's_mul_i32 {s(T0)}, {s(sW4)}, {WSTR}\ns_add_u32 {s(T0)}, {s(T0)}, {ARED}\nv_add_u32 v1, {s(T0)}, {v(v16)}')
    for q in range(8): a(f'ds_write_b128 v1, {v(ACA[0]+4*q,4)} offset:{QS*q}')
    a(f's_cmp_eq_u32 {s(sXa)}, 0\ns_cbranch_scc1 L_anx\ns_mul_i32 {s(T0)}, {s(sMG)}, {4*QS}\ns_add_u32 {s(T0)}, {s(T0)}, {EXR}\nv_add_u32 v1, {s(T0)}, {v(v16)}')
    for q in range(4): a(f'ds_write_b128 v1, {v(ACA[2]+4*q,4)} offset:{QS*q}')
    a.label('L_anx')
    a.stamp(2)

HEADER = '''; Fused hedgehog linear attention (A) + softmax MHA (B), one persistent launch of 256 workgroups.
; kernarg: A_x A_wqkv A_w_phi A_wo B_x B_wqkv B_wo out debug ws (8-byte pointers, in that order)
; @launch grid=(256,1,1) block=(512,1,1) lds=%d
.amdgcn_target "amdgcn-amd-amdhsa--gfx950"
.text
.globl %s_kernel
.p2align 8
.type %s_kernel,@function
%s_kernel:
''' % (LDS_BYTES, NAME, NAME, NAME)
FOOTER = '''.section .rodata,"a"
.p2align 6
.amdhsa_kernel %s_kernel
  .amdhsa_next_free_vgpr 256
  .amdhsa_next_free_sgpr 102
  .amdhsa_accum_offset 256
  .amdhsa_group_segment_fixed_size 0
  .amdhsa_kernarg_size 80
  .amdhsa_user_sgpr_count 2
  .amdhsa_user_sgpr_kernarg_segment_ptr 1
  .amdhsa_system_sgpr_workgroup_id_x 1
.end_amdhsa_kernel
''' % NAME

OPT = {}
def generate(diag=False, **opt):
    opt = {**dict(rot=3, thr=3, sig=12, ldp=1, qlo=3, w1=2, prio2=1, mid=0, ob2=0, phij=-1, sched=2, nojq=1, sl2=1, sig2=12, klo=0), **opt}
    OPT.clear(); OPT.update(opt)
    a = Asm(diag)
    prologue(a, opt)
    a_chain(a, opt)
    final(a)
    body = a.text()
    bad = lint(body)
    for x in bad: print(f"HAZARD line {x[0]} -> {x[1]}: {x[2]} need {x[3]} have {x[4]}\n    {x[5]}\n    {x[6]}", file=sys.stderr)
    return HEADER + (f'    ; stamps={STAMPS + (opt.get("wsoff", 0) << 20):#x}\n' if diag else '') + body + FOOTER, len(bad)

if __name__ == '__main__':
    import argparse
    ap = argparse.ArgumentParser()
    ap.add_argument('-o', default=f'cdna_kernels/{NAME}.s')
    ap.add_argument('--diag', action='store_true')
    ap.add_argument('--opt', action='append', default=[])
    g = ap.parse_args()
    opt = {}
    for o in g.opt:
        k, val = o.split('='); opt[k] = int(val)
    text, nbad = generate(g.diag, **opt)
    open(g.o, 'w').write(text)
    print(f'wrote {g.o}: {len(text)} bytes, {nbad} hazards')
```
